```python
import torch

def _softmax(x, axis=-1):
    return torch.softmax(x, dim=axis)
def _gelu(x):
    return torch.nn.functional.gelu(x, approximate="tanh")
def _silu(x):
    return torch.nn.functional.silu(x)
def _sigmoid(x):
    return torch.sigmoid(x)
def _layernorm(x, axis=-1, eps=1e-5):
    m = x.mean(dim=axis, keepdim=True)
    v = x.var(dim=axis, keepdim=True, unbiased=False)
    return (x - m) / torch.sqrt(v + eps)
def _scatter_add(tgt, idx, src, axis=0):
    return tgt.clone().index_add_(axis, idx, src)
def _segment_sum(src, seg, n):
    out = torch.zeros((n,) + src.shape[1:], dtype=src.dtype)
    return out.index_add_(0, seg, src)
def _pad(x, pw):
    flat = tuple(v for pair in reversed(pw) for v in pair)
    return torch.nn.functional.pad(x, flat)

kernel_name = 'parallel_sum__linear_kernel_hedgehog__dense_activation_gelu__prompt'

def setup_inputs():

    _w = (lambda a: (lambda t: t.to(torch.bfloat16) if t.is_floating_point() else t)(torch.as_tensor(a)))
    def _A_setup():
        B, S, D, H = 1, 2048, 512, 32
        Dh = D // H
        return {
            "x": _w((lambda *s: torch.randn(*s, dtype=torch.bfloat16) * 0.05)(B, S, D)),
            "wqkv": _w((lambda *s: torch.randn(*s, dtype=torch.bfloat16) * 0.2)(D, 3 * D)),
            "w_phi": _w((lambda *s: torch.randn(*s, dtype=torch.bfloat16) * 0.2)(H, Dh, Dh) * (Dh ** -0.5)),
            "wo": _w((lambda *s: torch.randn(*s, dtype=torch.bfloat16) * 0.05)(D, D)),
        }
    _A_in = _A_setup()

    def _B_setup():
        B, S, D, F = 1, 2048, 512, 1376
        return {
            "x": _w((lambda *s: torch.randn(*s, dtype=torch.bfloat16) * 0.05)(B, S, D)),
            "w1": _w((lambda *s: torch.randn(*s, dtype=torch.bfloat16) * 0.8)(D, F) * (D ** -0.5)),
            "b1": _w((lambda *s: torch.randn(*s, dtype=torch.bfloat16) * 12.8)(F) * 0.01),
            "w2": _w((lambda *s: torch.randn(*s, dtype=torch.bfloat16) * 0.4)(F, D) * (F ** -0.5)),
            "b2": _w((lambda *s: torch.randn(*s, dtype=torch.bfloat16) * 6.4)(D) * 0.01),
        }
    _B_in = _B_setup()

    return {
        "A_x": _A_in["x"],
        "A_wqkv": _A_in["wqkv"],
        "A_w_phi": _A_in["w_phi"],
        "A_wo": _A_in["wo"],
        "B_x": _B_in["x"],
        "B_w1": _B_in["w1"],
        "B_b1": _B_in["b1"],
        "B_w2": _B_in["w2"],
        "B_b2": _B_in["b2"],
    }

def reference(A_x, A_wqkv, A_w_phi, A_wo, B_x, B_w1, B_b1, B_w2, B_b2):
    def _A_ref(x, wqkv, w_phi, wo):
        B, S, D = x.shape
        H = 32; Dh = D // H
        qkv = (lambda x, *d: x.permute(*d))((x @ wqkv).reshape(B, S, 3, H, Dh), 2, 0, 3, 1, 4)
        q, k, v = qkv[0], qkv[1], qkv[2]
        pq = torch.einsum("bhsd,hdf->bhsf", q, w_phi)
        pk = torch.einsum("bhsd,hdf->bhsf", k, w_phi)
        phi_q = torch.concatenate([_softmax(pq, axis=-1), _softmax(-pq, axis=-1)], axis=-1)
        phi_k = torch.concatenate([_softmax(pk, axis=-1), _softmax(-pk, axis=-1)], axis=-1)
        kv = torch.einsum("bhsf,bhsd->bhfd", phi_k, v)
        z  = torch.einsum("bhsf->bhf", phi_k)
        num = torch.einsum("bhqf,bhfd->bhqd", phi_q, kv)
        den = torch.einsum("bhqf,bhf->bhq", phi_q, z)[..., None] + 1e-6
        o = num / den
        return (lambda x, *d: x.permute(*d))(o, 0, 2, 1, 3).reshape(B, S, D) @ wo

    def _B_ref(x, w1, b1, w2, b2):
        h = torch.einsum("bsd,df->bsf", x, w1) + b1
        h = _gelu(h)
        return torch.einsum("bsf,fd->bsd", h, w2) + b2

    x = A_x
    xn = _layernorm(x, axis=-1)
    return x + _A_ref(xn, A_wqkv, A_w_phi, A_wo) + _B_ref(xn, B_w1, B_b1, B_w2, B_b2)
```

```python
class Asm:
    def __init__(self):
        self.l = []
        self.uid = 0
    def __call__(self, s=""):
        for x in s.split("\n"):
            self.l.append("    " + x.strip() if x.strip() and not x.strip().endswith(":") else x.strip())
    def label(self, name):
        self.l.append(name + ":")
    def newlabel(self, p="L"):
        self.uid += 1
        return "%s_%d" % (p, self.uid)
    def text(self):
        return "\n".join(self.l) + "\n"

def kernel_head(name):
    return (".globl %s\n.p2align 8\n.type %s,@function\n%s:\n" % (name, name, name))

def kernel_desc(name, vgpr, accum, sgpr=102):
    return (".p2align 6\n.amdhsa_kernel %s\n  .amdhsa_next_free_vgpr %d\n  .amdhsa_next_free_sgpr %d\n  .amdhsa_accum_offset %d\n"
            "  .amdhsa_group_segment_fixed_size 0\n  .amdhsa_kernarg_size 96\n  .amdhsa_user_sgpr_count 2\n"
            "  .amdhsa_user_sgpr_kernarg_segment_ptr 1\n  .amdhsa_system_sgpr_workgroup_id_x 1\n"
            "  .amdhsa_float_denorm_mode_32 3\n  .amdhsa_float_denorm_mode_16_64 3\n  .amdhsa_ieee_mode 0\n  .amdhsa_dx10_clamp 1\n"
            ".end_amdhsa_kernel\n" % (name, vgpr, sgpr, accum))

def module(header_lines, kernels):
    s = "".join("; " + h + "\n" for h in header_lines)
    s += '.amdgcn_target "amdgcn-amd-amdhsa--gfx950"\n.text\n'
    for k in kernels:
        s += kernel_head(k[0]) + k[1]
    s += '.section .rodata,"a"\n'
    for k in kernels:
        s += kernel_desc(k[0], k[2], k[3])
    return s
```

```python
import re

TRANS = ("v_exp_f32", "v_log_f32", "v_rcp_f32", "v_rsq_f32", "v_sqrt_f32", "v_sin_f32", "v_cos_f32")
REG = re.compile(r"^(-|abs\()?([vas])(?:(\d+)|\[(\d+):(\d+)\])\)?$")

def regs_of(op):
    op = op.strip()
    if op in ("vcc",): return [("s", "vcc_lo"), ("s", "vcc_hi")]
    if op in ("vcc_lo", "vcc_hi", "m0"): return [("s", op)]
    if op == "exec": return [("s", "exec")]
    m = REG.match(op)
    if not m: return []
    t = m.group(2)
    if m.group(3) is not None: return [(t, int(m.group(3)))]
    return [(t, i) for i in range(int(m.group(4)), int(m.group(5)) + 1)]

class Ins:
    __slots__ = ("text", "op", "kind", "rd", "wr", "srcc", "passes", "tok", "cond", "cost", "wide_store", "sdata")
    def __init__(self, text, tok=None, cond=False):
        self.text = text.strip(); self.tok = tok; self.cond = cond
        self.rd = []; self.wr = []; self.srcc = []; self.passes = 0; self.wide_store = False; self.sdata = []
        t = self.text.split(";")[0].strip()
        if t.endswith(":") or t.startswith("."):
            self.op = t; self.kind = "label"; self.cost = 0; return
        parts = t.split(None, 1)
        op = self.op = parts[0]
        rest = parts[1] if len(parts) > 1 else ""
        ops = [x.strip() for x in rest.split(",")] if rest else []
        mods = ""
        if ops:
            sp = ops[-1].split(None, 1)
            ops[-1] = sp[0]; mods = sp[1] if len(sp) > 1 else ""
        if "[" in rest and re.search(r"(quad_perm|op_sel|op_sel_hi|neg_lo|neg_hi):\[", rest):
            cut = re.search(r"\s(quad_perm|op_sel|op_sel_hi|neg_lo|neg_hi|row_|bank_mask|bound_ctrl)", rest).start()
            ops = [x.strip() for x in rest[:cut].split(",")]; mods = rest[cut:]
        R = [regs_of(o) for o in ops]
        flat = lambda l: [r for x in l for r in x]
        self.cost = 1
        if op.startswith("v_mfma"):
            self.kind = "mfma"; self.wr = R[0]; self.rd = flat(R[1:]); self.srcc = R[3]
            self.passes = 8 if "32x32" in op else 4
            self.cost = 2
        elif op.startswith("v_cmp"):
            self.kind = "valu"; self.wr = R[0]; self.rd = flat(R[1:])
        elif op.startswith("v_permlane"):
            self.kind = "valu"; self.wr = R[0] + R[1]; self.rd = R[0] + R[1]
        elif op.startswith("v_"):
            self.kind = "trans" if op.replace("_e32", "").replace("_e64", "") in TRANS else "valu"
            if self.kind == "trans": self.cost = 2
            self.wr = R[0]; self.rd = flat(R[1:])
            if op.startswith(("v_add_co", "v_addc_co", "v_sub_co", "v_subb_co")):
                self.wr = R[0] + R[1]; self.rd = flat(R[2:])
            if op.startswith(("v_fmac", "v_dot2c", "v_writelane")) or "_dpp" in op or "_sdwa" in op:
                self.rd = self.rd + R[0]
        elif op.startswith("ds_read") or op.startswith("ds_bpermute"):
            self.kind = "dsr"; self.wr = R[0]; self.rd = flat(R[1:])
        elif op.startswith("ds_"):
            self.kind = "dsw"; self.rd = flat(R)
        elif op.startswith(("buffer_load", "global_load")):
            if " lds" in (" " + mods) or op.startswith("global_load_lds"):
                self.kind = "dma"; self.rd = flat(R) + [("s", "m0")]
            else:
                self.kind = "vld"; self.wr = R[0]; self.rd = flat(R[1:])
                if "d16" in op: self.rd = self.rd + R[0]
        elif op.startswith(("buffer_store", "global_store")):
            self.kind = "vst"; self.rd = flat(R)
            self.sdata = R[0] if op.startswith("buffer") else R[1]
            self.wide_store = op.endswith(("x3", "x4"))
        elif op.startswith(("s_load", "s_memtime", "s_memrealtime")):
            self.kind = "smem"; self.wr = R[0]; self.rd = flat(R[1:])
        elif op == "s_waitcnt": self.kind = "wait"
        elif op == "s_nop": self.kind = "nop"
        elif op == "s_barrier": self.kind = "barrier"
        elif op.startswith(("s_cbranch", "s_branch", "s_endpgm", "s_sleep", "s_setprio")):
            self.kind = "ctl"
            if "vcc" in op: self.rd = regs_of("vcc")
        elif op.startswith(("s_cmp", "s_bitcmp")):
            self.kind = "salu"; self.rd = flat(R)
        elif op.startswith("s_"):
            self.kind = "salu"; self.wr = R[0]; self.rd = flat(R[1:])
            if "saveexec" in op: self.wr = self.wr + [("s", "exec")]
        elif op == "WAITTOK":
            self.kind = "waittok"; self.cost = 0
        elif op == "GAP":
            self.kind = "gap"; self.cost = 0
        else:
            raise ValueError("unknown instruction: " + text)
        if op.startswith("v_cndmask") and len(ops) == 3: self.rd = self.rd + regs_of("vcc")

class Stream(list):
    def __call__(self, s, tok=None, cond=False):
        for x in s.split("\n"):
            if x.strip():
                self.append(Ins(x, tok, cond))
        return self
    def waittok(self, *toks):
        i = Ins("WAITTOK"); i.tok = toks; self.append(i)
    def gap(self, n):
        i = Ins("GAP"); i.tok = n; self.append(i)

VM = ("vld", "vst", "dma")
def finalize(stream, stats=None):
    out = []
    vm_n = 0; lg_n = 0
    vm_done = 0; lg_done = 0
    pend_vm = {}; pend_lg = {}
    smem_pend = set()
    toks = {}
    pos = 0
    last_w = {}
    last_c = {}
    last_sd = {}
    nnop = 0; nwait = 0
    def emit(t):
        out.append(t)
    for ins in stream:
        k = ins.kind
        if k == "gap": continue
        if k == "label":
            emit(ins.text); continue
        need_vm = None; need_lg = None
        if k == "waittok":
            for t in ins.tok:
                c, idx = toks[t]
                if c == "vm": need_vm = max(need_vm or 0, idx)
                else: need_lg = max(need_lg or 0, idx)
        else:
            for r in ins.rd + ins.wr:
                if r in pend_vm: need_vm = max(need_vm or 0, pend_vm[r])
                if r in pend_lg: need_lg = max(need_lg or 0, pend_lg[r])
                if r in smem_pend: need_lg = 1 << 30
            if k == "vld" and "d16" in ins.op:
                need_vm = None
                for r in ins.rd:
                    if r in pend_vm and r not in ins.wr: need_vm = max(need_vm or 0, pend_vm[r])
        w = []
        if need_vm is not None and need_vm > vm_done:
            n = min(vm_n - need_vm, 63); w.append("vmcnt(%d)" % n)
            if not ins.cond: vm_done = vm_n - n
        if need_lg is not None and (need_lg > lg_done or need_lg == 1 << 30):
            if smem_pend or need_lg == 1 << 30: n = 0
            else: n = min(lg_n - need_lg, 15)
            w.append("lgkmcnt(%d)" % n)
            if not ins.cond:
                lg_done = lg_n - n
                if n == 0: smem_pend = set()
        if w:
            emit("s_waitcnt " + " ".join(w)); nwait += 1
            if not ins.cond: pos += 1
        pend_vm = {r: i for r, i in pend_vm.items() if i > vm_done}
        pend_lg = {r: i for r, i in pend_lg.items() if i > lg_done}
        if k == "waittok": continue
        if k == "wait":
            if not ins.cond:
                m = re.search(r"vmcnt\((\d+)\)", ins.text)
                if m: vm_done = max(vm_done, vm_n - int(m.group(1)))
                m = re.search(r"lgkmcnt\((\d+)\)", ins.text)
                if m:
                    if int(m.group(1)) == 0: smem_pend = set(); lg_done = lg_n
                    elif not smem_pend: lg_done = max(lg_done, lg_n - int(m.group(1)))
                pend_vm = {r: i for r, i in pend_vm.items() if i > vm_done}
                pend_lg = {r: i for r, i in pend_lg.items() if i > lg_done}
        need = 0
        def dist(p, n):
            nonlocal need
            need = max(need, n - (pos - p - 1))
        isv = k in ("valu", "trans")
        for r in ins.rd:
            if r not in last_w: continue
            p, pk, ps, pi = last_w[r]
            if pk == "mfma":
                if k == "mfma":
                    if r in ins.srcc and pi.wr == ins.srcc and ps == ins.passes and ins.rd.count(r) == 1: pass
                    elif r in ins.srcc and ins.rd.count(r) == 1: dist(p, ps + 2)
                    else: dist(p, ps + 4)
                else: dist(p, ps + 4)
            elif pk in ("valu", "trans"):
                if r[0] in "va":
                    if k == "mfma": dist(p, 2)
                    if pk == "trans" and isv: dist(p, 1)
                    if "_dpp" in ins.op or ins.op.startswith("v_permlane"): dist(p, 2)
                    if ins.op.startswith(("v_readlane", "v_readfirstlane")): dist(p, 1)
                    if pi.op.startswith("v_dot") and not (pi.op == ins.op and ins.rd.count(r) == 1 and r in ins.wr): dist(p, 3)
                    if ("sdwa" in pi.op or "op_sel" in pi.text) and isv: dist(p, 1)
                else:
                    if k in VM: dist(p, 5)
                    elif isv: dist(p, 4 if ins.op.startswith(("v_readlane", "v_writelane")) else 2)
                    elif k in ("salu", "ctl", "smem"): dist(p, 4)
            elif pk == "salu":
                if r == ("s", "m0") and k == "dma": dist(p, 1)
        for r in ins.wr:
            if r in last_w:
                p, pk, ps, pi = last_w[r]
                if pk == "mfma" and k != "mfma": dist(p, ps + 4)
                if pk == "mfma" and k == "mfma" and not (pi.wr == ins.wr and ps == ins.passes): dist(p, ps + 4)
                if pi.op.startswith("v_dot") and pi.op != ins.op: dist(p, 3)
            if r in last_c and k != "mfma":
                p, ps = last_c[r]; dist(p, ps - 1)
            if r in last_sd: dist(last_sd[r], 2)
        if ("s", "exec") in last_w and last_w[("s", "exec")][1] in ("valu", "trans"):
            raise ValueError("VALU exec write not modelled")
        while need > 0:
            n = min(need, 16); emit("s_nop %d" % (n - 1)); nnop += n; need -= n
            if not ins.cond: pos += n
        emit(ins.text)
        for r in ins.wr: last_w[r] = (pos, k, ins.passes, ins)
        if k == "mfma":
            for r in ins.srcc: last_c[r] = (pos, ins.passes)
        if ins.wide_store:
            for r in ins.sdata: last_sd[r] = pos
        if not ins.cond:
            if k in VM:
                vm_n += 1
                for r in ins.wr: pend_vm[r] = vm_n
                if ins.tok is not None: toks[ins.tok] = ("vm", vm_n)
            elif k in ("dsr", "dsw"):
                lg_n += 1
                for r in ins.wr: pend_lg[r] = lg_n
                if ins.tok is not None: toks[ins.tok] = ("lg", lg_n)
            elif k == "smem":
                smem_pend |= set(ins.wr)
            if k == "nop": pos += int(ins.text.split()[1]) + 1
            else: pos += 1
    if stats is not None:
        stats["nops"] = nnop; stats["waits"] = nwait; stats["n"] = len(out)
    return out

def merge(main, fill, budget=8, out=None):
    out = Stream() if out is None else out
    fi = 0; gap = 0; credit = 0.0
    for g in main:
        c = 0
        for ins in g:
            out.append(ins); c += ins.cost
            if ins.cost: gap = max(0, gap - 1)
        credit += budget - c
        while fi < len(fill) and credit > 0:
            f = fill[fi]
            if f.kind == "gap":
                gap = f.tok; fi += 1; continue
            if gap > 0: break
            out.append(f); fi += 1
            if f.kind == "mfma": credit += budget - f.cost
            else: credit -= f.cost
        credit = min(credit, 0.0) if fi >= len(fill) or gap > 0 else credit
    rest = Stream(fill[fi:])
    return out, rest
```

```python
import sys, struct
from asmlib import module
from backend import *

NAME = "parallel_sum__linear_kernel_hedgehog__dense_activation_gelu__prompt"
def f2u(x): return struct.unpack("<I", struct.pack("<f", x))[0]
LOG2E = 1.4426950408889634
K0 = -2.0 * LOG2E * 0.7978845608028654
K1 = K0 * 0.044715

WS_G = 0; WS_FL1 = 0x1000; WS_FL2 = 0x3000; WS_STATS = 0x8000; WS_KVP = 0x40000; WS_ACT = 0x100000
KVREC = 1152; TBSTR = 118 * 1024; WS_STAMP = 0x1000000
TAGC = 0x9E3779B9
R = [0, 32768, 65536, 98304, 131072]
XREG = [R[0], R[1], R[2], R[4]]
SREG = R[3]
FFN_BLK0 = [0, 6, 11, 16, 22, 27, 32, 38]
FFN_NBLK = [6, 5, 5, 6, 5, 5, 6, 5]

sX, sW, sWS, sW2, sWo, sOut, sAux, sB2 = ("s[%d:%d]" % (i, i + 3) for i in (8, 12, 16, 20, 24, 28, 32, 36))
sWV, sT, sJ, sU, sTAG = "s3", "s4", "s5", "s6", "s7"
sROT, sQ4, sTT, sCB, sT2 = "s64", "s65", "s66", "s67", "s68"
sA, sB, sC, sD = "s70", "s71", "s72", "s73"
sXB = ["s74", "s75", "s76", "s77"]
sAB = ["s78", "s79", "s80", "s81"]
sKG = ["s82", "s83", "s84", "s85", "s86", "s87", "s88", "s89"]
sPCOL, sSCOL, sM0W = "s90", "s91", "s92"
sBLKP, sBLKS, sSKIP = "s93", "s94", "s95"
sE0, sE1 = "s96", "s97"
sPAR = "s[98:99]"
STAMP0 = 40

class VA:
    def __init__(self, start=1): self.n = start
    def __call__(self, k=1, al=1):
        self.n = (self.n + al - 1) // al * al
        r = self.n; self.n += k
        assert self.n <= 256, "out of VGPRs"
        return r
def v(i, k=1): return "v%d" % i if k == 1 else "v[%d:%d]" % (i, i + k - 1)
def ag(i, k=1): return "a%d" % i if k == 1 else "a[%d:%d]" % (i, i + k - 1)
MF = "v_mfma_f32_32x32x16_bf16"

class Gen:
    def __init__(self, stamps=False):
        self.stamps = stamps; self.nst = 0; self.uid = 0
    def lab(self, p):
        self.uid += 1; return "L_%s_%d" % (p, self.uid)
    def stamp(self, s, i):
        if self.stamps: s("s_memrealtime s[%d:%d]" % (STAMP0 + 2 * i, STAMP0 + 2 * i + 1))

    def prologue(self, s):
        s("s_cmp_ge_u32 s2, 256\ns_cbranch_scc1 L_end")
        s("s_load_dwordx16 s[40:55], s[0:1], 0\ns_load_dwordx8 s[56:63], s[0:1], 64")
        if self.stamps: s("s_memrealtime s[100:101]")
        s("v_lshrrev_b32 v1, 6, v0\nv_and_b32 v0, 63, v0\nv_readfirstlane_b32 %s, v1" % sWV)
        s("s_and_b32 %s, s2, 7\ns_lshr_b32 %s, s2, 3" % (sA, sB))
        s("s_and_b32 %s, %s, 1\ns_lshl_b32 %s, %s, 3\ns_lshr_b32 %s, %s, 2\ns_add_u32 %s, %s, %s" % (sT, sA, sT, sT, sROT, sB, sT, sT, sROT))
        s("s_lshr_b32 %s, %s, 1\ns_and_b32 %s, %s, 3" % (sQ4, sA, sU, sB))
        s("s_and_b32 %s, %s, 1\ns_lshl_b32 %s, %s, 1\ns_add_u32 %s, %s, %s" % (sJ, sU, sC, sQ4, sJ, sJ, sC))
        s("s_lshl_b32 %s, %s, 2\ns_lshr_b32 %s, %s, 3\ns_add_u32 %s, %s, %s" % (sTT, sA, sC, sB, sTT, sTT, sC))
        s("s_and_b32 %s, %s, 7\ns_lshr_b32 %s, %s, 1" % (sCB, sB, sT2, sTT))
        for g in range(8):
            s("s_add_u32 %s, %s, %d\ns_and_b32 %s, %s, 7" % (sKG[g], sROT, g, sKG[g], sKG[g]))
        for i in range(4):
            s("s_add_u32 %s, %s, %d\ns_and_b32 %s, %s, 3\ns_lshl_b32 %s, %s, 2\ns_add_u32 %s, %s, %s" % (sA, sU, i, sA, sA, sB, sT, sA, sA, sB))
            s("s_mul_i32 %s, %s, %d\ns_add_u32 %s, %s, %d" % (sAB[i], sA, TBSTR, sAB[i], sAB[i], WS_ACT))
            s("s_lshl_b32 %s, %s, 15\ns_lshl_b32 %s, %s, 13\ns_add_u32 %s, %s, %s" % (sXB[i], sA, sB, sWV, sXB[i], sXB[i], sB))
        s("s_and_b32 %s, %s, 1\ns_cmp_eq_u32 %s, 1\ns_cselect_b64 %s, -1, 0" % (sA, sWV, sA, sPAR))
        def srd(d, p, n):
            d0 = int(d[2:].split(":")[0])
            s("s_mov_b32 s%d, s%d\ns_mov_b32 s%d, s%d\ns_mov_b32 s%d, %d\ns_mov_b32 s%d, 0x20000" % (d0, p, d0 + 1, p + 1, d0 + 2, n, d0 + 3))
        self.srd = srd
        srd(sX, 40, 2048 * 1024); srd(sWS, 62, 0x10000000)
        srd(sW2, 54, 1376 * 1024); srd(sWo, 46, 512 * 1024); srd(sOut, 58, 2048 * 1024); srd(sB2, 56, 1024)

    def phase1(self, role):
        att = role == "att"
        s = Stream()
        a = VA(1)
        stride = 3072 if att else 2752
        vL16 = a(); vXD = a(); vPD = a(); vSD = a(); vXR = a(4); vPR = a(2); vSR = a(); vT0 = a(); vT1 = a(); vT2 = a(); vT3 = a()
        vTAG = a(2, 2); vN16 = a()
        ACC = [a(16, 4), a(16, 4)]; CS = a(16, 4); ONES = a(4, 4)
        NX = 6; XF = a(4 * NX, 4)
        CA = [a(4, 4), a(4, 4)]
        ST = a(16, 4)
        KC = [a(3) for _ in range(4)]
        CBS = a(4, 4); KCS = a(3)
        vB1 = a(2)
        if att:
            SEL = [a(4, 4), a(4, 4)]; PHI = [a(4, 4), a(4, 4)]; KV = a(16, 4); TB = a(16, 4); PF = KV
            TA = a(16, 4); F8a = a(8, 4); F8b = a(8, 4); F4 = a(4, 4)
        else:
            G4 = a(4); HO = a(8, 4)
        self.vL16 = vL16; self.vTAG = vTAG
        if att: self.srd(sW, 42, 512 * 3072); self.srd(sAux, 44, 32 * 512)
        else: self.srd(sW, 50, 512 * 2752); self.srd(sAux, 52, 2752)
        pre = self.pre; s.extend(pre); self.pre = None
        s("v_lshlrev_b32 %s, 4, v0" % v(vL16))
        s("v_mov_b32 %s, 0" % v(vT0))
        s("buffer_load_dword %s, %s, %s, 0 offen sc1" % (v(vTAG), v(vT0), sWS))
        s("s_and_b32 %s, %s, 1\ns_lshl_b32 %s, %s, 2" % (sA, sWV, sA, sA))
        s("v_lshrrev_b32 %s, 4, v0\nv_add_u32 %s, %s, %s\nv_and_b32 %s, 7, v0\nv_xor_b32 %s, %s, %s" % (v(vT0), v(vT0), sA, v(vT0), v(vT1), v(vT0), v(vT0), v(vT1)))
        s("v_lshrrev_b32 %s, 3, v0\nv_lshlrev_b32 %s, 10, %s\nv_lshl_add_u32 %s, %s, 4, %s" % (v(vT1), v(vT1), v(vT1), v(vXD), v(vT0), v(vT1)))
        def dma_x(st, i, kg):
            st("s_lshl_b32 %s, %s, 7\ns_add_u32 %s, %s, %s" % (sA, sKG[kg], sA, sA, sXB[i]))
            st("s_add_u32 m0, %s, %d" % (sE0, XREG[i] + kg * 1024))
            st("buffer_load_dwordx4 %s, %s, %s offen lds" % (v(vXD), sX, sA), tok=("x", i))
        s("s_lshl_b32 %s, %s, 13" % (sE0, sWV))
        for kg in range(8): dma_x(s, 0, kg)
        if att:
            s("s_lshl_b32 %s, %s, 7\ns_add_u32 %s, %s, 1024" % (sSCOL, sJ, sPCOL, sSCOL))
        else:
            pk = sum(b << (8 * i) for i, b in enumerate(FFN_BLK0))
            s("s_mov_b32 %s, 0x%x\ns_mov_b32 %s, 0x%x\ns_lshl_b32 %s, %s, 3\ns_lshr_b64 s[70:71], s[70:71], %s\ns_and_b32 %s, %s, 0xff" % (sA, pk & 0xffffffff, sB, pk >> 32, sC, sJ, sC, sA, sA))
            s("s_lshl_b32 %s, %s, 6\ns_add_u32 %s, %s, 256" % (sPCOL, sA, sSCOL, sPCOL))
            s("s_add_u32 %s, %s, %s\ns_lshr_b32 %s, %s, 1\ns_add_u32 %s, %s, %s\ns_add_u32 %s, %s, 4" % (sBLKP, sA, sWV, sB, sWV, sBLKS, sA, sB, sBLKS, sBLKS))
            six = sum(1 << i for i, n in enumerate(FFN_NBLK) if n == 6)
            s("s_lshr_b32 %s, 0x%x, %s\ns_and_b32 %s, %s, 1\ns_xor_b32 %s, %s, 1\ns_and_b32 %s, %s, %s" % (sC, six, sJ, sC, sC, sC, sC, sSKIP, sC, sB))
        s("s_mul_i32 %s, %s, %d\ns_add_u32 %s, %s, %s\ns_add_u32 %s, %s, %s" % (sA, sWV, 16 * stride, sPCOL, sPCOL, sA, sSCOL, sSCOL, sA))
        s("s_mov_b32 %s, %d" % (sB, stride))
        s("v_lshrrev_b32 %s, 4, v0\nv_and_b32 %s, 15, v0\nv_lshlrev_b32 %s, %d, %s\nv_xor_b32 %s, %s, %s" % (v(vT0), v(vT1), v(vT2), 1 if att else 2, v(vT0), v(vT1), v(vT1), v(vT2)))
        s("v_mul_lo_u32 %s, %s, %s" % (v(vT0), v(vT0), sB))
        if att:
            s("v_lshrrev_b32 %s, 3, %s\nv_lshl_add_u32 %s, %s, 10, %s\nv_and_b32 %s, 7, %s" % (v(vT2), v(vT1), v(vT0), v(vT2), v(vT0), v(vT1), v(vT1)))
        s("v_lshl_add_u32 %s, %s, 4, %s" % (v(vPD), v(vT1), v(vT0)))
        s("s_lshl_b32 %s, %s, 12" % (sE1, sWV))
        def dma_p(st, ci):
            st("s_mul_i32 %s, %s, %d\ns_add_u32 %s, %s, %s" % (sA, sKG[ci], 64 * stride, sA, sA, sPCOL))
            for i in range(4):
                st("s_add_u32 m0, %s, %d" % (sE1, R[1] + ci * 16384 + i * 1024))
                if i: st("s_add_u32 %s, %s, %d" % (sA, sA, 4 * stride))
                st("buffer_load_dwordx4 %s, %s, %s offen lds" % (v(vPD), sW, sA), tok=("p", ci))
        if att:
            s("s_lshl_b32 %s, %s, 11\ns_lshr_b32 %s, %s, 1\ns_lshl_b32 %s, %s, 10\ns_add_u32 %s, %s, %s" % (sA, sJ, sC, sWV, sC, sC, sA, sA, sC))
            s("s_lshl_b32 %s, %s, 10\ns_add_u32 m0, %s, %d" % (sC, sWV, sC, R[4] + 16384))
            s("buffer_load_dwordx4 %s, %s, %s offen lds" % (v(vL16), sAux, sA), tok="phi")
        dma_p(s, 0); dma_p(s, 1)
        s("v_lshrrev_b32 %s, 3, v0\nv_lshrrev_b32 %s, 2, v0\nv_and_b32 %s, 4, %s\nv_and_b32 %s, 7, v0\nv_xor_b32 %s, %s, %s" % (v(vT0), v(vT1), v(vT1), v(vT1), v(vT2), v(vT1), v(vT1), v(vT2)))
        s("v_mul_lo_u32 %s, %s, %s\nv_lshl_add_u32 %s, %s, 4, %s" % (v(vT0), v(vT0), sB, v(vSD), v(vT1), v(vT0)))
        s("s_lshl_b32 %s, %s, 11" % (sM0W, sWV))
        def dma_s(st, gi):
            st("s_mul_i32 %s, %s, %d\ns_add_u32 %s, %s, %s" % (sA, sKG[gi], 64 * stride, sA, sA, sSCOL))
            for i in range(2):
                st("s_add_u32 m0, %s, %d" % (sM0W, SREG + (gi & 3) * 8192 + i * 1024))
                if i: st("s_add_u32 %s, %s, %d" % (sA, sA, 8 * stride))
                st("buffer_load_dwordx4 %s, %s, %s offen lds" % (v(vSD), sW, sA), tok=("s", gi >> 2))
        s("v_and_b32 %s, 31, v0\nv_lshlrev_b32 %s, 4, %s" % (v(vT0), v(vN16), v(vT0)))
        s("v_lshrrev_b32 %s, 3, %s\nv_lshlrev_b32 %s, 13, %s\nv_and_b32 %s, 7, %s\nv_lshl_add_u32 %s, %s, 7, %s" % (v(vT1), v(vT0), v(vT1), v(vT1), v(vT2), v(vT0), v(vT1), v(vT2), v(vT1)))
        s("v_bfe_u32 %s, v0, 1, 3\nv_lshrrev_b32 %s, 5, v0\nv_xor_b32 %s, %s, %s" % (v(vT0), v(vT2), v(vT0), v(vT0), v(vT2)))
        for cq in range(4):
            s("v_xor_b32 %s, %d, %s\nv_lshl_add_u32 %s, %s, 4, %s" % (v(vT2), 2 * cq, v(vT0), v(vXR + cq), v(vT2), v(vT1)))
        s("v_bfe_u32 %s, v0, 2, 2\nv_bfe_u32 %s, v0, 4, 1" % (v(vT0), v(vT1)))
        s("v_and_b32 %s, 1, v0\nv_lshlrev_b32 %s, 4, %s\nv_and_b32 %s, 2, v0\nv_lshl_add_u32 %s, %s, 2, %s" % (v(vT2), v(vT2), v(vT2), v(vT3), v(vT2), v(vT3), v(vT2)))
        s("v_lshrrev_b32 %s, 5, v0\nv_lshl_add_u32 %s, %s, 3, %s" % (v(vT3), v(vT3), v(vT3), v(vT0)))
        x0, x1 = XF, XF + 1
        if att:
            s("v_lshl_add_u32 %s, %s, 2, %s\nv_xor_b32 %s, %s, %s\nv_lshl_add_u32 %s, %s, 5, %s" % (v(x0), v(vT1), sWV, v(x0), v(x0), v(vT0), v(x0), v(x0), v(vT2)))
        else:
            s("v_xor_b32 %s, %s, %s\nv_lshl_add_u32 %s, %s, 6, %s\nv_lshl_add_u32 %s, %s, 5, %s" % (v(x0), sWV, v(vT0), v(x0), v(x0), v(vT2), v(x0), v(vT1), v(x0)))
        s("v_lshl_add_u32 %s, %s, 8, %s\nv_add_u32 %s, %d, %s\nv_add_u32 %s, %d, %s" % (v(x0), v(vT3), v(x0), v(vPR), R[1], v(x0), v(vPR + 1), R[3], v(x0)))
        s("s_lshr_b32 %s, %s, 1\ns_and_b32 %s, %s, 1" % (sA, sWV, sC, sWV))
        s("v_lshrrev_b32 %s, 1, %s\nv_xor_b32 %s, %s, %s\nv_lshl_add_u32 %s, %s, 6, %s" % (v(x0), v(vT0), v(x0), sA, v(x0), v(x0), v(x0), v(vT2)))
        if att: s("v_xor_b32 %s, %s, %s" % (v(x1), sC, v(vT1)))
        else: s("v_mov_b32 %s, %s" % (v(x1), v(vT1)))
        s("v_lshl_add_u32 %s, %s, 5, %s\nv_lshl_add_u32 %s, %s, 7, %s\nv_add_u32 %s, %d, %s" % (v(x0), v(x1), v(x0), v(x0), v(vT3), v(x0), v(vSR), SREG, v(x0)))
        for i in range(4): s("v_mov_b32 %s, 0x3f803f80" % v(ONES + i))
        if att:
            s("v_bfe_u32 %s, v0, 1, 1\nv_lshl_add_u32 %s, %s, 1, %s\nv_lshlrev_b32 %s, 3, %s\nv_lshl_add_u32 %s, %s, 5, %s" % (v(x0), v(x0), v(vT1), v(x0), v(x0), v(x0), v(x0), v(vT3), v(x0)))
            s("s_lshl_b32 %s, %s, 10\ns_lshl_b32 %s, %s, 9\ns_add_u32 %s, %s, %s\ns_add_u32 %s, %s, %d" % (sA, sWV, sC, sC, sA, sA, sC, sA, sA, R[4] + 16384))
            s("v_add_u32 %s, %s, %s\nv_xor_b32 %s, 512, %s" % (v(x0), sA, v(x0), v(x1), v(x0)))
            s("v_bfe_u32 %s, v0, 2, 1\nv_lshrrev_b32 %s, 5, v0\nv_cmp_eq_u32 vcc, %s, %s" % (v(vT0), v(vT2), v(vT0), v(vT2)))
            s("v_and_b32 %s, 1, v0\nv_lshlrev_b32 %s, 4, %s\nv_mov_b32 %s, 0x3f80\nv_lshlrev_b32 %s, %s, %s\nv_cndmask_b32 %s, 0, %s, vcc" % (v(vT0), v(vT0), v(vT0), v(vT2), v(vT2), v(vT0), v(vT2), v(vT2), v(vT2)))
            s("v_bfe_u32 %s, v0, 1, 1\nv_bfe_u32 %s, v0, 3, 2\nv_lshl_add_u32 %s, %s, 1, %s" % (v(vT0), v(vT3), v(vT0), v(vT3), v(vT0)))
            for i in range(8):
                s("v_cmp_eq_u32 vcc, %d, %s\nv_cndmask_b32 %s, 0, %s, vcc" % (i, v(vT0), v(SEL[i >> 2] + (i & 3)), v(vT2)))
        else:
            s("v_and_b32 %s, 0x13, v0\nv_and_b32 %s, 4, v0\nv_lshl_add_u32 %s, %s, 1, %s\nv_bfe_u32 %s, v0, 3, 1\nv_lshl_add_u32 %s, %s, 2, %s\nv_lshlrev_b32 %s, 1, %s" % (v(vT0), v(vT2), v(vT0), v(vT2), v(vT0), v(vT2), v(vT0), v(vT2), v(vT0), v(vT0), v(vT0)))
            s("s_lshl_b32 %s, %s, 6\ns_lshl_b32 %s, %s, 6" % (sA, sBLKP, sC, sBLKS))
            s("buffer_load_ushort %s, %s, %s, %s offen\nbuffer_load_ushort %s, %s, %s, %s offen" % (v(vB1), v(vT0), sAux, sA, v(vB1 + 1), v(vT0), sAux, sC))
        dma_p(s, 2)
        self.stamp(s, 0)
        s.waittok(("x", 0))
        s("v_add_u32 %s, %s, %s" % (v(vT0), sE0, v(vL16)))
        tmp = ACC[0]
        for it in range(8): s("ds_read_b128 %s, %s offset:%d" % (v(tmp + 4 * it, 4), v(vT0), it * 1024))
        if att:
            s.waittok("phi")
            for hsel in range(2):
                for e in range(2): s("ds_read_b64_tr_b16 %s, %s offset:%d" % (v(PHI[hsel] + 2 * e, 2), v(x0 + hsel), e * 128))
        s("v_add_u32 %s, 0x%x, %s\nv_mov_b32 %s, %s\nv_readfirstlane_b32 %s, %s" % (v(vTAG), TAGC, v(vTAG), v(vTAG + 1), v(vTAG), sTAG, v(vTAG)))
        s1, s2 = CS, CS + 2
        for i in range(4): s("v_mov_b32 %s, 0" % v(CS + i))
        for i in range(32):
            s("v_dot2c_f32_bf16 %s, %s, %s\nv_dot2c_f32_bf16 %s, %s, %s" % (v(s1), v(tmp + i), v(ONES), v(s2), v(tmp + i), v(tmp + i)))
        if att:
            s("v_and_b32 %s, 4, v0\nv_cmp_ne_u32 vcc, 0, %s\nv_mov_b32 %s, 0x80008000\nv_cndmask_b32 %s, 0, %s, vcc" % (v(vT0), v(vT0), v(vT1), v(vT1), v(vT1)))
            for i in range(8): s("v_xor_b32 %s, %s, %s" % (v(PHI[i >> 2] + (i & 3)), v(vT1), v(PHI[i >> 2] + (i & 3))))
        for m in ("quad_perm:[1,0,3,2]", "quad_perm:[2,3,0,1]", "row_half_mirror"):
            for r in (s1, s2): s("v_add_f32_dpp %s, %s, %s %s row_mask:0xf bank_mask:0xf" % (v(r), v(r), v(r), m))
        s("v_mul_f32 %s, 0x%x, %s\nv_mul_f32 %s, 0x%x, %s" % (v(s1), f2u(1 / 512), v(s1), v(s2), f2u(1 / 512), v(s2)))
        s("v_fma_f32 %s, -%s, %s, %s\nv_max_f32 %s, 0, %s" % (v(s2), v(s1), v(s1), v(s2), v(s2), v(s2)))
        s("v_mov_b32 %s, %s\nv_mov_b32 %s, %s" % (v(CS + 1), v(vTAG), v(CS + 3), v(vTAG)))
        s("s_lshl_b32 %s, %s, 4\ns_add_u32 %s, %s, %s\ns_lshl_b32 %s, %s, 11\ns_add_u32 %s, %s, %d" % (sD, sQ4, sD, sD, sT, sD, sD, sD, sD, WS_STATS))
        s("s_lshl_b32 %s, %s, 9\ns_lshl_b32 %s, %s, 7\ns_add_u32 %s, %s, %s\ns_add_u32 %s, %s, %s" % (sA, sU, sB, sWV, sA, sA, sB, sA, sA, sD))
        s("v_lshlrev_b32 %s, 1, v0" % v(vT0))
        s("s_mov_b32 exec_lo, 0x01010101\ns_mov_b32 exec_hi, 0x01010101")
        s("buffer_store_dwordx4 %s, %s, %s, %s offen sc1" % (v(CS, 4), v(vT0), sWS, sA))
        s("s_mov_b64 exec, -1")
        self.stamp(s, 1)
        def load_stats(st, cond=False):
            for i in range(4):
                st("s_add_u32 %s, %s, %d\ns_and_b32 %s, %s, 3\ns_lshl_b32 %s, %s, 9\ns_add_u32 %s, %s, %s" % (sA, sU, i, sA, sA, sA, sA, sA, sA, sD), cond=cond)
                st("buffer_load_dwordx4 %s, %s, %s, %s offen sc1" % (v(ST + 4 * i, 4), v(vN16), sWS, sA), cond=cond)
        def xread(st, region, ks):
            st("ds_read_b128 %s, %s offset:%d" % (v(XF + 4 * (ks % NX), 4), v(vXR + (ks & 3)), region + (ks >> 2) * 1024), tok=("xf", ks))
        later = [lambda st: dma_p(st, 3), lambda st: dma_p(st, 4), lambda st: dma_p(st, 5), lambda st: dma_p(st, 6), lambda st: dma_p(st, 7),
                 lambda st: (load_stats(st), [dma_x(st, 1, k) for k in range(4)]), lambda st: [dma_x(st, 1, k) for k in range(4, 8)], lambda st: [dma_x(st, 2, k) for k in range(4)]]
        for ci in range(8):
            s.waittok(("p", ci)); s("s_barrier")
            for kk in range(4):
                ks = 4 * ci + kk
                for e in range(2):
                    s("ds_read_b64_tr_b16 %s, %s offset:%d" % (ag(4 * ks + 2 * e, 2), v(vPR + (ci >> 2)), (ci & 3) * 16384 + kk * 4096 + e * 1024))
                xread(s, 0, ks)
            later[ci](s)
            for kk in range(4):
                ks = 4 * ci + kk
                s("%s %s, %s, %s, %s" % (MF, v(ACC[0], 16), ag(4 * ks, 4), v(XF + 4 * (ks % NX), 4), v(ACC[0], 16) if ks else "0"))
                s("%s %s, %s, %s, %s" % (MF, v(CS, 16), v(ONES, 4), ag(4 * ks, 4), v(CS, 16) if ks else "0"))
        self.stamp(s, 2)
        lp, ok = self.lab("st"), self.lab("stok")
        def chk(st, cond):
            st("v_cmp_ne_u32 vcc, %s, %s" % (v(vTAG), v(ST + 1)), cond=cond)
            for r in (3, 5, 7, 9, 11, 13, 15):
                st("v_cmp_ne_u32 s[70:71], %s, %s\ns_or_b64 vcc, vcc, s[70:71]" % (v(vTAG), v(ST + r)), cond=cond)
        chk(s, False)
        s("s_cbranch_vccz %s" % ok)
        s("s_mov_b32 %s, 0" % sC, cond=True)
        s(lp + ":")
        load_stats(s, True)
        s("s_add_u32 %s, %s, 1\ns_cmp_gt_u32 %s, 100000\ns_cbranch_scc1 %s\ns_waitcnt vmcnt(0)" % (sC, sC, sC, ok), cond=True)
        chk(s, True)
        s("s_nop 4\ns_cbranch_vccnz %s" % lp, cond=True)
        s(ok + ":")
        def stat_consts(st, i):
            m, va = ST + 4 * i, ST + 4 * i + 2
            k = KC[i]
            st("v_add_f32 %s, 0x%x, %s\nv_sqrt_f32 %s, %s" % (v(va), f2u(1e-5), v(va), v(va), v(va)))
            st("v_cvt_pk_bf16_f32 %s, -%s, %s" % (v(m + 1), v(m), v(va)))
            st("v_rcp_f32 %s, %s" % (v(k), v(va)))
            st("v_lshlrev_b32 %s, 16, %s\nv_and_b32 %s, 0xffff0000, %s" % (v(vT0), v(m + 1), v(vT1), v(m + 1)))
            st("v_sub_f32 %s, -%s, %s\nv_sub_f32 %s, %s, %s" % (v(m), v(m), v(vT0), v(vT1), v(va), v(vT1)))
            if att:
                st("v_mul_f32 %s, 0x%x, %s" % (v(k + 1), f2u(LOG2E), v(k)))
            else:
                st("v_mov_b32 %s, %s\nv_mul_f32 %s, %s, %s\nv_mul_f32 %s, 0x%x, %s" % (v(k + 2), v(va), v(k + 1), v(k), v(k), v(k), f2u(K0), v(k)))
                st("v_mul_f32 %s, %s, %s\nv_mul_f32 %s, 0x%x, %s" % (v(k + 1), v(k + 1), v(k), v(k + 1), f2u(0.044715), v(k + 1)))
            st("v_cvt_pk_bf16_f32 %s, %s, %s\nv_cvt_pk_bf16_f32 %s, %s, 0\nv_mov_b32 %s, 0" % (v(m), v(vT0), v(m), v(m + 2), v(vT1), v(m + 3)))
        def corr_a(st, which):
            c = CA[which]
            st("v_cmp_gt_u32 vcc, 32, v0\nv_cndmask_b32 %s, 0, %s, vcc" % (v(vT0), v(CS)))
            st("v_cvt_pk_bf16_f32 %s, %s, %s\nv_lshlrev_b32 %s, 16, %s\nv_sub_f32 %s, %s, %s" % (v(c), v(vT0), v(vT0), v(vT1), v(c), v(vT0), v(vT0), v(vT1)))
            st("v_cvt_pk_bf16_f32 %s, %s, 0\nv_mov_b32 %s, 0" % (v(c + 1), v(vT0), v(c + 3)))
            if att: st("v_mov_b32 %s, 0" % v(c + 2))
            else:
                st("v_cndmask_b32 %s, 0, %s, vcc\nv_lshl_or_b32 %s, %s, 16, %s" % (v(c + 2), v(vB1 + which), v(c + 1), v(c + 2), v(c + 1)))
        for i in range(4): stat_consts(s, i)
        corr_a(s, 0)
        s("%s %s, %s, %s, %s" % (MF, v(ACC[0], 16), v(CA[0], 4), v(ST, 4), v(ACC[0], 16)))

        def gelu(acc, k, sbase, sblk):
            e = Stream()
            e("s_lshl_b32 %s, %s, 11\ns_add_u32 %s, %s, %s" % (sB, sblk, sB, sB, sbase))
            for q in range(4):
                A = [acc + 4 * q + i for i in range(4)]; T = [G4 + i for i in range(4)]
                for i in range(4): e("v_mul_f32 %s, %s, %s" % (v(T[i]), v(A[i]), v(A[i])))
                for i in range(4): e("v_fma_f32 %s, %s, %s, %s" % (v(T[i]), v(T[i]), v(k + 1), v(k)))
                for i in range(4): e("v_mul_f32 %s, %s, %s" % (v(T[i]), v(A[i]), v(T[i])))
                for i in range(4): e("v_exp_f32 %s, %s" % (v(T[i]), v(T[i])))
                for i in range(4): e("v_fma_f32 %s, %s, %s, %s" % (v(T[i]), v(T[i]), v(k + 2), v(k + 2)))
                for i in range(4): e("v_rcp_f32 %s, %s" % (v(T[i]), v(T[i])))
                for i in range(4): e("v_mul_f32 %s, %s, %s" % (v(T[i]), v(A[i]), v(T[i])))
                for i in range(2): e("v_cvt_pk_bf16_f32 %s, %s, %s" % (v(HO + 2 * q + i), v(T[2 * i]), v(T[2 * i + 1])))
                if q & 1: e("buffer_store_dwordx4 %s, %s, %s, %s offen offset:%d sc1" % (v(HO + 4 * (q >> 1), 4), v(vL16), sWS, sB, 1024 * (q >> 1)), tok="act")
            return e
        def softmax(e, src, phi, k, dst):
            for i in range(4): e("v_cvt_pk_bf16_f32 %s, %s, %s" % (v(F4 + i), v(src + 2 * i), v(src + 2 * i + 1)))
            e.gap(1)
            e("%s %s, %s, %s, 0" % (MF, v(TA, 16), v(phi, 4), v(F4, 4)))
            e.gap(12)
            e("v_max3_f32 %s, %s, %s, %s\nv_max3_f32 %s, %s, %s, %s" % (v(vT2), v(TA), v(TA + 1), v(TA + 2), v(vT3), v(TA + 3), v(TA + 4), v(TA + 5)))
            for i in range(2):
                e("v_max3_f32 %s, %s, %s, %s\nv_max3_f32 %s, %s, %s, %s" % (v(vT2), v(vT2), v(TA + 6 + 4 * i), v(TA + 7 + 4 * i), v(vT3), v(vT3), v(TA + 8 + 4 * i), v(TA + 9 + 4 * i)))
            e("v_max3_f32 %s, %s, %s, %s\nv_max_f32 %s, %s, %s" % (v(vT2), v(vT2), v(TA + 14), v(TA + 15), v(vT2), v(vT2), v(vT3)))
            e("v_mul_f32 %s, %s, %s" % (v(vT2), v(vT2), v(k + 1)))
            for i in range(16): e("v_fma_f32 %s, %s, %s, -%s" % (v(TA + i), v(TA + i), v(k + 1), v(vT2)))
            for i in range(16): e("v_exp_f32 %s, %s" % (v(TA + i), v(TA + i)))
            e("v_add_f32 %s, %s, %s\nv_add_f32 %s, %s, %s" % (v(vT2), v(TA), v(TA + 1), v(vT3), v(TA + 2), v(TA + 3)))
            for i in range(4, 16, 2): e("v_add_f32 %s, %s, %s\nv_add_f32 %s, %s, %s" % (v(vT2), v(vT2), v(TA + i), v(vT3), v(vT3), v(TA + i + 1)))
            e("v_add_f32 %s, %s, %s\nv_rcp_f32 %s, %s" % (v(vT2), v(vT2), v(vT3), v(vT2), v(vT2)))
            e.gap(1)
            for i in range(16): e("v_mul_f32 %s, %s, %s" % (v(TA + i), v(TA + i), v(vT2)))
            for i in range(8): e("v_cvt_pk_bf16_f32 %s, %s, %s" % (v(dst + i), v(TA + 2 * i), v(TA + 2 * i + 1)))
        def kepi(acc, k, first):
            e = Stream()
            e("%s %s, %s, %s, 0" % (MF, v(TB, 16), v(ONES, 4), v(SEL[1], 4)))
            for i in range(8): e("v_mul_f32 %s, %s, %s" % (v(acc + 8 + i), v(acc + 8 + i), v(k)))
            for i in range(4): e("v_cvt_pk_bf16_f32 %s, %s, %s" % (v(F8b + i), v(acc + 8 + 2 * i), v(acc + 9 + 2 * i)))
            e.gap(1)
            e("%s %s, %s, %s, %s" % (MF, v(TB, 16), v(F8b, 4), v(SEL[0], 4), v(TB, 16)))
            softmax(e, acc, PHI[0], k, F8a)
            e.gap(1)
            e("%s %s, %s, %s, 0" % (MF, v(TA, 16), v(F8a, 4), v(SEL[0], 4)))
            e("%s %s, %s, %s, %s" % (MF, v(TA, 16), v(F8a + 4, 4), v(SEL[1], 4), v(TA, 16)))
            for i in range(8): e("v_cvt_pk_bf16_f32 %s, %s, %s" % (v(F8b + i), v(TB + 2 * i), v(TB + 2 * i + 1)))
            e.gap(4)
            for i in range(8): e("v_cvt_pk_bf16_f32 %s, %s, %s" % (v(F8a + i), v(TA + 2 * i), v(TA + 2 * i + 1)))
            e.gap(1)
            e("%s %s, %s, %s, %s" % (MF, v(KV, 16), v(F8a, 4), v(F8b, 4), "0" if first else v(KV, 16)))
            e("%s %s, %s, %s, %s" % (MF, v(KV, 16), v(F8a + 4, 4), v(F8b + 4, 4), v(KV, 16)))
            return e
        def kvpub():
            e = Stream()
            e("s_lshl_b32 %s, %s, 2\ns_add_u32 %s, %s, %s\ns_lshl_b32 %s, %s, 4\ns_add_u32 %s, %s, %s\ns_mul_i32 %s, %s, %d\ns_add_u32 %s, %s, %d" % (sB, sJ, sB, sB, sWV, sB, sB, sB, sB, sT, sB, sB, KVREC, sB, sB, WS_KVP))
            e("v_lshrrev_b32 %s, 5, v0\nv_lshl_add_u32 %s, %s, 8, %s\nv_lshlrev_b32 %s, 4, %s\nv_add_u32 %s, 0x400, %s" % (v(vT2), v(vT3), v(vT2), v(vN16), v(vT2), v(vT2), v(vT2), v(vT2)))
            e("v_cmp_gt_u32 vcc, 0x100, %s\nv_cndmask_b32 %s, %s, %s, vcc" % (v(vN16), v(F4), v(vT2), v(vT3)))
            e("v_add_u32 %s, 32, %s\nv_add_u32 %s, 0x200, %s\nv_cndmask_b32 %s, %s, %s, vcc" % (v(vT2), v(vT2), v(vT3), v(vT3), v(F4 + 1), v(vT2), v(vT3)))
            for i in range(8): e("v_cvt_pk_bf16_f32 %s, %s, %s" % (v(F8a + i), v(KV + 2 * i), v(KV + 2 * i + 1)))
            x = Stream()
            x("s_mov_b32 exec_lo, 0x1ffff\ns_mov_b32 exec_hi, 0x1ffff")
            for c in range(2): x("buffer_store_dwordx4 %s, %s, %s, %s offen sc1" % (v(F8a + 4 * c, 4), v(F4 + c), sWS, sB), tok="kvp")
            x("s_mov_b64 exec, -1")
            return e, x
        def flag(st, base_expr, tok):
            base_expr(st)
            st("v_mov_b32 %s, 0" % v(vT0))
            if tok: st.waittok(tok)
            st("s_mov_b64 exec, 1\nbuffer_store_dwordx2 %s, %s, %s, %s offen sc1\ns_mov_b64 exec, -1" % (v(vTAG, 2), v(vT0), sWS, sB))
        self.flag = flag
        def qepi(acc, k, dst):
            e = Stream()
            softmax(e, acc, PHI[0], k, dst); softmax(e, acc + 8, PHI[1], k, dst + 8)
            return e

        D = NX - 1
        def unit(st, acc, wbase, region, first, fill, extra=None, last=None):
            for ks in range(D): xread(st, region, ks)
            groups = []
            if first:
                g = Stream(); g(first); groups.append(g)
            for ks in range(32):
                g = Stream()
                if ks % 2 == 0: g.waittok(("xf", ks + 1))
                g("%s %s, %s, %s, %s" % (MF, v(acc, 16), ag(wbase + 4 * ks, 4), v(XF + 4 * (ks % NX), 4), v(acc, 16) if (ks or first) else "0"))
                if ks + D < 32: xread(g, region, ks + D)
                if extra and ks in extra: extra[ks](g)
                groups.append(g)
            _, rest = merge(groups, fill, out=st)
            st.extend(rest)
        def corr(acc, which, b): return "%s %s, %s, %s, 0" % (MF, v(acc, 16), v(CA[which], 4), v(b, 4))
        def sread(g, ks):
            for e in range(2):
                g("ds_read_b64_tr_b16 %s, %s offset:%d" % (ag(128 + 4 * ks + 2 * e, 2), v(vSR), (ks & 15) * 2048 + e * 512))
        def csum(g, ks):
            g("%s %s, %s, %s, %s" % (MF, v(CS, 16), v(ONES, 4), ag(128 + 4 * ks, 4), v(CS, 16) if ks else "0"))
        def epiP(i):
            return kepi(ACC[i & 1], KC[i], i == 0) if att else gelu(ACC[i & 1], KC[i], sAB[i], sBLKP)
        def bump_xr(st, d):
            for cq in range(4): st("v_add_u32 %s, %s, %s" % (v(vXR + cq), d, v(vXR + cq)))

        s.waittok(("x", 1)); s("s_barrier")
        ex = {}
        for k in range(4): ex[2 * k] = (lambda k: lambda g: dma_x(g, 2, 4 + k))(k)
        for k in range(4): ex[8 + 4 * k] = (lambda k: lambda g: dma_s(g, k))(k)
        for k in range(4): ex[24 + 2 * k] = (lambda k: lambda g: dma_x(g, 3, k))(k)
        unit(s, ACC[1], 0, XREG[1], corr(ACC[1], 0, ST + 4), epiP(0), ex)
        self.stamp(s, 3)
        bump_xr(s, "0x10000")
        s.waittok(("x", 2), ("s", 0)); s("s_barrier")
        ex = {}
        for k in range(4): ex[2 * k] = (lambda k: lambda g: dma_x(g, 3, 4 + k))(k)
        for k in range(16):
            ex[8 + k] = (lambda k: lambda g: (sread(g, k), csum(g, k - 4) if k >= 4 else None))(k)
        for k in range(12, 16): ex[12 + k] = (lambda k: lambda g: csum(g, k))(k)
        unit(s, ACC[0], 0, 0, corr(ACC[0], 0, ST + 8), epiP(1), ex)
        bump_xr(s, "0x10000")
        s.waittok(("x", 3)); s("s_waitcnt lgkmcnt(0)\ns_barrier")
        ex = {}
        for k in range(4): ex[4 * k] = (lambda k: lambda g: dma_s(g, 4 + k))(k)
        unit(s, ACC[1], 0, 0, corr(ACC[1], 0, ST + 12), epiP(2), ex)
        self.stamp(s, 4)
        s("s_and_b32 %s, %s, 1\ns_lshl_b32 %s, %s, 15\ns_sub_u32 %s, %s, 0x20000" % (sC, sWV, sC, sC, sC, sC))
        bump_xr(s, sC)
        def select(st, i):
            for r in range(3): st("v_cndmask_b32 %s, %s, %s, %s" % (v(CBS + r), v(ST + 4 * i + r), v(ST + 4 * i + 4 + r), sPAR))
            st("v_mov_b32 %s, 0" % v(CBS + 3))
        def selectk(st, i):
            for r in range(3): st("v_cndmask_b32 %s, %s, %s, %s" % (v(KCS + r), v(KC[i] + r), v(KC[i + 1] + r), sPAR))
        s.waittok(("s", 1)); s("s_barrier")
        skipS, joinS = self.lab("skipS"), self.lab("joinS")
        if not att:
            s("s_cmp_lg_u32 %s, 0\ns_cbranch_scc1 %s" % (sSKIP, skipS))
        ex = {}
        for k in range(16):
            ex[k] = (lambda k: lambda g: (sread(g, 16 + k), csum(g, 12 + k) if k >= 4 else None))(k)
        for k in range(12, 16): ex[4 + k] = (lambda k: lambda g: csum(g, 16 + k))(k)
        fill = epiP(3)
        if att:
            e, x = kvpub(); fill.gap(12); fill.extend(e)
        unit(s, ACC[0], 128, 0, None, fill, ex)
        if att: s.extend(x)
        select(s, 0); corr_a(s, 1)
        s("%s %s, %s, %s, %s" % (MF, v(ACC[0], 16), v(CA[1], 4), v(CBS, 4), v(ACC[0], 16)))
        self.stamp(s, 5)
        s("s_and_b32 %s, %s, 1\ns_lshl_b32 %s, %s, 15\ns_add_u32 %s, %s, 0x10000" % (sC, sWV, sC, sC, sC, sC))
        bump_xr(s, sC)
        s("s_cmp_lg_u64 %s, 0\ns_cselect_b32 %s, %s, %s\ns_cselect_b32 %s, %s, %s" % (sPAR, sAB[0], sAB[1], sAB[0], sAB[2], sAB[3], sAB[2]))
        selectk(s, 0); select(s, 2)
        fill = Stream(); fill.gap(4)
        fill.extend(qepi(ACC[0], KCS, PF) if att else gelu(ACC[0], KCS, sAB[0], sBLKS))
        ex = {}
        if att:
            def f1(st):
                st("s_lshl_b32 %s, %s, 2\ns_add_u32 %s, %s, %s\ns_lshl_b32 %s, %s, 7\ns_lshl_b32 %s, %s, 3\ns_add_u32 %s, %s, %s\ns_add_u32 %s, %s, %d" % (sB, sJ, sB, sB, sWV, sB, sB, sC, sT, sB, sB, sC, sB, sB, WS_FL1))
            ex[20] = lambda g: flag(g, f1, "kvp")
        unit(s, ACC[1], 128, 0, corr(ACC[1], 1, CBS), fill, ex)
        selectk(s, 2)
        self.stamp(s, 6)
        tail = qepi(ACC[1], KCS, PF + 16) if att else gelu(ACC[1], KCS, sAB[2], sBLKS)
        s.extend(tail)
        side = None
        if not att:
            s("s_waitcnt vmcnt(0)")
            s(joinS + ":")
            side = Stream()
            side(skipS + ":\ns_nop 15")
            side.extend(epiP(3))
            side("s_waitcnt vmcnt(0)\ns_branch %s" % joinS)
        def f2(st):
            st("s_lshl_b32 %s, %s, 9\ns_lshl_b32 %s, %s, 5\ns_add_u32 %s, %s, %s\ns_lshl_b32 %s, %s, 3\ns_add_u32 %s, %s, %s\ns_add_u32 %s, %s, %d" % (sB, sT, sC, sJ, sB, sB, sC, sC, sWV, sB, sB, sC, sB, sB, WS_FL2 + (256 if att else 0)))
        if not att:
            flag(s, f2, None)
            s("s_waitcnt lgkmcnt(0)\ns_barrier")
        else:
            s("s_waitcnt lgkmcnt(0)\ns_barrier")
            KF = ACC[0]; ZT = ACC[1]; assert ZT + 16 <= 64
            G = 64
            assert PF >= 136 and TA >= 136 and F8a >= 136
            s("s_lshl_b32 %s, %s, 2\ns_add_u32 %s, %s, %s" % (sD, sJ, sD, sD, sWV))
            s("s_lshl_b32 %s, %s, 7\ns_add_u32 %s, %s, %d" % (sB, sD, sB, sB, WS_FL1))
            s("v_and_b32 %s, 15, v0\nv_lshlrev_b32 %s, 3, %s" % (v(vT0), v(vT1), v(vT0)))
            self.poll(s, vT1, sB, G, vTAG)
            self.stamp(s, 7)
            s("s_mul_i32 %s, %s, %d\ns_add_u32 %s, %s, %d" % (sB, sD, 16 * KVREC, sB, sB, WS_KVP))
            s("s_movk_i32 %s, %d\nv_mul_lo_u32 %s, %s, %s\nv_and_b32 %s, 0x30, v0\nv_add_u32 %s, %s, %s" % (sC, KVREC, v(vT0), v(vT0), sC, v(vT1), v(vT0), v(vT0), v(vT1)))
            Z = 128
            s("buffer_load_dwordx4 %s, %s, %s, %s offen offset:1024 sc1" % (v(Z, 4), v(vT0), sWS, sB))
            for p in range(16):
                s("buffer_load_dwordx4 %s, %s, %s, %s offen sc1" % (v(G + 4 * p, 4), v(vL16), sWS, sB))
                if p < 15: s("s_add_u32 %s, %s, %d" % (sB, sB, KVREC))
            for i in range(4):
                s("v_lshlrev_b32 %s, 16, %s\nv_and_b32 %s, 0xffff0000, %s" % (v(ZT + 2 * i), v(Z + i), v(ZT + 2 * i + 1), v(Z + i)))
            for m in ("quad_perm:[1,0,3,2]", "quad_perm:[2,3,0,1]", "row_half_mirror", "row_mirror"):
                for i in range(8): s("v_add_f32_dpp %s, %s, %s %s row_mask:0xf bank_mask:0xf" % (v(ZT + i), v(ZT + i), v(ZT + i), m))
            for i in range(4): s("v_cvt_pk_bf16_f32 %s, %s, %s" % (v(Z + i), v(ZT + 2 * i), v(ZT + 2 * i + 1)))
            s("v_mov_b32 %s, 0x3f80\nv_mov_b32 %s, 0x3f800000" % (v(vT2), v(vT3)))
            for i in range(8): s("v_mov_b32 %s, 0" % v(TA + i))
            for p in range(16):
                for i in range(4):
                    s("v_dot2c_f32_bf16 %s, %s, %s\nv_dot2c_f32_bf16 %s, %s, %s" % (v(TA + 2 * i), v(G + 4 * p + i), v(vT2), v(TA + 2 * i + 1), v(G + 4 * p + i), v(vT3)))
            for i in range(4): s("v_cvt_pk_bf16_f32 %s, %s, %s" % (v(F8a + i), v(TA + 2 * i), v(TA + 2 * i + 1)))
            s("s_mul_i32 %s, %s, 40960\ns_add_u32 %s, %s, 38912" % (sC, sWV, sC, sC))
            s("v_add_u32 %s, %s, %s\nv_add_u32 %s, %s, %s" % (v(vT0), sC, v(vL16), v(vT1), sC, v(vT1)))
            s("ds_write_b128 %s, %s\nds_write_b128 %s, %s offset:1024" % (v(vT0), v(F8a, 4), v(vT1), v(Z, 4)))
            s("v_lshrrev_b32 %s, 5, v0\nv_lshl_add_u32 %s, %s, 8, %s\nv_lshlrev_b32 %s, 4, %s\nv_add_u32 %s, 0x400, %s" % (v(vT2), v(vT3), v(vT2), v(vN16), v(vT2), v(vT2), v(vT2), v(vT2)))
            s("v_cmp_gt_u32 vcc, 0x100, %s\nv_cndmask_b32 %s, %s, %s, vcc" % (v(vN16), v(F4), v(vT2), v(vT3)))
            s("v_add_u32 %s, 32, %s\nv_add_u32 %s, 0x200, %s\nv_cndmask_b32 %s, %s, %s, vcc" % (v(vT2), v(vT2), v(vT3), v(vT3), v(F4 + 1), v(vT2), v(vT3)))
            s("s_xor_b32 %s, %s, 1\ns_mul_i32 %s, %s, 40960\ns_add_u32 %s, %s, 38912" % (sA, sWV, sA, sA, sA, sA))
            s("v_add_u32 %s, %s, %s\nv_add_u32 %s, %s, %s\nv_add_u32 %s, %s, %s\nv_add_u32 %s, %s, %s" % (v(F4 + 2), sA, v(F4), v(F4 + 3), sA, v(F4 + 1), v(F4), sC, v(F4), v(F4 + 1), sC, v(F4 + 1)))
            s("s_waitcnt lgkmcnt(0)\ns_barrier")
            for i in range(4): s("ds_read_b128 %s, %s" % (v(KF + 4 * i, 4), v(F4 + i)))
            accs = [G, G + 16, G + 32, G + 48]
            for un in range(2):
                for hs in range(2):
                    A = accs[2 * un + hs]; pf = PF + 16 * un + 8 * hs
                    s("%s %s, %s, %s, 0\n%s %s, %s, %s, %s" % (MF, v(A, 16), v(KF + 8 * hs, 4), v(pf, 4), MF, v(A, 16), v(KF + 8 * hs + 4, 4), v(pf + 4, 4), v(A, 16)))
            s("s_add_u32 %s, %s, 86\ns_lshl_b32 %s, %s, 10\ns_xor_b32 %s, %s, 1024" % (sA, sD, sA, sA, sC, sA))
            for un in range(2):
                for hs in range(2):
                    A = accs[2 * un + hs]
                    s("v_add_f32 %s, 0x%x, %s\nv_rcp_f32 %s, %s" % (v(A + 8), f2u(1e-6), v(A + 8), v(A + 8), v(A + 8)))
                    s("s_add_u32 %s, %s, %s" % (sB, sAB[2 * un], sC if hs else sA))
                    for i in range(8): s("v_mul_f32 %s, %s, %s" % (v(A + i), v(A + i), v(A + 8)))
                    for i in range(4): s("v_cvt_pk_bf16_f32 %s, %s, %s" % (v(A + 12 + i), v(A + 2 * i), v(A + 2 * i + 1)))
                    s("buffer_store_dwordx4 %s, %s, %s, %s offen sc1" % (v(A + 12, 4), v(vL16), sWS, sB), tok="act")
            flag(s, f2, "act")
        self.stamp(s, 8)
        s("s_waitcnt lgkmcnt(0)")
        return s, side

    def poll(self, s, vaddr, sbase, tmp, vTAG):
        lp, ok = self.lab("poll"), self.lab("pollok")
        s("s_mov_b32 %s, 0" % sC)
        s(lp + ":")
        s("buffer_load_dwordx2 %s, %s, %s, %s offen sc1" % (v(tmp, 2), v(vaddr), sWS, sbase), cond=True)
        s("s_add_u32 %s, %s, 1\ns_cmp_gt_u32 %s, 100000\ns_cbranch_scc1 %s" % (sC, sC, sC, ok), cond=True)
        s("s_waitcnt vmcnt(0)")
        s("v_cmp_ne_u64 vcc, %s, %s\ns_nop 4\ns_cbranch_vccnz %s" % (v(tmp, 2), v(vTAG, 2), lp), cond=True)
        s(ok + ":")

    def phase2(self):
        s = Stream()
        vL16, vTAG = self.vL16, self.vTAG
        a = VA(20)
        vWD = a(); vWR = a(2); vOUT = a(); vT0 = a(); vT1 = a(); vT2 = a(); vT3 = a()
        XR = a(8, 4); B2 = a(4, 4)
        ACC = a(64, 4); NA = 16; AF = a(8 * NA, 4)
        NS = 19
        s("v_lshrrev_b32 %s, 3, v0\nv_lshrrev_b32 %s, 2, v0\nv_and_b32 %s, 4, %s\nv_and_b32 %s, 7, v0\nv_xor_b32 %s, %s, %s" % (v(vT0), v(vT1), v(vT1), v(vT1), v(vT2), v(vT1), v(vT1), v(vT2)))
        s("v_lshlrev_b32 %s, 10, %s\nv_lshl_add_u32 %s, %s, 4, %s\nv_lshl_add_u32 %s, %s, 4, %s" % (v(vT0), v(vT0), v(vWD), v(vT1), v(vT0), v(vOUT), v(vT2), v(vT0)))
        s("s_mul_i32 %s, %s, 40960" % (sM0W, sWV))
        s("s_lshl_b32 %s, %s, 7\ns_mul_i32 %s, %s, %d\ns_add_u32 %s, %s, %s" % (sD, sCB, sE0, sWV, 22 * 16384, sE0, sE0, sD))
        s("s_lshl_b32 %s, %s, 17\ns_add_u32 %s, %s, %s" % (sE1, sWV, sE1, sE1, sD))
        def dma_w(st, q):
            for i in range(2):
                st("s_add_u32 m0, %s, %d" % (sM0W, (q % NS) * 2048 + i * 1024))
                if q < 22:
                    st("s_add_u32 %s, %s, %d" % (sA, sE0, q * 16384 + i * 8192))
                    st("buffer_load_dwordx4 %s, %s, %s offen lds" % (v(vWD), sW2, sA), tok=("w", q))
                else:
                    st("s_add_u32 %s, %s, %d" % (sA, sE1, (q - 22) * 16384 + i * 8192))
                    st("buffer_load_dwordx4 %s, %s, %s offen lds" % (v(vWD), sWo, sA), tok=("w", q))
        LEAD = 6
        for q in range(LEAD): dma_w(s, q)
        s("v_bfe_u32 %s, v0, 2, 2\nv_bfe_u32 %s, v0, 4, 1" % (v(vT0), v(vT1)))
        s("v_and_b32 %s, 1, v0\nv_lshlrev_b32 %s, 4, %s\nv_and_b32 %s, 2, v0\nv_lshl_add_u32 %s, %s, 2, %s" % (v(vT2), v(vT2), v(vT2), v(vT3), v(vT2), v(vT3), v(vT2)))
        s("v_lshrrev_b32 %s, 5, v0\nv_lshl_add_u32 %s, %s, 3, %s" % (v(vT3), v(vT3), v(vT3), v(vT0)))
        s("v_lshrrev_b32 %s, 1, %s\nv_lshl_add_u32 %s, %s, 6, %s\nv_lshl_add_u32 %s, %s, 5, %s\nv_lshl_add_u32 %s, %s, 7, %s" % (v(vT0), v(vT0), v(vT0), v(vT0), v(vT2), v(vT0), v(vT1), v(vT0), v(vT0), v(vT3), v(vT0)))
        s("v_add_u32 %s, %s, %s\nv_xor_b32 %s, 64, %s" % (v(vWR), sM0W, v(vT0), v(vWR + 1), v(vWR)))
        s("s_lshl_b32 %s, %s, 16\ns_lshl_b32 %s, %s, 14\ns_add_u32 %s, %s, %s\ns_add_u32 %s, %s, %s" % (sPCOL, sTT, sA, sWV, sPCOL, sPCOL, sA, sPCOL, sPCOL, sD))
        s("s_add_u32 %s, %s, 8192" % (sSCOL, sPCOL))
        s("buffer_load_dwordx4 %s, %s, %s, %s offen\nbuffer_load_dwordx4 %s, %s, %s, %s offen" % (v(XR, 4), v(vOUT), sX, sPCOL, v(XR + 4, 4), v(vOUT), sX, sSCOL))
        s("v_and_b32 %s, 0x70, %s\nbuffer_load_dwordx4 %s, %s, %s, %s offen" % (v(vT0), v(vL16), v(B2, 4), v(vT0), sB2, sD))
        for q in range(30):
            nq = q + LEAD
            if nq < 30:
                if nq >= NS: s.waittok(("wr", nq - NS))
                dma_w(s, nq)
            s.waittok(("w", q))
            for cb in range(2):
                for e in range(2):
                    s("ds_read_b64_tr_b16 %s, %s offset:%d" % (ag(8 * q + 4 * cb + 2 * e, 2), v(vWR + cb), (q % NS) * 2048 + e * 512), tok=("wr", q))
        self.stamp(s, 9)
        s("s_lshl_b32 %s, %s, 9\ns_add_u32 %s, %s, %d" % (sB, sT2, sB, sB, WS_FL2))
        s("v_and_b32 %s, 31, v0\nv_lshlrev_b32 %s, 3, %s" % (v(vT0), v(vT1), v(vT0)))
        s("s_mul_i32 %s, %s, %d\ns_add_u32 %s, %s, %d\ns_add_u32 %s, %s, %d" % (sE0, sTT, 2 * TBSTR, sE0, sE0, WS_ACT, sE1, sE0, TBSTR))
        s("s_mul_i32 %s, %s, 22\ns_lshl_b32 %s, %s, 3\ns_add_u32 %s, %s, 86" % (sBLKP, sWV, sBLKS, sWV, sBLKS, sBLKS))
        def act(st, q):
            if q < 22:
                st("s_add_u32 %s, %s, %d" % (sA, sBLKP, q))
                if q >= 20: st("s_min_u32 %s, %s, 85" % (sA, sA))
            else: st("s_add_u32 %s, %s, %d" % (sA, sBLKS, q - 22))
            st("s_lshl_b32 %s, %s, 10\ns_add_u32 %s, %s, %s\ns_add_u32 %s, %s, %s" % (sA, sA, sD, sA, sE1, sA, sA, sE0))
            r = AF + 8 * (q % NA)
            st("buffer_load_dwordx4 %s, %s, %s, %s offen sc1\nbuffer_load_dwordx4 %s, %s, %s, %s offen sc1" % (v(r, 4), v(vL16), sWS, sA, v(r + 4, 4), v(vL16), sWS, sD))
        def mm(st, q):
            r = AF + 8 * (q % NA)
            for tb in range(2):
                for cb in range(2):
                    A = ACC + 32 * tb + 16 * cb
                    st("%s %s, %s, %s, %s" % (MF, v(A, 16), ag(8 * q + 4 * cb, 4), v(r + 4 * tb, 4), v(A, 16) if q else "0"))
        self.poll(s, vT1, sB, AF, vTAG)
        self.stamp(s, 10)
        LA = 6
        for q in range(LA): act(s, q)
        for q in range(22):
            if q + LA < 22: act(s, q + LA)
            mm(s, q)
        s("s_add_u32 %s, %s, 256" % (sB, sB))
        self.poll(s, vT1, sB, vT2, vTAG)
        self.stamp(s, 11)
        for q in range(22, 30): act(s, q)
        for q in range(22, 30): mm(s, q)
        s("s_movk_i32 %s, 272\nv_mul_lo_u32 %s, %s, %s\nv_and_b32 %s, 32, v0\nv_add3_u32 %s, %s, %s, %s" % (sA, v(vT0), v(vT0), sA, v(vT1), v(vT0), v(vT0), v(vT1), sM0W))
        for tb in range(2):
            for cb in range(2):
                for k in range(4):
                    s("ds_write_b128 %s, %s offset:%d" % (v(vT0), v(ACC + 32 * tb + 16 * cb + 4 * k, 4), tb * 32 * 272 + (32 * cb + 16 * (k >> 1) + 4 * (k & 1)) * 4))
        s("s_lshl_b32 %s, %s, 4\nv_lshrrev_b32 %s, 3, v0\nv_add_u32 %s, %s, %s\nv_mul_lo_u32 %s, %s, %s\nv_and_b32 %s, 7, v0\nv_lshl_add_u32 %s, %s, 5, %s\nv_add_u32 %s, 0x14000, %s" % (sC, sWV, v(vT1), v(vT1), sC, v(vT1), v(vT1), v(vT1), sA, v(vT2), v(vT1), v(vT2), v(vT1), v(vT2), v(vT1)))
        Y = AF + 64
        for it in range(2):
            for i in range(4):
                s("v_lshlrev_b32 %s, 16, %s\nv_and_b32 %s, 0xffff0000, %s" % (v(Y + 8 * it + 2 * i), v(XR + 4 * it + i), v(Y + 8 * it + 2 * i + 1), v(XR + 4 * it + i)))
        for i in range(4):
            s("v_lshlrev_b32 %s, 16, %s\nv_and_b32 %s, 0xffff0000, %s" % (v(vT0), v(B2 + i), v(vT3), v(B2 + i)))
            for it in range(2):
                s("v_add_f32 %s, %s, %s\nv_add_f32 %s, %s, %s" % (v(Y + 8 * it + 2 * i), v(Y + 8 * it + 2 * i), v(vT0), v(Y + 8 * it + 2 * i + 1), v(Y + 8 * it + 2 * i + 1), v(vT3)))
        s("s_waitcnt lgkmcnt(0)\ns_barrier")
        for it in range(2):
            for pw in range(4):
                for k in range(2):
                    s("ds_read_b128 %s, %s offset:%d" % (v(AF + 32 * it + 8 * pw + 4 * k, 4), v(vT1 + (pw >> 1)), (pw & 1) * 40960 + it * 8 * 272 + 16 * k))
        for it in range(2):
            for pw in range(4):
                for i in range(8): s("v_add_f32 %s, %s, %s" % (v(Y + 8 * it + i), v(Y + 8 * it + i), v(AF + 32 * it + 8 * pw + i)))
            for i in range(4): s("v_cvt_pk_bf16_f32 %s, %s, %s" % (v(XR + 4 * it + i), v(Y + 8 * it + 2 * i), v(Y + 8 * it + 2 * i + 1)))
            s("buffer_store_dwordx4 %s, %s, %s, %s offen" % (v(XR + 4 * it, 4), v(vOUT), sOut, sSCOL if it else sPCOL))
        noe = self.lab("noe")
        s("s_or_b32 %s, s2, %s\ns_cmp_lg_u32 %s, 0\ns_cbranch_scc1 %s" % (sA, sWV, sA, noe))
        s("v_mov_b32 %s, 0\ns_mov_b64 exec, 1\nbuffer_store_dword %s, %s, %s, 0 offen sc1\ns_mov_b64 exec, -1" % (v(vT0), v(vTAG), v(vT0), sWS), cond=True)
        s(noe + ":")
        if self.stamps:
            s("s_waitcnt vmcnt(0)\ns_memrealtime s[64:65]\ns_waitcnt lgkmcnt(0)")
            s("s_lshl_b32 %s, s2, 8\ns_lshl_b32 %s, %s, 6\ns_add_u32 %s, %s, %s\ns_add_u32 %s, %s, %d" % (sA, sC, sWV, sA, sA, sC, sA, sA, WS_STAMP))
            s("v_mov_b32 %s, 0" % v(vT0))
            for i, r in enumerate(["s100"] + ["s%d" % (STAMP0 + 2 * k) for k in range(12)] + ["s64"]):
                s("v_mov_b32 %s, %s\nbuffer_store_dword %s, %s, %s, %s offen offset:%d" % (v(vT1), r, v(vT1), v(vT0), sWS, sA, 4 * i))
        return s

    def build(self):
        p = Stream(); self.prologue(p)
        p("s_cmp_ge_u32 %s, 2\ns_cbranch_scc1 L_ffn" % sU)
        text = finalize(p)
        outs = {}
        for role in ("att", "ffn"):
            pre = Stream(); self.pre = pre
            s0 = Stream()
            self.srd_stream = s0
            def srd(d, pp, n, s=pre):
                d0 = int(d[2:].split(":")[0])
                s("s_mov_b32 s%d, s%d\ns_mov_b32 s%d, s%d\ns_mov_b32 s%d, %d\ns_mov_b32 s%d, 0x20000" % (d0, pp, d0 + 1, pp + 1, d0 + 2, n, d0 + 3))
            self.srd = srd
            s, side = self.phase1(role)
            st = {}
            outs[role] = (finalize(s, st), finalize(side) if side else [])
            sys.stderr.write("%s: %s\n" % (role, st))
        st = {}
        p2 = finalize(self.phase2(), st); sys.stderr.write("p2: %s\n" % st)
        text += outs["att"][0] + ["s_branch L_p2"] + outs["ffn"][1] + ["L_ffn:"] + outs["ffn"][0] + ["L_p2:", "s_nop 15"] + p2 + ["L_end:", "s_endpgm"]
        body = "\n".join(t if t.endswith(":") else "    " + t for t in text) + "\n"
        hdr = ["Fused LayerNorm + hedgehog linear attention + GELU FFN + residual, one persistent launch (generated by my tools/gen.py).",
               "@launch grid=(256,1,1) block=(256,1,1) lds=163840"]
        return module(hdr, [(NAME + "_kernel", body, 512, 256)])

if __name__ == "__main__":
    out = sys.argv[1]
    open(out, "w").write(Gen(stamps="stamps" in sys.argv).build())
```

```python
import re

TRANS = ("v_exp_f32", "v_log_f32", "v_rcp_f32", "v_rsq_f32", "v_sqrt_f32", "v_sin_f32", "v_cos_f32")
REG = re.compile(r"^(-|abs\()?([vas])(?:(\d+)|\[(\d+):(\d+)\])\)?$")

def regs_of(op):
    op = op.strip()
    if op in ("vcc",): return [("s", "vcc_lo"), ("s", "vcc_hi")]
    if op in ("vcc_lo", "vcc_hi", "m0"): return [("s", op)]
    if op == "exec": return [("s", "exec")]
    m = REG.match(op)
    if not m: return []
    t = m.group(2)
    if m.group(3) is not None: return [(t, int(m.group(3)))]
    return [(t, i) for i in range(int(m.group(4)), int(m.group(5)) + 1)]

class Ins:
    __slots__ = ("text", "op", "kind", "rd", "wr", "srcc", "passes", "tok", "cond", "cost", "wide_store", "sdata", "glue", "ahead", "lat")
    def __init__(self, text, tok=None, cond=False):
        self.text = text.strip(); self.tok = tok; self.cond = cond; self.glue = cond; self.ahead = 0; self.lat = None
        self.rd = []; self.wr = []; self.srcc = []; self.passes = 0; self.wide_store = False; self.sdata = []
        t = self.text.split(";")[0].strip()
        if t.endswith(":") or t.startswith("."):
            self.op = t; self.kind = "label"; self.cost = 0; return
        parts = t.split(None, 1)
        op = self.op = parts[0]
        rest = parts[1] if len(parts) > 1 else ""
        ops = [x.strip() for x in rest.split(",")] if rest else []
        mods = ""
        if ops:
            sp = ops[-1].split(None, 1)
            ops[-1] = sp[0]; mods = sp[1] if len(sp) > 1 else ""
        if "[" in rest and re.search(r"(quad_perm|op_sel|op_sel_hi|neg_lo|neg_hi):\[", rest):
            cut = re.search(r"\s(quad_perm|op_sel|op_sel_hi|neg_lo|neg_hi|row_|bank_mask|bound_ctrl)", rest).start()
            ops = [x.strip() for x in rest[:cut].split(",")]; mods = rest[cut:]
        R = [regs_of(o) for o in ops]
        flat = lambda l: [r for x in l for r in x]
        self.cost = 1
        if op.startswith("v_mfma"):
            self.kind = "mfma"; self.wr = R[0]; self.rd = flat(R[1:]); self.srcc = R[3]
            self.passes = 8 if "32x32" in op else 4
            self.cost = 2
        elif op.startswith("v_cmp"):
            self.kind = "valu"; self.wr = R[0]; self.rd = flat(R[1:])
        elif op.startswith("v_permlane"):
            self.kind = "valu"; self.wr = R[0] + R[1]; self.rd = R[0] + R[1]
        elif op.startswith("v_"):
            self.kind = "trans" if op.replace("_e32", "").replace("_e64", "") in TRANS else "valu"
            if self.kind == "trans": self.cost = 2
            self.wr = R[0]; self.rd = flat(R[1:])
            if op.startswith(("v_add_co", "v_addc_co", "v_sub_co", "v_subb_co")):
                self.wr = R[0] + R[1]; self.rd = flat(R[2:])
            if op.startswith(("v_fmac", "v_dot2c", "v_writelane")) or "_dpp" in op or "_sdwa" in op:
                self.rd = self.rd + R[0]
        elif op.startswith("ds_read") or op.startswith("ds_bpermute"):
            self.kind = "dsr"; self.wr = R[0]; self.rd = flat(R[1:])
        elif op.startswith("ds_"):
            self.kind = "dsw"; self.rd = flat(R)
        elif op.startswith(("buffer_load", "global_load")):
            if " lds" in (" " + mods) or op.startswith("global_load_lds"):
                self.kind = "dma"; self.rd = flat(R) + [("s", "m0")]
            else:
                self.kind = "vld"; self.wr = R[0]; self.rd = flat(R[1:])
                if "d16" in op: self.rd = self.rd + R[0]
        elif op.startswith(("buffer_store", "global_store")):
            self.kind = "vst"; self.rd = flat(R)
            self.sdata = R[0] if op.startswith("buffer") else R[1]
            self.wide_store = op.endswith(("x3", "x4"))
        elif op.startswith(("s_load", "s_memtime", "s_memrealtime")):
            self.kind = "smem"; self.wr = R[0]; self.rd = flat(R[1:])
        elif op == "s_waitcnt": self.kind = "wait"
        elif op == "s_nop": self.kind = "nop"
        elif op == "s_barrier": self.kind = "barrier"
        elif op.startswith(("s_cbranch", "s_branch", "s_endpgm", "s_sleep", "s_setprio")):
            self.kind = "ctl"
            if "vcc" in op: self.rd = regs_of("vcc")
        elif op.startswith(("s_cmp", "s_bitcmp")):
            self.kind = "salu"; self.rd = flat(R)
        elif op.startswith("s_"):
            self.kind = "salu"; self.wr = R[0]; self.rd = flat(R[1:])
            if "saveexec" in op: self.wr = self.wr + [("s", "exec")]
        elif op == "WAITTOK":
            self.kind = "waittok"; self.cost = 1
        elif op == "MARK":
            self.kind = "gap"; self.cost = 0
        elif op == "GAP":
            self.kind = "gap"; self.cost = 0
        else:
            raise ValueError("unknown instruction: " + text)
        if op.startswith("v_cndmask") and len(ops) == 3: self.rd = self.rd + regs_of("vcc")

class Stream(list):
    def __call__(self, s, tok=None, cond=False, glue=False):
        l = [Ins(x, tok, cond) for x in s.split("\n") if x.strip()]
        if glue:
            for i in l[:-1]: i.glue = True
        self.extend(l)
        return self
    def waittok(self, *toks, ahead=0, lat=None):
        i = Ins("WAITTOK"); i.tok = toks; i.ahead = ahead; i.lat = lat; self.append(i)
    def need(self, name):
        i = Ins("MARK"); i.op = "NEED"; i.tok = name; self.append(i)
    def mark(self, name):
        i = Ins("MARK"); i.tok = name; self.append(i)
    def gap(self, n):
        i = Ins("GAP"); i.tok = n; self.append(i)

VM = ("vld", "vst", "dma")
class Haz:
    def __init__(self):
        self.last_w = {}; self.last_c = {}; self.last_sd = {}
    def need(self, ins, pos):
        last_w, last_c, last_sd = self.last_w, self.last_c, self.last_sd
        k = ins.kind
        need = 0
        def dist(p, n):
            nonlocal need
            need = max(need, n - (pos - p - 1))
        isv = k in ("valu", "trans")
        for r in ins.rd:
            if r not in last_w: continue
            p, pk, ps, pi = last_w[r]
            if pk == "mfma":
                if k == "mfma":
                    if r in ins.srcc and pi.wr == ins.srcc and ps == ins.passes and ins.rd.count(r) == 1: pass
                    elif r in ins.srcc and ins.rd.count(r) == 1: dist(p, ps + 2)
                    else: dist(p, ps + 4)
                else: dist(p, ps + 4)
            elif pk in ("valu", "trans"):
                if r[0] in "va":
                    if k == "mfma": dist(p, 2)
                    if pk == "trans" and isv: dist(p, 1)
                    if "_dpp" in ins.op or ins.op.startswith("v_permlane"): dist(p, 2)
                    if ins.op.startswith(("v_readlane", "v_readfirstlane")): dist(p, 1)
                    if pi.op.startswith("v_dot") and not (pi.op == ins.op and ins.rd.count(r) == 1 and r in ins.wr): dist(p, 3)
                    if ("sdwa" in pi.op or "op_sel" in pi.text) and isv: dist(p, 1)
                else:
                    if k in VM: dist(p, 5)
                    elif isv: dist(p, 4 if ins.op.startswith(("v_readlane", "v_writelane")) else 2)
                    elif k in ("salu", "ctl", "smem"): dist(p, 4)
            elif pk == "salu":
                if r == ("s", "m0") and k == "dma": dist(p, 1)
        for r in ins.wr:
            if r in last_w:
                p, pk, ps, pi = last_w[r]
                if pk == "mfma" and k != "mfma": dist(p, ps + 4)
                if pk == "mfma" and k == "mfma" and not (pi.wr == ins.wr and ps == ins.passes): dist(p, ps + 4)
                if pi.op.startswith("v_dot") and pi.op != ins.op: dist(p, 3)
            if r in last_c and k != "mfma":
                p, ps = last_c[r]; dist(p, ps - 1)
            if r in last_sd: dist(last_sd[r], 2)
        if ("s", "exec") in last_w and last_w[("s", "exec")][1] in ("valu", "trans"):
            raise ValueError("VALU exec write not modelled")
        return need
    def commit(self, ins, pos):
        for r in ins.wr: self.last_w[r] = (pos, ins.kind, ins.passes, ins)
        if ins.kind == "mfma":
            for r in ins.srcc: self.last_c[r] = (pos, ins.passes)
        if ins.wide_store:
            for r in ins.sdata: self.last_sd[r] = pos

def finalize(stream, stats=None):
    out = []
    vm_n = 0; lg_n = 0
    vm_done = 0; lg_done = 0
    pend_vm = {}; pend_lg = {}
    smem_pend = set()
    toks = {}
    pos = 0
    hz = Haz()
    nnop = 0; nwait = 0
    def emit(t):
        out.append(t)
    for ins in stream:
        k = ins.kind
        if k == "gap": continue
        if k == "label":
            emit(ins.text); continue
        need_vm = None; need_lg = None
        if k == "waittok":
            for t in ins.tok:
                c, idx = toks[t]
                if c == "vm": need_vm = max(need_vm or 0, idx)
                else: need_lg = max(need_lg or 0, idx)
        else:
            for r in ins.rd + ins.wr:
                if r in pend_vm: need_vm = max(need_vm or 0, pend_vm[r])
                if r in pend_lg: need_lg = max(need_lg or 0, pend_lg[r])
                if r in smem_pend: need_lg = 1 << 30
            if k == "vld" and "d16" in ins.op:
                need_vm = None
                for r in ins.rd:
                    if r in pend_vm and r not in ins.wr: need_vm = max(need_vm or 0, pend_vm[r])
        w = []
        if need_vm is not None and need_vm > vm_done:
            n = min(vm_n - need_vm, 63); w.append("vmcnt(%d)" % n)
            if not ins.cond: vm_done = vm_n - n
        if need_lg is not None and (need_lg > lg_done or need_lg == 1 << 30):
            if smem_pend or need_lg == 1 << 30: n = 0
            else: n = min(lg_n - need_lg, 15)
            w.append("lgkmcnt(%d)" % n)
            if not ins.cond:
                lg_done = lg_n - n
                if n == 0: smem_pend = set()
        if w:
            emit("s_waitcnt " + " ".join(w)); nwait += 1
            if not ins.cond: pos += 1
        pend_vm = {r: i for r, i in pend_vm.items() if i > vm_done}
        pend_lg = {r: i for r, i in pend_lg.items() if i > lg_done}
        if k == "waittok": continue
        if k == "wait":
            if not ins.cond:
                m = re.search(r"vmcnt\((\d+)\)", ins.text)
                if m: vm_done = max(vm_done, vm_n - int(m.group(1)))
                m = re.search(r"lgkmcnt\((\d+)\)", ins.text)
                if m:
                    if int(m.group(1)) == 0: smem_pend = set(); lg_done = lg_n
                    elif not smem_pend: lg_done = max(lg_done, lg_n - int(m.group(1)))
                pend_vm = {r: i for r, i in pend_vm.items() if i > vm_done}
                pend_lg = {r: i for r, i in pend_lg.items() if i > lg_done}
        need = hz.need(ins, pos)
        while need > 0:
            n = min(need, 16); emit("s_nop %d" % (n - 1)); nnop += n; need -= n
            if not ins.cond: pos += n
        emit(ins.text)
        hz.commit(ins, pos)
        if not ins.cond:
            if k in VM:
                vm_n += 1
                for r in ins.wr: pend_vm[r] = vm_n
                if ins.tok is not None: toks[ins.tok] = ("vm", vm_n)
            elif k in ("dsr", "dsw"):
                lg_n += 1
                for r in ins.wr: pend_lg[r] = lg_n
                if ins.tok is not None: toks[ins.tok] = ("lg", lg_n)
            elif k == "smem":
                smem_pend |= set(ins.wr)
            if k == "nop": pos += int(ins.text.split()[1]) + 1
            else: pos += 1
    if stats is not None:
        stats["nops"] = nnop; stats["waits"] = nwait; stats["n"] = len(out)
    return out

def merge(main, fill, budget=None, out=None, minb=7.0):
    out = Stream() if out is None else out
    if budget is None:
        tot = sum(i.cost for g in main for i in g) + sum(i.cost for i in fill)
        nm = len(main) + sum(1 for i in fill if i.kind == "mfma")
        budget = max(minb, tot / nm + 0.15)
    fi = 0; gap = 0; credit = 0.0
    for g in main:
        c = 0
        for ins in g:
            out.append(ins); c += ins.cost
            if ins.cost: gap = max(0, gap - 1)
        credit += budget - c
        while fi < len(fill) and (credit > 0 or (fi and fill[fi - 1].glue)):
            f = fill[fi]
            if f.op == "GAP":
                gap = f.tok; fi += 1; continue
            if gap > 0: break
            out.append(f); fi += 1
            if f.kind == "mfma": credit += budget - f.cost
            else: credit -= f.cost
        if fi >= len(fill): credit = min(credit, 0.0)
        elif gap > 0: credit = min(credit, 4.0)
    rest = Stream(fill[fi:])
    return out, rest

class Bg:
    def __init__(self, text, tok=None, after=None, sp=None):
        self.ins = Stream(); self.ins(text, tok=tok); self.tok = tok; self.after = after; self.sp = sp

SCC_USERS = ("s_cbranch_scc", "s_cselect", "s_addc", "s_subb")
def weave(fg, bg, spacing=66, log=None):
    out = Stream(); marks = set(); bi = 0; t = 0.0; pipe = 0.0; last = -1e9
    lasttok = {}
    for k, b in enumerate(bg):
        if b.tok is not None: lasttok[b.tok] = k
    issued_t = {}
    def ready(): return bi < len(bg) and (bg[bi].after is None or bg[bi].after in marks)
    def emit_bg(forced=False):
        nonlocal bi, t, last
        b = bg[bi]
        if forced: t = max(t, last + (b.sp or spacing))
        out.extend(b.ins); t += 4 * len(b.ins); last = t; issued_t[bi] = t; bi += 1
    n = len(fg)
    for idx, ins in enumerate(fg):
        if ins.op == "MARK":
            marks.add(ins.tok)
            if log is not None: log.append("mark %s t=%d bg=%d" % (ins.tok, t, bi))
            continue
        if ins.kind == "waittok":
            ks = [lasttok[x] for x in ins.tok if x in lasttok]
            if ks:
                need = max(ks); nf = 0
                while bi <= need:
                    assert ready(), ("background op blocked", ins.tok, bg[bi].after)
                    emit_bg(True); nf += 1
                while bi <= need + ins.ahead and ready(): emit_bg(True)
                if log is not None: log.append("wait %s t=%d slack=%d forced=%d" % (ins.tok, t, t - issued_t[need], nf))
        out.append(ins)
        if ins.kind == "mfma":
            t = max(t, pipe); pipe = t + 4 * ins.passes; t += 8
        elif ins.op == "ds_read_b128": t += 6
        elif ins.kind == "nop": t += 4 * (int(ins.text.split()[1]) + 1)
        else: t += 4 * ins.cost
        if ins.kind in VM and not ins.cond: last = t
        if ins.glue or ins.kind == "label": continue
        nx = [x for x in fg[idx + 1:idx + 4] if x.kind != "gap"]
        if nx and (nx[0].cond or nx[0].kind == "label"): continue
        if any(x.op.startswith(SCC_USERS) for x in nx[:2]): continue
        if ready() and t >= last + (bg[bi].sp or spacing):
            inm = pipe > t - 40
            good = (not inm) or (ins.kind in ("mfma", "dsr") and not (nx and nx[0].kind == "dsr"))
            if good: emit_bg()
    assert bi == len(bg), "background ops left over"
    if log is not None: log.append("end t=%d" % t)
    return out


class TL:
    def __init__(self, spacing=66, vlat=650, llat=130):
        self.out = Stream(); self.bg = []; self.bi = 0; self.marks = set()
        self.t = 0.0; self.pipe = -1000.0; self.last = -1e9; self.pos = 0; self.hz = Haz()
        self.spacing = spacing; self.vlat = vlat; self.llat = llat
        self.tokt = {}; self.log = []; self.free = 0; self.forced = 0; self.ta = 0; self.watch = None; self.seen = set()
    def B(self, text, tok=None, after=None, sp=None): self.bg.append(Bg(text, tok, after, sp))
    def lastbg(self, tok):
        k = None
        for i, b in enumerate(self.bg):
            if b.tok == tok: k = i
        return k
    def bg_ready(self):
        return self.bi < len(self.bg) and (self.bg[self.bi].after is None or self.bg[self.bi].after in self.marks)
    def bg_due(self):
        if not self.bg_ready(): return False
        b = self.bg[self.bi]
        return self.t + 4 * (len(b.ins) - 1) >= self.last + (b.sp or self.spacing)
    def emit_bg(self, forced=False):
        b = self.bg[self.bi]; self.bi += 1
        for i in b.ins[:-1]: self.raw(i)
        self.raw(b.ins[-1])
    def raw(self, ins):
        n = self.hz.need(ins, self.pos)
        if n > 0 and not ins.cond: self.t += 4 * n; self.pos += n
        self.out.append(ins)
        self.hz.commit(ins, self.pos)
        if ins.cond or ins.kind == "label": return
        k = ins.kind
        if k == "mfma":
            self.t = max(self.t, self.pipe); self.pipe = self.t + 4 * ins.passes; self.t += 8; self.free = -1
        elif k in ("dsr", "dsw") or k in VM:
            if self.free == -1: self.t += 4; self.free = 1
            elif self.free == -2: self.t += 6; self.free = 0
            if k in VM:
                self.t = max(self.t, self.ta); self.ta = self.t + (64 if ins.op.endswith('x4') else 24); self.last = self.t
            self.t += 4
        elif k == "nop": self.t += 4 * (int(ins.text.split()[1]) + 1)
        elif k in ("salu", "wait", "waittok", "ctl", "smem", "barrier"):
            if self.free == 1: self.free = 0
            else: self.t += 4
            if k == "barrier": self.t += 12
        else:
            self.t += 4 * ins.cost
            if self.free != 1: self.free = -2
        if k == "nop": self.pos += int(ins.text.split()[1]) + 1
        elif k != "waittok": self.pos += 1
        if ins.tok is not None and k != "waittok": self.tokt[ins.tok] = (self.t, k in VM)
    def tok_time(self, ins):
        r = 0
        for x in ins.tok:
            k = self.lastbg(x)
            if (k is not None and k >= self.bi) or x not in self.tokt: return 1e18
            t0, vm = self.tokt[x]
            r = max(r, t0 + (ins.lat if ins.lat is not None else (self.vlat if vm else self.llat)))
        return r
    def tok_ready(self, ins):
        for x in ins.tok:
            k = self.lastbg(x)
            if k is not None and k >= self.bi: return False
            t0, vm = self.tokt[x]
            if self.t < t0 + (ins.lat if ins.lat is not None else (self.vlat if vm else self.llat)): return False
        return True
    def emit(self, ins):
        if ins.op == "MARK":
            self.marks.add(ins.tok); self.log.append("mark %s t=%d bg=%d" % (ins.tok, self.t, self.bi)); return
        if ins.op == "NEED":
            assert ins.tok in self.marks, ins.tok; return
        if ins.op == "GAP": return
        if ins.kind == "waittok":
            ks = [k for k in (self.lastbg(x) for x in ins.tok) if k is not None]
            nf = 0
            if ks:
                need = max(ks)
                while self.bi <= need:
                    assert self.bg_ready(), ("background op blocked", ins.tok, self.bg[self.bi].after)
                    self.emit_bg(True); nf += 1
                while self.bi <= need + ins.ahead and self.bg_ready(): self.emit_bg(True)
            t0 = max(self.tokt[x][0] for x in ins.tok); vm = any(self.tokt[x][1] for x in ins.tok)
            if vm: self.log.append("wait %s t=%d slack=%d forced=%d" % (ins.tok, self.t, self.t - t0, nf))
            self.t = max(self.t, t0 + (500 if vm else 100))
            nm = "".join(map(str, ins.tok[0])) if isinstance(ins.tok[0], tuple) else str(ins.tok[0])
            if self.watch and nm not in self.seen:
                self.seen.add(nm)
                a = self.watch("<" + nm); b = self.watch(">" + nm)
                if a: self.out.append(Ins(a))
                self.raw(ins)
                if b: self.out.append(Ins(b))
                return
        self.raw(ins)
    def straight(self, fg):
        for idx, ins in enumerate(fg):
            self.emit(ins)
            if ins.glue or ins.kind in ("label", "gap"): continue
            nx = [x for x in fg[idx + 1:idx + 4] if x.kind != "gap"]
            if nx and (nx[0].cond or nx[0].kind == "label"): continue
            if any(x.op.startswith(SCC_USERS) for x in nx[:2]): continue
            if self.bg_due():
                inm = self.pipe > self.t - 40
                if (not inm) or (ins.kind in ("mfma", "dsr") and not (nx and nx[0].kind == "dsr")): self.emit_bg()
    def sched(self, M, Fs, nds=2):
        mi = 0; fi = [0] * len(Fs)
        def head(k):
            F = Fs[k]
            while fi[k] < len(F):
                x = F[fi[k]]
                if x.op == "MARK": self.emit(x); fi[k] += 1
                elif x.op == "GAP" or (x.op == "NEED" and x.tok in self.marks): fi[k] += 1
                elif x.op == "NEED": return None
                else: return x
            return None
        def take(k):
            F = Fs[k]
            while True:
                x = F[fi[k]]; fi[k] += 1; self.emit(x)
                nxt = F[fi[k]] if fi[k] < len(F) else None
                if not (x.glue or x.kind == "label" or (nxt is not None and (nxt.cond or nxt.kind == "label" or nxt.op.startswith(SCC_USERS)))): break
            head(k)
        def ready(x):
            if x.kind == "waittok": return self.tok_ready(x)
            return self.hz.need(x, self.pos) <= 0
        def mstate():
            if mi >= len(M): return 0
            st = 2; npre = 0
            for x in M[mi]:
                if x.op == "NEED":
                    if x.tok not in self.marks: return 0
                elif x.kind == "waittok":
                    if not self.tok_ready(x): st = 1
                elif x.kind == "mfma":
                    if self.hz.need(x, self.pos + npre) > 0: st = 1
                    break
                elif x.kind != "gap": npre += 1
            return st
        def window(n):
            for k in range(len(Fs)):
                while n > 0:
                    x = head(k)
                    if x is not None and x.kind == "waittok" and ready(x) and fi[k] + 1 < len(Fs[k]) and Fs[k][fi[k] + 1].kind == "dsr":
                        take(k); continue
                    if x is None or x.kind not in ("dsr", "vst") or not ready(x): break
                    take(k); n -= 2 if x.op == 'ds_read_b128' else 1
            if self.bg_due(): self.emit_bg()
        while True:
            hs = [head(k) for k in range(len(Fs))]
            if mi >= len(M) and all(fi[k] >= len(Fs[k]) for k in range(len(Fs))): break
            ms = mstate()
            fm = next((k for k, x in enumerate(hs) if x is not None and x.kind == "mfma" and ready(x)), None)
            def do_m():
                nonlocal mi
                for x in M[mi]: self.emit(x)
                mi += 1; window(nds + (0 if M[mi - 1][-1].kind == 'dsr' or any(y.kind == 'dsr' for y in M[mi - 1]) else 2))
            def do_fm():
                p = hs[fm].passes; take(fm); window(nds if p == 8 else 1)
            if self.t > self.pipe - 4:
                if fm is not None: do_fm(); continue
                if ms == 2: do_m(); continue
            f = next((k for k, x in enumerate(hs) if x is not None and x.kind not in ("mfma", "dsr", "vst") and ready(x)), None)
            idle = ms != 2 and fm is None
            if f is None and idle:
                f = next((k for k, x in enumerate(hs) if x is not None and x.kind != "mfma" and ready(x)), None)
            if f is not None:
                take(f)
                if idle and self.pipe <= self.t and self.bg_due(): self.emit_bg()
                continue
            if fm is None:
                nd = [self.hz.need(x, self.pos) for x in hs if x is not None and x.kind != "waittok"]
                nd = [n for n in nd if n > 0]; room = int((self.pipe - self.t) // 4)
                if nd and room >= 1:
                    self.raw(Ins("s_nop %d" % (min(min(nd), room) - 1))); continue
            if fm is not None: do_fm(); continue
            if ms == 2: do_m(); continue
            f = next((k for k, x in enumerate(hs) if x is not None and x.kind != "waittok"), None)
            if f is not None: self.forced += 1; take(f); continue
            if self.bg_ready(): self.emit_bg(True); continue
            cand = [(self.tok_time(x), k) for k, x in enumerate(hs) if x is not None]
            if ms == 1: cand.append((max([self.tok_time(x) for x in M[mi] if x.kind == "waittok"] + [0]), -1))
            assert cand, ("schedule is stuck", mi, [Fs[k][fi[k]].tok for k in range(len(Fs)) if fi[k] < len(Fs[k])])
            tt, f = min(cand)
            assert tt < 1e17, ("schedule is stuck", mi, [Fs[k][fi[k]].tok for k in range(len(Fs)) if fi[k] < len(Fs[k])], self.bg[self.bi].after)
            if tt > self.t: self.log.append("idle %d at t=%d" % (tt - self.t, self.t)); self.t = tt
            if f < 0: do_m()
            else: take(f)
```

```python
import sys, struct
from asmlib import module
from backend import *

NAME = "parallel_sum__linear_kernel_hedgehog__dense_activation_gelu__prompt"
def f2u(x): return "0x%x" % struct.unpack("<I", struct.pack("<f", x))[0]
LOG2E = 1.4426950408889634
K0 = -2.0 * LOG2E * 0.7978845608028654

WS_G = 0; WS_FL1 = 0x1000; WS_FL2 = 0x3000; WS_STATS = 0x8000; WS_KVP = 0x40000; WS_ACT = 0x100000
KVREC = 1152; TBSTR = 118 * 1024; WS_STAMP = 0x1000000
TAGC = 0x9E3779B9
R = [0, 32768, 65536, 98304, 131072]
SCR = R[4] + 16384
FFN_BLK0 = [0, 6, 11, 16, 22, 27, 32, 38]
FFN_NBLK = [6, 5, 5, 6, 5, 5, 6, 5]
SBL = [[4, 5, 10], [15, 20, 21], [26, 31, 43], [36, 37, 42]]
def pack(l): return "0x%x" % sum(b << (8 * i) for i, b in enumerate(l))

sX, sW, sWS, sW2, sWo, sOut, sAux, sB2 = ("s[%d:%d]" % (i, i + 3) for i in (8, 12, 16, 20, 24, 28, 32, 36))
sM, sN = "s0", "s1"
sWV, sT, sJ, sU, sI = "s3", "s4", "s5", "s6", "s7"
sROT, sQ4, sTT, sCB, sFL, sSTB = "s64", "s65", "s66", "s67", "s68", "s69"
sA, sB, sC, sD = "s70", "s71", "s72", "s73"
sXB = ["s74", "s75", "s76", "s77"]
sAB = ["s78", "s79", "s80", "s81"]
sXK = ["s82", "s83"]; sSO = ["s84", "s85"]
sBA, sBB = "s86", "s87"; sBS = ["s88", "s89", "s90"]
sPCOL, sW8K, sW16K = "s91", "s92", "s93"
sBLKP, sBLKS = "s94", "s95"; sHD, sFK = "s94", "s95"
sE0, sE1 = "s96", "s97"
sPAR = "s[98:99]"
STAMPR = [60, 40, 42, 44, 50, 52, 46, 54, 62, 56, 58, 48]

class VA:
    def __init__(self, start=1): self.n = start
    def __call__(self, k=1, al=1):
        self.n = (self.n + al - 1) // al * al
        r = self.n; self.n += k
        assert self.n <= 256, "out of VGPRs"
        return r
def v(i, k=1): return "v%d" % i if k == 1 else "v[%d:%d]" % (i, i + k - 1)
def ag(i, k=1): return "a%d" % i if k == 1 else "a[%d:%d]" % (i, i + k - 1)
MF = "v_mfma_f32_32x32x16_bf16"; MF16 = "v_mfma_f32_16x16x32_bf16"
DPPM = "row_mask:0xf bank_mask:0xf"

def srd(s, d, p, n):
    d0 = int(d[2:].split(":")[0])
    s(f"s_mov_b32 s{d0}, s{p}\ns_mov_b32 s{d0+1}, s{p+1}\ns_mov_b32 s{d0+2}, {n}\ns_mov_b32 s{d0+3}, 0x20000")

class Gen:
    def __init__(self, **opt):
        self.o = dict(stamps=False, warm=True, outsc1=False, sp=64, sp1=48, ahead=10, log=False, umode=0, vlat=650, stlat=800,
                      ah0=10, ah0b=6, lag=2, s0=4, slp=8, slat=750, wlat=700, wlat0=1100, nE=4, pace=3, kvpace=12, kvhold=99, hold=0, kvl=2, prio=1, fSa=5, fS=6, fO=8, fOf=9, ah2=10, fo=2)
        self.o.update(opt); self.uid = 0
    def lab(self, p):
        self.uid += 1; return "L_%s_%d" % (p, self.uid)
    def stamp(self, s, name):
        if not self.o["stamps"]: return
        names = str(self.o.get("st", "x0,b0,p1,u1,u2,u3,u4,u5,q,o,mm14,red")).split(",")
        if name in names:
            r = STAMPR[names.index(name)]; s(f"s_memrealtime s[{r}:{r+1}]")

    def prologue(self, s):
        s("s_cmp_ge_u32 s2, 256\ns_cbranch_scc1 L_end")
        s("s_load_dwordx16 s[40:55], s[0:1], 0\ns_load_dwordx8 s[56:63], s[0:1], 64")
        if self.o["stamps"]: s("s_memrealtime s[100:101]")
        s(f"v_lshrrev_b32 v1, 6, v0\nv_and_b32 v0, 63, v0\nv_readfirstlane_b32 {sWV}, v1")
        s(f"s_and_b32 {sA}, s2, 7\ns_lshr_b32 {sI}, s2, 3")
        if self.o["umode"] == 0: s(f"s_lshr_b32 {sROT}, {sI}, 2\ns_and_b32 {sU}, {sI}, 3")
        else: s(f"s_and_b32 {sROT}, {sI}, 7\ns_lshr_b32 {sU}, {sI}, 3")
        s(f"s_and_b32 {sT}, {sA}, 1\ns_lshl3_add_u32 {sT}, {sT}, {sROT}\ns_lshr_b32 {sQ4}, {sA}, 1")
        s(f"s_and_b32 {sJ}, {sU}, 1\ns_lshl1_add_u32 {sJ}, {sQ4}, {sJ}")
        s(f"s_lshr_b32 {sC}, {sI}, 3\ns_lshl2_add_u32 {sTT}, {sA}, {sC}")
        s(f"s_and_b32 {sCB}, {sI}, 7\ns_lshl_b32 {sCB}, {sCB}, 7")
        s(f"s_and_b32 {sA}, {sWV}, 1\ns_cmp_eq_u32 {sA}, 1\ns_cselect_b64 {sPAR}, -1, 0")
        s("v_lshlrev_b32 v1, 4, v0\nv_and_b32 v2, 0x70, v1\nv_and_b32 v3, 0x30, v0\nv_xor_b32 v2, v2, v3\nv_lshrrev_b32 v3, 3, v0\nv_lshl_add_u32 v3, v3, 10, v2")
        s(f"s_lshl_b32 {sW8K}, {sWV}, 13\ns_lshl_b32 {sW16K}, {sWV}, 14\ns_lshl_b32 {sE0}, {sWV}, 10\ns_lshl_b32 {sE1}, {sWV}, 12")
        for i in range(4):
            s(f"s_add_u32 {sA}, {sQ4}, {i}\ns_and_b32 {sA}, {sA}, 3\ns_lshl2_add_u32 {sA}, {sT}, {sA}")
            s(f"s_lshl_b32 {sXB[i]}, {sA}, 15\ns_mul_i32 {sAB[i]}, {sA}, {TBSTR}\ns_add_u32 {sAB[i]}, {sAB[i]}, {WS_ACT}")
        s(f"s_lshl2_add_u32 {sD}, {sU}, {sWV}\ns_lshl_b32 {sA}, {sD}, 11\ns_add_u32 {sSO[0]}, {sXB[0]}, {sA}")
        s(f"s_lshl_b32 {sSTB}, {sT}, 11\ns_add_u32 {sSTB}, {sSTB}, {WS_STATS}\ns_lshl4_add_u32 {sD}, {sQ4}, {sD}\ns_lshl_b32 {sD}, {sD}, 5\ns_add_u32 {sSO[1]}, {sD}, {sSTB}")

    def role(self, role):
        att = role == "att"; o = self.o
        tl = TL(o["sp"], o["vlat"]); B = tl.B
        def watch(name):
            x = Stream(); self.stamp(x, name); return x[0].text if x else None
        tl.watch = watch
        s = Stream(); a = VA(1)
        stride = 3072 if att else 2752
        vL16 = a(); vXD0 = a(); vXD = a(4); vOUT = a(); vTAG = a(2, 2); vN16 = a(); vXR = a(4); vSR = a()
        vT0 = a(1, 2); vT1 = a(); vT2 = a(); vT3 = a()
        vSD = a(4); vWD = a(4); vPR = vWD + 1; vWR = a(2); vFL = a(2, 2); vFA = a(); vZ = a()
        RW = vXD; RR = vSD; vWB = vSD + 2
        assert vXD == 3
        if att: vKA = a(2)
        XR = a(8, 4); B2 = a(4, 4)
        ACC = [a(16, 4), a(16, 4)]; NX = 8; XF = a(4 * NX, 4)
        CA = [a(4, 4), a(4, 4)]; ST = a(16, 4); CBS = a(4, 4); CS = a(4, 4); CSEL = a(4, 4); vPD = CBS
        nk = 2 if att else 3
        KC = [a(nk) for _ in range(4)]; KCS = a(nk)
        if att:
            ONES = a(4, 4); SEL = [a(4, 4), a(4, 4)]; F8a = a(8, 4); F8b = a(8, 4)
            PHI = [a(4, 4), a(4, 4)]; KV = a(16, 4); TB = a(16, 4); PF = KV; TA = a(16, 4); F4 = a(4, 4)
        else:
            vB1 = a(2); ONES = a(); G4 = a(4); HO = a(8, 4)
        vJ = a(7)
        sys.stderr.write("%s VGPRs: %d\n" % (role, a.n))
        sp1 = o["sp1"]
        tmp = ACC[0]
        for r in range(2): B(f"buffer_load_dwordx4 {v(tmp+4*r,4)}, {v(vL16)}, {sX}, {sSO[0]} offen offset:{1024*r}", "rows", "go", sp=8)
        s(f"v_mov_b32 {v(vZ)}, 0\nv_min_u32 {v(vXD0)}, 1, v0\nv_mul_u32_u24 {v(vXD0)}, {sSO[1]}, {v(vXD0)}\ns_mov_b32 {sFL}, {sSO[1]}")
        if att:
            s(f"s_lshl_b32 {sD}, {sJ}, 7\ns_add_u32 {sPCOL}, {sD}, 1024\ns_lshl2_add_u32 {sHD}, {sJ}, {sWV}")
        else:
            s(f"s_mov_b32 {sA}, {pack(FFN_BLK0[:4])}\ns_mov_b32 {sB}, {pack(FFN_BLK0[4:])}\ns_lshl_b32 {sC}, {sJ}, 3\ns_lshr_b64 s[70:71], s[70:71], {sC}\ns_and_b32 {sA}, {sA}, 0xff")
            s(f"s_lshl_b32 {sPCOL}, {sA}, 6\ns_add_u32 {sD}, {sPCOL}, 256")
            s(f"s_add_u32 {sBLKP}, {sA}, {sWV}\ns_lshr_b32 {sB}, {sWV}, 1\ns_add_u32 {sBLKS}, {sA}, {sB}\ns_add_u32 {sBLKS}, {sBLKS}, 4")
        s(f"s_mul_i32 {sA}, {sWV}, {16*stride}\ns_add_u32 {sPCOL}, {sPCOL}, {sA}\ns_movk_i32 {sB}, {stride}")
        s(f"v_lshrrev_b32 {v(vT0)}, 4, v0\nv_and_b32 {v(vT1)}, 15, v0\nv_lshlrev_b32 {v(vT2)}, {1 if att else 2}, {v(vT0)}\nv_xor_b32 {v(vT1)}, {v(vT1)}, {v(vT2)}")
        s(f"v_mul_u32_u24 {v(vT0)}, {sB}, {v(vT0)}")
        if att: s(f"v_lshrrev_b32 {v(vT2)}, 3, {v(vT1)}\nv_lshl_add_u32 {v(vT0)}, {v(vT2)}, 10, {v(vT0)}\nv_and_b32 {v(vT1)}, 7, {v(vT1)}")
        s(f"v_lshl_add_u32 {v(vPD)}, {v(vT1)}, 4, {v(vT0)}")
        for q in range(1, 4): s(f"v_add_u32 {v(vPD+q)}, {q*(4*stride-1024)}, {v(vPD)}")
        s(f"s_mov_b32 s10, {2048*1024}\ns_mov_b32 s11, 0x20000\ns_mov_b32 s14, {512*stride}\ns_mov_b32 s15, 0x20000\ns_mov_b32 s18, 0x10000000\ns_mov_b32 s19, 0x20000")
        s("s_waitcnt lgkmcnt(0)"); self.stamp(s, "go")
        s("s_mov_b64 s[8:9], s[40:41]"); s.mark("go")
        s(f"s_mov_b64 s[12:13], s[{42 if att else 50}:{43 if att else 51}]\ns_mov_b64 s[16:17], s[62:63]")
        s.mark("pd")
        if att: srd(s, sAux, 44, 32 * 512)
        else: srd(s, sAux, 52, 2752)
        s.mark("aux")
        def run4(pre, vb, srdn, tok, after, sp=None):
            for q in range(4):
                B(f"{pre if q == 0 else ''}\nbuffer_load_dwordx4 {v(vb+q)}, {srdn}, {sM} offen offset:{1024*q} lds", tok, after, sp)
        def dma_p(ci, after=None):
            run4(f"s_add_u32 {sM}, {sROT}, {ci}\ns_and_b32 {sM}, {sM}, 7\ns_mul_i32 {sM}, {sM}, {64*stride}\ns_add_u32 m0, {sE1}, {R[1]+ci*16384}\ns_add_u32 {sM}, {sM}, {sPCOL}", vPD, sW, ("p", ci), after, sp1 if ci else 16)
        def dma_x(i, after, sp=None):
            for k in range(2): run4(f"s_add_u32 m0, {sW8K}, {R[i]+k*4096}\ns_add_u32 {sM}, {sXB[i]}, {sXK[k]}", vXD, sX, ("x", i), after, sp)
        B(f"buffer_load_dword {v(vTAG)}, {v(vXD0)}, {sWS}, 0 offen sc1", "tag", "pd", sp=16)
        dma_p(0, "pd")
        if att:
            B(f"s_lshr_b32 {sM}, {sHD}, 1\ns_add_u32 m0, {sE0}, {SCR}\ns_lshl_b32 {sM}, {sM}, 10\nbuffer_load_dwordx4 {v(vL16)}, {sAux}, {sM} offen lds", "phi", "aux", sp=16)
        srd(s, sW2, 54, 1376 * 1024); srd(s, sWo, 46, 512 * 1024); srd(s, sB2, 56, 1024)
        s(f"v_and_b32 {v(vOUT)}, 0x70, {v(vL16)}")
        nsmall = 1
        if not att:
            t0, t2 = vB1, vB1 + 1
            s(f"v_and_b32 {v(t0)}, 0x13, v0\nv_and_b32 {v(t2)}, 4, v0\nv_lshl_add_u32 {v(t0)}, {v(t2)}, 1, {v(t0)}\nv_bfe_u32 {v(t2)}, v0, 3, 1\nv_lshl_add_u32 {v(t0)}, {v(t2)}, 2, {v(t0)}")
            s(f"v_and_b32 {v(t2)}, 32, v0\nv_lshl_add_u32 {v(t0)}, {v(t2)}, 8, {v(t0)}\nv_lshlrev_b32 {v(G4)}, 1, {v(t0)}")
        if o["warm"]:
            s(f"s_getpc_b64 s[48:49]\nL_pc_{role}:\ns_sub_u32 s48, s48, L_pc_{role}-{NAME}_kernel\ns_subb_u32 s49, s49, 0", glue=True)
            s(f"s_lshl2_add_u32 {sC}, {sI}, {sWV}\ns_lshl_b32 {sC}, {sC}, 2")
            w0, w1, w2 = XR, vJ + 4, vJ + 5
            s(f"v_min_u32 {v(w0)}, 3, v0\nv_lshlrev_b32 {v(w2)}, 7, {v(w0)}\nv_add_lshl_u32 {v(w0)}, {v(w0)}, {sC}, 7\nv_min_u32 {v(w0)}, L_end-{NAME}_kernel, {v(w0)}")
            s(f"v_min_u32 {v(w1)}, 10, v0\nv_lshlrev_b32 {v(w1)}, 7, {v(w1)}")
        for q in range(3, -1, -1):
            s(f"v_xor_b32 {v(vXD+q)}, {64*(q&1)}, v3")
            if q: s(f"v_add_u32 {v(vXD+q)}, {7168*q}, {v(vXD+q)}")
        for k in range(2):
            s(f"s_lshl1_add_u32 {sA}, {sWV}, {sROT}\ns_add_u32 {sA}, {sA}, {k}\ns_and_b32 {sA}, {sA}, 7\ns_lshl_b32 {sXK[k]}, {sA}, 7")
        s.mark("sm")
        B(f"buffer_load_dwordx4 {v(B2,4)}, {v(vOUT)}, {sB2}, {sCB} offen", "b2", "sm", sp=16)
        if not att:
            B(f"s_lshl_b32 {sM}, {sBLKP}, 6\nbuffer_load_ushort {v(vB1)}, {v(G4)}, {sAux}, {sM} offen", sp=16)
            B(f"s_lshl_b32 {sM}, {sBLKS}, 6\nbuffer_load_ushort {v(vB1+1)}, {v(G4)}, {sAux}, {sM} offen", "b2", sp=16); nsmall += 2
        if o["warm"]:
            B(f"global_load_dword {v(XR+4)}, {v(w0)}, s[48:49]", sp=16)
        def warm2(after):
            if not o["warm"]: return
            B(f"s_lshl2_add_u32 {sN}, s2, {sWV}\ns_mul_i32 {sM}, {sN}, {11*128}\nbuffer_load_dword {v(w1)}, {v(w1)}, {sW2}, {sM} offen", None, after, sp=16)
            B(f"s_lshl_b32 {sM}, {sN}, 9\nbuffer_load_dword {v(w2)}, {v(w2)}, {sWo}, {sM} offen", sp=32)
            B(f"s_lshl_b32 {sM}, s2, 7\ns_add_u32 {sM}, {sM}, {WS_FL1}\nbuffer_load_dword {v(w2+1)}, {v(vZ)}, {sWS}, {sM} offen", sp=16)
        dma_x(0, None, sp1)
        for ci in range(1, 8): dma_p(ci, "b0" if ci == 7 else None)
        srd(s, sOut, 58, 2048 * 1024)
        s(f"s_movk_i32 {sB}, {stride}")
        for k in range(2):
            s(f"s_add_u32 {sA}, {sWV}, {sROT}\ns_add_u32 {sA}, {sA}, {4*k}\ns_and_b32 {sA}, {sA}, 7\ns_mul_i32 {sA}, {sA}, {64*stride}\ns_add_u32 {sSO[k]}, {sA}, {sD}")
        def dma_s(half, after):
            for k in range(2): run4(f"s_add_u32 m0, {sW8K}, {R[4-4*half]+k*4096}\ns_add_u32 {sM}, {sSO[half]}, {32*stride*k}", vSD, sW, ("s", half), after)
        s(f"v_lshrrev_b32 {v(vT0)}, 3, v0\nv_lshlrev_b32 {v(vT1)}, 2, v0\nv_and_b32 {v(vT1)}, 64, {v(vT1)}\nv_xor_b32 {v(vT1)}, {v(vT1)}, {v(vOUT)}")
        s(f"v_mad_u32_u24 {v(vSD)}, {v(vT0)}, {sB}, {v(vT1)}")
        for q in range(1, 4): s(f"v_add_u32 {v(vSD+q)}, {q*(8*stride-1024)}, {v(vSD)}")
        s(f"v_lshl_add_u32 {v(vWD+3)}, {v(vT0)}, 10, {v(vT1)}")
        s(f"v_and_b32 {v(vT0)}, 31, v0\nv_lshlrev_b32 {v(vN16)}, 4, {v(vT0)}\nv_lshlrev_b32 {v(vT1)}, 7, {v(vT0)}")
        s(f"v_bfe_u32 {v(vT0)}, v0, 1, 3\nv_lshrrev_b32 {v(vT2)}, 5, v0\nv_xor_b32 {v(vT0)}, {v(vT0)}, {v(vT2)}\nv_lshl_add_u32 {v(vXR)}, {v(vT0)}, 4, {v(vT1)}")
        for cq in range(1, 4): s(f"v_xor_b32 {v(vXR+cq)}, {32*cq}, {v(vXR)}")
        if att:
            s(f"v_lshl_add_u32 {v(vT3)}, {v(vT2)}, 8, {v(vN16)}\nv_lshlrev_b32 {v(vT2)}, 4, {v(vT2)}\nv_add_u32 {v(vT2)}, 0x400, {v(vT2)}")
            s(f"v_cmp_gt_u32 vcc, 0x100, {v(vN16)}\nv_add_u32 {v(vT0)}, 32, {v(vT2)}\nv_add_u32 {v(vT1)}, 0x200, {v(vT3)}")
            s(f"v_cndmask_b32 {v(vKA)}, {v(vT2)}, {v(vT3)}, vcc\nv_cndmask_b32 {v(vKA+1)}, {v(vT0)}, {v(vT1)}, vcc")
        s(f"v_bfe_u32 {v(vT0)}, v0, 2, 2\nv_bfe_u32 {v(vT1)}, v0, 4, 1")
        s(f"v_and_b32 {v(vT2)}, 16, {v(vL16)}\nv_and_b32 {v(vT3)}, 2, v0\nv_lshl_add_u32 {v(vT2)}, {v(vT3)}, 2, {v(vT2)}")
        s(f"v_lshrrev_b32 {v(vT3)}, 5, v0\nv_lshl_add_u32 {v(vT3)}, {v(vT3)}, 3, {v(vT0)}")
        x0, x1 = XF, XF + 1
        if att: s(f"v_lshl_add_u32 {v(x0)}, {v(vT1)}, 2, {sWV}\nv_xor_b32 {v(x0)}, {v(x0)}, {v(vT0)}\nv_lshl_add_u32 {v(x0)}, {v(x0)}, 5, {v(vT2)}")
        else: s(f"v_xor_b32 {v(x0)}, {sWV}, {v(vT0)}\nv_lshl_add_u32 {v(x0)}, {v(x0)}, 6, {v(vT2)}\nv_lshl_add_u32 {v(x0)}, {v(vT1)}, 5, {v(x0)}")
        s(f"v_lshl_add_u32 {v(x0)}, {v(vT3)}, 8, {v(x0)}\nv_add_u32 {v(vPR)}, {R[1]}, {v(x0)}\nv_add_u32 {v(vPR+1)}, {R[3]}, {v(x0)}")
        s(f"v_lshrrev_b32 {v(x0)}, 1, {v(vT0)}\nv_lshl_add_u32 {v(x0)}, {v(x0)}, 6, {v(vT2)}\nv_lshl_add_u32 {v(x0)}, {v(vT1)}, 5, {v(x0)}\nv_lshl_add_u32 {v(x0)}, {v(vT3)}, 7, {v(x0)}")
        s(f"v_add_u32 {v(vWR)}, {sW8K}, {v(x0)}\nv_xor_b32 {v(vWR+1)}, 64, {v(vWR)}")
        if att: s(f"s_lshl_b32 {sA}, {sWV}, 5")
        else: s(f"s_and_b32 {sA}, {sWV}, 2\ns_lshl_b32 {sA}, {sA}, 5")
        s(f"v_xor_b32 {v(x0)}, {sA}, {v(x0)}\nv_add_u32 {v(vSR)}, {R[4]}, {v(x0)}")
        for i in range(4 if att else 1): s(f"v_mov_b32 {v(ONES+i)}, 0x3f803f80")
        s(f"v_cmp_eq_u32 vcc, {v(vT0)}, {v(vT1)}")
        if att:
            s(f"v_bfe_u32 {v(x0)}, v0, 1, 1\nv_lshl_add_u32 {v(x0)}, {v(vT1)}, 1, {v(x0)}\nv_lshlrev_b32 {v(x0)}, 3, {v(x0)}\nv_lshl_add_u32 {v(x0)}, {v(vT3)}, 5, {v(x0)}")
        s(f"v_and_b32 {v(vFA)}, {15 if att else 7}, v0\nv_lshlrev_b32 {v(vFA)}, 3, {v(vFA)}")
        for i in range(4): s(f"v_cndmask_b32 {v(CSEL+i)}, 0, {v(ONES)}, vcc")
        if att:
            s(f"s_and_b32 {sC}, s98, 0x200\ns_add_u32 {sA}, {sE0}, {sC}\ns_add_u32 {sA}, {sA}, {SCR}")
            s(f"v_add_u32 {v(x0)}, {sA}, {v(x0)}\nv_xor_b32 {v(x1)}, 0x200, {v(x0)}")
            s(f"v_bfe_u32 {v(vT0)}, v0, 2, 1\nv_lshrrev_b32 {v(vT2)}, 5, v0\nv_cmp_eq_u32 vcc, {v(vT0)}, {v(vT2)}")
            s(f"v_and_b32 {v(vT0)}, 16, {v(vL16)}\nv_mov_b32 {v(vT2)}, 0x3f80\nv_lshlrev_b32 {v(vT2)}, {v(vT0)}, {v(vT2)}\nv_cndmask_b32 {v(vT2)}, 0, {v(vT2)}, vcc")
            s(f"v_bfe_u32 {v(vT0)}, v0, 1, 1\nv_bfe_u32 {v(vT3)}, v0, 3, 2\nv_lshl_add_u32 {v(vT0)}, {v(vT3)}, 1, {v(vT0)}")
            for i in range(0, 8, 2):
                s(f"v_cmp_eq_u32 vcc, {i}, {v(vT0)}\nv_cmp_eq_u32 s[70:71], {i+1}, {v(vT0)}")
                s(f"s_nop 0\nv_cndmask_b32 {v(SEL[i>>2]+(i&3))}, 0, {v(vT2)}, vcc\nv_cndmask_b32 {v(SEL[i>>2]+(i&3)+1)}, 0, {v(vT2)}, s[70:71]")
            s(f"s_lshl_b32 {sFK}, {sHD}, 7\ns_add_u32 {sFK}, {sFK}, {WS_FL1}")
        s(f"s_lshl_b32 {sC}, {sWV}, 3")
        for d, tb in ((sBA, FFN_BLK0[0::2]), (sBB, FFN_BLK0[1::2]), (sBS[0], [x[0] for x in SBL]), (sBS[1], [x[1] for x in SBL]), (sBS[2], [x[2] for x in SBL])):
            s(f"s_lshr_b32 {d}, {pack(tb)}, {sC}\ns_and_b32 {d}, {d}, 0xff")
        s.waittok("rows", ahead=o["ah0"]); self.stamp(s, "rows")
        q = ST
        for i in range(4): s(f"v_mov_b32 {v(q+i)}, 0")
        for i in range(4):
            for r in range(2):
                s(f"v_dot2c_f32_bf16 {v(q+r)}, {v(tmp+4*r+i)}, {v(ONES)}\nv_dot2c_f32_bf16 {v(q+2+r)}, {v(tmp+4*r+i)}, {v(tmp+4*r+i)}")
        s.waittok("tag")
        s(f"v_readfirstlane_b32 {sA}, {v(vTAG)}\nv_lshrrev_b32 {v(vT0)}, 1, v0")
        s(f"v_permlane32_swap_b32 {v(q)}, {v(q+1)}\nv_permlane32_swap_b32 {v(q+2)}, {v(q+3)}")
        s(f"v_add_f32 {v(q)}, {v(q)}, {v(q+1)}\nv_add_f32 {v(q+2)}, {v(q+2)}, {v(q+3)}\ns_add_u32 {sA}, {sA}, 0x{TAGC:x}")
        s(f"v_mov_b32 {v(vTAG)}, {sA}\nv_permlane16_swap_b32 {v(q)}, {v(q+2)}\nv_add_f32 {v(q)}, {v(q)}, {v(q+2)}")
        s(f"v_mov_b32 {v(vTAG+1)}, {sA}\nv_mov_b32 {v(q+1)}, {sA}")
        for m in ("quad_perm:[1,0,3,2]", "quad_perm:[2,3,0,1]", "row_half_mirror", "row_mirror"):
            s(f"v_add_f32_dpp {v(q)}, {v(q)}, {v(q)} {m} {DPPM}")
        s(f"s_mov_b32 exec_lo, 0x00010001\ns_mov_b32 exec_hi, 0x00010001\nbuffer_store_dwordx2 {v(q,2)}, {v(vT0)}, {sWS}, {sFL} offen sc1\ns_mov_b64 exec, -1", glue=True)
        self.stamp(s, "st")
        s(f"s_lshr_b32 {sFL}, {sTT}, 1\ns_lshl4_add_u32 {sFL}, {sFL}, {sWV}\ns_lshl_b32 {sFL}, {sFL}, 6\ns_add_u32 {sFL}, {sFL}, {WS_FL2}")
        s.waittok("b2")
        s(f"v_lshrrev_b32 {v(vT0)}, 3, v0\nv_lshl_add_u32 {v(vOUT)}, {v(vT0)}, 10, {v(vOUT)}")
        if not att:
            six = sum(1 << i for i, n in enumerate(FFN_NBLK) if n == 6)
            s(f"s_lshr_b32 {sC}, {six}, {sJ}\ns_lshr_b32 {sA}, {sWV}, 1\ns_andn2_b32 {sC}, {sA}, {sC}\ns_and_b32 {sC}, {sC}, 1\ns_lshl_b32 {sC}, {sC}, 18\ns_or_b32 {sBLKS}, {sBLKS}, {sC}")
        else:
            for hs in range(2):
                for e in range(2): s(f"ds_read_b64_tr_b16 {v(PHI[hs]+2*e,2)}, {v(x0+hs)} offset:{e*128}")
            s(f"v_and_b32 {v(vT2)}, 4, v0\nv_cmp_ne_u32 vcc, 0, {v(vT2)}\nv_mov_b32 {v(vT3)}, 0x80008000\ns_nop 0\nv_cndmask_b32 {v(vT3)}, 0, {v(vT3)}, vcc")
            for i in range(8): s(f"v_xor_b32 {v(PHI[i>>2]+(i&3))}, {v(vT3)}, {v(PHI[i>>2]+(i&3))}")
        def stats_ld(i, r):
            return f"s_add_u32 {r}, {sQ4}, {i}\ns_and_b32 {r}, {r}, 3\ns_lshl_b32 {r}, {r}, 9\ns_add_u32 {r}, {r}, {sSTB}\nbuffer_load_dwordx4 {v(ST+4*i,4)}, {v(vN16)}, {sWS}, {r} offen sc1"
        def xread(st, un, region, ks):
            st(f"ds_read_b128 {v(XF+4*(ks%NX),4)}, {v(vXR+(ks&3))} offset:{region+(ks>>2)*4096}", tok=("xf", un, ks))
        def stat_consts(st, i):
            m, va = ST + 4 * i, ST + 4 * i + 2; k = KC[i]
            st(f"v_mul_f32 {v(m)}, {f2u(1/512)}, {v(m)}\nv_mul_f32 {v(va)}, {f2u(1/512)}, {v(va)}\nv_fma_f32 {v(va)}, -{v(m)}, {v(m)}, {v(va)}\nv_max_f32 {v(va)}, 0, {v(va)}")
            st(f"v_add_f32 {v(va)}, {f2u(1e-5)}, {v(va)}\nv_sqrt_f32 {v(va)}, {v(va)}\nv_mov_b32 {v(m+3)}, 0")
            st(f"v_cvt_pk_bf16_f32 {v(m+1)}, -{v(m)}, {v(va)}\nv_rcp_f32 {v(k)}, {v(va)}")
            st(f"v_lshlrev_b32 {v(vT0)}, 16, {v(m+1)}\nv_and_b32 {v(vT1)}, 0xffff0000, {v(m+1)}")
            st(f"v_sub_f32 {v(m)}, -{v(m)}, {v(vT0)}\nv_sub_f32 {v(vT1)}, {v(va)}, {v(vT1)}")
            if att: st(f"v_mul_f32 {v(k+1)}, {f2u(LOG2E)}, {v(k)}")
            else:
                st(f"v_mov_b32 {v(k+2)}, {v(va)}\nv_mul_f32 {v(k+1)}, {v(k)}, {v(k)}\nv_mul_f32 {v(k)}, {f2u(K0)}, {v(k)}")
                st(f"v_mul_f32 {v(k+1)}, {v(k+1)}, {v(k)}\nv_mul_f32 {v(k+1)}, {f2u(0.044715)}, {v(k+1)}")
            st(f"v_cvt_pk_bf16_f32 {v(m)}, {v(vT0)}, {v(m)}\nv_cvt_pk_bf16_f32 {v(m+2)}, {v(vT1)}, 0")
        def corr_pre(st, which):
            c = CA[which]
            st(f"v_mov_b32 {v(c+3)}, 0\nv_mov_b32 {v(c+2)}, {0 if att else v(vB1+which)}")
            if not att: st(f"v_lshlrev_b32 {v(vB1+which)}, 16, {v(vB1+which)}")
        def corr_a(st, which):
            c = CA[which]
            st(f"v_cvt_pk_bf16_f32 {v(c)}, {v(CS)}, {v(CS)}\nv_lshlrev_b32 {v(vT1)}, 16, {v(c)}\nv_sub_f32 {v(vT0)}, {v(CS)}, {v(vT1)}")
            st(f"v_cvt_pk_bf16_f32 {v(c+1)}, {v(vT0)}, {0 if att else v(vB1+which)}")
        def spin(st, test, reload_, name):
            lp, ok = self.lab("poll"), self.lab("ok")
            st(test + f"\ns_cbranch_vccz {ok}", glue=True)
            st(f"s_mov_b32 {sC}, 0", cond=True)
            st(lp + ":")
            if o["slp"]: st(f"s_sleep {o['slp']}", cond=True)
            st(reload_, cond=True)
            st(f"s_add_u32 {sC}, {sC}, 1\ns_cmp_gt_u32 {sC}, 100000\ns_cbranch_scc1 {ok}\ns_waitcnt vmcnt(0)", cond=True)
            st(test + f"\ns_nop 4\ns_cbranch_vccnz {lp}", cond=True)
            st(ok + ":\ns_nop 0"); st.mark(name); self.stamp(st, name)
        corr_pre(s, 0); corr_pre(s, 1)
        B(stats_ld(0, sM), "stat0", "b%d" % o["s0"], sp=32)
        dma_x(1, "b3", sp1)
        for i in range(1, 4): B(stats_ld(i, sM), "stats", "b7", sp=32)
        dma_x(2, "b5"); dma_x(3, "b7")
        lag = o["lag"]
        def p1mm(kp, part):
            if kp < 0: return
            if part == 0:
                if kp % 2 == 0 or lag < 4: s.waittok(("xf", 0, min(31, kp + (1 if lag >= 4 else 0))))
                s(f"{MF} {v(ACC[0],16)}, {ag(4*kp,4)}, {v(XF+4*(kp%NX),4)}, {v(ACC[0],16) if kp else 0}")
            else: s(f"{MF16} {v(CS,4)}, {v(CSEL,4)}, {ag(4*kp,4)}, {v(CS,4) if kp else 0}")
        for ks in range(32):
            ci, kk = ks >> 2, ks & 3
            if kk == 0:
                if ci == 0: s.waittok(("x", 0), ("p", 0), ahead=o["ah0b"]); self.stamp(s, "x0")
                else: s.waittok(("p", ci), ahead=o["ahead"])
                s("s_barrier"); s.mark("b%d" % ci); self.stamp(s, "b%d" % ci)
            p1mm(ks - lag, 0)
            for e in range(2):
                s(f"ds_read_b64_tr_b16 {ag(4*ks+2*e,2)}, {v(vPR+(ci>>2))} offset:{(ci&3)*16384+kk*4096+e*1024}")
            xread(s, 0, 0, ks)
            p1mm(ks - lag, 1)
        x = Stream()
        x.waittok("stat0")
        spin(x, f"v_xor_b32 {v(vT0)}, {v(vTAG)}, {v(ST+1)}\nv_xor_b32 {v(vT1)}, {v(vTAG)}, {v(ST+3)}\nv_cmp_ne_u64 vcc, 0, {v(vT0,2)}", stats_ld(0, sA), "st0")
        stat_consts(x, 0)
        x(f"v_mov_b32 {v(vWD)}, {v(vWD+3)}")
        for q in range(1, 4): x(f"v_add_u32 {v(vWD+q)}, {7168*q}, {v(vWD)}")
        x(f"s_lshl_b32 {sPCOL}, {sTT}, 16\ns_add_u32 {sPCOL}, {sPCOL}, {sW16K}\ns_add_u32 {sPCOL}, {sPCOL}, {sCB}")
        x.need("cs0"); corr_a(x, 0); x.mark("ca0")
        tl.straight(s)
        Mp = []
        for n, kp in enumerate(range(32 - lag, 32)):
            g = Stream()
            if n == 0: g.waittok(("xf", 0, 31)); g("s_barrier"); g.mark("b8")
            g(f"{MF16} {v(CS,4)}, {v(CSEL,4)}, {ag(4*kp,4)}, {v(CS,4)}")
            if kp == 31: g.mark("cs0")
            Mp.append(g)
        for kp in range(32 - lag, 32):
            g = Stream(); g(f"{MF} {v(ACC[0],16)}, {ag(4*kp,4)}, {v(XF+4*(kp%NX),4)}, {v(ACC[0],16)}"); Mp.append(g)
        g = Stream(); g.need("ca0"); g(f"{MF} {v(ACC[0],16)}, {v(CA[0],4)}, {v(ST,4)}, {v(ACC[0],16)}"); self.stamp(g, "p1"); Mp.append(g)
        tl.sched(Mp, [x])

        def gelu(e, acc, k, sbase, sblk, tok):
            e(f"s_lshl_b32 {sB}, {sblk}, 11\ns_add_u32 {sB}, {sB}, {sbase}")
            for q in range(4):
                A = [v(acc + 4 * q + i) for i in range(4)]; T = [v(G4 + i) for i in range(4)]
                for i in range(4): e(f"v_mul_f32 {T[i]}, {A[i]}, {A[i]}")
                for i in range(4): e(f"v_fma_f32 {T[i]}, {T[i]}, {v(k+1)}, {v(k)}")
                for i in range(4): e(f"v_mul_f32 {T[i]}, {A[i]}, {T[i]}")
                for i in range(4): e(f"v_exp_f32 {T[i]}, {T[i]}")
                for i in range(4): e(f"v_fma_f32 {T[i]}, {T[i]}, {v(k+2)}, {v(k+2)}")
                for i in range(4): e(f"v_rcp_f32 {T[i]}, {T[i]}")
                for i in range(4): e(f"v_mul_f32 {T[i]}, {A[i]}, {T[i]}")
                for i in range(2): e(f"v_cvt_pk_bf16_f32 {v(HO+2*q+i)}, {T[2*i]}, {T[2*i+1]}")
                if q & 1: e(f"buffer_store_dwordx4 {v(HO+4*(q>>1),4)}, {v(vL16)}, {sWS}, {sB} offen offset:{1024*(q>>1)} sc1", tok=tok)
        def sm_head(e, src, phi, T_, f4):
            for i in range(4): e(f"v_cvt_pk_bf16_f32 {v(f4+i)}, {v(src+2*i)}, {v(src+2*i+1)}")
            e(f"{MF} {v(T_,16)}, {v(phi,4)}, {v(f4,4)}, 0")
        def sm_body(e, T_, k, dst):
            t2, t3 = v(vT2), v(vT3); T = lambda i: v(T_ + i)
            e(f"v_max3_f32 {t2}, {T(0)}, {T(1)}, {T(2)}\nv_max3_f32 {t3}, {T(3)}, {T(4)}, {T(5)}")
            for i in range(2): e(f"v_max3_f32 {t2}, {t2}, {T(6+4*i)}, {T(7+4*i)}\nv_max3_f32 {t3}, {t3}, {T(8+4*i)}, {T(9+4*i)}")
            e(f"v_max3_f32 {t2}, {t2}, {T(14)}, {T(15)}\nv_max_f32 {t2}, {t2}, {t3}\nv_mul_f32 {t2}, {t2}, {v(k+1)}")
            for i in range(16): e(f"v_fma_f32 {T(i)}, {T(i)}, {v(k+1)}, -{t2}")
            for i in range(16): e(f"v_exp_f32 {T(i)}, {T(i)}")
            e(f"v_add_f32 {t2}, {T(0)}, {T(1)}\nv_add_f32 {t3}, {T(2)}, {T(3)}")
            for i in range(4, 16, 2): e(f"v_add_f32 {t2}, {t2}, {T(i)}\nv_add_f32 {t3}, {t3}, {T(i+1)}")
            e(f"v_add_f32 {t2}, {t2}, {t3}\nv_rcp_f32 {t2}, {t2}")
            for i in range(16): e(f"v_mul_f32 {T(i)}, {T(i)}, {t2}")
            for i in range(8): e(f"v_cvt_pk_bf16_f32 {v(dst+i)}, {T(2*i)}, {T(2*i+1)}")
        def kepi(e, un):
            acc, k = ACC[un & 1], KC[un]
            e(f"{MF} {v(TB,16)}, {v(ONES,4)}, {v(SEL[1],4)}, 0")
            e.need("m%d" % un)
            sm_head(e, acc, PHI[0], TA, F4)
            for i in range(8): e(f"v_mul_f32 {v(acc+8+i)}, {v(acc+8+i)}, {v(k)}")
            for i in range(4): e(f"v_cvt_pk_bf16_f32 {v(F8b+i)}, {v(acc+8+2*i)}, {v(acc+9+2*i)}")
            e.mark("e%d" % un)
            b = Stream(); sm_body(b, TA, k, F8a)
            e.extend(b[:2]); e(f"{MF} {v(TB,16)}, {v(F8b,4)}, {v(SEL[0],4)}, {v(TB,16)}"); e.extend(b[2:-4])
            e.extend(b[-4:-2]); e2 = b[-2:]
            TC = acc2 = None
            e.extend(e2)
            for i in range(2): e(f"v_cvt_pk_bf16_f32 {v(F8b+i)}, {v(TB+2*i)}, {v(TB+2*i+1)}")
            e(f"{MF} {v(TA,16)}, {v(F8a,4)}, {v(SEL[0],4)}, 0")
            for i in range(2, 8): e(f"v_cvt_pk_bf16_f32 {v(F8b+i)}, {v(TB+2*i)}, {v(TB+2*i+1)}")
            e(f"{MF} {v(TA,16)}, {v(F8a+4,4)}, {v(SEL[1],4)}, {v(TA,16)}")
            for i in range(8): e(f"v_cvt_pk_bf16_f32 {v(F8a+i)}, {v(TA+2*i)}, {v(TA+2*i+1)}")
            e(f"{MF} {v(KV,16)}, {v(F8a,4)}, {v(F8b,4)}, {v(KV,16) if un else 0}\n{MF} {v(KV,16)}, {v(F8a+4,4)}, {v(F8b+4,4)}, {v(KV,16)}")
        def kvpub(e):
            e(f"s_lshl4_add_u32 {sB}, {sHD}, {sT}\ns_mul_i32 {sB}, {sB}, {KVREC}\ns_add_u32 {sB}, {sB}, {WS_KVP}")
            for c in range(2):
                for i in range(4): e(f"v_cvt_pk_bf16_f32 {v(F8a+4*c+i)}, {v(KV+8*c+2*i)}, {v(KV+8*c+2*i+1)}")
                e(f"buffer_store_dwordx4 {v(F8a+4*c,4)}, {v(vKA+c)}, {sWS}, {sB} offen sc1", tok="kvp")
        def qepi(e, acc, k, dst):
            for i in range(4): e(f"v_cvt_pk_bf16_f32 {v(F4+i)}, {v(acc+2*i)}, {v(acc+2*i+1)}")
            for i in range(4): e(f"v_cvt_pk_bf16_f32 {v(F8b+i)}, {v(acc+8+2*i)}, {v(acc+9+2*i)}")
            e(f"{MF} {v(TA,16)}, {v(PHI[0],4)}, {v(F4,4)}, 0\n{MF} {v(acc,16)}, {v(PHI[1],4)}, {v(F8b,4)}, 0")
            sm_body(e, TA, k, dst); sm_body(e, acc, k, dst + 8)
        def flag(st, addr, tok):
            st(addr)
            st.waittok(tok, lat=o["stlat"])
            st(f"s_mov_b64 exec, 1\nbuffer_store_dwordx2 {v(vTAG,2)}, {v(vZ)}, {sWS}, {sD} offen sc1\ns_mov_b64 exec, -1", glue=True)
        a_fl1 = f"s_lshl3_add_u32 {sD}, {sT}, {sFK}"
        def a_fl2(kind): return f"s_lshl2_add_u32 {sD}, {sJ}, {sWV}\ns_lshl_b32 {sC}, {sT}, 10\ns_lshl3_add_u32 {sD}, {sD}, {sC}\ns_add_u32 {sD}, {sD}, {WS_FL2+256*kind}"
        def fl_txt(sreg, off): return f"buffer_load_dwordx2 {v(vFL,2)}, {v(vFA)}, {sWS}, {sreg} offen offset:{off} sc1"
        def fl_bg(sreg, off, tok, after): B(fl_txt(sreg, off), tok, after, sp=16)
        def fl_check(st, sreg, off, tok):
            st.waittok(tok)
            spin(st, f"v_cmp_ne_u64 vcc, {v(vFL,2)}, {v(vTAG,2)}", fl_txt(sreg, off), tok)

        SLOT = {"a0": (sW8K, R[0]), "a1": (sW8K, R[0] + 4096), "b0": (sW8K, R[1]), "b1": (sW8K, R[1] + 4096),
                "c0": (sW8K, R[4]), "c1": (sW8K, R[4] + 4096), "d0": (sW16K, R[2])}
        WSLOT = ["b0", "b1", "c0", "c1", "a0", "a1"] * 2 + ["b0", "b1", "d0"]
        nE = 8
        def blk(b):
            if b < 4: return sBA, b
            if b < 8: return sBB, b - 4
            if b < 11: return sBS[b - 8], 0
            return None, b - 11
        def dma_w(b, after):
            sb, off = SLOT[WSLOT[b]]; r, i = blk(b)
            pre = f"s_add_u32 m0, {sb}, {off}\n"
            if r: pre += f"s_lshl_b32 {sM}, {r}, 15\ns_add_u32 {sM}, {sM}, {sCB}"
            else: pre += f"s_lshl3_add_u32 {sM}, {sW16K}, {sCB}"
            if i: pre += f"\ns_add_u32 {sM}, {sM}, {32768*i}"
            run4(pre, vWD, sW2 if r else sWo, ("w", b), after)
        def wread(st, b):
            sl = WSLOT[b]; off = SLOT[sl][1]
            base, d = (vWB, -R[4]) if sl[0] == "c" else (vXR, -R[2]) if sl[0] == "d" else (vWR, 0)
            st.waittok(("w", b), lat=o["wlat"])
            for stp in range(2):
                for cb in range(2):
                    for e in range(2):
                        st(f"ds_read_b64_tr_b16 {ag(128+16*(b%8)+8*stp+4*cb+2*e,2)}, {v(base+cb)} offset:{off+d+stp*2048+e*512}", tok=("wr", b))

        D = NX - 1
        M = []
        RG = {1: R[1], 2: 0, 3: R[1], 4: 0, 5: 0}
        def bump(st, d):
            for i in range(4): st(f"v_add_u32 {v(vXR+i)}, {d}, {v(vXR+i)}")
        def opening(g, un):
            if un == 3: g.waittok(("x", 3), ("s", 0), ("s", 1)); g("s_barrier"); g.mark("sl")
            elif un < 3: g.waittok(("x", un)); g("s_barrier"); g.mark("xl%d" % un)
            if un == 2: bump(g, "0x10000")
            if un == 5: g.need("e1s"); bump(g, sE1)
        NP = 8
        for un in range(1, 6):
            acc = ACC[un & 1]
            cm = f"{MF} {v(acc,16)}, {v(CA[un>3],4)}, {v(ST+4*un if un <= 3 else CBS,4)}, "
            g = Stream()
            if un == 1:
                opening(g, 1)
                for ks in range(D): xread(g, 1, RG[1], ks)
            if un >= 2: g.need("f%d" % (un - 2))
            self.stamp(g, "u%d" % un)
            if un != 4:
                g.need("c%d" % un); g(cm + "0"); M.append(g); g = Stream()
            last = o["kvpace"] if (att and un == 4) else 31
            for ks in range(32):
                for k in range(NP):
                    if ks == o["pace"] + (k + 1) * (last - o["pace"]) // NP: g.need(("ep", un - 1, k))
                if ks % 4 == 0:
                    if un == 4: g.need("sr%d" % (ks + 3)); g.waittok(("sr", ks + 3))
                    else: g.waittok(("xf", un, ks + 3))
                if ks == 28 and un == 1: g.mark("u1r")
                if ks == 28 and un == 5: g("s_barrier"); g.mark("r5")
                if ks + D == 32 and un < 5: opening(g, un + 1)
                g(f"{MF} {v(acc,16)}, {ag(4*ks,4)}, {ag(128+4*ks,4) if un == 4 else v(XF+4*(ks%NX),4)}, {v(acc,16) if (ks or un != 4) else 0}")
                if ks + D < 32:
                    if un != 4: xread(g, un, RG[un], ks + D)
                elif un in (1, 2, 4): xread(g, un + 1, RG[un + 1], ks + D - 32)
                if un >= 3: g.mark(("pd", un, ks))
                if un == 5 and ks == o["kvl"]: g.mark("kvl")
                if ks == 31 and un != 4: g.mark("m%d" % un)
                M.append(g); g = Stream()
            if un == 4:
                g.need("c4"); g(cm + v(acc, 16)); g.mark("cb4"); g.mark("m4"); M.append(g)
        tl.marks.add("m0")
        E = Stream()
        def paced(e, un):
            tot = sum(i.cost for i in e); c = 0; k = 0
            for i in e:
                E.append(i); c += i.cost
                while k < NP and c >= tot * (k + 1) / NP - 1e-9 and not i.glue: E.mark(("ep", un, k)); k += 1
            assert k == NP
        def selectk(st, i):
            for r in range(nk): st(f"v_cndmask_b32 {v(KCS+r)}, {v(KC[i]+r)}, {v(KC[i+1]+r)}, {sPAR}")
        for un in range(4):
            e = Stream()
            if att: kepi(e, un)
            else: e.need("m%d" % un); gelu(e, ACC[un & 1], KC[un], sAB[un], sBLKP, "actP")
            if att and un == 3: kvpub(e)
            paced(e, un); E.mark("f%d" % un)
        E.mark("kvp")
        E(f"s_cmp_lg_u32 s98, 0\ns_cselect_b32 {sAB[0]}, {sAB[1]}, {sAB[0]}\ns_cselect_b32 {sAB[2]}, {sAB[3]}, {sAB[2]}", glue=True)
        selectk(E, 0); E.need("m4")
        e = Stream()
        if att: qepi(e, ACC[0], KCS, PF)
        else: gelu(e, ACC[0], KCS, sAB[0], sBLKS, "actS")
        paced(e, 4)
        selectk(E, 2); E.mark("e4"); E.need("m5"); self.stamp(E, "u6")
        if att: qepi(E, ACC[1], KCS, PF + 16)
        else: gelu(E, ACC[1], KCS, sAB[2], sBLKS, "actS")
        self.stamp(E, "q")
        X = Stream()
        X.waittok("stats")
        t = f"v_xor_b32 {v(vT0)}, {v(vTAG)}, {v(ST+5)}\nv_xor_b32 {v(vT1)}, {v(vTAG)}, {v(ST+7)}\n"
        for r in (9, 13):
            t += f"v_xor_b32 {v(vFL)}, {v(vTAG)}, {v(ST+r)}\nv_xor_b32 {v(vFL+1)}, {v(vTAG)}, {v(ST+r+2)}\nv_or3_b32 {v(vT0)}, {v(vT0)}, {v(vFL)}, {v(vFL+1)}\n"
        spin(X, t + f"v_cmp_ne_u64 vcc, 0, {v(vT0,2)}", "\n".join(stats_ld(i, sA) for i in range(1, 4)), "stok")
        for i in range(1, 4): stat_consts(X, i); X.mark("c%d" % i)
        def select(st, i):
            for r in range(3): st(f"v_cndmask_b32 {v(CBS+r)}, {v(ST+4*i+r)}, {v(ST+4*i+4+r)}, {sPAR}")
        select(X, 0); X(f"v_mov_b32 {v(CBS+3)}, 0")
        X(f"s_mul_i32 {sE0}, {sTT}, {2*TBSTR}\ns_add_u32 {sE0}, {sE0}, {WS_ACT}")
        X.mark("e1s")
        X2 = Stream()
        X2.need("kvp"); flag(X2, a_fl1 if att else a_fl2(0), "kvp" if att else "actP")
        X.need("cs"); corr_a(X, 1); X.mark("c4")
        X.need("cb4"); select(X, 2); X.mark("c5")
        S = Stream()
        C = Stream()
        KR = vJ
        S(f"s_and_b32 {sE1}, s98, 0x8000")
        for i in range(4): S(f"v_add_u32 {v(KR+i)}, {sE1}, {v(vXR+i)}")
        S.need("xl1")
        for ks in range(32): S(f"ds_read_b128 {ag(128+4*ks,4)}, {v(KR+(ks&3))} offset:{(ks>>2)*4096}", tok="kr")
        S.need("u1r"); S.waittok("kr"); S("s_barrier"); S.mark("k")
        S.need("sl")
        S(f"v_add_u32 {v(vWB)}, {R[4]}, {v(vWR)}\nv_add_u32 {v(vWB+1)}, {R[4]}, {v(vWR+1)}")
        for half in range(2):
            for ks in range(16 * half, 16 * half + 16):
                S.need(("pd", 3, ks))
                for e in range(2): S(f"ds_read_b64_tr_b16 {ag(4*ks+2*e,2)}, {v(vSR)} offset:{(ks&15)*2048+e*512}", tok=("sr", ks))
                if ks % 4 == 3:
                    S.mark("sr%d" % ks); C.need("sr%d" % ks); C.waittok(("sr", ks))
                    if ks == 3: C.need("kvp" if att and o["prio"] else "m3")
                    for k2 in range(ks - 3, ks + 1): C(f"{MF16} {v(CS,4)}, {v(CSEL,4)}, {ag(4*k2,4)}, {v(CS,4) if k2 else 0}")
                if ks == 15: S(f"v_subrev_u32 {v(vSR)}, {R[4]}, {v(vSR)}")
                if ks == 19: S.waittok(("sr", 15)); S("s_barrier"); S.mark("sa")
        S.waittok(("sr", 31)); S("s_barrier"); S.mark("sb")
        C.mark("cs")
        if att and o["prio"]: S.need("kvp")
        for b in range(nE):
            S.need(("pd", 4, 4 * b + 3)); wread(S, b)
            if b: S.waittok(("wr", b - 1)); S.mark("wr%d" % (b - 1))
        S.waittok(("wr", nE - 1)); S.mark("wr%d" % (nE - 1))
        B(f"buffer_load_dwordx4 {v(XR,4)}, {v(vOUT)}, {sX}, {sPCOL} offen")
        B(f"s_add_u32 {sM}, {sPCOL}, 8192\nbuffer_load_dwordx4 {v(XR+4,4)}, {v(vOUT)}, {sX}, {sM} offen", "res")
        warm2(None); dma_s(0, None); dma_s(1, "k")
        def wafter(b): return "k" if b < 2 else "sa" if b < 4 else "sb" if b < 6 else "wr%d" % (b - 6) if b < 14 else "r5"
        nB = o.get("nB", 10 if att else 14)
        for b in range(nB): dma_w(b, wafter(b))
        late = list(range(nB, 15))

        AC2 = 0; AF = 64; NB = 4
        def act(bb, after):
            r, i = blk(bb)
            if bb == 10: pre = f"s_cmp_eq_u32 {r}, 43\ns_cselect_b32 {sM}, {sBS[0]}, {r}\ns_lshl_b32 {sM}, {sM}, 11\ns_add_u32 {sM}, {sM}, {sE0}"
            elif r: pre = f"s_lshl_b32 {sM}, {r}, 11\ns_add_u32 {sM}, {sM}, {sE0}"
            else: pre = f"s_add_u32 {sM}, {sW8K}, {sE0}"; i += 43
            if i: pre += f"\ns_add_u32 {sM}, {sM}, {2048*i}"
            pre += f"\ns_add_u32 {sN}, {sM}, {TBSTR}"
            f = AF + 16 * (bb % NB)
            for stp in range(2):
                for tb in range(2):
                    aft = after if (after and stp == 0) else ("mm", bb - NB, stp) if bb >= NB else None
                    B(f"{pre}\nbuffer_load_dwordx4 {ag(f+8*stp+4*tb,4)}, {v(vL16)}, {sWS}, {sN if tb else sM} offen offset:{1024*stp} sc1", ("act", bb, stp), aft)
                    pre = ""
        fO = o["fO"] if att else o["fOf"]; fS = o["fSa"] if att else o["fS"]
        def acts():
            for bb in range(15):
                if bb == fS: fl_bg(sFL, 256, "fS", "fP")
                if bb == fO: fl_bg(sFL, 512, "fO", "fa8")
                act(bb, {0: "fP", 8: "fS", 11: "fO"}.get(bb))
        assert fS >= 5 and fO >= 8
        s = Stream()
        if not att:
            fl_bg(sFL, 0, "fP", "r5")
            for b in late: dma_w(b, wafter(b))
            acts()
            X2.need("m5"); fl_check(X2, sFL, 0, "fP")
            tl.sched(M, [X, X2, S, C, E], nds=o.get("nds", 2))
            self.stamp(s, "o")
        else:
            Z = ST + 8; ZT = F8a; KA = XF
            fl_bg(sFK, 0, "fK", "kvl")
            X2.need("sb")
            X2(f"s_mul_i32 {sSO[1]}, {sHD}, {16*KVREC}\ns_add_u32 {sSO[1]}, {sSO[1]}, {WS_KVP}\ns_movk_i32 {sD}, {KVREC//8}")
            X2(f"v_and_b32 {v(vXD0)}, 0x30, v0\nv_mad_u32_u24 {v(vSR)}, {v(vFA)}, {sD}, {v(vXD0)}")
            X2.need("c5")
            fl_check(X2, sFK, 0, "fK")
            X2(f"v_and_b32 {v(vFA)}, 0x38, {v(vFA)}"); X2.mark("gat")
            gsp = o.get("gsp", 56)
            B(f"s_mov_b32 {sM}, {sSO[1]}\nbuffer_load_dwordx4 {v(Z,4)}, {v(vSR)}, {sWS}, {sM} offen offset:1024 sc1", "z", "gat", sp=gsp)
            for p in range(16):
                pre = f"s_add_u32 {sM}, {sM}, {3*KVREC}" if p and p % 3 == 0 else ""
                B(f"{pre}\nbuffer_load_dwordx4 {ag(4*p,4)}, {v(vL16)}, {sWS}, {sM} offen offset:{(p%3)*KVREC} sc1", ("g", p), ("pd", 5, p), sp=gsp)
            nL = o.get("nL", 0)
            for b in late[:nL]: dma_w(b, wafter(b))
            fl_bg(sFL, 0, "fP", None)
            for b in late[nL:]: dma_w(b, wafter(b))
            acts()
            X2.waittok("z")
            for i in range(4): X2(f"v_lshlrev_b32 {v(ZT+2*i)}, 16, {v(Z+i)}\nv_and_b32 {v(ZT+2*i+1)}, 0xffff0000, {v(Z+i)}")
            for m in ("quad_perm:[1,0,3,2]", "quad_perm:[2,3,0,1]", "row_half_mirror", "row_mirror"):
                for i in range(8): X2(f"v_add_f32_dpp {v(ZT+i)}, {v(ZT+i)}, {v(ZT+i)} {m} {DPPM}")
            for i in range(4): X2(f"v_cvt_pk_bf16_f32 {v(Z+i)}, {v(ZT+2*i)}, {v(ZT+2*i+1)}")
            X2(f"s_add_u32 {sD}, {sW16K}, {R[2]+4096}\ns_xor_b32 {sA}, {sD}, 0x4000")
            X2(f"v_add_u32 {v(vT0)}, {sD}, {v(vL16)}\nv_add_u32 {v(vT1)}, {sD}, {v(vXD0)}")
            F4x = CA[0]
            X2(f"v_add_u32 {v(F4x)}, {sD}, {v(vKA)}\nv_add_u32 {v(F4x+1)}, {sD}, {v(vKA+1)}\nv_add_u32 {v(F4x+2)}, {sA}, {v(vKA)}\nv_add_u32 {v(F4x+3)}, {sA}, {v(vKA+1)}")
            X2.need("r5"); X2(f"ds_write_b128 {v(vT1)}, {v(Z,4)} offset:1024")
            X2.need("m5"); fl_check(X2, sFL, 0, "fP")
            G = Stream(); G.need("m5")
            for p in range(16):
                if p % 2 == 0: G.waittok(("g", p + 1))
                G(f"{MF} {v(KA,16)}, {v(SEL[0],4)}, {ag(4*p,4)}, {v(KA,16) if p else 0}")
            for i in range(4): G(f"v_cvt_pk_bf16_f32 {v(KA+16+i)}, {v(KA+2*i)}, {v(KA+2*i+1)}")
            tl.sched(M, [X, X2, S, C, G, E], nds=o.get("nds", 2))
            s(f"ds_write_b128 {v(vT0)}, {v(KA+16,4)}")
            s("s_waitcnt lgkmcnt(0)\ns_barrier"); self.stamp(s, "kvx")
            KF = TA
            for i in range(4): s(f"ds_read_b128 {v(KF+4*i,4)}, {v(F4x+i)}")
            s(f"s_add_u32 {sA}, {sHD}, 86\ns_lshl_b32 {sA}, {sA}, 10\ns_xor_b32 {sD}, {sA}, 1024")
            accs = [ACC[0], ACC[1], XF, XF + 16]
            def omm(n):
                un, hs = n >> 1, n & 1; A = accs[n]; pf = PF + 16 * un + 8 * hs
                return [f"{MF} {v(A,16)}, {v(KF+8*hs,4)}, {v(pf,4)}, 0", f"{MF} {v(A,16)}, {v(KF+8*hs+4,4)}, {v(pf+4,4)}, {v(A,16)}"]
            Mo = []
            for n in range(4):
                for k, x in enumerate(omm(n)):
                    g = Stream(); g(x)
                    if k: g.mark("om%d" % n)
                    Mo.append(g)
            O = Stream()
            for n in range(4):
                un, hs = n >> 1, n & 1; A = accs[n]
                O.need("om%d" % n)
                O(f"v_add_f32 {v(A+8)}, {f2u(1e-6)}, {v(A+8)}\nv_rcp_f32 {v(A+8)}, {v(A+8)}")
                O(f"s_add_u32 {sB}, {sAB[2*un]}, {sD if hs else sA}")
                for i in range(8): O(f"v_mul_f32 {v(A+i)}, {v(A+i)}, {v(A+8)}")
                for i in range(4): O(f"v_cvt_pk_bf16_f32 {v(A+12+i)}, {v(A+2*i)}, {v(A+2*i+1)}")
                O(f"buffer_store_dwordx4 {v(A+12,4)}, {v(vL16)}, {sWS}, {sB} offen sc1", tok="actO")
            tl.straight(s); tl.sched(Mo, [O]); s = Stream(); s("s_barrier")
            self.stamp(s, "o")
        tl.straight(s)
        M = []
        for bb in range(15):
            f = AF + 16 * (bb % NB)
            for stp in range(2):
                for tb in range(2):
                    for cb in range(2):
                        g = Stream()
                        if (stp, tb, cb) == (0, 0, 0):
                            if bb == fS: g.need("pub"); fl_check(g, sFL, 256, "fS"); g.mark("fa8")
                            if bb == fO: g.need("pub"); fl_check(g, sFL, 512, "fO")
                            if bb >= nE: g.need("wq%d" % bb); g.waittok(("wr", bb), lat=0)
                        if (tb, cb) == (0, 0): g.waittok(("act", bb, stp), ahead=o["ah2"], lat=0)
                        A = AC2 + 32 * tb + 16 * cb
                        g(f"{MF} {ag(A,16)}, {ag(128+16*(bb%8)+8*stp+4*cb,4)}, {ag(f+8*stp+4*tb,4)}, {ag(A,16) if (bb or stp) else 0}")
                        if (tb, cb) == (1, 1):
                            g.mark(("mm", bb, stp))
                            if stp: self.stamp(g, "mm%d" % bb)
                        M.append(g)
        W = Stream()
        W(f"s_add_u32 {sE1}, {sW8K}, {R[2]}\nv_add_u32 {v(vXR)}, {sE1}, {v(vWR)}\nv_add_u32 {v(vXR+1)}, {sE1}, {v(vWR+1)}")
        for b in range(nE, 15):
            if b >= 8: W.need(("mm", b - 8, 1))
            wread(W, b); W.mark("wq%d" % b)
        X = Stream()
        flag(X, a_fl2(2 if att else 1), "actO" if att else "actS")
        X.mark("pub"); X.need(("mm", 3, 1))
        X(f"v_lshrrev_b32 {v(vT0)}, 4, v0\nv_and_b32 {v(vT0)}, 2, {v(vT0)}\nv_and_b32 {v(vT1)}, 7, v0\nv_xor_b32 {v(vT0)}, {v(vT0)}, {v(vT1)}")
        X(f"v_add_lshl_u32 {v(vT0)}, {v(vN16)}, {v(vT0)}, 4\ns_add_u32 {sA}, {sW16K}, {R[2]}\nv_add_u32 {v(RW)}, {sA}, {v(vT0)}")
        for k in range(1, 4): X(f"v_xor_b32 {v(RW+k)}, {64*(k>>1)+16*(k&1)}, {v(RW)}")
        X(f"v_lshrrev_b32 {v(vT0)}, 3, v0\nv_lshlrev_b32 {v(vT1)}, 1, {v(vT1)}\nv_xor_b32 {v(vT1)}, {v(vT1)}, {v(vT0)}\nv_lshlrev_b32 {v(vT1)}, 4, {v(vT1)}")
        X(f"s_lshl_b32 {sA}, {sWV}, 12\ns_add_u32 {sA}, {sA}, {R[2]}\nv_lshl_add_u32 {v(vT0)}, {v(vT0)}, 8, {v(vT1)}\nv_add_u32 {v(RR)}, {sA}, {v(vT0)}\nv_xor_b32 {v(RR+1)}, 16, {v(RR)}")
        Y = ACC[0]; Pp = ACC[1]
        for it in range(2):
            for i in range(4):
                X(f"v_lshlrev_b32 {v(Y+8*it+2*i)}, 16, {v(XR+4*it+i)}\nv_and_b32 {v(Y+8*it+2*i+1)}, 0xffff0000, {v(XR+4*it+i)}")
        for i in range(4):
            X(f"v_lshlrev_b32 {v(vT0)}, 16, {v(B2+i)}\nv_and_b32 {v(vT3)}, 0xffff0000, {v(B2+i)}")
            for it in range(2):
                X(f"v_add_f32 {v(Y+8*it+2*i)}, {v(Y+8*it+2*i)}, {v(vT0)}\nv_add_f32 {v(Y+8*it+2*i+1)}, {v(Y+8*it+2*i+1)}, {v(vT3)}")
        X(f"s_add_u32 {sB}, {sPCOL}, 8192")
        tl.sched(M, [X, W])
        s = Stream()
        for tb in range(2):
            for cb in range(2):
                for k in range(4):
                    s(f"ds_write_b128 {v(RW+k)}, {ag(AC2+32*tb+16*cb+4*k,4)} offset:{tb*8192+cb*128}")
        s("s_waitcnt lgkmcnt(0)\ns_barrier"); self.stamp(s, "red")
        for it in range(2):
            for pw in range(4):
                for k in range(2): s(f"ds_read_b128 {v(Pp+32*it+8*pw+4*k,4)}, {v(RR+k)} offset:{pw*16384+it*2048}")
        for it in range(2):
            for pw in range(4):
                for i in range(0, 8, 2): s(f"v_pk_add_f32 {v(Y+8*it+i,2)}, {v(Y+8*it+i,2)}, {v(Pp+32*it+8*pw+i,2)}")
            for i in range(4): s(f"v_cvt_pk_bf16_f32 {v(XR+4*it+i)}, {v(Y+8*it+2*i)}, {v(Y+8*it+2*i+1)}")
            s(f"buffer_store_dwordx4 {v(XR+4*it,4)}, {v(vOUT)}, {sOut}, {sB if it else sPCOL} offen{' sc1' if o['outsc1'] else ''}")
        if att:
            noe = self.lab("noe")
            s(f"s_or_b32 {sA}, s2, {sWV}\ns_cmp_lg_u32 {sA}, 0\ns_cbranch_scc1 {noe}")
            s(f"s_mov_b64 exec, 1\nbuffer_store_dword {v(vTAG)}, {v(vZ)}, {sWS}, 0 offen sc1\ns_mov_b64 exec, -1", cond=True)
            s(noe + ":")
        if o["stamps"]:
            s("s_waitcnt vmcnt(0)\ns_memrealtime s[64:65]\ns_waitcnt lgkmcnt(0)")
            s(f"s_lshl2_add_u32 {sA}, s2, {sWV}\ns_lshl_b32 {sA}, {sA}, 6\ns_add_u32 {sA}, {sA}, {WS_STAMP}")
            for i, r in enumerate(["s100"] + ["s%d" % k for k in STAMPR] + ["s64"]):
                s(f"v_mov_b32 {v(vT1)}, {r}\nbuffer_store_dword {v(vT1)}, {v(vZ)}, {sWS}, {sA} offen offset:{4*i}")
        tl.straight(s)
        assert tl.bi == len(tl.bg)
        tl.log.append("end t=%d forced=%d" % (tl.t, tl.forced))
        if o["log"]: sys.stderr.write("\n".join(role + " " + x for x in tl.log) + "\n")
        return tl.out

    def build(self):
        p = Stream(); self.prologue(p)
        p(f"s_cmp_ge_u32 {sU}, 2\ns_cbranch_scc1 L_ffn")
        text = finalize(p)
        outs = {}
        for role in ("att", "ffn"):
            st = {}
            outs[role] = finalize(self.role(role), st)
            sys.stderr.write("%s: %s\n" % (role, st))
        text += outs["att"] + ["s_endpgm", "L_ffn:"] + outs["ffn"] + ["L_end:", "s_endpgm"]
        body = "\n".join(t if t.endswith(":") else "    " + t for t in text) + "\n"
        hdr = ["Fused LayerNorm + hedgehog linear attention + GELU FFN + residual, one persistent launch (generated by my own script).",
               "@launch grid=(256,1,1) block=(256,1,1) lds=163840"]
        return module(hdr, [(NAME + "_kernel", body, 512, 256)])

if __name__ == "__main__":
    opt = {}
    for x in sys.argv[2:]:
        k, _, val = x.partition("=")
        opt[k] = (int(val) if val.lstrip("-").isdigit() else val) if val else True
    open(sys.argv[1], "w").write(Gen(**opt).build())
```

```python
import sys, struct
from asmlib import module
from backend import *

NAME = "parallel_sum__linear_kernel_hedgehog__dense_activation_gelu__prompt"
def f2u(x): return "0x%x" % struct.unpack("<I", struct.pack("<f", x))[0]
LOG2E = 1.4426950408889634
K0 = -2.0 * LOG2E * 0.7978845608028654

WS_G = 0; WS_FL1 = 0x1000; WS_FL2 = 0x3000; WS_STATS = 0x8000; WS_KVP = 0x40000; WS_ACT = 0x100000
KVREC = 1152; TBSTR = 118 * 1024; WS_STAMP = 0x1000000
TAGC = 0x9E3779B9
R = [0, 32768, 65536, 98304, 131072]
SCR = R[4] + 16384
FFN_BLK0 = [0, 6, 11, 16, 22, 27, 32, 38]
FFN_NBLK = [6, 5, 5, 6, 5, 5, 6, 5]
SBL = [[4, 5, 10], [15, 20, 21], [26, 31, 43], [36, 37, 42]]
def pack(l): return "0x%x" % sum(b << (8 * i) for i, b in enumerate(l))

sX, sW, sWS, sW2, sWo, sOut, sAux, sB2 = ("s[%d:%d]" % (i, i + 3) for i in (8, 12, 16, 20, 24, 28, 32, 36))
sM, sN = "s0", "s1"
sWV, sT, sJ, sU, sI = "s3", "s4", "s5", "s6", "s7"
sROT, sQ4, sTT, sCB, sFL, sSTB = "s64", "s65", "s66", "s67", "s68", "s69"
sA, sB, sC, sD = "s70", "s71", "s72", "s73"
sXB = ["s74", "s75", "s76", "s77"]
sAB = ["s78", "s79", "s80", "s81"]
sXK = ["s82", "s83"]; sSO = ["s84", "s85"]
sBA, sBB = "s86", "s87"; sBS = ["s88", "s89", "s90"]
sPCOL, sW8K, sW16K = "s91", "s92", "s93"
sBLKP, sBLKS = "s94", "s95"; sHD, sFK = "s94", "s95"
sE0, sE1 = "s96", "s97"
sPAR = "s[98:99]"
STAMPR = [60, 40, 42, 44, 50, 52, 46, 54, 62, 56, 58, 48]

class VA:
    def __init__(self, start=1): self.n = start
    def __call__(self, k=1, al=1):
        self.n = (self.n + al - 1) // al * al
        r = self.n; self.n += k
        assert self.n <= 256, "out of VGPRs"
        return r
def v(i, k=1): return "v%d" % i if k == 1 else "v[%d:%d]" % (i, i + k - 1)
def ag(i, k=1): return "a%d" % i if k == 1 else "a[%d:%d]" % (i, i + k - 1)
MF = "v_mfma_f32_32x32x16_bf16"; MF16 = "v_mfma_f32_16x16x32_bf16"
DPPM = "row_mask:0xf bank_mask:0xf"

def srd(s, d, p, n):
    d0 = int(d[2:].split(":")[0])
    s(f"s_mov_b32 s{d0}, s{p}\ns_mov_b32 s{d0+1}, s{p+1}\ns_mov_b32 s{d0+2}, {n}\ns_mov_b32 s{d0+3}, 0x20000")

class Gen:
    def __init__(self, **opt):
        self.o = dict(stamps=False, warm=True, outsc1=True, sp=64, sp1=48, ahead=10, log=False, umode=0, vlat=650, stlat=800,
                      ah0=10, ah0b=6, lag=2, s0=4, slp=8, slat=750, wlat=700, wlat0=1100, nE=4, pace=3, kvpace=12, kvhold=99, hold=0, kvl=12, prio=1, fSa=5, fS=6, fO=8, fOf=9, ah2=10, fo=2)
        self.o.update(opt); self.uid = 0
    def lab(self, p):
        self.uid += 1; return "L_%s_%d" % (p, self.uid)
    def stamp(self, s, name):
        if not self.o["stamps"]: return
        names = str(self.o.get("st", "x0,b0,p1,u1,u2,u3,u4,u5,q,o,mm14,red")).split(",")
        if name in names:
            r = STAMPR[names.index(name)]; s(f"s_memrealtime s[{r}:{r+1}]")

    def prologue(self, s):
        s("s_cmp_ge_u32 s2, 256\ns_cbranch_scc1 L_end")
        s("s_load_dwordx16 s[40:55], s[0:1], 0\ns_load_dwordx8 s[56:63], s[0:1], 64")
        if self.o["stamps"]: s("s_memrealtime s[100:101]")
        s(f"v_lshrrev_b32 v1, 6, v0\nv_and_b32 v0, 63, v0\nv_readfirstlane_b32 {sWV}, v1")
        s(f"s_and_b32 {sA}, s2, 7\ns_lshr_b32 {sI}, s2, 3")
        if self.o["umode"] == 0: s(f"s_lshr_b32 {sROT}, {sI}, 2\ns_and_b32 {sU}, {sI}, 3")
        else: s(f"s_and_b32 {sROT}, {sI}, 7\ns_lshr_b32 {sU}, {sI}, 3")
        s(f"s_and_b32 {sT}, {sA}, 1\ns_lshl3_add_u32 {sT}, {sT}, {sROT}\ns_lshr_b32 {sQ4}, {sA}, 1")
        s(f"s_and_b32 {sJ}, {sU}, 1\ns_lshl1_add_u32 {sJ}, {sQ4}, {sJ}")
        s(f"s_lshr_b32 {sC}, {sI}, 3\ns_lshl2_add_u32 {sTT}, {sA}, {sC}")
        s(f"s_and_b32 {sCB}, {sI}, 7\ns_lshl_b32 {sCB}, {sCB}, 7")
        s(f"s_and_b32 {sA}, {sWV}, 1\ns_cmp_eq_u32 {sA}, 1\ns_cselect_b64 {sPAR}, -1, 0")
        s("v_lshlrev_b32 v1, 4, v0\nv_and_b32 v2, 0x70, v1\nv_and_b32 v3, 0x30, v0\nv_xor_b32 v2, v2, v3\nv_lshrrev_b32 v3, 3, v0\nv_lshl_add_u32 v3, v3, 10, v2")
        s(f"s_lshl_b32 {sW8K}, {sWV}, 13\ns_lshl_b32 {sW16K}, {sWV}, 14\ns_lshl_b32 {sE0}, {sWV}, 10\ns_lshl_b32 {sE1}, {sWV}, 12")
        for i in range(4):
            s(f"s_add_u32 {sA}, {sQ4}, {i}\ns_and_b32 {sA}, {sA}, 3\ns_lshl2_add_u32 {sA}, {sT}, {sA}")
            s(f"s_lshl_b32 {sXB[i]}, {sA}, 15\ns_mul_i32 {sAB[i]}, {sA}, {TBSTR}\ns_add_u32 {sAB[i]}, {sAB[i]}, {WS_ACT}")
        s(f"s_lshl2_add_u32 {sD}, {sU}, {sWV}\ns_lshl_b32 {sA}, {sD}, 11\ns_add_u32 {sSO[0]}, {sXB[0]}, {sA}")
        s(f"s_lshl_b32 {sSTB}, {sT}, 11\ns_add_u32 {sSTB}, {sSTB}, {WS_STATS}\ns_lshl4_add_u32 {sD}, {sQ4}, {sD}\ns_lshl_b32 {sD}, {sD}, 5\ns_add_u32 {sSO[1]}, {sD}, {sSTB}")

    def role(self, role):
        att = role == "att"; o = self.o
        tl = TL(o["sp"], o["vlat"]); B = tl.B
        def watch(name):
            x = Stream(); self.stamp(x, name); return x[0].text if x else None
        tl.watch = watch
        s = Stream(); a = VA(1)
        stride = 3072 if att else 2752
        vL16 = a(); vXD0 = a(); vXD = a(4); vOUT = a(); vTAG = a(2, 2); vN16 = a(); vXR = a(4); vSR = a()
        vT0 = a(1, 2); vT1 = a(); vT2 = a(); vT3 = a()
        vSD = a(4); vWD = a(4); vPR = vWD + 1; vWR = a(2); vFL = a(2, 2); vFA = a(); vZ = a()
        RW = vXD; RR = vSD; vWB = vSD + 2
        assert vXD == 3
        if att: vKA = a(2)
        XR = a(8, 4); B2 = a(4, 4)
        ACC = [a(16, 4), a(16, 4)]; NX = 8; XF = a(4 * NX, 4)
        CA = [a(4, 4), a(4, 4)]; ST = a(16, 4); CBS = a(4, 4); CS = a(4, 4); CSEL = a(4, 4); vPD = CBS
        nk = 2 if att else 3
        KC = [a(nk) for _ in range(4)]; KCS = a(nk)
        if att:
            ONES = a(4, 4); SEL = [a(4, 4), a(4, 4)]; F8a = a(8, 4); F8b = a(8, 4)
            PHI = [a(4, 4), a(4, 4)]; KV = a(16, 4); TB = a(16, 4); PF = KV; TA = a(16, 4); F4 = a(4, 4)
        else:
            vB1 = a(2); ONES = a(); G4 = a(4); HO = a(8, 4)
        vJ = a(7)
        sys.stderr.write("%s VGPRs: %d\n" % (role, a.n))
        sp1 = o["sp1"]
        tmp = ACC[0]
        for r in range(2): B(f"buffer_load_dwordx4 {v(tmp+4*r,4)}, {v(vL16)}, {sX}, {sSO[0]} offen offset:{1024*r}", "rows", "go", sp=8)
        s(f"v_mov_b32 {v(vZ)}, 0\nv_min_u32 {v(vXD0)}, 1, v0\nv_mul_u32_u24 {v(vXD0)}, {sSO[1]}, {v(vXD0)}\ns_mov_b32 {sFL}, {sSO[1]}")
        if att:
            s(f"s_lshl_b32 {sD}, {sJ}, 7\ns_add_u32 {sPCOL}, {sD}, 1024\ns_lshl2_add_u32 {sHD}, {sJ}, {sWV}")
        else:
            s(f"s_mov_b32 {sA}, {pack(FFN_BLK0[:4])}\ns_mov_b32 {sB}, {pack(FFN_BLK0[4:])}\ns_lshl_b32 {sC}, {sJ}, 3\ns_lshr_b64 s[70:71], s[70:71], {sC}\ns_and_b32 {sA}, {sA}, 0xff")
            s(f"s_lshl_b32 {sPCOL}, {sA}, 6\ns_add_u32 {sD}, {sPCOL}, 256")
            s(f"s_add_u32 {sBLKP}, {sA}, {sWV}\ns_lshr_b32 {sB}, {sWV}, 1\ns_add_u32 {sBLKS}, {sA}, {sB}\ns_add_u32 {sBLKS}, {sBLKS}, 4")
        s(f"s_mul_i32 {sA}, {sWV}, {16*stride}\ns_add_u32 {sPCOL}, {sPCOL}, {sA}\ns_movk_i32 {sB}, {stride}")
        s(f"v_lshrrev_b32 {v(vT0)}, 4, v0\nv_and_b32 {v(vT1)}, 15, v0\nv_lshlrev_b32 {v(vT2)}, {1 if att else 2}, {v(vT0)}\nv_xor_b32 {v(vT1)}, {v(vT1)}, {v(vT2)}")
        s(f"v_mul_u32_u24 {v(vT0)}, {sB}, {v(vT0)}")
        if att: s(f"v_lshrrev_b32 {v(vT2)}, 3, {v(vT1)}\nv_lshl_add_u32 {v(vT0)}, {v(vT2)}, 10, {v(vT0)}\nv_and_b32 {v(vT1)}, 7, {v(vT1)}")
        s(f"v_lshl_add_u32 {v(vPD)}, {v(vT1)}, 4, {v(vT0)}")
        for q in range(1, 4): s(f"v_add_u32 {v(vPD+q)}, {q*(4*stride-1024)}, {v(vPD)}")
        s(f"s_mov_b32 s10, {2048*1024}\ns_mov_b32 s11, 0x20000\ns_mov_b32 s14, {512*stride}\ns_mov_b32 s15, 0x20000\ns_mov_b32 s18, 0x10000000\ns_mov_b32 s19, 0x20000")
        s("s_waitcnt lgkmcnt(0)"); self.stamp(s, "go")
        s("s_mov_b64 s[8:9], s[40:41]"); s.mark("go")
        s(f"s_mov_b64 s[12:13], s[{42 if att else 50}:{43 if att else 51}]\ns_mov_b64 s[16:17], s[62:63]")
        s.mark("pd")
        if att: srd(s, sAux, 44, 32 * 512)
        else: srd(s, sAux, 52, 2752)
        s.mark("aux")
        def run4(pre, vb, srdn, tok, after, sp=None):
            for q in range(4):
                B(f"{pre if q == 0 else ''}\nbuffer_load_dwordx4 {v(vb+q)}, {srdn}, {sM} offen offset:{1024*q} lds", tok, after, sp)
        def dma_p(ci, after=None):
            run4(f"s_add_u32 {sM}, {sROT}, {ci}\ns_and_b32 {sM}, {sM}, 7\ns_mul_i32 {sM}, {sM}, {64*stride}\ns_add_u32 m0, {sE1}, {R[1]+ci*16384}\ns_add_u32 {sM}, {sM}, {sPCOL}", vPD, sW, ("p", ci), after, sp1 if ci else 16)
        def dma_x(i, after, sp=None):
            for k in range(2): run4(f"s_add_u32 m0, {sW8K}, {R[i]+k*4096}\ns_add_u32 {sM}, {sXB[i]}, {sXK[k]}", vXD, sX, ("x", i), after, sp)
        B(f"buffer_load_dword {v(vTAG)}, {v(vXD0)}, {sWS}, 0 offen sc1", "tag", "pd", sp=16)
        dma_p(0, "pd")
        if att:
            B(f"s_lshr_b32 {sM}, {sHD}, 1\ns_add_u32 m0, {sE0}, {SCR}\ns_lshl_b32 {sM}, {sM}, 10\nbuffer_load_dwordx4 {v(vL16)}, {sAux}, {sM} offen lds", "phi", "aux", sp=16)
        srd(s, sW2, 54, 1376 * 1024); srd(s, sWo, 46, 512 * 1024); srd(s, sB2, 56, 1024)
        s(f"v_and_b32 {v(vOUT)}, 0x70, {v(vL16)}")
        nsmall = 1
        if not att:
            t0, t2 = vB1, vB1 + 1
            s(f"v_and_b32 {v(t0)}, 0x13, v0\nv_and_b32 {v(t2)}, 4, v0\nv_lshl_add_u32 {v(t0)}, {v(t2)}, 1, {v(t0)}\nv_bfe_u32 {v(t2)}, v0, 3, 1\nv_lshl_add_u32 {v(t0)}, {v(t2)}, 2, {v(t0)}")
            s(f"v_and_b32 {v(t2)}, 32, v0\nv_lshl_add_u32 {v(t0)}, {v(t2)}, 8, {v(t0)}\nv_lshlrev_b32 {v(G4)}, 1, {v(t0)}")
        if o["warm"]:
            s(f"s_getpc_b64 s[48:49]\nL_pc_{role}:\ns_sub_u32 s48, s48, L_pc_{role}-{NAME}_kernel\ns_subb_u32 s49, s49, 0", glue=True)
            s(f"s_lshl2_add_u32 {sC}, {sI}, {sWV}\ns_lshl_b32 {sC}, {sC}, 2")
            w0, w1, w2 = XR, vJ + 4, vJ + 5
            s(f"v_min_u32 {v(w0)}, 3, v0\nv_lshlrev_b32 {v(w2)}, 7, {v(w0)}\nv_add_lshl_u32 {v(w0)}, {v(w0)}, {sC}, 7\nv_min_u32 {v(w0)}, L_end-{NAME}_kernel, {v(w0)}")
            s(f"v_min_u32 {v(w1)}, 10, v0\nv_lshlrev_b32 {v(w1)}, 7, {v(w1)}")
        for q in range(3, -1, -1):
            s(f"v_xor_b32 {v(vXD+q)}, {64*(q&1)}, v3")
            if q: s(f"v_add_u32 {v(vXD+q)}, {7168*q}, {v(vXD+q)}")
        for k in range(2):
            s(f"s_lshl1_add_u32 {sA}, {sWV}, {sROT}\ns_add_u32 {sA}, {sA}, {k}\ns_and_b32 {sA}, {sA}, 7\ns_lshl_b32 {sXK[k]}, {sA}, 7")
        s.mark("sm")
        B(f"buffer_load_dwordx4 {v(B2,4)}, {v(vOUT)}, {sB2}, {sCB} offen", "b2", "sm", sp=16)
        if not att:
            B(f"s_lshl_b32 {sM}, {sBLKP}, 6\nbuffer_load_ushort {v(vB1)}, {v(G4)}, {sAux}, {sM} offen", sp=16)
            B(f"s_lshl_b32 {sM}, {sBLKS}, 6\nbuffer_load_ushort {v(vB1+1)}, {v(G4)}, {sAux}, {sM} offen", "b2", sp=16); nsmall += 2
        if o["warm"]:
            B(f"global_load_dword {v(XR+4)}, {v(w0)}, s[48:49]", sp=16)
        def warm2(after):
            if not o["warm"]: return
            B(f"s_lshl2_add_u32 {sN}, s2, {sWV}\ns_mul_i32 {sM}, {sN}, {11*128}\nbuffer_load_dword {v(w1)}, {v(w1)}, {sW2}, {sM} offen", None, after, sp=16)
            B(f"s_lshl_b32 {sM}, {sN}, 9\nbuffer_load_dword {v(w2)}, {v(w2)}, {sWo}, {sM} offen", sp=32)
            B(f"s_lshl_b32 {sM}, s2, 7\ns_add_u32 {sM}, {sM}, {WS_FL1}\nbuffer_load_dword {v(w2+1)}, {v(vZ)}, {sWS}, {sM} offen", sp=16)
        dma_x(0, None, sp1)
        for ci in range(1, 8): dma_p(ci, "b0" if ci == 7 else None)
        srd(s, sOut, 58, 2048 * 1024)
        s(f"s_movk_i32 {sB}, {stride}")
        for k in range(2):
            s(f"s_add_u32 {sA}, {sWV}, {sROT}\ns_add_u32 {sA}, {sA}, {4*k}\ns_and_b32 {sA}, {sA}, 7\ns_mul_i32 {sA}, {sA}, {64*stride}\ns_add_u32 {sSO[k]}, {sA}, {sD}")
        def dma_s(half, after):
            for k in range(2): run4(f"s_add_u32 m0, {sW8K}, {R[4-4*half]+k*4096}\ns_add_u32 {sM}, {sSO[half]}, {32*stride*k}", vSD, sW, ("s", half), after)
        s(f"v_lshrrev_b32 {v(vT0)}, 3, v0\nv_lshlrev_b32 {v(vT1)}, 2, v0\nv_and_b32 {v(vT1)}, 64, {v(vT1)}\nv_xor_b32 {v(vT1)}, {v(vT1)}, {v(vOUT)}")
        s(f"v_mad_u32_u24 {v(vSD)}, {v(vT0)}, {sB}, {v(vT1)}")
        for q in range(1, 4): s(f"v_add_u32 {v(vSD+q)}, {q*(8*stride-1024)}, {v(vSD)}")
        s(f"v_lshl_add_u32 {v(vWD+3)}, {v(vT0)}, 10, {v(vT1)}")
        s(f"v_and_b32 {v(vT0)}, 31, v0\nv_lshlrev_b32 {v(vN16)}, 4, {v(vT0)}\nv_lshlrev_b32 {v(vT1)}, 7, {v(vT0)}")
        s(f"v_bfe_u32 {v(vT0)}, v0, 1, 3\nv_lshrrev_b32 {v(vT2)}, 5, v0\nv_xor_b32 {v(vT0)}, {v(vT0)}, {v(vT2)}\nv_lshl_add_u32 {v(vXR)}, {v(vT0)}, 4, {v(vT1)}")
        for cq in range(1, 4): s(f"v_xor_b32 {v(vXR+cq)}, {32*cq}, {v(vXR)}")
        if att:
            s(f"v_lshl_add_u32 {v(vT3)}, {v(vT2)}, 8, {v(vN16)}\nv_lshlrev_b32 {v(vT2)}, 4, {v(vT2)}\nv_add_u32 {v(vT2)}, 0x400, {v(vT2)}")
            s(f"v_cmp_gt_u32 vcc, 0x100, {v(vN16)}\nv_add_u32 {v(vT0)}, 32, {v(vT2)}\nv_add_u32 {v(vT1)}, 0x200, {v(vT3)}")
            s(f"v_cndmask_b32 {v(vKA)}, {v(vT2)}, {v(vT3)}, vcc\nv_cndmask_b32 {v(vKA+1)}, {v(vT0)}, {v(vT1)}, vcc")
        s(f"v_bfe_u32 {v(vT0)}, v0, 2, 2\nv_bfe_u32 {v(vT1)}, v0, 4, 1")
        s(f"v_and_b32 {v(vT2)}, 16, {v(vL16)}\nv_and_b32 {v(vT3)}, 2, v0\nv_lshl_add_u32 {v(vT2)}, {v(vT3)}, 2, {v(vT2)}")
        s(f"v_lshrrev_b32 {v(vT3)}, 5, v0\nv_lshl_add_u32 {v(vT3)}, {v(vT3)}, 3, {v(vT0)}")
        x0, x1 = XF, XF + 1
        if att: s(f"v_lshl_add_u32 {v(x0)}, {v(vT1)}, 2, {sWV}\nv_xor_b32 {v(x0)}, {v(x0)}, {v(vT0)}\nv_lshl_add_u32 {v(x0)}, {v(x0)}, 5, {v(vT2)}")
        else: s(f"v_xor_b32 {v(x0)}, {sWV}, {v(vT0)}\nv_lshl_add_u32 {v(x0)}, {v(x0)}, 6, {v(vT2)}\nv_lshl_add_u32 {v(x0)}, {v(vT1)}, 5, {v(x0)}")
        s(f"v_lshl_add_u32 {v(x0)}, {v(vT3)}, 8, {v(x0)}\nv_add_u32 {v(vPR)}, {R[1]}, {v(x0)}\nv_add_u32 {v(vPR+1)}, {R[3]}, {v(x0)}")
        s(f"v_lshrrev_b32 {v(x0)}, 1, {v(vT0)}\nv_lshl_add_u32 {v(x0)}, {v(x0)}, 6, {v(vT2)}\nv_lshl_add_u32 {v(x0)}, {v(vT1)}, 5, {v(x0)}\nv_lshl_add_u32 {v(x0)}, {v(vT3)}, 7, {v(x0)}")
        s(f"v_add_u32 {v(vWR)}, {sW8K}, {v(x0)}\nv_xor_b32 {v(vWR+1)}, 64, {v(vWR)}")
        if att: s(f"s_lshl_b32 {sA}, {sWV}, 5")
        else: s(f"s_and_b32 {sA}, {sWV}, 2\ns_lshl_b32 {sA}, {sA}, 5")
        s(f"v_xor_b32 {v(x0)}, {sA}, {v(x0)}\nv_add_u32 {v(vSR)}, {R[4]}, {v(x0)}")
        for i in range(4 if att else 1): s(f"v_mov_b32 {v(ONES+i)}, 0x3f803f80")
        s(f"v_cmp_eq_u32 vcc, {v(vT0)}, {v(vT1)}")
        if att:
            s(f"v_bfe_u32 {v(x0)}, v0, 1, 1\nv_lshl_add_u32 {v(x0)}, {v(vT1)}, 1, {v(x0)}\nv_lshlrev_b32 {v(x0)}, 3, {v(x0)}\nv_lshl_add_u32 {v(x0)}, {v(vT3)}, 5, {v(x0)}")
        s(f"v_and_b32 {v(vFA)}, {15 if att else 7}, v0\nv_lshlrev_b32 {v(vFA)}, 3, {v(vFA)}")
        for i in range(4): s(f"v_cndmask_b32 {v(CSEL+i)}, 0, {v(ONES)}, vcc")
        if att:
            s(f"s_and_b32 {sC}, s98, 0x200\ns_add_u32 {sA}, {sE0}, {sC}\ns_add_u32 {sA}, {sA}, {SCR}")
            s(f"v_add_u32 {v(x0)}, {sA}, {v(x0)}\nv_xor_b32 {v(x1)}, 0x200, {v(x0)}")
            s(f"v_bfe_u32 {v(vT0)}, v0, 2, 1\nv_lshrrev_b32 {v(vT2)}, 5, v0\nv_cmp_eq_u32 vcc, {v(vT0)}, {v(vT2)}")
            s(f"v_and_b32 {v(vT0)}, 16, {v(vL16)}\nv_mov_b32 {v(vT2)}, 0x3f80\nv_lshlrev_b32 {v(vT2)}, {v(vT0)}, {v(vT2)}\nv_cndmask_b32 {v(vT2)}, 0, {v(vT2)}, vcc")
            s(f"v_bfe_u32 {v(vT0)}, v0, 1, 1\nv_bfe_u32 {v(vT3)}, v0, 3, 2\nv_lshl_add_u32 {v(vT0)}, {v(vT3)}, 1, {v(vT0)}")
            for i in range(0, 8, 2):
                s(f"v_cmp_eq_u32 vcc, {i}, {v(vT0)}\nv_cmp_eq_u32 s[70:71], {i+1}, {v(vT0)}")
                s(f"s_nop 0\nv_cndmask_b32 {v(SEL[i>>2]+(i&3))}, 0, {v(vT2)}, vcc\nv_cndmask_b32 {v(SEL[i>>2]+(i&3)+1)}, 0, {v(vT2)}, s[70:71]")
            s(f"s_lshl_b32 {sFK}, {sHD}, 7\ns_add_u32 {sFK}, {sFK}, {WS_FL1}")
        s(f"s_lshl_b32 {sC}, {sWV}, 3")
        for d, tb in ((sBA, FFN_BLK0[0::2]), (sBB, FFN_BLK0[1::2]), (sBS[0], [x[0] for x in SBL]), (sBS[1], [x[1] for x in SBL]), (sBS[2], [x[2] for x in SBL])):
            s(f"s_lshr_b32 {d}, {pack(tb)}, {sC}\ns_and_b32 {d}, {d}, 0xff")
        s.waittok("rows", ahead=o["ah0"]); self.stamp(s, "rows")
        q = ST
        for i in range(4): s(f"v_mov_b32 {v(q+i)}, 0")
        for i in range(4):
            for r in range(2):
                s(f"v_dot2c_f32_bf16 {v(q+r)}, {v(tmp+4*r+i)}, {v(ONES)}\nv_dot2c_f32_bf16 {v(q+2+r)}, {v(tmp+4*r+i)}, {v(tmp+4*r+i)}")
        s.waittok("tag")
        s(f"v_readfirstlane_b32 {sA}, {v(vTAG)}\nv_lshrrev_b32 {v(vT0)}, 1, v0")
        s(f"v_permlane32_swap_b32 {v(q)}, {v(q+1)}\nv_permlane32_swap_b32 {v(q+2)}, {v(q+3)}")
        s(f"v_add_f32 {v(q)}, {v(q)}, {v(q+1)}\nv_add_f32 {v(q+2)}, {v(q+2)}, {v(q+3)}\ns_add_u32 {sA}, {sA}, 0x{TAGC:x}")
        s(f"v_mov_b32 {v(vTAG)}, {sA}\nv_permlane16_swap_b32 {v(q)}, {v(q+2)}\nv_add_f32 {v(q)}, {v(q)}, {v(q+2)}")
        s(f"v_mov_b32 {v(vTAG+1)}, {sA}\nv_mov_b32 {v(q+1)}, {sA}")
        for m in ("quad_perm:[1,0,3,2]", "quad_perm:[2,3,0,1]", "row_half_mirror", "row_mirror"):
            s(f"v_add_f32_dpp {v(q)}, {v(q)}, {v(q)} {m} {DPPM}")
        s(f"s_mov_b32 exec_lo, 0x00010001\ns_mov_b32 exec_hi, 0x00010001\nbuffer_store_dwordx2 {v(q,2)}, {v(vT0)}, {sWS}, {sFL} offen sc1\ns_mov_b64 exec, -1", glue=True)
        self.stamp(s, "st")
        s(f"s_lshr_b32 {sFL}, {sTT}, 1\ns_lshl4_add_u32 {sFL}, {sFL}, {sWV}\ns_lshl_b32 {sFL}, {sFL}, 6\ns_add_u32 {sFL}, {sFL}, {WS_FL2}")
        s.waittok("b2")
        s(f"v_lshrrev_b32 {v(vT0)}, 3, v0\nv_lshl_add_u32 {v(vOUT)}, {v(vT0)}, 10, {v(vOUT)}")
        if not att:
            six = sum(1 << i for i, n in enumerate(FFN_NBLK) if n == 6)
            s(f"s_lshr_b32 {sC}, {six}, {sJ}\ns_lshr_b32 {sA}, {sWV}, 1\ns_andn2_b32 {sC}, {sA}, {sC}\ns_and_b32 {sC}, {sC}, 1\ns_lshl_b32 {sC}, {sC}, 18\ns_or_b32 {sBLKS}, {sBLKS}, {sC}")
        else:
            for hs in range(2):
                for e in range(2): s(f"ds_read_b64_tr_b16 {v(PHI[hs]+2*e,2)}, {v(x0+hs)} offset:{e*128}")
            s(f"v_and_b32 {v(vT2)}, 4, v0\nv_cmp_ne_u32 vcc, 0, {v(vT2)}\nv_mov_b32 {v(vT3)}, 0x80008000\ns_nop 0\nv_cndmask_b32 {v(vT3)}, 0, {v(vT3)}, vcc")
            for i in range(8): s(f"v_xor_b32 {v(PHI[i>>2]+(i&3))}, {v(vT3)}, {v(PHI[i>>2]+(i&3))}")
        def stats_ld(i, r):
            return f"s_add_u32 {r}, {sQ4}, {i}\ns_and_b32 {r}, {r}, 3\ns_lshl_b32 {r}, {r}, 9\ns_add_u32 {r}, {r}, {sSTB}\nbuffer_load_dwordx4 {v(ST+4*i,4)}, {v(vN16)}, {sWS}, {r} offen sc1"
        def xread(st, un, region, ks):
            st(f"ds_read_b128 {v(XF+4*(ks%NX),4)}, {v(vXR+(ks&3))} offset:{region+(ks>>2)*4096}", tok=("xf", un, ks))
        def stat_consts(st, i):
            m, va = ST + 4 * i, ST + 4 * i + 2; k = KC[i]
            st(f"v_mul_f32 {v(m)}, {f2u(1/512)}, {v(m)}\nv_mul_f32 {v(va)}, {f2u(1/512)}, {v(va)}\nv_fma_f32 {v(va)}, -{v(m)}, {v(m)}, {v(va)}\nv_max_f32 {v(va)}, 0, {v(va)}")
            st(f"v_add_f32 {v(va)}, {f2u(1e-5)}, {v(va)}\nv_sqrt_f32 {v(va)}, {v(va)}\nv_mov_b32 {v(m+3)}, 0")
            st(f"v_cvt_pk_bf16_f32 {v(m+1)}, -{v(m)}, {v(va)}\nv_rcp_f32 {v(k)}, {v(va)}")
            st(f"v_lshlrev_b32 {v(vT0)}, 16, {v(m+1)}\nv_and_b32 {v(vT1)}, 0xffff0000, {v(m+1)}")
            st(f"v_sub_f32 {v(m)}, -{v(m)}, {v(vT0)}\nv_sub_f32 {v(vT1)}, {v(va)}, {v(vT1)}")
            if att: st(f"v_mul_f32 {v(k+1)}, {f2u(LOG2E)}, {v(k)}")
            else:
                st(f"v_mov_b32 {v(k+2)}, {v(va)}\nv_mul_f32 {v(k+1)}, {v(k)}, {v(k)}\nv_mul_f32 {v(k)}, {f2u(K0)}, {v(k)}")
                st(f"v_mul_f32 {v(k+1)}, {v(k+1)}, {v(k)}\nv_mul_f32 {v(k+1)}, {f2u(0.044715)}, {v(k+1)}")
            st(f"v_cvt_pk_bf16_f32 {v(m)}, {v(vT0)}, {v(m)}\nv_cvt_pk_bf16_f32 {v(m+2)}, {v(vT1)}, 0")
        def corr_pre(st, which):
            c = CA[which]
            st(f"v_mov_b32 {v(c+3)}, 0\nv_mov_b32 {v(c+2)}, {0 if att else v(vB1+which)}")
            if not att: st(f"v_lshlrev_b32 {v(vB1+which)}, 16, {v(vB1+which)}")
        def corr_a(st, which):
            c = CA[which]
            st(f"v_cvt_pk_bf16_f32 {v(c)}, {v(CS)}, {v(CS)}\nv_lshlrev_b32 {v(vT1)}, 16, {v(c)}\nv_sub_f32 {v(vT0)}, {v(CS)}, {v(vT1)}")
            st(f"v_cvt_pk_bf16_f32 {v(c+1)}, {v(vT0)}, {0 if att else v(vB1+which)}")
        def spin(st, test, reload_, name):
            lp, ok = self.lab("poll"), self.lab("ok")
            st(test + f"\ns_cbranch_vccz {ok}", glue=True)
            st(f"s_mov_b32 {sC}, 0", cond=True)
            st(lp + ":")
            if o["slp"]: st(f"s_sleep {o['slp']}", cond=True)
            st(reload_, cond=True)
            st(f"s_add_u32 {sC}, {sC}, 1\ns_cmp_gt_u32 {sC}, 100000\ns_cbranch_scc1 {ok}\ns_waitcnt vmcnt(0)", cond=True)
            st(test + f"\ns_nop 4\ns_cbranch_vccnz {lp}", cond=True)
            st(ok + ":\ns_nop 0"); st.mark(name); self.stamp(st, name)
        corr_pre(s, 0); corr_pre(s, 1)
        B(stats_ld(0, sM), "stat0", "b%d" % o["s0"], sp=32)
        dma_x(1, "b3", sp1)
        for i in range(1, 4): B(stats_ld(i, sM), "stats", "b7", sp=32)
        dma_x(2, "b5"); dma_x(3, "b7")
        lag = o["lag"]
        def p1mm(kp, part):
            if kp < 0: return
            if part == 0:
                if kp % 2 == 0 or lag < 4: s.waittok(("xf", 0, min(31, kp + (1 if lag >= 4 else 0))))
                s(f"{MF} {v(ACC[0],16)}, {ag(4*kp,4)}, {v(XF+4*(kp%NX),4)}, {v(ACC[0],16) if kp else 0}")
            else: s(f"{MF16} {v(CS,4)}, {v(CSEL,4)}, {ag(4*kp,4)}, {v(CS,4) if kp else 0}")
        for ks in range(32):
            ci, kk = ks >> 2, ks & 3
            if kk == 0:
                if ci == 0: s.waittok(("x", 0), ("p", 0), ahead=o["ah0b"]); self.stamp(s, "x0")
                else: s.waittok(("p", ci), ahead=o["ahead"])
                s("s_barrier"); s.mark("b%d" % ci); self.stamp(s, "b%d" % ci)
            p1mm(ks - lag, 0)
            for e in range(2):
                s(f"ds_read_b64_tr_b16 {ag(4*ks+2*e,2)}, {v(vPR+(ci>>2))} offset:{(ci&3)*16384+kk*4096+e*1024}")
            xread(s, 0, 0, ks)
            p1mm(ks - lag, 1)
        x = Stream()
        x.waittok("stat0")
        spin(x, f"v_xor_b32 {v(vT0)}, {v(vTAG)}, {v(ST+1)}\nv_xor_b32 {v(vT1)}, {v(vTAG)}, {v(ST+3)}\nv_cmp_ne_u64 vcc, 0, {v(vT0,2)}", stats_ld(0, sA), "st0")
        stat_consts(x, 0)
        x(f"v_mov_b32 {v(vWD)}, {v(vWD+3)}")
        for q in range(1, 4): x(f"v_add_u32 {v(vWD+q)}, {7168*q}, {v(vWD)}")
        x(f"s_lshl_b32 {sPCOL}, {sTT}, 16\ns_add_u32 {sPCOL}, {sPCOL}, {sW16K}\ns_add_u32 {sPCOL}, {sPCOL}, {sCB}")
        x.need("cs0"); corr_a(x, 0); x.mark("ca0")
        tl.straight(s)
        Mp = []
        for n, kp in enumerate(range(32 - lag, 32)):
            g = Stream()
            if n == 0: g.waittok(("xf", 0, 31)); g("s_barrier"); g.mark("b8")
            g(f"{MF16} {v(CS,4)}, {v(CSEL,4)}, {ag(4*kp,4)}, {v(CS,4)}")
            if kp == 31: g.mark("cs0")
            Mp.append(g)
        for kp in range(32 - lag, 32):
            g = Stream(); g(f"{MF} {v(ACC[0],16)}, {ag(4*kp,4)}, {v(XF+4*(kp%NX),4)}, {v(ACC[0],16)}"); Mp.append(g)
        g = Stream(); g.need("ca0"); g(f"{MF} {v(ACC[0],16)}, {v(CA[0],4)}, {v(ST,4)}, {v(ACC[0],16)}"); self.stamp(g, "p1"); Mp.append(g)
        tl.sched(Mp, [x])

        def gelu(e, acc, k, sbase, sblk, tok):
            e(f"s_lshl_b32 {sB}, {sblk}, 11\ns_add_u32 {sB}, {sB}, {sbase}")
            for q in range(4):
                A = [v(acc + 4 * q + i) for i in range(4)]; T = [v(G4 + i) for i in range(4)]
                for i in range(4): e(f"v_mul_f32 {T[i]}, {A[i]}, {A[i]}")
                for i in range(4): e(f"v_fma_f32 {T[i]}, {T[i]}, {v(k+1)}, {v(k)}")
                for i in range(4): e(f"v_mul_f32 {T[i]}, {A[i]}, {T[i]}")
                for i in range(4): e(f"v_exp_f32 {T[i]}, {T[i]}")
                for i in range(4): e(f"v_fma_f32 {T[i]}, {T[i]}, {v(k+2)}, {v(k+2)}")
                for i in range(4): e(f"v_rcp_f32 {T[i]}, {T[i]}")
                for i in range(4): e(f"v_mul_f32 {T[i]}, {A[i]}, {T[i]}")
                for i in range(2): e(f"v_cvt_pk_bf16_f32 {v(HO+2*q+i)}, {T[2*i]}, {T[2*i+1]}")
                if q & 1: e(f"buffer_store_dwordx4 {v(HO+4*(q>>1),4)}, {v(vL16)}, {sWS}, {sB} offen offset:{1024*(q>>1)} sc1", tok=tok)
        def sm_head(e, src, phi, T_, f4):
            for i in range(4): e(f"v_cvt_pk_bf16_f32 {v(f4+i)}, {v(src+2*i)}, {v(src+2*i+1)}")
            e(f"{MF} {v(T_,16)}, {v(phi,4)}, {v(f4,4)}, 0")
        def sm_body(e, T_, k, dst):
            t2, t3 = v(vT2), v(vT3); T = lambda i: v(T_ + i)
            e(f"v_max3_f32 {t2}, {T(0)}, {T(1)}, {T(2)}\nv_max3_f32 {t3}, {T(3)}, {T(4)}, {T(5)}")
            for i in range(2): e(f"v_max3_f32 {t2}, {t2}, {T(6+4*i)}, {T(7+4*i)}\nv_max3_f32 {t3}, {t3}, {T(8+4*i)}, {T(9+4*i)}")
            e(f"v_max3_f32 {t2}, {t2}, {T(14)}, {T(15)}\nv_max_f32 {t2}, {t2}, {t3}\nv_mul_f32 {t2}, {t2}, {v(k+1)}")
            for i in range(16): e(f"v_fma_f32 {T(i)}, {T(i)}, {v(k+1)}, -{t2}")
            for i in range(16): e(f"v_exp_f32 {T(i)}, {T(i)}")
            e(f"v_add_f32 {t2}, {T(0)}, {T(1)}\nv_add_f32 {t3}, {T(2)}, {T(3)}")
            for i in range(4, 16, 2): e(f"v_add_f32 {t2}, {t2}, {T(i)}\nv_add_f32 {t3}, {t3}, {T(i+1)}")
            e(f"v_add_f32 {t2}, {t2}, {t3}\nv_rcp_f32 {t2}, {t2}")
            for i in range(16): e(f"v_mul_f32 {T(i)}, {T(i)}, {t2}")
            for i in range(8): e(f"v_cvt_pk_bf16_f32 {v(dst+i)}, {T(2*i)}, {T(2*i+1)}")
        def kepi(e, un):
            acc, k = ACC[un & 1], KC[un]
            e(f"{MF} {v(TB,16)}, {v(ONES,4)}, {v(SEL[1],4)}, 0")
            e.need("m%d" % un)
            sm_head(e, acc, PHI[0], TA, F4)
            for i in range(8): e(f"v_mul_f32 {v(acc+8+i)}, {v(acc+8+i)}, {v(k)}")
            for i in range(4): e(f"v_cvt_pk_bf16_f32 {v(F8b+i)}, {v(acc+8+2*i)}, {v(acc+9+2*i)}")
            e.mark("e%d" % un)
            b = Stream(); sm_body(b, TA, k, F8a)
            e.extend(b[:2]); e(f"{MF} {v(TB,16)}, {v(F8b,4)}, {v(SEL[0],4)}, {v(TB,16)}"); e.extend(b[2:-4])
            e.extend(b[-4:-2]); e2 = b[-2:]
            TC = acc2 = None
            e.extend(e2)
            for i in range(2): e(f"v_cvt_pk_bf16_f32 {v(F8b+i)}, {v(TB+2*i)}, {v(TB+2*i+1)}")
            e(f"{MF} {v(TA,16)}, {v(F8a,4)}, {v(SEL[0],4)}, 0")
            for i in range(2, 8): e(f"v_cvt_pk_bf16_f32 {v(F8b+i)}, {v(TB+2*i)}, {v(TB+2*i+1)}")
            e(f"{MF} {v(TA,16)}, {v(F8a+4,4)}, {v(SEL[1],4)}, {v(TA,16)}")
            for i in range(8): e(f"v_cvt_pk_bf16_f32 {v(F8a+i)}, {v(TA+2*i)}, {v(TA+2*i+1)}")
            e(f"{MF} {v(KV,16)}, {v(F8a,4)}, {v(F8b,4)}, {v(KV,16) if un else 0}\n{MF} {v(KV,16)}, {v(F8a+4,4)}, {v(F8b+4,4)}, {v(KV,16)}")
        def kvpub(e):
            e(f"s_lshl4_add_u32 {sB}, {sHD}, {sT}\ns_mul_i32 {sB}, {sB}, {KVREC}\ns_add_u32 {sB}, {sB}, {WS_KVP}")
            for c in range(2):
                for i in range(4): e(f"v_cvt_pk_bf16_f32 {v(F8a+4*c+i)}, {v(KV+8*c+2*i)}, {v(KV+8*c+2*i+1)}")
                e(f"buffer_store_dwordx4 {v(F8a+4*c,4)}, {v(vKA+c)}, {sWS}, {sB} offen sc1", tok="kvp")
        def qepi(e, acc, k, dst):
            for i in range(4): e(f"v_cvt_pk_bf16_f32 {v(F4+i)}, {v(acc+2*i)}, {v(acc+2*i+1)}")
            for i in range(4): e(f"v_cvt_pk_bf16_f32 {v(F8b+i)}, {v(acc+8+2*i)}, {v(acc+9+2*i)}")
            e(f"{MF} {v(TA,16)}, {v(PHI[0],4)}, {v(F4,4)}, 0\n{MF} {v(acc,16)}, {v(PHI[1],4)}, {v(F8b,4)}, 0")
            sm_body(e, TA, k, dst); sm_body(e, acc, k, dst + 8)
        def flag(st, addr, tok):
            st(addr)
            st.waittok(tok, lat=o["stlat"])
            st(f"s_mov_b64 exec, 1\nbuffer_store_dwordx2 {v(vTAG,2)}, {v(vZ)}, {sWS}, {sD} offen sc1\ns_mov_b64 exec, -1", glue=True)
        a_fl1 = f"s_lshl3_add_u32 {sD}, {sT}, {sFK}"
        def a_fl2(kind): return f"s_lshl2_add_u32 {sD}, {sJ}, {sWV}\ns_lshl_b32 {sC}, {sT}, 10\ns_lshl3_add_u32 {sD}, {sD}, {sC}\ns_add_u32 {sD}, {sD}, {WS_FL2+256*kind}"
        def fl_txt(sreg, off): return f"buffer_load_dwordx2 {v(vFL,2)}, {v(vFA)}, {sWS}, {sreg} offen offset:{off} sc1"
        def fl_bg(sreg, off, tok, after): B(fl_txt(sreg, off), tok, after, sp=16)
        def fl_check(st, sreg, off, tok):
            st.waittok(tok)
            spin(st, f"v_cmp_ne_u64 vcc, {v(vFL,2)}, {v(vTAG,2)}", fl_txt(sreg, off), tok)

        SLOT = {"a0": (sW8K, R[0]), "a1": (sW8K, R[0] + 4096), "b0": (sW8K, R[1]), "b1": (sW8K, R[1] + 4096),
                "c0": (sW8K, R[4]), "c1": (sW8K, R[4] + 4096), "d0": (sW16K, R[2])}
        WSLOT = ["b0", "b1", "c0", "c1", "a0", "a1"] * 2 + ["b0", "b1", "d0"]
        nE = 8
        def blk(b):
            if b < 4: return sBA, b
            if b < 8: return sBB, b - 4
            if b < 11: return sBS[b - 8], 0
            return None, b - 11
        def dma_w(b, after):
            sb, off = SLOT[WSLOT[b]]; r, i = blk(b)
            pre = f"s_add_u32 m0, {sb}, {off}\n"
            if r: pre += f"s_lshl_b32 {sM}, {r}, 15\ns_add_u32 {sM}, {sM}, {sCB}"
            else: pre += f"s_lshl3_add_u32 {sM}, {sW16K}, {sCB}"
            if i: pre += f"\ns_add_u32 {sM}, {sM}, {32768*i}"
            run4(pre, vWD, sW2 if r else sWo, ("w", b), after)
        def wread(st, b):
            sl = WSLOT[b]; off = SLOT[sl][1]
            base, d = (vWB, -R[4]) if sl[0] == "c" else (vXR, -R[2]) if sl[0] == "d" else (vWR, 0)
            st.waittok(("w", b), lat=o["wlat"])
            for stp in range(2):
                for cb in range(2):
                    for e in range(2):
                        st(f"ds_read_b64_tr_b16 {ag(128+16*(b%8)+8*stp+4*cb+2*e,2)}, {v(base+cb)} offset:{off+d+stp*2048+e*512}", tok=("wr", b))

        D = NX - 1
        M = []
        RG = {1: R[1], 2: 0, 3: R[1], 4: 0, 5: 0}
        def bump(st, d):
            for i in range(4): st(f"v_add_u32 {v(vXR+i)}, {d}, {v(vXR+i)}")
        def opening(g, un):
            if un == 3: g.waittok(("x", 3), ("s", 0), ("s", 1)); g("s_barrier"); g.mark("sl")
            elif un < 3: g.waittok(("x", un)); g("s_barrier"); g.mark("xl%d" % un)
            if un == 2: bump(g, "0x10000")
            if un == 5: g.need("e1s"); bump(g, sE1)
        NP = 8
        for un in range(1, 6):
            acc = ACC[un & 1]
            cm = f"{MF} {v(acc,16)}, {v(CA[un>3],4)}, {v(ST+4*un if un <= 3 else CBS,4)}, "
            g = Stream()
            if un == 1:
                opening(g, 1)
                for ks in range(D): xread(g, 1, RG[1], ks)
            if un >= 2: g.need("f%d" % (un - 2))
            self.stamp(g, "u%d" % un)
            if un != 4:
                g.need("c%d" % un); g(cm + "0"); M.append(g); g = Stream()
            last = o["kvpace"] if (att and un == 4) else 31
            for ks in range(32):
                for k in range(NP):
                    if ks == o["pace"] + (k + 1) * (last - o["pace"]) // NP: g.need(("ep", un - 1, k))
                if ks % 4 == 0:
                    if un == 4: g.need("sr%d" % (ks + 3)); g.waittok(("sr", ks + 3))
                    else: g.waittok(("xf", un, ks + 3))
                if ks == 28 and un == 1: g.mark("u1r")
                if ks == 28 and un == 5: g("s_barrier"); g.mark("r5")
                if ks + D == 32 and un < 5: opening(g, un + 1)
                g(f"{MF} {v(acc,16)}, {ag(4*ks,4)}, {ag(128+4*ks,4) if un == 4 else v(XF+4*(ks%NX),4)}, {v(acc,16) if (ks or un != 4) else 0}")
                if ks + D < 32:
                    if un != 4: xread(g, un, RG[un], ks + D)
                elif un in (1, 2, 4): xread(g, un + 1, RG[un + 1], ks + D - 32)
                if un >= 3: g.mark(("pd", un, ks))
                if un == 5 and ks == o["kvl"]: g.mark("kvl")
                if ks == 31 and un != 4: g.mark("m%d" % un)
                M.append(g); g = Stream()
            if un == 4:
                g.need("c4"); g(cm + v(acc, 16)); g.mark("cb4"); g.mark("m4"); M.append(g)
        tl.marks.add("m0")
        E = Stream()
        def paced(e, un):
            tot = sum(i.cost for i in e); c = 0; k = 0
            for i in e:
                E.append(i); c += i.cost
                while k < NP and c >= tot * (k + 1) / NP - 1e-9 and not i.glue: E.mark(("ep", un, k)); k += 1
            assert k == NP
        def selectk(st, i):
            for r in range(nk): st(f"v_cndmask_b32 {v(KCS+r)}, {v(KC[i]+r)}, {v(KC[i+1]+r)}, {sPAR}")
        for un in range(4):
            e = Stream()
            if att: kepi(e, un)
            else: e.need("m%d" % un); gelu(e, ACC[un & 1], KC[un], sAB[un], sBLKP, "actP")
            if att and un == 3: kvpub(e)
            paced(e, un); E.mark("f%d" % un)
        E.mark("kvp")
        E(f"s_cmp_lg_u32 s98, 0\ns_cselect_b32 {sAB[0]}, {sAB[1]}, {sAB[0]}\ns_cselect_b32 {sAB[2]}, {sAB[3]}, {sAB[2]}", glue=True)
        selectk(E, 0); E.need("m4")
        e = Stream()
        if att: qepi(e, ACC[0], KCS, PF)
        else: gelu(e, ACC[0], KCS, sAB[0], sBLKS, "actS")
        paced(e, 4)
        selectk(E, 2); E.mark("e4"); E.need("m5"); self.stamp(E, "u6")
        if att: qepi(E, ACC[1], KCS, PF + 16)
        else: gelu(E, ACC[1], KCS, sAB[2], sBLKS, "actS")
        self.stamp(E, "q")
        X = Stream()
        X.waittok("stats")
        t = f"v_xor_b32 {v(vT0)}, {v(vTAG)}, {v(ST+5)}\nv_xor_b32 {v(vT1)}, {v(vTAG)}, {v(ST+7)}\n"
        for r in (9, 13):
            t += f"v_xor_b32 {v(vFL)}, {v(vTAG)}, {v(ST+r)}\nv_xor_b32 {v(vFL+1)}, {v(vTAG)}, {v(ST+r+2)}\nv_or3_b32 {v(vT0)}, {v(vT0)}, {v(vFL)}, {v(vFL+1)}\n"
        spin(X, t + f"v_cmp_ne_u64 vcc, 0, {v(vT0,2)}", "\n".join(stats_ld(i, sA) for i in range(1, 4)), "stok")
        for i in range(1, 4): stat_consts(X, i); X.mark("c%d" % i)
        def select(st, i):
            for r in range(3): st(f"v_cndmask_b32 {v(CBS+r)}, {v(ST+4*i+r)}, {v(ST+4*i+4+r)}, {sPAR}")
        select(X, 0); X(f"v_mov_b32 {v(CBS+3)}, 0")
        X(f"s_mul_i32 {sE0}, {sTT}, {2*TBSTR}\ns_add_u32 {sE0}, {sE0}, {WS_ACT}")
        X.mark("e1s")
        X2 = Stream()
        X2.need("kvp"); flag(X2, a_fl1 if att else a_fl2(0), "kvp" if att else "actP")
        X.need("cs"); corr_a(X, 1); X.mark("c4")
        X.need("cb4"); select(X, 2); X.mark("c5")
        S = Stream()
        C = Stream()
        KR = vJ
        S(f"s_and_b32 {sE1}, s98, 0x8000")
        for i in range(4): S(f"v_add_u32 {v(KR+i)}, {sE1}, {v(vXR+i)}")
        S.need("xl1")
        for ks in range(32): S(f"ds_read_b128 {ag(128+4*ks,4)}, {v(KR+(ks&3))} offset:{(ks>>2)*4096}", tok="kr")
        S.need("u1r"); S.waittok("kr"); S("s_barrier"); S.mark("k")
        S.need("sl")
        S(f"v_add_u32 {v(vWB)}, {R[4]}, {v(vWR)}\nv_add_u32 {v(vWB+1)}, {R[4]}, {v(vWR+1)}")
        for half in range(2):
            for ks in range(16 * half, 16 * half + 16):
                S.need(("pd", 3, ks))
                for e in range(2): S(f"ds_read_b64_tr_b16 {ag(4*ks+2*e,2)}, {v(vSR)} offset:{(ks&15)*2048+e*512}", tok=("sr", ks))
                if ks % 4 == 3:
                    S.mark("sr%d" % ks); C.need("sr%d" % ks); C.waittok(("sr", ks))
                    if ks == 3: C.need("kvp" if att and o["prio"] else "m3")
                    for k2 in range(ks - 3, ks + 1): C(f"{MF16} {v(CS,4)}, {v(CSEL,4)}, {ag(4*k2,4)}, {v(CS,4) if k2 else 0}")
                if ks == 15: S(f"v_subrev_u32 {v(vSR)}, {R[4]}, {v(vSR)}")
                if ks == 19: S.waittok(("sr", 15)); S("s_barrier"); S.mark("sa")
        S.waittok(("sr", 31)); S("s_barrier"); S.mark("sb")
        C.mark("cs")
        if att and o["prio"]: S.need("kvp")
        for b in range(nE):
            S.need(("pd", 4, 4 * b + 3)); wread(S, b)
            if b: S.waittok(("wr", b - 1)); S.mark("wr%d" % (b - 1))
        S.waittok(("wr", nE - 1)); S.mark("wr%d" % (nE - 1))
        B(f"buffer_load_dwordx4 {v(XR,4)}, {v(vOUT)}, {sX}, {sPCOL} offen")
        B(f"s_add_u32 {sM}, {sPCOL}, 8192\nbuffer_load_dwordx4 {v(XR+4,4)}, {v(vOUT)}, {sX}, {sM} offen", "res")
        warm2(None); dma_s(0, None); dma_s(1, "k")
        def wafter(b): return "k" if b < 2 else "sa" if b < 4 else "sb" if b < 6 else "wr%d" % (b - 6) if b < 14 else "r5"
        nB = o.get("nB", 10 if att else 14)
        for b in range(nB): dma_w(b, wafter(b))
        late = list(range(nB, 15))

        AC2 = 0; AF = 64; NB = 4
        def act(bb, after):
            r, i = blk(bb)
            if bb == 10: pre = f"s_cmp_eq_u32 {r}, 43\ns_cselect_b32 {sM}, {sBS[0]}, {r}\ns_lshl_b32 {sM}, {sM}, 11\ns_add_u32 {sM}, {sM}, {sE0}"
            elif r: pre = f"s_lshl_b32 {sM}, {r}, 11\ns_add_u32 {sM}, {sM}, {sE0}"
            else: pre = f"s_add_u32 {sM}, {sW8K}, {sE0}"; i += 43
            if i: pre += f"\ns_add_u32 {sM}, {sM}, {2048*i}"
            pre += f"\ns_add_u32 {sN}, {sM}, {TBSTR}"
            f = AF + 16 * (bb % NB)
            for stp in range(2):
                for tb in range(2):
                    aft = after if (after and stp == 0) else ("mm", bb - NB, stp) if bb >= NB else None
                    B(f"{pre}\nbuffer_load_dwordx4 {ag(f+8*stp+4*tb,4)}, {v(vL16)}, {sWS}, {sN if tb else sM} offen offset:{1024*stp} sc1", ("act", bb, stp), aft)
                    pre = ""
        fO = o["fO"] if att else o["fOf"]; fS = o["fSa"] if att else o["fS"]
        def acts():
            for bb in range(15):
                if bb == fS: fl_bg(sFL, 256, "fS", "fP")
                if bb == fO: fl_bg(sFL, 512, "fO", "fa8")
                act(bb, {0: "fP", 8: "fS", 11: "fO"}.get(bb))
        assert fS >= 5 and fO >= 8
        s = Stream()
        if not att:
            fl_bg(sFL, 0, "fP", "r5")
            for b in late: dma_w(b, wafter(b))
            acts()
            X2.need("m5"); fl_check(X2, sFL, 0, "fP")
            tl.sched(M, [X, X2, S, C, E], nds=o.get("nds", 2))
            self.stamp(s, "o")
        else:
            Z = ST + 8; ZT = F8a; KA = XF
            fl_bg(sFK, 0, "fK", "kvl")
            X2.need("sb")
            X2(f"s_mul_i32 {sSO[1]}, {sHD}, {16*KVREC}\ns_add_u32 {sSO[1]}, {sSO[1]}, {WS_KVP}\ns_movk_i32 {sD}, {KVREC//8}")
            X2(f"v_and_b32 {v(vXD0)}, 0x30, v0\nv_mad_u32_u24 {v(vSR)}, {v(vFA)}, {sD}, {v(vXD0)}")
            X2.need("c5")
            fl_check(X2, sFK, 0, "fK")
            X2(f"v_and_b32 {v(vFA)}, 0x38, {v(vFA)}"); X2.mark("gat")
            gsp = o.get("gsp", 56)
            B(f"s_mov_b32 {sM}, {sSO[1]}\nbuffer_load_dwordx4 {v(Z,4)}, {v(vSR)}, {sWS}, {sM} offen offset:1024 sc1", "z", "gat", sp=gsp)
            for p in range(16):
                pre = f"s_add_u32 {sM}, {sM}, {3*KVREC}" if p and p % 3 == 0 else ""
                B(f"{pre}\nbuffer_load_dwordx4 {ag(4*p,4)}, {v(vL16)}, {sWS}, {sM} offen offset:{(p%3)*KVREC} sc1", ("g", p), ("pd", 5, p), sp=gsp)
            nL = o.get("nL", 0)
            for b in late[:nL]: dma_w(b, wafter(b))
            fl_bg(sFL, 0, "fP", None)
            for b in late[nL:]: dma_w(b, wafter(b))
            acts()
            X2.waittok("z")
            for i in range(4): X2(f"v_lshlrev_b32 {v(ZT+2*i)}, 16, {v(Z+i)}\nv_and_b32 {v(ZT+2*i+1)}, 0xffff0000, {v(Z+i)}")
            for m in ("quad_perm:[1,0,3,2]", "quad_perm:[2,3,0,1]", "row_half_mirror", "row_mirror"):
                for i in range(8): X2(f"v_add_f32_dpp {v(ZT+i)}, {v(ZT+i)}, {v(ZT+i)} {m} {DPPM}")
            for i in range(4): X2(f"v_cvt_pk_bf16_f32 {v(Z+i)}, {v(ZT+2*i)}, {v(ZT+2*i+1)}")
            X2(f"s_add_u32 {sD}, {sW16K}, {R[2]+4096}\ns_xor_b32 {sA}, {sD}, 0x4000")
            X2(f"v_add_u32 {v(vT0)}, {sD}, {v(vL16)}\nv_add_u32 {v(vT1)}, {sD}, {v(vXD0)}")
            F4x = CA[0]
            X2(f"v_add_u32 {v(F4x)}, {sD}, {v(vKA)}\nv_add_u32 {v(F4x+1)}, {sD}, {v(vKA+1)}\nv_add_u32 {v(F4x+2)}, {sA}, {v(vKA)}\nv_add_u32 {v(F4x+3)}, {sA}, {v(vKA+1)}")
            X2.need("r5"); X2(f"ds_write_b128 {v(vT1)}, {v(Z,4)} offset:1024")
            X2.need("m5"); fl_check(X2, sFL, 0, "fP")
            G = Stream(); G.need("m5")
            for p in range(16):
                if p % 2 == 0: G.waittok(("g", p + 1))
                G(f"{MF} {v(KA,16)}, {v(SEL[0],4)}, {ag(4*p,4)}, {v(KA,16) if p else 0}")
            for i in range(4): G(f"v_cvt_pk_bf16_f32 {v(KA+16+i)}, {v(KA+2*i)}, {v(KA+2*i+1)}")
            tl.sched(M, [X, X2, S, C, G, E], nds=o.get("nds", 2))
            s(f"ds_write_b128 {v(vT0)}, {v(KA+16,4)}")
            s("s_waitcnt lgkmcnt(0)\ns_barrier"); self.stamp(s, "kvx")
            KF = TA
            for i in range(4): s(f"ds_read_b128 {v(KF+4*i,4)}, {v(F4x+i)}")
            s(f"s_add_u32 {sA}, {sHD}, 86\ns_lshl_b32 {sA}, {sA}, 10\ns_xor_b32 {sD}, {sA}, 1024")
            accs = [ACC[0], ACC[1], XF, XF + 16]
            def omm(n):
                un, hs = n >> 1, n & 1; A = accs[n]; pf = PF + 16 * un + 8 * hs
                return [f"{MF} {v(A,16)}, {v(KF+8*hs,4)}, {v(pf,4)}, 0", f"{MF} {v(A,16)}, {v(KF+8*hs+4,4)}, {v(pf+4,4)}, {v(A,16)}"]
            Mo = []
            for n in range(4):
                for k, x in enumerate(omm(n)):
                    g = Stream(); g(x)
                    if k: g.mark("om%d" % n)
                    Mo.append(g)
            O = Stream()
            for n in range(4):
                un, hs = n >> 1, n & 1; A = accs[n]
                O.need("om%d" % n)
                O(f"v_add_f32 {v(A+8)}, {f2u(1e-6)}, {v(A+8)}\nv_rcp_f32 {v(A+8)}, {v(A+8)}")
                O(f"s_add_u32 {sB}, {sAB[2*un]}, {sD if hs else sA}")
                for i in range(8): O(f"v_mul_f32 {v(A+i)}, {v(A+i)}, {v(A+8)}")
                for i in range(4): O(f"v_cvt_pk_bf16_f32 {v(A+12+i)}, {v(A+2*i)}, {v(A+2*i+1)}")
                O(f"buffer_store_dwordx4 {v(A+12,4)}, {v(vL16)}, {sWS}, {sB} offen sc1", tok="actO")
            tl.straight(s); tl.sched(Mo, [O]); s = Stream(); s("s_barrier")
            self.stamp(s, "o")
        tl.straight(s)
        M = []
        for bb in range(15):
            f = AF + 16 * (bb % NB)
            for stp in range(2):
                for tb in range(2):
                    for cb in range(2):
                        g = Stream()
                        if (stp, tb, cb) == (0, 0, 0):
                            if bb == fS: g.need("pub"); fl_check(g, sFL, 256, "fS"); g.mark("fa8")
                            if bb == fO: g.need("pub"); fl_check(g, sFL, 512, "fO")
                            if bb >= nE: g.need("wq%d" % bb); g.waittok(("wr", bb), lat=0)
                        if (tb, cb) == (0, 0): g.waittok(("act", bb, stp), ahead=o["ah2"], lat=0)
                        A = AC2 + 32 * tb + 16 * cb
                        g(f"{MF} {ag(A,16)}, {ag(128+16*(bb%8)+8*stp+4*cb,4)}, {ag(f+8*stp+4*tb,4)}, {ag(A,16) if (bb or stp) else 0}")
                        if (tb, cb) == (1, 1):
                            g.mark(("mm", bb, stp))
                            if stp: self.stamp(g, "mm%d" % bb)
                        M.append(g)
        W = Stream()
        W(f"s_add_u32 {sE1}, {sW8K}, {R[2]}\nv_add_u32 {v(vXR)}, {sE1}, {v(vWR)}\nv_add_u32 {v(vXR+1)}, {sE1}, {v(vWR+1)}")
        for b in range(nE, 15):
            if b >= 8: W.need(("mm", b - 8, 1))
            wread(W, b); W.mark("wq%d" % b)
        X = Stream()
        flag(X, a_fl2(2 if att else 1), "actO" if att else "actS")
        X.mark("pub"); X.need(("mm", 3, 1))
        X(f"v_lshrrev_b32 {v(vT0)}, 4, v0\nv_and_b32 {v(vT0)}, 2, {v(vT0)}\nv_and_b32 {v(vT1)}, 7, v0\nv_xor_b32 {v(vT0)}, {v(vT0)}, {v(vT1)}")
        X(f"v_add_lshl_u32 {v(vT0)}, {v(vN16)}, {v(vT0)}, 4\ns_add_u32 {sA}, {sW16K}, {R[2]}\nv_add_u32 {v(RW)}, {sA}, {v(vT0)}")
        for k in range(1, 4): X(f"v_xor_b32 {v(RW+k)}, {64*(k>>1)+16*(k&1)}, {v(RW)}")
        X(f"v_lshrrev_b32 {v(vT0)}, 3, v0\nv_lshlrev_b32 {v(vT1)}, 1, {v(vT1)}\nv_xor_b32 {v(vT1)}, {v(vT1)}, {v(vT0)}\nv_lshlrev_b32 {v(vT1)}, 4, {v(vT1)}")
        X(f"s_lshl_b32 {sA}, {sWV}, 12\ns_add_u32 {sA}, {sA}, {R[2]}\nv_lshl_add_u32 {v(vT0)}, {v(vT0)}, 8, {v(vT1)}\nv_add_u32 {v(RR)}, {sA}, {v(vT0)}\nv_xor_b32 {v(RR+1)}, 16, {v(RR)}")
        Y = ACC[0]; Pp = ACC[1]
        for it in range(2):
            for i in range(4):
                X(f"v_lshlrev_b32 {v(Y+8*it+2*i)}, 16, {v(XR+4*it+i)}\nv_and_b32 {v(Y+8*it+2*i+1)}, 0xffff0000, {v(XR+4*it+i)}")
        for i in range(4):
            X(f"v_lshlrev_b32 {v(vT0)}, 16, {v(B2+i)}\nv_and_b32 {v(vT3)}, 0xffff0000, {v(B2+i)}")
            for it in range(2):
                X(f"v_add_f32 {v(Y+8*it+2*i)}, {v(Y+8*it+2*i)}, {v(vT0)}\nv_add_f32 {v(Y+8*it+2*i+1)}, {v(Y+8*it+2*i+1)}, {v(vT3)}")
        X(f"s_add_u32 {sB}, {sPCOL}, 8192")
        tl.sched(M, [X, W])
        s = Stream()
        for tb in range(2):
            for cb in range(2):
                for k in range(4):
                    s(f"ds_write_b128 {v(RW+k)}, {ag(AC2+32*tb+16*cb+4*k,4)} offset:{tb*8192+cb*128}")
        s("s_waitcnt lgkmcnt(0)\ns_barrier"); self.stamp(s, "red")
        for it in range(2):
            for pw in range(4):
                for k in range(2): s(f"ds_read_b128 {v(Pp+32*it+8*pw+4*k,4)}, {v(RR+k)} offset:{pw*16384+it*2048}")
        for it in range(2):
            for pw in range(4):
                for i in range(0, 8, 2): s(f"v_pk_add_f32 {v(Y+8*it+i,2)}, {v(Y+8*it+i,2)}, {v(Pp+32*it+8*pw+i,2)}")
            for i in range(4): s(f"v_cvt_pk_bf16_f32 {v(XR+4*it+i)}, {v(Y+8*it+2*i)}, {v(Y+8*it+2*i+1)}")
            s(f"buffer_store_dwordx4 {v(XR+4*it,4)}, {v(vOUT)}, {sOut}, {sB if it else sPCOL} offen{' sc1' if o['outsc1'] else ''}")
        if att:
            noe = self.lab("noe")
            s(f"s_or_b32 {sA}, s2, {sWV}\ns_cmp_lg_u32 {sA}, 0\ns_cbranch_scc1 {noe}")
            s(f"s_mov_b64 exec, 1\nbuffer_store_dword {v(vTAG)}, {v(vZ)}, {sWS}, 0 offen sc1\ns_mov_b64 exec, -1", cond=True)
            s(noe + ":")
        if o.get("probe"):
            lp = self.lab("pad")
            s("s_waitcnt vmcnt(0)"); self.stamp(s, "end")
            s(f"s_waitcnt lgkmcnt(0)\ns_sub_u32 s60, s60, s100\ns_add_u32 s60, s60, 4000")
            s(f"{lp}:\ns_memrealtime s[64:65]\ns_waitcnt lgkmcnt(0)\ns_sub_u32 s64, s64, s100\ns_cmp_lt_u32 s64, s60\ns_cbranch_scc1 {lp}")
        elif o["stamps"]:
            s("s_waitcnt vmcnt(0)\ns_memrealtime s[64:65]\ns_waitcnt lgkmcnt(0)")
            s(f"s_lshl2_add_u32 {sA}, s2, {sWV}\ns_lshl_b32 {sA}, {sA}, 6\ns_add_u32 {sA}, {sA}, {WS_STAMP}")
            for i, r in enumerate(["s100"] + ["s%d" % k for k in STAMPR] + ["s64"]):
                s(f"v_mov_b32 {v(vT1)}, {r}\nbuffer_store_dword {v(vT1)}, {v(vZ)}, {sWS}, {sA} offen offset:{4*i}")
        tl.straight(s)
        assert tl.bi == len(tl.bg)
        tl.log.append("end t=%d forced=%d" % (tl.t, tl.forced))
        if o["log"]: sys.stderr.write("\n".join(role + " " + x for x in tl.log) + "\n")
        return tl.out

    def build(self):
        p = Stream(); self.prologue(p)
        p(f"s_cmp_ge_u32 {sU}, 2\ns_cbranch_scc1 L_ffn")
        text = finalize(p)
        outs = {}
        for role in ("att", "ffn"):
            st = {}
            outs[role] = finalize(self.role(role), st)
            sys.stderr.write("%s: %s\n" % (role, st))
        text += outs["att"] + ["s_endpgm", "L_ffn:"] + outs["ffn"] + ["L_end:", "s_endpgm"]
        body = "\n".join(t if t.endswith(":") else "    " + t for t in text) + "\n"
        hdr = ["Fused LayerNorm + hedgehog linear attention + GELU FFN + residual, one persistent launch (generated by my own script).",
               "@launch grid=(256,1,1) block=(256,1,1) lds=163840"]
        return module(hdr, [(NAME + "_kernel", body, 512, 256)])

if __name__ == "__main__":
    opt = {}
    for x in sys.argv[2:]:
        k, _, val = x.partition("=")
        opt[k] = (int(val) if val.lstrip("-").isdigit() else val) if val else True
    open(sys.argv[1], "w").write(Gen(**opt).build())
```

```python
import sys, struct
from asmlib import module
from backend import *

NAME = "parallel_sum__linear_kernel_hedgehog__dense_activation_gelu__prompt"
def f2u(x): return "0x%x" % struct.unpack("<I", struct.pack("<f", x))[0]
LOG2E = 1.4426950408889634
K0 = -2.0 * LOG2E * 0.7978845608028654

WS_G = 0; WS_FL1 = 0x1000; WS_FL2 = 0x3000; WS_STATS = 0x8000; WS_KVP = 0x40000; WS_ACT = 0x200000
KVREC = 2048; TBSTR = 118 * 1024; WS_STAMP = 0x1000000
TAGC = 0x9E3779B9
R = [0, 32768, 65536, 98304, 131072]
SCR = R[4] + 16384
FFN_BLK0 = [0, 6, 11, 16, 22, 27, 32, 38]
FFN_NBLK = [6, 5, 5, 6, 5, 5, 6, 5]
SBL = [[4, 5, 10], [15, 20, 21], [26, 31, 43], [36, 37, 42]]
def pack(l): return "0x%x" % sum(b << (8 * i) for i, b in enumerate(l))

sX, sW, sWS, sW2, sWo, sOut, sAux, sB2 = ("s[%d:%d]" % (i, i + 3) for i in (8, 12, 16, 20, 24, 28, 32, 36))
sM, sN = "s0", "s1"
sWV, sT, sJ, sU, sI = "s3", "s4", "s5", "s6", "s7"
sROT, sQ4, sTT, sCB, sFL, sSTB = "s64", "s65", "s66", "s67", "s68", "s69"
sA, sB, sC, sD = "s70", "s71", "s72", "s73"
sXB = ["s74", "s75", "s76", "s77"]
sAB = ["s78", "s79", "s80", "s81"]
sXK = ["s82", "s83"]; sSO = ["s84", "s85"]
sBA, sBB = "s86", "s87"; sBS = ["s88", "s89", "s90"]
sPCOL, sW8K, sW16K = "s91", "s92", "s93"
sBLKP, sBLKS = "s94", "s95"; sHD, sFK = "s94", "s95"
sE0, sE1 = "s96", "s97"
sPAR = "s[98:99]"
STAMPR = [60, 40, 42, 44, 50, 52, 46, 54, 62, 56, 58, 48]

class VA:
    def __init__(self, start=1): self.n = start
    def __call__(self, k=1, al=1):
        self.n = (self.n + al - 1) // al * al
        r = self.n; self.n += k
        assert self.n <= 256, "out of VGPRs"
        return r
def v(i, k=1): return "v%d" % i if k == 1 else "v[%d:%d]" % (i, i + k - 1)
def ag(i, k=1): return "a%d" % i if k == 1 else "a[%d:%d]" % (i, i + k - 1)
MF = "v_mfma_f32_32x32x16_bf16"; MF16 = "v_mfma_f32_16x16x32_bf16"
DPPM = "row_mask:0xf bank_mask:0xf"

def srd(s, d, p, n):
    d0 = int(d[2:].split(":")[0])
    s(f"s_mov_b32 s{d0}, s{p}\ns_mov_b32 s{d0+1}, s{p+1}\ns_mov_b32 s{d0+2}, {n}\ns_mov_b32 s{d0+3}, 0x20000")

class Gen:
    def __init__(self, **opt):
        self.o = dict(stamps=False, warm=0, outsc1=True, sp=64, sp1=48, ahead=10, log=False, umode=0, vlat=650, stlat=800,
                      ah0=14, npc=2, sp0=56, warmc=1, warmf=0, wsp=250, wpos=1, slpK=1, ah0b=6, lag=2, s0=4, slp=8, slat=750, wlat=700, wlat0=1100, nE=4, pace=3, kvpace=12, kvhold=99, hold=0, kvl=12, prio=1, fSa=5, fS=6, fO=8, fOf=9, ah2=10, fo=2)
        self.o.update(opt); self.uid = 0
        global TBSTR, WS_ACT
        TBSTR = 118 * 1024 + self.o.get("tbpad", 0); WS_ACT = 0x200000 + self.o.get("actoff", 0)
    def lab(self, p):
        self.uid += 1; return "L_%s_%d" % (p, self.uid)
    def stamp(self, s, name):
        if not self.o["stamps"]: return
        names = str(self.o.get("st", "x0,b0,p1,u1,u2,u3,u4,u5,q,o,mm14,red")).split(",")
        if name in names:
            r = STAMPR[names.index(name)]; s(f"s_memrealtime s[{r}:{r+1}]")

    def role(self, role):
        att = role == "att"; o = self.o
        tl = TL(o["sp"], o["vlat"]); B = tl.B
        def watch(name):
            x = Stream(); self.stamp(x, name); return x[0].text if x else None
        tl.watch = watch
        s = Stream(); a = VA(1)
        stride = 3072 if att else 2752
        vL16 = a(); vXD0 = a(); vXD = a(4); vOUT = a(); vTAG = a(2, 2); vN16 = a(); vXR = a(4); vSR = a()
        vT0 = a(1, 2); vT1 = a(); vT2 = a(); vT3 = a()
        vSD = a(4); vWD = a(4); vPR = vWD + 1; vWR = a(2); vFL = a(2, 2); vFA = a(); vZ = a()
        RW = vXD; RR = vSD; vWB = vSD + 2
        assert vXD == 3
        vKA = a(2)
        XR = a(8, 4); B2 = a(4, 4)
        ACC = [a(16, 4), a(16, 4)]; NX = 8; XF = a(4 * NX, 4)
        CA = [a(4, 4), a(4, 4)]; ST = a(16, 4); CBS = a(4, 4); CS = a(4, 4); CSEL = a(4, 4); vPD = CBS
        nk = 2 if att else 3
        KC = [a(nk) for _ in range(4)]; KCS = a(nk)
        if att:
            ONES = a(4, 4); SEL = [a(4, 4), a(4, 4)]; F8a = a(8, 4); F8b = a(8, 4)
            PHI = [a(4, 4), a(4, 4)]; KV = a(16, 4); TB = a(16, 4); PF = KV; TA = a(16, 4); F4 = a(4, 4)
        else:
            vB1 = a(2); ONES = a(); G4 = a(4); HO = a(8, 4)
        vJ = a(7)
        sys.stderr.write("%s VGPRs: %d\n" % (role, a.n))
        sp1 = o["sp1"]
        tmp = ACC[0]
        def run4(pre, vb, srdn, tok, after, sp=None):
            for q in range(4):
                B(f"{pre if q == 0 else ''}\nbuffer_load_dwordx4 {v(vb+q)}, {srdn}, {sM} offen offset:{1024*q} lds", tok, after, sp)
        def dma_x(i, after, sp=None):
            for k in range(2): run4(f"s_add_u32 m0, {sW8K}, {R[i]+k*4096}\ns_add_u32 {sM}, {sXB[i]}, {sXK[k]}", vXD, sX, ("x", i), after, sp)
        s("s_cmp_ge_u32 s2, 256\ns_cbranch_scc1 L_end")
        s("s_load_dwordx16 s[40:55], s[0:1], 0\ns_load_dwordx8 s[56:63], s[0:1], 64")
        if o["stamps"]: s("s_memrealtime s[100:101]")
        s(f"s_lshr_b32 {sI}, s2, 3")
        if o["warmc"]:
            s(f"s_getpc_b64 s[72:73]\nL_pc:\ns_sub_u32 s72, s72, L_pc-{NAME}_kernel\ns_subb_u32 s73, s73, 0", glue=True)
            s(f"s_lshl_b32 {sA}, {sI}, 11\nv_lshrrev_b32 v1, 4, v0\nv_lshl_add_u32 v1, v1, 7, {sA}\nv_min_u32 v1, L_end-{NAME}_kernel, v1")
            s(f"global_load_dword {v(XR+4)}, v1, s[72:73]")
        s(f"v_lshrrev_b32 v1, 6, v0\nv_and_b32 v0, 63, v0\nv_readfirstlane_b32 {sWV}, v1\nv_lshlrev_b32 v1, 4, v0")
        s(f"s_and_b32 {sA}, s2, 7\ns_lshr_b32 {sROT}, {sI}, 2\ns_and_b32 {sU}, {sI}, 3")
        s(f"s_and_b32 {sT}, {sA}, 1\ns_lshl3_add_u32 {sT}, {sT}, {sROT}\ns_lshr_b32 {sQ4}, {sA}, 1")
        if o.get("p2x", 1):
            s(f"s_andn2_b32 {sC}, 1, {sA}\ns_lshl2_add_u32 {sA}, {sC}, {sQ4}")
        s(f"s_lshr_b32 {sC}, {sI}, 3\ns_lshl2_add_u32 {sTT}, {sA}, {sC}")
        s(f"s_lshl2_add_u32 {sA}, {sT}, {sQ4}\ns_lshl_b32 {sXB[0]}, {sA}, 15")
        s(f"s_lshl2_add_u32 {sD}, {sU}, {sWV}\ns_lshl_b32 {sA}, {sD}, 11\ns_add_u32 {sSO[0]}, {sXB[0]}, {sA}")
        s(f"s_lshl_b32 {sSTB}, {sT}, 11\ns_add_u32 {sSTB}, {sSTB}, {WS_STATS}\ns_lshl4_add_u32 {sD}, {sQ4}, {sD}\ns_lshl_b32 {sD}, {sD}, 5\ns_add_u32 {sFL}, {sD}, {sSTB}")
        s(f"v_and_b32 {v(vOUT)}, 0x70, v1\nv_and_b32 v3, 0x30, v0\nv_xor_b32 v2, {v(vOUT)}, v3\nv_lshrrev_b32 v3, 3, v0\nv_lshl_add_u32 v3, v3, 10, v2")
        for q in range(3, 0, -1):
            s(f"v_xor_b32 {v(vXD+q)}, {64*(q&1)}, v3\nv_add_u32 {v(vXD+q)}, {7168*q}, {v(vXD+q)}")
        s(f"v_min_u32 {v(vXD0)}, 1, v0\nv_mul_u32_u24 {v(vXD0)}, {sFL}, {v(vXD0)}")
        s(f"s_lshl_b32 {sW8K}, {sWV}, 13\ns_lshl1_add_u32 {sA}, {sWV}, {sROT}\ns_lshl_b32 {sA}, {sA}, 7\ns_and_b32 {sXK[0]}, {sA}, 0x380\ns_add_u32 {sA}, {sA}, 128\ns_and_b32 {sXK[1]}, {sA}, 0x380")
        s(f"s_mov_b32 s10, {2048*1024}\ns_mov_b32 s11, 0x20000\ns_mov_b32 s18, 0x10000000\ns_mov_b32 s19, 0x20000")
        s("s_waitcnt lgkmcnt(0)"); self.stamp(s, "go")
        s("s_mov_b64 s[8:9], s[40:41]\ns_mov_b64 s[16:17], s[62:63]"); s.mark("go")
        for r in range(2): B(f"buffer_load_dwordx4 {v(tmp+4*r,4)}, {v(vL16)}, {sX}, {sSO[0]} offen offset:{1024*r}", "rows", "go", sp=8)
        B(f"buffer_load_dword {v(vTAG)}, {v(vXD0)}, {sWS}, 0 offen sc1", "tag", sp=8)
        dma_x(0, None, o["sp0"])
        B(f"buffer_load_dwordx4 {v(B2,4)}, {v(vOUT)}, {sB2}, {sCB} offen", "b2", "sm", sp=16)
        s(f"s_and_b32 {sJ}, {sU}, 1\ns_lshl1_add_u32 {sJ}, {sQ4}, {sJ}\ns_and_b32 {sCB}, {sI}, 7\ns_lshl_b32 {sCB}, {sCB}, 7")
        srd(s, sB2, 56, 1024); s.mark("sm")
        s(f"s_and_b32 {sA}, {sWV}, 1\ns_cmp_eq_u32 {sA}, 1\ns_cselect_b64 {sPAR}, -1, 0")
        s(f"s_lshl_b32 {sW16K}, {sWV}, 14\ns_lshl_b32 {sE0}, {sWV}, 10\ns_lshl_b32 {sE1}, {sWV}, 12\nv_mov_b32 {v(vZ)}, 0")
        for i in range(4):
            s(f"s_add_u32 {sA}, {sQ4}, {i}\ns_and_b32 {sA}, {sA}, 3\ns_lshl2_add_u32 {sA}, {sT}, {sA}")
            if i: s(f"s_lshl_b32 {sXB[i]}, {sA}, 15")
            s(f"s_mul_i32 {sAB[i]}, {sA}, {TBSTR}\ns_add_u32 {sAB[i]}, {sAB[i]}, {WS_ACT}")
        srd(s, sW2, 54, 1376 * 1024); srd(s, sWo, 46, 512 * 1024); srd(s, sOut, 58, 2048 * 1024)
        s(f"s_lshl_b32 {sC}, {sWV}, 3")
        for d, tb in ((sBA, FFN_BLK0[0::2]), (sBB, FFN_BLK0[1::2]), (sBS[0], [x[0] for x in SBL]), (sBS[1], [x[1] for x in SBL]), (sBS[2], [x[2] for x in SBL])):
            s(f"s_lshr_b32 {d}, {pack(tb)}, {sC}\ns_and_b32 {d}, {d}, 0xff")
        s(f"v_and_b32 {v(vT0)}, 31, v0\nv_lshlrev_b32 {v(vN16)}, 4, {v(vT0)}\nv_lshlrev_b32 {v(vT1)}, 7, {v(vT0)}")
        s(f"v_bfe_u32 {v(vT0)}, v0, 1, 3\nv_lshrrev_b32 {v(vT2)}, 5, v0\nv_xor_b32 {v(vT0)}, {v(vT0)}, {v(vT2)}\nv_lshl_add_u32 {v(vXR)}, {v(vT0)}, 4, {v(vT1)}")
        for cq in range(1, 4): s(f"v_xor_b32 {v(vXR+cq)}, {32*cq}, {v(vXR)}")
        s(f"s_mov_b32 s70, {pack(FFN_BLK0[:4])}\ns_mov_b32 s71, {pack(FFN_BLK0[4:])}\ns_lshl_b32 {sC}, {sJ}, 3\ns_lshr_b64 s[70:71], s[70:71], {sC}\ns_and_b32 {sBLKP}, s70, 0xff")
        s(f"s_lshl_b32 {sPCOL}, {sBLKP}, 6\ns_lshl_b32 {sD}, {sJ}, 7\ns_add_u32 {sD}, {sD}, 1024\ns_movk_i32 {sA}, 2752\ns_movk_i32 {sC}, 128\ns_mov_b32 s15, 0x20000")
        s(f"s_cmp_lt_u32 {sU}, 2\ns_cselect_b32 {sPCOL}, {sD}, {sPCOL}\ns_cselect_b32 {sA}, 3072, {sA}\ns_cselect_b32 {sB}, 1, 2\ns_cselect_b32 {sC}, 1024, {sC}\ns_cselect_b64 s[12:13], s[42:43], s[50:51]", glue=True)
        s(f"s_lshl_b32 s14, {sA}, 9\ns_mul_i32 {sD}, {sWV}, {sA}\ns_mov_b32 {sSO[1]}, {sPCOL}\ns_lshl4_add_u32 {sPCOL}, {sD}, {sPCOL}\ns_lshl_b32 {sBLKS}, {sA}, 6")
        s(f"v_lshrrev_b32 {v(vT0)}, 4, v0\nv_and_b32 {v(vT1)}, 15, v0\nv_lshlrev_b32 {v(vT3)}, {sB}, {v(vT0)}\nv_xor_b32 {v(vT1)}, {v(vT1)}, {v(vT3)}")
        s(f"v_mul_u32_u24 {v(vT0)}, {sA}, {v(vT0)}\nv_lshrrev_b32 {v(vT3)}, 3, {v(vT1)}\nv_mad_u32_u24 {v(vT0)}, {v(vT3)}, {sC}, {v(vT0)}\nv_and_b32 {v(vT1)}, 7, {v(vT1)}")
        s(f"v_lshl_add_u32 {v(vPD)}, {v(vT1)}, 4, {v(vT0)}\ns_lshl_b32 {sA}, {sA}, 2\ns_sub_u32 {sA}, {sA}, 1024")
        for q in range(1, 4): s(f"v_add_u32 {v(vPD+q)}, {sA}, {v(vPD+q-1)}")
        s.mark("pd")
        def dma_p(ci, after=None):
            mul = sBLKS if ci < o["npc"] else 64 * stride
            run4(f"s_add_u32 {sM}, {sROT}, {ci}\ns_and_b32 {sM}, {sM}, 7\ns_mul_i32 {sM}, {sM}, {mul}\ns_add_u32 m0, {sE1}, {R[1]+ci*16384}\ns_add_u32 {sM}, {sM}, {sPCOL}", vPD, sW, ("p", ci), after, sp1 if ci else 16)
        for ci in range(o["npc"]): dma_p(ci, "pd")
        s.waittok("rows", ahead=o["ah0"]); self.stamp(s, "rows")
        q = ST
        s(f"v_mov_b32 {v(vT1)}, 0x3f803f80")
        for i in range(4): s(f"v_mov_b32 {v(q+i)}, 0")
        for i in range(4):
            for r in range(2):
                s(f"v_dot2c_f32_bf16 {v(q+r)}, {v(tmp+4*r+i)}, {v(vT1)}\nv_dot2c_f32_bf16 {v(q+2+r)}, {v(tmp+4*r+i)}, {v(tmp+4*r+i)}")
        s.waittok("tag")
        s(f"v_readfirstlane_b32 {sA}, {v(vTAG)}\nv_lshrrev_b32 {v(vT0)}, 1, v0")
        s(f"v_permlane32_swap_b32 {v(q)}, {v(q+1)}\nv_permlane32_swap_b32 {v(q+2)}, {v(q+3)}")
        s(f"v_add_f32 {v(q)}, {v(q)}, {v(q+1)}\nv_add_f32 {v(q+2)}, {v(q+2)}, {v(q+3)}\ns_add_u32 {sA}, {sA}, 0x{TAGC:x}")
        s(f"v_mov_b32 {v(vTAG)}, {sA}\nv_permlane16_swap_b32 {v(q)}, {v(q+2)}\nv_add_f32 {v(q)}, {v(q)}, {v(q+2)}")
        s(f"v_mov_b32 {v(vTAG+1)}, {sA}\nv_mov_b32 {v(q+1)}, {sA}")
        for m in ("quad_perm:[1,0,3,2]", "quad_perm:[2,3,0,1]", "row_half_mirror", "row_mirror"):
            s(f"v_add_f32_dpp {v(q)}, {v(q)}, {v(q)} {m} {DPPM}")
        s(f"s_mov_b32 exec_lo, 0x00010001\ns_mov_b32 exec_hi, 0x00010001\nbuffer_store_dwordx2 {v(q,2)}, {v(vT0)}, {sWS}, {sFL} offen sc1\ns_mov_b64 exec, -1", glue=True)
        self.stamp(s, "st")
        tl.straight(s); s = Stream()
        while tl.bi < len(tl.bg): tl.emit_bg(True)
        s(f"s_cmp_ge_u32 {sU}, 2\ns_cbranch_scc1 L_ffn\nL_split:", glue=True)
        s(f"s_add_u32 {sD}, {sSO[1]}, {-1024 if att else 256}")
        if att:
            s(f"s_lshl2_add_u32 {sHD}, {sJ}, {sWV}"); srd(s, sAux, 44, 32 * 512)
        else:
            s(f"s_lshr_b32 {sB}, {sWV}, 1\ns_add_u32 {sBLKS}, {sBLKP}, {sB}\ns_add_u32 {sBLKS}, {sBLKS}, 4\ns_add_u32 {sBLKP}, {sBLKP}, {sWV}")
            srd(s, sAux, 52, 2752)
            t0, t2 = vB1, vB1 + 1
            s(f"v_and_b32 {v(t0)}, 0x13, v0\nv_and_b32 {v(t2)}, 4, v0\nv_lshl_add_u32 {v(t0)}, {v(t2)}, 1, {v(t0)}\nv_bfe_u32 {v(t2)}, v0, 3, 1\nv_lshl_add_u32 {v(t0)}, {v(t2)}, 2, {v(t0)}")
            s(f"v_and_b32 {v(t2)}, 32, v0\nv_lshl_add_u32 {v(t0)}, {v(t2)}, 8, {v(t0)}\nv_lshlrev_b32 {v(G4)}, 1, {v(t0)}")
        s.mark("aux")
        if att:
            B(f"s_lshr_b32 {sM}, {sHD}, 1\ns_add_u32 m0, {sE0}, {SCR}\ns_lshl_b32 {sM}, {sM}, 10\nbuffer_load_dwordx4 {v(vL16)}, {sAux}, {sM} offen lds", "b2", "aux", sp=16)
        else:
            B(f"s_lshl_b32 {sM}, {sBLKP}, 6\nbuffer_load_ushort {v(vB1)}, {v(G4)}, {sAux}, {sM} offen", None, "aux", sp=16)
            B(f"s_lshl_b32 {sM}, {sBLKS}, 6\nbuffer_load_ushort {v(vB1+1)}, {v(G4)}, {sAux}, {sM} offen", "b2", sp=16)
        w1 = vJ + 4
        def warm2(ks):
            if not o["warm"]: return
            for k in ks:
                pre = f"s_lshl2_add_u32 {sM}, {sI}, {sWV}\n" + (f"s_mul_i32 {sM}, {sM}, {87*128}\ns_add_u32 {sM}, {sM}, {29*128*k}" if k < 3 else f"s_lshl_b32 {sM}, {sM}, 12")
                B(f"{pre}\nbuffer_load_dword {v(w1+1)}, {v(w1)}, {sW2 if k < 3 else sWo}, {sM} offen", sp=o["wsp"]); tl.bg[-1].ins[-1].wr = []
        if o["warmf"]:
            B(f"s_lshl_b32 {sM}, s2, 7\ns_add_u32 {sM}, {sM}, {WS_FL1}\nbuffer_load_dword {v(w1+2)}, {v(vZ)}, {sWS}, {sM} offen", sp=16)
        for ci in range(o["npc"], 8): dma_p(ci, "b0" if ci == 7 else None)
        s(f"v_lshlrev_b32 {v(w1)}, 3, {v(vN16)}\ns_movk_i32 {sB}, {stride}")
        for k in range(2):
            s(f"s_add_u32 {sA}, {sWV}, {sROT}\ns_add_u32 {sA}, {sA}, {4*k}\ns_and_b32 {sA}, {sA}, 7\ns_mul_i32 {sA}, {sA}, {64*stride}\ns_add_u32 {sSO[k]}, {sA}, {sD}")
        def dma_s(half, after):
            for k in range(2): run4(f"s_add_u32 m0, {sW8K}, {R[4-4*half]+k*4096}\ns_add_u32 {sM}, {sSO[half]}, {32*stride*k}", vSD, sW, ("s", half), after)
        s(f"v_lshrrev_b32 {v(vT0)}, 3, v0\nv_lshlrev_b32 {v(vT1)}, 2, v0\nv_and_b32 {v(vT1)}, 64, {v(vT1)}\nv_xor_b32 {v(vT1)}, {v(vT1)}, {v(vOUT)}")
        s(f"v_mad_u32_u24 {v(vSD)}, {v(vT0)}, {sB}, {v(vT1)}")
        for q in range(1, 4): s(f"v_add_u32 {v(vSD+q)}, {q*(8*stride-1024)}, {v(vSD)}")
        s(f"v_lshl_add_u32 {v(vWD+3)}, {v(vT0)}, 10, {v(vT1)}")
        if att:
            s(f"v_lshl_add_u32 {v(vT3)}, {v(vT2)}, 8, {v(vN16)}\nv_lshlrev_b32 {v(vT2)}, 4, {v(vT2)}\nv_add_u32 {v(vT2)}, 0x400, {v(vT2)}")
            s(f"v_cmp_gt_u32 vcc, 0x100, {v(vN16)}\nv_add_u32 {v(vT0)}, 32, {v(vT2)}\nv_add_u32 {v(vT1)}, 0x200, {v(vT3)}")
            s(f"v_cndmask_b32 {v(vKA)}, {v(vT2)}, {v(vT3)}, vcc\nv_cndmask_b32 {v(vKA+1)}, {v(vT0)}, {v(vT1)}, vcc")
        s(f"v_bfe_u32 {v(vT0)}, v0, 2, 2\nv_bfe_u32 {v(vT1)}, v0, 4, 1")
        s(f"v_and_b32 {v(vT2)}, 16, {v(vL16)}\nv_and_b32 {v(vT3)}, 2, v0\nv_lshl_add_u32 {v(vT2)}, {v(vT3)}, 2, {v(vT2)}")
        s(f"v_lshrrev_b32 {v(vT3)}, 5, v0\nv_lshl_add_u32 {v(vT3)}, {v(vT3)}, 3, {v(vT0)}")
        x0, x1 = XF, XF + 1
        if att: s(f"v_lshl_add_u32 {v(x0)}, {v(vT1)}, 2, {sWV}\nv_xor_b32 {v(x0)}, {v(x0)}, {v(vT0)}\nv_lshl_add_u32 {v(x0)}, {v(x0)}, 5, {v(vT2)}")
        else: s(f"v_xor_b32 {v(x0)}, {sWV}, {v(vT0)}\nv_lshl_add_u32 {v(x0)}, {v(x0)}, 6, {v(vT2)}\nv_lshl_add_u32 {v(x0)}, {v(vT1)}, 5, {v(x0)}")
        s(f"v_lshl_add_u32 {v(x0)}, {v(vT3)}, 8, {v(x0)}\nv_add_u32 {v(vPR)}, {R[1]}, {v(x0)}\nv_add_u32 {v(vPR+1)}, {R[3]}, {v(x0)}")
        s(f"v_lshrrev_b32 {v(x0)}, 1, {v(vT0)}\nv_lshl_add_u32 {v(x0)}, {v(x0)}, 6, {v(vT2)}\nv_lshl_add_u32 {v(x0)}, {v(vT1)}, 5, {v(x0)}\nv_lshl_add_u32 {v(x0)}, {v(vT3)}, 7, {v(x0)}")
        s(f"v_add_u32 {v(vWR)}, {sW8K}, {v(x0)}\nv_xor_b32 {v(vWR+1)}, 64, {v(vWR)}")
        if att: s(f"s_lshl_b32 {sA}, {sWV}, 5")
        else: s(f"s_and_b32 {sA}, {sWV}, 2\ns_lshl_b32 {sA}, {sA}, 5")
        s(f"v_xor_b32 {v(x0)}, {sA}, {v(x0)}\nv_add_u32 {v(vSR)}, {R[4]}, {v(x0)}")
        for i in range(4 if att else 1): s(f"v_mov_b32 {v(ONES+i)}, 0x3f803f80")
        s(f"v_cmp_eq_u32 vcc, {v(vT0)}, {v(vT1)}")
        if att:
            s(f"v_bfe_u32 {v(x0)}, v0, 1, 1\nv_lshl_add_u32 {v(x0)}, {v(vT1)}, 1, {v(x0)}\nv_lshlrev_b32 {v(x0)}, 3, {v(x0)}\nv_lshl_add_u32 {v(x0)}, {v(vT3)}, 5, {v(x0)}")
        s(f"v_and_b32 {v(vFA)}, {15 if att else 7}, v0\nv_lshlrev_b32 {v(vFA)}, 3, {v(vFA)}")
        for i in range(4): s(f"v_cndmask_b32 {v(CSEL+i)}, 0, {v(ONES)}, vcc")
        if att:
            s(f"s_and_b32 {sC}, s98, 0x200\ns_add_u32 {sA}, {sE0}, {sC}\ns_add_u32 {sA}, {sA}, {SCR}")
            s(f"v_add_u32 {v(x0)}, {sA}, {v(x0)}\nv_xor_b32 {v(x1)}, 0x200, {v(x0)}")
            s(f"v_bfe_u32 {v(vT0)}, v0, 2, 1\nv_lshrrev_b32 {v(vT2)}, 5, v0\nv_cmp_eq_u32 vcc, {v(vT0)}, {v(vT2)}")
            s(f"v_and_b32 {v(vT0)}, 16, {v(vL16)}\nv_mov_b32 {v(vT2)}, 0x3f80\nv_lshlrev_b32 {v(vT2)}, {v(vT0)}, {v(vT2)}\nv_cndmask_b32 {v(vT2)}, 0, {v(vT2)}, vcc")
            s(f"v_bfe_u32 {v(vT0)}, v0, 1, 1\nv_bfe_u32 {v(vT3)}, v0, 3, 2\nv_lshl_add_u32 {v(vT0)}, {v(vT3)}, 1, {v(vT0)}")
            for i in range(0, 8, 2):
                s(f"v_cmp_eq_u32 vcc, {i}, {v(vT0)}\nv_cmp_eq_u32 s[70:71], {i+1}, {v(vT0)}")
                s(f"s_nop 0\nv_cndmask_b32 {v(SEL[i>>2]+(i&3))}, 0, {v(vT2)}, vcc\nv_cndmask_b32 {v(SEL[i>>2]+(i&3)+1)}, 0, {v(vT2)}, s[70:71]")
            s(f"s_lshl_b32 {sFK}, {sHD}, 7\ns_add_u32 {sFK}, {sFK}, {WS_FL1}")
        s(f"s_lshr_b32 {sFL}, {sTT}, 1\ns_lshl4_add_u32 {sFL}, {sFL}, {sWV}\ns_lshl_b32 {sFL}, {sFL}, 6\ns_add_u32 {sFL}, {sFL}, {WS_FL2}")
        s.waittok("b2")
        s(f"v_lshrrev_b32 {v(vT0)}, 3, v0\nv_lshl_add_u32 {v(vOUT)}, {v(vT0)}, 10, {v(vOUT)}")
        if not att:
            six = sum(1 << i for i, n in enumerate(FFN_NBLK) if n == 6)
            s(f"s_lshr_b32 {sC}, {six}, {sJ}\ns_lshr_b32 {sA}, {sWV}, 1\ns_andn2_b32 {sC}, {sA}, {sC}\ns_and_b32 {sC}, {sC}, 1\ns_lshl_b32 {sC}, {sC}, 18\ns_or_b32 {sBLKS}, {sBLKS}, {sC}")
        else:
            for hs in range(2):
                for e in range(2): s(f"ds_read_b64_tr_b16 {v(PHI[hs]+2*e,2)}, {v(x0+hs)} offset:{e*128}")
            s(f"v_and_b32 {v(vT2)}, 4, v0\nv_cmp_ne_u32 vcc, 0, {v(vT2)}\nv_mov_b32 {v(vT3)}, 0x80008000\ns_nop 0\nv_cndmask_b32 {v(vT3)}, 0, {v(vT3)}, vcc")
            for i in range(8): s(f"v_xor_b32 {v(PHI[i>>2]+(i&3))}, {v(vT3)}, {v(PHI[i>>2]+(i&3))}")
        def stats_ld(i, r):
            return f"s_add_u32 {r}, {sQ4}, {i}\ns_and_b32 {r}, {r}, 3\ns_lshl_b32 {r}, {r}, 9\ns_add_u32 {r}, {r}, {sSTB}\nbuffer_load_dwordx4 {v(ST+4*i,4)}, {v(vN16)}, {sWS}, {r} offen sc1"
        def xread(st, un, region, ks):
            st(f"ds_read_b128 {v(XF+4*(ks%NX),4)}, {v(vXR+(ks&3))} offset:{region+(ks>>2)*4096}", tok=("xf", un, ks))
        def stat_consts(st, i):
            m, va = ST + 4 * i, ST + 4 * i + 2; k = KC[i]
            st(f"v_mul_f32 {v(m)}, {f2u(1/512)}, {v(m)}\nv_mul_f32 {v(va)}, {f2u(1/512)}, {v(va)}\nv_fma_f32 {v(va)}, -{v(m)}, {v(m)}, {v(va)}\nv_max_f32 {v(va)}, 0, {v(va)}")
            st(f"v_add_f32 {v(va)}, {f2u(1e-5)}, {v(va)}\nv_sqrt_f32 {v(va)}, {v(va)}\nv_mov_b32 {v(m+3)}, 0")
            st(f"v_cvt_pk_bf16_f32 {v(m+1)}, -{v(m)}, {v(va)}\nv_rcp_f32 {v(k)}, {v(va)}")
            st(f"v_lshlrev_b32 {v(vT0)}, 16, {v(m+1)}\nv_and_b32 {v(vT1)}, 0xffff0000, {v(m+1)}")
            st(f"v_sub_f32 {v(m)}, -{v(m)}, {v(vT0)}\nv_sub_f32 {v(vT1)}, {v(va)}, {v(vT1)}")
            if att: st(f"v_mul_f32 {v(k+1)}, {f2u(LOG2E)}, {v(k)}")
            else:
                st(f"v_mov_b32 {v(k+2)}, {v(va)}\nv_mul_f32 {v(k+1)}, {v(k)}, {v(k)}\nv_mul_f32 {v(k)}, {f2u(K0)}, {v(k)}")
                st(f"v_mul_f32 {v(k+1)}, {v(k+1)}, {v(k)}\nv_mul_f32 {v(k+1)}, {f2u(0.044715)}, {v(k+1)}")
            st(f"v_cvt_pk_bf16_f32 {v(m)}, {v(vT0)}, {v(m)}\nv_cvt_pk_bf16_f32 {v(m+2)}, {v(vT1)}, 0")
        def corr_pre(st, which):
            c = CA[which]
            st(f"v_mov_b32 {v(c+3)}, 0\nv_mov_b32 {v(c+2)}, {0 if att else v(vB1+which)}")
            if not att: st(f"v_lshlrev_b32 {v(vB1+which)}, 16, {v(vB1+which)}")
        def corr_a(st, which):
            c = CA[which]
            st(f"v_cvt_pk_bf16_f32 {v(c)}, {v(CS)}, {v(CS)}\nv_lshlrev_b32 {v(vT1)}, 16, {v(c)}\nv_sub_f32 {v(vT0)}, {v(CS)}, {v(vT1)}")
            st(f"v_cvt_pk_bf16_f32 {v(c+1)}, {v(vT0)}, {0 if att else v(vB1+which)}")
        def spin(st, test, reload_, name):
            lp, ok = self.lab("poll"), self.lab("ok")
            st(test + f"\ns_cbranch_vccz {ok}", glue=True)
            st(f"s_mov_b32 {sC}, 0", cond=True)
            st(lp + ":")
            slp = o["slp"] if name in ("fO", "fS") else o["slpK"]
            if slp: st(f"s_sleep {slp}", cond=True)
            st(reload_, cond=True)
            st(f"s_add_u32 {sC}, {sC}, 1\ns_cmp_gt_u32 {sC}, 100000\ns_cbranch_scc1 {ok}\ns_waitcnt vmcnt(0)", cond=True)
            st(test + f"\ns_nop 4\ns_cbranch_vccnz {lp}", cond=True)
            st(ok + ":\ns_nop 0"); st.mark(name); self.stamp(st, name)
        corr_pre(s, 0); corr_pre(s, 1)
        B(stats_ld(0, sM), "stat0", "b%d" % o["s0"], sp=32)
        dma_x(1, "b3", sp1)
        for i in range(1, 4): B(stats_ld(i, sM), "stats", "b7", sp=32)
        dma_x(2, "b5"); dma_x(3, "b7")
        lag = o["lag"]
        def p1mm(kp, part):
            if kp < 0: return
            if part == 0:
                if kp % 2 == 0 or lag < 4: s.waittok(("xf", 0, min(31, kp + (1 if lag >= 4 else 0))))
                s(f"{MF} {v(ACC[0],16)}, {ag(4*kp,4)}, {v(XF+4*(kp%NX),4)}, {v(ACC[0],16) if kp else 0}")
            else: s(f"{MF16} {v(CS,4)}, {v(CSEL,4)}, {ag(4*kp,4)}, {v(CS,4) if kp else 0}")
        for ks in range(32):
            ci, kk = ks >> 2, ks & 3
            if kk == 0:
                if ci == 0: s.waittok(("x", 0), ("p", 0), ahead=o["ah0b"]); self.stamp(s, "x0")
                else: s.waittok(("p", ci), ahead=o["ahead"])
                s("s_barrier"); s.mark("b%d" % ci); self.stamp(s, "b%d" % ci)
            p1mm(ks - lag, 0)
            for e in range(2):
                s(f"ds_read_b64_tr_b16 {ag(4*ks+2*e,2)}, {v(vPR+(ci>>2))} offset:{(ci&3)*16384+kk*4096+e*1024}")
            xread(s, 0, 0, ks)
            p1mm(ks - lag, 1)
        x = Stream()
        x.waittok("stat0")
        spin(x, f"v_xor_b32 {v(vT0)}, {v(vTAG)}, {v(ST+1)}\nv_xor_b32 {v(vT1)}, {v(vTAG)}, {v(ST+3)}\nv_cmp_ne_u64 vcc, 0, {v(vT0,2)}", stats_ld(0, sA), "st0")
        stat_consts(x, 0)
        x(f"v_mov_b32 {v(vWD)}, {v(vWD+3)}")
        for q in range(1, 4): x(f"v_add_u32 {v(vWD+q)}, {7168*q}, {v(vWD)}")
        x(f"s_lshl_b32 {sPCOL}, {sTT}, 16\ns_add_u32 {sPCOL}, {sPCOL}, {sW16K}\ns_add_u32 {sPCOL}, {sPCOL}, {sCB}")
        x.need("cs0"); corr_a(x, 0); x.mark("ca0")
        tl.straight(s)
        Mp = []
        for n, kp in enumerate(range(32 - lag, 32)):
            g = Stream()
            if n == 0: g.waittok(("xf", 0, 31)); g("s_barrier"); g.mark("b8")
            g(f"{MF16} {v(CS,4)}, {v(CSEL,4)}, {ag(4*kp,4)}, {v(CS,4)}")
            if kp == 31: g.mark("cs0")
            Mp.append(g)
        for kp in range(32 - lag, 32):
            g = Stream(); g(f"{MF} {v(ACC[0],16)}, {ag(4*kp,4)}, {v(XF+4*(kp%NX),4)}, {v(ACC[0],16)}"); Mp.append(g)
        g = Stream(); g.need("ca0"); g(f"{MF} {v(ACC[0],16)}, {v(CA[0],4)}, {v(ST,4)}, {v(ACC[0],16)}"); self.stamp(g, "p1"); Mp.append(g)
        tl.sched(Mp, [x])

        def gelu(e, acc, k, sbase, sblk, tok):
            e(f"s_lshl_b32 {sB}, {sblk}, 11\ns_add_u32 {sB}, {sB}, {sbase}")
            for q in range(4):
                A = [v(acc + 4 * q + i) for i in range(4)]; T = [v(G4 + i) for i in range(4)]
                for i in range(4): e(f"v_mul_f32 {T[i]}, {A[i]}, {A[i]}")
                for i in range(4): e(f"v_fma_f32 {T[i]}, {T[i]}, {v(k+1)}, {v(k)}")
                for i in range(4): e(f"v_mul_f32 {T[i]}, {A[i]}, {T[i]}")
                for i in range(4): e(f"v_exp_f32 {T[i]}, {T[i]}")
                for i in range(4): e(f"v_fma_f32 {T[i]}, {T[i]}, {v(k+2)}, {v(k+2)}")
                for i in range(4): e(f"v_rcp_f32 {T[i]}, {T[i]}")
                for i in range(4): e(f"v_mul_f32 {T[i]}, {A[i]}, {T[i]}")
                for i in range(2): e(f"v_cvt_pk_bf16_f32 {v(HO+2*q+i)}, {T[2*i]}, {T[2*i+1]}")
                if q & 1: e(f"buffer_store_dwordx4 {v(HO+4*(q>>1),4)}, {v(vL16)}, {sWS}, {sB} offen offset:{1024*(q>>1)} sc1", tok=tok)
        def sm_head(e, src, phi, T_, f4):
            for i in range(4): e(f"v_cvt_pk_bf16_f32 {v(f4+i)}, {v(src+2*i)}, {v(src+2*i+1)}")
            e(f"{MF} {v(T_,16)}, {v(phi,4)}, {v(f4,4)}, 0")
        def sm_body(e, T_, k, dst):
            t2, t3 = v(vT2), v(vT3); T = lambda i: v(T_ + i)
            e(f"v_max3_f32 {t2}, {T(0)}, {T(1)}, {T(2)}\nv_max3_f32 {t3}, {T(3)}, {T(4)}, {T(5)}")
            for i in range(2): e(f"v_max3_f32 {t2}, {t2}, {T(6+4*i)}, {T(7+4*i)}\nv_max3_f32 {t3}, {t3}, {T(8+4*i)}, {T(9+4*i)}")
            e(f"v_max3_f32 {t2}, {t2}, {T(14)}, {T(15)}\nv_max_f32 {t2}, {t2}, {t3}\nv_mul_f32 {t2}, {t2}, {v(k+1)}")
            for i in range(16): e(f"v_fma_f32 {T(i)}, {T(i)}, {v(k+1)}, -{t2}")
            for i in range(16): e(f"v_exp_f32 {T(i)}, {T(i)}")
            e(f"v_add_f32 {t2}, {T(0)}, {T(1)}\nv_add_f32 {t3}, {T(2)}, {T(3)}")
            for i in range(4, 16, 2): e(f"v_add_f32 {t2}, {t2}, {T(i)}\nv_add_f32 {t3}, {t3}, {T(i+1)}")
            e(f"v_add_f32 {t2}, {t2}, {t3}\nv_rcp_f32 {t2}, {t2}")
            for i in range(16): e(f"v_mul_f32 {T(i)}, {T(i)}, {t2}")
            for i in range(8): e(f"v_cvt_pk_bf16_f32 {v(dst+i)}, {T(2*i)}, {T(2*i+1)}")
        def kepi(e, un):
            acc, k = ACC[un & 1], KC[un]
            e(f"{MF} {v(TB,16)}, {v(ONES,4)}, {v(SEL[1],4)}, 0")
            e.need("m%d" % un)
            sm_head(e, acc, PHI[0], TA, F4)
            for i in range(8): e(f"v_mul_f32 {v(acc+8+i)}, {v(acc+8+i)}, {v(k)}")
            for i in range(4): e(f"v_cvt_pk_bf16_f32 {v(F8b+i)}, {v(acc+8+2*i)}, {v(acc+9+2*i)}")
            e.mark("e%d" % un)
            b = Stream(); sm_body(b, TA, k, F8a)
            e.extend(b[:2]); e(f"{MF} {v(TB,16)}, {v(F8b,4)}, {v(SEL[0],4)}, {v(TB,16)}"); e.extend(b[2:-4])
            e.extend(b[-4:-2]); e2 = b[-2:]
            TC = acc2 = None
            e.extend(e2)
            for i in range(2): e(f"v_cvt_pk_bf16_f32 {v(F8b+i)}, {v(TB+2*i)}, {v(TB+2*i+1)}")
            e(f"{MF} {v(TA,16)}, {v(F8a,4)}, {v(SEL[0],4)}, 0")
            for i in range(2, 8): e(f"v_cvt_pk_bf16_f32 {v(F8b+i)}, {v(TB+2*i)}, {v(TB+2*i+1)}")
            e(f"{MF} {v(TA,16)}, {v(F8a+4,4)}, {v(SEL[1],4)}, {v(TA,16)}")
            for i in range(8): e(f"v_cvt_pk_bf16_f32 {v(F8a+i)}, {v(TA+2*i)}, {v(TA+2*i+1)}")
            e(f"{MF} {v(KV,16)}, {v(F8a,4)}, {v(F8b,4)}, {v(KV,16) if un else 0}\n{MF} {v(KV,16)}, {v(F8a+4,4)}, {v(F8b+4,4)}, {v(KV,16)}")
        def kvpub(e):
            e(f"s_lshl4_add_u32 {sB}, {sHD}, {sT}\ns_mul_i32 {sB}, {sB}, {KVREC}\ns_add_u32 {sB}, {sB}, {WS_KVP}")
            for c in range(2):
                for i in range(4): e(f"v_cvt_pk_bf16_f32 {v(F8a+4*c+i)}, {v(KV+8*c+2*i)}, {v(KV+8*c+2*i+1)}")
                e(f"buffer_store_dwordx4 {v(F8a+4*c,4)}, {v(vKA+c)}, {sWS}, {sB} offen sc1", tok="kvp")
        def qepi(e, acc, k, dst):
            for i in range(4): e(f"v_cvt_pk_bf16_f32 {v(F4+i)}, {v(acc+2*i)}, {v(acc+2*i+1)}")
            for i in range(4): e(f"v_cvt_pk_bf16_f32 {v(F8b+i)}, {v(acc+8+2*i)}, {v(acc+9+2*i)}")
            e(f"{MF} {v(TA,16)}, {v(PHI[0],4)}, {v(F4,4)}, 0\n{MF} {v(acc,16)}, {v(PHI[1],4)}, {v(F8b,4)}, 0")
            sm_body(e, TA, k, dst); sm_body(e, acc, k, dst + 8)
        def flag(st, addr, tok):
            st(addr)
            st.waittok(tok, lat=o["stlat"])
            st(f"s_mov_b64 exec, 1\nbuffer_store_dwordx2 {v(vTAG,2)}, {v(vZ)}, {sWS}, {sD} offen sc1\ns_mov_b64 exec, -1", glue=True)
        a_fl1 = f"s_lshl3_add_u32 {sD}, {sT}, {sFK}"
        def a_fl2(kind): return f"s_lshl2_add_u32 {sD}, {sJ}, {sWV}\ns_lshl_b32 {sC}, {sT}, 10\ns_lshl3_add_u32 {sD}, {sD}, {sC}\ns_add_u32 {sD}, {sD}, {WS_FL2+256*kind}"
        def fl_txt(sreg, off): return f"buffer_load_dwordx2 {v(vFL,2)}, {v(vFA)}, {sWS}, {sreg} offen offset:{off} sc1"
        def fl_bg(sreg, off, tok, after): B(fl_txt(sreg, off), tok, after, sp=16)
        def fl_check(st, sreg, off, tok):
            st.waittok(tok)
            spin(st, f"v_cmp_ne_u64 vcc, {v(vFL,2)}, {v(vTAG,2)}", fl_txt(sreg, off), tok)

        SLOT = {"a0": (sW8K, R[0]), "a1": (sW8K, R[0] + 4096), "b0": (sW8K, R[1]), "b1": (sW8K, R[1] + 4096),
                "c0": (sW8K, R[4]), "c1": (sW8K, R[4] + 4096), "d0": (sW16K, R[2])}
        WSLOT = ["b0", "b1", "c0", "c1", "a0", "a1"] * 2 + ["b0", "b1", "d0"]
        nE = 8
        def blk(b):
            if b < 4: return sBA, b
            if b < 8: return sBB, b - 4
            if b < 11: return sBS[b - 8], 0
            return None, b - 11
        def dma_w(b, after):
            sb, off = SLOT[WSLOT[b]]; r, i = blk(b)
            pre = f"s_add_u32 m0, {sb}, {off}\n"
            if r: pre += f"s_lshl_b32 {sM}, {r}, 15\ns_add_u32 {sM}, {sM}, {sCB}"
            else: pre += f"s_lshl3_add_u32 {sM}, {sW16K}, {sCB}"
            if i: pre += f"\ns_add_u32 {sM}, {sM}, {32768*i}"
            run4(pre, vWD, sW2 if r else sWo, ("w", b), after)
        def wread(st, b):
            sl = WSLOT[b]; off = SLOT[sl][1]
            base, d = (vWB, -R[4]) if sl[0] == "c" else (vXR, -R[2]) if sl[0] == "d" else (vWR, 0)
            st.waittok(("w", b), lat=o["wlat"])
            for stp in range(2):
                for cb in range(2):
                    for e in range(2):
                        st(f"ds_read_b64_tr_b16 {ag(128+16*(b%8)+8*stp+4*cb+2*e,2)}, {v(base+cb)} offset:{off+d+stp*2048+e*512}", tok=("wr", b))

        D = NX - 1
        M = []
        RG = {1: R[1], 2: 0, 3: R[1], 4: 0, 5: 0}
        def bump(st, d):
            for i in range(4): st(f"v_add_u32 {v(vXR+i)}, {d}, {v(vXR+i)}")
        def opening(g, un):
            if un == 3: g.waittok(("x", 3), ("s", 0), ("s", 1)); g("s_barrier"); g.mark("sl")
            elif un < 3: g.waittok(("x", un)); g("s_barrier"); g.mark("xl%d" % un)
            if un == 2: bump(g, "0x10000")
            if un == 5: g.need("e1s"); bump(g, sE1)
        NP = 8
        for un in range(1, 6):
            acc = ACC[un & 1]
            cm = f"{MF} {v(acc,16)}, {v(CA[un>3],4)}, {v(ST+4*un if un <= 3 else CBS,4)}, "
            g = Stream()
            if un == 1:
                opening(g, 1)
                for ks in range(D): xread(g, 1, RG[1], ks)
            if un >= 2: g.need("f%d" % (un - 2))
            self.stamp(g, "u%d" % un)
            if un != 4:
                g.need("c%d" % un); g(cm + "0"); M.append(g); g = Stream()
            last = o["kvpace"] if (att and un == 4) else 31
            for ks in range(32):
                for k in range(NP):
                    if ks == o["pace"] + (k + 1) * (last - o["pace"]) // NP: g.need(("ep", un - 1, k))
                if ks % 4 == 0:
                    if un == 4: g.need("sr%d" % (ks + 3)); g.waittok(("sr", ks + 3))
                    else: g.waittok(("xf", un, ks + 3))
                if ks == 28 and un == 1: g.mark("u1r")
                if ks == 28 and un == 5: g("s_barrier"); g.mark("r5")
                if ks + D == 32 and un < 5: opening(g, un + 1)
                g(f"{MF} {v(acc,16)}, {ag(4*ks,4)}, {ag(128+4*ks,4) if un == 4 else v(XF+4*(ks%NX),4)}, {v(acc,16) if (ks or un != 4) else 0}")
                if ks + D < 32:
                    if un != 4: xread(g, un, RG[un], ks + D)
                elif un in (1, 2, 4): xread(g, un + 1, RG[un + 1], ks + D - 32)
                if un >= 3: g.mark(("pd", un, ks))
                if un == 5 and ks == o["kvl"]: g.mark("kvl")
                if ks == 31 and un != 4: g.mark("m%d" % un)
                M.append(g); g = Stream()
            if un == 4:
                g.need("c4"); g(cm + v(acc, 16)); g.mark("cb4"); g.mark("m4"); M.append(g)
        tl.marks.add("m0")
        E = Stream()
        def paced(e, un):
            tot = sum(i.cost for i in e); c = 0; k = 0
            for i in e:
                E.append(i); c += i.cost
                while k < NP and c >= tot * (k + 1) / NP - 1e-9 and not i.glue: E.mark(("ep", un, k)); k += 1
            assert k == NP
        def selectk(st, i):
            for r in range(nk): st(f"v_cndmask_b32 {v(KCS+r)}, {v(KC[i]+r)}, {v(KC[i+1]+r)}, {sPAR}")
        for un in range(4):
            e = Stream()
            if att: kepi(e, un)
            else: e.need("m%d" % un); gelu(e, ACC[un & 1], KC[un], sAB[un], sBLKP, "actP")
            if att and un == 3: kvpub(e)
            paced(e, un); E.mark("f%d" % un)
        E.mark("kvp")
        E(f"s_cmp_lg_u32 s98, 0\ns_cselect_b32 {sAB[0]}, {sAB[1]}, {sAB[0]}\ns_cselect_b32 {sAB[2]}, {sAB[3]}, {sAB[2]}", glue=True)
        selectk(E, 0); E.need("m4")
        e = Stream()
        if att: qepi(e, ACC[0], KCS, PF)
        else: gelu(e, ACC[0], KCS, sAB[0], sBLKS, "actS")
        paced(e, 4)
        selectk(E, 2); E.mark("e4"); E.need("m5"); self.stamp(E, "u6")
        if att: qepi(E, ACC[1], KCS, PF + 16)
        else: gelu(E, ACC[1], KCS, sAB[2], sBLKS, "actS")
        self.stamp(E, "q")
        X = Stream()
        X.waittok("stats")
        t = f"v_xor_b32 {v(vT0)}, {v(vTAG)}, {v(ST+5)}\nv_xor_b32 {v(vT1)}, {v(vTAG)}, {v(ST+7)}\n"
        for r in (9, 13):
            t += f"v_xor_b32 {v(vFL)}, {v(vTAG)}, {v(ST+r)}\nv_xor_b32 {v(vFL+1)}, {v(vTAG)}, {v(ST+r+2)}\nv_or3_b32 {v(vT0)}, {v(vT0)}, {v(vFL)}, {v(vFL+1)}\n"
        spin(X, t + f"v_cmp_ne_u64 vcc, 0, {v(vT0,2)}", "\n".join(stats_ld(i, sA) for i in range(1, 4)), "stok")
        for i in range(1, 4): stat_consts(X, i); X.mark("c%d" % i)
        def select(st, i):
            for r in range(3): st(f"v_cndmask_b32 {v(CBS+r)}, {v(ST+4*i+r)}, {v(ST+4*i+4+r)}, {sPAR}")
        select(X, 0); X(f"v_mov_b32 {v(CBS+3)}, 0")
        X(f"s_mul_i32 {sE0}, {sTT}, {2*TBSTR}\ns_add_u32 {sE0}, {sE0}, {WS_ACT}")
        X.mark("e1s")
        X2 = Stream()
        X2.need("kvp"); flag(X2, a_fl1 if att else a_fl2(0), "kvp" if att else "actP")
        X.need("cs"); corr_a(X, 1); X.mark("c4")
        X.need("cb4"); select(X, 2); X.mark("c5")
        S = Stream()
        C = Stream()
        KR = vJ
        S(f"s_and_b32 {sE1}, s98, 0x8000")
        for i in range(4): S(f"v_add_u32 {v(KR+i)}, {sE1}, {v(vXR+i)}")
        S.need("xl1")
        for ks in range(32): S(f"ds_read_b128 {ag(128+4*ks,4)}, {v(KR+(ks&3))} offset:{(ks>>2)*4096}", tok="kr")
        S.need("u1r"); S.waittok("kr"); S("s_barrier"); S.mark("k")
        S.need("sl")
        S(f"v_add_u32 {v(vWB)}, {R[4]}, {v(vWR)}\nv_add_u32 {v(vWB+1)}, {R[4]}, {v(vWR+1)}")
        for half in range(2):
            for ks in range(16 * half, 16 * half + 16):
                S.need(("pd", 3, ks))
                for e in range(2): S(f"ds_read_b64_tr_b16 {ag(4*ks+2*e,2)}, {v(vSR)} offset:{(ks&15)*2048+e*512}", tok=("sr", ks))
                if ks % 4 == 3:
                    S.mark("sr%d" % ks); C.need("sr%d" % ks); C.waittok(("sr", ks))
                    if ks == 3: C.need("kvp" if att and o["prio"] else "m3")
                    for k2 in range(ks - 3, ks + 1): C(f"{MF16} {v(CS,4)}, {v(CSEL,4)}, {ag(4*k2,4)}, {v(CS,4) if k2 else 0}")
                if ks == 15: S(f"v_subrev_u32 {v(vSR)}, {R[4]}, {v(vSR)}")
                if ks == 19: S.waittok(("sr", 15)); S("s_barrier"); S.mark("sa")
        S.waittok(("sr", 31)); S("s_barrier"); S.mark("sb")
        C.mark("cs")
        if att and o["prio"]: S.need("kvp")
        for b in range(nE):
            S.need(("pd", 4, 4 * b + 3)); wread(S, b)
            if b: S.waittok(("wr", b - 1)); S.mark("wr%d" % (b - 1))
        S.waittok(("wr", nE - 1)); S.mark("wr%d" % (nE - 1))
        B(f"buffer_load_dwordx4 {v(XR,4)}, {v(vOUT)}, {sX}, {sPCOL} offen")
        B(f"s_add_u32 {sM}, {sPCOL}, 8192\nbuffer_load_dwordx4 {v(XR+4,4)}, {v(vOUT)}, {sX}, {sM} offen", "res")
        dma_s(0, None)
        warm2(range(o["wpos"])); dma_s(1, "k")
        def wafter(b): return "k" if b < 2 else "sa" if b < 4 else "sb" if b < 6 else "wr%d" % (b - 6) if b < 14 else "r5"
        nB = o.get("nB", 14)
        for b in range(nB):
            if att and b == o.get("nK", 12): fl_bg(sFK, 0, "fK", "kvl")
            dma_w(b, wafter(b))
            if b == 1: warm2(range(o["wpos"], 4))
        if att and nB <= o.get("nK", 12): fl_bg(sFK, 0, "fK", "kvl")
        late = list(range(nB, 15))

        AC2 = 0; AF = 64; NB = 4
        def act(bb, after):
            r, i = blk(bb)
            if bb == 10: pre = f"s_cmp_eq_u32 {r}, 43\ns_cselect_b32 {sM}, {sBS[0]}, {r}\ns_lshl_b32 {sM}, {sM}, 11\ns_add_u32 {sM}, {sM}, {sE0}"
            elif r: pre = f"s_lshl_b32 {sM}, {r}, 11\ns_add_u32 {sM}, {sM}, {sE0}"
            else: pre = f"s_add_u32 {sM}, {sW8K}, {sE0}"; i += 43
            if i: pre += f"\ns_add_u32 {sM}, {sM}, {2048*i}"
            pre += f"\ns_add_u32 {sN}, {sM}, {TBSTR}"
            f = AF + 16 * (bb % NB)
            for stp in range(2):
                for tb in range(2):
                    aft = after if (after and stp == 0) else ("mm", bb - NB, stp) if bb >= NB else None
                    B(f"{pre}\nbuffer_load_dwordx4 {ag(f+8*stp+4*tb,4)}, {v(vL16)}, {sWS}, {sN if tb else sM} offen offset:{1024*stp} sc1", ("act", bb, stp), aft)
                    pre = ""
        fO = o["fO"] if att else o["fOf"]; fS = o["fSa"] if att else o["fS"]
        def acts():
            for bb in range(15):
                if bb == fS: fl_bg(sFL, 256, "fS", "fP")
                if bb == fO: fl_bg(sFL, 512, "fO", "fa8")
                act(bb, {0: "fP", 8: "fS", 11: "fO"}.get(bb))
        assert fS >= 5 and fO >= 8
        s = Stream()
        if not att:
            fl_bg(sFL, 0, "fP", "r5")
            for b in late: dma_w(b, wafter(b))
            acts()
            X2.need("m5"); fl_check(X2, sFL, 0, "fP")
            tl.sched(M, [X, X2, S, C, E], nds=o.get("nds", 2))
            self.stamp(s, "o")
        else:
            Z = ST + 8; ZT = F8a; KA = XF
            X2.need("sb")
            X2(f"s_lshl_b32 {sD}, {sHD}, 15\ns_add_u32 {sD}, {sD}, {WS_KVP}")
            X2(f"v_and_b32 {v(vXD0)}, 0x30, v0\nv_lshl_add_u32 {v(vSR)}, {v(vFA)}, 8, {v(vXD0)}\nv_add_u32 {v(vSR)}, {sD}, {v(vSR)}\nv_add_u32 {v(vJ)}, {sD}, {v(vL16)}")
            X2.need("c5")
            fl_check(X2, sFK, 0, "fK")
            X2(f"v_and_b32 {v(vFA)}, 0x38, {v(vFA)}"); X2.mark("gat")
            gsp = o.get("gsp", 56)
            B(f"buffer_load_dwordx4 {v(Z,4)}, {v(vSR)}, {sWS}, 0 offen offset:1024 sc1", "z", "gat", sp=gsp)
            for p in range(16):
                pre = "" if p % 2 else f"s_lshl_b32 {sM}, {sROT if o.get('grot', 1) else 0}, 12" if p == 0 else f"s_add_u32 {sM}, {sM}, 0x1000\ns_and_b32 {sM}, {sM}, 0x7000"
                B(f"{pre}\nbuffer_load_dwordx4 {ag(4*p,4)}, {v(vJ)}, {sWS}, {sM} offen offset:{(p%2)*KVREC} sc1", ("g", p), ("pd", 5, p), sp=gsp)
            nL = o.get("nL", 0)
            for b in late[:nL]: dma_w(b, wafter(b))
            fl_bg(sFL, 0, "fP", None)
            for b in late[nL:]: dma_w(b, wafter(b))
            acts()
            X2.waittok("z")
            for i in range(4): X2(f"v_lshlrev_b32 {v(ZT+2*i)}, 16, {v(Z+i)}\nv_and_b32 {v(ZT+2*i+1)}, 0xffff0000, {v(Z+i)}")
            for m in ("quad_perm:[1,0,3,2]", "quad_perm:[2,3,0,1]", "row_half_mirror", "row_mirror"):
                for i in range(8): X2(f"v_add_f32_dpp {v(ZT+i)}, {v(ZT+i)}, {v(ZT+i)} {m} {DPPM}")
            for i in range(4): X2(f"v_cvt_pk_bf16_f32 {v(Z+i)}, {v(ZT+2*i)}, {v(ZT+2*i+1)}")
            X2(f"s_add_u32 {sD}, {sW16K}, {R[2]+4096}\ns_xor_b32 {sA}, {sD}, 0x4000")
            X2(f"v_add_u32 {v(vT0)}, {sD}, {v(vL16)}\nv_add_u32 {v(vT1)}, {sD}, {v(vXD0)}")
            F4x = CA[0]
            X2(f"v_add_u32 {v(F4x)}, {sD}, {v(vKA)}\nv_add_u32 {v(F4x+1)}, {sD}, {v(vKA+1)}\nv_add_u32 {v(F4x+2)}, {sA}, {v(vKA)}\nv_add_u32 {v(F4x+3)}, {sA}, {v(vKA+1)}")
            X2.need("r5"); X2(f"ds_write_b128 {v(vT1)}, {v(Z,4)} offset:1024")
            X2.need("m5"); fl_check(X2, sFL, 0, "fP")
            G = Stream(); G.need("m5")
            for p in range(16):
                if p % 2 == 0: G.waittok(("g", p + 1))
                G(f"{MF} {v(KA,16)}, {v(SEL[0],4)}, {ag(4*p,4)}, {v(KA,16) if p else 0}")
            for i in range(4): G(f"v_cvt_pk_bf16_f32 {v(KA+16+i)}, {v(KA+2*i)}, {v(KA+2*i+1)}")
            tl.sched(M, [X, X2, S, C, G, E], nds=o.get("nds", 2))
            s(f"ds_write_b128 {v(vT0)}, {v(KA+16,4)}")
            s("s_waitcnt lgkmcnt(0)\ns_barrier"); self.stamp(s, "kvx")
            KF = TA
            for i in range(4): s(f"ds_read_b128 {v(KF+4*i,4)}, {v(F4x+i)}")
            s(f"s_add_u32 {sA}, {sHD}, 86\ns_lshl_b32 {sA}, {sA}, 10\ns_xor_b32 {sD}, {sA}, 1024")
            accs = [ACC[0], ACC[1], XF, XF + 16]
            def omm(n):
                un, hs = n >> 1, n & 1; A = accs[n]; pf = PF + 16 * un + 8 * hs
                return [f"{MF} {v(A,16)}, {v(KF+8*hs,4)}, {v(pf,4)}, 0", f"{MF} {v(A,16)}, {v(KF+8*hs+4,4)}, {v(pf+4,4)}, {v(A,16)}"]
            Mo = []
            for n in range(4):
                for k, x in enumerate(omm(n)):
                    g = Stream(); g(x)
                    if k: g.mark("om%d" % n)
                    Mo.append(g)
            O = Stream()
            for n in range(4):
                un, hs = n >> 1, n & 1; A = accs[n]
                O.need("om%d" % n)
                O(f"v_add_f32 {v(A+8)}, {f2u(1e-6)}, {v(A+8)}\nv_rcp_f32 {v(A+8)}, {v(A+8)}")
                O(f"s_add_u32 {sB}, {sAB[2*un]}, {sD if hs else sA}")
                for i in range(8): O(f"v_mul_f32 {v(A+i)}, {v(A+i)}, {v(A+8)}")
                for i in range(4): O(f"v_cvt_pk_bf16_f32 {v(A+12+i)}, {v(A+2*i)}, {v(A+2*i+1)}")
                O(f"buffer_store_dwordx4 {v(A+12,4)}, {v(vL16)}, {sWS}, {sB} offen sc1", tok="actO")
            tl.straight(s); tl.sched(Mo, [O]); s = Stream(); s("s_barrier")
            self.stamp(s, "o")
        tl.straight(s)
        M = []
        for bb in range(15):
            f = AF + 16 * (bb % NB)
            for stp in range(2):
                for tb in range(2):
                    for cb in range(2):
                        g = Stream()
                        if (stp, tb, cb) == (0, 0, 0):
                            if bb == fS: g.need("pub"); fl_check(g, sFL, 256, "fS"); g.mark("fa8")
                            if bb == fO: g.need("pub"); fl_check(g, sFL, 512, "fO")
                            if bb >= nE: g.need("wq%d" % bb); g.waittok(("wr", bb), lat=0)
                        if (tb, cb) == (0, 0): g.waittok(("act", bb, stp), ahead=o["ah2"], lat=0)
                        A = AC2 + 32 * tb + 16 * cb
                        g(f"{MF} {ag(A,16)}, {ag(128+16*(bb%8)+8*stp+4*cb,4)}, {ag(f+8*stp+4*tb,4)}, {ag(A,16) if (bb or stp) else 0}")
                        if (tb, cb) == (1, 1):
                            g.mark(("mm", bb, stp))
                            if stp: self.stamp(g, "mm%d" % bb)
                        M.append(g)
        W = Stream()
        W(f"s_add_u32 {sE1}, {sW8K}, {R[2]}\nv_add_u32 {v(vXR)}, {sE1}, {v(vWR)}\nv_add_u32 {v(vXR+1)}, {sE1}, {v(vWR+1)}")
        for b in range(nE, 15):
            if b >= 8: W.need(("mm", b - 8, 1))
            wread(W, b); W.mark("wq%d" % b)
        X = Stream()
        flag(X, a_fl2(2 if att else 1), "actO" if att else "actS")
        X.mark("pub"); X.need(("mm", 3, 1))
        X(f"v_lshrrev_b32 {v(vT0)}, 4, v0\nv_and_b32 {v(vT0)}, 2, {v(vT0)}\nv_and_b32 {v(vT1)}, 7, v0\nv_xor_b32 {v(vT0)}, {v(vT0)}, {v(vT1)}")
        X(f"v_add_lshl_u32 {v(vT0)}, {v(vN16)}, {v(vT0)}, 4\ns_add_u32 {sA}, {sW16K}, {R[2]}\nv_add_u32 {v(RW)}, {sA}, {v(vT0)}")
        for k in range(1, 4): X(f"v_xor_b32 {v(RW+k)}, {64*(k>>1)+16*(k&1)}, {v(RW)}")
        X(f"v_lshrrev_b32 {v(vT0)}, 3, v0\nv_lshlrev_b32 {v(vT1)}, 1, {v(vT1)}\nv_xor_b32 {v(vT1)}, {v(vT1)}, {v(vT0)}\nv_lshlrev_b32 {v(vT1)}, 4, {v(vT1)}")
        X(f"s_lshl_b32 {sA}, {sWV}, 12\ns_add_u32 {sA}, {sA}, {R[2]}\nv_lshl_add_u32 {v(vT0)}, {v(vT0)}, 8, {v(vT1)}\nv_add_u32 {v(RR)}, {sA}, {v(vT0)}\nv_xor_b32 {v(RR+1)}, 16, {v(RR)}")
        Y = ACC[0]; Pp = ACC[1]
        for it in range(2):
            for i in range(4):
                X(f"v_lshlrev_b32 {v(Y+8*it+2*i)}, 16, {v(XR+4*it+i)}\nv_and_b32 {v(Y+8*it+2*i+1)}, 0xffff0000, {v(XR+4*it+i)}")
        for i in range(4):
            X(f"v_lshlrev_b32 {v(vT0)}, 16, {v(B2+i)}\nv_and_b32 {v(vT3)}, 0xffff0000, {v(B2+i)}")
            for it in range(2):
                X(f"v_add_f32 {v(Y+8*it+2*i)}, {v(Y+8*it+2*i)}, {v(vT0)}\nv_add_f32 {v(Y+8*it+2*i+1)}, {v(Y+8*it+2*i+1)}, {v(vT3)}")
        X(f"s_add_u32 {sB}, {sPCOL}, 8192")
        tl.sched(M, [X, W])
        s = Stream()
        for tb in range(2):
            for cb in range(2):
                for k in range(4):
                    s(f"ds_write_b128 {v(RW+k)}, {ag(AC2+32*tb+16*cb+4*k,4)} offset:{tb*8192+cb*128}")
        s("s_waitcnt lgkmcnt(0)\ns_barrier"); self.stamp(s, "red")
        for it in range(2):
            for pw in range(4):
                for k in range(2): s(f"ds_read_b128 {v(Pp+32*it+8*pw+4*k,4)}, {v(RR+k)} offset:{pw*16384+it*2048}")
        for it in range(2):
            for pw in range(4):
                for i in range(0, 8, 2): s(f"v_pk_add_f32 {v(Y+8*it+i,2)}, {v(Y+8*it+i,2)}, {v(Pp+32*it+8*pw+i,2)}")
            for i in range(4): s(f"v_cvt_pk_bf16_f32 {v(XR+4*it+i)}, {v(Y+8*it+2*i)}, {v(Y+8*it+2*i+1)}")
            s(f"buffer_store_dwordx4 {v(XR+4*it,4)}, {v(vOUT)}, {sOut}, {sB if it else sPCOL} offen{' sc1' if o['outsc1'] else ''}")
        if att:
            noe = self.lab("noe")
            s(f"s_or_b32 {sA}, s2, {sWV}\ns_cmp_lg_u32 {sA}, 0\ns_cbranch_scc1 {noe}")
            s(f"s_mov_b64 exec, 1\nbuffer_store_dword {v(vTAG)}, {v(vZ)}, {sWS}, 0 offen sc1\ns_mov_b64 exec, -1", cond=True)
            s(noe + ":")
        if o.get("probe"):
            lp = self.lab("pad")
            s("s_waitcnt vmcnt(0)"); self.stamp(s, "end")
            s(f"s_waitcnt lgkmcnt(0)\ns_sub_u32 s60, s60, s100\ns_add_u32 s60, s60, 4000")
            s(f"{lp}:\ns_memrealtime s[64:65]\ns_waitcnt lgkmcnt(0)\ns_sub_u32 s64, s64, s100\ns_cmp_lt_u32 s64, s60\ns_cbranch_scc1 {lp}")
        elif o["stamps"]:
            s("s_waitcnt vmcnt(0)\ns_memrealtime s[64:65]\ns_waitcnt lgkmcnt(0)")
            s(f"s_lshl2_add_u32 {sA}, s2, {sWV}\ns_lshl_b32 {sA}, {sA}, 6\ns_add_u32 {sA}, {sA}, {WS_STAMP}")
            for i, r in enumerate(["s100"] + ["s%d" % k for k in STAMPR] + ["s64"]):
                s(f"v_mov_b32 {v(vT1)}, {r}\nbuffer_store_dword {v(vT1)}, {v(vZ)}, {sWS}, {sA} offen offset:{4*i}")
        tl.straight(s)
        assert tl.bi == len(tl.bg)
        tl.log.append("end t=%d forced=%d" % (tl.t, tl.forced))
        if o["log"]: sys.stderr.write("\n".join(role + " " + x for x in tl.log) + "\n")
        return tl.out

    def build(self):
        outs = {}
        for role in ("att", "ffn"):
            st = {}
            outs[role] = finalize(self.role(role), st)
            sys.stderr.write("%s: %s\n" % (role, st))
        ia, jf = outs["att"].index("L_split:"), outs["ffn"].index("L_split:")
        assert outs["att"][:ia] == outs["ffn"][:jf], "common start differs"
        text = outs["att"][:ia] + outs["att"][ia + 1:] + ["s_endpgm", ".p2align 6", "L_ffn:"] + outs["ffn"][jf + 1:] + ["L_end:", "s_endpgm"]
        body = "\n".join(t if t.endswith(":") else "    " + t for t in text) + "\n"
        hdr = ["Fused LayerNorm + hedgehog linear attention + GELU FFN + residual, one persistent launch (generated by my own script).",
               "@launch grid=(256,1,1) block=(256,1,1) lds=163840"]
        return module(hdr, [(NAME + "_kernel", body, 512, 256)])

if __name__ == "__main__":
    opt = {}
    for x in sys.argv[2:]:
        k, _, val = x.partition("=")
        opt[k] = (int(val) if val.lstrip("-").isdigit() else val) if val else True
    open(sys.argv[1], "w").write(Gen(**opt).build())
```

```python
import re

TRANS = ("v_exp_f32", "v_log_f32", "v_rcp_f32", "v_rsq_f32", "v_sqrt_f32", "v_sin_f32", "v_cos_f32")
REG = re.compile(r"^(-|abs\()?([vas])(?:(\d+)|\[(\d+):(\d+)\])\)?$")

def regs_of(op):
    op = op.strip()
    if op in ("vcc",): return [("s", "vcc_lo"), ("s", "vcc_hi")]
    if op in ("vcc_lo", "vcc_hi", "m0"): return [("s", op)]
    if op == "exec": return [("s", "exec")]
    m = REG.match(op)
    if not m: return []
    t = m.group(2)
    if m.group(3) is not None: return [(t, int(m.group(3)))]
    return [(t, i) for i in range(int(m.group(4)), int(m.group(5)) + 1)]

class Ins:
    __slots__ = ("text", "op", "kind", "rd", "wr", "srcc", "passes", "tok", "cond", "cost", "wide_store", "sdata", "glue", "ahead", "lat")
    def __init__(self, text, tok=None, cond=False):
        self.text = text.strip(); self.tok = tok; self.cond = cond; self.glue = cond; self.ahead = 0; self.lat = None
        self.rd = []; self.wr = []; self.srcc = []; self.passes = 0; self.wide_store = False; self.sdata = []
        t = self.text.split(";")[0].strip()
        if t.endswith(":") or t.startswith("."):
            self.op = t; self.kind = "label"; self.cost = 0; return
        parts = t.split(None, 1)
        op = self.op = parts[0]
        rest = parts[1] if len(parts) > 1 else ""
        ops = [x.strip() for x in rest.split(",")] if rest else []
        mods = ""
        if ops:
            sp = ops[-1].split(None, 1)
            ops[-1] = sp[0]; mods = sp[1] if len(sp) > 1 else ""
        if "[" in rest and re.search(r"(quad_perm|op_sel|op_sel_hi|neg_lo|neg_hi):\[", rest):
            cut = re.search(r"\s(quad_perm|op_sel|op_sel_hi|neg_lo|neg_hi|row_|bank_mask|bound_ctrl)", rest).start()
            ops = [x.strip() for x in rest[:cut].split(",")]; mods = rest[cut:]
        R = [regs_of(o) for o in ops]
        flat = lambda l: [r for x in l for r in x]
        self.cost = 1
        if op.startswith("v_mfma"):
            self.kind = "mfma"; self.wr = R[0]; self.rd = flat(R[1:]); self.srcc = R[3]
            self.passes = 8 if "32x32" in op else 4
            self.cost = 2
        elif op.startswith("v_cmp"):
            self.kind = "valu"; self.wr = R[0]; self.rd = flat(R[1:])
        elif op.startswith("v_permlane"):
            self.kind = "valu"; self.wr = R[0] + R[1]; self.rd = R[0] + R[1]
        elif op.startswith("v_"):
            self.kind = "trans" if op.replace("_e32", "").replace("_e64", "") in TRANS else "valu"
            if self.kind == "trans": self.cost = 2
            self.wr = R[0]; self.rd = flat(R[1:])
            if op.startswith(("v_add_co", "v_addc_co", "v_sub_co", "v_subb_co")):
                self.wr = R[0] + R[1]; self.rd = flat(R[2:])
            if op.startswith(("v_fmac", "v_dot2c", "v_writelane")) or "_dpp" in op or "_sdwa" in op:
                self.rd = self.rd + R[0]
        elif op.startswith("ds_read") or op.startswith("ds_bpermute"):
            self.kind = "dsr"; self.wr = R[0]; self.rd = flat(R[1:])
        elif op.startswith("ds_"):
            self.kind = "dsw"; self.rd = flat(R)
        elif op.startswith(("buffer_load", "global_load")):
            if " lds" in (" " + mods) or op.startswith("global_load_lds"):
                self.kind = "dma"; self.rd = flat(R) + [("s", "m0")]
            else:
                self.kind = "vld"; self.wr = R[0]; self.rd = flat(R[1:])
                if "d16" in op: self.rd = self.rd + R[0]
        elif op.startswith(("buffer_store", "global_store")):
            self.kind = "vst"; self.rd = flat(R)
            self.sdata = R[0] if op.startswith("buffer") else R[1]
            self.wide_store = op.endswith(("x3", "x4"))
        elif op.startswith(("s_load", "s_memtime", "s_memrealtime")):
            self.kind = "smem"; self.wr = R[0]; self.rd = flat(R[1:])
        elif op == "s_waitcnt": self.kind = "wait"
        elif op == "s_nop": self.kind = "nop"
        elif op == "s_barrier": self.kind = "barrier"
        elif op.startswith(("s_cbranch", "s_branch", "s_endpgm", "s_sleep", "s_setprio")):
            self.kind = "ctl"
            if "vcc" in op: self.rd = regs_of("vcc")
        elif op.startswith(("s_cmp", "s_bitcmp")):
            self.kind = "salu"; self.rd = flat(R)
        elif op.startswith("s_"):
            self.kind = "salu"; self.wr = R[0]; self.rd = flat(R[1:])
            if "saveexec" in op: self.wr = self.wr + [("s", "exec")]
        elif op == "WAITTOK":
            self.kind = "waittok"; self.cost = 1
        elif op == "MARK":
            self.kind = "gap"; self.cost = 0
        elif op == "GAP":
            self.kind = "gap"; self.cost = 0
        else:
            raise ValueError("unknown instruction: " + text)
        if op.startswith("v_cndmask") and len(ops) == 3: self.rd = self.rd + regs_of("vcc")

class Stream(list):
    def __call__(self, s, tok=None, cond=False, glue=False):
        l = [Ins(x, tok, cond) for x in s.split("\n") if x.strip()]
        if glue:
            for i in l[:-1]: i.glue = True
        self.extend(l)
        return self
    def waittok(self, *toks, ahead=0, lat=None):
        i = Ins("WAITTOK"); i.tok = toks; i.ahead = ahead; i.lat = lat; self.append(i)
    def need(self, name):
        i = Ins("MARK"); i.op = "NEED"; i.tok = name; self.append(i)
    def mark(self, name):
        i = Ins("MARK"); i.tok = name; self.append(i)
    def gap(self, n):
        i = Ins("GAP"); i.tok = n; self.append(i)

VM = ("vld", "vst", "dma")
class Haz:
    def __init__(self):
        self.last_w = {}; self.last_c = {}; self.last_sd = {}
    def need(self, ins, pos):
        last_w, last_c, last_sd = self.last_w, self.last_c, self.last_sd
        k = ins.kind
        need = 0
        def dist(p, n):
            nonlocal need
            need = max(need, n - (pos - p - 1))
        isv = k in ("valu", "trans")
        for r in ins.rd:
            if r not in last_w: continue
            p, pk, ps, pi = last_w[r]
            if pk == "mfma":
                if k == "mfma":
                    if r in ins.srcc and pi.wr == ins.srcc and ps == ins.passes and ins.rd.count(r) == 1: pass
                    elif r in ins.srcc and ins.rd.count(r) == 1: dist(p, ps + 2)
                    else: dist(p, ps + 4)
                else: dist(p, ps + 4)
            elif pk in ("valu", "trans"):
                if r[0] in "va":
                    if k == "mfma": dist(p, 2)
                    if pk == "trans" and isv: dist(p, 1)
                    if "_dpp" in ins.op or ins.op.startswith("v_permlane"): dist(p, 2)
                    if ins.op.startswith(("v_readlane", "v_readfirstlane")): dist(p, 1)
                    if pi.op.startswith("v_dot") and not (pi.op == ins.op and ins.rd.count(r) == 1 and r in ins.wr): dist(p, 3)
                    if ("sdwa" in pi.op or "op_sel" in pi.text) and isv: dist(p, 1)
                else:
                    if k in VM: dist(p, 5)
                    elif isv: dist(p, 4 if ins.op.startswith(("v_readlane", "v_writelane")) else 2)
                    elif k in ("salu", "ctl", "smem"): dist(p, 4)
            elif pk == "salu":
                if r == ("s", "m0") and k == "dma": dist(p, 1)
        for r in ins.wr:
            if r in last_w:
                p, pk, ps, pi = last_w[r]
                if pk == "mfma" and k != "mfma": dist(p, ps + 4)
                if pk == "mfma" and k == "mfma" and not (pi.wr == ins.wr and ps == ins.passes): dist(p, ps + 4)
                if pi.op.startswith("v_dot") and pi.op != ins.op: dist(p, 3)
            if r in last_c and k != "mfma":
                p, ps = last_c[r]; dist(p, ps - 1)
            if r in last_sd: dist(last_sd[r], 2)
        if ("s", "exec") in last_w and last_w[("s", "exec")][1] in ("valu", "trans"):
            raise ValueError("VALU exec write not modelled")
        return need
    def commit(self, ins, pos):
        for r in ins.wr: self.last_w[r] = (pos, ins.kind, ins.passes, ins)
        if ins.kind == "mfma":
            for r in ins.srcc: self.last_c[r] = (pos, ins.passes)
        if ins.wide_store:
            for r in ins.sdata: self.last_sd[r] = pos

def finalize(stream, stats=None):
    out = []
    vm_n = 0; lg_n = 0
    vm_done = 0; lg_done = 0
    pend_vm = {}; pend_lg = {}
    smem_pend = set()
    toks = {}
    pos = 0
    hz = Haz()
    nnop = 0; nwait = 0
    def emit(t):
        out.append(t)
    for ins in stream:
        k = ins.kind
        if k == "gap": continue
        if k == "label":
            emit(ins.text); continue
        need_vm = None; need_lg = None
        if k == "waittok":
            for t in ins.tok:
                c, idx = toks[t]
                if c == "vm": need_vm = max(need_vm or 0, idx)
                else: need_lg = max(need_lg or 0, idx)
        else:
            for r in ins.rd + ins.wr:
                if r in pend_vm: need_vm = max(need_vm or 0, pend_vm[r])
                if r in pend_lg: need_lg = max(need_lg or 0, pend_lg[r])
                if r in smem_pend: need_lg = 1 << 30
            if k == "vld" and "d16" in ins.op:
                need_vm = None
                for r in ins.rd:
                    if r in pend_vm and r not in ins.wr: need_vm = max(need_vm or 0, pend_vm[r])
        w = []
        if need_vm is not None and need_vm > vm_done:
            n = min(vm_n - need_vm, 63); w.append("vmcnt(%d)" % n)
            if not ins.cond: vm_done = vm_n - n
        if need_lg is not None and (need_lg > lg_done or need_lg == 1 << 30):
            if smem_pend or need_lg == 1 << 30: n = 0
            else: n = min(lg_n - need_lg, 15)
            w.append("lgkmcnt(%d)" % n)
            if not ins.cond:
                lg_done = lg_n - n
                if n == 0: smem_pend = set()
        if w:
            emit("s_waitcnt " + " ".join(w)); nwait += 1
            if not ins.cond: pos += 1
        pend_vm = {r: i for r, i in pend_vm.items() if i > vm_done}
        pend_lg = {r: i for r, i in pend_lg.items() if i > lg_done}
        if k == "waittok": continue
        if k == "wait":
            if not ins.cond:
                m = re.search(r"vmcnt\((\d+)\)", ins.text)
                if m: vm_done = max(vm_done, vm_n - int(m.group(1)))
                m = re.search(r"lgkmcnt\((\d+)\)", ins.text)
                if m:
                    if int(m.group(1)) == 0: smem_pend = set(); lg_done = lg_n
                    elif not smem_pend: lg_done = max(lg_done, lg_n - int(m.group(1)))
                pend_vm = {r: i for r, i in pend_vm.items() if i > vm_done}
                pend_lg = {r: i for r, i in pend_lg.items() if i > lg_done}
        need = hz.need(ins, pos)
        while need > 0:
            n = min(need, 16); emit("s_nop %d" % (n - 1)); nnop += n; need -= n
            if not ins.cond: pos += n
        emit(ins.text)
        hz.commit(ins, pos)
        if not ins.cond:
            if k in VM:
                vm_n += 1
                for r in ins.wr: pend_vm[r] = vm_n
                if ins.tok is not None: toks[ins.tok] = ("vm", vm_n)
            elif k in ("dsr", "dsw"):
                lg_n += 1
                for r in ins.wr: pend_lg[r] = lg_n
                if ins.tok is not None: toks[ins.tok] = ("lg", lg_n)
            elif k == "smem":
                smem_pend |= set(ins.wr)
            if k == "nop": pos += int(ins.text.split()[1]) + 1
            else: pos += 1
    if stats is not None:
        stats["nops"] = nnop; stats["waits"] = nwait; stats["n"] = len(out)
    return out

def merge(main, fill, budget=None, out=None, minb=7.0):
    out = Stream() if out is None else out
    if budget is None:
        tot = sum(i.cost for g in main for i in g) + sum(i.cost for i in fill)
        nm = len(main) + sum(1 for i in fill if i.kind == "mfma")
        budget = max(minb, tot / nm + 0.15)
    fi = 0; gap = 0; credit = 0.0
    for g in main:
        c = 0
        for ins in g:
            out.append(ins); c += ins.cost
            if ins.cost: gap = max(0, gap - 1)
        credit += budget - c
        while fi < len(fill) and (credit > 0 or (fi and fill[fi - 1].glue)):
            f = fill[fi]
            if f.op == "GAP":
                gap = f.tok; fi += 1; continue
            if gap > 0: break
            out.append(f); fi += 1
            if f.kind == "mfma": credit += budget - f.cost
            else: credit -= f.cost
        if fi >= len(fill): credit = min(credit, 0.0)
        elif gap > 0: credit = min(credit, 4.0)
    rest = Stream(fill[fi:])
    return out, rest

class Bg:
    def __init__(self, text, tok=None, after=None, sp=None):
        self.ins = Stream(); self.ins(text, tok=tok); self.tok = tok; self.after = after; self.sp = sp

SCC_USERS = ("s_cbranch_scc", "s_cselect", "s_addc", "s_subb")
def weave(fg, bg, spacing=66, log=None):
    out = Stream(); marks = set(); bi = 0; t = 0.0; pipe = 0.0; last = -1e9
    lasttok = {}
    for k, b in enumerate(bg):
        if b.tok is not None: lasttok[b.tok] = k
    issued_t = {}
    def ready(): return bi < len(bg) and (bg[bi].after is None or bg[bi].after in marks)
    def emit_bg(forced=False):
        nonlocal bi, t, last
        b = bg[bi]
        if forced: t = max(t, last + (b.sp or spacing))
        out.extend(b.ins); t += 4 * len(b.ins); last = t; issued_t[bi] = t; bi += 1
    n = len(fg)
    for idx, ins in enumerate(fg):
        if ins.op == "MARK":
            marks.add(ins.tok)
            if log is not None: log.append("mark %s t=%d bg=%d" % (ins.tok, t, bi))
            continue
        if ins.kind == "waittok":
            ks = [lasttok[x] for x in ins.tok if x in lasttok]
            if ks:
                need = max(ks); nf = 0
                while bi <= need:
                    assert ready(), ("background op blocked", ins.tok, bg[bi].after)
                    emit_bg(True); nf += 1
                while bi <= need + ins.ahead and ready(): emit_bg(True)
                if log is not None: log.append("wait %s t=%d slack=%d forced=%d" % (ins.tok, t, t - issued_t[need], nf))
        out.append(ins)
        if ins.kind == "mfma":
            t = max(t, pipe); pipe = t + 4 * ins.passes; t += 8
        elif ins.op == "ds_read_b128": t += 6
        elif ins.kind == "nop": t += 4 * (int(ins.text.split()[1]) + 1)
        else: t += 4 * ins.cost
        if ins.kind in VM and not ins.cond: last = t
        if ins.glue or ins.kind == "label": continue
        nx = [x for x in fg[idx + 1:idx + 4] if x.kind != "gap"]
        if nx and (nx[0].cond or nx[0].kind == "label"): continue
        if any(x.op.startswith(SCC_USERS) for x in nx[:2]): continue
        if ready() and t >= last + (bg[bi].sp or spacing):
            inm = pipe > t - 40
            good = (not inm) or (ins.kind in ("mfma", "dsr") and not (nx and nx[0].kind == "dsr"))
            if good: emit_bg()
    assert bi == len(bg), "background ops left over"
    if log is not None: log.append("end t=%d" % t)
    return out


class TL:
    def __init__(self, spacing=66, vlat=650, llat=130):
        self.out = Stream(); self.bg = []; self.bi = 0; self.marks = set()
        self.t = 0.0; self.pipe = -1000.0; self.last = -1e9; self.pos = 0; self.hz = Haz()
        self.spacing = spacing; self.vlat = vlat; self.llat = llat
        self.tokt = {}; self.log = []; self.free = 0; self.forced = 0; self.ta = 0; self.lw = 0; self.watch = None; self.seen = set()
    def B(self, text, tok=None, after=None, sp=None): self.bg.append(Bg(text, tok, after, sp))
    def lastbg(self, tok):
        k = None
        for i, b in enumerate(self.bg):
            if b.tok == tok: k = i
        return k
    def bg_ready(self):
        return self.bi < len(self.bg) and (self.bg[self.bi].after is None or self.bg[self.bi].after in self.marks)
    def bg_due(self):
        if not self.bg_ready(): return False
        b = self.bg[self.bi]
        return self.t + 4 * (len(b.ins) - 1) >= self.last + (b.sp or self.spacing)
    def emit_bg(self, forced=False):
        b = self.bg[self.bi]; self.bi += 1
        for i in b.ins[:-1]: self.raw(i)
        self.raw(b.ins[-1])
    def raw(self, ins):
        n = self.hz.need(ins, self.pos)
        if n > 0 and not ins.cond: self.t += 4 * n; self.pos += n
        self.out.append(ins)
        self.hz.commit(ins, self.pos)
        if ins.cond or ins.kind == "label": return
        k = ins.kind
        if k == "mfma":
            self.t = max(self.t, self.pipe); self.pipe = self.t + 4 * ins.passes; self.t += 8; self.free = -1
        elif k in ("dsr", "dsw") or k in VM:
            if self.free == -1: self.t += 4; self.free = 1
            elif self.free == -2: self.t += 6; self.free = 0
            if ins.op == 'ds_write_b128': self.t = max(self.t, self.lw); self.lw = self.t + 52
            if k in VM:
                self.t = max(self.t, self.ta); self.ta = self.t + (64 if ins.op.endswith('x4') else 24); self.last = self.t
            self.t += 4
        elif k == "nop": self.t += 4 * (int(ins.text.split()[1]) + 1)
        elif k in ("salu", "wait", "waittok", "ctl", "smem", "barrier"):
            if self.free == 1: self.free = 0
            else: self.t += 4
            if k == "barrier": self.t += 12
        else:
            self.t += 4 * ins.cost
            if self.free != 1: self.free = -2
        if k == "nop": self.pos += int(ins.text.split()[1]) + 1
        elif k != "waittok": self.pos += 1
        if ins.tok is not None and k != "waittok": self.tokt[ins.tok] = (self.t, k in VM)
    def tok_time(self, ins):
        r = 0
        for x in ins.tok:
            k = self.lastbg(x)
            if (k is not None and k >= self.bi) or x not in self.tokt: return 1e18
            t0, vm = self.tokt[x]
            r = max(r, t0 + (ins.lat if ins.lat is not None else (self.vlat if vm else self.llat)))
        return r
    def tok_ready(self, ins):
        for x in ins.tok:
            k = self.lastbg(x)
            if k is not None and k >= self.bi: return False
            t0, vm = self.tokt[x]
            if self.t < t0 + (ins.lat if ins.lat is not None else (self.vlat if vm else self.llat)): return False
        return True
    def emit(self, ins):
        if ins.op == "MARK":
            self.marks.add(ins.tok); self.log.append("mark %s t=%d bg=%d" % (ins.tok, self.t, self.bi)); return
        if ins.op == "NEED":
            assert ins.tok in self.marks, ins.tok; return
        if ins.op == "GAP": return
        if ins.kind == "waittok":
            ks = [k for k in (self.lastbg(x) for x in ins.tok) if k is not None]
            nf = 0
            if ks:
                need = max(ks)
                while self.bi <= need:
                    assert self.bg_ready(), ("background op blocked", ins.tok, self.bg[self.bi].after)
                    self.emit_bg(True); nf += 1
                while self.bi <= need + ins.ahead and self.bg_ready(): self.emit_bg(True)
            t0 = max(self.tokt[x][0] for x in ins.tok); vm = any(self.tokt[x][1] for x in ins.tok)
            if vm: self.log.append("wait %s t=%d slack=%d forced=%d" % (ins.tok, self.t, self.t - t0, nf))
            self.t = max(self.t, t0 + (500 if vm else 100))
            nm = "".join(map(str, ins.tok[0])) if isinstance(ins.tok[0], tuple) else str(ins.tok[0])
            if self.watch and nm not in self.seen:
                self.seen.add(nm)
                a = self.watch("<" + nm); b = self.watch(">" + nm)
                if a: self.out.append(Ins(a))
                self.raw(ins)
                if b: self.out.append(Ins(b))
                return
        self.raw(ins)
    def straight(self, fg):
        for idx, ins in enumerate(fg):
            self.emit(ins)
            if ins.glue or ins.kind in ("label", "gap"): continue
            nx = [x for x in fg[idx + 1:idx + 4] if x.kind != "gap"]
            if nx and (nx[0].cond or nx[0].kind == "label"): continue
            if any(x.op.startswith(SCC_USERS) for x in nx[:2]): continue
            if self.bg_due():
                inm = self.pipe > self.t - 40
                if (not inm) or (ins.kind in ("mfma", "dsr") and not (nx and nx[0].kind == "dsr")): self.emit_bg()
    def sched(self, M, Fs, nds=2):
        mi = 0; fi = [0] * len(Fs)
        def head(k):
            F = Fs[k]
            while fi[k] < len(F):
                x = F[fi[k]]
                if x.op == "MARK": self.emit(x); fi[k] += 1
                elif x.op == "GAP" or (x.op == "NEED" and x.tok in self.marks): fi[k] += 1
                elif x.op == "NEED": return None
                else: return x
            return None
        def take(k):
            F = Fs[k]
            while True:
                x = F[fi[k]]; fi[k] += 1; self.emit(x)
                nxt = F[fi[k]] if fi[k] < len(F) else None
                if not (x.glue or x.kind == "label" or (nxt is not None and (nxt.cond or nxt.kind == "label" or nxt.op.startswith(SCC_USERS)))): break
            head(k)
        def ready(x):
            if x.kind == "waittok": return self.tok_ready(x)
            if x.op == "ds_write_b128" and max(self.t + 6, self.pipe) < self.lw: return False
            return self.hz.need(x, self.pos) <= 0
        def mstate():
            if mi >= len(M): return 0
            st = 2; npre = 0
            for x in M[mi]:
                if x.op == "NEED":
                    if x.tok not in self.marks: return 0
                elif x.kind == "waittok":
                    if not self.tok_ready(x): st = 1
                elif x.kind == "mfma":
                    if self.hz.need(x, self.pos + npre) > 0: st = 1
                    break
                elif x.kind != "gap": npre += 1
            return st
        def window(n):
            for k in range(len(Fs)):
                while n > 0:
                    x = head(k)
                    if x is not None and x.kind == "waittok" and ready(x) and fi[k] + 1 < len(Fs[k]) and Fs[k][fi[k] + 1].kind == "dsr":
                        take(k); continue
                    if x is None or x.kind not in ("dsr", "vst", "dsw") or not ready(x): break
                    take(k); n -= 2 if x.op == 'ds_read_b128' else 1
            if self.bg_due(): self.emit_bg()
        while True:
            hs = [head(k) for k in range(len(Fs))]
            if mi >= len(M) and all(fi[k] >= len(Fs[k]) for k in range(len(Fs))): break
            ms = mstate()
            fm = next((k for k, x in enumerate(hs) if x is not None and x.kind == "mfma" and ready(x)), None)
            def do_m():
                nonlocal mi
                for x in M[mi]: self.emit(x)
                mi += 1; window(nds + (0 if M[mi - 1][-1].kind == 'dsr' or any(y.kind == 'dsr' for y in M[mi - 1]) else 2))
            def do_fm():
                p = hs[fm].passes; take(fm); window(nds if p == 8 else 1)
            if self.t > self.pipe - 4:
                if fm is not None: do_fm(); continue
                if ms == 2: do_m(); continue
            f = next((k for k, x in enumerate(hs) if x is not None and x.kind not in ("mfma", "dsr", "vst", "dsw") and ready(x)), None)
            idle = ms != 2 and fm is None
            if idle and (f is None or mi >= len(M)):
                f = next((k for k, x in enumerate(hs) if x is not None and x.kind != "mfma" and ready(x)), None)
            if f is not None:
                take(f)
                if idle and self.pipe <= self.t and self.bg_due(): self.emit_bg()
                continue
            if True:
                nd = [self.hz.need(x, self.pos) for x in hs if x is not None and x.kind != "waittok"]
                nd = [n for n in nd if n > 0]; room = int((self.pipe - self.t) // 4)
                if nd and room >= 1:
                    self.raw(Ins("s_nop %d" % (min(min(nd), room) - 1))); continue
            if fm is not None: do_fm(); continue
            if ms == 2: do_m(); continue
            f = next((k for k, x in enumerate(hs) if x is not None and x.kind != "waittok"), None)
            if f is not None: self.forced += 1; take(f); continue
            if self.bg_ready(): self.emit_bg(True); continue
            cand = [(self.tok_time(x), k) for k, x in enumerate(hs) if x is not None]
            if ms == 1: cand.append((max([self.tok_time(x) for x in M[mi] if x.kind == "waittok"] + [0]), -1))
            assert cand, ("schedule is stuck", mi, [Fs[k][fi[k]].tok for k in range(len(Fs)) if fi[k] < len(Fs[k])])
            tt, f = min(cand)
            assert tt < 1e17, ("schedule is stuck", mi, [Fs[k][fi[k]].tok for k in range(len(Fs)) if fi[k] < len(Fs[k])], self.bg[self.bi].after)
            if tt > self.t: self.log.append("idle %d at t=%d" % (tt - self.t, self.t)); self.t = tt
            if f < 0: do_m()
            else: take(f)
```

```python
import sys, struct
from asmlib import module
from backend import *

NAME = "parallel_sum__linear_kernel_hedgehog__dense_activation_gelu__prompt"
def f2u(x): return "0x%x" % struct.unpack("<I", struct.pack("<f", x))[0]
LOG2E = 1.4426950408889634
K0 = -2.0 * LOG2E * 0.7978845608028654

WS_G = 0; WS_FL1 = 0x1000; WS_FL2 = 0x3000; WS_STATS = 0x8000; WS_KVP = 0x40000; WS_ACT = 0x200000
KVREC = 17 * 1024; TBSTR = 118 * 1024; WS_STAMP = 0x1000000
TAGC = 0x9E3779B9
R = [0, 32768, 65536, 98304, 131072]
SCR = R[4] + 16384
FFN_BLK0 = [0, 6, 11, 16, 22, 27, 32, 38]
FFN_NBLK = [6, 5, 5, 6, 5, 5, 6, 5]
SBL = [[4, 5, 10], [15, 20, 21], [26, 31, 43], [36, 37, 42]]
def pack(l): return "0x%x" % sum(b << (8 * i) for i, b in enumerate(l))

sX, sW, sWS, sW2, sWo, sOut, sAux, sB2 = ("s[%d:%d]" % (i, i + 3) for i in (8, 12, 16, 20, 24, 28, 32, 36))
sM, sN = "s0", "s1"
sWV, sT, sJ, sU, sI = "s3", "s4", "s5", "s6", "s7"
sROT, sQ4, sTT, sCB, sFL, sSTB = "s64", "s65", "s66", "s67", "s68", "s69"
sA, sB, sC, sD = "s70", "s71", "s72", "s73"
sXB = ["s74", "s75", "s76", "s77"]
sAB = ["s78", "s79", "s80", "s81"]
sXK = ["s82", "s83"]; sSO = ["s84", "s85"]
sBA, sBB = "s86", "s87"; sBS = ["s88", "s89", "s90"]
sPCOL, sW8K, sW16K = "s91", "s92", "s93"
sBLKP, sBLKS = "s94", "s95"; sHD, sFK = "s94", "s95"; sHK = "s6"
sE0, sE1 = "s96", "s97"
sPAR = "s[98:99]"
STAMPR = [60, 40, 42, 44, 50, 52, 46, 54, 62, 56, 58, 48]

class VA:
    def __init__(self, start=1): self.n = start
    def __call__(self, k=1, al=1):
        self.n = (self.n + al - 1) // al * al
        r = self.n; self.n += k
        assert self.n <= 256, "out of VGPRs"
        return r
def v(i, k=1): return "v%d" % i if k == 1 else "v[%d:%d]" % (i, i + k - 1)
def ag(i, k=1): return "a%d" % i if k == 1 else "a[%d:%d]" % (i, i + k - 1)
MF = "v_mfma_f32_32x32x16_bf16"; MF16 = "v_mfma_f32_16x16x32_bf16"
DPPM = "row_mask:0xf bank_mask:0xf"

def srd(s, d, p, n):
    d0 = int(d[2:].split(":")[0])
    s(f"s_mov_b32 s{d0}, s{p}\ns_mov_b32 s{d0+1}, s{p+1}\ns_mov_b32 s{d0+2}, {n}\ns_mov_b32 s{d0+3}, 0x20000")

class Gen:
    def __init__(self, **opt):
        self.o = dict(stamps=False, warm=0, outsc1=True, sp=64, sp1=60, ahead=6, log=False, umode=0, vlat=650, stlat=800,
                      ah0=14, npc=2, nP=6, p2hold=1, spa=56, p2e=3, stlat2=600, qx=4, nq=2, plat0=500, plat=560, sp0=56, warmc=1, stag=1, warmf=0, wsp=180, wpos=0, wpos2=6, cbmix=0, slpK=1, ah0b=6, lag=2, s0=4, slp=8, slat=750, wlat=700, wlat0=1100, nE=4, pace=3, kvpace=20, kvhold=99, hold=0, kvl=12, prio=1, fSa=5, fS=6, fO=8, fOf=9, ah2=10, fo=2)
        self.o.update(opt); self.uid = 0
        global TBSTR, WS_ACT
        TBSTR = 118 * 1024 + self.o.get("tbpad", 0); WS_ACT = 0x200000 + self.o.get("actoff", 0)
    def lab(self, p):
        self.uid += 1; return "L_%s_%d" % (p, self.uid)
    def stamp(self, s, name):
        if not self.o["stamps"]: return
        names = str(self.o.get("st", "x0,b0,p1,u1,u2,u3,u4,u5,q,o,mm14,red")).split(",")
        if name in names:
            r = STAMPR[names.index(name)]; s(f"s_memrealtime s[{r}:{r+1}]")

    def role(self, role):
        att = role == "att"; o = self.o
        tl = TL(o["sp"], o["vlat"]); B = tl.B
        def watch(name):
            x = Stream(); self.stamp(x, name); return x[0].text if x else None
        tl.watch = watch
        s = Stream(); a = VA(1)
        stride = 3072 if att else 2752
        vL16 = a(); vXD0 = a(); vXD = a(4); vOUT = a(); vTAG = a(2, 2); vN16 = a(); vXR = a(4); vSR = a()
        vT0 = a(1, 2); vT1 = a(); vT2 = a(); vT3 = a()
        vSD = a(4); vWD = a(4); vPR = vWD + 1; vWR = a(2); vFL = a(2, 2); vFA = a(); vZ = a()
        RW = vXD; RR = vSD; vWB = vSD + 2
        assert vXD == 3
        vKA = a(2)
        XR = a(8, 4); B2 = a(4, 4)
        ACC = [a(16, 4), a(16, 4)]; NX = 8; XF = a(4 * NX, 4)
        CA = [a(4, 4), a(4, 4)]; ST = a(16, 4); CBS = a(4, 4); CS = a(4, 4); CSEL = a(4, 4); vPD = CBS
        nk = 2 if att else 3
        KC = [a(nk) for _ in range(4)]; KCS = a(nk)
        if att:
            ONES = a(4, 4); SEL = [a(4, 4), a(4, 4)]; F8a = a(8, 4); F8b = a(8, 4)
            PHI = [a(4, 4), a(4, 4), a(4, 4)]; KV = a(16, 4); TB = a(16, 4); PF = KV; TA = a(16, 4); F4 = a(4, 4)
        else:
            vB1 = a(2); G4 = a(4); HO = a(8, 4)
        vJ = a(4 if att else 7)
        sys.stderr.write("%s VGPRs: %d\n" % (role, a.n))
        sp1 = o["sp1"]
        tmp = ACC[0]
        def run4(pre, vb, srdn, tok, after, sp=None):
            for q in range(4):
                B(f"{pre if q == 0 else ''}\nbuffer_load_dwordx4 {v(vb+q)}, {srdn}, {sM} offen offset:{1024*q} lds", tok, after, sp)
        def dma_x(i, after, sp=None):
            for k in range(2): run4(f"s_add_u32 m0, {sW8K}, {R[i]+k*4096}\ns_add_u32 {sM}, {sXB[i]}, {sXK[k]}", vXD, sX, ("x", i), after, sp)
        s("s_cmp_ge_u32 s2, 256\ns_cbranch_scc1 L_end")
        s("s_load_dwordx16 s[40:55], s[0:1], 0\ns_load_dwordx8 s[56:63], s[0:1], 64")
        if o["stamps"]: s("s_memrealtime s[100:101]")
        s(f"s_lshr_b32 {sI}, s2, 3")
        if o["warmc"] == 1:
            s(f"s_getpc_b64 s[72:73]\nL_pc:\ns_sub_u32 s72, s72, L_pc-{NAME}_kernel\ns_subb_u32 s73, s73, 0", glue=True)
            s(f"s_lshl_b32 {sA}, {sI}, 11\nv_lshrrev_b32 v1, 4, v0\nv_lshl_add_u32 v1, v1, 7, {sA}\nv_min_u32 v1, L_end-{NAME}_kernel, v1")
            s(f"global_load_dword {v(XR+4)}, v1, s[72:73]")
        s(f"v_lshrrev_b32 v1, 6, v0\nv_and_b32 v0, 63, v0\nv_readfirstlane_b32 {sWV}, v1\nv_lshlrev_b32 v1, 4, v0")
        s(f"s_and_b32 {sA}, s2, 7\ns_lshr_b32 {sROT}, {sI}, 2\ns_and_b32 {sU}, {sI}, 3")
        s(f"s_and_b32 {sT}, {sA}, 1\ns_lshl3_add_u32 {sT}, {sT}, {sROT}\ns_lshr_b32 {sQ4}, {sA}, 1")
        if o.get("p2x", 1):
            s(f"s_andn2_b32 {sC}, 1, {sA}\ns_lshl2_add_u32 {sA}, {sC}, {sQ4}")
        s(f"s_lshr_b32 {sC}, {sI}, 3\ns_lshl2_add_u32 {sTT}, {sA}, {sC}")
        s(f"s_lshl2_add_u32 {sA}, {sT}, {sQ4}\ns_lshl_b32 {sXB[0]}, {sA}, 15")
        s(f"s_lshl2_add_u32 {sD}, {sU}, {sWV}\ns_lshl_b32 {sA}, {sD}, 11\ns_add_u32 {sSO[0]}, {sXB[0]}, {sA}")
        s(f"s_lshl_b32 {sSTB}, {sT}, 11\ns_add_u32 {sSTB}, {sSTB}, {WS_STATS}\ns_lshl4_add_u32 {sD}, {sQ4}, {sD}\ns_lshl_b32 {sD}, {sD}, 5\ns_add_u32 {sFL}, {sD}, {sSTB}")
        s(f"v_and_b32 {v(vOUT)}, 0x70, v1\nv_and_b32 v3, 0x30, v0\nv_xor_b32 v2, {v(vOUT)}, v3\nv_lshrrev_b32 v3, 3, v0\nv_lshl_add_u32 v3, v3, 10, v2")
        for q in range(3, 0, -1):
            s(f"v_xor_b32 {v(vXD+q)}, {64*(q&1)}, v3\nv_add_u32 {v(vXD+q)}, {7168*q}, {v(vXD+q)}")
        s(f"v_min_u32 {v(vXD0)}, 1, v0\nv_mul_u32_u24 {v(vXD0)}, {sFL}, {v(vXD0)}")
        s(f"s_lshl_b32 {sW8K}, {sWV}, 13\ns_lshl1_add_u32 {sA}, {sWV}, {sROT}\ns_lshl_b32 {sA}, {sA}, 7\ns_and_b32 {sXK[0]}, {sA}, 0x380\ns_add_u32 {sA}, {sA}, 128\ns_and_b32 {sXK[1]}, {sA}, 0x380")
        s(f"s_mov_b32 s10, {2048*1024}\ns_mov_b32 s11, 0x20000\ns_mov_b32 s18, 0x10000000\ns_mov_b32 s19, 0x20000")
        if o["warmc"] >= 2:
            s(f"s_lshl2_add_u32 {sA}, {sI}, {sWV}\ns_mul_i32 {sA}, {sA}, 384\ns_min_u32 {sA}, {sA}, L_end-{NAME}_kernel-384")
            s(f"s_getpc_b64 s[72:73]\nL_pc:\ns_sub_u32 s72, s72, L_pc-{NAME}_kernel\ns_subb_u32 s73, s73, 0\ns_add_u32 s72, s72, {sA}\ns_addc_u32 s73, s73, 0", glue=True)
        s("s_waitcnt lgkmcnt(0)"); self.stamp(s, "go")
        s("s_mov_b64 s[8:9], s[40:41]\ns_mov_b64 s[16:17], s[62:63]"); s.mark("go")
        if o["stag"]: s(f"s_load_dword {sBA}, s[62:63], 0")
        if o["warmc"] >= 2:
            for k in range(0, 6, o["warmc"] - 1): s(f"s_load_dword {sBB}, s[72:73], {64*k}"); s[-1].wr = [("s", "junk%d" % k)]
        for r in range(2): B(f"buffer_load_dwordx4 {v(tmp+4*r,4)}, {v(vL16)}, {sX}, {sSO[0]} offen offset:{1024*r}", "rows", "go", sp=8)
        if not o["stag"]: B(f"buffer_load_dword {v(vTAG)}, {v(vXD0)}, {sWS}, 0 offen sc1", "tag", sp=8)
        dma_x(0, None, o["sp0"])
        s(f"s_and_b32 {sJ}, {sU}, 1\ns_lshl1_add_u32 {sJ}, {sQ4}, {sJ}\ns_lshl_b32 {sE1}, {sWV}, 12")
        s(f"s_mov_b32 s70, {pack(FFN_BLK0[:4])}\ns_mov_b32 s71, {pack(FFN_BLK0[4:])}\ns_lshl_b32 {sC}, {sJ}, 3\ns_lshr_b64 s[70:71], s[70:71], {sC}\ns_and_b32 {sBLKP}, s70, 0xff")
        s(f"s_lshl_b32 {sPCOL}, {sBLKP}, 6\ns_lshl_b32 {sD}, {sJ}, 7\ns_add_u32 {sD}, {sD}, 1024\ns_movk_i32 {sA}, 2752\ns_movk_i32 {sC}, 128\ns_mov_b32 s15, 0x20000")
        s(f"s_cmp_lt_u32 {sU}, 2\ns_cselect_b32 {sPCOL}, {sD}, {sPCOL}\ns_cselect_b32 {sA}, 3072, {sA}\ns_cselect_b32 {sB}, 1, 2\ns_cselect_b32 {sC}, 1024, {sC}\ns_cselect_b32 {sE0}, 7, 5\ns_cselect_b64 s[12:13], s[42:43], s[50:51]", glue=True)
        s(f"s_lshl_b32 s14, {sA}, 9\ns_mul_i32 {sD}, {sWV}, {sA}\ns_mov_b32 {sSO[1]}, {sPCOL}\ns_lshl4_add_u32 {sPCOL}, {sD}, {sPCOL}\ns_lshl_b32 {sBLKS}, {sA}, 6")
        s(f"v_lshrrev_b32 {v(vT0)}, 4, v0\nv_and_b32 {v(vT1)}, 15, v0\nv_lshlrev_b32 {v(vT3)}, {sB}, {v(vT0)}\nv_xor_b32 {v(vT1)}, {v(vT1)}, {v(vT3)}")
        s(f"v_mul_u32_u24 {v(vT0)}, {sA}, {v(vT0)}\nv_lshrrev_b32 {v(vT3)}, 3, {v(vT1)}\nv_mad_u32_u24 {v(vT0)}, {v(vT3)}, {sC}, {v(vT0)}\nv_and_b32 {v(vT1)}, 7, {v(vT1)}")
        s(f"v_lshl_add_u32 {v(vPD)}, {v(vT1)}, 4, {v(vT0)}\ns_lshl_b32 {sA}, {sA}, 2\ns_sub_u32 {sA}, {sA}, 1024")
        for q in range(1, 4): s(f"v_add_u32 {v(vPD+q)}, {sA}, {v(vPD+q-1)}")
        s.mark("pd")
        def dma_p(ci, after=None):
            mul = sBLKS if ci < o["npc"] else 64 * stride
            run4(f"s_add_u32 {sM}, {sROT}, {ci}\ns_and_b32 {sM}, {sM}, 7\ns_mul_i32 {sM}, {sM}, {mul}\ns_add_u32 m0, {sE1}, {R[1]+ci*16384}\ns_add_u32 {sM}, {sM}, {sPCOL}", vPD, sW, ("p", ci), after, sp1 if ci else 16)
        for ci in range(o["npc"]): dma_p(ci, "pd")
        s(f"v_and_b32 {v(vT0)}, 31, v0\nv_lshlrev_b32 {v(vN16)}, 4, {v(vT0)}\nv_lshlrev_b32 {v(vT1)}, 7, {v(vT0)}")
        s(f"v_bfe_u32 {v(vT0)}, v0, 1, 3\nv_lshrrev_b32 {v(vT2)}, 5, v0\nv_xor_b32 {v(vT0)}, {v(vT0)}, {v(vT2)}\nv_lshl_add_u32 {v(vXR)}, {v(vT0)}, 4, {v(vT1)}")
        for cq in range(1, 4): s(f"v_xor_b32 {v(vXR+cq)}, {32*cq}, {v(vXR)}")
        yR, yP, yF, yH, x0, x1 = (ACC[1] + i for i in range(6))
        s(f"v_bfe_u32 {v(yR)}, v0, 2, 2\nv_bfe_u32 {v(yP)}, v0, 4, 1\ns_add_u32 {sB}, {sB}, 4")
        s(f"v_and_b32 {v(yF)}, 16, {v(vL16)}\nv_and_b32 {v(yH)}, 2, v0\nv_lshl_add_u32 {v(yF)}, {v(yH)}, 2, {v(yF)}\nv_lshl_add_u32 {v(yH)}, {v(vT2)}, 3, {v(yR)}")
        s(f"v_xor_b32 {v(x0)}, {sWV}, {v(yR)}\nv_lshl_add_u32 {v(x0)}, {v(x0)}, {sB}, {v(yF)}\nv_lshl_add_u32 {v(x0)}, {v(yP)}, {sE0}, {v(x0)}")
        s(f"v_cmp_eq_u32 vcc, {v(yR)}, {v(yP)}\nv_mov_b32 {v(vT1)}, 0x3f803f80")
        s(f"v_lshl_add_u32 {v(x0)}, {v(yH)}, 8, {v(x0)}\nv_add_u32 {v(vPR)}, {R[1]}, {v(x0)}\nv_add_u32 {v(vPR+1)}, {R[3]}, {v(x0)}")
        for i in range(4): s(f"v_cndmask_b32 {v(CSEL+i)}, 0, {v(vT1)}, vcc")
        if o["cbmix"]: s(f"s_lshr_b32 {sCB}, {sI}, 3\ns_lshl1_add_u32 {sCB}, {sCB}, {sI}")
        s(f"s_and_b32 {sCB}, {sCB if o['cbmix'] else sI}, 7\ns_lshl_b32 {sCB}, {sCB}, 7\ns_lshl_b32 {sW16K}, {sWV}, 14\nv_mov_b32 {v(vZ)}, 0")
        s(f"s_and_b32 {sA}, {sWV}, 1\ns_cmp_eq_u32 {sA}, 1\ns_cselect_b64 {sPAR}, -1, 0")
        for i in range(4):
            s(f"s_add_u32 {sA}, {sQ4}, {i}\ns_and_b32 {sA}, {sA}, 3\ns_lshl2_add_u32 {sA}, {sT}, {sA}")
            if i: s(f"s_lshl_b32 {sXB[i]}, {sA}, 15")
            s(f"s_mul_i32 {sAB[i]}, {sA}, {TBSTR}\ns_add_u32 {sAB[i]}, {sAB[i]}, {WS_ACT}")
        srd(s, sB2, 56, 1024)
        srd(s, sW2, 54, 1376 * 1024); srd(s, sWo, 46, 512 * 1024); srd(s, sOut, 58, 2048 * 1024)
        s.waittok("rows", ahead=o["ah0"]); self.stamp(s, "rows")
        q = ST
        for i in range(4): s(f"v_mov_b32 {v(q+i)}, 0")
        for i in range(4):
            for r in range(2):
                s(f"v_dot2c_f32_bf16 {v(q+r)}, {v(tmp+4*r+i)}, {v(vT1)}\nv_dot2c_f32_bf16 {v(q+2+r)}, {v(tmp+4*r+i)}, {v(tmp+4*r+i)}")
        if o["stag"]: s(f"s_mov_b32 {sA}, {sBA}\nv_lshrrev_b32 {v(vT0)}, 1, v0")
        else:
            s.waittok("tag")
            s(f"v_readfirstlane_b32 {sA}, {v(vTAG)}\nv_lshrrev_b32 {v(vT0)}, 1, v0")
        s(f"v_permlane32_swap_b32 {v(q)}, {v(q+1)}\nv_permlane32_swap_b32 {v(q+2)}, {v(q+3)}")
        s(f"v_add_f32 {v(q)}, {v(q)}, {v(q+1)}\nv_add_f32 {v(q+2)}, {v(q+2)}, {v(q+3)}\ns_add_u32 {sA}, {sA}, 0x{TAGC:x}")
        s(f"v_mov_b32 {v(vTAG)}, {sA}\nv_permlane16_swap_b32 {v(q)}, {v(q+2)}\nv_add_f32 {v(q)}, {v(q)}, {v(q+2)}")
        s(f"v_mov_b32 {v(vTAG+1)}, {sA}\nv_mov_b32 {v(q+1)}, {sA}")
        for m in ("quad_perm:[1,0,3,2]", "quad_perm:[2,3,0,1]", "row_half_mirror", "row_mirror"):
            s(f"v_add_f32_dpp {v(q)}, {v(q)}, {v(q)} {m} {DPPM}")
        s(f"s_mov_b32 exec_lo, 0x00010001\ns_mov_b32 exec_hi, 0x00010001\nbuffer_store_dwordx2 {v(q,2)}, {v(vT0)}, {sWS}, {sFL} offen sc1\ns_mov_b64 exec, -1", glue=True)
        self.stamp(s, "st")
        tl.straight(s); s = Stream()
        while tl.bi < len(tl.bg): tl.emit_bg(True)
        s(f"s_cmp_ge_u32 {sU}, 2\ns_cbranch_scc1 L_ffn\nL_split:", glue=True)
        tl.straight(s); s = Stream()
        if att:
            s(f"s_lshl2_add_u32 {sHK}, {sJ}, {sWV}\ns_add_u32 {sJ}, {sJ}, {o['qx']}\ns_and_b32 {sJ}, {sJ}, 7\ns_lshl_b32 {sD}, {sJ}, 7")
        else: s(f"s_add_u32 {sD}, {sSO[1]}, 256")
        if att:
            s(f"s_lshl2_add_u32 {sHD}, {sJ}, {sWV}"); srd(s, sAux, 44, 32 * 512)
        else:
            s(f"s_lshr_b32 {sB}, {sWV}, 1\ns_add_u32 {sBLKS}, {sBLKP}, {sB}\ns_add_u32 {sBLKS}, {sBLKS}, 4\ns_add_u32 {sBLKP}, {sBLKP}, {sWV}")
            srd(s, sAux, 52, 2752)
            t0, t2 = vB1, vB1 + 1
            s(f"v_and_b32 {v(t0)}, 0x13, v0\nv_and_b32 {v(t2)}, 4, v0\nv_lshl_add_u32 {v(t0)}, {v(t2)}, 1, {v(t0)}\nv_bfe_u32 {v(t2)}, v0, 3, 1\nv_lshl_add_u32 {v(t0)}, {v(t2)}, 2, {v(t0)}")
            s(f"v_and_b32 {v(t2)}, 32, v0\nv_lshl_add_u32 {v(t0)}, {v(t2)}, 8, {v(t0)}\nv_lshlrev_b32 {v(G4)}, 1, {v(t0)}")
        s.mark("aux")
        dma_p(o["npc"])
        B(f"buffer_load_dwordx4 {v(B2,4)}, {v(vOUT)}, {sB2}, {sCB} offen", None, "aux", sp=16)
        if att:
            B(f"s_lshr_b32 {sM}, {sHD}, 1\ns_add_u32 m0, {sE1}, {SCR}\ns_lshl_b32 {sM}, {sM}, 10\nbuffer_load_dwordx4 {v(vL16)}, {sAux}, {sM} offen lds", None, "aux", sp=16)
            B(f"s_lshr_b32 {sM}, {sHK}, 1\ns_add_u32 m0, {sE1}, {SCR+1024}\ns_lshl_b32 {sM}, {sM}, 10\nbuffer_load_dwordx4 {v(vL16)}, {sAux}, {sM} offen lds", "b2", sp=16)
        else:
            B(f"s_lshl_b32 {sM}, {sBLKP}, 6\nbuffer_load_ushort {v(vB1)}, {v(G4)}, {sAux}, {sM} offen", None, "aux", sp=16)
            B(f"s_lshl_b32 {sM}, {sBLKS}, 6\nbuffer_load_ushort {v(vB1+1)}, {v(G4)}, {sAux}, {sM} offen", "b2", sp=16)
        w1 = vJ + 1
        def warm2(ks):
            if o["warm"] != (1 if att else 2): return
            for k in ks:
                pre = f"v_lshlrev_b32 {v(w1)}, 3, {v(vN16)}\ns_and_b32 {sN}, {sI}, 1\ns_lshl1_add_u32 {sN}, {sROT}, {sN}\ns_lshl2_add_u32 {sN}, {sN}, {sWV}\n" if k == 0 else ""
                pre += f"s_mul_i32 {sM}, {sN}, {174*128}\ns_add_u32 {sM}, {sM}, {29*128*k}" if k < 6 else f"s_lshl_b32 {sM}, {sN}, 13\ns_add_u32 {sM}, {sM}, {4096*(k-6)}"
                B(f"{pre}\nbuffer_load_dword {v(w1+1)}, {v(w1)}, {sW2 if k < 6 else sWo}, {sM} offen", sp=o["wsp"]); tl.bg[-1].ins[-1].wr = []
        if o["warmf"]:
            B(f"s_lshl_b32 {sM}, s2, 7\ns_add_u32 {sM}, {sM}, {WS_FL1}\nbuffer_load_dword {v(w1+2)}, {v(vZ)}, {sWS}, {sM} offen", sp=16)
        for ci in range(o["npc"] + 1, 8): dma_p(ci, "phi" if ci == 7 else None)
        if att:
            s(f"v_bfe_u32 {v(x0)}, v0, 1, 1\nv_lshl_add_u32 {v(x0)}, {v(yP)}, 1, {v(x0)}\nv_lshlrev_b32 {v(x0)}, 3, {v(x0)}\nv_lshl_add_u32 {v(x0)}, {v(yH)}, 5, {v(x0)}")
            s(f"s_and_b32 {sC}, s98, 0x200\ns_add_u32 {sA}, {sE1}, {sC}\ns_add_u32 {sA}, {sA}, {SCR}")
            s(f"v_add_u32 {v(vJ)}, {sA}, {v(x0)}\nv_xor_b32 {v(vJ+1)}, 0x200, {v(vJ)}"); s.mark("pha")
        s(f"s_movk_i32 {sB}, {stride}")
        for k in range(2):
            s(f"s_add_u32 {sA}, {sWV}, {sROT}\ns_add_u32 {sA}, {sA}, {4*k}\ns_and_b32 {sA}, {sA}, 7\ns_mul_i32 {sA}, {sA}, {64*stride}\ns_add_u32 {sSO[k]}, {sA}, {sD}")
        def dma_s(half, after):
            for k in range(2): run4(f"s_add_u32 m0, {sW8K}, {R[4-4*half]+k*4096}\ns_add_u32 {sM}, {sSO[half]}, {32*stride*k}", vSD, sW, ("s", half), after)
        s(f"v_lshrrev_b32 {v(vT0)}, 3, v0\nv_lshlrev_b32 {v(vT1)}, 2, v0\nv_and_b32 {v(vT1)}, 64, {v(vT1)}\nv_xor_b32 {v(vT1)}, {v(vT1)}, {v(vOUT)}")
        s(f"v_mad_u32_u24 {v(vSD)}, {v(vT0)}, {sB}, {v(vT1)}")
        for q in range(1, 4): s(f"v_add_u32 {v(vSD+q)}, {q*(8*stride-1024)}, {v(vSD)}")
        s(f"v_lshl_add_u32 {v(vWD+3)}, {v(vT0)}, 10, {v(vT1)}")
        if att:
            s(f"v_lshl_add_u32 {v(vT3)}, {v(vT2)}, 9, {v(vN16)}\nv_lshlrev_b32 {v(vT2)}, 5, {v(vT2)}\nv_add_u32 {v(vT2)}, 0x400, {v(vT2)}")
            s(f"v_cmp_gt_u32 vcc, 0x100, {v(vN16)}\nv_add_u32 {v(vT0)}, 16, {v(vT2)}\nv_add_u32 {v(vT1)}, 0x100, {v(vT3)}")
            s(f"v_cndmask_b32 {v(vKA)}, {v(vT2)}, {v(vT3)}, vcc\nv_cndmask_b32 {v(vKA+1)}, {v(vT0)}, {v(vT1)}, vcc")
        s(f"v_lshrrev_b32 {v(x0)}, 1, {v(yR)}\nv_lshl_add_u32 {v(x0)}, {v(x0)}, 6, {v(yF)}\nv_lshl_add_u32 {v(x0)}, {v(yP)}, 5, {v(x0)}\nv_lshl_add_u32 {v(x0)}, {v(yH)}, 7, {v(x0)}")
        s(f"v_add_u32 {v(vWR)}, {sW8K}, {v(x0)}\nv_xor_b32 {v(vWR+1)}, 64, {v(vWR)}")
        if att: s(f"s_lshl_b32 {sA}, {sWV}, 5")
        else: s(f"s_and_b32 {sA}, {sWV}, 2\ns_lshl_b32 {sA}, {sA}, 5")
        s(f"v_xor_b32 {v(x0)}, {sA}, {v(x0)}\nv_add_u32 {v(vSR)}, {R[4]}, {v(x0)}")
        if att:
            for i in range(4): s(f"v_mov_b32 {v(ONES+i)}, 0x3f803f80")
        s(f"v_and_b32 {v(vFA)}, {15 if att else 7}, v0\nv_lshlrev_b32 {v(vFA)}, 3, {v(vFA)}")
        if att:
            s(f"v_bfe_u32 {v(vT0)}, v0, 2, 1\nv_lshrrev_b32 {v(vT2)}, 5, v0\nv_cmp_eq_u32 vcc, {v(vT0)}, {v(vT2)}")
            s(f"v_and_b32 {v(vT0)}, 16, {v(vL16)}\nv_mov_b32 {v(vT2)}, 0x3f80\nv_lshlrev_b32 {v(vT2)}, {v(vT0)}, {v(vT2)}\nv_cndmask_b32 {v(vT2)}, 0, {v(vT2)}, vcc")
            s(f"v_bfe_u32 {v(vT0)}, v0, 1, 1\nv_bfe_u32 {v(vT3)}, v0, 3, 2\nv_lshl_add_u32 {v(vT0)}, {v(vT3)}, 1, {v(vT0)}")
            for i in range(0, 8, 2):
                s(f"v_cmp_eq_u32 vcc, {i}, {v(vT0)}\nv_cmp_eq_u32 s[70:71], {i+1}, {v(vT0)}")
                s(f"s_nop 0\nv_cndmask_b32 {v(SEL[i>>2]+(i&3))}, 0, {v(vT2)}, vcc\nv_cndmask_b32 {v(SEL[i>>2]+(i&3)+1)}, 0, {v(vT2)}, s[70:71]")
            s(f"s_lshl_b32 {sFK}, {sHD}, 7\ns_add_u32 {sFK}, {sFK}, {WS_FL1}")
        s(f"s_lshr_b32 {sFL}, {sTT}, 1\ns_lshl4_add_u32 {sFL}, {sFL}, {sWV}\ns_lshl_b32 {sFL}, {sFL}, 6\ns_add_u32 {sFL}, {sFL}, {WS_FL2}")
        s(f"s_lshl_b32 {sC}, {sWV}, 3")
        for d, tb in ((sBA, FFN_BLK0[0::2]), (sBB, FFN_BLK0[1::2]), (sBS[0], [x[0] for x in SBL]), (sBS[1], [x[1] for x in SBL]), (sBS[2], [x[2] for x in SBL])):
            s(f"s_lshr_b32 {d}, {pack(tb)}, {sC}\ns_and_b32 {d}, {d}, 0xff")
        PH = Stream()
        if att:
            PH.need("pha"); PH.waittok("b2")
            for hs in range(3):
                for e in range(2): PH(f"ds_read_b64_tr_b16 {v(PHI[hs]+2*e,2)}, {v(vJ+(hs&1))} offset:{e*128+(hs>>1)*1024}", tok="phr")
            PH.waittok("phr")
        PH.mark("phi")
        s.need("phi"); s.waittok("b2")
        s(f"v_lshrrev_b32 {v(vT0)}, 3, v0\nv_lshl_add_u32 {v(vOUT)}, {v(vT0)}, 10, {v(vOUT)}")
        if not att:
            six = sum(1 << i for i, n in enumerate(FFN_NBLK) if n == 6)
            s(f"s_lshr_b32 {sC}, {six}, {sJ}\ns_lshr_b32 {sA}, {sWV}, 1\ns_andn2_b32 {sC}, {sA}, {sC}\ns_and_b32 {sC}, {sC}, 1\ns_lshl_b32 {sC}, {sC}, 18\ns_or_b32 {sBLKS}, {sBLKS}, {sC}")
        else:
            s(f"v_and_b32 {v(vT2)}, 4, v0\nv_cmp_ne_u32 vcc, 0, {v(vT2)}\nv_mov_b32 {v(vT3)}, 0x80008000\ns_nop 0\nv_cndmask_b32 {v(vT3)}, 0, {v(vT3)}, vcc")
            for i in range(12): s(f"v_xor_b32 {v(PHI[i>>2]+(i&3))}, {v(vT3)}, {v(PHI[i>>2]+(i&3))}")
        def stats_ld(i, r):
            return f"s_add_u32 {r}, {sQ4}, {i}\ns_and_b32 {r}, {r}, 3\ns_lshl_b32 {r}, {r}, 9\ns_add_u32 {r}, {r}, {sSTB}\nbuffer_load_dwordx4 {v(ST+4*i,4)}, {v(vN16)}, {sWS}, {r} offen sc1"
        def xread(st, un, region, ks):
            st(f"ds_read_b128 {v(XF+4*(ks%NX),4)}, {v(vXR+(ks&3))} offset:{region+(ks>>2)*4096}", tok=("xf", un, ks))
        def stat_consts(st, i):
            m, va = ST + 4 * i, ST + 4 * i + 2; k = KC[i]
            st(f"v_mul_f32 {v(m)}, {f2u(1/512)}, {v(m)}\nv_mul_f32 {v(va)}, {f2u(1/512)}, {v(va)}\nv_fma_f32 {v(va)}, -{v(m)}, {v(m)}, {v(va)}\nv_max_f32 {v(va)}, 0, {v(va)}")
            st(f"v_add_f32 {v(va)}, {f2u(1e-5)}, {v(va)}\nv_sqrt_f32 {v(va)}, {v(va)}\nv_mov_b32 {v(m+3)}, 0")
            st(f"v_cvt_pk_bf16_f32 {v(m+1)}, -{v(m)}, {v(va)}\nv_rcp_f32 {v(k)}, {v(va)}")
            st(f"v_lshlrev_b32 {v(vT0)}, 16, {v(m+1)}\nv_and_b32 {v(vT1)}, 0xffff0000, {v(m+1)}")
            st(f"v_sub_f32 {v(m)}, -{v(m)}, {v(vT0)}\nv_sub_f32 {v(vT1)}, {v(va)}, {v(vT1)}")
            if att: st(f"v_mul_f32 {v(k+1)}, {f2u(LOG2E)}, {v(k)}")
            else:
                st(f"v_mov_b32 {v(k+2)}, {v(va)}\nv_mul_f32 {v(k+1)}, {v(k)}, {v(k)}\nv_mul_f32 {v(k)}, {f2u(K0)}, {v(k)}")
                st(f"v_mul_f32 {v(k+1)}, {v(k+1)}, {v(k)}\nv_mul_f32 {v(k+1)}, {f2u(0.044715)}, {v(k+1)}")
            st(f"v_cvt_pk_bf16_f32 {v(m)}, {v(vT0)}, {v(m)}\nv_cvt_pk_bf16_f32 {v(m+2)}, {v(vT1)}, 0")
        def corr_pre(st, which):
            c = CA[which]
            st(f"v_mov_b32 {v(c+3)}, 0\nv_mov_b32 {v(c+2)}, {0 if att else v(vB1+which)}")
            if not att: st(f"v_lshlrev_b32 {v(vB1+which)}, 16, {v(vB1+which)}")
        def corr_a(st, which):
            c = CA[which]
            st(f"v_cvt_pk_bf16_f32 {v(c)}, {v(CS)}, {v(CS)}\nv_lshlrev_b32 {v(vT1)}, 16, {v(c)}\nv_sub_f32 {v(vT0)}, {v(CS)}, {v(vT1)}")
            st(f"v_cvt_pk_bf16_f32 {v(c+1)}, {v(vT0)}, {0 if att else v(vB1+which)}")
        def spin(st, test, reload_, name):
            lp, ok = self.lab("poll"), self.lab("ok")
            st(test + f"\ns_cbranch_vccz {ok}", glue=True)
            st(f"s_mov_b32 {sC}, 0", cond=True)
            st(lp + ":")
            slp = o["slp"] if name in ("fO", "fS") else o["slpK"]
            if slp: st(f"s_sleep {slp}", cond=True)
            st(reload_, cond=True)
            st(f"s_add_u32 {sC}, {sC}, 1\ns_cmp_gt_u32 {sC}, 100000\ns_cbranch_scc1 {ok}\ns_waitcnt vmcnt(0)", cond=True)
            st(test + f"\ns_nop 4\ns_cbranch_vccnz {lp}", cond=True)
            st(ok + ":\ns_nop 0"); st.mark(name); self.stamp(st, name)
        corr_pre(s, 0); corr_pre(s, 1)
        B(stats_ld(0, sM), "stat0", "b%d" % o["s0"], sp=32)
        dma_x(1, "b3", sp1)
        for i in range(1, 4): B(stats_ld(i, sM), "stats", "b7", sp=32)
        dma_x(2, "b5"); dma_x(3, "b7")
        lag = o["lag"]
        Mp = []
        def mf(kp): return f"{MF} {v(ACC[0],16)}, {ag(4*kp,4)}, {v(XF+4*(kp%NX),4)}, {v(ACC[0],16) if kp else 0}"
        def mf16(kp): return f"{MF16} {v(CS,4)}, {v(CSEL,4)}, {ag(4*kp,4)}, {v(CS,4) if kp else 0}"
        g = Stream()
        for ks in range(32):
            ci, kk = ks >> 2, ks & 3; kp = ks - lag
            if kk == 0:
                if ci == 0: g.waittok(("x", 0), ("p", 0), ahead=o["ah0b"], lat=o["plat0"]); self.stamp(g, "x0")
                else: g.waittok(("p", ci), ahead=o["ahead"], lat=o["plat"])
                g("s_barrier"); g.mark("b%d" % ci); self.stamp(g, "b%d" % ci)
            if kp >= 0: g.waittok(("xf", 0, kp), lat=0); g(mf(kp))
            for e in range(2):
                g(f"ds_read_b64_tr_b16 {ag(4*ks+2*e,2)}, {v(vPR+(ci>>2))} offset:{(ci&3)*16384+kk*4096+e*1024}")
            xread(g, 0, 0, ks)
            if ks == 31: g.mark("prd")
            Mp.append(g); g = Stream()
            if kp >= 0: g(mf16(kp)); Mp.append(g); g = Stream()
        x = s
        x.waittok("stat0")
        spin(x, f"v_xor_b32 {v(vT0)}, {v(vTAG)}, {v(ST+1)}\nv_xor_b32 {v(vT1)}, {v(vTAG)}, {v(ST+3)}\nv_cmp_ne_u64 vcc, 0, {v(vT0,2)}", stats_ld(0, sA), "st0")
        stat_consts(x, 0)
        x.need("prd")
        x(f"v_mov_b32 {v(vWD)}, {v(vWD+3)}")
        for q in range(1, 4): x(f"v_add_u32 {v(vWD+q)}, {7168*q}, {v(vWD)}")
        x(f"s_lshl_b32 {sPCOL}, {sTT}, 16\ns_add_u32 {sPCOL}, {sPCOL}, {sW8K}\ns_add_u32 {sPCOL}, {sPCOL}, {sCB}")
        x.need("cs0"); corr_a(x, 0); x.mark("ca0")
        for n, kp in enumerate(range(32 - lag, 32)):
            g = Stream()
            if n == 0: g.waittok(("xf", 0, 31)); g("s_barrier"); g.mark("b8")
            g(f"{MF16} {v(CS,4)}, {v(CSEL,4)}, {ag(4*kp,4)}, {v(CS,4)}")
            if kp == 31: g.mark("cs0")
            Mp.append(g)
        for kp in range(32 - lag, 32):
            g = Stream(); g(f"{MF} {v(ACC[0],16)}, {ag(4*kp,4)}, {v(XF+4*(kp%NX),4)}, {v(ACC[0],16)}"); Mp.append(g)
        g = Stream(); g.need("ca0"); g(f"{MF} {v(ACC[0],16)}, {v(CA[0],4)}, {v(ST,4)}, {v(ACC[0],16)}"); self.stamp(g, "p1"); Mp.append(g)
        tl.sched(Mp, [PH, x])
        if o.get("stop"):
            out = Stream()
            for i in tl.out:
                if "m" in o["stop"] and i.kind == "mfma": continue
                if "s" in o["stop"] and (i.kind == "vst" or i.cond or i.op.startswith("s_cbranch_vcc")): continue
                if "b" in o["stop"] and i.kind == "barrier": continue
                if "d" in o["stop"] and (i.kind == "dsr" or (i.kind == "waittok" and (i.tok[0] == "phr" or i.tok[0][0] == "xf"))): continue
                out.append(i)
            s = out
            s("s_waitcnt vmcnt(0)\ns_memrealtime s[64:65]\ns_waitcnt lgkmcnt(0)")
            s(f"s_lshl2_add_u32 {sA}, s2, {sWV}\ns_lshl_b32 {sA}, {sA}, 6\ns_add_u32 {sA}, {sA}, {WS_STAMP}")
            for i, r in enumerate(["s100"] + ["s%d" % k for k in STAMPR] + ["s64"]):
                s(f"v_mov_b32 {v(vT1)}, {r}\nbuffer_store_dword {v(vT1)}, {v(vZ)}, {sWS}, {sA} offen offset:{4*i}")
            return s

        def gelu(e, acc, k, sbase, sblk, tok):
            e(f"s_lshl_b32 {sB}, {sblk}, 11\ns_add_u32 {sB}, {sB}, {sbase}")
            for q in range(4):
                A = [v(acc + 4 * q + i) for i in range(4)]; T = [v(G4 + i) for i in range(4)]
                for i in range(4): e(f"v_mul_f32 {T[i]}, {A[i]}, {A[i]}")
                for i in range(4): e(f"v_fma_f32 {T[i]}, {T[i]}, {v(k+1)}, {v(k)}")
                for i in range(4): e(f"v_mul_f32 {T[i]}, {A[i]}, {T[i]}")
                for i in range(4): e(f"v_exp_f32 {T[i]}, {T[i]}")
                for i in range(4): e(f"v_fma_f32 {T[i]}, {T[i]}, {v(k+2)}, {v(k+2)}")
                for i in range(4): e(f"v_rcp_f32 {T[i]}, {T[i]}")
                for i in range(4): e(f"v_mul_f32 {T[i]}, {A[i]}, {T[i]}")
                for i in range(2): e(f"v_cvt_pk_bf16_f32 {v(HO+2*q+i)}, {T[2*i]}, {T[2*i+1]}")
                if q & 1: e(f"buffer_store_dwordx4 {v(HO+4*(q>>1),4)}, {v(vL16)}, {sWS}, {sB} offen offset:{1024*(q>>1)} sc1", tok=tok)
        def sm_head(e, src, phi, T_, f4):
            for i in range(4): e(f"v_cvt_pk_bf16_f32 {v(f4+i)}, {v(src+2*i)}, {v(src+2*i+1)}")
            e(f"{MF} {v(T_,16)}, {v(phi,4)}, {v(f4,4)}, 0")
        def sm_body(e, T_, k, dst):
            t2, t3 = v(vT2), v(vT3); T = lambda i: v(T_ + i)
            e(f"v_max3_f32 {t2}, {T(0)}, {T(1)}, {T(2)}\nv_max3_f32 {t3}, {T(3)}, {T(4)}, {T(5)}")
            for i in range(2): e(f"v_max3_f32 {t2}, {t2}, {T(6+4*i)}, {T(7+4*i)}\nv_max3_f32 {t3}, {t3}, {T(8+4*i)}, {T(9+4*i)}")
            e(f"v_max3_f32 {t2}, {t2}, {T(14)}, {T(15)}\nv_max_f32 {t2}, {t2}, {t3}\nv_mul_f32 {t2}, {t2}, {v(k+1)}")
            for i in range(16): e(f"v_fma_f32 {T(i)}, {T(i)}, {v(k+1)}, -{t2}")
            for i in range(16): e(f"v_exp_f32 {T(i)}, {T(i)}")
            e(f"v_add_f32 {t2}, {T(0)}, {T(1)}\nv_add_f32 {t3}, {T(2)}, {T(3)}")
            for i in range(4, 16, 2): e(f"v_add_f32 {t2}, {t2}, {T(i)}\nv_add_f32 {t3}, {t3}, {T(i+1)}")
            e(f"v_add_f32 {t2}, {t2}, {t3}\nv_rcp_f32 {t2}, {t2}")
            for i in range(16): e(f"v_mul_f32 {T(i)}, {T(i)}, {t2}")
            for i in range(8): e(f"v_cvt_pk_bf16_f32 {v(dst+i)}, {T(2*i)}, {T(2*i+1)}")
        def kepi(e, un):
            acc, k = ACC[un & 1], KC[un]
            e(f"{MF} {v(TB,16)}, {v(ONES,4)}, {v(SEL[1],4)}, 0")
            e.need("m%d" % un)
            sm_head(e, acc, PHI[2], TA, F4)
            for i in range(8): e(f"v_mul_f32 {v(acc+8+i)}, {v(acc+8+i)}, {v(k)}")
            for i in range(4): e(f"v_cvt_pk_bf16_f32 {v(F8b+i)}, {v(acc+8+2*i)}, {v(acc+9+2*i)}")
            e.mark("e%d" % un)
            b = Stream(); sm_body(b, TA, k, F8a)
            e.extend(b[:2]); e(f"{MF} {v(TB,16)}, {v(F8b,4)}, {v(SEL[0],4)}, {v(TB,16)}"); e.extend(b[2:-4])
            e.extend(b[-4:-2]); e2 = b[-2:]
            TC = acc2 = None
            e.extend(e2)
            for i in range(2): e(f"v_cvt_pk_bf16_f32 {v(F8b+i)}, {v(TB+2*i)}, {v(TB+2*i+1)}")
            e(f"{MF} {v(TA,16)}, {v(F8a,4)}, {v(SEL[0],4)}, 0")
            for i in range(2, 8): e(f"v_cvt_pk_bf16_f32 {v(F8b+i)}, {v(TB+2*i)}, {v(TB+2*i+1)}")
            e(f"{MF} {v(TA,16)}, {v(F8a+4,4)}, {v(SEL[1],4)}, {v(TA,16)}")
            for i in range(8): e(f"v_cvt_pk_bf16_f32 {v(F8a+i)}, {v(TA+2*i)}, {v(TA+2*i+1)}")
            e(f"{MF} {v(KV,16)}, {v(F8a,4)}, {v(F8b,4)}, {v(KV,16) if un else 0}\n{MF} {v(KV,16)}, {v(F8a+4,4)}, {v(F8b+4,4)}, {v(KV,16)}")
        def kvpub(e):
            e(f"s_mul_i32 {sB}, {sT}, 960\ns_sub_u32 {sB}, 15360, {sB}\nv_lshrrev_b32 {v(vT3)}, 8, {v(vN16)}")
            e(f"v_mad_u32_u24 {v(vT2)}, {v(vT3)}, {sB}, {v(vKA)}\nv_mad_u32_u24 {v(vT3)}, {v(vT3)}, {sB}, {v(vKA+1)}")
            e(f"s_mul_i32 {sB}, {sHK}, 17\ns_add_u32 {sB}, {sB}, {sT}\ns_lshl_b32 {sB}, {sB}, 10\ns_add_u32 {sB}, {sB}, {WS_KVP}")
            for c in range(2):
                for i in range(4): e(f"v_cvt_pk_bf16_f32 {v(F8a+4*c+i)}, {v(KV+8*c+2*i)}, {v(KV+8*c+2*i+1)}")
                e(f"buffer_store_dwordx4 {v(F8a+4*c,4)}, {v(vT2+c)}, {sWS}, {sB} offen sc1", tok="kvp")
        def qepi(e, acc, k, dst):
            for i in range(4): e(f"v_cvt_pk_bf16_f32 {v(F4+i)}, {v(acc+2*i)}, {v(acc+2*i+1)}")
            for i in range(4): e(f"v_cvt_pk_bf16_f32 {v(F8b+i)}, {v(acc+8+2*i)}, {v(acc+9+2*i)}")
            e(f"{MF} {v(acc,16)}, {v(PHI[1],4)}, {v(F8b,4)}, 0\n{MF} {v(TA,16)}, {v(PHI[0],4)}, {v(F4,4)}, 0")
            sm_body(e, acc, k, dst + 8); e.mark(("sib", dst)); sm_body(e, TA, k, dst)
        def flag(st, addr, tok, lat=None):
            st(addr)
            st.waittok(tok, lat=lat or o["stlat"])
            st(f"s_mov_b64 exec, 1\nbuffer_store_dwordx2 {v(vTAG,2)}, {v(vZ)}, {sWS}, {sD} offen sc1\ns_mov_b64 exec, -1", glue=True)
        a_fl1 = f"s_lshl4_add_u32 {sD}, {sHK}, {sT}\ns_lshl_b32 {sD}, {sD}, 3\ns_add_u32 {sD}, {sD}, {WS_FL1}"
        def a_fl2(kind): return f"s_lshl2_add_u32 {sD}, {sJ}, {sWV}\ns_lshl_b32 {sC}, {sT}, 10\ns_lshl3_add_u32 {sD}, {sD}, {sC}\ns_add_u32 {sD}, {sD}, {WS_FL2+256*kind}"
        def fl_txt(sreg, off): return f"buffer_load_dwordx2 {v(vFL,2)}, {v(vFA)}, {sWS}, {sreg} offen offset:{off} sc1"
        def fl_bg(sreg, off, tok, after): B(fl_txt(sreg, off), tok, after, sp=16)
        def fl_check(st, sreg, off, tok):
            st.waittok(tok)
            spin(st, f"v_cmp_ne_u64 vcc, {v(vFL,2)}, {v(vTAG,2)}", fl_txt(sreg, off), tok)

        SLOT = {"a0": (sW8K, R[0]), "a1": (sW8K, R[0] + 4096), "b0": (sW8K, R[1]), "b1": (sW8K, R[1] + 4096),
                "c0": (sW8K, R[4]), "c1": (sW8K, R[4] + 4096), "d0": (sW16K, R[2])}
        WSLOT = ["b0", "b1", "c0", "c1", "a0", "a1"] * 2 + ["b0", "b1", "d0"]
        nE = 8
        def blk(b):
            if b < 4: return sBA, b
            if b < 8: return sBB, b - 4
            if b < 11: return sBS[b - 8], 0
            return None, b - 11
        def dma_w(b, after):
            sb, off = SLOT[WSLOT[b]]; r, i = blk(b)
            pre = f"s_add_u32 m0, {sb}, {off}\n"
            if r: pre += f"s_lshl_b32 {sM}, {r}, 15\ns_add_u32 {sM}, {sM}, {sCB}"
            else: pre += f"s_lshl3_add_u32 {sM}, {sW16K}, {sCB}"
            if i: pre += f"\ns_add_u32 {sM}, {sM}, {32768*i}"
            run4(pre, vWD, sW2 if r else sWo, ("w", b), after)
        def wread(st, b):
            sl = WSLOT[b]; off = SLOT[sl][1]
            base, d = (vWB, -R[4]) if sl[0] == "c" else (vXR, -R[2]) if sl[0] == "d" else (vWR, 0)
            st.waittok(("w", b), lat=o["wlat"])
            for stp in range(2):
                for cb in range(2):
                    for e in range(2):
                        st(f"ds_read_b64_tr_b16 {ag(128+16*(b%8)+8*stp+4*cb+2*e,2)}, {v(base+cb)} offset:{off+d+stp*2048+e*512}", tok=("wr", b))

        D = NX - 1
        M = []
        RG = {1: R[1], 2: 0, 3: R[1], 4: 0, 5: 0}
        def bump(st, d):
            for i in range(4): st(f"v_add_u32 {v(vXR+i)}, {d}, {v(vXR+i)}")
        def opening(g, un):
            if un == 3: g.waittok(("x", 3), ("s", 0), ("s", 1)); g("s_barrier"); g.mark("sl")
            elif un < 3: g.waittok(("x", un)); g("s_barrier"); g.mark("xl%d" % un)
            if un == 2: bump(g, "0x10000")
            if un == 5: g.need("e1s"); bump(g, sE1)
        NP = 8
        for un in range(1, 6):
            acc = ACC[un & 1]
            cm = f"{MF} {v(acc,16)}, {v(CA[un>3],4)}, {v(ST+4*un if un <= 3 else CBS,4)}, "
            g = Stream()
            if un == 1:
                opening(g, 1)
                for ks in range(D): xread(g, 1, RG[1], ks)
            if un >= 2: g.need("f%d" % (un - 2))
            self.stamp(g, "u%d" % un)
            if un != 4:
                g.need("c%d" % un); g(cm + "0"); M.append(g); g = Stream()
            last = o["kvpace"] if (att and un == 4) else 31
            for ks in range(32):
                for k in range(NP):
                    if ks == o["pace"] + (k + 1) * (last - o["pace"]) // NP: g.need(("ep", un - 1, k))
                if ks % 4 == 0:
                    if un == 4: g.need("sr%d" % (ks + 3)); g.waittok(("sr", ks + 3))
                    else: g.waittok(("xf", un, ks + 3))
                if ks == 28 and un == 1: g.mark("u1r")
                if ks == 28 and un == 5: g("s_barrier"); g.mark("r5")
                if ks + D == 32 and un < 5: opening(g, un + 1)
                g(f"{MF} {v(acc,16)}, {ag(4*ks,4)}, {ag(128+4*ks,4) if un == 4 else v(XF+4*(ks%NX),4)}, {v(acc,16) if (ks or un != 4) else 0}")
                if ks + D < 32:
                    if un != 4: xread(g, un, RG[un], ks + D)
                elif un in (1, 2, 4): xread(g, un + 1, RG[un + 1], ks + D - 32)
                if un >= 3: g.mark(("pd", un, ks))
                if un == 5 and ks == o["kvl"]: g.mark("kvl")
                if ks == 31 and un != 4: g.mark("m%d" % un)
                M.append(g); g = Stream()
            if un == 4:
                g.need("c4"); g(cm + v(acc, 16)); g.mark("cb4"); g.mark("m4"); M.append(g)
        tl.marks.add("m0")
        E = Stream()
        def paced(e, un):
            tot = sum(i.cost for i in e); c = 0; k = 0
            for i in e:
                E.append(i); c += i.cost
                while k < NP and c >= tot * (k + 1) / NP - 1e-9 and not i.glue: E.mark(("ep", un, k)); k += 1
            assert k == NP
        def selectk(st, i):
            for r in range(nk): st(f"v_cndmask_b32 {v(KCS+r)}, {v(KC[i]+r)}, {v(KC[i+1]+r)}, {sPAR}")
        for un in range(4):
            e = Stream()
            if att: kepi(e, un)
            else: e.need("m%d" % un); gelu(e, ACC[un & 1], KC[un], sAB[un], sBLKP, "actP")
            if att and un == 3: kvpub(e)
            paced(e, un); E.mark("f%d" % un)
        E.mark("kvp")
        E("s_cmp_lg_u32 s98, 0\n" + "\n".join(f"s_cselect_b32 {sB}, {sAB[k+1]}, {sAB[k]}\ns_cselect_b32 {sAB[k+1]}, {sAB[k]}, {sAB[k+1]}\ns_mov_b32 {sAB[k]}, {sB}" for k in (0, 2)), glue=True)
        selectk(E, 0); E.need("m4")
        e = Stream()
        if att: qepi(e, ACC[0], KCS, PF)
        else: gelu(e, ACC[0], KCS, sAB[0], sBLKS, "actS")
        paced(e, 4)
        selectk(E, 2); E.mark("e4"); E.need("m5"); self.stamp(E, "u6")
        if att: qepi(E, ACC[1], KCS, PF + 16)
        else: gelu(E, ACC[1], KCS, sAB[2], sBLKS, "actS")
        self.stamp(E, "q"); E.mark("q5")
        X = Stream()
        X.waittok("stats")
        t = f"v_xor_b32 {v(vT0)}, {v(vTAG)}, {v(ST+5)}\nv_xor_b32 {v(vT1)}, {v(vTAG)}, {v(ST+7)}\n"
        for r in (9, 13):
            t += f"v_xor_b32 {v(vFL)}, {v(vTAG)}, {v(ST+r)}\nv_xor_b32 {v(vFL+1)}, {v(vTAG)}, {v(ST+r+2)}\nv_or3_b32 {v(vT0)}, {v(vT0)}, {v(vFL)}, {v(vFL+1)}\n"
        spin(X, t + f"v_cmp_ne_u64 vcc, 0, {v(vT0,2)}", "\n".join(stats_ld(i, sA) for i in range(1, 4)), "stok")
        for i in range(1, 4): stat_consts(X, i); X.mark("c%d" % i)
        def select(st, i):
            for r in range(3): st(f"v_cndmask_b32 {v(CBS+r)}, {v(ST+4*i+r)}, {v(ST+4*i+4+r)}, {sPAR}")
        select(X, 0); X(f"v_mov_b32 {v(CBS+3)}, 0")
        X(f"s_mul_i32 {sE0}, {sTT}, {2*TBSTR}\ns_add_u32 {sE0}, {sE0}, {WS_ACT}")
        X.mark("e1s")
        X2 = Stream()
        X2.need("kvp"); flag(X2, a_fl1 if att else a_fl2(0), "kvp" if att else "actP")
        X.need("cs"); corr_a(X, 1); X.mark("c4")
        X.need("cb4"); select(X, 2); X.mark("c5")
        S = Stream()
        C = Stream()
        KR = vJ
        S(f"s_and_b32 {sE1}, s98, 0x8000")
        for i in range(4): S(f"v_add_u32 {v(KR+i)}, {sE1}, {v(vXR+i)}")
        S.need("xl1")
        for ks in range(32): S(f"ds_read_b128 {ag(128+4*ks,4)}, {v(KR+(ks&3))} offset:{(ks>>2)*4096}", tok="kr")
        S.need("u1r"); S.waittok("kr"); S("s_barrier"); S.mark("k")
        S.need("sl")
        S(f"v_add_u32 {v(vWB)}, {R[4]}, {v(vWR)}\nv_add_u32 {v(vWB+1)}, {R[4]}, {v(vWR+1)}")
        for half in range(2):
            for ks in range(16 * half, 16 * half + 16):
                S.need(("pd", 3, ks))
                for e in range(2): S(f"ds_read_b64_tr_b16 {ag(4*ks+2*e,2)}, {v(vSR)} offset:{(ks&15)*2048+e*512}", tok=("sr", ks))
                if ks % 4 == 3:
                    S.mark("sr%d" % ks); C.need("sr%d" % ks); C.waittok(("sr", ks))
                    if ks == 3: C.need("kvp" if att and o["prio"] else "m3")
                    for k2 in range(ks - 3, ks + 1): C(f"{MF16} {v(CS,4)}, {v(CSEL,4)}, {ag(4*k2,4)}, {v(CS,4) if k2 else 0}")
                if ks == 15: S(f"v_subrev_u32 {v(vSR)}, {R[4]}, {v(vSR)}")
                if ks == 19: S.waittok(("sr", 15)); S("s_barrier"); S.mark("sa")
        S.waittok(("sr", 31)); S("s_barrier"); S.mark("sb")
        C.mark("cs")
        if att and o["prio"]: S.need("kvp")
        for b in range(nE):
            S.need(("pd", 4, 4 * b + 3)); wread(S, b)
            if b: S.waittok(("wr", b - 1)); S.mark("wr%d" % (b - 1))
        S.waittok(("wr", nE - 1)); S.mark("wr%d" % (nE - 1))
        B(f"buffer_load_dwordx4 {v(XR,4)}, {v(vOUT)}, {sX}, {sPCOL} offen")
        B(f"s_add_u32 {sM}, {sPCOL}, 0x8000\nbuffer_load_dwordx4 {v(XR+4,4)}, {v(vOUT)}, {sX}, {sM} offen", "res")
        dma_s(0, None)
        dma_s(1, "k"); warm2(range(o["wpos"]))
        def wafter(b): return "k" if b < 2 else "sa" if b < 4 else "sb" if b < 6 else "wr%d" % (b - 6) if b < 14 else "r5"
        nB = o.get("nB", 14)
        for b in range(nB):
            if att and b == o.get("nK", 12): fl_bg(sFK, 0, "fK", "kvl")
            dma_w(b, wafter(b))
            if b == 1: warm2(range(o["wpos"], o["wpos2"]))
            if b == 3: warm2(range(o["wpos2"], 8))
        if att and nB <= o.get("nK", 12): fl_bg(sFK, 0, "fK", "kvl")
        late = list(range(nB, 15))

        AC2 = 0; AF = 64; NB = 4
        def act(bb, after):
            r, i = blk(bb)
            if bb == 10: pre = f"s_cmp_eq_u32 {r}, 43\ns_cselect_b32 {sM}, {sBS[0]}, {r}\ns_lshl_b32 {sM}, {sM}, 11\ns_add_u32 {sM}, {sM}, {sE0}"
            elif r: pre = f"s_lshl_b32 {sM}, {r}, 11\ns_add_u32 {sM}, {sM}, {sE0}"
            else: pre = f"s_add_u32 {sM}, {sW8K}, {sE0}"; i += 43
            if i: pre += f"\ns_add_u32 {sM}, {sM}, {2048*i}"
            pre += f"\ns_add_u32 {sN}, {sM}, {TBSTR}"
            f = AF + 16 * (bb % NB)
            for stp in range(2):
                for tb in range(2):
                    aft = after if (after and stp == 0) else ("mm", bb - NB, stp) if bb >= NB else None
                    B(f"{pre}\nbuffer_load_dwordx4 {ag(f+8*stp+4*tb,4)}, {v(vL16)}, {sWS}, {sN if tb else sM} offen offset:{1024*stp} sc1", ("act", bb, stp), aft, sp=o["spa"])
                    pre = ""
        fO = o["fO"] if att else o["fOf"]; fS = o["fSa"] if att else o["fS"]
        def acts():
            for bb in range(15):
                if bb == fS: fl_bg(sFL, 256, "fS", "fP")
                if bb == fO: fl_bg(sFL, 512, "fO", "fa8")
                act(bb, {0: "fP", 8: "fS", 11: "fO"}.get(bb))
        assert fS >= 5 and fO >= 8
        s = Stream()
        if not att:
            fl_bg(sFL, 0, "fP", "r5")
            for b in late: dma_w(b, wafter(b))
            acts()
            X2.need("m5"); fl_check(X2, sFL, 0, "fP")
            E.mark("odone"); FS = [X, X2, S, C, E]
        else:
            Z = ST + 8; ZT = F8a; KA = XF
            X2.need("sb")
            X2(f"s_mul_i32 {sD}, {sHD}, {KVREC}\ns_add_u32 {sD}, {sD}, {WS_KVP}\nv_add_u32 {v(vJ)}, {sD}, {v(vL16)}")
            X2(f"v_and_b32 {v(vXD0)}, 0x30, {v(vL16)}\nv_lshrrev_b32 {v(vSR)}, 4, v0\nv_lshl_add_u32 {v(vXD0)}, {v(vSR)}, 2, {v(vXD0)}")
            X2.need("c5")
            fl_check(X2, sFK, 0, "fK")
            X2(f"v_and_b32 {v(vFA)}, 0x38, {v(vFA)}"); X2.mark("gat")
            gsp = o.get("gsp", 56)
            B(f"s_movk_i32 {sM}, 0x4000\nbuffer_load_dwordx4 {v(Z,4)}, {v(vJ)}, {sWS}, {sM} offen sc1", "z", "gat", sp=gsp)
            for p in range(16):
                if p == o["nP"]: fl_bg(sFL, 0, "fP", None)
                pre = "" if p % 2 else f"s_lshl_b32 {sM}, {sROT if o.get('grot', 1) else 0}, 11" if p == 0 else f"s_add_u32 {sM}, {sM}, 0x800\ns_and_b32 {sM}, {sM}, 0x3800"
                B(f"{pre}\nbuffer_load_dwordx4 {ag(4*p,4)}, {v(vJ)}, {sWS}, {sM} offen offset:{(p%2)*1024} sc1", ("g", p), ("pd", 5, p), sp=gsp)
            nL = o.get("nL", 0)
            for b in late[:nL]: dma_w(b, wafter(b))
            if o["nP"] >= 16: fl_bg(sFL, 0, "fP", None)
            for b in late[nL:]: dma_w(b, wafter(b))
            acts()
            xo, xs, zw, zr = (CA[0] + i for i in range(4))
            X2(f"s_add_u32 {sD}, {sW16K}, {R[2]+4096}\nv_add_u32 {v(xo)}, {sD}, {v(vL16)}\nv_xor_b32 {v(xs)}, 0x4000, {v(xo)}")
            X2(f"v_add_u32 {v(zw)}, {sD}, {v(vXD0)}\nv_lshl_add_u32 {v(zr)}, {v(vSR)}, 4, {sD}"); X2.mark("xa")
            X2.waittok("z")
            for i in range(4): X2(f"v_lshlrev_b32 {v(ZT+i)}, 16, {v(Z+i)}\nv_and_b32 {v(ZT+4+i)}, 0xffff0000, {v(Z+i)}")
            for i in range(0, 8, 2): X2(f"v_permlane16_swap_b32 {v(ZT+i)}, {v(ZT+i+1)}")
            for i in range(0, 8, 2): X2(f"v_add_f32 {v(ZT+i)}, {v(ZT+i)}, {v(ZT+i+1)}")
            for i in (0, 4): X2(f"v_permlane32_swap_b32 {v(ZT+i)}, {v(ZT+i+2)}")
            for i in (0, 4): X2(f"v_add_f32 {v(ZT+i)}, {v(ZT+i)}, {v(ZT+i+2)}")
            for m in ("row_ror:4", "row_ror:8"):
                for i in (0, 4): X2(f"v_add_f32_dpp {v(ZT+i)}, {v(ZT+i)}, {v(ZT+i)} {m} {DPPM}")
            X2(f"v_cvt_pk_bf16_f32 {v(Z)}, {v(ZT)}, {v(ZT+4)}")
            X2.need("r5"); X2(f"ds_write_b32 {v(zw)}, {v(Z)} offset:4096\nds_read_b128 {v(Z,4)}, {v(zr)} offset:4096", tok="zr"); X2.mark("zr")
            X2.need("m5"); fl_check(X2, sFL, 0, "fP")
            XC = Stream(); XC.need("xa"); XC.need("r5"); XC.need(("sib", PF))
            for k in range(4):
                if k == 2: XC.need(("sib", PF + 16))
                XC(f"ds_write_b128 {v(xo)}, {v(PF+8+16*(k>>1)+4*(k&1),4)} offset:{1024*k}", tok="xw")
            XC.waittok("xw"); XC("s_barrier")
            for k in range(4): XC(f"ds_read_b128 {v(PF+8+16*(k>>1)+4*(k&1),4)}, {v(xs)} offset:{1024*k}", tok="xr")
            XC.waittok("xr"); XC("s_barrier"); XC.mark("xr")
            G = Stream(); G.need("m5")
            for p in range(16):
                if p % 2 == 0: G.waittok(("g", p + 1))
                G(f"{MF} {v(KA,16)}, {v(SEL[0],4)}, {ag(4*p,4)}, {v(KA,16) if p else 0}")
            G.mark("gdone")
            KP = KA + 16
            G(f"s_add_u32 {sSO[0]}, {sHD}, 86\ns_lshl_b32 {sSO[0]}, {sSO[0]}, 10")
            for i in range(4): G(f"v_cvt_pk_bf16_f32 {v(KP+i)}, {v(KA+2*i)}, {v(KA+2*i+1)}")
            G.need("zr"); G.waittok("zr")
            for i in range(4): G(f"v_permlane16_swap_b32 {v(KP+i)}, {v(Z+i)}")
            self.stamp(G, "kvx")
            O = Stream()
            for n, A in ((0, ACC[0]), (1, KA), (3, ACC[1]), (2, TA)):
                if n == 0: G.need("e4")
                if n == 1: G.need("xr")
                if n == 2: G.need("q5")
                G(f"{MF} {v(A,16)}, {v(KP,4)}, {v(PF+8*n,4)}, 0\n{MF} {v(A,16)}, {v(Z,4)}, {v(PF+8*n+4,4)}, {v(A,16)}"); G.mark(("om", n))
                O.need(("om", n))
                O(f"v_add_f32 {v(A+8)}, {f2u(1e-6)}, {v(A+8)}\nv_rcp_f32 {v(A+8)}, {v(A+8)}")
                O(f"s_add_u32 {sSO[1]}, {sAB[n]}, {sSO[0]}")
                for i in range(8): O(f"v_mul_f32 {v(A+i)}, {v(A+i)}, {v(A+8)}")
                for i in range(4): O(f"v_cvt_pk_bf16_f32 {v(A+12+i)}, {v(A+2*i)}, {v(A+2*i+1)}")
                O(f"buffer_store_dwordx4 {v(A+12,4)}, {v(vL16)}, {sWS}, {sSO[1]} offen sc1", tok="actO")
            self.stamp(O, "o"); O.mark("odone")
            FS = [X, X2, S, C, XC, G, E, O]
        nq = o["nq"]
        order = [(bb, stp, tb, cb) for bb in range(15 - nq) for stp in range(2) for tb in range(2) for cb in range(2)]
        order += [(bb, stp, tb, cb) for tb in range(2) for cb in range(2) for bb in range(15 - nq, 15) for stp in range(2)]
        for (bb, stp, tb, cb) in order:
            f = AF + 16 * (bb % NB)
            g = Stream()
            if (stp, tb, cb) == (0, 0, 0):
                if bb == fS: g.need("pub"); fl_check(g, sFL, 256, "fS"); g.mark("fa8")
                if bb == fO: g.need("pub"); fl_check(g, sFL, 512, "fO")
                if bb >= nE: g.need("wq%d" % bb); g.waittok(("wr", bb), lat=0)
            if (bb, stp, tb, cb) == (0, 0, 0, 0):
                g.need("wr7")
                if att: g.need("odone" if o["p2hold"] else "gdone")
            if (tb, cb) == (0, 0): g.waittok(("act", bb, stp), ahead=o["ah2"] if bb >= o["p2e"] else 0, lat=0 if bb >= o["p2e"] else None)
            A = AC2 + 32 * tb + 16 * cb
            g(f"{MF} {ag(A,16)}, {ag(128+16*(bb%8)+8*stp+4*cb,4)}, {ag(f+8*stp+4*tb,4)}, {ag(A,16) if (bb or stp) else 0}")
            if (tb, cb) == (1, 1):
                g.mark(("mm", bb, stp))
                if stp: self.stamp(g, "mm%d" % bb)
            if (bb, stp) == (14, 1): g.mark(("qd", tb, cb))
            M.append(g)
        W = Stream(); W.need("m5")
        W(f"s_add_u32 {sE1}, {sW8K}, {R[2]}\nv_add_u32 {v(vXR)}, {sE1}, {v(vWR)}\nv_add_u32 {v(vXR+1)}, {sE1}, {v(vWR+1)}")
        for b in range(nE, 15):
            if b >= 8: W.need(("mm", b - 8, 1))
            wread(W, b); W.mark("wq%d" % b)
        X = Stream(); X.need("odone"); X.need("fP")
        flag(X, a_fl2(2 if att else 1), "actO" if att else "actS", o["stlat2"])
        X.mark("pub"); X.need(("mm", 3, 1))
        X(f"v_lshrrev_b32 {v(vT0)}, 4, v0\nv_and_b32 {v(vT0)}, 2, {v(vT0)}\nv_and_b32 {v(vT1)}, 7, v0\nv_xor_b32 {v(vT0)}, {v(vT0)}, {v(vT1)}")
        X(f"v_add_lshl_u32 {v(vT0)}, {v(vN16)}, {v(vT0)}, 4\ns_add_u32 {sA}, {sW16K}, {R[2]}\nv_add_u32 {v(RW)}, {sA}, {v(vT0)}")
        for k in range(1, 4): X(f"v_xor_b32 {v(RW+k)}, {64*(k>>1)+16*(k&1)}, {v(RW)}")
        X(f"v_lshrrev_b32 {v(vT0)}, 3, v0\nv_lshlrev_b32 {v(vT1)}, 1, {v(vT1)}\nv_xor_b32 {v(vT1)}, {v(vT1)}, {v(vT0)}\nv_lshlrev_b32 {v(vT1)}, 4, {v(vT1)}")
        X(f"s_lshl_b32 {sA}, {sWV}, 11\ns_add_u32 {sA}, {sA}, {R[2]}\nv_lshl_add_u32 {v(vT0)}, {v(vT0)}, 8, {v(vT1)}\nv_add_u32 {v(RR)}, {sA}, {v(vT0)}\nv_xor_b32 {v(RR+1)}, 16, {v(RR)}")
        Y = ACC[0]; Pp = ACC[1]
        for it in range(2):
            for i in range(4):
                X(f"v_lshlrev_b32 {v(Y+8*it+2*i)}, 16, {v(XR+4*it+i)}\nv_and_b32 {v(Y+8*it+2*i+1)}, 0xffff0000, {v(XR+4*it+i)}")
        for i in range(4):
            X(f"v_lshlrev_b32 {v(vT0)}, 16, {v(B2+i)}\nv_and_b32 {v(vT3)}, 0xffff0000, {v(B2+i)}")
            for it in range(2):
                X(f"v_add_f32 {v(Y+8*it+2*i)}, {v(Y+8*it+2*i)}, {v(vT0)}\nv_add_f32 {v(Y+8*it+2*i+1)}, {v(Y+8*it+2*i+1)}, {v(vT3)}")
        X(f"s_add_u32 {sB}, {sPCOL}, 0x8000"); X.mark("fin")
        Q = Stream(); Z2 = Stream(); Q.need("fin")
        for tb in range(2):
            for cb in range(2):
                Q.need(("qd", tb, cb))
                for k in range(4):
                    Q(f"ds_write_b128 {v(RW+k)}, {ag(AC2+32*tb+16*cb+4*k,4)} offset:{tb*8192+cb*128}", tok=("qw", tb))
            Q.mark(("qw", tb))
            Z2.need(("qw", tb)); Z2.waittok(("qw", tb), lat=80); Z2("s_barrier")
            self.stamp(Z2, "red" if tb else "red0")
            for pw in range(4):
                for k in range(2): Z2(f"ds_read_b128 {v(Pp+32*tb+8*pw+4*k,4)}, {v(RR+k)} offset:{pw*16384+tb*8192}", tok=("qr", tb, pw))
            for pw in range(4):
                Z2.waittok(("qr", tb, pw), lat=100)
                if tb or not nq:
                    for i in range(0, 8, 2): Z2(f"v_pk_add_f32 {v(Y+8*tb+i,2)}, {v(Y+8*tb+i,2)}, {v(Pp+32*tb+8*pw+i,2)}")
                else:
                    for i in range(8): Z2(f"v_add_f32 {v(Y+i)}, {v(Y+i)}, {v(Pp+8*pw+i)}")
            for i in range(4): Z2(f"v_cvt_pk_bf16_f32 {v(XR+4*tb+i)}, {v(Y+8*tb+2*i)}, {v(Y+8*tb+2*i+1)}")
            Z2(f"buffer_store_dwordx4 {v(XR+4*tb,4)}, {v(vOUT)}, {sOut}, {sB if tb else sPCOL} offen{' sc1' if o['outsc1'] else ''}"); self.stamp(Z2, "out%d" % tb)
        tl.sched(M, FS + [X, W, Q, Z2], nds=o.get("nds", 2))
        s = Stream()
        if att:
            noe = self.lab("noe")
            s(f"s_or_b32 {sA}, s2, {sWV}\ns_cmp_lg_u32 {sA}, 0\ns_cbranch_scc1 {noe}")
            s(f"s_mov_b64 exec, 1\nbuffer_store_dword {v(vTAG)}, {v(vZ)}, {sWS}, 0 offen sc1\ns_mov_b64 exec, -1", cond=True)
            s(noe + ":")
        if o.get("probe"):
            lp = self.lab("pad")
            s("s_waitcnt vmcnt(0)"); self.stamp(s, "end")
            s(f"s_waitcnt lgkmcnt(0)\ns_sub_u32 s60, s60, s100\ns_add_u32 s60, s60, 4000")
            s(f"{lp}:\ns_memrealtime s[64:65]\ns_waitcnt lgkmcnt(0)\ns_sub_u32 s64, s64, s100\ns_cmp_lt_u32 s64, s60\ns_cbranch_scc1 {lp}")
        elif o["stamps"]:
            s("s_waitcnt vmcnt(0)\ns_memrealtime s[64:65]\ns_waitcnt lgkmcnt(0)")
            s(f"s_lshl2_add_u32 {sA}, s2, {sWV}\ns_lshl_b32 {sA}, {sA}, 6\ns_add_u32 {sA}, {sA}, {WS_STAMP}")
            for i, r in enumerate(["s100"] + ["s%d" % k for k in STAMPR] + ["s64"]):
                s(f"v_mov_b32 {v(vT1)}, {r}\nbuffer_store_dword {v(vT1)}, {v(vZ)}, {sWS}, {sA} offen offset:{4*i}")
        tl.straight(s)
        assert tl.bi == len(tl.bg)
        tl.log.append("end t=%d forced=%d" % (tl.t, tl.forced))
        if o["log"]: sys.stderr.write("\n".join(role + " " + x for x in tl.log) + "\n")
        return tl.out

    def build(self):
        outs = {}
        for role in ("att", "ffn"):
            st = {}
            outs[role] = finalize(self.role(role), st)
            sys.stderr.write("%s: %s\n" % (role, st))
        ia, jf = outs["att"].index("L_split:"), outs["ffn"].index("L_split:")
        assert outs["att"][:ia] == outs["ffn"][:jf], "common start differs"
        text = outs["att"][:ia] + outs["att"][ia + 1:] + ["s_endpgm", ".p2align 6", "L_ffn:"] + outs["ffn"][jf + 1:] + ["L_end:", "s_endpgm"]
        body = "\n".join(t if t.endswith(":") else "    " + t for t in text) + "\n"
        hdr = ["Fused LayerNorm + hedgehog linear attention + GELU FFN + residual, one persistent launch (generated by my own script).",
               "@launch grid=(256,1,1) block=(256,1,1) lds=163840"]
        return module(hdr, [(NAME + "_kernel", body, 512, 256)])

if __name__ == "__main__":
    opt = {}
    for x in sys.argv[2:]:
        k, _, val = x.partition("=")
        opt[k] = (int(val) if val.lstrip("-").isdigit() else val) if val else True
    open(sys.argv[1], "w").write(Gen(**opt).build())
```

```python
import sys, struct
from asmlib import module
from backend import *

NAME = "parallel_sum__linear_kernel_hedgehog__dense_activation_gelu__prompt"
def f2u(x): return "0x%x" % struct.unpack("<I", struct.pack("<f", x))[0]
LOG2E = 1.4426950408889634
K0 = -2.0 * LOG2E * 0.7978845608028654

WS_G = 0; WS_FL1 = 0x1000; WS_FL2 = 0x3000; WS_STATS = 0x8000; WS_KVP = 0x40000; WS_ACT = 0x200000
KVREC = 17 * 1024; TBSTR = 118 * 1024; WS_STAMP = 0x1000000
TAGC = 0x9E3779B9
R = [0, 32768, 65536, 98304, 131072]
SCR = R[4] + 16384
FFN_BLK0 = [0, 6, 11, 16, 22, 27, 32, 38]
FFN_NBLK = [6, 5, 5, 6, 5, 5, 6, 5]
SBL = [[4, 5, 10], [15, 20, 21], [26, 31, 43], [36, 37, 42]]
def pack(l): return "0x%x" % sum(b << (8 * i) for i, b in enumerate(l))

sX, sW, sWS, sW2, sWo, sOut, sAux, sB2 = ("s[%d:%d]" % (i, i + 3) for i in (8, 12, 16, 20, 24, 28, 32, 36))
sM, sN = "s0", "s1"
sWV, sT, sJ, sU, sI = "s3", "s4", "s5", "s6", "s7"
sROT, sQ4, sTT, sCB, sFL, sSTB = "s64", "s65", "s66", "s67", "s68", "s69"
sA, sB, sC, sD = "s70", "s71", "s72", "s73"
sXB = ["s74", "s75", "s76", "s77"]
sAB = ["s78", "s79", "s80", "s81"]
sXK = ["s82", "s83"]; sSO = ["s84", "s85"]
sBA, sBB = "s86", "s87"; sBS = ["s88", "s89", "s90"]
sPCOL, sW8K, sW16K = "s91", "s92", "s93"
sBLKP, sBLKS = "s94", "s95"; sHD, sFK = "s94", "s95"; sHK = "s6"
sE0, sE1 = "s96", "s97"
sPAR = "s[98:99]"
STAMPR = [60, 40, 42, 44, 50, 52, 46, 54, 62, 56, 58, 48]

class VA:
    def __init__(self, start=1): self.n = start
    def __call__(self, k=1, al=1):
        self.n = (self.n + al - 1) // al * al
        r = self.n; self.n += k
        assert self.n <= 256, "out of VGPRs"
        return r
def v(i, k=1): return "v%d" % i if k == 1 else "v[%d:%d]" % (i, i + k - 1)
def ag(i, k=1): return "a%d" % i if k == 1 else "a[%d:%d]" % (i, i + k - 1)
MF = "v_mfma_f32_32x32x16_bf16"; MF16 = "v_mfma_f32_16x16x32_bf16"
DPPM = "row_mask:0xf bank_mask:0xf"

def srd(s, d, p, n):
    d0 = int(d[2:].split(":")[0])
    s(f"s_mov_b32 s{d0}, s{p}\ns_mov_b32 s{d0+1}, s{p+1}\ns_mov_b32 s{d0+2}, {n}\ns_mov_b32 s{d0+3}, 0x20000")

class Gen:
    def __init__(self, **opt):
        self.o = dict(stamps=False, warm=0, outsc1=True, sp=64, sp1=60, ahead=6, log=False, umode=0, vlat=650, stlat=800,
                      ah0=14, npc=2, nP=6, p2hold=1, spa=56, p2e=3, stlat2=600, qx=4, nq=2, plat0=500, plat=560, sp0=40, warmc=1, stag=1, warmf=0, wsp=180, wpos=0, wpos2=6, cbmix=0, slpK=1, ah0b=6, lag=2, s0=4, slp=8, slat=750, wlat=700, wlat0=1100, nE=4, pace=3, kvpace=20, kvhold=99, hold=0, kvl=12, prio=1, fSa=5, fS=6, fO=8, fOf=9, ah2=10, fo=2)
        self.o.update(opt); self.uid = 0
        global TBSTR, WS_ACT
        TBSTR = 118 * 1024 + self.o.get("tbpad", 0); WS_ACT = 0x200000 + self.o.get("actoff", 0)
    def lab(self, p):
        self.uid += 1; return "L_%s_%d" % (p, self.uid)
    def stamp(self, s, name):
        if not self.o["stamps"]: return
        names = str(self.o.get("st", "x0,b0,p1,u1,u2,u3,u4,u5,q,o,mm14,red")).split(",")
        if name in names:
            r = STAMPR[names.index(name)]; s(f"s_memrealtime s[{r}:{r+1}]")

    def role(self, role):
        att = role == "att"; o = self.o
        tl = TL(o["sp"], o["vlat"]); B = tl.B
        def watch(name):
            x = Stream(); self.stamp(x, name); return x[0].text if x else None
        tl.watch = watch
        s = Stream(); a = VA(1)
        stride = 3072 if att else 2752
        vL16 = a(); vXD0 = a(); vXD = a(4); vOUT = a(); vTAG = a(2, 2); vN16 = a(); vXR = a(4); vSR = a()
        vT0 = a(1, 2); vT1 = a(); vT2 = a(); vT3 = a()
        vSD = a(4); vWD = a(4); vPR = vWD + 1; vWR = a(2); vFL = a(2, 2); vFA = a(); vZ = a()
        RW = vXD; RR = vSD; vWB = vSD + 2
        assert vXD == 3
        vKA = a(2)
        XR = a(8, 4); B2 = a(4, 4)
        ACC = [a(16, 4), a(16, 4)]; NX = 8; XF = a(4 * NX, 4)
        CA = [a(4, 4), a(4, 4)]; ST = a(16, 4); CBS = a(4, 4); CS = a(4, 4); CSEL = a(4, 4); vPD = CBS
        nk = 2 if att else 3
        KC = [a(nk) for _ in range(4)]; KCS = a(nk)
        if att:
            ONES = a(4, 4); SEL = [a(4, 4), a(4, 4)]; F8a = a(8, 4); F8b = a(8, 4)
            PHI = [a(4, 4), a(4, 4), a(4, 4)]; KV = a(16, 4); TB = a(16, 4); PF = KV; TA = a(16, 4); F4 = a(4, 4)
        else:
            vB1 = a(2); G4 = a(4); HO = a(8, 4)
        vJ = a(4 if att else 7)
        sys.stderr.write("%s VGPRs: %d\n" % (role, a.n))
        sp1 = o["sp1"]
        tmp = ACC[0]
        def run4(pre, vb, srdn, tok, after, sp=None):
            for q in range(4):
                B(f"{pre if q == 0 else ''}\nbuffer_load_dwordx4 {v(vb+q)}, {srdn}, {sM} offen offset:{1024*q} lds", tok, after, sp)
        def dma_x(i, after, sp=None):
            for k in range(2): run4(f"s_add_u32 m0, {sW8K}, {R[i]+k*4096}\ns_add_u32 {sM}, {sXB[i]}, {sXK[k]}", vXD, sX, ("x", i), after, sp)
        s("s_cmp_ge_u32 s2, 256\ns_cbranch_scc1 L_end")
        s("s_load_dwordx16 s[40:55], s[0:1], 0\ns_load_dwordx8 s[56:63], s[0:1], 64")
        if o["stamps"]: s("s_memrealtime s[100:101]")
        s(f"s_lshr_b32 {sI}, s2, 3")
        if o["warmc"] == 1:
            s(f"s_getpc_b64 s[72:73]\nL_pc:\ns_sub_u32 s72, s72, L_pc-{NAME}_kernel\ns_subb_u32 s73, s73, 0", glue=True)
            s(f"s_lshl_b32 {sA}, {sI}, 11\nv_lshrrev_b32 v1, 4, v0\nv_lshl_add_u32 v1, v1, 7, {sA}\nv_min_u32 v1, L_end-{NAME}_kernel, v1")
            s(f"global_load_dword {v(XR+4)}, v1, s[72:73]")
        s(f"v_lshrrev_b32 v1, 6, v0\nv_and_b32 v0, 63, v0\nv_readfirstlane_b32 {sWV}, v1\nv_lshlrev_b32 v1, 4, v0")
        s(f"s_and_b32 {sA}, s2, 7\ns_lshr_b32 {sROT}, {sI}, 2\ns_and_b32 {sU}, {sI}, 3")
        s(f"s_and_b32 {sT}, {sA}, 1\ns_lshl3_add_u32 {sT}, {sT}, {sROT}\ns_lshr_b32 {sQ4}, {sA}, 1")
        if o.get("p2x", 1):
            s(f"s_andn2_b32 {sC}, 1, {sA}\ns_lshl2_add_u32 {sA}, {sC}, {sQ4}")
        s(f"s_lshr_b32 {sC}, {sI}, 3\ns_lshl2_add_u32 {sTT}, {sA}, {sC}")
        s(f"s_lshl2_add_u32 {sA}, {sT}, {sQ4}\ns_lshl_b32 {sXB[0]}, {sA}, 15")
        s(f"s_lshl2_add_u32 {sD}, {sU}, {sWV}\ns_lshl_b32 {sA}, {sD}, 11\ns_add_u32 {sSO[0]}, {sXB[0]}, {sA}")
        s(f"s_lshl_b32 {sSTB}, {sT}, 11\ns_add_u32 {sSTB}, {sSTB}, {WS_STATS}\ns_lshl4_add_u32 {sD}, {sQ4}, {sD}\ns_lshl_b32 {sD}, {sD}, 5\ns_add_u32 {sFL}, {sD}, {sSTB}")
        s(f"v_and_b32 {v(vOUT)}, 0x70, v1\nv_and_b32 v3, 0x30, v0\nv_xor_b32 v2, {v(vOUT)}, v3\nv_lshrrev_b32 v3, 3, v0\nv_lshl_add_u32 v3, v3, 10, v2")
        for q in range(3, 0, -1):
            s(f"v_xor_b32 {v(vXD+q)}, {64*(q&1)}, v3\nv_add_u32 {v(vXD+q)}, {7168*q}, {v(vXD+q)}")
        s(f"v_min_u32 {v(vXD0)}, 1, v0\nv_mul_u32_u24 {v(vXD0)}, {sFL}, {v(vXD0)}")
        s(f"s_lshl_b32 {sW8K}, {sWV}, 13\ns_lshl1_add_u32 {sA}, {sWV}, {sROT}\ns_lshl_b32 {sA}, {sA}, 7\ns_and_b32 {sXK[0]}, {sA}, 0x380\ns_add_u32 {sA}, {sA}, 128\ns_and_b32 {sXK[1]}, {sA}, 0x380")
        s(f"s_mov_b32 s10, {2048*1024}\ns_mov_b32 s11, 0x20000\ns_mov_b32 s18, 0x10000000\ns_mov_b32 s19, 0x20000")
        if o["warmc"] >= 2:
            s(f"s_lshl2_add_u32 {sA}, {sI}, {sWV}\ns_mul_i32 {sA}, {sA}, 384\ns_min_u32 {sA}, {sA}, L_end-{NAME}_kernel-384")
            s(f"s_getpc_b64 s[72:73]\nL_pc:\ns_sub_u32 s72, s72, L_pc-{NAME}_kernel\ns_subb_u32 s73, s73, 0\ns_add_u32 s72, s72, {sA}\ns_addc_u32 s73, s73, 0", glue=True)
        s("s_waitcnt lgkmcnt(0)"); self.stamp(s, "go")
        s("s_mov_b64 s[8:9], s[40:41]\ns_mov_b64 s[16:17], s[62:63]"); s.mark("go")
        if o["stag"]: s(f"s_load_dword {sBA}, s[62:63], 0")
        if o["warmc"] >= 2:
            for k in range(0, 6, o["warmc"] - 1): s(f"s_load_dword {sBB}, s[72:73], {64*k}"); s[-1].wr = [("s", "junk%d" % k)]
        for r in range(2): B(f"buffer_load_dwordx4 {v(tmp+4*r,4)}, {v(vL16)}, {sX}, {sSO[0]} offen offset:{1024*r}", "rows", "go", sp=8)
        if not o["stag"]: B(f"buffer_load_dword {v(vTAG)}, {v(vXD0)}, {sWS}, 0 offen sc1", "tag", sp=8)
        dma_x(0, None, o["sp0"])
        s(f"s_and_b32 {sJ}, {sU}, 1\ns_lshl1_add_u32 {sJ}, {sQ4}, {sJ}\ns_lshl_b32 {sE1}, {sWV}, 12")
        s(f"s_mov_b32 s70, {pack(FFN_BLK0[:4])}\ns_mov_b32 s71, {pack(FFN_BLK0[4:])}\ns_lshl_b32 {sC}, {sJ}, 3\ns_lshr_b64 s[70:71], s[70:71], {sC}\ns_and_b32 {sBLKP}, s70, 0xff")
        s(f"s_lshl_b32 {sPCOL}, {sBLKP}, 6\ns_lshl_b32 {sD}, {sJ}, 7\ns_add_u32 {sD}, {sD}, 1024\ns_movk_i32 {sA}, 2752\ns_movk_i32 {sC}, 128\ns_mov_b32 s15, 0x20000")
        s(f"s_cmp_lt_u32 {sU}, 2\ns_cselect_b32 {sPCOL}, {sD}, {sPCOL}\ns_cselect_b32 {sA}, 3072, {sA}\ns_cselect_b32 {sB}, 1, 2\ns_cselect_b32 {sC}, 1024, {sC}\ns_cselect_b32 {sE0}, 7, 5\ns_cselect_b64 s[12:13], s[42:43], s[50:51]", glue=True)
        s(f"s_lshl_b32 s14, {sA}, 9\ns_mul_i32 {sD}, {sWV}, {sA}\ns_mov_b32 {sSO[1]}, {sPCOL}\ns_lshl4_add_u32 {sPCOL}, {sD}, {sPCOL}\ns_lshl_b32 {sBLKS}, {sA}, 6")
        s(f"v_lshrrev_b32 {v(vT0)}, 4, v0\nv_and_b32 {v(vT1)}, 15, v0\nv_lshlrev_b32 {v(vT3)}, {sB}, {v(vT0)}\nv_xor_b32 {v(vT1)}, {v(vT1)}, {v(vT3)}")
        s(f"v_mul_u32_u24 {v(vT0)}, {sA}, {v(vT0)}\nv_lshrrev_b32 {v(vT3)}, 3, {v(vT1)}\nv_mad_u32_u24 {v(vT0)}, {v(vT3)}, {sC}, {v(vT0)}\nv_and_b32 {v(vT1)}, 7, {v(vT1)}")
        s(f"v_lshl_add_u32 {v(vPD)}, {v(vT1)}, 4, {v(vT0)}\ns_lshl_b32 {sA}, {sA}, 2\ns_sub_u32 {sA}, {sA}, 1024")
        for q in range(1, 4): s(f"v_add_u32 {v(vPD+q)}, {sA}, {v(vPD+q-1)}")
        s.mark("pd")
        def dma_p(ci, after=None):
            mul = sBLKS if ci < o["npc"] else 64 * stride
            run4(f"s_add_u32 {sM}, {sROT}, {ci}\ns_and_b32 {sM}, {sM}, 7\ns_mul_i32 {sM}, {sM}, {mul}\ns_add_u32 m0, {sE1}, {R[1]+ci*16384}\ns_add_u32 {sM}, {sM}, {sPCOL}", vPD, sW, ("p", ci), after, sp1 if ci else 16)
        for ci in range(o["npc"]): dma_p(ci, "pd")
        s(f"v_and_b32 {v(vT0)}, 31, v0\nv_lshlrev_b32 {v(vN16)}, 4, {v(vT0)}\nv_lshlrev_b32 {v(vT1)}, 7, {v(vT0)}")
        s(f"v_bfe_u32 {v(vT0)}, v0, 1, 3\nv_lshrrev_b32 {v(vT2)}, 5, v0\nv_xor_b32 {v(vT0)}, {v(vT0)}, {v(vT2)}\nv_lshl_add_u32 {v(vXR)}, {v(vT0)}, 4, {v(vT1)}")
        for cq in range(1, 4): s(f"v_xor_b32 {v(vXR+cq)}, {32*cq}, {v(vXR)}")
        yR, yP, yF, yH, x0, x1 = (ACC[1] + i for i in range(6))
        s(f"v_bfe_u32 {v(yR)}, v0, 2, 2\nv_bfe_u32 {v(yP)}, v0, 4, 1\ns_add_u32 {sB}, {sB}, 4")
        s(f"v_and_b32 {v(yF)}, 16, {v(vL16)}\nv_and_b32 {v(yH)}, 2, v0\nv_lshl_add_u32 {v(yF)}, {v(yH)}, 2, {v(yF)}\nv_lshl_add_u32 {v(yH)}, {v(vT2)}, 3, {v(yR)}")
        s(f"v_xor_b32 {v(x0)}, {sWV}, {v(yR)}\nv_lshl_add_u32 {v(x0)}, {v(x0)}, {sB}, {v(yF)}\nv_lshl_add_u32 {v(x0)}, {v(yP)}, {sE0}, {v(x0)}")
        s(f"v_cmp_eq_u32 vcc, {v(yR)}, {v(yP)}\nv_mov_b32 {v(vT1)}, 0x3f803f80")
        s(f"v_lshl_add_u32 {v(x0)}, {v(yH)}, 8, {v(x0)}\nv_add_u32 {v(vPR)}, {R[1]}, {v(x0)}\nv_add_u32 {v(vPR+1)}, {R[3]}, {v(x0)}")
        for i in range(4): s(f"v_cndmask_b32 {v(CSEL+i)}, 0, {v(vT1)}, vcc")
        if o["cbmix"]: s(f"s_lshr_b32 {sCB}, {sI}, 3\ns_lshl1_add_u32 {sCB}, {sCB}, {sI}")
        s(f"s_and_b32 {sCB}, {sCB if o['cbmix'] else sI}, 7\ns_lshl_b32 {sCB}, {sCB}, 7\ns_lshl_b32 {sW16K}, {sWV}, 14\nv_mov_b32 {v(vZ)}, 0")
        s(f"s_and_b32 {sA}, {sWV}, 1\ns_cmp_eq_u32 {sA}, 1\ns_cselect_b64 {sPAR}, -1, 0")
        for i in range(4):
            s(f"s_add_u32 {sA}, {sQ4}, {i}\ns_and_b32 {sA}, {sA}, 3\ns_lshl2_add_u32 {sA}, {sT}, {sA}")
            if i: s(f"s_lshl_b32 {sXB[i]}, {sA}, 15")
            s(f"s_mul_i32 {sAB[i]}, {sA}, {TBSTR}\ns_add_u32 {sAB[i]}, {sAB[i]}, {WS_ACT}")
        srd(s, sB2, 56, 1024)
        srd(s, sW2, 54, 1376 * 1024); srd(s, sWo, 46, 512 * 1024); srd(s, sOut, 58, 2048 * 1024)
        s.waittok("rows", ahead=o["ah0"]); self.stamp(s, "rows")
        q = ST
        for i in range(4): s(f"v_mov_b32 {v(q+i)}, 0")
        for i in range(4):
            for r in range(2):
                s(f"v_dot2c_f32_bf16 {v(q+r)}, {v(tmp+4*r+i)}, {v(vT1)}\nv_dot2c_f32_bf16 {v(q+2+r)}, {v(tmp+4*r+i)}, {v(tmp+4*r+i)}")
        if o["stag"]: s(f"s_mov_b32 {sA}, {sBA}\nv_lshrrev_b32 {v(vT0)}, 1, v0")
        else:
            s.waittok("tag")
            s(f"v_readfirstlane_b32 {sA}, {v(vTAG)}\nv_lshrrev_b32 {v(vT0)}, 1, v0")
        s(f"v_permlane32_swap_b32 {v(q)}, {v(q+1)}\nv_permlane32_swap_b32 {v(q+2)}, {v(q+3)}")
        s(f"v_add_f32 {v(q)}, {v(q)}, {v(q+1)}\nv_add_f32 {v(q+2)}, {v(q+2)}, {v(q+3)}\ns_add_u32 {sA}, {sA}, 0x{TAGC:x}")
        s(f"v_mov_b32 {v(vTAG)}, {sA}\nv_permlane16_swap_b32 {v(q)}, {v(q+2)}\nv_add_f32 {v(q)}, {v(q)}, {v(q+2)}")
        s(f"v_mov_b32 {v(vTAG+1)}, {sA}\nv_mov_b32 {v(q+1)}, {sA}")
        for m in ("quad_perm:[1,0,3,2]", "quad_perm:[2,3,0,1]", "row_half_mirror", "row_mirror"):
            s(f"v_add_f32_dpp {v(q)}, {v(q)}, {v(q)} {m} {DPPM}")
        s(f"s_mov_b32 exec_lo, 0x00010001\ns_mov_b32 exec_hi, 0x00010001\nbuffer_store_dwordx2 {v(q,2)}, {v(vT0)}, {sWS}, {sFL} offen sc1\ns_mov_b64 exec, -1", glue=True)
        self.stamp(s, "st")
        tl.straight(s); s = Stream()
        while tl.bi < len(tl.bg): tl.emit_bg(True)
        s(f"s_cmp_ge_u32 {sU}, 2\ns_cbranch_scc1 L_ffn\nL_split:", glue=True)
        tl.straight(s); s = Stream()
        if att:
            s(f"s_lshl2_add_u32 {sHK}, {sJ}, {sWV}\ns_add_u32 {sJ}, {sJ}, {o['qx']}\ns_and_b32 {sJ}, {sJ}, 7\ns_lshl_b32 {sD}, {sJ}, 7")
        else: s(f"s_add_u32 {sD}, {sSO[1]}, 256")
        if att:
            s(f"s_lshl2_add_u32 {sHD}, {sJ}, {sWV}"); srd(s, sAux, 44, 32 * 512)
        else:
            s(f"s_lshr_b32 {sB}, {sWV}, 1\ns_add_u32 {sBLKS}, {sBLKP}, {sB}\ns_add_u32 {sBLKS}, {sBLKS}, 4\ns_add_u32 {sBLKP}, {sBLKP}, {sWV}")
            srd(s, sAux, 52, 2752)
            t0, t2 = vB1, vB1 + 1
            s(f"v_and_b32 {v(t0)}, 0x13, v0\nv_and_b32 {v(t2)}, 4, v0\nv_lshl_add_u32 {v(t0)}, {v(t2)}, 1, {v(t0)}\nv_bfe_u32 {v(t2)}, v0, 3, 1\nv_lshl_add_u32 {v(t0)}, {v(t2)}, 2, {v(t0)}")
            s(f"v_and_b32 {v(t2)}, 32, v0\nv_lshl_add_u32 {v(t0)}, {v(t2)}, 8, {v(t0)}\nv_lshlrev_b32 {v(G4)}, 1, {v(t0)}")
        s.mark("aux")
        dma_p(o["npc"])
        B(f"buffer_load_dwordx4 {v(B2,4)}, {v(vOUT)}, {sB2}, {sCB} offen", None, "aux", sp=16)
        if att:
            B(f"s_lshr_b32 {sM}, {sHD}, 1\ns_add_u32 m0, {sE1}, {SCR}\ns_lshl_b32 {sM}, {sM}, 10\nbuffer_load_dwordx4 {v(vL16)}, {sAux}, {sM} offen lds", None, "aux", sp=16)
            B(f"s_lshr_b32 {sM}, {sHK}, 1\ns_add_u32 m0, {sE1}, {SCR+1024}\ns_lshl_b32 {sM}, {sM}, 10\nbuffer_load_dwordx4 {v(vL16)}, {sAux}, {sM} offen lds", "b2", sp=16)
        else:
            B(f"s_lshl_b32 {sM}, {sBLKP}, 6\nbuffer_load_ushort {v(vB1)}, {v(G4)}, {sAux}, {sM} offen", None, "aux", sp=16)
            B(f"s_lshl_b32 {sM}, {sBLKS}, 6\nbuffer_load_ushort {v(vB1+1)}, {v(G4)}, {sAux}, {sM} offen", "b2", sp=16)
        w1 = vJ + 1
        def warm2(ks):
            if o["warm"] != (1 if att else 2): return
            for k in ks:
                pre = f"v_lshlrev_b32 {v(w1)}, 3, {v(vN16)}\ns_and_b32 {sN}, {sI}, 1\ns_lshl1_add_u32 {sN}, {sROT}, {sN}\ns_lshl2_add_u32 {sN}, {sN}, {sWV}\n" if k == 0 else ""
                pre += f"s_mul_i32 {sM}, {sN}, {174*128}\ns_add_u32 {sM}, {sM}, {29*128*k}" if k < 6 else f"s_lshl_b32 {sM}, {sN}, 13\ns_add_u32 {sM}, {sM}, {4096*(k-6)}"
                B(f"{pre}\nbuffer_load_dword {v(w1+1)}, {v(w1)}, {sW2 if k < 6 else sWo}, {sM} offen", sp=o["wsp"]); tl.bg[-1].ins[-1].wr = []
        if o["warmf"]:
            B(f"s_lshl_b32 {sM}, s2, 7\ns_add_u32 {sM}, {sM}, {WS_FL1}\nbuffer_load_dword {v(w1+2)}, {v(vZ)}, {sWS}, {sM} offen", sp=16)
        for ci in range(o["npc"] + 1, 8): dma_p(ci, "phi" if ci == 7 else None)
        if att:
            s(f"v_bfe_u32 {v(x0)}, v0, 1, 1\nv_lshl_add_u32 {v(x0)}, {v(yP)}, 1, {v(x0)}\nv_lshlrev_b32 {v(x0)}, 3, {v(x0)}\nv_lshl_add_u32 {v(x0)}, {v(yH)}, 5, {v(x0)}")
            s(f"s_and_b32 {sC}, s98, 0x200\ns_add_u32 {sA}, {sE1}, {sC}\ns_add_u32 {sA}, {sA}, {SCR}")
            s(f"v_add_u32 {v(vJ)}, {sA}, {v(x0)}\nv_xor_b32 {v(vJ+1)}, 0x200, {v(vJ)}"); s.mark("pha")
        s(f"s_movk_i32 {sB}, {stride}")
        for k in range(2):
            s(f"s_add_u32 {sA}, {sWV}, {sROT}\ns_add_u32 {sA}, {sA}, {4*k}\ns_and_b32 {sA}, {sA}, 7\ns_mul_i32 {sA}, {sA}, {64*stride}\ns_add_u32 {sSO[k]}, {sA}, {sD}")
        def dma_s(half, after):
            for k in range(2): run4(f"s_add_u32 m0, {sW8K}, {R[4-4*half]+k*4096}\ns_add_u32 {sM}, {sSO[half]}, {32*stride*k}", vSD, sW, ("s", half), after)
        s(f"v_lshrrev_b32 {v(vT0)}, 3, v0\nv_lshlrev_b32 {v(vT1)}, 2, v0\nv_and_b32 {v(vT1)}, 64, {v(vT1)}\nv_xor_b32 {v(vT1)}, {v(vT1)}, {v(vOUT)}")
        s(f"v_mad_u32_u24 {v(vSD)}, {v(vT0)}, {sB}, {v(vT1)}")
        for q in range(1, 4): s(f"v_add_u32 {v(vSD+q)}, {q*(8*stride-1024)}, {v(vSD)}")
        s(f"v_lshl_add_u32 {v(vWD+3)}, {v(vT0)}, 10, {v(vT1)}")
        if att:
            s(f"v_lshl_add_u32 {v(vT3)}, {v(vT2)}, 9, {v(vN16)}\nv_lshlrev_b32 {v(vT2)}, 5, {v(vT2)}\nv_add_u32 {v(vT2)}, 0x400, {v(vT2)}")
            s(f"v_cmp_gt_u32 vcc, 0x100, {v(vN16)}\nv_add_u32 {v(vT0)}, 16, {v(vT2)}\nv_add_u32 {v(vT1)}, 0x100, {v(vT3)}")
            s(f"v_cndmask_b32 {v(vKA)}, {v(vT2)}, {v(vT3)}, vcc\nv_cndmask_b32 {v(vKA+1)}, {v(vT0)}, {v(vT1)}, vcc")
        s(f"v_lshrrev_b32 {v(x0)}, 1, {v(yR)}\nv_lshl_add_u32 {v(x0)}, {v(x0)}, 6, {v(yF)}\nv_lshl_add_u32 {v(x0)}, {v(yP)}, 5, {v(x0)}\nv_lshl_add_u32 {v(x0)}, {v(yH)}, 7, {v(x0)}")
        s(f"v_add_u32 {v(vWR)}, {sW8K}, {v(x0)}\nv_xor_b32 {v(vWR+1)}, 64, {v(vWR)}")
        if att: s(f"s_lshl_b32 {sA}, {sWV}, 5")
        else: s(f"s_and_b32 {sA}, {sWV}, 2\ns_lshl_b32 {sA}, {sA}, 5")
        s(f"v_xor_b32 {v(x0)}, {sA}, {v(x0)}\nv_add_u32 {v(vSR)}, {R[4]}, {v(x0)}")
        if att:
            for i in range(4): s(f"v_mov_b32 {v(ONES+i)}, 0x3f803f80")
        s(f"v_and_b32 {v(vFA)}, {15 if att else 7}, v0\nv_lshlrev_b32 {v(vFA)}, 3, {v(vFA)}")
        if att:
            s(f"v_bfe_u32 {v(vT0)}, v0, 2, 1\nv_lshrrev_b32 {v(vT2)}, 5, v0\nv_cmp_eq_u32 vcc, {v(vT0)}, {v(vT2)}")
            s(f"v_and_b32 {v(vT0)}, 16, {v(vL16)}\nv_mov_b32 {v(vT2)}, 0x3f80\nv_lshlrev_b32 {v(vT2)}, {v(vT0)}, {v(vT2)}\nv_cndmask_b32 {v(vT2)}, 0, {v(vT2)}, vcc")
            s(f"v_bfe_u32 {v(vT0)}, v0, 1, 1\nv_bfe_u32 {v(vT3)}, v0, 3, 2\nv_lshl_add_u32 {v(vT0)}, {v(vT3)}, 1, {v(vT0)}")
            for i in range(0, 8, 2):
                s(f"v_cmp_eq_u32 vcc, {i}, {v(vT0)}\nv_cmp_eq_u32 s[70:71], {i+1}, {v(vT0)}")
                s(f"s_nop 0\nv_cndmask_b32 {v(SEL[i>>2]+(i&3))}, 0, {v(vT2)}, vcc\nv_cndmask_b32 {v(SEL[i>>2]+(i&3)+1)}, 0, {v(vT2)}, s[70:71]")
            s(f"s_lshl_b32 {sFK}, {sHD}, 7\ns_add_u32 {sFK}, {sFK}, {WS_FL1}")
        s(f"s_lshr_b32 {sFL}, {sTT}, 1\ns_lshl4_add_u32 {sFL}, {sFL}, {sWV}\ns_lshl_b32 {sFL}, {sFL}, 6\ns_add_u32 {sFL}, {sFL}, {WS_FL2}")
        s(f"s_lshl_b32 {sC}, {sWV}, 3")
        for d, tb in ((sBA, FFN_BLK0[0::2]), (sBB, FFN_BLK0[1::2]), (sBS[0], [x[0] for x in SBL]), (sBS[1], [x[1] for x in SBL]), (sBS[2], [x[2] for x in SBL])):
            s(f"s_lshr_b32 {d}, {pack(tb)}, {sC}\ns_and_b32 {d}, {d}, 0xff")
        PH = Stream()
        if att:
            PH.need("pha"); PH.waittok("b2")
            for hs in range(3):
                for e in range(2): PH(f"ds_read_b64_tr_b16 {v(PHI[hs]+2*e,2)}, {v(vJ+(hs&1))} offset:{e*128+(hs>>1)*1024}", tok="phr")
            PH.waittok("phr")
        PH.mark("phi")
        s.need("phi"); s.waittok("b2")
        s(f"v_lshrrev_b32 {v(vT0)}, 3, v0\nv_lshl_add_u32 {v(vOUT)}, {v(vT0)}, 10, {v(vOUT)}")
        if not att:
            six = sum(1 << i for i, n in enumerate(FFN_NBLK) if n == 6)
            s(f"s_lshr_b32 {sC}, {six}, {sJ}\ns_lshr_b32 {sA}, {sWV}, 1\ns_andn2_b32 {sC}, {sA}, {sC}\ns_and_b32 {sC}, {sC}, 1\ns_lshl_b32 {sC}, {sC}, 18\ns_or_b32 {sBLKS}, {sBLKS}, {sC}")
        else:
            s(f"v_and_b32 {v(vT2)}, 4, v0\nv_cmp_ne_u32 vcc, 0, {v(vT2)}\nv_mov_b32 {v(vT3)}, 0x80008000\ns_nop 0\nv_cndmask_b32 {v(vT3)}, 0, {v(vT3)}, vcc")
            for i in range(12): s(f"v_xor_b32 {v(PHI[i>>2]+(i&3))}, {v(vT3)}, {v(PHI[i>>2]+(i&3))}")
        def stats_ld(i, r):
            return f"s_add_u32 {r}, {sQ4}, {i}\ns_and_b32 {r}, {r}, 3\ns_lshl_b32 {r}, {r}, 9\ns_add_u32 {r}, {r}, {sSTB}\nbuffer_load_dwordx4 {v(ST+4*i,4)}, {v(vN16)}, {sWS}, {r} offen sc1"
        def xread(st, un, region, ks):
            st(f"ds_read_b128 {v(XF+4*(ks%NX),4)}, {v(vXR+(ks&3))} offset:{region+(ks>>2)*4096}", tok=("xf", un, ks))
        def stat_consts(st, i):
            m, va = ST + 4 * i, ST + 4 * i + 2; k = KC[i]
            st(f"v_mul_f32 {v(m)}, {f2u(1/512)}, {v(m)}\nv_mul_f32 {v(va)}, {f2u(1/512)}, {v(va)}\nv_fma_f32 {v(va)}, -{v(m)}, {v(m)}, {v(va)}\nv_max_f32 {v(va)}, 0, {v(va)}")
            st(f"v_add_f32 {v(va)}, {f2u(1e-5)}, {v(va)}\nv_sqrt_f32 {v(va)}, {v(va)}\nv_mov_b32 {v(m+3)}, 0")
            st(f"v_cvt_pk_bf16_f32 {v(m+1)}, -{v(m)}, {v(va)}\nv_rcp_f32 {v(k)}, {v(va)}")
            st(f"v_lshlrev_b32 {v(vT0)}, 16, {v(m+1)}\nv_and_b32 {v(vT1)}, 0xffff0000, {v(m+1)}")
            st(f"v_sub_f32 {v(m)}, -{v(m)}, {v(vT0)}\nv_sub_f32 {v(vT1)}, {v(va)}, {v(vT1)}")
            if att: st(f"v_mul_f32 {v(k+1)}, {f2u(LOG2E)}, {v(k)}")
            else:
                st(f"v_mov_b32 {v(k+2)}, {v(va)}\nv_mul_f32 {v(k+1)}, {v(k)}, {v(k)}\nv_mul_f32 {v(k)}, {f2u(K0)}, {v(k)}")
                st(f"v_mul_f32 {v(k+1)}, {v(k+1)}, {v(k)}\nv_mul_f32 {v(k+1)}, {f2u(0.044715)}, {v(k+1)}")
            st(f"v_cvt_pk_bf16_f32 {v(m)}, {v(vT0)}, {v(m)}\nv_cvt_pk_bf16_f32 {v(m+2)}, {v(vT1)}, 0")
        def corr_pre(st, which):
            c = CA[which]
            st(f"v_mov_b32 {v(c+3)}, 0\nv_mov_b32 {v(c+2)}, {0 if att else v(vB1+which)}")
            if not att: st(f"v_lshlrev_b32 {v(vB1+which)}, 16, {v(vB1+which)}")
        def corr_a(st, which):
            c = CA[which]
            st(f"v_cvt_pk_bf16_f32 {v(c)}, {v(CS)}, {v(CS)}\nv_lshlrev_b32 {v(vT1)}, 16, {v(c)}\nv_sub_f32 {v(vT0)}, {v(CS)}, {v(vT1)}")
            st(f"v_cvt_pk_bf16_f32 {v(c+1)}, {v(vT0)}, {0 if att else v(vB1+which)}")
        def spin(st, test, reload_, name):
            lp, ok = self.lab("poll"), self.lab("ok")
            st(test + f"\ns_cbranch_vccz {ok}", glue=True)
            st(f"s_mov_b32 {sC}, 0", cond=True)
            st(lp + ":")
            slp = o["slp"] if name in ("fO", "fS") else o["slpK"]
            if slp: st(f"s_sleep {slp}", cond=True)
            st(reload_, cond=True)
            st(f"s_add_u32 {sC}, {sC}, 1\ns_cmp_gt_u32 {sC}, 100000\ns_cbranch_scc1 {ok}\ns_waitcnt vmcnt(0)", cond=True)
            st(test + f"\ns_nop 4\ns_cbranch_vccnz {lp}", cond=True)
            st(ok + ":\ns_nop 0"); st.mark(name); self.stamp(st, name)
        corr_pre(s, 0); corr_pre(s, 1)
        B(stats_ld(0, sM), "stat0", "b%d" % o["s0"], sp=32)
        dma_x(1, "b3", sp1)
        for i in range(1, 4): B(stats_ld(i, sM), "stats", "b7", sp=32)
        dma_x(2, "b5"); dma_x(3, "b7")
        lag = o["lag"]
        Mp = []
        def mf(kp): return f"{MF} {v(ACC[0],16)}, {ag(4*kp,4)}, {v(XF+4*(kp%NX),4)}, {v(ACC[0],16) if kp else 0}"
        def mf16(kp): return f"{MF16} {v(CS,4)}, {v(CSEL,4)}, {ag(4*kp,4)}, {v(CS,4) if kp else 0}"
        g = Stream()
        for ks in range(32):
            ci, kk = ks >> 2, ks & 3; kp = ks - lag
            if kk == 0:
                if ci == 0: g.waittok(("x", 0), ("p", 0), ahead=o["ah0b"], lat=o["plat0"]); self.stamp(g, "x0")
                else: g.waittok(("p", ci), ahead=o["ahead"], lat=o["plat"])
                g("s_barrier"); g.mark("b%d" % ci); self.stamp(g, "b%d" % ci)
            if kp >= 0: g.waittok(("xf", 0, kp), lat=0); g(mf(kp))
            for e in range(2):
                g(f"ds_read_b64_tr_b16 {ag(4*ks+2*e,2)}, {v(vPR+(ci>>2))} offset:{(ci&3)*16384+kk*4096+e*1024}")
            xread(g, 0, 0, ks)
            if ks == 31: g.mark("prd")
            Mp.append(g); g = Stream()
            if kp >= 0: g(mf16(kp)); Mp.append(g); g = Stream()
        x = s
        x.waittok("stat0")
        spin(x, f"v_xor_b32 {v(vT0)}, {v(vTAG)}, {v(ST+1)}\nv_xor_b32 {v(vT1)}, {v(vTAG)}, {v(ST+3)}\nv_cmp_ne_u64 vcc, 0, {v(vT0,2)}", stats_ld(0, sA), "st0")
        stat_consts(x, 0)
        x.need("prd")
        x(f"v_mov_b32 {v(vWD)}, {v(vWD+3)}")
        for q in range(1, 4): x(f"v_add_u32 {v(vWD+q)}, {7168*q}, {v(vWD)}")
        x(f"s_lshl_b32 {sPCOL}, {sTT}, 16\ns_add_u32 {sPCOL}, {sPCOL}, {sW8K}\ns_add_u32 {sPCOL}, {sPCOL}, {sCB}")
        x.need("cs0"); corr_a(x, 0); x.mark("ca0")
        for n, kp in enumerate(range(32 - lag, 32)):
            g = Stream()
            if n == 0: g.waittok(("xf", 0, 31)); g("s_barrier"); g.mark("b8")
            g(f"{MF16} {v(CS,4)}, {v(CSEL,4)}, {ag(4*kp,4)}, {v(CS,4)}")
            if kp == 31: g.mark("cs0")
            Mp.append(g)
        for kp in range(32 - lag, 32):
            g = Stream(); g(f"{MF} {v(ACC[0],16)}, {ag(4*kp,4)}, {v(XF+4*(kp%NX),4)}, {v(ACC[0],16)}"); Mp.append(g)
        g = Stream(); g.need("ca0"); g(f"{MF} {v(ACC[0],16)}, {v(CA[0],4)}, {v(ST,4)}, {v(ACC[0],16)}"); self.stamp(g, "p1"); Mp.append(g)
        tl.sched(Mp, [PH, x])
        if o.get("stop"):
            out = Stream()
            for i in tl.out:
                if "m" in o["stop"] and i.kind == "mfma": continue
                if "s" in o["stop"] and (i.kind == "vst" or i.cond or i.op.startswith("s_cbranch_vcc")): continue
                if "b" in o["stop"] and i.kind == "barrier": continue
                if "d" in o["stop"] and (i.kind == "dsr" or (i.kind == "waittok" and (i.tok[0] == "phr" or i.tok[0][0] == "xf"))): continue
                out.append(i)
            s = out
            s("s_waitcnt vmcnt(0)\ns_memrealtime s[64:65]\ns_waitcnt lgkmcnt(0)")
            s(f"s_lshl2_add_u32 {sA}, s2, {sWV}\ns_lshl_b32 {sA}, {sA}, 6\ns_add_u32 {sA}, {sA}, {WS_STAMP}")
            for i, r in enumerate(["s100"] + ["s%d" % k for k in STAMPR] + ["s64"]):
                s(f"v_mov_b32 {v(vT1)}, {r}\nbuffer_store_dword {v(vT1)}, {v(vZ)}, {sWS}, {sA} offen offset:{4*i}")
            return s

        def gelu(e, acc, k, sbase, sblk, tok):
            e(f"s_lshl_b32 {sB}, {sblk}, 11\ns_add_u32 {sB}, {sB}, {sbase}")
            for q in range(4):
                A = [v(acc + 4 * q + i) for i in range(4)]; T = [v(G4 + i) for i in range(4)]
                for i in range(4): e(f"v_mul_f32 {T[i]}, {A[i]}, {A[i]}")
                for i in range(4): e(f"v_fma_f32 {T[i]}, {T[i]}, {v(k+1)}, {v(k)}")
                for i in range(4): e(f"v_mul_f32 {T[i]}, {A[i]}, {T[i]}")
                for i in range(4): e(f"v_exp_f32 {T[i]}, {T[i]}")
                for i in range(4): e(f"v_fma_f32 {T[i]}, {T[i]}, {v(k+2)}, {v(k+2)}")
                for i in range(4): e(f"v_rcp_f32 {T[i]}, {T[i]}")
                for i in range(4): e(f"v_mul_f32 {T[i]}, {A[i]}, {T[i]}")
                for i in range(2): e(f"v_cvt_pk_bf16_f32 {v(HO+2*q+i)}, {T[2*i]}, {T[2*i+1]}")
                if q & 1: e(f"buffer_store_dwordx4 {v(HO+4*(q>>1),4)}, {v(vL16)}, {sWS}, {sB} offen offset:{1024*(q>>1)} sc1", tok=tok)
        def sm_head(e, src, phi, T_, f4):
            for i in range(4): e(f"v_cvt_pk_bf16_f32 {v(f4+i)}, {v(src+2*i)}, {v(src+2*i+1)}")
            e(f"{MF} {v(T_,16)}, {v(phi,4)}, {v(f4,4)}, 0")
        def sm_body(e, T_, k, dst):
            t2, t3 = v(vT2), v(vT3); T = lambda i: v(T_ + i)
            e(f"v_max3_f32 {t2}, {T(0)}, {T(1)}, {T(2)}\nv_max3_f32 {t3}, {T(3)}, {T(4)}, {T(5)}")
            for i in range(2): e(f"v_max3_f32 {t2}, {t2}, {T(6+4*i)}, {T(7+4*i)}\nv_max3_f32 {t3}, {t3}, {T(8+4*i)}, {T(9+4*i)}")
            e(f"v_max3_f32 {t2}, {t2}, {T(14)}, {T(15)}\nv_max_f32 {t2}, {t2}, {t3}\nv_mul_f32 {t2}, {t2}, {v(k+1)}")
            for i in range(16): e(f"v_fma_f32 {T(i)}, {T(i)}, {v(k+1)}, -{t2}")
            for i in range(16): e(f"v_exp_f32 {T(i)}, {T(i)}")
            e(f"v_add_f32 {t2}, {T(0)}, {T(1)}\nv_add_f32 {t3}, {T(2)}, {T(3)}")
            for i in range(4, 16, 2): e(f"v_add_f32 {t2}, {t2}, {T(i)}\nv_add_f32 {t3}, {t3}, {T(i+1)}")
            e(f"v_add_f32 {t2}, {t2}, {t3}\nv_rcp_f32 {t2}, {t2}")
            for i in range(16): e(f"v_mul_f32 {T(i)}, {T(i)}, {t2}")
            for i in range(8): e(f"v_cvt_pk_bf16_f32 {v(dst+i)}, {T(2*i)}, {T(2*i+1)}")
        def kepi(e, un):
            acc, k = ACC[un & 1], KC[un]
            e(f"{MF} {v(TB,16)}, {v(ONES,4)}, {v(SEL[1],4)}, 0")
            e.need("m%d" % un)
            sm_head(e, acc, PHI[2], TA, F4)
            for i in range(8): e(f"v_mul_f32 {v(acc+8+i)}, {v(acc+8+i)}, {v(k)}")
            for i in range(4): e(f"v_cvt_pk_bf16_f32 {v(F8b+i)}, {v(acc+8+2*i)}, {v(acc+9+2*i)}")
            e.mark("e%d" % un)
            b = Stream(); sm_body(b, TA, k, F8a)
            e.extend(b[:2]); e(f"{MF} {v(TB,16)}, {v(F8b,4)}, {v(SEL[0],4)}, {v(TB,16)}"); e.extend(b[2:-4])
            e.extend(b[-4:-2]); e2 = b[-2:]
            TC = acc2 = None
            e.extend(e2)
            for i in range(2): e(f"v_cvt_pk_bf16_f32 {v(F8b+i)}, {v(TB+2*i)}, {v(TB+2*i+1)}")
            e(f"{MF} {v(TA,16)}, {v(F8a,4)}, {v(SEL[0],4)}, 0")
            for i in range(2, 8): e(f"v_cvt_pk_bf16_f32 {v(F8b+i)}, {v(TB+2*i)}, {v(TB+2*i+1)}")
            e(f"{MF} {v(TA,16)}, {v(F8a+4,4)}, {v(SEL[1],4)}, {v(TA,16)}")
            for i in range(8): e(f"v_cvt_pk_bf16_f32 {v(F8a+i)}, {v(TA+2*i)}, {v(TA+2*i+1)}")
            e(f"{MF} {v(KV,16)}, {v(F8a,4)}, {v(F8b,4)}, {v(KV,16) if un else 0}\n{MF} {v(KV,16)}, {v(F8a+4,4)}, {v(F8b+4,4)}, {v(KV,16)}")
        def kvpub(e):
            e(f"s_mul_i32 {sB}, {sT}, 960\ns_sub_u32 {sB}, 15360, {sB}\nv_lshrrev_b32 {v(vT3)}, 8, {v(vN16)}")
            e(f"v_mad_u32_u24 {v(vT2)}, {v(vT3)}, {sB}, {v(vKA)}\nv_mad_u32_u24 {v(vT3)}, {v(vT3)}, {sB}, {v(vKA+1)}")
            e(f"s_mul_i32 {sB}, {sHK}, 17\ns_add_u32 {sB}, {sB}, {sT}\ns_lshl_b32 {sB}, {sB}, 10\ns_add_u32 {sB}, {sB}, {WS_KVP}")
            for c in range(2):
                for i in range(4): e(f"v_cvt_pk_bf16_f32 {v(F8a+4*c+i)}, {v(KV+8*c+2*i)}, {v(KV+8*c+2*i+1)}")
                e(f"buffer_store_dwordx4 {v(F8a+4*c,4)}, {v(vT2+c)}, {sWS}, {sB} offen sc1", tok="kvp")
        def qepi(e, acc, k, dst):
            for i in range(4): e(f"v_cvt_pk_bf16_f32 {v(F4+i)}, {v(acc+2*i)}, {v(acc+2*i+1)}")
            for i in range(4): e(f"v_cvt_pk_bf16_f32 {v(F8b+i)}, {v(acc+8+2*i)}, {v(acc+9+2*i)}")
            e(f"{MF} {v(acc,16)}, {v(PHI[1],4)}, {v(F8b,4)}, 0\n{MF} {v(TA,16)}, {v(PHI[0],4)}, {v(F4,4)}, 0")
            sm_body(e, acc, k, dst + 8); e.mark(("sib", dst)); sm_body(e, TA, k, dst)
        def flag(st, addr, tok, lat=None):
            st(addr)
            st.waittok(tok, lat=lat or o["stlat"])
            st(f"s_mov_b64 exec, 1\nbuffer_store_dwordx2 {v(vTAG,2)}, {v(vZ)}, {sWS}, {sD} offen sc1\ns_mov_b64 exec, -1", glue=True)
        a_fl1 = f"s_lshl4_add_u32 {sD}, {sHK}, {sT}\ns_lshl_b32 {sD}, {sD}, 3\ns_add_u32 {sD}, {sD}, {WS_FL1}"
        def a_fl2(kind): return f"s_lshl2_add_u32 {sD}, {sJ}, {sWV}\ns_lshl_b32 {sC}, {sT}, 10\ns_lshl3_add_u32 {sD}, {sD}, {sC}\ns_add_u32 {sD}, {sD}, {WS_FL2+256*kind}"
        def fl_txt(sreg, off): return f"buffer_load_dwordx2 {v(vFL,2)}, {v(vFA)}, {sWS}, {sreg} offen offset:{off} sc1"
        def fl_bg(sreg, off, tok, after): B(fl_txt(sreg, off), tok, after, sp=16)
        def fl_check(st, sreg, off, tok):
            st.waittok(tok)
            spin(st, f"v_cmp_ne_u64 vcc, {v(vFL,2)}, {v(vTAG,2)}", fl_txt(sreg, off), tok)

        SLOT = {"a0": (sW8K, R[0]), "a1": (sW8K, R[0] + 4096), "b0": (sW8K, R[1]), "b1": (sW8K, R[1] + 4096),
                "c0": (sW8K, R[4]), "c1": (sW8K, R[4] + 4096), "d0": (sW16K, R[2])}
        WSLOT = ["b0", "b1", "c0", "c1", "a0", "a1"] * 2 + ["b0", "b1", "d0"]
        nE = 8
        def blk(b):
            if b < 4: return sBA, b
            if b < 8: return sBB, b - 4
            if b < 11: return sBS[b - 8], 0
            return None, b - 11
        def dma_w(b, after):
            sb, off = SLOT[WSLOT[b]]; r, i = blk(b)
            pre = f"s_add_u32 m0, {sb}, {off}\n"
            if r: pre += f"s_lshl_b32 {sM}, {r}, 15\ns_add_u32 {sM}, {sM}, {sCB}"
            else: pre += f"s_lshl3_add_u32 {sM}, {sW16K}, {sCB}"
            if i: pre += f"\ns_add_u32 {sM}, {sM}, {32768*i}"
            run4(pre, vWD, sW2 if r else sWo, ("w", b), after)
        def wread(st, b):
            sl = WSLOT[b]; off = SLOT[sl][1]
            base, d = (vWB, -R[4]) if sl[0] == "c" else (vXR, -R[2]) if sl[0] == "d" else (vWR, 0)
            st.waittok(("w", b), lat=o["wlat"])
            for stp in range(2):
                for cb in range(2):
                    for e in range(2):
                        st(f"ds_read_b64_tr_b16 {ag(128+16*(b%8)+8*stp+4*cb+2*e,2)}, {v(base+cb)} offset:{off+d+stp*2048+e*512}", tok=("wr", b))

        D = NX - 1
        M = []
        RG = {1: R[1], 2: 0, 3: R[1], 4: 0, 5: 0}
        def bump(st, d):
            for i in range(4): st(f"v_add_u32 {v(vXR+i)}, {d}, {v(vXR+i)}")
        def opening(g, un):
            if un == 3: g.waittok(("x", 3), ("s", 0), ("s", 1)); g("s_barrier"); g.mark("sl")
            elif un < 3: g.waittok(("x", un)); g("s_barrier"); g.mark("xl%d" % un)
            if un == 2: bump(g, "0x10000")
            if un == 5: g.need("e1s"); bump(g, sE1)
        NP = 8
        for un in range(1, 6):
            acc = ACC[un & 1]
            cm = f"{MF} {v(acc,16)}, {v(CA[un>3],4)}, {v(ST+4*un if un <= 3 else CBS,4)}, "
            g = Stream()
            if un == 1:
                opening(g, 1)
                for ks in range(D): xread(g, 1, RG[1], ks)
            if un >= 2: g.need("f%d" % (un - 2))
            self.stamp(g, "u%d" % un)
            if un != 4:
                g.need("c%d" % un); g(cm + "0"); M.append(g); g = Stream()
            last = o["kvpace"] if (att and un == 4) else 31
            for ks in range(32):
                for k in range(NP):
                    if ks == o["pace"] + (k + 1) * (last - o["pace"]) // NP: g.need(("ep", un - 1, k))
                if ks % 4 == 0:
                    if un == 4: g.need("sr%d" % (ks + 3)); g.waittok(("sr", ks + 3))
                    else: g.waittok(("xf", un, ks + 3))
                if ks == 28 and un == 1: g.mark("u1r")
                if ks == 28 and un == 5: g("s_barrier"); g.mark("r5")
                if ks + D == 32 and un < 5: opening(g, un + 1)
                g(f"{MF} {v(acc,16)}, {ag(4*ks,4)}, {ag(128+4*ks,4) if un == 4 else v(XF+4*(ks%NX),4)}, {v(acc,16) if (ks or un != 4) else 0}")
                if ks + D < 32:
                    if un != 4: xread(g, un, RG[un], ks + D)
                elif un in (1, 2, 4): xread(g, un + 1, RG[un + 1], ks + D - 32)
                if un >= 3: g.mark(("pd", un, ks))
                if un == 5 and ks == o["kvl"]: g.mark("kvl")
                if ks == 31 and un != 4: g.mark("m%d" % un)
                M.append(g); g = Stream()
            if un == 4:
                g.need("c4"); g(cm + v(acc, 16)); g.mark("cb4"); g.mark("m4"); M.append(g)
        tl.marks.add("m0")
        E = Stream()
        def paced(e, un):
            tot = sum(i.cost for i in e); c = 0; k = 0
            for i in e:
                E.append(i); c += i.cost
                while k < NP and c >= tot * (k + 1) / NP - 1e-9 and not i.glue: E.mark(("ep", un, k)); k += 1
            assert k == NP
        def selectk(st, i):
            for r in range(nk): st(f"v_cndmask_b32 {v(KCS+r)}, {v(KC[i]+r)}, {v(KC[i+1]+r)}, {sPAR}")
        for un in range(4):
            e = Stream()
            if att: kepi(e, un)
            else: e.need("m%d" % un); gelu(e, ACC[un & 1], KC[un], sAB[un], sBLKP, "actP")
            if att and un == 3: kvpub(e)
            paced(e, un); E.mark("f%d" % un)
        E.mark("kvp")
        E("s_cmp_lg_u32 s98, 0\n" + "\n".join(f"s_cselect_b32 {sB}, {sAB[k+1]}, {sAB[k]}\ns_cselect_b32 {sAB[k+1]}, {sAB[k]}, {sAB[k+1]}\ns_mov_b32 {sAB[k]}, {sB}" for k in (0, 2)), glue=True)
        selectk(E, 0); E.need("m4")
        e = Stream()
        if att: qepi(e, ACC[0], KCS, PF)
        else: gelu(e, ACC[0], KCS, sAB[0], sBLKS, "actS")
        paced(e, 4)
        selectk(E, 2); E.mark("e4"); E.need("m5"); self.stamp(E, "u6")
        if att: qepi(E, ACC[1], KCS, PF + 16)
        else: gelu(E, ACC[1], KCS, sAB[2], sBLKS, "actS")
        self.stamp(E, "q"); E.mark("q5")
        X = Stream()
        X.waittok("stats")
        t = f"v_xor_b32 {v(vT0)}, {v(vTAG)}, {v(ST+5)}\nv_xor_b32 {v(vT1)}, {v(vTAG)}, {v(ST+7)}\n"
        for r in (9, 13):
            t += f"v_xor_b32 {v(vFL)}, {v(vTAG)}, {v(ST+r)}\nv_xor_b32 {v(vFL+1)}, {v(vTAG)}, {v(ST+r+2)}\nv_or3_b32 {v(vT0)}, {v(vT0)}, {v(vFL)}, {v(vFL+1)}\n"
        spin(X, t + f"v_cmp_ne_u64 vcc, 0, {v(vT0,2)}", "\n".join(stats_ld(i, sA) for i in range(1, 4)), "stok")
        for i in range(1, 4): stat_consts(X, i); X.mark("c%d" % i)
        def select(st, i):
            for r in range(3): st(f"v_cndmask_b32 {v(CBS+r)}, {v(ST+4*i+r)}, {v(ST+4*i+4+r)}, {sPAR}")
        select(X, 0); X(f"v_mov_b32 {v(CBS+3)}, 0")
        X(f"s_mul_i32 {sE0}, {sTT}, {2*TBSTR}\ns_add_u32 {sE0}, {sE0}, {WS_ACT}")
        X.mark("e1s")
        X2 = Stream()
        X2.need("kvp"); flag(X2, a_fl1 if att else a_fl2(0), "kvp" if att else "actP")
        X.need("cs"); corr_a(X, 1); X.mark("c4")
        X.need("cb4"); select(X, 2); X.mark("c5")
        S = Stream()
        C = Stream()
        KR = vJ
        S(f"s_and_b32 {sE1}, s98, 0x8000")
        for i in range(4): S(f"v_add_u32 {v(KR+i)}, {sE1}, {v(vXR+i)}")
        S.need("xl1")
        for ks in range(32): S(f"ds_read_b128 {ag(128+4*ks,4)}, {v(KR+(ks&3))} offset:{(ks>>2)*4096}", tok="kr")
        S.need("u1r"); S.waittok("kr"); S("s_barrier"); S.mark("k")
        S.need("sl")
        S(f"v_add_u32 {v(vWB)}, {R[4]}, {v(vWR)}\nv_add_u32 {v(vWB+1)}, {R[4]}, {v(vWR+1)}")
        for half in range(2):
            for ks in range(16 * half, 16 * half + 16):
                S.need(("pd", 3, ks))
                for e in range(2): S(f"ds_read_b64_tr_b16 {ag(4*ks+2*e,2)}, {v(vSR)} offset:{(ks&15)*2048+e*512}", tok=("sr", ks))
                if ks % 4 == 3:
                    S.mark("sr%d" % ks); C.need("sr%d" % ks); C.waittok(("sr", ks))
                    if ks == 3: C.need("kvp" if att and o["prio"] else "m3")
                    for k2 in range(ks - 3, ks + 1): C(f"{MF16} {v(CS,4)}, {v(CSEL,4)}, {ag(4*k2,4)}, {v(CS,4) if k2 else 0}")
                if ks == 15: S(f"v_subrev_u32 {v(vSR)}, {R[4]}, {v(vSR)}")
                if ks == 19: S.waittok(("sr", 15)); S("s_barrier"); S.mark("sa")
        S.waittok(("sr", 31)); S("s_barrier"); S.mark("sb")
        C.mark("cs")
        if att and o["prio"]: S.need("kvp")
        for b in range(nE):
            S.need(("pd", 4, 4 * b + 3)); wread(S, b)
            if b: S.waittok(("wr", b - 1)); S.mark("wr%d" % (b - 1))
        S.waittok(("wr", nE - 1)); S.mark("wr%d" % (nE - 1))
        B(f"buffer_load_dwordx4 {v(XR,4)}, {v(vOUT)}, {sX}, {sPCOL} offen")
        B(f"s_add_u32 {sM}, {sPCOL}, 0x8000\nbuffer_load_dwordx4 {v(XR+4,4)}, {v(vOUT)}, {sX}, {sM} offen", "res")
        dma_s(0, None)
        dma_s(1, "k"); warm2(range(o["wpos"]))
        def wafter(b): return "k" if b < 2 else "sa" if b < 4 else "sb" if b < 6 else "wr%d" % (b - 6) if b < 14 else "r5"
        nB = o.get("nB", 14)
        for b in range(nB):
            if att and b == o.get("nK", 12): fl_bg(sFK, 0, "fK", "kvl")
            dma_w(b, wafter(b))
            if b == 1: warm2(range(o["wpos"], o["wpos2"]))
            if b == 3: warm2(range(o["wpos2"], 8))
        if att and nB <= o.get("nK", 12): fl_bg(sFK, 0, "fK", "kvl")
        late = list(range(nB, 15))

        AC2 = 0; AF = 64; NB = 4
        def act(bb, after):
            r, i = blk(bb)
            if bb == 10: pre = f"s_cmp_eq_u32 {r}, 43\ns_cselect_b32 {sM}, {sBS[0]}, {r}\ns_lshl_b32 {sM}, {sM}, 11\ns_add_u32 {sM}, {sM}, {sE0}"
            elif r: pre = f"s_lshl_b32 {sM}, {r}, 11\ns_add_u32 {sM}, {sM}, {sE0}"
            else: pre = f"s_add_u32 {sM}, {sW8K}, {sE0}"; i += 43
            if i: pre += f"\ns_add_u32 {sM}, {sM}, {2048*i}"
            pre += f"\ns_add_u32 {sN}, {sM}, {TBSTR}"
            f = AF + 16 * (bb % NB)
            for stp in range(2):
                for tb in range(2):
                    aft = after if (after and stp == 0) else ("mm", bb - NB, stp) if bb >= NB else None
                    B(f"{pre}\nbuffer_load_dwordx4 {ag(f+8*stp+4*tb,4)}, {v(vL16)}, {sWS}, {sN if tb else sM} offen offset:{1024*stp} sc1", ("act", bb, stp), aft, sp=o["spa"])
                    pre = ""
        fO = o["fO"] if att else o["fOf"]; fS = o["fSa"] if att else o["fS"]
        def acts():
            for bb in range(15):
                if bb == fS: fl_bg(sFL, 256, "fS", "fP")
                if bb == fO: fl_bg(sFL, 512, "fO", "fa8")
                act(bb, {0: "fP", 8: "fS", 11: "fO"}.get(bb))
        assert fS >= 5 and fO >= 8
        s = Stream()
        if not att:
            fl_bg(sFL, 0, "fP", "r5")
            for b in late: dma_w(b, wafter(b))
            acts()
            X2.need("m5"); fl_check(X2, sFL, 0, "fP")
            E.mark("odone"); FS = [X, X2, S, C, E]
        else:
            Z = ST + 8; ZT = F8a; KA = XF
            X2.need("sb")
            X2(f"s_mul_i32 {sD}, {sHD}, {KVREC}\ns_add_u32 {sD}, {sD}, {WS_KVP}\nv_add_u32 {v(vJ)}, {sD}, {v(vL16)}")
            X2(f"v_and_b32 {v(vXD0)}, 0x30, {v(vL16)}\nv_lshrrev_b32 {v(vSR)}, 4, v0\nv_lshl_add_u32 {v(vXD0)}, {v(vSR)}, 2, {v(vXD0)}")
            X2.need("c5")
            fl_check(X2, sFK, 0, "fK")
            X2(f"v_and_b32 {v(vFA)}, 0x38, {v(vFA)}"); X2.mark("gat")
            gsp = o.get("gsp", 56)
            B(f"s_movk_i32 {sM}, 0x4000\nbuffer_load_dwordx4 {v(Z,4)}, {v(vJ)}, {sWS}, {sM} offen sc1", "z", "gat", sp=gsp)
            for p in range(16):
                if p == o["nP"]: fl_bg(sFL, 0, "fP", None)
                pre = "" if p % 2 else f"s_lshl_b32 {sM}, {sROT if o.get('grot', 1) else 0}, 11" if p == 0 else f"s_add_u32 {sM}, {sM}, 0x800\ns_and_b32 {sM}, {sM}, 0x3800"
                B(f"{pre}\nbuffer_load_dwordx4 {ag(4*p,4)}, {v(vJ)}, {sWS}, {sM} offen offset:{(p%2)*1024} sc1", ("g", p), ("pd", 5, p), sp=gsp)
            nL = o.get("nL", 0)
            for b in late[:nL]: dma_w(b, wafter(b))
            if o["nP"] >= 16: fl_bg(sFL, 0, "fP", None)
            for b in late[nL:]: dma_w(b, wafter(b))
            acts()
            xo, xs, zw, zr = (CA[0] + i for i in range(4))
            X2(f"s_add_u32 {sD}, {sW16K}, {R[2]+4096}\nv_add_u32 {v(xo)}, {sD}, {v(vL16)}\nv_xor_b32 {v(xs)}, 0x4000, {v(xo)}")
            X2(f"v_add_u32 {v(zw)}, {sD}, {v(vXD0)}\nv_lshl_add_u32 {v(zr)}, {v(vSR)}, 4, {sD}"); X2.mark("xa")
            X2.waittok("z")
            for i in range(4): X2(f"v_lshlrev_b32 {v(ZT+i)}, 16, {v(Z+i)}\nv_and_b32 {v(ZT+4+i)}, 0xffff0000, {v(Z+i)}")
            for i in range(0, 8, 2): X2(f"v_permlane16_swap_b32 {v(ZT+i)}, {v(ZT+i+1)}")
            for i in range(0, 8, 2): X2(f"v_add_f32 {v(ZT+i)}, {v(ZT+i)}, {v(ZT+i+1)}")
            for i in (0, 4): X2(f"v_permlane32_swap_b32 {v(ZT+i)}, {v(ZT+i+2)}")
            for i in (0, 4): X2(f"v_add_f32 {v(ZT+i)}, {v(ZT+i)}, {v(ZT+i+2)}")
            for m in ("row_ror:4", "row_ror:8"):
                for i in (0, 4): X2(f"v_add_f32_dpp {v(ZT+i)}, {v(ZT+i)}, {v(ZT+i)} {m} {DPPM}")
            X2(f"v_cvt_pk_bf16_f32 {v(Z)}, {v(ZT)}, {v(ZT+4)}")
            X2.need("r5"); X2(f"ds_write_b32 {v(zw)}, {v(Z)} offset:4096\nds_read_b128 {v(Z,4)}, {v(zr)} offset:4096", tok="zr"); X2.mark("zr")
            X2.need("m5"); fl_check(X2, sFL, 0, "fP")
            XC = Stream(); XC.need("xa"); XC.need("r5"); XC.need(("sib", PF))
            for k in range(4):
                if k == 2: XC.need(("sib", PF + 16))
                XC(f"ds_write_b128 {v(xo)}, {v(PF+8+16*(k>>1)+4*(k&1),4)} offset:{1024*k}", tok="xw")
            XC.waittok("xw"); XC("s_barrier")
            for k in range(4): XC(f"ds_read_b128 {v(PF+8+16*(k>>1)+4*(k&1),4)}, {v(xs)} offset:{1024*k}", tok="xr")
            XC.waittok("xr"); XC("s_barrier"); XC.mark("xr")
            G = Stream(); G.need("m5")
            for p in range(16):
                if p % 2 == 0: G.waittok(("g", p + 1))
                G(f"{MF} {v(KA,16)}, {v(SEL[0],4)}, {ag(4*p,4)}, {v(KA,16) if p else 0}")
            G.mark("gdone")
            KP = KA + 16
            G(f"s_add_u32 {sSO[0]}, {sHD}, 86\ns_lshl_b32 {sSO[0]}, {sSO[0]}, 10")
            for i in range(4): G(f"v_cvt_pk_bf16_f32 {v(KP+i)}, {v(KA+2*i)}, {v(KA+2*i+1)}")
            G.need("zr"); G.waittok("zr")
            for i in range(4): G(f"v_permlane16_swap_b32 {v(KP+i)}, {v(Z+i)}")
            self.stamp(G, "kvx")
            O = Stream()
            for n, A in ((0, ACC[0]), (1, KA), (3, ACC[1]), (2, TA)):
                if n == 0: G.need("e4")
                if n == 1: G.need("xr")
                if n == 2: G.need("q5")
                G(f"{MF} {v(A,16)}, {v(KP,4)}, {v(PF+8*n,4)}, 0\n{MF} {v(A,16)}, {v(Z,4)}, {v(PF+8*n+4,4)}, {v(A,16)}"); G.mark(("om", n))
                O.need(("om", n))
                O(f"v_add_f32 {v(A+8)}, {f2u(1e-6)}, {v(A+8)}\nv_rcp_f32 {v(A+8)}, {v(A+8)}")
                O(f"s_add_u32 {sSO[1]}, {sAB[n]}, {sSO[0]}")
                for i in range(8): O(f"v_mul_f32 {v(A+i)}, {v(A+i)}, {v(A+8)}")
                for i in range(4): O(f"v_cvt_pk_bf16_f32 {v(A+12+i)}, {v(A+2*i)}, {v(A+2*i+1)}")
                O(f"buffer_store_dwordx4 {v(A+12,4)}, {v(vL16)}, {sWS}, {sSO[1]} offen sc1", tok="actO")
            self.stamp(O, "o"); O.mark("odone")
            FS = [X, X2, S, C, XC, G, E, O]
        nq = o["nq"]
        order = [(bb, stp, tb, cb) for bb in range(15 - nq) for stp in range(2) for tb in range(2) for cb in range(2)]
        order += [(bb, stp, tb, cb) for tb in range(2) for cb in range(2) for bb in range(15 - nq, 15) for stp in range(2)]
        for (bb, stp, tb, cb) in order:
            f = AF + 16 * (bb % NB)
            g = Stream()
            if (stp, tb, cb) == (0, 0, 0):
                if bb == fS: g.need("pub"); fl_check(g, sFL, 256, "fS"); g.mark("fa8")
                if bb == fO: g.need("pub"); fl_check(g, sFL, 512, "fO")
                if bb >= nE: g.need("wq%d" % bb); g.waittok(("wr", bb), lat=0)
            if (bb, stp, tb, cb) == (0, 0, 0, 0):
                g.need("wr7")
                if att: g.need("odone" if o["p2hold"] else "gdone")
            if (tb, cb) == (0, 0): g.waittok(("act", bb, stp), ahead=o["ah2"] if bb >= o["p2e"] else 0, lat=0 if bb >= o["p2e"] else None)
            A = AC2 + 32 * tb + 16 * cb
            g(f"{MF} {ag(A,16)}, {ag(128+16*(bb%8)+8*stp+4*cb,4)}, {ag(f+8*stp+4*tb,4)}, {ag(A,16) if (bb or stp) else 0}")
            if (tb, cb) == (1, 1):
                g.mark(("mm", bb, stp))
                if stp: self.stamp(g, "mm%d" % bb)
            if (bb, stp) == (14, 1): g.mark(("qd", tb, cb))
            M.append(g)
        W = Stream(); W.need("m5")
        W(f"s_add_u32 {sE1}, {sW8K}, {R[2]}\nv_add_u32 {v(vXR)}, {sE1}, {v(vWR)}\nv_add_u32 {v(vXR+1)}, {sE1}, {v(vWR+1)}")
        for b in range(nE, 15):
            if b >= 8: W.need(("mm", b - 8, 1))
            wread(W, b); W.mark("wq%d" % b)
        X = Stream(); X.need("odone"); X.need("fP")
        flag(X, a_fl2(2 if att else 1), "actO" if att else "actS", o["stlat2"])
        X.mark("pub"); X.need(("mm", 3, 1))
        X(f"v_lshrrev_b32 {v(vT0)}, 4, v0\nv_and_b32 {v(vT0)}, 2, {v(vT0)}\nv_and_b32 {v(vT1)}, 7, v0\nv_xor_b32 {v(vT0)}, {v(vT0)}, {v(vT1)}")
        X(f"v_add_lshl_u32 {v(vT0)}, {v(vN16)}, {v(vT0)}, 4\ns_add_u32 {sA}, {sW16K}, {R[2]}\nv_add_u32 {v(RW)}, {sA}, {v(vT0)}")
        for k in range(1, 4): X(f"v_xor_b32 {v(RW+k)}, {64*(k>>1)+16*(k&1)}, {v(RW)}")
        X(f"v_lshrrev_b32 {v(vT0)}, 3, v0\nv_lshlrev_b32 {v(vT1)}, 1, {v(vT1)}\nv_xor_b32 {v(vT1)}, {v(vT1)}, {v(vT0)}\nv_lshlrev_b32 {v(vT1)}, 4, {v(vT1)}")
        X(f"s_lshl_b32 {sA}, {sWV}, 11\ns_add_u32 {sA}, {sA}, {R[2]}\nv_lshl_add_u32 {v(vT0)}, {v(vT0)}, 8, {v(vT1)}\nv_add_u32 {v(RR)}, {sA}, {v(vT0)}\nv_xor_b32 {v(RR+1)}, 16, {v(RR)}")
        Y = ACC[0]; Pp = ACC[1]
        for it in range(2):
            for i in range(4):
                X(f"v_lshlrev_b32 {v(Y+8*it+2*i)}, 16, {v(XR+4*it+i)}\nv_and_b32 {v(Y+8*it+2*i+1)}, 0xffff0000, {v(XR+4*it+i)}")
        for i in range(4):
            X(f"v_lshlrev_b32 {v(vT0)}, 16, {v(B2+i)}\nv_and_b32 {v(vT3)}, 0xffff0000, {v(B2+i)}")
            for it in range(2):
                X(f"v_add_f32 {v(Y+8*it+2*i)}, {v(Y+8*it+2*i)}, {v(vT0)}\nv_add_f32 {v(Y+8*it+2*i+1)}, {v(Y+8*it+2*i+1)}, {v(vT3)}")
        X(f"s_add_u32 {sB}, {sPCOL}, 0x8000"); X.mark("fin")
        Q = Stream(); Z2 = Stream(); Q.need("fin")
        for tb in range(2):
            for cb in range(2):
                Q.need(("qd", tb, cb))
                for k in range(4):
                    Q(f"ds_write_b128 {v(RW+k)}, {ag(AC2+32*tb+16*cb+4*k,4)} offset:{tb*8192+cb*128}", tok=("qw", tb))
            Q.mark(("qw", tb))
            Z2.need(("qw", tb)); Z2.waittok(("qw", tb), lat=80); Z2("s_barrier")
            self.stamp(Z2, "red" if tb else "red0")
            for pw in range(4):
                for k in range(2): Z2(f"ds_read_b128 {v(Pp+32*tb+8*pw+4*k,4)}, {v(RR+k)} offset:{pw*16384+tb*8192}", tok=("qr", tb, pw))
            for pw in range(4):
                Z2.waittok(("qr", tb, pw), lat=100)
                if tb or not nq:
                    for i in range(0, 8, 2): Z2(f"v_pk_add_f32 {v(Y+8*tb+i,2)}, {v(Y+8*tb+i,2)}, {v(Pp+32*tb+8*pw+i,2)}")
                else:
                    for i in range(8): Z2(f"v_add_f32 {v(Y+i)}, {v(Y+i)}, {v(Pp+8*pw+i)}")
            for i in range(4): Z2(f"v_cvt_pk_bf16_f32 {v(XR+4*tb+i)}, {v(Y+8*tb+2*i)}, {v(Y+8*tb+2*i+1)}")
            Z2(f"buffer_store_dwordx4 {v(XR+4*tb,4)}, {v(vOUT)}, {sOut}, {sB if tb else sPCOL} offen{' sc1' if o['outsc1'] else ''}"); self.stamp(Z2, "out%d" % tb)
        tl.sched(M, FS + [X, W, Q, Z2], nds=o.get("nds", 2))
        s = Stream()
        if att:
            noe = self.lab("noe")
            s(f"s_or_b32 {sA}, s2, {sWV}\ns_cmp_lg_u32 {sA}, 0\ns_cbranch_scc1 {noe}")
            s(f"s_mov_b64 exec, 1\nbuffer_store_dword {v(vTAG)}, {v(vZ)}, {sWS}, 0 offen sc1\ns_mov_b64 exec, -1", cond=True)
            s(noe + ":")
        if o.get("probe"):
            lp, l2, l3 = self.lab("pad"), self.lab("ref"), self.lab("skip"); K = o.get("K", 4)
            s("s_waitcnt vmcnt(0)"); self.stamp(s, "end"); s("s_waitcnt lgkmcnt(0)")
            if o.get("st") == "start": s("s_mov_b32 s60, s100")
            s(f"s_or_b32 {sA}, s2, {sWV}\ns_cmp_lg_u32 {sA}, 0\ns_cbranch_scc1 {l2}")
            s(f"v_mov_b32 {v(vT0)}, s100\nv_mov_b32 {v(vT1)}, {v(vTAG)}\nbuffer_store_dwordx2 {v(vT0,2)}, {v(vZ)}, {sWS}, 0 offen offset:2048 sc1", cond=True)
            s(f"{l2}:\ns_sleep 8\nbuffer_load_dwordx2 {v(vT0,2)}, {v(vZ)}, {sWS}, 0 offen offset:2048 sc1\ns_waitcnt vmcnt(0)\nv_cmp_ne_u32 vcc, {v(vT1)}, {v(vTAG)}\ns_nop 4\ns_cbranch_vccnz {l2}")
            s(f"v_readfirstlane_b32 s66, {v(vT0)}\ns_nop 4\ns_sub_u32 s60, s60, s66")
            if o["probe"] == "min": s("s_sub_u32 s60, 1200, s60")
            else: s("s_add_u32 s60, s60, 300")
            if o.get("only", role) != role: s("s_mov_b32 s60, 0")
            s(f"s_mul_i32 s60, s60, {K}\ns_add_u32 s60, s60, 4000")
            s(f"{lp}:\ns_memrealtime s[64:65]\ns_waitcnt lgkmcnt(0)\ns_sub_u32 s64, s64, s66\ns_cmp_lt_u32 s64, s60\ns_cbranch_scc1 {lp}")
        elif o["stamps"]:
            s("s_waitcnt vmcnt(0)\ns_memrealtime s[64:65]\ns_waitcnt lgkmcnt(0)")
            s(f"s_lshl2_add_u32 {sA}, s2, {sWV}\ns_lshl_b32 {sA}, {sA}, 6\ns_add_u32 {sA}, {sA}, {WS_STAMP}")
            for i, r in enumerate(["s100"] + ["s%d" % k for k in STAMPR] + ["s64"]):
                s(f"v_mov_b32 {v(vT1)}, {r}\nbuffer_store_dword {v(vT1)}, {v(vZ)}, {sWS}, {sA} offen offset:{4*i}")
        tl.straight(s)
        assert tl.bi == len(tl.bg)
        tl.log.append("end t=%d forced=%d" % (tl.t, tl.forced))
        if o["log"]: sys.stderr.write("\n".join(role + " " + x for x in tl.log) + "\n")
        return tl.out

    def build(self):
        outs = {}
        for role in ("att", "ffn"):
            st = {}
            outs[role] = finalize(self.role(role), st)
            sys.stderr.write("%s: %s\n" % (role, st))
        ia, jf = outs["att"].index("L_split:"), outs["ffn"].index("L_split:")
        assert outs["att"][:ia] == outs["ffn"][:jf], "common start differs"
        text = outs["att"][:ia] + outs["att"][ia + 1:] + ["s_endpgm", ".p2align 6", "L_ffn:"] + outs["ffn"][jf + 1:] + ["L_end:", "s_endpgm"]
        body = "\n".join(t if t.endswith(":") else "    " + t for t in text) + "\n"
        hdr = ["Fused LayerNorm + hedgehog linear attention + GELU FFN + residual, one persistent launch (generated by my own script).",
               "@launch grid=(256,1,1) block=(256,1,1) lds=163840"]
        return module(hdr, [(NAME + "_kernel", body, 512, 256)])

if __name__ == "__main__":
    opt = {}
    for x in sys.argv[2:]:
        k, _, val = x.partition("=")
        opt[k] = (int(val) if val.lstrip("-").isdigit() else val) if val else True
    open(sys.argv[1], "w").write(Gen(**opt).build())
```

```python
import sys, struct
from asmlib import module
from backend import *

NAME = "parallel_sum__linear_kernel_hedgehog__dense_activation_gelu__prompt"
def f2u(x): return "0x%x" % struct.unpack("<I", struct.pack("<f", x))[0]
LOG2E = 1.4426950408889634
K0 = -2.0 * LOG2E * 0.7978845608028654

WS_G = 0; WS_FL1 = 0x1000; WS_FL2 = 0x3000; WS_STATS = 0x8000; WS_KVP = 0x40000; WS_ACT = 0x200000
KVREC = 17 * 1024; TBSTR = 118 * 1024; WS_STAMP = 0x1000000
TAGC = 0x9E3779B9
R = [0, 32768, 65536, 98304, 131072]
SCR = R[4] + 16384
FFN_BLK0 = [0, 6, 11, 16, 22, 27, 32, 38]
FFN_NBLK = [6, 5, 5, 6, 5, 5, 6, 5]
SBL = [[4, 5, 10], [15, 20, 21], [26, 31, 43], [36, 37, 42]]
def pack(l): return "0x%x" % sum(b << (8 * i) for i, b in enumerate(l))

sX, sW, sWS, sW2, sWo, sOut, sAux, sB2 = ("s[%d:%d]" % (i, i + 3) for i in (8, 12, 16, 20, 24, 28, 32, 36))
sM, sN = "s0", "s1"
sWV, sT, sJ, sU, sI = "s3", "s4", "s5", "s6", "s7"
sROT, sQ4, sTT, sCB, sFL, sSTB = "s64", "s65", "s66", "s67", "s68", "s69"
sA, sB, sC, sD = "s70", "s71", "s72", "s73"
sXB = ["s74", "s75", "s76", "s77"]
sAB = ["s78", "s79", "s80", "s81"]
sXK = ["s82", "s83"]; sSO = ["s84", "s85"]
sBA, sBB = "s86", "s87"; sBS = ["s88", "s89", "s90"]
sPCOL, sW8K, sW16K = "s91", "s92", "s93"
sBLKP, sBLKS = "s94", "s95"; sHD, sFK = "s94", "s95"; sHK = "s6"
sE0, sE1 = "s96", "s97"
sPAR = "s[98:99]"
STAMPR = [60, 40, 42, 44, 50, 52, 46, 54, 62, 56, 58, 48]

class VA:
    def __init__(self, start=1): self.n = start
    def __call__(self, k=1, al=1):
        self.n = (self.n + al - 1) // al * al
        r = self.n; self.n += k
        assert self.n <= 256, "out of VGPRs"
        return r
def v(i, k=1): return "v%d" % i if k == 1 else "v[%d:%d]" % (i, i + k - 1)
def ag(i, k=1): return "a%d" % i if k == 1 else "a[%d:%d]" % (i, i + k - 1)
MF = "v_mfma_f32_32x32x16_bf16"; MF16 = "v_mfma_f32_16x16x32_bf16"
DPPM = "row_mask:0xf bank_mask:0xf"

def srd(s, d, p, n):
    d0 = int(d[2:].split(":")[0])
    s(f"s_mov_b32 s{d0}, s{p}\ns_mov_b32 s{d0+1}, s{p+1}\ns_mov_b32 s{d0+2}, {n}\ns_mov_b32 s{d0+3}, 0x20000")

class Gen:
    def __init__(self, **opt):
        self.o = dict(stamps=False, warm=0, outsc1=True, sp=64, sp1=60, ahead=6, log=False, umode=0, vlat=650, stlat=800,
                      ah0=14, npc=2, nP=6, p2hold=1, spa=56, p2e=3, stlat2=600, qx=4, nq=2, plat0=500, plat=560, sp0=40, warmc=1, stag=1, warmf=0, wsp=180, wpos=0, wpos2=6, cbmix=0, warmm=0, slpK=1, ah0b=6, lag=2, s0=4, slp=8, slat=750, wlat=700, wlat0=1100, nE=4, pace=3, kvpace=20, kvhold=99, hold=0, kvl=12, prio=1, fSa=5, fS=6, fO=8, fOf=9, ah2=10, fo=2)
        self.o.update(opt); self.uid = 0
        global TBSTR, WS_ACT
        TBSTR = 118 * 1024 + self.o.get("tbpad", 0); WS_ACT = 0x200000 + self.o.get("actoff", 0)
    def lab(self, p):
        self.uid += 1; return "L_%s_%d" % (p, self.uid)
    def stamp(self, s, name):
        if not self.o["stamps"]: return
        names = str(self.o.get("st", "x0,b0,p1,u1,u2,u3,u4,u5,q,o,mm14,red")).split(",")
        if name in names:
            r = STAMPR[names.index(name)]; s(f"s_memrealtime s[{r}:{r+1}]")

    def role(self, role):
        att = role == "att"; o = self.o
        tl = TL(o["sp"], o["vlat"]); B = tl.B
        def watch(name):
            x = Stream(); self.stamp(x, name); return x[0].text if x else None
        tl.watch = watch
        s = Stream(); a = VA(1)
        stride = 3072 if att else 2752
        vL16 = a(); vXD0 = a(); vXD = a(4); vOUT = a(); vTAG = a(2, 2); vN16 = a(); vXR = a(4); vSR = a()
        vT0 = a(1, 2); vT1 = a(); vT2 = a(); vT3 = a()
        vSD = a(4); vWD = a(4); vPR = vWD + 1; vWR = a(2); vFL = a(2, 2); vFA = a(); vZ = a()
        RW = vXD; RR = vSD; vWB = vSD + 2
        assert vXD == 3
        vKA = a(2)
        XR = a(8, 4); B2 = a(4, 4)
        ACC = [a(16, 4), a(16, 4)]; NX = 8; XF = a(4 * NX, 4)
        CA = [a(4, 4), a(4, 4)]; ST = a(16, 4); CBS = a(4, 4); CS = a(4, 4); CSEL = a(4, 4); vPD = CBS
        nk = 2 if att else 3
        KC = [a(nk) for _ in range(4)]; KCS = a(nk)
        if att:
            ONES = a(4, 4); SEL = [a(4, 4), a(4, 4)]; F8a = a(8, 4); F8b = a(8, 4)
            PHI = [a(4, 4), a(4, 4), a(4, 4)]; KV = a(16, 4); TB = a(16, 4); PF = KV; TA = a(16, 4); F4 = a(4, 4)
        else:
            vB1 = a(2); G4 = a(4); HO = a(8, 4)
        vJ = a(4 if att else 7)
        sys.stderr.write("%s VGPRs: %d\n" % (role, a.n))
        sp1 = o["sp1"]
        tmp = ACC[0]
        def run4(pre, vb, srdn, tok, after, sp=None):
            for q in range(4):
                B(f"{pre if q == 0 else ''}\nbuffer_load_dwordx4 {v(vb+q)}, {srdn}, {sM} offen offset:{1024*q} lds", tok, after, sp)
        def dma_x(i, after, sp=None):
            for k in range(2): run4(f"s_add_u32 m0, {sW8K}, {R[i]+k*4096}\ns_add_u32 {sM}, {sXB[i]}, {sXK[k]}", vXD, sX, ("x", i), after, sp)
        s("s_cmp_ge_u32 s2, 256\ns_cbranch_scc1 L_end")
        s("s_load_dwordx16 s[40:55], s[0:1], 0\ns_load_dwordx8 s[56:63], s[0:1], 64")
        if o["stamps"]: s("s_memrealtime s[100:101]")
        s(f"s_lshr_b32 {sI}, s2, 3")
        if o["warmc"] == 1:
            s(f"s_getpc_b64 s[72:73]\nL_pc:\ns_sub_u32 s72, s72, L_pc-{NAME}_kernel\ns_subb_u32 s73, s73, 0", glue=True)
            s(f"s_lshl_b32 {sA}, {sI}, 11\nv_lshrrev_b32 v1, 4, v0\nv_lshl_add_u32 v1, v1, 7, {sA}\nv_min_u32 v1, L_end-{NAME}_kernel, v1")
            s(f"global_load_dword {v(XR+4)}, v1, s[72:73]")
        s(f"v_lshrrev_b32 v1, 6, v0\nv_and_b32 v0, 63, v0\nv_readfirstlane_b32 {sWV}, v1\nv_lshlrev_b32 v1, 4, v0")
        s(f"s_and_b32 {sA}, s2, 7\ns_lshr_b32 {sROT}, {sI}, 2\ns_and_b32 {sU}, {sI}, 3")
        s(f"s_and_b32 {sT}, {sA}, 1\ns_lshl3_add_u32 {sT}, {sT}, {sROT}\ns_lshr_b32 {sQ4}, {sA}, 1")
        if o.get("p2x", 1):
            s(f"s_andn2_b32 {sC}, 1, {sA}\ns_lshl2_add_u32 {sA}, {sC}, {sQ4}")
        s(f"s_lshr_b32 {sC}, {sI}, 3\ns_lshl2_add_u32 {sTT}, {sA}, {sC}")
        s(f"s_lshl2_add_u32 {sA}, {sT}, {sQ4}\ns_lshl_b32 {sXB[0]}, {sA}, 15")
        s(f"s_lshl2_add_u32 {sD}, {sU}, {sWV}\ns_lshl_b32 {sA}, {sD}, 11\ns_add_u32 {sSO[0]}, {sXB[0]}, {sA}")
        s(f"s_lshl_b32 {sSTB}, {sT}, 11\ns_add_u32 {sSTB}, {sSTB}, {WS_STATS}\ns_lshl4_add_u32 {sD}, {sQ4}, {sD}\ns_lshl_b32 {sD}, {sD}, 5\ns_add_u32 {sFL}, {sD}, {sSTB}")
        s(f"v_and_b32 {v(vOUT)}, 0x70, v1\nv_and_b32 v3, 0x30, v0\nv_xor_b32 v2, {v(vOUT)}, v3\nv_lshrrev_b32 v3, 3, v0\nv_lshl_add_u32 v3, v3, 10, v2")
        for q in range(3, 0, -1):
            s(f"v_xor_b32 {v(vXD+q)}, {64*(q&1)}, v3\nv_add_u32 {v(vXD+q)}, {7168*q}, {v(vXD+q)}")
        s(f"v_min_u32 {v(vXD0)}, 1, v0\nv_mul_u32_u24 {v(vXD0)}, {sFL}, {v(vXD0)}")
        s(f"s_lshl_b32 {sW8K}, {sWV}, 13\ns_lshl1_add_u32 {sA}, {sWV}, {sROT}\ns_lshl_b32 {sA}, {sA}, 7\ns_and_b32 {sXK[0]}, {sA}, 0x380\ns_add_u32 {sA}, {sA}, 128\ns_and_b32 {sXK[1]}, {sA}, 0x380")
        s(f"s_mov_b32 s10, {2048*1024}\ns_mov_b32 s11, 0x20000\ns_mov_b32 s18, 0x10000000\ns_mov_b32 s19, 0x20000")
        if o["warmc"] >= 2:
            s(f"s_lshl2_add_u32 {sA}, {sI}, {sWV}\ns_mul_i32 {sA}, {sA}, 384\ns_min_u32 {sA}, {sA}, L_end-{NAME}_kernel-384")
            s(f"s_getpc_b64 s[72:73]\nL_pc:\ns_sub_u32 s72, s72, L_pc-{NAME}_kernel\ns_subb_u32 s73, s73, 0\ns_add_u32 s72, s72, {sA}\ns_addc_u32 s73, s73, 0", glue=True)
        s("s_waitcnt lgkmcnt(0)"); self.stamp(s, "go")
        s("s_mov_b64 s[8:9], s[40:41]\ns_mov_b64 s[16:17], s[62:63]"); s.mark("go")
        if o["stag"]: s(f"s_load_dword {sBA}, s[62:63], 0")
        if o["warmc"] >= 2:
            for k in range(0, 6, o["warmc"] - 1): s(f"s_load_dword {sBB}, s[72:73], {64*k}"); s[-1].wr = [("s", "junk%d" % k)]
        for r in range(2): B(f"buffer_load_dwordx4 {v(tmp+4*r,4)}, {v(vL16)}, {sX}, {sSO[0]} offen offset:{1024*r}", "rows", "go", sp=8)
        if not o["stag"]: B(f"buffer_load_dword {v(vTAG)}, {v(vXD0)}, {sWS}, 0 offen sc1", "tag", sp=8)
        dma_x(0, None, o["sp0"])
        s(f"s_and_b32 {sJ}, {sU}, 1\ns_lshl1_add_u32 {sJ}, {sQ4}, {sJ}\ns_lshl_b32 {sE1}, {sWV}, 12")
        s(f"s_mov_b32 s70, {pack(FFN_BLK0[:4])}\ns_mov_b32 s71, {pack(FFN_BLK0[4:])}\ns_lshl_b32 {sC}, {sJ}, 3\ns_lshr_b64 s[70:71], s[70:71], {sC}\ns_and_b32 {sBLKP}, s70, 0xff")
        s(f"s_lshl_b32 {sPCOL}, {sBLKP}, 6\ns_lshl_b32 {sD}, {sJ}, 7\ns_add_u32 {sD}, {sD}, 1024\ns_movk_i32 {sA}, 2752\ns_movk_i32 {sC}, 128\ns_mov_b32 s15, 0x20000")
        s(f"s_cmp_lt_u32 {sU}, 2\ns_cselect_b32 {sPCOL}, {sD}, {sPCOL}\ns_cselect_b32 {sA}, 3072, {sA}\ns_cselect_b32 {sB}, 1, 2\ns_cselect_b32 {sC}, 1024, {sC}\ns_cselect_b32 {sE0}, 7, 5\ns_cselect_b64 s[12:13], s[42:43], s[50:51]", glue=True)
        s(f"s_lshl_b32 s14, {sA}, 9\ns_mul_i32 {sD}, {sWV}, {sA}\ns_mov_b32 {sSO[1]}, {sPCOL}\ns_lshl4_add_u32 {sPCOL}, {sD}, {sPCOL}\ns_lshl_b32 {sBLKS}, {sA}, 6")
        s(f"v_lshrrev_b32 {v(vT0)}, 4, v0\nv_and_b32 {v(vT1)}, 15, v0\nv_lshlrev_b32 {v(vT3)}, {sB}, {v(vT0)}\nv_xor_b32 {v(vT1)}, {v(vT1)}, {v(vT3)}")
        s(f"v_mul_u32_u24 {v(vT0)}, {sA}, {v(vT0)}\nv_lshrrev_b32 {v(vT3)}, 3, {v(vT1)}\nv_mad_u32_u24 {v(vT0)}, {v(vT3)}, {sC}, {v(vT0)}\nv_and_b32 {v(vT1)}, 7, {v(vT1)}")
        s(f"v_lshl_add_u32 {v(vPD)}, {v(vT1)}, 4, {v(vT0)}\ns_lshl_b32 {sA}, {sA}, 2\ns_sub_u32 {sA}, {sA}, 1024")
        for q in range(1, 4): s(f"v_add_u32 {v(vPD+q)}, {sA}, {v(vPD+q-1)}")
        s.mark("pd")
        def dma_p(ci, after=None):
            mul = sBLKS if ci < o["npc"] else 64 * stride
            run4(f"s_add_u32 {sM}, {sROT}, {ci}\ns_and_b32 {sM}, {sM}, 7\ns_mul_i32 {sM}, {sM}, {mul}\ns_add_u32 m0, {sE1}, {R[1]+ci*16384}\ns_add_u32 {sM}, {sM}, {sPCOL}", vPD, sW, ("p", ci), after, sp1 if ci else 16)
        for ci in range(o["npc"]): dma_p(ci, "pd")
        s(f"v_and_b32 {v(vT0)}, 31, v0\nv_lshlrev_b32 {v(vN16)}, 4, {v(vT0)}\nv_lshlrev_b32 {v(vT1)}, 7, {v(vT0)}")
        s(f"v_bfe_u32 {v(vT0)}, v0, 1, 3\nv_lshrrev_b32 {v(vT2)}, 5, v0\nv_xor_b32 {v(vT0)}, {v(vT0)}, {v(vT2)}\nv_lshl_add_u32 {v(vXR)}, {v(vT0)}, 4, {v(vT1)}")
        for cq in range(1, 4): s(f"v_xor_b32 {v(vXR+cq)}, {32*cq}, {v(vXR)}")
        yR, yP, yF, yH, x0, x1 = (ACC[1] + i for i in range(6))
        s(f"v_bfe_u32 {v(yR)}, v0, 2, 2\nv_bfe_u32 {v(yP)}, v0, 4, 1\ns_add_u32 {sB}, {sB}, 4")
        s(f"v_and_b32 {v(yF)}, 16, {v(vL16)}\nv_and_b32 {v(yH)}, 2, v0\nv_lshl_add_u32 {v(yF)}, {v(yH)}, 2, {v(yF)}\nv_lshl_add_u32 {v(yH)}, {v(vT2)}, 3, {v(yR)}")
        s(f"v_xor_b32 {v(x0)}, {sWV}, {v(yR)}\nv_lshl_add_u32 {v(x0)}, {v(x0)}, {sB}, {v(yF)}\nv_lshl_add_u32 {v(x0)}, {v(yP)}, {sE0}, {v(x0)}")
        s(f"v_cmp_eq_u32 vcc, {v(yR)}, {v(yP)}\nv_mov_b32 {v(vT1)}, 0x3f803f80")
        s(f"v_lshl_add_u32 {v(x0)}, {v(yH)}, 8, {v(x0)}\nv_add_u32 {v(vPR)}, {R[1]}, {v(x0)}\nv_add_u32 {v(vPR+1)}, {R[3]}, {v(x0)}")
        for i in range(4): s(f"v_cndmask_b32 {v(CSEL+i)}, 0, {v(vT1)}, vcc")
        if o["cbmix"]: s(f"s_lshr_b32 {sCB}, {sI}, 3\ns_lshl1_add_u32 {sCB}, {sCB}, {sI}")
        s(f"s_and_b32 {sCB}, {sCB if o['cbmix'] else sI}, 7\ns_lshl_b32 {sCB}, {sCB}, 7\ns_lshl_b32 {sW16K}, {sWV}, 14\nv_mov_b32 {v(vZ)}, 0")
        s(f"s_and_b32 {sA}, {sWV}, 1\ns_cmp_eq_u32 {sA}, 1\ns_cselect_b64 {sPAR}, -1, 0")
        for i in range(4):
            s(f"s_add_u32 {sA}, {sQ4}, {i}\ns_and_b32 {sA}, {sA}, 3\ns_lshl2_add_u32 {sA}, {sT}, {sA}")
            if i: s(f"s_lshl_b32 {sXB[i]}, {sA}, 15")
            s(f"s_mul_i32 {sAB[i]}, {sA}, {TBSTR}\ns_add_u32 {sAB[i]}, {sAB[i]}, {WS_ACT}")
        srd(s, sB2, 56, 1024)
        srd(s, sW2, 54, 1376 * 1024); srd(s, sWo, 46, 512 * 1024); srd(s, sOut, 58, 2048 * 1024)
        s.waittok("rows", ahead=o["ah0"]); self.stamp(s, "rows")
        q = ST
        for i in range(4): s(f"v_mov_b32 {v(q+i)}, 0")
        for i in range(4):
            for r in range(2):
                s(f"v_dot2c_f32_bf16 {v(q+r)}, {v(tmp+4*r+i)}, {v(vT1)}\nv_dot2c_f32_bf16 {v(q+2+r)}, {v(tmp+4*r+i)}, {v(tmp+4*r+i)}")
        if o["stag"]: s(f"s_mov_b32 {sA}, {sBA}\nv_lshrrev_b32 {v(vT0)}, 1, v0")
        else:
            s.waittok("tag")
            s(f"v_readfirstlane_b32 {sA}, {v(vTAG)}\nv_lshrrev_b32 {v(vT0)}, 1, v0")
        s(f"v_permlane32_swap_b32 {v(q)}, {v(q+1)}\nv_permlane32_swap_b32 {v(q+2)}, {v(q+3)}")
        s(f"v_add_f32 {v(q)}, {v(q)}, {v(q+1)}\nv_add_f32 {v(q+2)}, {v(q+2)}, {v(q+3)}\ns_add_u32 {sA}, {sA}, 0x{TAGC:x}")
        s(f"v_mov_b32 {v(vTAG)}, {sA}\nv_permlane16_swap_b32 {v(q)}, {v(q+2)}\nv_add_f32 {v(q)}, {v(q)}, {v(q+2)}")
        s(f"v_mov_b32 {v(vTAG+1)}, {sA}\nv_mov_b32 {v(q+1)}, {sA}")
        for m in ("quad_perm:[1,0,3,2]", "quad_perm:[2,3,0,1]", "row_half_mirror", "row_mirror"):
            s(f"v_add_f32_dpp {v(q)}, {v(q)}, {v(q)} {m} {DPPM}")
        s(f"s_mov_b32 exec_lo, 0x00010001\ns_mov_b32 exec_hi, 0x00010001\nbuffer_store_dwordx2 {v(q,2)}, {v(vT0)}, {sWS}, {sFL} offen sc1\ns_mov_b64 exec, -1", glue=True)
        self.stamp(s, "st")
        tl.straight(s); s = Stream()
        while tl.bi < len(tl.bg): tl.emit_bg(True)
        s(f"s_cmp_ge_u32 {sU}, 2\ns_cbranch_scc1 L_ffn\nL_split:", glue=True)
        tl.straight(s); s = Stream()
        if att:
            s(f"s_lshl2_add_u32 {sHK}, {sJ}, {sWV}\ns_add_u32 {sJ}, {sJ}, {o['qx']}\ns_and_b32 {sJ}, {sJ}, 7\ns_lshl_b32 {sD}, {sJ}, 7")
        else: s(f"s_add_u32 {sD}, {sSO[1]}, 256")
        if att:
            s(f"s_lshl2_add_u32 {sHD}, {sJ}, {sWV}"); srd(s, sAux, 44, 32 * 512)
        else:
            s(f"s_lshr_b32 {sB}, {sWV}, 1\ns_add_u32 {sBLKS}, {sBLKP}, {sB}\ns_add_u32 {sBLKS}, {sBLKS}, 4\ns_add_u32 {sBLKP}, {sBLKP}, {sWV}")
            srd(s, sAux, 52, 2752)
            t0, t2 = vB1, vB1 + 1
            s(f"v_and_b32 {v(t0)}, 0x13, v0\nv_and_b32 {v(t2)}, 4, v0\nv_lshl_add_u32 {v(t0)}, {v(t2)}, 1, {v(t0)}\nv_bfe_u32 {v(t2)}, v0, 3, 1\nv_lshl_add_u32 {v(t0)}, {v(t2)}, 2, {v(t0)}")
            s(f"v_and_b32 {v(t2)}, 32, v0\nv_lshl_add_u32 {v(t0)}, {v(t2)}, 8, {v(t0)}\nv_lshlrev_b32 {v(G4)}, 1, {v(t0)}")
        s.mark("aux")
        dma_p(o["npc"])
        B(f"buffer_load_dwordx4 {v(B2,4)}, {v(vOUT)}, {sB2}, {sCB} offen", None, "aux", sp=16)
        if att:
            B(f"s_lshr_b32 {sM}, {sHD}, 1\ns_add_u32 m0, {sE1}, {SCR}\ns_lshl_b32 {sM}, {sM}, 10\nbuffer_load_dwordx4 {v(vL16)}, {sAux}, {sM} offen lds", None, "aux", sp=16)
            B(f"s_lshr_b32 {sM}, {sHK}, 1\ns_add_u32 m0, {sE1}, {SCR+1024}\ns_lshl_b32 {sM}, {sM}, 10\nbuffer_load_dwordx4 {v(vL16)}, {sAux}, {sM} offen lds", "b2", sp=16)
        else:
            B(f"s_lshl_b32 {sM}, {sBLKP}, 6\nbuffer_load_ushort {v(vB1)}, {v(G4)}, {sAux}, {sM} offen", None, "aux", sp=16)
            B(f"s_lshl_b32 {sM}, {sBLKS}, 6\nbuffer_load_ushort {v(vB1+1)}, {v(G4)}, {sAux}, {sM} offen", "b2", sp=16)
        w1 = vJ + 1
        def warm3(pos):
            if o["warmm"] != pos: return
            wa, wd = (vFL, vFL + 1) if pos >= 2 else (XR, XR + 1)
            B(f"v_min_u32 {v(wa)}, 10, v0\nv_lshlrev_b32 {v(wa)}, 7, {v(wa)}\ns_lshl2_add_u32 {sN}, s2, {sWV}\ns_mul_i32 {sM}, {sN}, {11*128}\nbuffer_load_dword {v(wd)}, {v(wa)}, {sW2}, {sM} offen", None, "stok" if pos >= 2 else None, sp=16)
            tl.bg[-1].ins[-1].wr = []
            B(f"v_min_u32 {v(wa)}, 0x180, {v(wa)}\ns_lshl_b32 {sM}, {sN}, 9\nbuffer_load_dword {v(wd)}, {v(wa)}, {sWo}, {sM} offen", sp=32)
        def warm2(ks):
            if o["warm"] != (1 if att else 2): return
            for k in ks:
                pre = f"v_lshlrev_b32 {v(w1)}, 3, {v(vN16)}\ns_and_b32 {sN}, {sI}, 1\ns_lshl1_add_u32 {sN}, {sROT}, {sN}\ns_lshl2_add_u32 {sN}, {sN}, {sWV}\n" if k == 0 else ""
                pre += f"s_mul_i32 {sM}, {sN}, {174*128}\ns_add_u32 {sM}, {sM}, {29*128*k}" if k < 6 else f"s_lshl_b32 {sM}, {sN}, 13\ns_add_u32 {sM}, {sM}, {4096*(k-6)}"
                B(f"{pre}\nbuffer_load_dword {v(w1+1)}, {v(w1)}, {sW2 if k < 6 else sWo}, {sM} offen", sp=o["wsp"]); tl.bg[-1].ins[-1].wr = []
        if o["warmf"]:
            B(f"s_lshl_b32 {sM}, s2, 7\ns_add_u32 {sM}, {sM}, {WS_FL1}\nbuffer_load_dword {v(w1+2)}, {v(vZ)}, {sWS}, {sM} offen", sp=16)
        for ci in range(o["npc"] + 1, 8): dma_p(ci, "phi" if ci == 7 else None)
        if att:
            s(f"v_bfe_u32 {v(x0)}, v0, 1, 1\nv_lshl_add_u32 {v(x0)}, {v(yP)}, 1, {v(x0)}\nv_lshlrev_b32 {v(x0)}, 3, {v(x0)}\nv_lshl_add_u32 {v(x0)}, {v(yH)}, 5, {v(x0)}")
            s(f"s_and_b32 {sC}, s98, 0x200\ns_add_u32 {sA}, {sE1}, {sC}\ns_add_u32 {sA}, {sA}, {SCR}")
            s(f"v_add_u32 {v(vJ)}, {sA}, {v(x0)}\nv_xor_b32 {v(vJ+1)}, 0x200, {v(vJ)}"); s.mark("pha")
        s(f"s_movk_i32 {sB}, {stride}")
        for k in range(2):
            s(f"s_add_u32 {sA}, {sWV}, {sROT}\ns_add_u32 {sA}, {sA}, {4*k}\ns_and_b32 {sA}, {sA}, 7\ns_mul_i32 {sA}, {sA}, {64*stride}\ns_add_u32 {sSO[k]}, {sA}, {sD}")
        def dma_s(half, after):
            for k in range(2): run4(f"s_add_u32 m0, {sW8K}, {R[4-4*half]+k*4096}\ns_add_u32 {sM}, {sSO[half]}, {32*stride*k}", vSD, sW, ("s", half), after)
        s(f"v_lshrrev_b32 {v(vT0)}, 3, v0\nv_lshlrev_b32 {v(vT1)}, 2, v0\nv_and_b32 {v(vT1)}, 64, {v(vT1)}\nv_xor_b32 {v(vT1)}, {v(vT1)}, {v(vOUT)}")
        s(f"v_mad_u32_u24 {v(vSD)}, {v(vT0)}, {sB}, {v(vT1)}")
        for q in range(1, 4): s(f"v_add_u32 {v(vSD+q)}, {q*(8*stride-1024)}, {v(vSD)}")
        s(f"v_lshl_add_u32 {v(vWD+3)}, {v(vT0)}, 10, {v(vT1)}")
        if att:
            s(f"v_lshl_add_u32 {v(vT3)}, {v(vT2)}, 9, {v(vN16)}\nv_lshlrev_b32 {v(vT2)}, 5, {v(vT2)}\nv_add_u32 {v(vT2)}, 0x400, {v(vT2)}")
            s(f"v_cmp_gt_u32 vcc, 0x100, {v(vN16)}\nv_add_u32 {v(vT0)}, 16, {v(vT2)}\nv_add_u32 {v(vT1)}, 0x100, {v(vT3)}")
            s(f"v_cndmask_b32 {v(vKA)}, {v(vT2)}, {v(vT3)}, vcc\nv_cndmask_b32 {v(vKA+1)}, {v(vT0)}, {v(vT1)}, vcc")
        s(f"v_lshrrev_b32 {v(x0)}, 1, {v(yR)}\nv_lshl_add_u32 {v(x0)}, {v(x0)}, 6, {v(yF)}\nv_lshl_add_u32 {v(x0)}, {v(yP)}, 5, {v(x0)}\nv_lshl_add_u32 {v(x0)}, {v(yH)}, 7, {v(x0)}")
        s(f"v_add_u32 {v(vWR)}, {sW8K}, {v(x0)}\nv_xor_b32 {v(vWR+1)}, 64, {v(vWR)}")
        if att: s(f"s_lshl_b32 {sA}, {sWV}, 5")
        else: s(f"s_and_b32 {sA}, {sWV}, 2\ns_lshl_b32 {sA}, {sA}, 5")
        s(f"v_xor_b32 {v(x0)}, {sA}, {v(x0)}\nv_add_u32 {v(vSR)}, {R[4]}, {v(x0)}")
        if att:
            for i in range(4): s(f"v_mov_b32 {v(ONES+i)}, 0x3f803f80")
        s(f"v_and_b32 {v(vFA)}, {15 if att else 7}, v0\nv_lshlrev_b32 {v(vFA)}, 3, {v(vFA)}")
        if att:
            s(f"v_bfe_u32 {v(vT0)}, v0, 2, 1\nv_lshrrev_b32 {v(vT2)}, 5, v0\nv_cmp_eq_u32 vcc, {v(vT0)}, {v(vT2)}")
            s(f"v_and_b32 {v(vT0)}, 16, {v(vL16)}\nv_mov_b32 {v(vT2)}, 0x3f80\nv_lshlrev_b32 {v(vT2)}, {v(vT0)}, {v(vT2)}\nv_cndmask_b32 {v(vT2)}, 0, {v(vT2)}, vcc")
            s(f"v_bfe_u32 {v(vT0)}, v0, 1, 1\nv_bfe_u32 {v(vT3)}, v0, 3, 2\nv_lshl_add_u32 {v(vT0)}, {v(vT3)}, 1, {v(vT0)}")
            for i in range(0, 8, 2):
                s(f"v_cmp_eq_u32 vcc, {i}, {v(vT0)}\nv_cmp_eq_u32 s[70:71], {i+1}, {v(vT0)}")
                s(f"s_nop 0\nv_cndmask_b32 {v(SEL[i>>2]+(i&3))}, 0, {v(vT2)}, vcc\nv_cndmask_b32 {v(SEL[i>>2]+(i&3)+1)}, 0, {v(vT2)}, s[70:71]")
            s(f"s_lshl_b32 {sFK}, {sHD}, 7\ns_add_u32 {sFK}, {sFK}, {WS_FL1}")
        s(f"s_lshr_b32 {sFL}, {sTT}, 1\ns_lshl4_add_u32 {sFL}, {sFL}, {sWV}\ns_lshl_b32 {sFL}, {sFL}, 6\ns_add_u32 {sFL}, {sFL}, {WS_FL2}")
        s(f"s_lshl_b32 {sC}, {sWV}, 3")
        for d, tb in ((sBA, FFN_BLK0[0::2]), (sBB, FFN_BLK0[1::2]), (sBS[0], [x[0] for x in SBL]), (sBS[1], [x[1] for x in SBL]), (sBS[2], [x[2] for x in SBL])):
            s(f"s_lshr_b32 {d}, {pack(tb)}, {sC}\ns_and_b32 {d}, {d}, 0xff")
        PH = Stream()
        if att:
            PH.need("pha"); PH.waittok("b2")
            for hs in range(3):
                for e in range(2): PH(f"ds_read_b64_tr_b16 {v(PHI[hs]+2*e,2)}, {v(vJ+(hs&1))} offset:{e*128+(hs>>1)*1024}", tok="phr")
            PH.waittok("phr")
        PH.mark("phi")
        s.need("phi"); s.waittok("b2")
        s(f"v_lshrrev_b32 {v(vT0)}, 3, v0\nv_lshl_add_u32 {v(vOUT)}, {v(vT0)}, 10, {v(vOUT)}")
        if not att:
            six = sum(1 << i for i, n in enumerate(FFN_NBLK) if n == 6)
            s(f"s_lshr_b32 {sC}, {six}, {sJ}\ns_lshr_b32 {sA}, {sWV}, 1\ns_andn2_b32 {sC}, {sA}, {sC}\ns_and_b32 {sC}, {sC}, 1\ns_lshl_b32 {sC}, {sC}, 18\ns_or_b32 {sBLKS}, {sBLKS}, {sC}")
        else:
            s(f"v_and_b32 {v(vT2)}, 4, v0\nv_cmp_ne_u32 vcc, 0, {v(vT2)}\nv_mov_b32 {v(vT3)}, 0x80008000\ns_nop 0\nv_cndmask_b32 {v(vT3)}, 0, {v(vT3)}, vcc")
            for i in range(12): s(f"v_xor_b32 {v(PHI[i>>2]+(i&3))}, {v(vT3)}, {v(PHI[i>>2]+(i&3))}")
        def stats_ld(i, r):
            return f"s_add_u32 {r}, {sQ4}, {i}\ns_and_b32 {r}, {r}, 3\ns_lshl_b32 {r}, {r}, 9\ns_add_u32 {r}, {r}, {sSTB}\nbuffer_load_dwordx4 {v(ST+4*i,4)}, {v(vN16)}, {sWS}, {r} offen sc1"
        def xread(st, un, region, ks):
            st(f"ds_read_b128 {v(XF+4*(ks%NX),4)}, {v(vXR+(ks&3))} offset:{region+(ks>>2)*4096}", tok=("xf", un, ks))
        def stat_consts(st, i):
            m, va = ST + 4 * i, ST + 4 * i + 2; k = KC[i]
            st(f"v_mul_f32 {v(m)}, {f2u(1/512)}, {v(m)}\nv_mul_f32 {v(va)}, {f2u(1/512)}, {v(va)}\nv_fma_f32 {v(va)}, -{v(m)}, {v(m)}, {v(va)}\nv_max_f32 {v(va)}, 0, {v(va)}")
            st(f"v_add_f32 {v(va)}, {f2u(1e-5)}, {v(va)}\nv_sqrt_f32 {v(va)}, {v(va)}\nv_mov_b32 {v(m+3)}, 0")
            st(f"v_cvt_pk_bf16_f32 {v(m+1)}, -{v(m)}, {v(va)}\nv_rcp_f32 {v(k)}, {v(va)}")
            st(f"v_lshlrev_b32 {v(vT0)}, 16, {v(m+1)}\nv_and_b32 {v(vT1)}, 0xffff0000, {v(m+1)}")
            st(f"v_sub_f32 {v(m)}, -{v(m)}, {v(vT0)}\nv_sub_f32 {v(vT1)}, {v(va)}, {v(vT1)}")
            if att: st(f"v_mul_f32 {v(k+1)}, {f2u(LOG2E)}, {v(k)}")
            else:
                st(f"v_mov_b32 {v(k+2)}, {v(va)}\nv_mul_f32 {v(k+1)}, {v(k)}, {v(k)}\nv_mul_f32 {v(k)}, {f2u(K0)}, {v(k)}")
                st(f"v_mul_f32 {v(k+1)}, {v(k+1)}, {v(k)}\nv_mul_f32 {v(k+1)}, {f2u(0.044715)}, {v(k+1)}")
            st(f"v_cvt_pk_bf16_f32 {v(m)}, {v(vT0)}, {v(m)}\nv_cvt_pk_bf16_f32 {v(m+2)}, {v(vT1)}, 0")
        def corr_pre(st, which):
            c = CA[which]
            st(f"v_mov_b32 {v(c+3)}, 0\nv_mov_b32 {v(c+2)}, {0 if att else v(vB1+which)}")
            if not att: st(f"v_lshlrev_b32 {v(vB1+which)}, 16, {v(vB1+which)}")
        def corr_a(st, which):
            c = CA[which]
            st(f"v_cvt_pk_bf16_f32 {v(c)}, {v(CS)}, {v(CS)}\nv_lshlrev_b32 {v(vT1)}, 16, {v(c)}\nv_sub_f32 {v(vT0)}, {v(CS)}, {v(vT1)}")
            st(f"v_cvt_pk_bf16_f32 {v(c+1)}, {v(vT0)}, {0 if att else v(vB1+which)}")
        def spin(st, test, reload_, name):
            lp, ok = self.lab("poll"), self.lab("ok")
            st(test + f"\ns_cbranch_vccz {ok}", glue=True)
            st(f"s_mov_b32 {sC}, 0", cond=True)
            st(lp + ":")
            slp = o["slp"] if name in ("fO", "fS") else o["slpK"]
            if slp: st(f"s_sleep {slp}", cond=True)
            st(reload_, cond=True)
            st(f"s_add_u32 {sC}, {sC}, 1\ns_cmp_gt_u32 {sC}, 100000\ns_cbranch_scc1 {ok}\ns_waitcnt vmcnt(0)", cond=True)
            st(test + f"\ns_nop 4\ns_cbranch_vccnz {lp}", cond=True)
            st(ok + ":\ns_nop 0"); st.mark(name); self.stamp(st, name)
        corr_pre(s, 0); corr_pre(s, 1)
        B(stats_ld(0, sM), "stat0", "b%d" % o["s0"], sp=32)
        dma_x(1, "b3", sp1)
        for i in range(1, 4): B(stats_ld(i, sM), "stats", "b7", sp=32)
        dma_x(2, "b5"); dma_x(3, "b7"); warm3(1)
        lag = o["lag"]
        Mp = []
        def mf(kp): return f"{MF} {v(ACC[0],16)}, {ag(4*kp,4)}, {v(XF+4*(kp%NX),4)}, {v(ACC[0],16) if kp else 0}"
        def mf16(kp): return f"{MF16} {v(CS,4)}, {v(CSEL,4)}, {ag(4*kp,4)}, {v(CS,4) if kp else 0}"
        g = Stream()
        for ks in range(32):
            ci, kk = ks >> 2, ks & 3; kp = ks - lag
            if kk == 0:
                if ci == 0: g.waittok(("x", 0), ("p", 0), ahead=o["ah0b"], lat=o["plat0"]); self.stamp(g, "x0")
                else: g.waittok(("p", ci), ahead=o["ahead"], lat=o["plat"])
                g("s_barrier"); g.mark("b%d" % ci); self.stamp(g, "b%d" % ci)
            if kp >= 0: g.waittok(("xf", 0, kp), lat=0); g(mf(kp))
            for e in range(2):
                g(f"ds_read_b64_tr_b16 {ag(4*ks+2*e,2)}, {v(vPR+(ci>>2))} offset:{(ci&3)*16384+kk*4096+e*1024}")
            xread(g, 0, 0, ks)
            if ks == 31: g.mark("prd")
            Mp.append(g); g = Stream()
            if kp >= 0: g(mf16(kp)); Mp.append(g); g = Stream()
        x = s
        x.waittok("stat0")
        spin(x, f"v_xor_b32 {v(vT0)}, {v(vTAG)}, {v(ST+1)}\nv_xor_b32 {v(vT1)}, {v(vTAG)}, {v(ST+3)}\nv_cmp_ne_u64 vcc, 0, {v(vT0,2)}", stats_ld(0, sA), "st0")
        stat_consts(x, 0)
        x.need("prd")
        x(f"v_mov_b32 {v(vWD)}, {v(vWD+3)}")
        for q in range(1, 4): x(f"v_add_u32 {v(vWD+q)}, {7168*q}, {v(vWD)}")
        x(f"s_lshl_b32 {sPCOL}, {sTT}, 16\ns_add_u32 {sPCOL}, {sPCOL}, {sW8K}\ns_add_u32 {sPCOL}, {sPCOL}, {sCB}")
        x.need("cs0"); corr_a(x, 0); x.mark("ca0")
        for n, kp in enumerate(range(32 - lag, 32)):
            g = Stream()
            if n == 0: g.waittok(("xf", 0, 31)); g("s_barrier"); g.mark("b8")
            g(f"{MF16} {v(CS,4)}, {v(CSEL,4)}, {ag(4*kp,4)}, {v(CS,4)}")
            if kp == 31: g.mark("cs0")
            Mp.append(g)
        for kp in range(32 - lag, 32):
            g = Stream(); g(f"{MF} {v(ACC[0],16)}, {ag(4*kp,4)}, {v(XF+4*(kp%NX),4)}, {v(ACC[0],16)}"); Mp.append(g)
        g = Stream(); g.need("ca0"); g(f"{MF} {v(ACC[0],16)}, {v(CA[0],4)}, {v(ST,4)}, {v(ACC[0],16)}"); self.stamp(g, "p1"); Mp.append(g)
        tl.sched(Mp, [PH, x])
        if o.get("stop"):
            out = Stream()
            for i in tl.out:
                if "m" in o["stop"] and i.kind == "mfma": continue
                if "s" in o["stop"] and (i.kind == "vst" or i.cond or i.op.startswith("s_cbranch_vcc")): continue
                if "b" in o["stop"] and i.kind == "barrier": continue
                if "d" in o["stop"] and (i.kind == "dsr" or (i.kind == "waittok" and (i.tok[0] == "phr" or i.tok[0][0] == "xf"))): continue
                out.append(i)
            s = out
            s("s_waitcnt vmcnt(0)\ns_memrealtime s[64:65]\ns_waitcnt lgkmcnt(0)")
            s(f"s_lshl2_add_u32 {sA}, s2, {sWV}\ns_lshl_b32 {sA}, {sA}, 6\ns_add_u32 {sA}, {sA}, {WS_STAMP}")
            for i, r in enumerate(["s100"] + ["s%d" % k for k in STAMPR] + ["s64"]):
                s(f"v_mov_b32 {v(vT1)}, {r}\nbuffer_store_dword {v(vT1)}, {v(vZ)}, {sWS}, {sA} offen offset:{4*i}")
            return s

        def gelu(e, acc, k, sbase, sblk, tok):
            e(f"s_lshl_b32 {sB}, {sblk}, 11\ns_add_u32 {sB}, {sB}, {sbase}")
            for q in range(4):
                A = [v(acc + 4 * q + i) for i in range(4)]; T = [v(G4 + i) for i in range(4)]
                for i in range(4): e(f"v_mul_f32 {T[i]}, {A[i]}, {A[i]}")
                for i in range(4): e(f"v_fma_f32 {T[i]}, {T[i]}, {v(k+1)}, {v(k)}")
                for i in range(4): e(f"v_mul_f32 {T[i]}, {A[i]}, {T[i]}")
                for i in range(4): e(f"v_exp_f32 {T[i]}, {T[i]}")
                for i in range(4): e(f"v_fma_f32 {T[i]}, {T[i]}, {v(k+2)}, {v(k+2)}")
                for i in range(4): e(f"v_rcp_f32 {T[i]}, {T[i]}")
                for i in range(4): e(f"v_mul_f32 {T[i]}, {A[i]}, {T[i]}")
                for i in range(2): e(f"v_cvt_pk_bf16_f32 {v(HO+2*q+i)}, {T[2*i]}, {T[2*i+1]}")
                if q & 1: e(f"buffer_store_dwordx4 {v(HO+4*(q>>1),4)}, {v(vL16)}, {sWS}, {sB} offen offset:{1024*(q>>1)} sc1", tok=tok)
        def sm_head(e, src, phi, T_, f4):
            for i in range(4): e(f"v_cvt_pk_bf16_f32 {v(f4+i)}, {v(src+2*i)}, {v(src+2*i+1)}")
            e(f"{MF} {v(T_,16)}, {v(phi,4)}, {v(f4,4)}, 0")
        def sm_body(e, T_, k, dst):
            t2, t3 = v(vT2), v(vT3); T = lambda i: v(T_ + i)
            e(f"v_max3_f32 {t2}, {T(0)}, {T(1)}, {T(2)}\nv_max3_f32 {t3}, {T(3)}, {T(4)}, {T(5)}")
            for i in range(2): e(f"v_max3_f32 {t2}, {t2}, {T(6+4*i)}, {T(7+4*i)}\nv_max3_f32 {t3}, {t3}, {T(8+4*i)}, {T(9+4*i)}")
            e(f"v_max3_f32 {t2}, {t2}, {T(14)}, {T(15)}\nv_max_f32 {t2}, {t2}, {t3}\nv_mul_f32 {t2}, {t2}, {v(k+1)}")
            for i in range(16): e(f"v_fma_f32 {T(i)}, {T(i)}, {v(k+1)}, -{t2}")
            for i in range(16): e(f"v_exp_f32 {T(i)}, {T(i)}")
            e(f"v_add_f32 {t2}, {T(0)}, {T(1)}\nv_add_f32 {t3}, {T(2)}, {T(3)}")
            for i in range(4, 16, 2): e(f"v_add_f32 {t2}, {t2}, {T(i)}\nv_add_f32 {t3}, {t3}, {T(i+1)}")
            e(f"v_add_f32 {t2}, {t2}, {t3}\nv_rcp_f32 {t2}, {t2}")
            for i in range(16): e(f"v_mul_f32 {T(i)}, {T(i)}, {t2}")
            for i in range(8): e(f"v_cvt_pk_bf16_f32 {v(dst+i)}, {T(2*i)}, {T(2*i+1)}")
        def kepi(e, un):
            acc, k = ACC[un & 1], KC[un]
            e(f"{MF} {v(TB,16)}, {v(ONES,4)}, {v(SEL[1],4)}, 0")
            e.need("m%d" % un)
            sm_head(e, acc, PHI[2], TA, F4)
            for i in range(8): e(f"v_mul_f32 {v(acc+8+i)}, {v(acc+8+i)}, {v(k)}")
            for i in range(4): e(f"v_cvt_pk_bf16_f32 {v(F8b+i)}, {v(acc+8+2*i)}, {v(acc+9+2*i)}")
            e.mark("e%d" % un)
            b = Stream(); sm_body(b, TA, k, F8a)
            e.extend(b[:2]); e(f"{MF} {v(TB,16)}, {v(F8b,4)}, {v(SEL[0],4)}, {v(TB,16)}"); e.extend(b[2:-4])
            e.extend(b[-4:-2]); e2 = b[-2:]
            TC = acc2 = None
            e.extend(e2)
            for i in range(2): e(f"v_cvt_pk_bf16_f32 {v(F8b+i)}, {v(TB+2*i)}, {v(TB+2*i+1)}")
            e(f"{MF} {v(TA,16)}, {v(F8a,4)}, {v(SEL[0],4)}, 0")
            for i in range(2, 8): e(f"v_cvt_pk_bf16_f32 {v(F8b+i)}, {v(TB+2*i)}, {v(TB+2*i+1)}")
            e(f"{MF} {v(TA,16)}, {v(F8a+4,4)}, {v(SEL[1],4)}, {v(TA,16)}")
            for i in range(8): e(f"v_cvt_pk_bf16_f32 {v(F8a+i)}, {v(TA+2*i)}, {v(TA+2*i+1)}")
            e(f"{MF} {v(KV,16)}, {v(F8a,4)}, {v(F8b,4)}, {v(KV,16) if un else 0}\n{MF} {v(KV,16)}, {v(F8a+4,4)}, {v(F8b+4,4)}, {v(KV,16)}")
        def kvpub(e):
            e(f"s_mul_i32 {sB}, {sT}, 960\ns_sub_u32 {sB}, 15360, {sB}\nv_lshrrev_b32 {v(vT3)}, 8, {v(vN16)}")
            e(f"v_mad_u32_u24 {v(vT2)}, {v(vT3)}, {sB}, {v(vKA)}\nv_mad_u32_u24 {v(vT3)}, {v(vT3)}, {sB}, {v(vKA+1)}")
            e(f"s_mul_i32 {sB}, {sHK}, 17\ns_add_u32 {sB}, {sB}, {sT}\ns_lshl_b32 {sB}, {sB}, 10\ns_add_u32 {sB}, {sB}, {WS_KVP}")
            for c in range(2):
                for i in range(4): e(f"v_cvt_pk_bf16_f32 {v(F8a+4*c+i)}, {v(KV+8*c+2*i)}, {v(KV+8*c+2*i+1)}")
                e(f"buffer_store_dwordx4 {v(F8a+4*c,4)}, {v(vT2+c)}, {sWS}, {sB} offen sc1", tok="kvp")
        def qepi(e, acc, k, dst):
            for i in range(4): e(f"v_cvt_pk_bf16_f32 {v(F4+i)}, {v(acc+2*i)}, {v(acc+2*i+1)}")
            for i in range(4): e(f"v_cvt_pk_bf16_f32 {v(F8b+i)}, {v(acc+8+2*i)}, {v(acc+9+2*i)}")
            e(f"{MF} {v(acc,16)}, {v(PHI[1],4)}, {v(F8b,4)}, 0\n{MF} {v(TA,16)}, {v(PHI[0],4)}, {v(F4,4)}, 0")
            sm_body(e, acc, k, dst + 8); e.mark(("sib", dst)); sm_body(e, TA, k, dst)
        def flag(st, addr, tok, lat=None):
            st(addr)
            st.waittok(tok, lat=lat or o["stlat"])
            st(f"s_mov_b64 exec, 1\nbuffer_store_dwordx2 {v(vTAG,2)}, {v(vZ)}, {sWS}, {sD} offen sc1\ns_mov_b64 exec, -1", glue=True)
        a_fl1 = f"s_lshl4_add_u32 {sD}, {sHK}, {sT}\ns_lshl_b32 {sD}, {sD}, 3\ns_add_u32 {sD}, {sD}, {WS_FL1}"
        def a_fl2(kind): return f"s_lshl2_add_u32 {sD}, {sJ}, {sWV}\ns_lshl_b32 {sC}, {sT}, 10\ns_lshl3_add_u32 {sD}, {sD}, {sC}\ns_add_u32 {sD}, {sD}, {WS_FL2+256*kind}"
        def fl_txt(sreg, off): return f"buffer_load_dwordx2 {v(vFL,2)}, {v(vFA)}, {sWS}, {sreg} offen offset:{off} sc1"
        def fl_bg(sreg, off, tok, after): B(fl_txt(sreg, off), tok, after, sp=16)
        def fl_check(st, sreg, off, tok):
            st.waittok(tok)
            spin(st, f"v_cmp_ne_u64 vcc, {v(vFL,2)}, {v(vTAG,2)}", fl_txt(sreg, off), tok)

        SLOT = {"a0": (sW8K, R[0]), "a1": (sW8K, R[0] + 4096), "b0": (sW8K, R[1]), "b1": (sW8K, R[1] + 4096),
                "c0": (sW8K, R[4]), "c1": (sW8K, R[4] + 4096), "d0": (sW16K, R[2])}
        WSLOT = ["b0", "b1", "c0", "c1", "a0", "a1"] * 2 + ["b0", "b1", "d0"]
        nE = 8
        def blk(b):
            if b < 4: return sBA, b
            if b < 8: return sBB, b - 4
            if b < 11: return sBS[b - 8], 0
            return None, b - 11
        def dma_w(b, after):
            sb, off = SLOT[WSLOT[b]]; r, i = blk(b)
            pre = f"s_add_u32 m0, {sb}, {off}\n"
            if r: pre += f"s_lshl_b32 {sM}, {r}, 15\ns_add_u32 {sM}, {sM}, {sCB}"
            else: pre += f"s_lshl3_add_u32 {sM}, {sW16K}, {sCB}"
            if i: pre += f"\ns_add_u32 {sM}, {sM}, {32768*i}"
            run4(pre, vWD, sW2 if r else sWo, ("w", b), after)
        def wread(st, b):
            sl = WSLOT[b]; off = SLOT[sl][1]
            base, d = (vWB, -R[4]) if sl[0] == "c" else (vXR, -R[2]) if sl[0] == "d" else (vWR, 0)
            st.waittok(("w", b), lat=o["wlat"])
            for stp in range(2):
                for cb in range(2):
                    for e in range(2):
                        st(f"ds_read_b64_tr_b16 {ag(128+16*(b%8)+8*stp+4*cb+2*e,2)}, {v(base+cb)} offset:{off+d+stp*2048+e*512}", tok=("wr", b))

        D = NX - 1
        M = []
        RG = {1: R[1], 2: 0, 3: R[1], 4: 0, 5: 0}
        def bump(st, d):
            for i in range(4): st(f"v_add_u32 {v(vXR+i)}, {d}, {v(vXR+i)}")
        def opening(g, un):
            if un == 3: g.waittok(("x", 3), ("s", 0), ("s", 1)); g("s_barrier"); g.mark("sl")
            elif un < 3: g.waittok(("x", un)); g("s_barrier"); g.mark("xl%d" % un)
            if un == 2: bump(g, "0x10000")
            if un == 5: g.need("e1s"); bump(g, sE1)
        NP = 8
        for un in range(1, 6):
            acc = ACC[un & 1]
            cm = f"{MF} {v(acc,16)}, {v(CA[un>3],4)}, {v(ST+4*un if un <= 3 else CBS,4)}, "
            g = Stream()
            if un == 1:
                opening(g, 1)
                for ks in range(D): xread(g, 1, RG[1], ks)
            if un >= 2: g.need("f%d" % (un - 2))
            self.stamp(g, "u%d" % un)
            if un != 4:
                g.need("c%d" % un); g(cm + "0"); M.append(g); g = Stream()
            last = o["kvpace"] if (att and un == 4) else 31
            for ks in range(32):
                for k in range(NP):
                    if ks == o["pace"] + (k + 1) * (last - o["pace"]) // NP: g.need(("ep", un - 1, k))
                if ks % 4 == 0:
                    if un == 4: g.need("sr%d" % (ks + 3)); g.waittok(("sr", ks + 3))
                    else: g.waittok(("xf", un, ks + 3))
                if ks == 28 and un == 1: g.mark("u1r")
                if ks == 28 and un == 5: g("s_barrier"); g.mark("r5")
                if ks + D == 32 and un < 5: opening(g, un + 1)
                g(f"{MF} {v(acc,16)}, {ag(4*ks,4)}, {ag(128+4*ks,4) if un == 4 else v(XF+4*(ks%NX),4)}, {v(acc,16) if (ks or un != 4) else 0}")
                if ks + D < 32:
                    if un != 4: xread(g, un, RG[un], ks + D)
                elif un in (1, 2, 4): xread(g, un + 1, RG[un + 1], ks + D - 32)
                if un >= 3: g.mark(("pd", un, ks))
                if un == 5 and ks == o["kvl"]: g.mark("kvl")
                if ks == 31 and un != 4: g.mark("m%d" % un)
                M.append(g); g = Stream()
            if un == 4:
                g.need("c4"); g(cm + v(acc, 16)); g.mark("cb4"); g.mark("m4"); M.append(g)
        tl.marks.add("m0")
        E = Stream()
        def paced(e, un):
            tot = sum(i.cost for i in e); c = 0; k = 0
            for i in e:
                E.append(i); c += i.cost
                while k < NP and c >= tot * (k + 1) / NP - 1e-9 and not i.glue: E.mark(("ep", un, k)); k += 1
            assert k == NP
        def selectk(st, i):
            for r in range(nk): st(f"v_cndmask_b32 {v(KCS+r)}, {v(KC[i]+r)}, {v(KC[i+1]+r)}, {sPAR}")
        for un in range(4):
            e = Stream()
            if att: kepi(e, un)
            else: e.need("m%d" % un); gelu(e, ACC[un & 1], KC[un], sAB[un], sBLKP, "actP")
            if att and un == 3: kvpub(e)
            paced(e, un); E.mark("f%d" % un)
        E.mark("kvp")
        E("s_cmp_lg_u32 s98, 0\n" + "\n".join(f"s_cselect_b32 {sB}, {sAB[k+1]}, {sAB[k]}\ns_cselect_b32 {sAB[k+1]}, {sAB[k]}, {sAB[k+1]}\ns_mov_b32 {sAB[k]}, {sB}" for k in (0, 2)), glue=True)
        selectk(E, 0); E.need("m4")
        e = Stream()
        if att: qepi(e, ACC[0], KCS, PF)
        else: gelu(e, ACC[0], KCS, sAB[0], sBLKS, "actS")
        paced(e, 4)
        selectk(E, 2); E.mark("e4"); E.need("m5"); self.stamp(E, "u6")
        if att: qepi(E, ACC[1], KCS, PF + 16)
        else: gelu(E, ACC[1], KCS, sAB[2], sBLKS, "actS")
        self.stamp(E, "q"); E.mark("q5")
        X = Stream()
        X.waittok("stats")
        t = f"v_xor_b32 {v(vT0)}, {v(vTAG)}, {v(ST+5)}\nv_xor_b32 {v(vT1)}, {v(vTAG)}, {v(ST+7)}\n"
        for r in (9, 13):
            t += f"v_xor_b32 {v(vFL)}, {v(vTAG)}, {v(ST+r)}\nv_xor_b32 {v(vFL+1)}, {v(vTAG)}, {v(ST+r+2)}\nv_or3_b32 {v(vT0)}, {v(vT0)}, {v(vFL)}, {v(vFL+1)}\n"
        spin(X, t + f"v_cmp_ne_u64 vcc, 0, {v(vT0,2)}", "\n".join(stats_ld(i, sA) for i in range(1, 4)), "stok")
        for i in range(1, 4): stat_consts(X, i); X.mark("c%d" % i)
        def select(st, i):
            for r in range(3): st(f"v_cndmask_b32 {v(CBS+r)}, {v(ST+4*i+r)}, {v(ST+4*i+4+r)}, {sPAR}")
        select(X, 0); X(f"v_mov_b32 {v(CBS+3)}, 0")
        X(f"s_mul_i32 {sE0}, {sTT}, {2*TBSTR}\ns_add_u32 {sE0}, {sE0}, {WS_ACT}")
        X.mark("e1s")
        X2 = Stream()
        X2.need("kvp"); flag(X2, a_fl1 if att else a_fl2(0), "kvp" if att else "actP")
        X.need("cs"); corr_a(X, 1); X.mark("c4")
        X.need("cb4"); select(X, 2); X.mark("c5")
        S = Stream()
        C = Stream()
        KR = vJ
        S(f"s_and_b32 {sE1}, s98, 0x8000")
        for i in range(4): S(f"v_add_u32 {v(KR+i)}, {sE1}, {v(vXR+i)}")
        S.need("xl1")
        for ks in range(32): S(f"ds_read_b128 {ag(128+4*ks,4)}, {v(KR+(ks&3))} offset:{(ks>>2)*4096}", tok="kr")
        S.need("u1r"); S.waittok("kr"); S("s_barrier"); S.mark("k")
        S.need("sl")
        S(f"v_add_u32 {v(vWB)}, {R[4]}, {v(vWR)}\nv_add_u32 {v(vWB+1)}, {R[4]}, {v(vWR+1)}")
        for half in range(2):
            for ks in range(16 * half, 16 * half + 16):
                S.need(("pd", 3, ks))
                for e in range(2): S(f"ds_read_b64_tr_b16 {ag(4*ks+2*e,2)}, {v(vSR)} offset:{(ks&15)*2048+e*512}", tok=("sr", ks))
                if ks % 4 == 3:
                    S.mark("sr%d" % ks); C.need("sr%d" % ks); C.waittok(("sr", ks))
                    if ks == 3: C.need("kvp" if att and o["prio"] else "m3")
                    for k2 in range(ks - 3, ks + 1): C(f"{MF16} {v(CS,4)}, {v(CSEL,4)}, {ag(4*k2,4)}, {v(CS,4) if k2 else 0}")
                if ks == 15: S(f"v_subrev_u32 {v(vSR)}, {R[4]}, {v(vSR)}")
                if ks == 19: S.waittok(("sr", 15)); S("s_barrier"); S.mark("sa")
        S.waittok(("sr", 31)); S("s_barrier"); S.mark("sb")
        C.mark("cs")
        if att and o["prio"]: S.need("kvp")
        for b in range(nE):
            S.need(("pd", 4, 4 * b + 3)); wread(S, b)
            if b: S.waittok(("wr", b - 1)); S.mark("wr%d" % (b - 1))
        S.waittok(("wr", nE - 1)); S.mark("wr%d" % (nE - 1))
        B(f"buffer_load_dwordx4 {v(XR,4)}, {v(vOUT)}, {sX}, {sPCOL} offen")
        B(f"s_add_u32 {sM}, {sPCOL}, 0x8000\nbuffer_load_dwordx4 {v(XR+4,4)}, {v(vOUT)}, {sX}, {sM} offen", "res")
        warm3(2); dma_s(0, None); warm3(3)
        dma_s(1, "k"); warm3(4); warm2(range(o["wpos"]))
        def wafter(b): return "k" if b < 2 else "sa" if b < 4 else "sb" if b < 6 else "wr%d" % (b - 6) if b < 14 else "r5"
        nB = o.get("nB", 14)
        for b in range(nB):
            if att and b == o.get("nK", 12): fl_bg(sFK, 0, "fK", "kvl")
            dma_w(b, wafter(b))
            if b == 1: warm2(range(o["wpos"], o["wpos2"]))
            if b == 3: warm2(range(o["wpos2"], 8))
        if att and nB <= o.get("nK", 12): fl_bg(sFK, 0, "fK", "kvl")
        late = list(range(nB, 15))

        AC2 = 0; AF = 64; NB = 4
        def act(bb, after):
            r, i = blk(bb)
            if bb == 10: pre = f"s_cmp_eq_u32 {r}, 43\ns_cselect_b32 {sM}, {sBS[0]}, {r}\ns_lshl_b32 {sM}, {sM}, 11\ns_add_u32 {sM}, {sM}, {sE0}"
            elif r: pre = f"s_lshl_b32 {sM}, {r}, 11\ns_add_u32 {sM}, {sM}, {sE0}"
            else: pre = f"s_add_u32 {sM}, {sW8K}, {sE0}"; i += 43
            if i: pre += f"\ns_add_u32 {sM}, {sM}, {2048*i}"
            pre += f"\ns_add_u32 {sN}, {sM}, {TBSTR}"
            f = AF + 16 * (bb % NB)
            for stp in range(2):
                for tb in range(2):
                    aft = after if (after and stp == 0) else ("mm", bb - NB, stp) if bb >= NB else None
                    B(f"{pre}\nbuffer_load_dwordx4 {ag(f+8*stp+4*tb,4)}, {v(vL16)}, {sWS}, {sN if tb else sM} offen offset:{1024*stp} sc1", ("act", bb, stp), aft, sp=o["spa"])
                    pre = ""
        fO = o["fO"] if att else o["fOf"]; fS = o["fSa"] if att else o["fS"]
        def acts():
            for bb in range(15):
                if bb == fS: fl_bg(sFL, 256, "fS", "fP")
                if bb == fO: fl_bg(sFL, 512, "fO", "fa8")
                act(bb, {0: "fP", 8: "fS", 11: "fO"}.get(bb))
        assert fS >= 5 and fO >= 8
        s = Stream()
        if not att:
            fl_bg(sFL, 0, "fP", "r5")
            for b in late: dma_w(b, wafter(b))
            acts()
            X2.need("m5"); fl_check(X2, sFL, 0, "fP")
            E.mark("odone"); FS = [X, X2, S, C, E]
        else:
            Z = ST + 8; ZT = F8a; KA = XF
            X2.need("sb")
            X2(f"s_mul_i32 {sD}, {sHD}, {KVREC}\ns_add_u32 {sD}, {sD}, {WS_KVP}\nv_add_u32 {v(vJ)}, {sD}, {v(vL16)}")
            X2(f"v_and_b32 {v(vXD0)}, 0x30, {v(vL16)}\nv_lshrrev_b32 {v(vSR)}, 4, v0\nv_lshl_add_u32 {v(vXD0)}, {v(vSR)}, 2, {v(vXD0)}")
            X2.need("c5")
            fl_check(X2, sFK, 0, "fK")
            X2(f"v_and_b32 {v(vFA)}, 0x38, {v(vFA)}"); X2.mark("gat")
            gsp = o.get("gsp", 56)
            B(f"s_movk_i32 {sM}, 0x4000\nbuffer_load_dwordx4 {v(Z,4)}, {v(vJ)}, {sWS}, {sM} offen sc1", "z", "gat", sp=gsp)
            for p in range(16):
                if p == o["nP"]: fl_bg(sFL, 0, "fP", None)
                pre = "" if p % 2 else f"s_lshl_b32 {sM}, {sROT if o.get('grot', 1) else 0}, 11" if p == 0 else f"s_add_u32 {sM}, {sM}, 0x800\ns_and_b32 {sM}, {sM}, 0x3800"
                B(f"{pre}\nbuffer_load_dwordx4 {ag(4*p,4)}, {v(vJ)}, {sWS}, {sM} offen offset:{(p%2)*1024} sc1", ("g", p), ("pd", 5, p), sp=gsp)
            nL = o.get("nL", 0)
            for b in late[:nL]: dma_w(b, wafter(b))
            if o["nP"] >= 16: fl_bg(sFL, 0, "fP", None)
            for b in late[nL:]: dma_w(b, wafter(b))
            acts()
            xo, xs, zw, zr = (CA[0] + i for i in range(4))
            X2(f"s_add_u32 {sD}, {sW16K}, {R[2]+4096}\nv_add_u32 {v(xo)}, {sD}, {v(vL16)}\nv_xor_b32 {v(xs)}, 0x4000, {v(xo)}")
            X2(f"v_add_u32 {v(zw)}, {sD}, {v(vXD0)}\nv_lshl_add_u32 {v(zr)}, {v(vSR)}, 4, {sD}"); X2.mark("xa")
            X2.waittok("z")
            for i in range(4): X2(f"v_lshlrev_b32 {v(ZT+i)}, 16, {v(Z+i)}\nv_and_b32 {v(ZT+4+i)}, 0xffff0000, {v(Z+i)}")
            for i in range(0, 8, 2): X2(f"v_permlane16_swap_b32 {v(ZT+i)}, {v(ZT+i+1)}")
            for i in range(0, 8, 2): X2(f"v_add_f32 {v(ZT+i)}, {v(ZT+i)}, {v(ZT+i+1)}")
            for i in (0, 4): X2(f"v_permlane32_swap_b32 {v(ZT+i)}, {v(ZT+i+2)}")
            for i in (0, 4): X2(f"v_add_f32 {v(ZT+i)}, {v(ZT+i)}, {v(ZT+i+2)}")
            for m in ("row_ror:4", "row_ror:8"):
                for i in (0, 4): X2(f"v_add_f32_dpp {v(ZT+i)}, {v(ZT+i)}, {v(ZT+i)} {m} {DPPM}")
            X2(f"v_cvt_pk_bf16_f32 {v(Z)}, {v(ZT)}, {v(ZT+4)}")
            X2.need("r5"); X2(f"ds_write_b32 {v(zw)}, {v(Z)} offset:4096\nds_read_b128 {v(Z,4)}, {v(zr)} offset:4096", tok="zr"); X2.mark("zr")
            X2.need("m5"); fl_check(X2, sFL, 0, "fP")
            XC = Stream(); XC.need("xa"); XC.need("r5"); XC.need(("sib", PF))
            for k in range(4):
                if k == 2: XC.need(("sib", PF + 16))
                XC(f"ds_write_b128 {v(xo)}, {v(PF+8+16*(k>>1)+4*(k&1),4)} offset:{1024*k}", tok="xw")
            XC.waittok("xw"); XC("s_barrier")
            for k in range(4): XC(f"ds_read_b128 {v(PF+8+16*(k>>1)+4*(k&1),4)}, {v(xs)} offset:{1024*k}", tok="xr")
            XC.waittok("xr"); XC("s_barrier"); XC.mark("xr")
            G = Stream(); G.need("m5")
            for p in range(16):
                if p % 2 == 0: G.waittok(("g", p + 1))
                G(f"{MF} {v(KA,16)}, {v(SEL[0],4)}, {ag(4*p,4)}, {v(KA,16) if p else 0}")
            G.mark("gdone")
            KP = KA + 16
            G(f"s_add_u32 {sSO[0]}, {sHD}, 86\ns_lshl_b32 {sSO[0]}, {sSO[0]}, 10")
            for i in range(4): G(f"v_cvt_pk_bf16_f32 {v(KP+i)}, {v(KA+2*i)}, {v(KA+2*i+1)}")
            G.need("zr"); G.waittok("zr")
            for i in range(4): G(f"v_permlane16_swap_b32 {v(KP+i)}, {v(Z+i)}")
            self.stamp(G, "kvx")
            O = Stream()
            for n, A in ((0, ACC[0]), (1, KA), (3, ACC[1]), (2, TA)):
                if n == 0: G.need("e4")
                if n == 1: G.need("xr")
                if n == 2: G.need("q5")
                G(f"{MF} {v(A,16)}, {v(KP,4)}, {v(PF+8*n,4)}, 0\n{MF} {v(A,16)}, {v(Z,4)}, {v(PF+8*n+4,4)}, {v(A,16)}"); G.mark(("om", n))
                O.need(("om", n))
                O(f"v_add_f32 {v(A+8)}, {f2u(1e-6)}, {v(A+8)}\nv_rcp_f32 {v(A+8)}, {v(A+8)}")
                O(f"s_add_u32 {sSO[1]}, {sAB[n]}, {sSO[0]}")
                for i in range(8): O(f"v_mul_f32 {v(A+i)}, {v(A+i)}, {v(A+8)}")
                for i in range(4): O(f"v_cvt_pk_bf16_f32 {v(A+12+i)}, {v(A+2*i)}, {v(A+2*i+1)}")
                O(f"buffer_store_dwordx4 {v(A+12,4)}, {v(vL16)}, {sWS}, {sSO[1]} offen sc1", tok="actO")
            self.stamp(O, "o"); O.mark("odone")
            FS = [X, X2, S, C, XC, G, E, O]
        nq = o["nq"]
        order = [(bb, stp, tb, cb) for bb in range(15 - nq) for stp in range(2) for tb in range(2) for cb in range(2)]
        order += [(bb, stp, tb, cb) for tb in range(2) for cb in range(2) for bb in range(15 - nq, 15) for stp in range(2)]
        for (bb, stp, tb, cb) in order:
            f = AF + 16 * (bb % NB)
            g = Stream()
            if (stp, tb, cb) == (0, 0, 0):
                if bb == fS: g.need("pub"); fl_check(g, sFL, 256, "fS"); g.mark("fa8")
                if bb == fO: g.need("pub"); fl_check(g, sFL, 512, "fO")
                if bb >= nE: g.need("wq%d" % bb); g.waittok(("wr", bb), lat=0)
            if (bb, stp, tb, cb) == (0, 0, 0, 0):
                g.need("wr7")
                if att: g.need("odone" if o["p2hold"] else "gdone")
            if (tb, cb) == (0, 0): g.waittok(("act", bb, stp), ahead=o["ah2"] if bb >= o["p2e"] else 0, lat=0 if bb >= o["p2e"] else None)
            A = AC2 + 32 * tb + 16 * cb
            g(f"{MF} {ag(A,16)}, {ag(128+16*(bb%8)+8*stp+4*cb,4)}, {ag(f+8*stp+4*tb,4)}, {ag(A,16) if (bb or stp) else 0}")
            if (tb, cb) == (1, 1):
                g.mark(("mm", bb, stp))
                if stp: self.stamp(g, "mm%d" % bb)
            if (bb, stp) == (14, 1): g.mark(("qd", tb, cb))
            M.append(g)
        W = Stream(); W.need("m5")
        W(f"s_add_u32 {sE1}, {sW8K}, {R[2]}\nv_add_u32 {v(vXR)}, {sE1}, {v(vWR)}\nv_add_u32 {v(vXR+1)}, {sE1}, {v(vWR+1)}")
        for b in range(nE, 15):
            if b >= 8: W.need(("mm", b - 8, 1))
            wread(W, b); W.mark("wq%d" % b)
        X = Stream(); X.need("odone"); X.need("fP")
        flag(X, a_fl2(2 if att else 1), "actO" if att else "actS", o["stlat2"])
        X.mark("pub"); X.need(("mm", 3, 1))
        X(f"v_lshrrev_b32 {v(vT0)}, 4, v0\nv_and_b32 {v(vT0)}, 2, {v(vT0)}\nv_and_b32 {v(vT1)}, 7, v0\nv_xor_b32 {v(vT0)}, {v(vT0)}, {v(vT1)}")
        X(f"v_add_lshl_u32 {v(vT0)}, {v(vN16)}, {v(vT0)}, 4\ns_add_u32 {sA}, {sW16K}, {R[2]}\nv_add_u32 {v(RW)}, {sA}, {v(vT0)}")
        for k in range(1, 4): X(f"v_xor_b32 {v(RW+k)}, {64*(k>>1)+16*(k&1)}, {v(RW)}")
        X(f"v_lshrrev_b32 {v(vT0)}, 3, v0\nv_lshlrev_b32 {v(vT1)}, 1, {v(vT1)}\nv_xor_b32 {v(vT1)}, {v(vT1)}, {v(vT0)}\nv_lshlrev_b32 {v(vT1)}, 4, {v(vT1)}")
        X(f"s_lshl_b32 {sA}, {sWV}, 11\ns_add_u32 {sA}, {sA}, {R[2]}\nv_lshl_add_u32 {v(vT0)}, {v(vT0)}, 8, {v(vT1)}\nv_add_u32 {v(RR)}, {sA}, {v(vT0)}\nv_xor_b32 {v(RR+1)}, 16, {v(RR)}")
        Y = ACC[0]; Pp = ACC[1]
        for it in range(2):
            for i in range(4):
                X(f"v_lshlrev_b32 {v(Y+8*it+2*i)}, 16, {v(XR+4*it+i)}\nv_and_b32 {v(Y+8*it+2*i+1)}, 0xffff0000, {v(XR+4*it+i)}")
        for i in range(4):
            X(f"v_lshlrev_b32 {v(vT0)}, 16, {v(B2+i)}\nv_and_b32 {v(vT3)}, 0xffff0000, {v(B2+i)}")
            for it in range(2):
                X(f"v_add_f32 {v(Y+8*it+2*i)}, {v(Y+8*it+2*i)}, {v(vT0)}\nv_add_f32 {v(Y+8*it+2*i+1)}, {v(Y+8*it+2*i+1)}, {v(vT3)}")
        X(f"s_add_u32 {sB}, {sPCOL}, 0x8000"); X.mark("fin")
        Q = Stream(); Z2 = Stream(); Q.need("fin")
        for tb in range(2):
            for cb in range(2):
                Q.need(("qd", tb, cb))
                for k in range(4):
                    Q(f"ds_write_b128 {v(RW+k)}, {ag(AC2+32*tb+16*cb+4*k,4)} offset:{tb*8192+cb*128}", tok=("qw", tb))
            Q.mark(("qw", tb))
            Z2.need(("qw", tb)); Z2.waittok(("qw", tb), lat=80); Z2("s_barrier")
            self.stamp(Z2, "red" if tb else "red0")
            for pw in range(4):
                for k in range(2): Z2(f"ds_read_b128 {v(Pp+32*tb+8*pw+4*k,4)}, {v(RR+k)} offset:{pw*16384+tb*8192}", tok=("qr", tb, pw))
            for pw in range(4):
                Z2.waittok(("qr", tb, pw), lat=100)
                if tb or not nq:
                    for i in range(0, 8, 2): Z2(f"v_pk_add_f32 {v(Y+8*tb+i,2)}, {v(Y+8*tb+i,2)}, {v(Pp+32*tb+8*pw+i,2)}")
                else:
                    for i in range(8): Z2(f"v_add_f32 {v(Y+i)}, {v(Y+i)}, {v(Pp+8*pw+i)}")
            for i in range(4): Z2(f"v_cvt_pk_bf16_f32 {v(XR+4*tb+i)}, {v(Y+8*tb+2*i)}, {v(Y+8*tb+2*i+1)}")
            Z2(f"buffer_store_dwordx4 {v(XR+4*tb,4)}, {v(vOUT)}, {sOut}, {sB if tb else sPCOL} offen{' sc1' if o['outsc1'] else ''}"); self.stamp(Z2, "out%d" % tb)
        tl.sched(M, FS + [X, W, Q, Z2], nds=o.get("nds", 2))
        s = Stream()
        if att:
            noe = self.lab("noe")
            s(f"s_or_b32 {sA}, s2, {sWV}\ns_cmp_lg_u32 {sA}, 0\ns_cbranch_scc1 {noe}")
            s(f"s_mov_b64 exec, 1\nbuffer_store_dword {v(vTAG)}, {v(vZ)}, {sWS}, 0 offen sc1\ns_mov_b64 exec, -1", cond=True)
            s(noe + ":")
        if o.get("probe"):
            lp, l2, l3 = self.lab("pad"), self.lab("ref"), self.lab("skip"); K = o.get("K", 4)
            s("s_waitcnt vmcnt(0)"); self.stamp(s, "end"); s("s_waitcnt lgkmcnt(0)")
            if o.get("st") == "start": s("s_mov_b32 s60, s100")
            s(f"s_or_b32 {sA}, s2, {sWV}\ns_cmp_lg_u32 {sA}, 0\ns_cbranch_scc1 {l2}")
            s(f"v_mov_b32 {v(vT0)}, s100\nv_mov_b32 {v(vT1)}, {v(vTAG)}\nbuffer_store_dwordx2 {v(vT0,2)}, {v(vZ)}, {sWS}, 0 offen offset:2048 sc1", cond=True)
            s(f"{l2}:\ns_sleep 8\nbuffer_load_dwordx2 {v(vT0,2)}, {v(vZ)}, {sWS}, 0 offen offset:2048 sc1\ns_waitcnt vmcnt(0)\nv_cmp_ne_u32 vcc, {v(vT1)}, {v(vTAG)}\ns_nop 4\ns_cbranch_vccnz {l2}")
            s(f"v_readfirstlane_b32 s66, {v(vT0)}\ns_nop 4\ns_sub_u32 s60, s60, s66")
            if o["probe"] == "min": s("s_sub_u32 s60, 1200, s60")
            else: s("s_add_u32 s60, s60, 300")
            if o.get("only", role) != role: s("s_mov_b32 s60, 0")
            s(f"s_mul_i32 s60, s60, {K}\ns_add_u32 s60, s60, 4000")
            s(f"{lp}:\ns_memrealtime s[64:65]\ns_waitcnt lgkmcnt(0)\ns_sub_u32 s64, s64, s66\ns_cmp_lt_u32 s64, s60\ns_cbranch_scc1 {lp}")
        elif o["stamps"]:
            s("s_waitcnt vmcnt(0)\ns_memrealtime s[64:65]\ns_waitcnt lgkmcnt(0)")
            s(f"s_lshl2_add_u32 {sA}, s2, {sWV}\ns_lshl_b32 {sA}, {sA}, 6\ns_add_u32 {sA}, {sA}, {WS_STAMP}")
            for i, r in enumerate(["s100"] + ["s%d" % k for k in STAMPR] + ["s64"]):
                s(f"v_mov_b32 {v(vT1)}, {r}\nbuffer_store_dword {v(vT1)}, {v(vZ)}, {sWS}, {sA} offen offset:{4*i}")
        tl.straight(s)
        assert tl.bi == len(tl.bg)
        tl.log.append("end t=%d forced=%d" % (tl.t, tl.forced))
        if o["log"]: sys.stderr.write("\n".join(role + " " + x for x in tl.log) + "\n")
        return tl.out

    def build(self):
        outs = {}
        for role in ("att", "ffn"):
            st = {}
            outs[role] = finalize(self.role(role), st)
            sys.stderr.write("%s: %s\n" % (role, st))
        ia, jf = outs["att"].index("L_split:"), outs["ffn"].index("L_split:")
        assert outs["att"][:ia] == outs["ffn"][:jf], "common start differs"
        text = outs["att"][:ia] + outs["att"][ia + 1:] + ["s_endpgm", ".p2align 6", "L_ffn:"] + outs["ffn"][jf + 1:] + ["L_end:", "s_endpgm"]
        body = "\n".join(t if t.endswith(":") else "    " + t for t in text) + "\n"
        hdr = ["Fused LayerNorm + hedgehog linear attention + GELU FFN + residual, one persistent launch (generated by my own script).",
               "@launch grid=(256,1,1) block=(256,1,1) lds=163840"]
        return module(hdr, [(NAME + "_kernel", body, 512, 256)])

if __name__ == "__main__":
    opt = {}
    for x in sys.argv[2:]:
        k, _, val = x.partition("=")
        opt[k] = (int(val) if val.lstrip("-").isdigit() else val) if val else True
    open(sys.argv[1], "w").write(Gen(**opt).build())
```

```python
import re

TRANS = ("v_exp_f32", "v_log_f32", "v_rcp_f32", "v_rsq_f32", "v_sqrt_f32", "v_sin_f32", "v_cos_f32")
REG = re.compile(r"^(-|abs\()?([vas])(?:(\d+)|\[(\d+):(\d+)\])\)?$")

def regs_of(op):
    op = op.strip()
    if op in ("vcc",): return [("s", "vcc_lo"), ("s", "vcc_hi")]
    if op in ("vcc_lo", "vcc_hi", "m0"): return [("s", op)]
    if op == "exec": return [("s", "exec")]
    m = REG.match(op)
    if not m: return []
    t = m.group(2)
    if m.group(3) is not None: return [(t, int(m.group(3)))]
    return [(t, i) for i in range(int(m.group(4)), int(m.group(5)) + 1)]

class Ins:
    __slots__ = ("text", "op", "kind", "rd", "wr", "srcc", "passes", "tok", "cond", "cost", "wide_store", "sdata", "glue", "ahead", "lat")
    def __init__(self, text, tok=None, cond=False):
        self.text = text.strip(); self.tok = tok; self.cond = cond; self.glue = cond; self.ahead = 0; self.lat = None
        self.rd = []; self.wr = []; self.srcc = []; self.passes = 0; self.wide_store = False; self.sdata = []
        t = self.text.split(";")[0].strip()
        if t.endswith(":") or t.startswith("."):
            self.op = t; self.kind = "label"; self.cost = 0; return
        parts = t.split(None, 1)
        op = self.op = parts[0]
        rest = parts[1] if len(parts) > 1 else ""
        ops = [x.strip() for x in rest.split(",")] if rest else []
        mods = ""
        if ops:
            sp = ops[-1].split(None, 1)
            ops[-1] = sp[0]; mods = sp[1] if len(sp) > 1 else ""
        if "[" in rest and re.search(r"(quad_perm|op_sel|op_sel_hi|neg_lo|neg_hi):\[", rest):
            cut = re.search(r"\s(quad_perm|op_sel|op_sel_hi|neg_lo|neg_hi|row_|bank_mask|bound_ctrl)", rest).start()
            ops = [x.strip() for x in rest[:cut].split(",")]; mods = rest[cut:]
        R = [regs_of(o) for o in ops]
        flat = lambda l: [r for x in l for r in x]
        self.cost = 1
        if op.startswith("v_mfma"):
            self.kind = "mfma"; self.wr = R[0]; self.rd = flat(R[1:]); self.srcc = R[3]
            self.passes = 8 if "32x32" in op else 4
            self.cost = 2
        elif op.startswith("v_cmp"):
            self.kind = "valu"; self.wr = R[0]; self.rd = flat(R[1:])
        elif op.startswith("v_permlane"):
            self.kind = "valu"; self.wr = R[0] + R[1]; self.rd = R[0] + R[1]
        elif op.startswith("v_"):
            self.kind = "trans" if op.replace("_e32", "").replace("_e64", "") in TRANS else "valu"
            if self.kind == "trans": self.cost = 2
            self.wr = R[0]; self.rd = flat(R[1:])
            if op.startswith(("v_add_co", "v_addc_co", "v_sub_co", "v_subb_co")):
                self.wr = R[0] + R[1]; self.rd = flat(R[2:])
            if op.startswith(("v_fmac", "v_dot2c", "v_writelane")) or "_dpp" in op or "_sdwa" in op:
                self.rd = self.rd + R[0]
        elif op.startswith("ds_read") or op.startswith("ds_bpermute"):
            self.kind = "dsr"; self.wr = R[0]; self.rd = flat(R[1:])
        elif op.startswith("ds_"):
            self.kind = "dsw"; self.rd = flat(R)
        elif op.startswith(("buffer_load", "global_load")):
            if " lds" in (" " + mods) or op.startswith("global_load_lds"):
                self.kind = "dma"; self.rd = flat(R) + [("s", "m0")]
            else:
                self.kind = "vld"; self.wr = R[0]; self.rd = flat(R[1:])
                if "d16" in op: self.rd = self.rd + R[0]
        elif op.startswith(("buffer_store", "global_store")):
            self.kind = "vst"; self.rd = flat(R)
            self.sdata = R[0] if op.startswith("buffer") else R[1]
            self.wide_store = op.endswith(("x3", "x4"))
        elif op.startswith(("s_load", "s_memtime", "s_memrealtime")):
            self.kind = "smem"; self.wr = R[0]; self.rd = flat(R[1:])
        elif op == "s_waitcnt": self.kind = "wait"
        elif op == "s_nop": self.kind = "nop"
        elif op == "s_barrier": self.kind = "barrier"
        elif op.startswith(("s_cbranch", "s_branch", "s_endpgm", "s_sleep", "s_setprio")):
            self.kind = "ctl"
            if "vcc" in op: self.rd = regs_of("vcc")
        elif op.startswith(("s_cmp", "s_bitcmp")):
            self.kind = "salu"; self.rd = flat(R)
        elif op.startswith("s_"):
            self.kind = "salu"; self.wr = R[0]; self.rd = flat(R[1:])
            if "saveexec" in op: self.wr = self.wr + [("s", "exec")]
        elif op == "WAITTOK":
            self.kind = "waittok"; self.cost = 1
        elif op == "MARK":
            self.kind = "gap"; self.cost = 0
        elif op == "GAP":
            self.kind = "gap"; self.cost = 0
        else:
            raise ValueError("unknown instruction: " + text)
        if op.startswith("v_cndmask") and len(ops) == 3: self.rd = self.rd + regs_of("vcc")

class Stream(list):
    def __call__(self, s, tok=None, cond=False, glue=False):
        l = [Ins(x, tok, cond) for x in s.split("\n") if x.strip()]
        if glue:
            for i in l[:-1]: i.glue = True
        self.extend(l)
        return self
    def waittok(self, *toks, ahead=0, lat=None):
        i = Ins("WAITTOK"); i.tok = toks; i.ahead = ahead; i.lat = lat; self.append(i)
    def need(self, name):
        i = Ins("MARK"); i.op = "NEED"; i.tok = name; self.append(i)
    def mark(self, name):
        i = Ins("MARK"); i.tok = name; self.append(i)
    def gap(self, n):
        i = Ins("GAP"); i.tok = n; self.append(i)

VM = ("vld", "vst", "dma")
class Haz:
    SW = 4
    def __init__(self):
        self.last_w = {}; self.last_c = {}; self.last_sd = {}
    def need(self, ins, pos):
        last_w, last_c, last_sd = self.last_w, self.last_c, self.last_sd
        k = ins.kind
        need = 0
        def dist(p, n):
            nonlocal need
            need = max(need, n - (pos - p - 1))
        isv = k in ("valu", "trans")
        for r in ins.rd:
            if r not in last_w: continue
            p, pk, ps, pi = last_w[r]
            if pk == "mfma":
                if k == "mfma":
                    if r in ins.srcc and pi.wr == ins.srcc and ps == ins.passes and ins.rd.count(r) == 1: pass
                    elif r in ins.srcc and ins.rd.count(r) == 1: dist(p, ps + 2)
                    else: dist(p, ps + 4)
                else: dist(p, ps + 4)
            elif pk in ("valu", "trans"):
                if r[0] in "va":
                    if k == "mfma": dist(p, 2)
                    if pk == "trans" and isv: dist(p, 1)
                    if "_dpp" in ins.op or ins.op.startswith("v_permlane"): dist(p, 2)
                    if ins.op.startswith(("v_readlane", "v_readfirstlane")): dist(p, 1)
                    if pi.op.startswith("v_dot") and not (pi.op == ins.op and ins.rd.count(r) == 1 and r in ins.wr): dist(p, 3)
                    if ("sdwa" in pi.op or "op_sel" in pi.text) and isv: dist(p, 1)
                else:
                    if k in VM: dist(p, 5)
                    elif isv: dist(p, 4 if ins.op.startswith(("v_readlane", "v_writelane")) else 2)
                    elif k in ("salu", "ctl", "smem"): dist(p, Haz.SW)
            elif pk == "salu":
                if r == ("s", "m0") and k == "dma": dist(p, 1)
        for r in ins.wr:
            if r in last_w:
                p, pk, ps, pi = last_w[r]
                if pk == "mfma" and k != "mfma": dist(p, ps + 4)
                if pk == "mfma" and k == "mfma" and not (pi.wr == ins.wr and ps == ins.passes): dist(p, ps + 4)
                if pi.op.startswith("v_dot") and pi.op != ins.op: dist(p, 3)
            if r in last_c and k != "mfma":
                p, ps = last_c[r]; dist(p, ps - 1)
            if r in last_sd: dist(last_sd[r], 2)
        if ("s", "exec") in last_w and last_w[("s", "exec")][1] in ("valu", "trans"):
            raise ValueError("VALU exec write not modelled")
        return need
    def commit(self, ins, pos):
        for r in ins.wr: self.last_w[r] = (pos, ins.kind, ins.passes, ins)
        if ins.kind == "mfma":
            for r in ins.srcc: self.last_c[r] = (pos, ins.passes)
        if ins.wide_store:
            for r in ins.sdata: self.last_sd[r] = pos

def finalize(stream, stats=None):
    out = []
    vm_n = 0; lg_n = 0
    vm_done = 0; lg_done = 0
    pend_vm = {}; pend_lg = {}
    smem_pend = set()
    toks = {}
    pos = 0
    hz = Haz()
    nnop = 0; nwait = 0
    def emit(t):
        out.append(t)
    for ins in stream:
        k = ins.kind
        if k == "gap": continue
        if k == "label":
            emit(ins.text); continue
        need_vm = None; need_lg = None
        if k == "waittok":
            for t in ins.tok:
                c, idx = toks[t]
                if c == "vm": need_vm = max(need_vm or 0, idx)
                else: need_lg = max(need_lg or 0, idx)
        else:
            for r in ins.rd + ins.wr:
                if r in pend_vm: need_vm = max(need_vm or 0, pend_vm[r])
                if r in pend_lg: need_lg = max(need_lg or 0, pend_lg[r])
                if r in smem_pend: need_lg = 1 << 30
            if k == "vld" and "d16" in ins.op:
                need_vm = None
                for r in ins.rd:
                    if r in pend_vm and r not in ins.wr: need_vm = max(need_vm or 0, pend_vm[r])
        w = []
        if need_vm is not None and need_vm > vm_done:
            n = min(vm_n - need_vm, 63); w.append("vmcnt(%d)" % n)
            if not ins.cond: vm_done = vm_n - n
        if need_lg is not None and (need_lg > lg_done or need_lg == 1 << 30):
            if smem_pend or need_lg == 1 << 30: n = 0
            else: n = min(lg_n - need_lg, 15)
            w.append("lgkmcnt(%d)" % n)
            if not ins.cond:
                lg_done = lg_n - n
                if n == 0: smem_pend = set()
        if w:
            emit("s_waitcnt " + " ".join(w)); nwait += 1
            if not ins.cond: pos += 1
        pend_vm = {r: i for r, i in pend_vm.items() if i > vm_done}
        pend_lg = {r: i for r, i in pend_lg.items() if i > lg_done}
        if k == "waittok": continue
        if k == "wait":
            if not ins.cond:
                m = re.search(r"vmcnt\((\d+)\)", ins.text)
                if m: vm_done = max(vm_done, vm_n - int(m.group(1)))
                m = re.search(r"lgkmcnt\((\d+)\)", ins.text)
                if m:
                    if int(m.group(1)) == 0: smem_pend = set(); lg_done = lg_n
                    elif not smem_pend: lg_done = max(lg_done, lg_n - int(m.group(1)))
                pend_vm = {r: i for r, i in pend_vm.items() if i > vm_done}
                pend_lg = {r: i for r, i in pend_lg.items() if i > lg_done}
        need = hz.need(ins, pos)
        while need > 0:
            n = min(need, 16); emit("s_nop %d" % (n - 1)); nnop += n; need -= n
            if not ins.cond: pos += n
        emit(ins.text)
        hz.commit(ins, pos)
        if not ins.cond:
            if k in VM:
                vm_n += 1
                for r in ins.wr: pend_vm[r] = vm_n
                if ins.tok is not None: toks[ins.tok] = ("vm", vm_n)
            elif k in ("dsr", "dsw"):
                lg_n += 1
                for r in ins.wr: pend_lg[r] = lg_n
                if ins.tok is not None: toks[ins.tok] = ("lg", lg_n)
            elif k == "smem":
                smem_pend |= set(ins.wr)
            if k == "nop": pos += int(ins.text.split()[1]) + 1
            else: pos += 1
    if stats is not None:
        stats["nops"] = nnop; stats["waits"] = nwait; stats["n"] = len(out)
    return out

def merge(main, fill, budget=None, out=None, minb=7.0):
    out = Stream() if out is None else out
    if budget is None:
        tot = sum(i.cost for g in main for i in g) + sum(i.cost for i in fill)
        nm = len(main) + sum(1 for i in fill if i.kind == "mfma")
        budget = max(minb, tot / nm + 0.15)
    fi = 0; gap = 0; credit = 0.0
    for g in main:
        c = 0
        for ins in g:
            out.append(ins); c += ins.cost
            if ins.cost: gap = max(0, gap - 1)
        credit += budget - c
        while fi < len(fill) and (credit > 0 or (fi and fill[fi - 1].glue)):
            f = fill[fi]
            if f.op == "GAP":
                gap = f.tok; fi += 1; continue
            if gap > 0: break
            out.append(f); fi += 1
            if f.kind == "mfma": credit += budget - f.cost
            else: credit -= f.cost
        if fi >= len(fill): credit = min(credit, 0.0)
        elif gap > 0: credit = min(credit, 4.0)
    rest = Stream(fill[fi:])
    return out, rest

class Bg:
    def __init__(self, text, tok=None, after=None, sp=None):
        self.ins = Stream(); self.ins(text, tok=tok); self.tok = tok; self.after = after; self.sp = sp

SCC_USERS = ("s_cbranch_scc", "s_cselect", "s_addc", "s_subb")
def weave(fg, bg, spacing=66, log=None):
    out = Stream(); marks = set(); bi = 0; t = 0.0; pipe = 0.0; last = -1e9
    lasttok = {}
    for k, b in enumerate(bg):
        if b.tok is not None: lasttok[b.tok] = k
    issued_t = {}
    def ready(): return bi < len(bg) and (bg[bi].after is None or bg[bi].after in marks)
    def emit_bg(forced=False):
        nonlocal bi, t, last
        b = bg[bi]
        if forced: t = max(t, last + (b.sp or spacing))
        out.extend(b.ins); t += 4 * len(b.ins); last = t; issued_t[bi] = t; bi += 1
    n = len(fg)
    for idx, ins in enumerate(fg):
        if ins.op == "MARK":
            marks.add(ins.tok)
            if log is not None: log.append("mark %s t=%d bg=%d" % (ins.tok, t, bi))
            continue
        if ins.kind == "waittok":
            ks = [lasttok[x] for x in ins.tok if x in lasttok]
            if ks:
                need = max(ks); nf = 0
                while bi <= need:
                    assert ready(), ("background op blocked", ins.tok, bg[bi].after)
                    emit_bg(True); nf += 1
                while bi <= need + ins.ahead and ready(): emit_bg(True)
                if log is not None: log.append("wait %s t=%d slack=%d forced=%d" % (ins.tok, t, t - issued_t[need], nf))
        out.append(ins)
        if ins.kind == "mfma":
            t = max(t, pipe); pipe = t + 4 * ins.passes; t += 8
        elif ins.op == "ds_read_b128": t += 6
        elif ins.kind == "nop": t += 4 * (int(ins.text.split()[1]) + 1)
        else: t += 4 * ins.cost
        if ins.kind in VM and not ins.cond: last = t
        if ins.glue or ins.kind == "label": continue
        nx = [x for x in fg[idx + 1:idx + 4] if x.kind != "gap"]
        if nx and (nx[0].cond or nx[0].kind == "label"): continue
        if any(x.op.startswith(SCC_USERS) for x in nx[:2]): continue
        if ready() and t >= last + (bg[bi].sp or spacing):
            inm = pipe > t - 40
            good = (not inm) or (ins.kind in ("mfma", "dsr") and not (nx and nx[0].kind == "dsr"))
            if good: emit_bg()
    assert bi == len(bg), "background ops left over"
    if log is not None: log.append("end t=%d" % t)
    return out


class TL:
    def __init__(self, spacing=66, vlat=650, llat=130):
        self.out = Stream(); self.bg = []; self.bi = 0; self.marks = set()
        self.t = 0.0; self.pipe = -1000.0; self.last = -1e9; self.pos = 0; self.hz = Haz()
        self.spacing = spacing; self.vlat = vlat; self.llat = llat
        self.tokt = {}; self.log = []; self.free = 0; self.forced = 0; self.ta = 0; self.m16 = False; self.pen = 4; self.lw = 0; self.watch = None; self.seen = set()
    def B(self, text, tok=None, after=None, sp=None): self.bg.append(Bg(text, tok, after, sp))
    def lastbg(self, tok):
        k = None
        for i, b in enumerate(self.bg):
            if b.tok == tok: k = i
        return k
    def bg_ready(self):
        return self.bi < len(self.bg) and (self.bg[self.bi].after is None or self.bg[self.bi].after in self.marks)
    def bg_due(self):
        if not self.bg_ready(): return False
        b = self.bg[self.bi]
        return self.t + 4 * (len(b.ins) - 1) >= self.last + (b.sp or self.spacing)
    def emit_bg(self, forced=False):
        b = self.bg[self.bi]; self.bi += 1
        for i in b.ins[:-1]: self.raw(i)
        self.raw(b.ins[-1])
    def raw(self, ins):
        n = self.hz.need(ins, self.pos)
        if n > 0 and not ins.cond: self.t += 4 * n; self.pos += n
        self.out.append(ins)
        self.hz.commit(ins, self.pos)
        if ins.cond or ins.kind == "label": return
        k = ins.kind
        if k == "mfma":
            self.t = max(self.t, self.pipe); self.pipe = self.t + 4 * ins.passes; self.t += 8; self.free = -1 if (ins.passes == 8 or not self.m16) else 0
        elif k in ("dsr", "dsw") or k in VM:
            if self.free == -1: self.t += self.pen; self.free = 1 if self.pen else 0
            elif self.free == -2: self.t += 6; self.free = 0
            if ins.op == 'ds_write_b128': self.t = max(self.t, self.lw); self.lw = self.t + 52
            if k in VM:
                self.t = max(self.t, self.ta); self.ta = self.t + (64 if ins.op.endswith('x4') else 24); self.last = self.t
            self.t += 4
        elif k == "nop": self.t += 4 * (int(ins.text.split()[1]) + 1)
        elif k in ("salu", "wait", "waittok", "ctl", "smem", "barrier"):
            if self.free == 1: self.free = 0
            else: self.t += 4
            if k == "barrier": self.t += 12
        else:
            self.t += 4 * ins.cost
            if self.free != 1: self.free = -2
        if k == "nop": self.pos += int(ins.text.split()[1]) + 1
        elif k != "waittok": self.pos += 1
        if ins.tok is not None and k != "waittok": self.tokt[ins.tok] = (self.t, k in VM)
    def tok_time(self, ins):
        r = 0
        for x in ins.tok:
            k = self.lastbg(x)
            if (k is not None and k >= self.bi) or x not in self.tokt: return 1e18
            t0, vm = self.tokt[x]
            r = max(r, t0 + (ins.lat if ins.lat is not None else (self.vlat if vm else self.llat)))
        return r
    def tok_ready(self, ins):
        for x in ins.tok:
            k = self.lastbg(x)
            if k is not None and k >= self.bi: return False
            t0, vm = self.tokt[x]
            if self.t < t0 + (ins.lat if ins.lat is not None else (self.vlat if vm else self.llat)): return False
        return True
    def emit(self, ins):
        if ins.op == "MARK":
            self.marks.add(ins.tok); self.log.append("mark %s t=%d bg=%d" % (ins.tok, self.t, self.bi)); return
        if ins.op == "NEED":
            assert ins.tok in self.marks, ins.tok; return
        if ins.op == "GAP": return
        if ins.kind == "waittok":
            ks = [k for k in (self.lastbg(x) for x in ins.tok) if k is not None]
            nf = 0
            if ks:
                need = max(ks)
                while self.bi <= need:
                    assert self.bg_ready(), ("background op blocked", ins.tok, self.bg[self.bi].after)
                    self.emit_bg(True); nf += 1
                while self.bi <= need + ins.ahead and self.bg_ready(): self.emit_bg(True)
            t0 = max(self.tokt[x][0] for x in ins.tok); vm = any(self.tokt[x][1] for x in ins.tok)
            if vm: self.log.append("wait %s t=%d slack=%d forced=%d" % (ins.tok, self.t, self.t - t0, nf))
            self.t = max(self.t, t0 + (500 if vm else 100))
            nm = "".join(map(str, ins.tok[0])) if isinstance(ins.tok[0], tuple) else str(ins.tok[0])
            if self.watch and nm not in self.seen:
                self.seen.add(nm)
                a = self.watch("<" + nm); b = self.watch(">" + nm)
                if a: self.out.append(Ins(a))
                self.raw(ins)
                if b: self.out.append(Ins(b))
                return
        self.raw(ins)
    def straight(self, fg):
        for idx, ins in enumerate(fg):
            self.emit(ins)
            if ins.glue or ins.kind in ("label", "gap"): continue
            nx = [x for x in fg[idx + 1:idx + 4] if x.kind != "gap"]
            if nx and (nx[0].cond or nx[0].kind == "label"): continue
            if any(x.op.startswith(SCC_USERS) for x in nx[:2]): continue
            if self.bg_due():
                inm = self.pipe > self.t - 40
                if (not inm) or (ins.kind in ("mfma", "dsr") and not (nx and nx[0].kind == "dsr")): self.emit_bg()
    def sched(self, M, Fs, nds=2):
        mi = 0; fi = [0] * len(Fs)
        def head(k):
            F = Fs[k]
            while fi[k] < len(F):
                x = F[fi[k]]
                if x.op == "MARK": self.emit(x); fi[k] += 1
                elif x.op == "GAP" or (x.op == "NEED" and x.tok in self.marks): fi[k] += 1
                elif x.op == "NEED": return None
                else: return x
            return None
        def take(k):
            F = Fs[k]
            while True:
                x = F[fi[k]]; fi[k] += 1; self.emit(x)
                nxt = F[fi[k]] if fi[k] < len(F) else None
                if not (x.glue or x.kind == "label" or (nxt is not None and (nxt.cond or nxt.kind == "label" or nxt.op.startswith(SCC_USERS)))): break
            head(k)
        def ready(x):
            if x.kind == "waittok": return self.tok_ready(x)
            if x.op == "ds_write_b128" and max(self.t + 6, self.pipe) < self.lw: return False
            return self.hz.need(x, self.pos) <= 0
        def mstate():
            if mi >= len(M): return 0
            st = 2; npre = 0
            for x in M[mi]:
                if x.op == "NEED":
                    if x.tok not in self.marks: return 0
                elif x.kind == "waittok":
                    if not self.tok_ready(x): st = 1
                elif x.kind == "mfma":
                    if self.hz.need(x, self.pos + npre) > 0: st = 1
                    break
                elif x.kind != "gap": npre += 1
            return st
        def window(n):
            for k in range(len(Fs)):
                while n > 0:
                    x = head(k)
                    if x is not None and x.kind == "waittok" and ready(x) and fi[k] + 1 < len(Fs[k]) and Fs[k][fi[k] + 1].kind == "dsr":
                        take(k); continue
                    if x is None or x.kind not in ("dsr", "vst", "dsw") or not ready(x): break
                    take(k); n -= 2 if x.op == 'ds_read_b128' else 1
            if self.bg_due(): self.emit_bg()
        while True:
            hs = [head(k) for k in range(len(Fs))]
            if mi >= len(M) and all(fi[k] >= len(Fs[k]) for k in range(len(Fs))): break
            ms = mstate()
            fm = next((k for k, x in enumerate(hs) if x is not None and x.kind == "mfma" and ready(x)), None)
            def do_m():
                nonlocal mi
                for x in M[mi]: self.emit(x)
                mi += 1
                if getattr(M[mi - 1], "small", False):
                    if self.bg_due(): self.emit_bg(); window(M[mi - 1].small - 1)
                    else: window(M[mi - 1].small)
                else: window(nds + (0 if any(y.kind == 'dsr' for y in M[mi - 1]) else 2))
            def do_fm():
                p = hs[fm].passes; take(fm); window(nds if p == 8 else 1)
            if self.t > self.pipe - 4:
                if fm is not None: do_fm(); continue
                if ms == 2: do_m(); continue
            f = next((k for k, x in enumerate(hs) if x is not None and x.kind not in ("mfma", "dsr", "vst", "dsw") and ready(x)), None)
            idle = ms != 2 and fm is None
            if idle and (f is None or mi >= len(M)):
                f = next((k for k, x in enumerate(hs) if x is not None and x.kind != "mfma" and ready(x)), None)
            if f is not None:
                take(f)
                if idle and self.pipe <= self.t and self.bg_due(): self.emit_bg()
                continue
            if True:
                nd = [self.hz.need(x, self.pos) for x in hs if x is not None and x.kind != "waittok"]
                nd = [n for n in nd if n > 0]; room = int((self.pipe - self.t) // 4)
                if nd and room >= 1:
                    self.raw(Ins("s_nop %d" % (min(min(nd), room) - 1))); continue
            if fm is not None: do_fm(); continue
            if ms == 2: do_m(); continue
            f = next((k for k, x in enumerate(hs) if x is not None and x.kind != "waittok"), None)
            if f is not None: self.forced += 1; take(f); continue
            if self.bg_ready(): self.emit_bg(True); continue
            cand = [(self.tok_time(x), k) for k, x in enumerate(hs) if x is not None]
            if ms == 1: cand.append((max([self.tok_time(x) for x in M[mi] if x.kind == "waittok"] + [0]), -1))
            assert cand, ("schedule is stuck", mi, [Fs[k][fi[k]].tok for k in range(len(Fs)) if fi[k] < len(Fs[k])])
            tt, f = min(cand)
            assert tt < 1e17, ("schedule is stuck", mi, [Fs[k][fi[k]].tok for k in range(len(Fs)) if fi[k] < len(Fs[k])], self.bg[self.bi].after)
            if tt > self.t: self.log.append("idle %d at t=%d" % (tt - self.t, self.t)); self.t = tt
            if f < 0: do_m()
            else: take(f)


def align_pass(lines, mode=1, lam=0.3):
    import subprocess, tempfile, os
    d = tempfile.mkdtemp()
    open(d + "/a.s", "w").write('.amdgcn_target "amdgcn-amd-amdhsa--gfx950"\n.text\n' + "\n".join(l for l in lines if not l.startswith(".")) + "\n")
    subprocess.run(["clang", "-x", "assembler", "-target", "amdgcn-amd-amdhsa", "-mcpu=gfx950", "-c", d + "/a.s", "-o", d + "/a.o"], check=True)
    dis = subprocess.run(["llvm-objdump", "-d", "--mcpu=gfx950", d + "/a.o"], capture_output=True, text=True).stdout
    sizes = [4 * len(re.findall(r"\b[0-9A-F]{8}\b", l.split("//")[1].split(":", 1)[1])) for l in dis.split("\n") if "//" in l]
    idx = [i for i, l in enumerate(lines) if not l.endswith(":") and not l.startswith(".")]
    assert len(idx) == len(sizes), (len(idx), len(sizes))
    size = dict(zip(idx, sizes))
    bad = (lambda o: o == 28) if mode == 1 else (lambda o: (1.0 if o == 28 else 0.25) if o % 8 else 0)
    INF = 1e18
    cost = [0.0] + [INF] * 7; back = []
    for i, l in enumerate(lines):
        nc = [INF] * 8; b = [None] * 8
        for s in range(8):
            if cost[s] >= INF: continue
            if l.startswith(".p2align"): opts = [(0, cost[s], 0)]
            elif i not in size: opts = [(s, cost[s], 0)]
            else:
                z = size[i]; opts = [((s + z // 4) % 8, cost[s] + (bad(4 * s) if z >= 8 else 0), 0)]
                op = l.split()[0]
                if z == 4 and op.startswith("v_") and not op.startswith(("v_readfirstlane", "v_nop")):
                    opts.append(((s + 2) % 8, cost[s] + lam + bad(4 * s), 1))
            for ns, c, p in opts:
                if c < nc[ns]: nc[ns] = c; b[ns] = (s, p)
        cost = nc; back.append(b)
    s = min(range(8), key=lambda k: cost[k]); out = list(lines); n = 0
    for i in range(len(lines) - 1, -1, -1):
        s, p = back[i][s]
        if p:
            w = out[i].split(None, 1); out[i] = w[0] + "_e64 " + w[1]; n += 1
    return out, n, min(cost)
```

```python
import sys, struct
from asmlib import module
from backend import *

NAME = "parallel_sum__linear_kernel_hedgehog__dense_activation_gelu__prompt"
def f2u(x): return "0x%x" % struct.unpack("<I", struct.pack("<f", x))[0]
LOG2E = 1.4426950408889634
K0 = -2.0 * LOG2E * 0.7978845608028654

WS_G = 0; WS_FL1 = 0x1000; WS_FL2 = 0x3000; WS_STATS = 0x8000; WS_KVP = 0x40000; WS_ACT = 0x200000
KVREC = 17 * 1024; TBSTR = 118 * 1024; WS_STAMP = 0x1000000
TAGC = 0x9E3779B9
R = [0, 32768, 65536, 98304, 131072]
SCR = R[4] + 16384
FFN_BLK0 = [0, 6, 11, 16, 22, 27, 32, 38]
FFN_NBLK = [6, 5, 5, 6, 5, 5, 6, 5]
SBL = [[4, 5, 10], [15, 20, 21], [26, 31, 43], [36, 37, 42]]
def pack(l): return "0x%x" % sum(b << (8 * i) for i, b in enumerate(l))

sX, sW, sWS, sW2, sWo, sOut, sAux, sB2 = ("s[%d:%d]" % (i, i + 3) for i in (8, 12, 16, 20, 24, 28, 32, 36))
sM, sN = "s0", "s1"
sWV, sT, sJ, sU, sI = "s3", "s4", "s5", "s6", "s7"
sROT, sQ4, sTT, sCB, sFL, sSTB = "s64", "s65", "s66", "s67", "s68", "s69"
sA, sB, sC, sD = "s70", "s71", "s72", "s73"
sXB = ["s74", "s75", "s76", "s77"]
sAB = ["s78", "s79", "s80", "s81"]
sXK = ["s82", "s83"]; sSO = ["s84", "s85"]
sBA, sBB = "s86", "s87"; sBS = ["s88", "s89", "s90"]
sPCOL, sW8K, sW16K = "s91", "s92", "s93"
sBLKP, sBLKS = "s94", "s95"; sHD, sFK = "s94", "s95"; sHK = "s6"
sE0, sE1 = "s96", "s97"
sPAR = "s[98:99]"
STAMPR = [60, 40, 42, 44, 50, 52, 46, 54, 62, 56, 58, 48]

class VA:
    def __init__(self, start=1): self.n = start
    def __call__(self, k=1, al=1):
        self.n = (self.n + al - 1) // al * al
        r = self.n; self.n += k
        assert self.n <= 256, "out of VGPRs"
        return r
def v(i, k=1): return "v%d" % i if k == 1 else "v[%d:%d]" % (i, i + k - 1)
def ag(i, k=1): return "a%d" % i if k == 1 else "a[%d:%d]" % (i, i + k - 1)
MF = "v_mfma_f32_32x32x16_bf16"; MF16 = "v_mfma_f32_16x16x32_bf16"
DPPM = "row_mask:0xf bank_mask:0xf"

def srd(s, d, p, n):
    d0 = int(d[2:].split(":")[0])
    s(f"s_mov_b32 s{d0}, s{p}\ns_mov_b32 s{d0+1}, s{p+1}\ns_mov_b32 s{d0+2}, {n}\ns_mov_b32 s{d0+3}, 0x20000")

class Gen:
    def __init__(self, **opt):
        self.o = dict(stamps=False, warm=0, outsc1=True, sp=64, sp1=48, ahead=10, log=False, umode=0, vlat=650, stlat=650,
                      ah0=14, s0p=6, pgo=0, hsw=0, gq=4, pk=0, kz=1, xlate=0, sg0=0, sg1=0, al=1, lam=10, spx=64, spx3=64, sps0=64, sps1=64, spw0=64, spw1=64, ssplit=0, xord=0, rord=0, fpace=31, priof=0, nds2=1, p1v=0, s1=7, x2a="b5", xa=1, npc=2, nP=16, p2hold=1, spa=72, p2e=3, stlat2=600, qx=4, nq=2, plat0=0, plat=0, sp0=40, warmc=1, stag=1, warmf=0, wsp=180, wpos=0, wpos2=6, cbmix=0, warmm=4, sw=0, px=1, slpK=2, ah0b=6, lag=2, s0=2, slp=3, slat=750, wlat=700, wlat0=1100, nE=4, pace=3, kvpace=16, kvhold=99, hold=0, kvl=12, prio=1, fSa=5, fS=6, fO=9, fOf=9, ah2=6, fo=2)
        self.o.update(opt); self.uid = 0
        Haz.SW = self.o["hsw"]
        global TBSTR, WS_ACT
        TBSTR = 118 * 1024 + self.o.get("tbpad", 0); WS_ACT = 0x200000 + self.o.get("actoff", 0)
    def lab(self, p):
        self.uid += 1; return "L_%s_%d" % (p, self.uid)
    def stamp(self, s, name):
        if self.o.get("dly") == name and self.o.get("dr", self.cur) == self.cur:
            s("s_sleep 8"); s[-1].cost = 0
        if not self.o["stamps"]: return
        names = str(self.o.get("st", "x0,b0,p1,u1,u2,u3,u4,u5,q,o,mm14,red")).split(",")
        if name in names:
            r = STAMPR[names.index(name)]; s(f"s_memrealtime s[{r}:{r+1}]")

    def role(self, role):
        att = role == "att"; o = self.o; self.cur = role
        tl = TL(o["sp"], o["vlat"]); B = tl.B
        def watch(name):
            x = Stream(); self.stamp(x, name); return x[0].text if x else None
        tl.watch = watch; tl.m16 = True; tl.pen = o.get("pen", 4)
        s = Stream(); a = VA(1)
        stride = 3072 if att else 2752
        vL16 = a(); vXD0 = a(); vXD = a(4); vOUT = a(); vTAG = a(2, 2); vN16 = a(); vXR = a(4); vSR = a()
        vT0 = a(1, 2); vT1 = a(); vT2 = a(); vT3 = a()
        vSD = a(4); vWD = a(4); vPR = vWD + 1; vWR = a(2); vFL = a(2, 2); vFA = a(); vZ = a()
        vAA = vXD; vWQ = vSD
        assert vXD == 3
        vKA = a(2)
        XR = a(8, 4); B2 = a(4, 4)
        ACC = [a(16, 4), a(16, 4)]; NX = 8; XF = a(4 * NX, 4)
        CA = [a(4, 4), a(4, 4)]; ST = a(16, 4); CBS = a(4, 4); CS = a(4, 4); CSEL = a(4, 4); vPD = CBS
        nk = 2 if att else 3
        KC = [a(nk) for _ in range(4)]; KCS = a(nk)
        if att:
            ONES = a(4, 4); SEL = [a(4, 4), a(4, 4)]; F8a = a(8, 4); F8b = a(8, 4)
            PHI = [a(4, 4), a(4, 4), a(4, 4)]; KV = a(16, 4); TB = a(16, 4); PF = KV; TA = a(16, 4); F4 = a(4, 4)
        else:
            vB1 = a(2); G4 = a(4); HO = a(8, 4)
        vJ = a(4 if att else 7)
        sys.stderr.write("%s VGPRs: %d\n" % (role, a.n))
        sp1 = o["sp1"]; abl = str(o.get("abl", ""))
        tmp = ACC[0]
        def run4(pre, vb, srdn, tok, after, sp=None, so=sM):
            for q in range(4):
                B(f"{pre if q == 0 else ''}\nbuffer_load_dwordx4 {v(vb+q)}, {srdn}, {so} offen offset:{1024*q} lds", tok, after, sp)
        def dma_x(i, after, sp=None, ks=(0, 1)):
            for k in ks: run4(f"s_add_u32 m0, {sW8K}, {R[i]+k*4096}\ns_add_u32 {sM}, {sXB[i]}, {sXK[k]}", vXD, sX, ("x", i), after, sp)
        s("s_cmp_ge_u32 s2, 256\ns_cbranch_scc1 L_end")
        s("s_load_dwordx16 s[40:55], s[0:1], 0\ns_load_dwordx8 s[56:63], s[0:1], 64")
        if o["stamps"]: s("s_memrealtime s[100:101]")
        s(f"s_lshr_b32 {sI}, s2, 3")
        if o["warmc"] == 1:
            s(f"s_getpc_b64 s[72:73]\nL_pc:\ns_sub_u32 s72, s72, L_pc-{NAME}_kernel\ns_subb_u32 s73, s73, 0", glue=True)
            s(f"s_lshl_b32 {sA}, {sI}, 11\nv_lshrrev_b32 v1, 4, v0\nv_lshl_add_u32 v1, v1, 7, {sA}\nv_min_u32 v1, L_end-{NAME}_kernel, v1")
            s(f"global_load_dword {v(XR+4)}, v1, s[72:73]")
        s(f"v_lshrrev_b32 v1, 6, v0\nv_and_b32 v0, 63, v0\nv_readfirstlane_b32 {sWV}, v1\nv_lshlrev_b32 v1, 4, v0")
        s(f"s_and_b32 {sA}, s2, 7\ns_lshr_b32 {sROT}, {sI}, 2\ns_and_b32 {sU}, {sI}, 3")
        s(f"s_and_b32 {sT}, {sA}, 1\ns_lshl3_add_u32 {sT}, {sT}, {sROT}\ns_lshr_b32 {sQ4}, {sA}, 1")
        if o.get("p2x", 1):
            s(f"s_andn2_b32 {sC}, 1, {sA}\ns_lshl2_add_u32 {sA}, {sC}, {sQ4}")
        s(f"s_lshr_b32 {sC}, {sI}, 3\ns_lshl2_add_u32 {sTT}, {sA}, {sC}")
        s(f"s_lshl2_add_u32 {sA}, {sT}, {sQ4}\ns_lshl_b32 {sXB[0]}, {sA}, 15")
        s(f"s_lshl2_add_u32 {sD}, {sU}, {sWV}\ns_lshl_b32 {sA}, {sD}, 11\ns_add_u32 {sSO[0]}, {sXB[0]}, {sA}")
        s(f"s_lshl_b32 {sSTB}, {sT}, 11\ns_add_u32 {sSTB}, {sSTB}, {WS_STATS}\ns_lshl4_add_u32 {sD}, {sQ4}, {sD}\ns_lshl_b32 {sD}, {sD}, 5\ns_add_u32 {sFL}, {sD}, {sSTB}")
        s(f"v_and_b32 {v(vOUT)}, 0x70, v1\nv_and_b32 v3, 0x30, v0\nv_xor_b32 v2, {v(vOUT)}, v3\nv_lshrrev_b32 v3, 3, v0\nv_lshl_add_u32 v3, v3, 10, v2")
        for q in range(3, 0, -1):
            s(f"v_xor_b32 {v(vXD+q)}, {64*(q&1)}, v3\nv_add_u32 {v(vXD+q)}, {7168*q}, {v(vXD+q)}")
        s(f"s_lshl_b32 {sW8K}, {sWV}, 13\ns_lshl1_add_u32 {sA}, {sWV}, {sROT}\ns_lshl_b32 {sA}, {sA}, 7\ns_and_b32 {sXK[0]}, {sA}, 0x380\ns_add_u32 {sA}, {sA}, 128\ns_and_b32 {sXK[1]}, {sA}, 0x380")
        s(f"s_mov_b32 s10, {2048*1024}\ns_mov_b32 s11, 0x20000\ns_mov_b32 s18, 0x10000000\ns_mov_b32 s19, 0x20000")
        def ppat():
            s(f"s_and_b32 {sJ}, {sU}, 1\ns_lshl1_add_u32 {sJ}, {sQ4}, {sJ}\ns_lshl_b32 {sE1}, {sWV}, 12")
            s(f"s_mov_b32 s70, {pack(FFN_BLK0[:4])}\ns_mov_b32 s71, {pack(FFN_BLK0[4:])}\ns_lshl_b32 {sC}, {sJ}, 3\ns_lshr_b64 s[70:71], s[70:71], {sC}\ns_and_b32 {sBLKP}, s70, 0xff")
            s(f"s_lshl_b32 {sPCOL}, {sBLKP}, 6\ns_lshl_b32 {sD}, {sJ}, 7\ns_add_u32 {sD}, {sD}, 1024\ns_movk_i32 {sA}, 2752\ns_movk_i32 {sC}, 128\ns_mov_b32 s15, 0x20000")
            s(f"s_cmp_lt_u32 {sU}, 2\ns_cselect_b32 {sPCOL}, {sD}, {sPCOL}\ns_cselect_b32 {sA}, 3072, {sA}\ns_cselect_b32 {sB}, 1, 2\ns_cselect_b32 {sC}, 1024, {sC}\ns_cselect_b32 {sE0}, 7, 5", glue=True)
            s(f"s_lshl_b32 s14, {sA}, 9\ns_mul_i32 {sD}, {sWV}, {sA}\ns_mov_b32 {sSO[1]}, {sPCOL}\ns_lshl4_add_u32 {sPCOL}, {sD}, {sPCOL}\ns_lshl_b32 {sBLKS}, {sA}, 6")
            s(f"v_lshrrev_b32 {v(vT0)}, 4, v0\nv_and_b32 {v(vT1)}, 15, v0\nv_lshlrev_b32 {v(vT3)}, {sB}, {v(vT0)}\nv_xor_b32 {v(vT1)}, {v(vT1)}, {v(vT3)}")
            s(f"v_mul_u32_u24 {v(vT0)}, {sA}, {v(vT0)}\nv_lshrrev_b32 {v(vT3)}, 3, {v(vT1)}\nv_mad_u32_u24 {v(vT0)}, {v(vT3)}, {sC}, {v(vT0)}\nv_and_b32 {v(vT1)}, 7, {v(vT1)}")
            s(f"v_lshl_add_u32 {v(vPD)}, {v(vT1)}, 4, {v(vT0)}\ns_lshl_b32 {sA}, {sA}, 2\ns_sub_u32 {sA}, {sA}, 1024")
            for q in range(1, 4): s(f"v_add_u32 {v(vPD+q)}, {sA}, {v(vPD+q-1)}")
        if o["pgo"]: ppat()
        if o["warmc"] >= 2:
            s(f"s_lshl2_add_u32 {sA}, {sI}, {sWV}\ns_mul_i32 {sA}, {sA}, 384\ns_min_u32 {sA}, {sA}, L_end-{NAME}_kernel-384")
            s(f"s_getpc_b64 s[72:73]\nL_pc:\ns_sub_u32 s72, s72, L_pc-{NAME}_kernel\ns_subb_u32 s73, s73, 0\ns_add_u32 s72, s72, {sA}\ns_addc_u32 s73, s73, 0", glue=True)
        s("s_waitcnt lgkmcnt(0)"); self.stamp(s, "go")
        s("s_mov_b64 s[8:9], s[40:41]\ns_mov_b64 s[16:17], s[62:63]"); s.mark("go")
        if o["stag"]: s(f"s_load_dword {sBA}, s[62:63], 0")
        assert not o["sw"] & 9 and o["warmc"] < 2 and o["stag"]
        def stouch(base, off):
            s(f"s_load_dword {sBB}, s[{base}:{base+1}], {off}"); s[-1].wr = [("s", "junk%d" % len(s))]
        if o["sw"] & 1:
            s(f"s_lshl2_add_u32 {sA}, {sI}, {sWV}\ns_lshl_b32 {sB}, {sA}, 7"); stouch(44, sB)
            s(f"s_add_u32 {sB}, {sB}, 64\ns_min_u32 {sC}, {sA}, 42\ns_lshl_b32 {sC}, {sC}, 6"); stouch(44, sB); stouch(52, sC)
            s(f"s_and_b32 {sC}, {sC}, 0x3c0"); stouch(56, sC)
        if o["sw"] & 2: stouch(62, sFL)
        if o["sw"] & 4:
            s(f"s_lshl2_add_u32 {sA}, s2, {sWV}\ns_min_u32 {sA}, {sA}, 383\ns_lshl_b32 {sA}, {sA}, 6\ns_add_u32 {sA}, {sA}, {WS_FL1}"); stouch(62, sA)
        if o["sw"] & 8:
            s(f"s_lshl2_add_u32 {sA}, s2, {sWV}\ns_bfe_u32 {sB}, {sA}, 0x50004\ns_and_b32 {sA}, {sA}, 15\ns_mul_i32 {sB}, {sB}, {KVREC}\ns_lshl_b32 {sA}, {sA}, 6\ns_add_u32 {sA}, {sA}, {sB}\ns_add_u32 {sA}, {sA}, {WS_KVP+16384}"); stouch(62, sA)
        if o["warmc"] >= 2:
            for k in range(0, 6, o["warmc"] - 1): s(f"s_load_dword {sBB}, s[72:73], {64*k}"); s[-1].wr = [("s", "junk%d" % k)]
        for r in range(2): B(f"buffer_load_dwordx4 {v(tmp+4*r,4)}, {v(vL16)}, {sX}, {sSO[0]} offen offset:{1024*r}", "rows", "go", sp=8)
        if not o["stag"]: B(f"buffer_load_dword {v(vTAG)}, {v(vXD0)}, {sWS}, 0 offen sc1", "tag", sp=8)
        if o["xa"]: dma_x(0, None, o["sp0"], (0,))
        if not o["pgo"]: ppat()
        s(f"s_cmp_lt_u32 {sU}, 2\ns_cselect_b64 s[12:13], s[42:43], s[50:51]", glue=True)
        s.mark("pd")
        def dma_p(ci, after=None):
            mul = sBLKS if ci == 0 else 64 * stride
            run4(f"s_add_u32 {sM}, {sROT}, {ci}\ns_and_b32 {sM}, {sM}, 7\ns_mul_i32 {sM}, {sM}, {mul}\ns_add_u32 m0, {sE1}, {R[1]+ci*16384}\ns_add_u32 {sM}, {sM}, {sPCOL}", vPD, sW, ("p", ci), after, sp1 if ci else 16)
        dma_p(0, "pd")
        if not o["xa"]: dma_x(0, None, o["sp0"], (0,))
        s(f"v_and_b32 {v(vT0)}, 31, v0\nv_lshlrev_b32 {v(vN16)}, 4, {v(vT0)}\nv_lshlrev_b32 {v(vT1)}, 7, {v(vT0)}")
        s(f"v_bfe_u32 {v(vT0)}, v0, 1, 3\nv_lshrrev_b32 {v(vT2)}, 5, v0\nv_xor_b32 {v(vT0)}, {v(vT0)}, {v(vT2)}\nv_lshl_add_u32 {v(vXR)}, {v(vT0)}, 4, {v(vT1)}")
        for cq in range(1, 4): s(f"v_xor_b32 {v(vXR+cq)}, {32*cq}, {v(vXR)}")
        yR, yP, yF, yH, x0, x1 = (ACC[1] + i for i in range(6))
        s(f"v_bfe_u32 {v(yR)}, v0, 2, 2\nv_bfe_u32 {v(yP)}, v0, 4, 1\ns_add_u32 {sB}, {sB}, 4")
        s(f"v_and_b32 {v(yF)}, 16, {v(vL16)}\nv_and_b32 {v(yH)}, 2, v0\nv_lshl_add_u32 {v(yF)}, {v(yH)}, 2, {v(yF)}\nv_lshl_add_u32 {v(yH)}, {v(vT2)}, 3, {v(yR)}")
        s(f"v_xor_b32 {v(x0)}, {sWV}, {v(yR)}\nv_lshl_add_u32 {v(x0)}, {v(x0)}, {sB}, {v(yF)}\nv_lshl_add_u32 {v(x0)}, {v(yP)}, {sE0}, {v(x0)}")
        s(f"v_cmp_eq_u32 vcc, {v(yR)}, {v(yP)}\nv_mov_b32 {v(vT1)}, 0x3f803f80")
        s(f"v_lshl_add_u32 {v(x0)}, {v(yH)}, 8, {v(x0)}\nv_add_u32 {v(vPR)}, {R[1]}, {v(x0)}\nv_add_u32 {v(vPR+1)}, {R[3]}, {v(x0)}")
        for i in range(4): s(f"v_cndmask_b32 {v(CSEL+i)}, 0, {v(vT1)}, vcc")
        if o["cbmix"]: s(f"s_lshr_b32 {sCB}, {sI}, 3\ns_lshl1_add_u32 {sCB}, {sCB}, {sI}")
        s(f"s_and_b32 {sCB}, {sCB if o['cbmix'] else sI}, 7\ns_lshl_b32 {sCB}, {sCB}, 7\ns_lshl_b32 {sW16K}, {sWV}, 14\nv_mov_b32 {v(vZ)}, 0")
        s(f"s_and_b32 {sA}, {sWV}, 1\ns_cmp_eq_u32 {sA}, 1\ns_cselect_b64 {sPAR}, -1, 0")
        for i in range(4):
            s(f"s_add_u32 {sA}, {sQ4}, {i}\ns_and_b32 {sA}, {sA}, 3\ns_lshl2_add_u32 {sA}, {sT}, {sA}")
            if i: s(f"s_lshl_b32 {sXB[i]}, {sA}, 15")
            s(f"s_mul_i32 {sAB[i]}, {sA}, {TBSTR}\ns_add_u32 {sAB[i]}, {sAB[i]}, {WS_ACT}")
        srd(s, sB2, 56, 1024)
        srd(s, sW2, 54, 1376 * 1024); srd(s, sWo, 46, 512 * 1024); srd(s, sOut, 58, 2048 * 1024)
        tl.straight(s); s = Stream()
        while tl.bi < len(tl.bg): tl.emit_bg(True)
        s(f"s_cmp_ge_u32 {sU}, 2\ns_cbranch_scc1 L_ffn\nL_split:", glue=True)
        if att:
            s(f"s_lshl2_add_u32 {sHK}, {sJ}, {sWV}\ns_add_u32 {sJ}, {sJ}, {o['qx']}\ns_and_b32 {sJ}, {sJ}, 7\ns_lshl_b32 {sD}, {sJ}, 7")
        else: s(f"s_add_u32 {sD}, {sSO[1]}, 256")
        if att:
            s(f"s_lshl2_add_u32 {sHD}, {sJ}, {sWV}"); srd(s, sAux, 44, 32 * 512)
        else:
            s(f"s_lshr_b32 {sB}, {sWV}, 1\ns_add_u32 {sBLKS}, {sBLKP}, {sB}\ns_add_u32 {sBLKS}, {sBLKS}, 4\ns_add_u32 {sBLKP}, {sBLKP}, {sWV}")
            srd(s, sAux, 52, 2752)
            t0, t2 = vB1, vB1 + 1
            s(f"v_and_b32 {v(t0)}, 0x13, v0\nv_and_b32 {v(t2)}, 4, v0\nv_lshl_add_u32 {v(t0)}, {v(t2)}, 1, {v(t0)}\nv_bfe_u32 {v(t2)}, v0, 3, 1\nv_lshl_add_u32 {v(t0)}, {v(t2)}, 2, {v(t0)}")
            s(f"v_and_b32 {v(t2)}, 32, v0\nv_lshl_add_u32 {v(t0)}, {v(t2)}, 8, {v(t0)}\nv_lshlrev_b32 {v(G4)}, 1, {v(t0)}")
        s.mark("aux")
        B(f"buffer_load_dwordx4 {v(B2,4)}, {v(vOUT)}, {sB2}, {sCB} offen", None, "aux", sp=16)
        if att:
            B(f"s_lshr_b32 {sM}, {sHD}, 1\ns_add_u32 m0, {sE1}, {SCR}\ns_lshl_b32 {sM}, {sM}, 10\nbuffer_load_dwordx4 {v(vL16)}, {sAux}, {sM} offen lds", None, "aux", sp=16)
            B(f"s_lshr_b32 {sM}, {sHK}, 1\ns_add_u32 m0, {sE1}, {SCR+1024}\ns_lshl_b32 {sM}, {sM}, 10\nbuffer_load_dwordx4 {v(vL16)}, {sAux}, {sM} offen lds", "b2", sp=16)
        else:
            B(f"s_lshl_b32 {sM}, {sBLKP}, 6\nbuffer_load_ushort {v(vB1)}, {v(G4)}, {sAux}, {sM} offen", None, "aux", sp=16)
            B(f"s_lshl_b32 {sM}, {sBLKS}, 6\nbuffer_load_ushort {v(vB1+1)}, {v(G4)}, {sAux}, {sM} offen", "b2", sp=16)
        w1 = vJ + 1
        def warm3(pos):
            if o["warmm"] != pos: return
            wa, wd = (vFL, vFL + 1) if 2 <= pos <= 4 else (XR, XR + 1)
            B(f"v_min_u32 {v(wa)}, 10, v0\nv_lshlrev_b32 {v(wa)}, 7, {v(wa)}\ns_lshl2_add_u32 {sN}, s2, {sWV}\ns_mul_i32 {sM}, {sN}, {11*128}\nbuffer_load_dword {v(wd)}, {v(wa)}, {sW2}, {sM} offen", None, "stok" if 2 <= pos <= 4 else None, sp=16)
            tl.bg[-1].ins[-1].wr = []
            B(f"v_min_u32 {v(wa)}, 0x180, {v(wa)}\ns_lshl_b32 {sM}, {sN}, 9\nbuffer_load_dword {v(wd)}, {v(wa)}, {sWo}, {sM} offen", sp=32)
        def warm2(ks):
            if o["warm"] != (1 if att else 2): return
            for k in ks:
                pre = f"v_lshlrev_b32 {v(w1)}, 3, {v(vN16)}\ns_and_b32 {sN}, {sI}, 1\ns_lshl1_add_u32 {sN}, {sROT}, {sN}\ns_lshl2_add_u32 {sN}, {sN}, {sWV}\n" if k == 0 else ""
                pre += f"s_mul_i32 {sM}, {sN}, {174*128}\ns_add_u32 {sM}, {sM}, {29*128*k}" if k < 6 else f"s_lshl_b32 {sM}, {sN}, 13\ns_add_u32 {sM}, {sM}, {4096*(k-6)}"
                B(f"{pre}\nbuffer_load_dword {v(w1+1)}, {v(w1)}, {sW2 if k < 6 else sWo}, {sM} offen", sp=o["wsp"]); tl.bg[-1].ins[-1].wr = []
        if o["warmf"]:
            B(f"s_lshl_b32 {sM}, s2, 7\ns_add_u32 {sM}, {sM}, {WS_FL1}\nbuffer_load_dword {v(w1+2)}, {v(vZ)}, {sWS}, {sM} offen", sp=16)
        warm3(5); dma_x(0, "su", sp1, (1,)); warm3(6)
        def stats_ld(i, r):
            return f"s_add_u32 {r}, {sQ4}, {i}\ns_and_b32 {r}, {r}, 3\ns_lshl_b32 {r}, {r}, 9\ns_add_u32 {r}, {r}, {sSTB}\nbuffer_load_dwordx4 {v(ST+4*i,4)}, {v(vN16)}, {sWS}, {r} offen sc1"
        for ci in range(1, 9):
            if ci == o["s0p"]: B(stats_ld(0, sM), "stat0", "b%d" % o["s0"], sp=32)
            if ci < 8: dma_p(ci, "phi" if ci == 7 else None)
            if ci == 7: warm3(7)
        if att:
            s(f"v_bfe_u32 {v(x0)}, v0, 1, 1\nv_lshl_add_u32 {v(x0)}, {v(yP)}, 1, {v(x0)}\nv_lshlrev_b32 {v(x0)}, 3, {v(x0)}\nv_lshl_add_u32 {v(x0)}, {v(yH)}, 5, {v(x0)}")
            s(f"s_and_b32 {sC}, s98, 0x200\ns_add_u32 {sA}, {sE1}, {sC}\ns_add_u32 {sA}, {sA}, {SCR}")
            s(f"v_add_u32 {v(vJ)}, {sA}, {v(x0)}\nv_xor_b32 {v(vJ+1)}, 0x200, {v(vJ)}"); s.mark("pha")
        s(f"s_movk_i32 {sB}, {stride}")
        for k in range(2):
            s(f"s_add_u32 {sA}, {sWV}, {sROT}\ns_add_u32 {sA}, {sA}, {4*k}\ns_and_b32 {sA}, {sA}, 7\ns_mul_i32 {sA}, {sA}, {64*stride}\ns_add_u32 {sSO[k]}, {sA}, {sD}")
        def dma_s(half, after):
            for k in range(2): run4(f"s_add_u32 m0, {sW8K}, {R[4-4*half]+k*4096}\ns_add_u32 {sM}, {sSO[half]}, {32*stride*k}", vSD, sW, ("s", half), after, o["sps%d" % half])
        s(f"v_lshrrev_b32 {v(vT0)}, 3, v0\nv_lshlrev_b32 {v(vT1)}, 2, v0\nv_and_b32 {v(vT1)}, 64, {v(vT1)}\nv_xor_b32 {v(vT1)}, {v(vT1)}, {v(vOUT)}")
        s(f"v_mad_u32_u24 {v(vSD)}, {v(vT0)}, {sB}, {v(vT1)}")
        for q in range(1, 4): s(f"v_add_u32 {v(vSD+q)}, {q*(8*stride-1024)}, {v(vSD)}")
        s(f"v_lshl_add_u32 {v(vWD+3)}, {v(vT0)}, 10, {v(vT1)}")
        if att:
            s(f"v_lshl_add_u32 {v(vT3)}, {v(vT2)}, 9, {v(vN16)}\nv_lshlrev_b32 {v(vT2)}, 5, {v(vT2)}\nv_add_u32 {v(vT2)}, 0x400, {v(vT2)}")
            s(f"v_cmp_gt_u32 vcc, 0x100, {v(vN16)}\nv_add_u32 {v(vT0)}, 16, {v(vT2)}\nv_add_u32 {v(vT1)}, 0x100, {v(vT3)}")
            s(f"v_cndmask_b32 {v(vKA)}, {v(vT2)}, {v(vT3)}, vcc\nv_cndmask_b32 {v(vKA+1)}, {v(vT0)}, {v(vT1)}, vcc")
        s(f"v_lshrrev_b32 {v(x0)}, 1, {v(yR)}\nv_lshl_add_u32 {v(x0)}, {v(x0)}, 6, {v(yF)}\nv_lshl_add_u32 {v(x0)}, {v(yP)}, 5, {v(x0)}\nv_lshl_add_u32 {v(x0)}, {v(yH)}, 7, {v(x0)}")
        s(f"v_lshrrev_b32 {v(vWR)}, 4, v0\nv_lshl_add_u32 {v(vWR)}, {v(vWR)}, 3, {v(yR)}\nv_and_b32 {v(x1)}, 2, {v(yR)}\nv_or_b32 {v(x1)}, {v(x1)}, {v(yP)}")
        s(f"v_lshl_add_u32 {v(vWR)}, {v(vWR)}, 2, {v(x1)}\nv_and_b32 {v(x1)}, 3, v0\nv_lshl_add_u32 {v(vWR)}, {v(vWR)}, 2, {v(x1)}\nv_lshlrev_b32 {v(vWR)}, 3, {v(vWR)}")
        if att: s(f"s_lshl_b32 {sA}, {sWV}, 5")
        else: s(f"s_and_b32 {sA}, {sWV}, 2\ns_lshl_b32 {sA}, {sA}, 5")
        s(f"v_xor_b32 {v(x0)}, {sA}, {v(x0)}\nv_add_u32 {v(vSR)}, {R[4]}, {v(x0)}")
        if att:
            if o["kz"] == 0:
                for i in range(4): s(f"v_mov_b32 {v(ONES+i)}, 0x3f803f80")
            elif o["kz"] == 1:
                for i in range(8): s(f"v_mov_b32 {v(F8b+i)}, 0x3f803f80")
            else:
                s(f"v_lshrrev_b32 {v(ONES)}, 4, v0\nv_cmp_eq_u32 vcc, 1, {v(ONES)}\nv_mov_b32 {v(ONES)}, 0\nv_mov_b32 {v(ONES+3)}, 0")
                s(f"v_cndmask_b32 {v(ONES+1)}, 0, 1.0, vcc\nv_lshrrev_b32 {v(ONES+2)}, 16, {v(ONES+1)}")
        s(f"v_and_b32 {v(vFA)}, {15 if att else 7}, v0\nv_lshlrev_b32 {v(vFA)}, 3, {v(vFA)}")
        if att:
            s(f"v_bfe_u32 {v(vT0)}, v0, 2, 1\nv_lshrrev_b32 {v(vT2)}, 5, v0\nv_cmp_eq_u32 vcc, {v(vT0)}, {v(vT2)}")
            s(f"v_and_b32 {v(vT0)}, 16, {v(vL16)}\nv_mov_b32 {v(vT2)}, 0x3f80\nv_lshlrev_b32 {v(vT2)}, {v(vT0)}, {v(vT2)}\nv_cndmask_b32 {v(vT2)}, 0, {v(vT2)}, vcc")
            s(f"v_bfe_u32 {v(vT0)}, v0, 1, 1\nv_bfe_u32 {v(vT3)}, v0, 3, 2\nv_lshl_add_u32 {v(vT0)}, {v(vT3)}, 1, {v(vT0)}")
            for i in range(0, 8, 2):
                s(f"v_cmp_eq_u32 vcc, {i}, {v(vT0)}\nv_cmp_eq_u32 s[70:71], {i+1}, {v(vT0)}")
                s(f"s_nop 0\nv_cndmask_b32 {v(SEL[i>>2]+(i&3))}, 0, {v(vT2)}, vcc\nv_cndmask_b32 {v(SEL[i>>2]+(i&3)+1)}, 0, {v(vT2)}, s[70:71]")
            s(f"s_lshl_b32 {sFK}, {sHD}, 7\ns_add_u32 {sFK}, {sFK}, {WS_FL1}")
        s.mark("su")
        s.waittok("rows", ahead=o["ah0"]); self.stamp(s, "rows")
        q = ST
        s(f"v_mov_b32 {v(vT1)}, 0x3f803f80")
        for i in range(4): s(f"v_mov_b32 {v(q+i)}, 0")
        for i in range(4):
            for r in range(2):
                s(f"v_dot2c_f32_bf16 {v(q+r)}, {v(tmp+4*r+i)}, {v(vT1)}\nv_dot2c_f32_bf16 {v(q+2+r)}, {v(tmp+4*r+i)}, {v(tmp+4*r+i)}")
        if o["stag"]: s(f"s_mov_b32 {sA}, {sBA}\nv_lshrrev_b32 {v(vT0)}, 1, v0")
        else:
            s.waittok("tag")
            s(f"v_readfirstlane_b32 {sA}, {v(vTAG)}\nv_lshrrev_b32 {v(vT0)}, 1, v0")
        s(f"v_permlane32_swap_b32 {v(q)}, {v(q+1)}\nv_permlane32_swap_b32 {v(q+2)}, {v(q+3)}")
        s(f"v_add_f32 {v(q)}, {v(q)}, {v(q+1)}\nv_add_f32 {v(q+2)}, {v(q+2)}, {v(q+3)}\ns_add_u32 {sA}, {sA}, 0x{TAGC:x}")
        s(f"v_mov_b32 {v(vTAG)}, {sA}\nv_permlane16_swap_b32 {v(q)}, {v(q+2)}\nv_add_f32 {v(q)}, {v(q)}, {v(q+2)}")
        s(f"v_mov_b32 {v(vTAG+1)}, {sA}\nv_mov_b32 {v(q+1)}, {sA}")
        for m in ("quad_perm:[1,0,3,2]", "quad_perm:[2,3,0,1]", "row_half_mirror", "row_mirror"):
            s(f"v_add_f32_dpp {v(q)}, {v(q)}, {v(q)} {m} {DPPM}")
        s(f"s_mov_b32 exec_lo, 0x00010001\ns_mov_b32 exec_hi, 0x00010001\nbuffer_store_dwordx2 {v(q,2)}, {v(vT0)}, {sWS}, {sFL} offen sc1\ns_mov_b64 exec, -1", glue=True)
        self.stamp(s, "st")
        s(f"s_lshr_b32 {sFL}, {sTT}, 1\ns_lshl4_add_u32 {sFL}, {sFL}, {sWV}\ns_lshl_b32 {sFL}, {sFL}, 6\ns_add_u32 {sFL}, {sFL}, {WS_FL2}")
        s(f"s_lshl_b32 {sC}, {sWV}, 3")
        for d, tb in ((sBA, FFN_BLK0[0::2]), (sBB, FFN_BLK0[1::2]), (sBS[0], [x[0] for x in SBL]), (sBS[1], [x[1] for x in SBL]), (sBS[2], [x[2] for x in SBL])):
            s(f"s_lshr_b32 {d}, {pack(tb)}, {sC}\ns_and_b32 {d}, {d}, 0xff\ns_lshl_b32 {d}, {d}, 11")
        s.waittok("b2")
        if att:
            for hs in range(3):
                for e in range(2): s(f"ds_read_b64_tr_b16 {v(PHI[hs]+2*e,2)}, {v(vJ+(hs&1))} offset:{e*128+(hs>>1)*1024}", tok="phr")
        s(f"v_lshrrev_b32 {v(vT0)}, 3, v0\nv_lshl_add_u32 {v(vOUT)}, {v(vT0)}, 10, {v(vOUT)}")
        if not att:
            six = sum(1 << i for i, n in enumerate(FFN_NBLK) if n == 6)
            s(f"s_lshr_b32 {sC}, {six}, {sJ}\ns_lshr_b32 {sA}, {sWV}, 1\ns_andn2_b32 {sC}, {sA}, {sC}\ns_and_b32 {sC}, {sC}, 1\ns_lshl_b32 {sC}, {sC}, 18\ns_or_b32 {sBLKS}, {sBLKS}, {sC}")
        else:
            s(f"v_and_b32 {v(vT2)}, 4, v0\nv_cmp_ne_u32 vcc, 0, {v(vT2)}\nv_mov_b32 {v(vT3)}, 0x80008000\ns_nop 0\nv_cndmask_b32 {v(vT3)}, 0, {v(vT3)}, vcc")
            for i in range(12): s(f"v_xor_b32 {v(PHI[i>>2]+(i&3))}, {v(vT3)}, {v(PHI[i>>2]+(i&3))}")
        def stats_ld(i, r):
            return f"s_add_u32 {r}, {sQ4}, {i}\ns_and_b32 {r}, {r}, 3\ns_lshl_b32 {r}, {r}, 9\ns_add_u32 {r}, {r}, {sSTB}\nbuffer_load_dwordx4 {v(ST+4*i,4)}, {v(vN16)}, {sWS}, {r} offen sc1"
        def xread(st, un, region, ks):
            st(f"ds_read_b128 {v(XF+4*(ks%NX),4)}, {v(vXR+(ks&3))} offset:{region+(ks>>2)*4096}", tok=("xf", un, ks))
        def stat_consts(st, i):
            m, va = ST + 4 * i, ST + 4 * i + 2; k = KC[i]
            st(f"v_mul_f32 {v(m)}, {f2u(1/512)}, {v(m)}\nv_mul_f32 {v(va)}, {f2u(1/512)}, {v(va)}\nv_fma_f32 {v(va)}, -{v(m)}, {v(m)}, {v(va)}\nv_max_f32 {v(va)}, 0, {v(va)}")
            st(f"v_add_f32 {v(va)}, {f2u(1e-5)}, {v(va)}\nv_sqrt_f32 {v(va)}, {v(va)}\nv_mov_b32 {v(m+3)}, 0")
            st(f"v_cvt_pk_bf16_f32 {v(m+1)}, -{v(m)}, {v(va)}\nv_rcp_f32 {v(k)}, {v(va)}")
            st(f"v_lshlrev_b32 {v(vT0)}, 16, {v(m+1)}\nv_and_b32 {v(vT1)}, 0xffff0000, {v(m+1)}")
            st(f"v_sub_f32 {v(m)}, -{v(m)}, {v(vT0)}\nv_sub_f32 {v(vT1)}, {v(va)}, {v(vT1)}")
            if att: st(f"v_mul_f32 {v(k+1)}, {f2u(LOG2E)}, {v(k)}")
            else:
                st(f"v_mov_b32 {v(k+2)}, {v(va)}\nv_mul_f32 {v(k+1)}, {v(k)}, {v(k)}\nv_mul_f32 {v(k)}, {f2u(K0)}, {v(k)}")
                st(f"v_mul_f32 {v(k+1)}, {v(k+1)}, {v(k)}\nv_mul_f32 {v(k+1)}, {f2u(0.044715)}, {v(k+1)}")
            st(f"v_cvt_pk_bf16_f32 {v(m)}, {v(vT0)}, {v(m)}\nv_cvt_pk_bf16_f32 {v(m+2)}, {v(vT1)}, 0")
        def corr_pre(st, which):
            c = CA[which]
            st(f"v_mov_b32 {v(c+3)}, 0\nv_mov_b32 {v(c+2)}, {0 if att else v(vB1+which)}")
            if not att: st(f"v_lshlrev_b32 {v(vB1+which)}, 16, {v(vB1+which)}")
        def corr_a(st, which):
            c = CA[which]
            st(f"v_cvt_pk_bf16_f32 {v(c)}, {v(CS)}, {v(CS)}\nv_lshlrev_b32 {v(vT1)}, 16, {v(c)}\nv_sub_f32 {v(vT0)}, {v(CS)}, {v(vT1)}")
            st(f"v_cvt_pk_bf16_f32 {v(c+1)}, {v(vT0)}, {0 if att else v(vB1+which)}")
        def spin(st, test, reload_, name):
            lp, ok = self.lab("poll"), self.lab("ok")
            st(test + f"\ns_cbranch_vccz {ok}", glue=True)
            st(f"s_mov_b32 {sC}, 0", cond=True)
            st(lp + ":")
            slp = o["slp"] if name in ("fO", "fS") else o["slpK"]
            if slp: st(f"s_sleep {slp}", cond=True)
            st(reload_, cond=True)
            st(f"s_add_u32 {sC}, {sC}, 1\ns_cmp_gt_u32 {sC}, 100000\ns_cbranch_scc1 {ok}\ns_waitcnt vmcnt(0)", cond=True)
            st(test + f"\ns_nop 4\ns_cbranch_vccnz {lp}", cond=True)
            st(ok + ":\ns_nop 0"); st.mark(name); self.stamp(st, name)
        corr_pre(s, 0); corr_pre(s, 1); s.mark("phi")
        tl.straight(s); s = Stream()
        dma_x(1, "b3", sp1); warm3(8)
        for i in range(1, 4): B(stats_ld(i, sM), "stats", "b%d" % o["s1"], sp=32)
        dma_x(2, o["x2a"], o["spx"])
        if not o["xord"]: dma_x(3, "b7", o["spx3"])
        lag = o["lag"]
        Mp = []
        def mf(kp): return f"{MF} {v(ACC[0],16)}, {ag(4*kp,4)}, {v(XF+4*(kp%NX),4)}, {v(ACC[0],16) if kp else 0}"
        def mf16(kp): return f"{MF16} {v(CS,4)}, {v(CSEL,4)}, {ag(4*kp,4)}, {v(CS,4) if kp else 0}"
        def pread(g, ks):
            ci, kk = ks >> 2, ks & 3
            for e in range(2):
                g(f"ds_read_b64_tr_b16 {ag(4*ks+2*e,2)}, {v(vPR+(ci>>2))} offset:{(ci&3)*16384+kk*4096+e*1024}", tok=("pf", ks))
        def grp(f):
            g = Stream(); f(g); Mp.append(g)
        g = Stream()
        for ks in range(32 if o["p1v"] == 0 else 0):
            ci, kk = ks >> 2, ks & 3; kp = ks - lag
            if kk == 0:
                if ci == 0: g.waittok(("x", 0), ("p", 0), ahead=o["ah0b"], lat=o["plat0"]); self.stamp(g, "x0")
                else: g.waittok(("p", ci), ahead=o["ahead"], lat=o["plat"])
                g("s_barrier"); g.mark("b%d" % ci); self.stamp(g, "b%d" % ci)
            if kp >= 0: g.waittok(("xf", 0, kp), lat=0); g(mf(kp))
            pread(g, ks); xread(g, 0, 0, ks)
            if ks == 31: g.mark("prd")
            Mp.append(g); g = Stream()
            if kp >= 0 and ("b" not in abl or kp < 2): g(mf16(kp)); Mp.append(g); g = Stream()
        for ci in range(8 if o["p1v"] else 0):
            k0 = 4 * ci
            g = Stream()
            if ci == 0: g.waittok(("x", 0), ("p", 0), ahead=o["ah0b"], lat=o["plat0"]); self.stamp(g, "x0")
            else: g.waittok(("p", ci), ahead=o["ahead"], lat=o["plat"])
            g("s_barrier"); g.mark("b%d" % ci); self.stamp(g, "b%d" % ci)
            for h in range(2):
                if ci: g(mf(k0 - 2 + h))
                else: xread(g, 0, 0, 2 * h); xread(g, 0, 0, 2 * h + 1)
                pread(g, k0 + 2 * h); pread(g, k0 + 2 * h + 1)
                if ci == 7 and h: g.mark("prd")
                Mp.append(g); g = Stream()
                if ci: grp(lambda g: g(mf16(k0 - 2 + h)))
            if ci == 7: break
            for h in range(2):
                if h == 0: g.waittok(("pf", k0 + 1), lat=0)
                g(mf(k0 + h)); xread(g, 0, 0, k0 + 4 + 2 * h); xread(g, 0, 0, k0 + 5 + 2 * h)
                Mp.append(g); g = Stream()
                if h: g.waittok(("pf", k0 + 3), lat=0)
                g(mf16(k0 + h)); Mp.append(g); g = Stream()
        x = s
        x.waittok("stat0")
        spin(x, f"v_xor_b32 {v(vT0)}, {v(vTAG)}, {v(ST+1)}\nv_xor_b32 {v(vT1)}, {v(vTAG)}, {v(ST+3)}\nv_cmp_ne_u64 vcc, 0, {v(vT0,2)}", stats_ld(0, sA), "st0")
        stat_consts(x, 0)
        if att and o["kz"] == 1: x("s_mov_b32 s32, 0xffff\ns_mov_b32 s33, 0xffff")
        x.need("prd")
        x(f"v_mov_b32 {v(vWD)}, {v(vWD+3)}")
        for q in range(1, 4): x(f"v_add_u32 {v(vWD+q)}, {7168*q}, {v(vWD)}")
        for q in (1, 3): x(f"v_xor_b32 {v(vWD+q)}, 32, {v(vWD+q)}")
        x(f"s_lshl_b32 {sPCOL}, {sTT}, 16\ns_add_u32 {sPCOL}, {sPCOL}, {sW16K}\ns_add_u32 {sPCOL}, {sPCOL}, {sCB}")
        x.need("cs0"); corr_a(x, 0); x.mark("ca0")
        if o["p1v"]:
            grp(lambda g: (g.waittok(("pf", 29), lat=0), g(mf16(28))))
            grp(lambda g: g(mf16(29))); grp(lambda g: g(mf(28)))
            grp(lambda g: (g.waittok(("pf", 31), lat=0), g(mf16(30))))
            grp(lambda g: (g(mf16(31)), g.mark("cs0")))
            for kp in range(29, 32): grp(lambda g: g(mf(kp)))
        else:
            grp(lambda g: (g.waittok(("xf", 0, 31)), g(mf16(30))))
            grp(lambda g: (g(mf16(31)), g.mark("cs0")))
            for kp in (30, 31): grp(lambda g: g(mf(kp)))
        g = Stream(); g.need("ca0"); g(f"{MF} {v(ACC[0],16)}, {v(CA[0],4)}, {v(ST,4)}, {v(ACC[0],16)}"); self.stamp(g, "p1"); Mp.append(g)
        tl.sched(Mp, [x])
        if o.get("stop"):
            out = Stream()
            for i in tl.out:
                if "m" in o["stop"] and i.kind == "mfma": continue
                if "s" in o["stop"] and (i.kind == "vst" or i.cond or i.op.startswith("s_cbranch_vcc")): continue
                if "b" in o["stop"] and i.kind == "barrier": continue
                if "d" in o["stop"] and (i.kind == "dsr" or (i.kind == "waittok" and (i.tok[0] == "phr" or i.tok[0][0] == "xf"))): continue
                out.append(i)
            s = out
            s("s_waitcnt vmcnt(0)\ns_memrealtime s[64:65]\ns_waitcnt lgkmcnt(0)")
            s(f"s_lshl2_add_u32 {sA}, s2, {sWV}\ns_lshl_b32 {sA}, {sA}, 6\ns_add_u32 {sA}, {sA}, {WS_STAMP}")
            for i, r in enumerate(["s100"] + ["s%d" % k for k in STAMPR] + ["s64"]):
                s(f"v_mov_b32 {v(vT1)}, {r}\nbuffer_store_dword {v(vT1)}, {v(vZ)}, {sWS}, {sA} offen offset:{4*i}")
            return s

        def gelu(e, acc, k, sbase, sblk, tok):
            e(f"s_lshl_b32 {sB}, {sblk}, 11\ns_add_u32 {sB}, {sB}, {sbase}")
            for q in range(4):
                A = [v(acc + 4 * q + i) for i in range(4)]; T = [v(G4 + i) for i in range(4)]
                for i in range(4): e(f"v_mul_f32 {T[i]}, {A[i]}, {A[i]}")
                for i in range(4): e(f"v_fma_f32 {T[i]}, {T[i]}, {v(k+1)}, {v(k)}")
                for i in range(4): e(f"v_mul_f32 {T[i]}, {A[i]}, {T[i]}")
                for i in range(4): e(f"v_exp_f32 {T[i]}, {T[i]}")
                for i in range(4): e(f"v_fma_f32 {T[i]}, {T[i]}, {v(k+2)}, {v(k+2)}")
                for i in range(4): e(f"v_rcp_f32 {T[i]}, {T[i]}")
                for i in range(4): e(f"v_mul_f32 {T[i]}, {A[i]}, {T[i]}")
                for i in range(2): e(f"v_cvt_pk_bf16_f32 {v(HO+2*q+i)}, {T[2*i]}, {T[2*i+1]}")
                if q & 1: e(f"buffer_store_dwordx4 {v(HO+4*(q>>1),4)}, {v(vL16)}, {sWS}, {sB} offen offset:{1024*(q>>1)} sc1", tok=tok)
        def sm_head(e, src, phi, T_, f4):
            for i in range(4): e(f"v_cvt_pk_bf16_f32 {v(f4+i)}, {v(src+2*i)}, {v(src+2*i+1)}")
            e(f"{MF} {v(T_,16)}, {v(phi,4)}, {v(f4,4)}, 0")
        def sm_body(e, T_, k, dst, scale=False, pk=False):
            t2, t3 = v(vT2), v(vT3); T = lambda i: v(T_ + i)
            e(f"v_max3_f32 {t2}, {T(0)}, {T(1)}, {T(2)}\nv_max3_f32 {t3}, {T(3)}, {T(4)}, {T(5)}")
            for i in range(2): e(f"v_max3_f32 {t2}, {t2}, {T(6+4*i)}, {T(7+4*i)}\nv_max3_f32 {t3}, {t3}, {T(8+4*i)}, {T(9+4*i)}")
            e(f"v_max3_f32 {t2}, {t2}, {T(14)}, {T(15)}\nv_max_f32 {t2}, {t2}, {t3}\nv_mul_f32 {t2}, {t2}, {v(k+1)}")
            P = lambda i: v(T_ + i, 2); tt = v(vT2, 2)
            if pk:
                assert k % 2 == 0 and vT2 % 2 == 0
                for i in range(0, 16, 2): e(f"v_pk_fma_f32 {P(i)}, {P(i)}, {v(k,2)}, {tt} op_sel:[0,1,0] op_sel_hi:[1,1,0] neg_lo:[0,0,1] neg_hi:[0,0,1]")
            else:
                for i in range(16): e(f"v_fma_f32 {T(i)}, {T(i)}, {v(k+1)}, -{t2}")
            for i in range(16): e(f"v_exp_f32 {T(i)}, {T(i)}")
            if pk:
                e(f"v_pk_add_f32 {tt}, {P(0)}, {P(2)}")
                for i in range(4, 16, 2): e(f"v_pk_add_f32 {tt}, {tt}, {P(i)}")
            else:
                e(f"v_add_f32 {t2}, {T(0)}, {T(1)}\nv_add_f32 {t3}, {T(2)}, {T(3)}")
                for i in range(4, 16, 2): e(f"v_add_f32 {t2}, {t2}, {T(i)}\nv_add_f32 {t3}, {t3}, {T(i+1)}")
            e(f"v_add_f32 {t2}, {t2}, {t3}\nv_rcp_f32 {t2}, {t2}")
            if scale: e(f"v_mul_f32 {t2}, {t2}, {v(k)}")
            if pk:
                for i in range(0, 16, 2): e(f"v_pk_mul_f32 {P(i)}, {P(i)}, {tt} op_sel_hi:[1,0]")
            else:
                for i in range(16): e(f"v_mul_f32 {T(i)}, {T(i)}, {t2}")
            for i in range(8): e(f"v_cvt_pk_bf16_f32 {v(dst+i)}, {T(2*i)}, {T(2*i+1)}")
        def kepi(e, un):
            acc, k = ACC[un & 1], KC[un]
            kz = o["kz"]; FV = ONES if kz == 1 else F8b
            if kz == 0: e(f"{MF} {v(TB,16)}, {v(ONES,4)}, {v(SEL[1],4)}, 0")
            if kz == 2:
                if un: e.need("c%d" % un)
                e(f"{MF} {v(TB,16)}, {v(ST+4*un,4)}, {v(ONES,4)}, 0")
            e.need("m%d" % un)
            sm_head(e, acc, PHI[2], TA, F4)
            if kz != 2:
                for i in range(8): e(f"v_mul_f32 {v(acc+8+i)}, {v(acc+8+i)}, {v(k)}")
            for i in range(4): e(f"v_cvt_pk_bf16_f32 {v(FV+i)}, {v(acc+8+2*i)}, {v(acc+9+2*i)}")
            e.mark("e%d" % un)
            b = Stream(); sm_body(b, TA, k, F8a, kz == 2)
            vt = f"{MF} {v(TB,16)}, {v(FV,4)}, {v(SEL[0],4)}, {0 if kz == 1 else v(TB,16)}"
            if kz == 2: e(vt); e.extend(b)
            else: e.extend(b[:2]); e(vt); e.extend(b[2:])
            def cv(r):
                x = "\n".join(f"v_cvt_pk_bf16_f32 {v(F8b+i)}, {v(TB+2*i)}, {v(TB+2*i+1)}" for i in r)
                if kz == 1: e(f"s_mov_b64 exec, s[32:33]\n{x}\ns_mov_b64 exec, -1", glue=True)
                else: e(x)
            cv(range(4 if kz == 1 else 2))
            e(f"{MF} {v(TA,16)}, {v(F8a,4)}, {v(SEL[0],4)}, 0")
            cv(range(4 if kz == 1 else 2, 8))
            e(f"{MF} {v(TA,16)}, {v(F8a+4,4)}, {v(SEL[1],4)}, {v(TA,16)}")
            for i in range(8): e(f"v_cvt_pk_bf16_f32 {v(F8a+i)}, {v(TA+2*i)}, {v(TA+2*i+1)}")
            e(f"{MF} {v(KV,16)}, {v(F8a,4)}, {v(F8b,4)}, {v(KV,16) if un else 0}\n{MF} {v(KV,16)}, {v(F8a+4,4)}, {v(F8b+4,4)}, {v(KV,16)}")
        def kvpub(e):
            e(f"s_mul_i32 {sB}, {sT}, 960\ns_sub_u32 {sB}, 15360, {sB}\nv_lshrrev_b32 {v(vT3)}, 8, {v(vN16)}")
            e(f"v_mad_u32_u24 {v(vT2)}, {v(vT3)}, {sB}, {v(vKA)}\nv_mad_u32_u24 {v(vT3)}, {v(vT3)}, {sB}, {v(vKA+1)}")
            e(f"s_mul_i32 {sB}, {sHK}, 17\ns_add_u32 {sB}, {sB}, {sT}\ns_lshl_b32 {sB}, {sB}, 10\ns_add_u32 {sB}, {sB}, {WS_KVP}")
            for c in range(2):
                for i in range(4): e(f"v_cvt_pk_bf16_f32 {v(F8a+4*c+i)}, {v(KV+8*c+2*i)}, {v(KV+8*c+2*i+1)}")
                e(f"buffer_store_dwordx4 {v(F8a+4*c,4)}, {v(vT2+c)}, {sWS}, {sB} offen sc1", tok="kvp")
        def qepi(e, acc, k, dst):
            for i in range(4): e(f"v_cvt_pk_bf16_f32 {v(F4+i)}, {v(acc+2*i)}, {v(acc+2*i+1)}")
            for i in range(4): e(f"v_cvt_pk_bf16_f32 {v(F8b+i)}, {v(acc+8+2*i)}, {v(acc+9+2*i)}")
            e(f"{MF} {v(acc,16)}, {v(PHI[1],4)}, {v(F8b,4)}, 0\n{MF} {v(TA,16)}, {v(PHI[0],4)}, {v(F4,4)}, 0")
            sm_body(e, acc, k, dst + 8, pk=o["pk"] and dst != PF); e.mark(("sib", dst))
            if not ("e" in abl and dst != PF): sm_body(e, TA, k, dst)
        def flag(st, addr, tok, lat=None):
            st(addr)
            st.waittok(tok, lat=lat or o["stlat"])
            st(f"s_mov_b64 exec, 1\nbuffer_store_dwordx2 {v(vTAG,2)}, {v(vZ)}, {sWS}, {sD} offen sc1\ns_mov_b64 exec, -1", glue=True)
        a_fl1 = f"s_lshl4_add_u32 {sD}, {sHK}, {sT}\ns_lshl_b32 {sD}, {sD}, 3\ns_add_u32 {sD}, {sD}, {WS_FL1}"
        def a_fl2(kind): return f"s_lshl2_add_u32 {sD}, {sJ}, {sWV}\ns_lshl_b32 {sC}, {sT}, 10\ns_lshl3_add_u32 {sD}, {sD}, {sC}\ns_add_u32 {sD}, {sD}, {WS_FL2+256*kind}"
        def fl_txt(sreg, off): return f"buffer_load_dwordx2 {v(vFL,2)}, {v(vFA)}, {sWS}, {sreg} offen offset:{off} sc1"
        skipf = lambda tok: att and tok[1] in str(o.get("skipf", ""))
        def fl_bg(sreg, off, tok, after):
            if not skipf(tok): B(fl_txt(sreg, off), tok, after, sp=16)
        def fl_check(st, sreg, off, tok):
            if skipf(tok): st.mark(tok); return
            st.waittok(tok)
            spin(st, f"v_cmp_ne_u64 vcc, {v(vFL,2)}, {v(vTAG,2)}", fl_txt(sreg, off), tok)

        SLOT = {"a0": (sW8K, R[0]), "a1": (sW8K, R[0] + 4096), "b0": (sW8K, R[1]), "b1": (sW8K, R[1] + 4096),
                "c0": (sW8K, R[4]), "c1": (sW8K, R[4] + 4096), "d0": (sW16K, R[2])}
        LORD = list(range(8)) + [11, 12, 13, 14, 8, 9, 10]
        WSLOT = dict(zip(LORD, ["b0", "b1", "c0", "c1", "a0", "a1"] * 2 + ["b0", "b1", "d0"]))
        nE = 8
        def blk(b):
            if b < 4: return sBA, b
            if b < 8: return sBB, b - 4
            if b < 11: return sBS[b - 8], 0
            return None, b - 11
        def dma_w(b, after):
            sb, off = SLOT[WSLOT[b]]; r, i = blk(b)
            pre = f"s_add_u32 m0, {sb}, {off}\n"
            if i: pre += f"s_add_u32 {sN}, {sN}, 0x8000"
            elif r: pre += f"s_lshl4_add_u32 {sN}, {r}, {sCB}"
            else: pre += f"s_lshl3_add_u32 {sN}, {sW16K}, {sCB}"
            run4(pre, vWD, sW2 if r else sWo, ("w", b), after, o["spw0"] if b < 4 else o["spw1"] if b < 6 else None, sN)
            if "f" in abl and LORD.index(b) >= 10: del tl.bg[-3:]
        def wfrags(st, dst, base, off, tok):
            for cb in range(4):
                for e in range(2): st(f"ds_read_b64_tr_b16 {dst(4*cb+2*e)}, {v(base+cb)} offset:{off+e*512}", tok=tok)
        def wbump(st, base, d):
            for i in range(4): st(f"v_add_u32 {v(base+i)}, {d}, {v(base+i)}")
        def wread(st, b):
            sl = WSLOT[b]; off = SLOT[sl][1] - {"c": R[4], "d": R[2]}.get(sl[0], 0)
            if b == 2: wbump(st, vWQ, R[4])
            if b == 4: wbump(st, vWQ, -R[4])
            if b == 10: st(f"s_add_u32 {sE1}, {sW8K}, {R[2]}"); wbump(st, vWQ, sE1)
            st.waittok(("w", b), lat=o["wlat"])
            wfrags(st, lambda k: ag(128 + 16 * (b % 8) + k, 2), vWQ, off, ("wr", b))

        D = NX - 1
        M = []
        RG = {1: R[1], 2: 0, 3: R[1], 4: 0, 5: 0}
        def bump(st, d):
            for i in range(4): st(f"v_add_u32 {v(vXR+i)}, {d}, {v(vXR+i)}")
        def opening(g, un):
            if un == 3:
                if o["ssplit"]: g.waittok(("x", 3), ("s", 0))
                else: g.waittok(("x", 3), ("s", 0), ("s", 1))
                g("s_barrier"); g.mark("sl")
            elif un < 3: g.waittok(("x", un)); g("s_barrier"); g.mark("xl%d" % un)
            if un == 2: bump(g, "0x10000")
            if un == 5: g.need("e1s"); bump(g, sE1)
        NP = 8
        for un in range(1, 6):
            acc = ACC[un & 1]
            cm = f"{MF} {v(acc,16)}, {v(CA[un>3],4)}, {v(ST+4*un if un <= 3 else CBS,4)}, "
            g = Stream()
            if un == 1:
                opening(g, 1)
                for ks in range(D): xread(g, 1, RG[1], ks)
            if un >= 2: g.need("f%d" % (un - 2))
            self.stamp(g, "u%d" % un)
            if un != 4:
                g.need("c%d" % un); g(cm + "0"); M.append(g); g = Stream()
            last = o["kvpace" if att else "fpace"] if un == 4 else 31
            for ks in range(32):
                for k in range(NP):
                    if ks == o["pace"] + (k + 1) * (last - o["pace"]) // NP: g.need(("ep", un - 1, k))
                if ks % 4 == 0:
                    if un == 4: g.need("sr%d" % (ks + 3)); g.waittok(("sr", ks + 3))
                    else: g.waittok(("xf", un, ks + 3))
                if ks == 28 and un == 1: g.mark("u1r")
                if ks == 28 and un == 5: g("s_barrier"); g.mark("r5")
                if ks + D == 32 and un < 5: opening(g, un + 1)
                g(f"{MF} {v(acc,16)}, {ag(4*ks,4)}, {ag(128+4*ks,4) if un == 4 else v(XF+4*(ks%NX),4)}, {v(acc,16) if (ks or un != 4) else 0}")
                if ks + D < 32:
                    if un != 4: xread(g, un, RG[un], ks + D)
                elif un in (1, 2, 4): xread(g, un + 1, RG[un + 1], ks + D - 32)
                if un >= 3: g.mark(("pd", un, ks))
                if un == 5 and ks == o["kvl"]: g.mark("kvl")
                if ks == 31 and un != 4: g.mark("m%d" % un)
                M.append(g); g = Stream()
            if un == 4:
                g.need("c4"); g(cm + v(acc, 16)); g.mark("cb4"); g.mark("m4"); M.append(g)
        tl.marks.add("m0")
        E = Stream()
        def paced(e, un):
            tot = sum(i.cost for i in e); c = 0; k = 0
            for i in e:
                E.append(i); c += i.cost
                while k < NP and c >= tot * (k + 1) / NP - 1e-9 and not i.glue: E.mark(("ep", un, k)); k += 1
            assert k == NP
        def selectk(st, i):
            for r in range(nk): st(f"v_cndmask_b32 {v(KCS+r)}, {v(KC[i]+r)}, {v(KC[i+1]+r)}, {sPAR}")
        for un in range(4):
            e = Stream()
            if att: kepi(e, un)
            else: e.need("m%d" % un); gelu(e, ACC[un & 1], KC[un], sAB[un], sBLKP, "actP")
            if att and un == 3: kvpub(e)
            paced(e, un); E.mark("f%d" % un)
        E.mark("kvp")
        E("s_cmp_lg_u32 s98, 0\n" + "\n".join(f"s_cselect_b32 {sB}, {sAB[k+1]}, {sAB[k]}\ns_cselect_b32 {sAB[k+1]}, {sAB[k]}, {sAB[k+1]}\ns_mov_b32 {sAB[k]}, {sB}" for k in (0, 2)), glue=True)
        selectk(E, 0); E.need("m4")
        e = Stream()
        if att: qepi(e, ACC[0], KCS, PF)
        else: gelu(e, ACC[0], KCS, sAB[0], sBLKS, "actS")
        paced(e, 4)
        selectk(E, 2); E.mark("e4"); E.need("m5"); self.stamp(E, "u6")
        if att: qepi(E, ACC[1], KCS, PF + 16)
        elif "h" not in abl: gelu(E, ACC[1], KCS, sAB[2], sBLKS, "actS")
        self.stamp(E, "q"); E.mark("q5")
        X = Stream()
        X.waittok("stats")
        t = f"v_xor_b32 {v(vT0)}, {v(vTAG)}, {v(ST+5)}\nv_xor_b32 {v(vT1)}, {v(vTAG)}, {v(ST+7)}\n"
        for r in (9, 13):
            t += f"v_xor_b32 {v(vFL)}, {v(vTAG)}, {v(ST+r)}\nv_xor_b32 {v(vFL+1)}, {v(vTAG)}, {v(ST+r+2)}\nv_or3_b32 {v(vT0)}, {v(vT0)}, {v(vFL)}, {v(vFL+1)}\n"
        spin(X, t + f"v_cmp_ne_u64 vcc, 0, {v(vT0,2)}", "\n".join(stats_ld(i, sA) for i in range(1, 4)), "stok")
        for i in range(1, 4): stat_consts(X, i); X.mark("c%d" % i)
        def select(st, i):
            for r in range(3): st(f"v_cndmask_b32 {v(CBS+r)}, {v(ST+4*i+r)}, {v(ST+4*i+4+r)}, {sPAR}")
        if o["xlate"]: X.need("kvp" if att else "m3")
        select(X, 0); X(f"v_mov_b32 {v(CBS+3)}, 0")
        X(f"s_mul_i32 {sE0}, {sTT}, {2*TBSTR}\ns_add_u32 {sE0}, {sE0}, {WS_ACT}")
        X.mark("e1s"); X.need("sl")
        X(f"v_and_b32 {v(vT0)}, 0xf0, {v(vL16)}\nv_lshrrev_b32 {v(vT1)}, 4, v0\nv_lshl_add_u32 {v(vT0)}, {v(vT1)}, 9, {v(vT0)}")
        for k in range(4):
            X(f"s_add_u32 {sA}, {sWV}, {k}\ns_bfe_u32 {sSTB}, {sA}, 0x10001\ns_mul_i32 {sSTB}, {sSTB}, {TBSTR}\ns_add_u32 {sSTB}, {sSTB}, {sE0}\ns_and_b32 {sA}, {sA}, 1\ns_lshl_b32 {sA}, {sA}, 8\ns_add_u32 {sA}, {sA}, {sSTB}")
            X(f"v_add_u32 {v(vAA+k)}, {sA}, {v(vT0)}")
        X2 = Stream()
        X2.need("kvp"); flag(X2, a_fl1 if att else a_fl2(0), "kvp" if att else "actP")
        X.need("cs"); corr_a(X, 1); X.mark("c4")
        X.need("cb4"); select(X, 2); X.mark("c5")
        S = Stream()
        C = Stream()
        KR = vJ
        S(f"s_and_b32 {sE1}, s98, 0x8000")
        for i in range(4): S(f"v_add_u32 {v(KR+i)}, {sE1}, {v(vXR+i)}")
        S.need("xl1")
        for ks in range(2 if "g" in abl else 32): S(f"ds_read_b128 {ag(128+4*ks,4)}, {v(KR+(ks&3))} offset:{(ks>>2)*4096}", tok="kr")
        S.need("u1r"); S.waittok("kr"); S("s_barrier"); S.mark("k")
        S.need("sl")
        if att and o["sg0"]: S.need(o["sg0"])
        for half in range(2):
            for ks in range(16 * half, 16 * half + 16):
                S.need(("pd", 3, ks))
                for e in range(1 if "i" in abl else 2): S(f"ds_read_b64_tr_b16 {ag(4*ks+2*e,2)}, {v(vSR)} offset:{(ks&15)*2048+e*512}", tok=("sr", ks))
                if ks % 4 == 3:
                    S.mark("sr%d" % ks); C.need("sr%d" % ks); C.waittok(("sr", ks))
                    if ks == 3: C.need("kvp" if o["prio" if att else "priof"] else "m3")
                    for k2 in range(ks - 3, ks + 1 if ("a" not in abl or ks == 3) else 0): C(f"{MF16} {v(CS,4)}, {v(CSEL,4)}, {ag(4*k2,4)}, {v(CS,4) if k2 else 0}")
                if ks == 19 and att and o["sg1"]: S.waittok(("sr", 15)); S("s_barrier"); S.mark("sa"); S.need(o["sg1"])
                if ks == 15: S(f"v_subrev_u32 {v(vSR)}, {R[4]}, {v(vSR)}")
                if ks == 15 and o["ssplit"]: S.waittok(("s", 1)); S.waittok(("sr", 15)); S("s_barrier"); S.mark("sa")
                if ks == 19 and not o["ssplit"] and not (att and o["sg1"]): S.waittok(("sr", 15)); S("s_barrier"); S.mark("sa")
        S(f"v_add_u32 {v(vWQ)}, {sW8K}, {v(vWR)}")
        for i in range(1, 4): S(f"v_xor_b32 {v(vWQ+i)}, {32*i}, {v(vWQ)}")
        S.waittok(("sr", 31)); S("s_barrier"); S.mark("sb")
        C.mark("cs")
        if o["prio" if att else "priof"] == 1: S.need("kvp")
        for b in range(nE):
            S.need(("pd", 4, 4 * b + 3)); wread(S, b)
            if b: S.waittok(("wr", b - 1)); S.mark("wr%d" % (b - 1))
        S.waittok(("wr", nE - 1)); S.mark("wr%d" % (nE - 1))
        def res():
            B(f"buffer_load_dwordx4 {v(XR,4)}, {v(vOUT)}, {sX}, {sPCOL} offen", sp=o["spx3"])
            B(f"s_add_u32 {sM}, {sPCOL}, 0x2000\nbuffer_load_dwordx4 {v(XR+4,4)}, {v(vOUT)}, {sX}, {sM} offen", "res", sp=o["spx3"])
        if not o["rord"]: res()
        warm3(2); dma_s(0, "xl1"); warm3(3)
        if o["xord"]: dma_x(3, None, o["spx3"])
        dma_s(1, "k"); warm3(4)
        if o["rord"]: res()
        def wafter(b):
            n = LORD.index(b)
            return "k" if n < 2 else "sa" if n < 4 else "sb" if n < 6 else "wr%d" % (n - 6) if n < 14 else "r5"
        nB = o.get("nB", 13) if att else o.get("nBf", 11)
        for n in range(nB):
            if att and n == o.get("nK", 12): fl_bg(sFK, 0, "fK", "kvl")
            dma_w(LORD[n], wafter(LORD[n]))
        if att and nB <= o.get("nK", 12): fl_bg(sFK, 0, "fK", "kvl")
        late = LORD[nB:]

        AC2 = 0; AF = 64; NB = 4
        fO = o["fO"] if att else o["fOf"]; fS = o["fSa"] if att else o["fS"]
        def af(idx): return ag(AF + 4 * (idx % 16), 4)
        def acts():
            for bb in range(11):
                if bb == fS: fl_bg(sFL, 256, "fS", "fP")
                if bb == fO: fl_bg(sFL, 512, "fO", "fa8")
                r, i = blk(bb)
                pre = ""
                if bb == 10: pre = f"s_cmp_eq_u32 {r}, {43*2048}\ns_cselect_b32 {r}, {sBS[0]}, {r}"
                elif i == 2: pre = f"s_add_u32 {r}, {r}, 4096"
                for k in range(4):
                    idx = 4 * bb + k
                    aft = {0: "fP", 32: "fS", (4 * o.get("gate", 99) if att else 99): "pub"}.get(idx, ("mt", idx - 16) if idx >= 16 else None)
                    B(f"{pre}\nbuffer_load_dwordx4 {af(idx)}, {v(vAA+k)}, {sWS}, {r} offen offset:{2048*(i&1)} sc1", ("act", idx), aft, sp=o["spa"]); pre = ""
            if fO == 11: fl_bg(sFL, 512, "fO", "fa8")
            for n in range(16):
                idx = 44 + n; p = 4 * ((n >> 1) & 3) + 2 * (n >> 3)
                pre = "" if n & 1 else f"s_mov_b32 {sM}, {(43+p)*2048}"
                B(f"{pre}\nbuffer_load_dwordx4 {af(idx)}, {v(vAA)}, {sWS}, {sM} offen offset:{2048*(n&1)} sc1", ("act", idx), "fO" if n == 0 else ("mt", idx - 16), sp=o["spa"])
        assert fS >= 5 and fO >= 8
        s = Stream()
        if not att:
            fl_bg(sFL, 0, "fP", "r5")
            for b in late: dma_w(b, wafter(b))
            acts()
            X2.need("m5"); fl_check(X2, sFL, 0, "fP")
            E.mark("odone"); FS = [X, X2, S, C, E]
        else:
            Z = ST + 8; ZT = F8a; KA = XF
            X2.need("sb")
            X2(f"s_mul_i32 {sD}, {sHD}, {KVREC}\ns_add_u32 {sD}, {sD}, {WS_KVP}\nv_add_u32 {v(vJ)}, {sD}, {v(vL16)}")
            X2(f"v_and_b32 {v(vXD0)}, 0x30, {v(vL16)}\nv_lshrrev_b32 {v(vSR)}, 4, v0\nv_lshl_add_u32 {v(vXD0)}, {v(vSR)}, 2, {v(vXD0)}")
            X2.need("c5")
            fl_check(X2, sFK, 0, "fK")
            X2(f"v_and_b32 {v(vFA)}, 0x38, {v(vFA)}"); X2.mark("gat")
            gsp = o.get("gsp", 56)
            B(f"s_movk_i32 {sM}, 0x4000\nbuffer_load_dwordx4 {v(Z,4)}, {v(vJ)}, {sWS}, {sM} offen sc1", "z", "gat", sp=gsp)
            NG = 2 if "c" in abl else 16
            for p in range(NG):
                if p == o["nP"]: fl_bg(sFL, 0, "fP", None)
                gq = o["gq"]
                pre = "" if p % gq else f"s_lshl_b32 {sM}, {sROT}, 11\ns_and_b32 {sM}, {sM}, {0x4000-1024*gq}" if p == 0 else f"s_add_u32 {sM}, {sM}, {1024*gq}\ns_and_b32 {sM}, {sM}, 0x3fff"
                B(f"{pre}\nbuffer_load_dwordx4 {ag(4*p,4)}, {v(vJ)}, {sWS}, {sM} offen offset:{(p%gq)*1024} sc1", ("g", p), ("pd", 5, p), sp=gsp)
            nL = o.get("nL", 0)
            for b in late[:nL]: dma_w(b, wafter(b))
            if o["nP"] >= 16: fl_bg(sFL, 0, "fP", None)
            for b in late[nL:]: dma_w(b, wafter(b))
            acts()
            xo, xs, zw, zr = (CA[0] + i for i in range(4))
            X2(f"s_add_u32 {sD}, {sW16K}, {R[2]+4096}\nv_add_u32 {v(xo)}, {sD}, {v(vL16)}\nv_xor_b32 {v(xs)}, 0x4000, {v(xo)}")
            X2(f"v_add_u32 {v(zw)}, {sD}, {v(vXD0)}\nv_lshl_add_u32 {v(zr)}, {v(vSR)}, 4, {sD}"); X2.mark("xa")
            X2.waittok("z")
            for i in range(4): X2(f"v_lshlrev_b32 {v(ZT+i)}, 16, {v(Z+i)}\nv_and_b32 {v(ZT+4+i)}, 0xffff0000, {v(Z+i)}")
            for i in range(0, 8, 2): X2(f"v_permlane16_swap_b32 {v(ZT+i)}, {v(ZT+i+1)}")
            for i in range(0, 8, 2): X2(f"v_add_f32 {v(ZT+i)}, {v(ZT+i)}, {v(ZT+i+1)}")
            for i in (0, 4): X2(f"v_permlane32_swap_b32 {v(ZT+i)}, {v(ZT+i+2)}")
            for i in (0, 4): X2(f"v_add_f32 {v(ZT+i)}, {v(ZT+i)}, {v(ZT+i+2)}")
            for m in ("row_ror:4", "row_ror:8"):
                for i in (0, 4): X2(f"v_add_f32_dpp {v(ZT+i)}, {v(ZT+i)}, {v(ZT+i)} {m} {DPPM}")
            X2(f"v_cvt_pk_bf16_f32 {v(Z)}, {v(ZT)}, {v(ZT+4)}")
            X2.need("r5"); X2(f"ds_write_b32 {v(zw)}, {v(Z)} offset:4096\nds_read_b128 {v(Z,4)}, {v(zr)} offset:4096", tok="zr"); X2.mark("zr")
            X2.need("m5"); fl_check(X2, sFL, 0, "fP")
            XC = Stream(); XC.need("xa"); XC.need("r5"); XC.need(("sib", PF))
            for k in range(4):
                if k == 2: XC.need(("sib", PF + 16))
                XC(f"ds_write_b128 {v(xo)}, {v(PF+8+16*(k>>1)+4*(k&1),4)} offset:{1024*k}", tok="xw")
            XC.waittok("xw"); XC("s_barrier")
            for k in range(4): XC(f"ds_read_b128 {v(PF+8+16*(k>>1)+4*(k&1),4)}, {v(xs)} offset:{1024*k}", tok="xr")
            XC.waittok("xr"); XC("s_barrier"); XC.mark("xr")
            G = Stream(); G.need("m5")
            if o["pk"]: G.need(("sib", PF + 16))
            for p in range(NG):
                if p % 2 == 0: G.waittok(("g", p + 1))
                G(f"{MF} {v(KA,16)}, {v(SEL[0],4)}, {ag(4*p,4)}, {v(KA,16) if p else 0}")
            G.mark("gdone")
            KP = KA + 16
            G(f"s_add_u32 {sSO[0]}, {sHD}, 86\ns_lshl_b32 {sSO[0]}, {sSO[0]}, 10")
            for i in range(4): G(f"v_cvt_pk_bf16_f32 {v(KP+i)}, {v(KA+2*i)}, {v(KA+2*i+1)}")
            G.need("zr"); G.waittok("zr")
            for i in range(4): G(f"v_permlane16_swap_b32 {v(KP+i)}, {v(Z+i)}")
            self.stamp(G, "kvx")
            O = Stream()
            for n, A in ((0, ACC[0]), (1, KA), (3, ACC[1]), (2, TA)):
                if n == 0: G.need("e4")
                if n == 1: G.need("xr")
                if n == 2: G.need("q5")
                G(f"{MF} {v(A,16)}, {v(KP,4)}, {v(PF+8*n,4)}, 0\n{MF} {v(A,16)}, {v(Z,4)}, {v(PF+8*n+4,4)}, {v(A,16)}"); G.mark(("om", n))
                O.need(("om", n))
                O(f"v_add_f32 {v(A+8)}, {f2u(1e-6)}, {v(A+8)}\nv_rcp_f32 {v(A+8)}, {v(A+8)}")
                O(f"s_add_u32 {sSO[1]}, {sAB[n]}, {sSO[0]}")
                for i in range(8): O(f"v_mul_f32 {v(A+i)}, {v(A+i)}, {v(A+8)}")
                for i in range(4): O(f"v_cvt_pk_bf16_f32 {v(A+12+i)}, {v(A+2*i)}, {v(A+2*i+1)}")
                O(f"buffer_store_dwordx4 {v(A+12,4)}, {v(vL16)}, {sWS}, {sSO[1]} offen sc1", tok="actO")
                if o.get("nost") and n != 2: O.pop()
            self.stamp(O, "o"); O.mark("odone")
            FS = [X, X2, S, C, XC, G, E, O]
        def grp2(pre, text, post=None):
            g = Stream(); g.small = o["nds2"]
            if pre: pre(g)
            g(text)
            if post: post(g)
            M.append(g)
        def wo(n): return (lambda k, c=2: v(96 + 16 * n + k, c)) if n < 10 else (lambda k, c=2: ag(128 + 16 * ((n - 7) % 8) + k, c))
        for bb in range(11):
            for kk, k in enumerate((1, 2, 3, 0) if bb == 10 else range(4)):
                idx = 4 * bb + k
                for cc in range(4):
                    cb = 3 - cc if kk & 1 else cc
                    def pre(g):
                        if kk == 0:
                            if bb == 0:
                                g.need("wr7")
                                if att: g.need("odone" if o["p2hold"] else "gdone")
                            if bb == fS:
                                g.need("pub"); fl_check(g, sFL, 256, "fS")
                                g(f"v_lshrrev_b32 {v(vFA)}, 1, {v(vN16)}\ns_and_b32 {sFL}, {sFL}, 0xffffff3f"); g.mark("fa8")
                            if bb == fO: g.need("pub"); fl_check(g, sFL, 512, "fO")
                            if bb >= nE: g.need("wq%d" % bb); g.waittok(("wr", bb), lat=0)
                        if kk % 2 == 0:
                            g.waittok(("act", 4 * bb + (kk + 1 if bb < 10 else 2 + kk // 2)), ahead=o["ah2"] if bb >= o["p2e"] else 0, lat=0 if bb >= o["p2e"] else None)
                    def post(g):
                        g.mark(("mt", idx))
                        if kk == 3: g.mark(("mm", bb)); self.stamp(g, "mm%d" % bb)
                    A = ag(AC2 + 16 * k + 4 * cb, 4)
                    grp2(pre if cc == 0 else None, f"{MF16} {A}, {ag(128+16*(bb%8)+4*cb,4)}, {af(idx)}, {A if bb else 0}", post if cc == 3 else None)
        if fO == 11:
            g = Stream(); g.need("pub")
            if o.get("qfirst"): g.need(("qa", 2))
            fl_check(g, sFL, 512, "fO"); M.append(g)
        for n in range(16):
            for cb in range(4):
                def pre(g):
                    g.need(("wo", n)); g.waittok(("wo", n), lat=0)
                    if n % 2 == 0 or n > 12: g.waittok(("act", 44 + (n if n >= 12 else n + 1)), ahead=o["ah2"], lat=0)
                def post(g):
                    if n == 15: g.mark("oend"); self.stamp(g, "mm14")
                A = ag(AC2 + 4 * cb, 4)
                grp2(pre if cb == 0 else None, f"{MF16} {A}, {wo(n)(4*cb,4)}, {af(44+n)}, {A}", post if cb == 3 else None)
        W = Stream(); W.need("m5")
        for b in range(nE, 11):
            W.need(("mm", b - 8)); wread(W, b); W.mark("wq%d" % b)
        W2s = Stream(); W2s.need("m5")
        W2s(f"v_add_u32 {v(vXR)}, {R[4]}, {v(vWR)}")
        for i in range(1, 4): W2s(f"v_xor_b32 {v(vXR+i)}, {32*i}, {v(vXR)}")
        W2s.waittok(("w", 14), lat=o["wlat"]); W2s.need("odone"); W2s("s_barrier")
        for n in range(16):
            if n == 8: wbump(W2s, vXR, -R[4])
            if n >= 10: W2s.need(("mm", n - 7))
            wfrags(W2s, wo(n), vXR, (n & 7) * 4096, ("wo", n)); W2s.mark(("wo", n))
        X = Stream(); X.need("odone"); X.need("fP")
        flag(X, a_fl2(2 if att else 1), "actO" if att else "actS", o["stlat2"])
        X.mark("pub"); Xf = X; X = Stream(); X.need("pub"); X.need("wq10")
        RW = vKA; RR = [vWD, vWD + 2, vT2, vJ]; Y = ACC[0]; Pp = ACC[1]
        assert Y == 48 and Pp == 64
        vJ2 = (vSR, vXD0)
        rr = lambda k, e: v(RR[k] + e) if k < 3 else v(vJ2[e])
        X(f"v_lshrrev_b32 {v(vT0)}, 4, v0\nv_and_b32 {v(vT1)}, 7, v0\nv_xor_b32 {v(vT0)}, {v(vT0)}, {v(vT1)}\nv_and_b32 {v(RW)}, 0xf0, {v(vL16)}")
        X(f"v_add_lshl_u32 {v(vT0)}, {v(RW)}, {v(vT0)}, 4\ns_add_u32 {sA}, {sW16K}, {R[2]}\nv_add_u32 {v(RW)}, {sA}, {v(vT0)}\nv_xor_b32 {v(RW+1)}, 64, {v(RW)}")
        X(f"v_lshrrev_b32 {v(vT0)}, 3, v0\nv_lshlrev_b32 {v(vT1)}, 1, {v(vT1)}\nv_xor_b32 {v(vT1)}, {v(vT1)}, {v(vT0)}\nv_lshlrev_b32 {v(vT1)}, 4, {v(vT1)}\nv_lshl_add_u32 {v(vT0)}, {v(vT0)}, 8, {v(vT1)}")
        for k in range(4):
            X(f"s_sub_u32 {sA}, {sW16K}, {16384*(k+1)}\ns_and_b32 {sA}, {sA}, 0xc000\ns_add_u32 {sA}, {sA}, {R[2]+4096*k}")
            X(f"v_add_u32 {rr(k,0)}, {sA}, {v(vT0)}\nv_xor_b32 {rr(k,1)}, 16, {rr(k,0)}")
        for it in range(2):
            for i in range(4):
                X(f"v_lshlrev_b32 {v(Y+8*it+2*i)}, 16, {v(XR+4*it+i)}\nv_and_b32 {v(Y+8*it+2*i+1)}, 0xffff0000, {v(XR+4*it+i)}")
        for i in range(4):
            X(f"v_lshlrev_b32 {v(vT0)}, 16, {v(B2+i)}\nv_and_b32 {v(vT1)}, 0xffff0000, {v(B2+i)}")
            for it in range(2):
                X(f"v_add_f32 {v(Y+8*it+2*i)}, {v(Y+8*it+2*i)}, {v(vT0)}\nv_add_f32 {v(Y+8*it+2*i+1)}, {v(Y+8*it+2*i+1)}, {v(vT1)}")
        X(f"s_add_u32 {sB}, {sPCOL}, 0x2000"); X.mark("fin")
        Q = Stream(); Z2 = Stream(); Q.need("fin")
        def qw(k, slot, tok):
            for cb in range(4): Q(f"ds_write_b128 {v(RW+(cb&1))}, {ag(AC2+16*k+4*cb,4)} offset:{slot*4096+(cb>>1)*128}", tok=tok)
        def qr(k):
            for it in range(2):
                for e in range(2): Q(f"ds_read_b128 {v(Pp+16*(k&1)+8*it+4*e,4)}, {rr(k,e)} offset:{it*2048}", tok=("qr", k, it))
            Q.mark(("qr", k))
        for k in range(1, 4): Q.need(("mt", 40 + k)); qw(k, k - 1, "qw")
        Q.waittok("qw", lat=80); Q("s_barrier"); self.stamp(Q, "red0")
        for k in range(3):
            if k == 2: Q.need(("qa", 0))
            qr(k)
            Z2.need(("qr", k)); Z2.waittok(("qr", k, 1))
            for i in range(16): Z2(f"v_add_f32 {v(Y+i)}, {v(Y+i)}, {v(Pp+16*(k&1)+i)}")
            Z2.mark(("qa", k))
        Q.need("oend"); Q.need(("qa", 1)); qw(0, 3, "qw2"); self.stamp(Q, "red"); qr(3)
        Z2.need(("qr", 3))
        for it in range(2):
            Z2.waittok(("qr", 3, it), lat=100)
            for i in range(0, 8, 2): Z2(f"v_pk_add_f32 {v(Y+8*it+i,2)}, {v(Y+8*it+i,2)}, {v(Pp+16+8*it+i,2)}")
            for i in range(4): Z2(f"v_cvt_pk_bf16_f32 {v(XR+4*it+i)}, {v(Y+8*it+2*i)}, {v(Y+8*it+2*i+1)}")
            Z2(f"buffer_store_dwordx4 {v(XR+4*it,4)}, {v(vOUT)}, {sOut}, {sB if it else sPCOL} offen{' sc1' if o['outsc1'] else ''}"); self.stamp(Z2, "out%d" % it)
        tl.sched(M, FS + [Xf, W, Q, Z2, W2s, X], nds=o.get("nds", 2))
        s = Stream()
        if att:
            noe = self.lab("noe")
            s(f"s_or_b32 {sA}, s2, {sWV}\ns_cmp_lg_u32 {sA}, 0\ns_cbranch_scc1 {noe}")
            s(f"s_mov_b64 exec, 1\nbuffer_store_dword {v(vTAG)}, {v(vZ)}, {sWS}, 0 offen sc1\ns_mov_b64 exec, -1", cond=True)
            s(noe + ":")
        if o.get("probe"):
            lp, l2, l3 = self.lab("pad"), self.lab("ref"), self.lab("skip"); K = o.get("K", 4)
            s("s_waitcnt vmcnt(0)"); self.stamp(s, "end"); s("s_waitcnt lgkmcnt(0)")
            if o.get("st") == "start": s("s_mov_b32 s60, s100")
            s(f"s_or_b32 {sA}, s2, {sWV}\ns_cmp_lg_u32 {sA}, 0\ns_cbranch_scc1 {l2}")
            s(f"v_mov_b32 {v(vT0)}, s100\nv_mov_b32 {v(vT1)}, {v(vTAG)}\nbuffer_store_dwordx2 {v(vT0,2)}, {v(vZ)}, {sWS}, 0 offen offset:2048 sc1", cond=True)
            s(f"{l2}:\ns_sleep 8\nbuffer_load_dwordx2 {v(vT0,2)}, {v(vZ)}, {sWS}, 0 offen offset:2048 sc1\ns_waitcnt vmcnt(0)\nv_cmp_ne_u32 vcc, {v(vT1)}, {v(vTAG)}\ns_nop 4\ns_cbranch_vccnz {l2}")
            s(f"v_readfirstlane_b32 s66, {v(vT0)}\ns_nop 4\ns_sub_u32 s60, s60, s66")
            if o["probe"] == "min": s("s_sub_u32 s60, 1200, s60")
            else: s("s_add_u32 s60, s60, 300")
            if o.get("only", role) != role: s("s_mov_b32 s60, 0")
            s(f"s_mul_i32 s60, s60, {K}\ns_add_u32 s60, s60, 4000")
            s(f"{lp}:\ns_memrealtime s[64:65]\ns_waitcnt lgkmcnt(0)\ns_sub_u32 s64, s64, s66\ns_cmp_lt_u32 s64, s60\ns_cbranch_scc1 {lp}")
        elif o["stamps"]:
            s("s_waitcnt vmcnt(0)\ns_memrealtime s[64:65]\ns_waitcnt lgkmcnt(0)")
            s(f"s_lshl2_add_u32 {sA}, s2, {sWV}\ns_lshl_b32 {sA}, {sA}, 6\ns_add_u32 {sA}, {sA}, {WS_STAMP}")
            for i, r in enumerate(["s100"] + ["s%d" % k for k in STAMPR] + ["s64"]):
                s(f"v_mov_b32 {v(vT1)}, {r}\nbuffer_store_dword {v(vT1)}, {v(vZ)}, {sWS}, {sA} offen offset:{4*i}")
        tl.straight(s)
        assert tl.bi == len(tl.bg)
        tl.log.append("end t=%d forced=%d" % (tl.t, tl.forced))
        if o["log"]: sys.stderr.write("\n".join(role + " " + x for x in tl.log) + "\n")
        return tl.out

    def build(self):
        outs = {}
        for role in ("att", "ffn"):
            st = {}
            outs[role] = finalize(self.role(role), st)
            sys.stderr.write("%s: %s\n" % (role, st))
        ia, jf = outs["att"].index("L_split:"), outs["ffn"].index("L_split:")
        assert outs["att"][:ia] == outs["ffn"][:jf], "common start differs"
        text = outs["att"][:ia] + outs["att"][ia + 1:] + ["s_endpgm", ".p2align 6", "L_ffn:"] + outs["ffn"][jf + 1:] + ["L_end:", "s_endpgm"]
        if self.o.get("al"):
            text, n, c = align_pass([NAME + "_kernel:"] + text, self.o["al"], self.o.get("lam", 30) / 100); text = text[1:]
            sys.stderr.write("alignment: %d re-encoded, residual cost %.1f\n" % (n, c))
        body = "\n".join(t if t.endswith(":") else "    " + t for t in text) + "\n"
        hdr = ["Fused LayerNorm + hedgehog linear attention + GELU FFN + residual, one persistent launch (generated by my own script).",
               "@launch grid=(256,1,1) block=(256,1,1) lds=163840"]
        return module(hdr, [(NAME + "_kernel", body, 512, 256)])

if __name__ == "__main__":
    opt = {}
    for x in sys.argv[2:]:
        k, _, val = x.partition("=")
        opt[k] = (int(val) if val.lstrip("-").isdigit() else val) if val else True
    open(sys.argv[1], "w").write(Gen(**opt).build())
```

```python
import sys, struct
from asmlib import module
from backend import *

NAME = "parallel_sum__linear_kernel_hedgehog__dense_activation_gelu__prompt"
def f2u(x): return "0x%x" % struct.unpack("<I", struct.pack("<f", x))[0]
LOG2E = 1.4426950408889634
K0 = -2.0 * LOG2E * 0.7978845608028654

WS_G = 0; WS_FL1 = 0x1000; WS_FL2 = 0x3000; WS_STATS = 0x8000; WS_KVP = 0x40000; WS_ACT = 0x200000
KVREC = 17 * 1024; TBSTR = 118 * 1024; WS_STAMP = 0x1000000
TAGC = 0x9E3779B9
R = [0, 32768, 65536, 98304, 131072]
SCR = R[4] + 16384
FFN_BLK0 = [0, 6, 11, 16, 22, 27, 32, 38]
FFN_NBLK = [6, 5, 5, 6, 5, 5, 6, 5]
SBL = [[4, 5, 10], [15, 20, 21], [26, 31, 43], [36, 37, 42]]
def pack(l): return "0x%x" % sum(b << (8 * i) for i, b in enumerate(l))

sX, sW, sWS, sW2, sWo, sOut, sAux, sB2 = ("s[%d:%d]" % (i, i + 3) for i in (8, 12, 16, 20, 24, 28, 32, 36))
sM, sN = "s0", "s1"
sWV, sT, sJ, sU, sI = "s3", "s4", "s5", "s6", "s7"
sROT, sQ4, sTT, sCB, sFL, sSTB = "s64", "s65", "s66", "s67", "s68", "s69"
sA, sB, sC, sD = "s70", "s71", "s72", "s73"
sXB = ["s74", "s75", "s76", "s77"]
sAB = ["s78", "s79", "s80", "s81"]
sXK = ["s82", "s83"]; sSO = ["s84", "s85"]
sBA, sBB = "s86", "s87"; sBS = ["s88", "s89", "s90"]
sPCOL, sW8K, sW16K = "s91", "s92", "s93"
sBLKP, sBLKS = "s94", "s95"; sFK = "s95"; sHD = sHK = "s6"
sE0, sE1 = "s96", "s97"
sPAR = "s[98:99]"
STAMPR = [60, 40, 42, 44, 50, 52, 46, 54, 62, 56, 58, 48]

class VA:
    def __init__(self, start=1): self.n = start
    def __call__(self, k=1, al=1):
        self.n = (self.n + al - 1) // al * al
        r = self.n; self.n += k
        assert self.n <= 256, "out of VGPRs"
        return r
def v(i, k=1): return "v%d" % i if k == 1 else "v[%d:%d]" % (i, i + k - 1)
def ag(i, k=1): return "a%d" % i if k == 1 else "a[%d:%d]" % (i, i + k - 1)
MF = "v_mfma_f32_32x32x16_bf16"; MF16 = "v_mfma_f32_16x16x32_bf16"
DPPM = "row_mask:0xf bank_mask:0xf"

def srd(s, d, p, n):
    d0 = int(d[2:].split(":")[0])
    s(f"s_mov_b32 s{d0}, s{p}\ns_mov_b32 s{d0+1}, s{p+1}\ns_mov_b32 s{d0+2}, {n}\ns_mov_b32 s{d0+3}, 0x20000")

class Gen:
    def __init__(self, **opt):
        self.o = dict(stamps=False, warm=0, outsc1=True, sp=64, sp1=48, ahead=10, log=False, umode=0, vlat=650, stlat=650,
                      ah0=0, s0p=6, pgo=0, tlb=0, tlbp=0, z5=1, cbx=2, wA=1, wq=0, hsw=0, gq=4, pk=1, kz=1, xlate=0, sg0=0, sg1=0, al=1, lam=10, spx=56, spx3=64, sps0=64, sps1=64, spw0=80, spw1=64, ssplit=0, xord=0, rord=1, fpace=22, priof=0, nds2=1, p1v=1, s1=7, x2a="b5", xa=1, npc=2, nP=16, p2hold=1, spa=72, p2e=3, stlat2=600, qx=4, nq=2, plat0=0, plat=0, sp0=40, warmc=1, stag=1, warmf=0, wsp=180, wpos=0, wpos2=6, cbmix=0, warmm=4, sw=0, px=1, slpK=2, ah0b=6, lag=2, s0=3, slp=3, slat=750, wlat=700, wlat0=1100, nE=4, pace=3, kvpace=16, kvhold=99, hold=0, kvl=12, prio=1, fSa=5, fS=7, fO=9, fOf=9, ah2=2, fo=2)
        self.o.update(opt); self.uid = 0
        Haz.SW = self.o["hsw"]
        global TBSTR, WS_ACT
        TBSTR = 118 * 1024 + self.o.get("tbpad", 0); WS_ACT = 0x200000 + self.o.get("actoff", 0)
    def lab(self, p):
        self.uid += 1; return "L_%s_%d" % (p, self.uid)
    def stamp(self, s, name):
        if self.o.get("dly") == name and self.o.get("dr", self.cur) == self.cur:
            s("s_sleep 8"); s[-1].cost = 0
        if not self.o["stamps"]: return
        names = str(self.o.get("st", "x0,b0,p1,u1,u2,u3,u4,u5,q,o,mm14,red")).split(",")
        if name in names:
            r = STAMPR[names.index(name)]; s(f"s_memrealtime s[{r}:{r+1}]")

    def role(self, role):
        kP = role == "att"; qS = not kP; o = self.o; self.cur = role
        tl = TL(o["sp"], o["vlat"]); B = tl.B
        def watch(name):
            x = Stream(); self.stamp(x, name); return x[0].text if x else None
        tl.watch = watch; tl.m16 = True; tl.pen = o.get("pen", 0)
        s = Stream(); a = VA(1)
        stride, strS = (3072, 2752) if kP else (2752, 3072)
        vL16 = a(); vXD0 = a(); vXD = a(4); vOUT = a(); vTAG = a(2, 2); vN16 = a(); vXR = a(4); vSR = a()
        vT0 = a(1, 2); vT1 = a(); vT2 = a(); vT3 = a()
        vSD = a(4); vWD = a(4); vPR = vWD + 1; vWR = a(2); vFL = a(2, 2); vFA = a(); vZ = a()
        vAA = vXD; vWQ = vSD
        assert vXD == 3
        vKA = a(2)
        XR = a(8, 4); B2 = a(4, 4)
        ACC = [a(16, 4), a(16, 4)]; NX = 8; XF = a(4 * NX, 4)
        CA = [a(4, 4), a(4, 4)]; ST = a(16, 4); CBS = a(4, 4); CS = a(4, 4); CSEL = a(4, 4); vPD = CBS
        KC = [a(3) for _ in range(4)]; KCS = a(3); vB1 = a()
        F4 = a(4, 4); F8a = a(8, 4); TA = a(16, 4); G4 = F4
        if kP:
            ONES = a(4, 4); SEL = [a(4, 4), a(4, 4)]; F8b = a(8, 4); PHI = [a(4, 4)]; KV = a(16, 4); TB = a(16, 4); HO = F8b
        else:
            SEL = [a(4, 4)]; F8b = a(4, 4); PHI = [a(4, 4), a(4, 4)]; PF = a(32, 4); HO = F8a
        vJ = a(4)
        sys.stderr.write("%s VGPRs: %d\n" % (role, a.n))
        sp1 = o["sp1"]; abl = str(o.get("abl", ""))
        tmp = ACC[0]
        def run4(pre, vb, srdn, tok, after, sp=None, so=sM):
            for q in range(4):
                B(f"{pre if q == 0 else ''}\nbuffer_load_dwordx4 {v(vb+q)}, {srdn}, {so} offen offset:{1024*q} lds", tok, after, sp)
        def dma_x(i, after, sp=None, ks=(0, 1)):
            for k in ks: run4(f"s_add_u32 m0, {sW8K}, {R[i]+k*4096}\ns_add_u32 {sM}, {sXB[i]}, {sXK[k]}", vXD, sX, ("x", i), after, sp)
        s("s_cmp_ge_u32 s2, 256\ns_cbranch_scc1 L_end")
        s("s_load_dwordx16 s[40:55], s[0:1], 0\ns_load_dwordx8 s[56:63], s[0:1], 64")
        if o["stamps"]: s("s_memrealtime s[100:101]")
        s(f"s_lshr_b32 {sI}, s2, 3")
        if o["warmc"] == 1:
            s(f"s_getpc_b64 s[72:73]\nL_pc:\ns_sub_u32 s72, s72, L_pc-{NAME}_kernel\ns_subb_u32 s73, s73, 0", glue=True)
            s(f"s_lshl_b32 {sA}, {sI}, 11\nv_lshrrev_b32 v1, 4, v0\nv_lshl_add_u32 v1, v1, 7, {sA}\nv_min_u32 v1, L_end-{NAME}_kernel, v1")
            s(f"global_load_dword {v(XR+4)}, v1, s[72:73]")
        s(f"v_lshrrev_b32 v1, 6, v0\nv_and_b32 v0, 63, v0\nv_readfirstlane_b32 {sWV}, v1\nv_lshlrev_b32 v1, 4, v0")
        s(f"s_and_b32 {sA}, s2, 7\ns_lshr_b32 {sROT}, {sI}, 2\ns_and_b32 {sU}, {sI}, 3")
        s(f"s_and_b32 {sT}, {sA}, 1\ns_lshl3_add_u32 {sT}, {sT}, {sROT}\ns_lshr_b32 {sQ4}, {sA}, 1")
        if o.get("p2x", 1):
            s(f"s_andn2_b32 {sC}, 1, {sA}\ns_lshl2_add_u32 {sA}, {sC}, {sQ4}")
        s(f"s_lshr_b32 {sC}, {sI}, 3\ns_lshl2_add_u32 {sTT}, {sA}, {sC}")
        s(f"s_lshl2_add_u32 {sA}, {sT}, {sQ4}\ns_lshl_b32 {sXB[0]}, {sA}, 15")
        s(f"s_lshl2_add_u32 {sD}, {sU}, {sWV}\ns_lshl_b32 {sA}, {sD}, 11\ns_add_u32 {sSO[0]}, {sXB[0]}, {sA}")
        s(f"s_lshl_b32 {sSTB}, {sT}, 11\ns_add_u32 {sSTB}, {sSTB}, {WS_STATS}\ns_lshl4_add_u32 {sD}, {sQ4}, {sD}\ns_lshl_b32 {sD}, {sD}, 5\ns_add_u32 {sFL}, {sD}, {sSTB}")
        s(f"v_and_b32 {v(vOUT)}, 0x70, v1\nv_and_b32 v3, 0x30, v0\nv_xor_b32 v2, {v(vOUT)}, v3\nv_lshrrev_b32 v3, 3, v0\nv_lshl_add_u32 v3, v3, 10, v2")
        for q in range(3, 0, -1):
            s(f"v_xor_b32 {v(vXD+q)}, {64*(q&1)}, v3\nv_add_u32 {v(vXD+q)}, {7168*q}, {v(vXD+q)}")
        s(f"s_lshl_b32 {sW8K}, {sWV}, 13\ns_lshl1_add_u32 {sA}, {sWV}, {sROT}\ns_lshl_b32 {sA}, {sA}, 7\ns_and_b32 {sXK[0]}, {sA}, 0x380\ns_add_u32 {sA}, {sA}, 128\ns_and_b32 {sXK[1]}, {sA}, 0x380")
        s(f"s_mov_b32 s10, {2048*1024}\ns_mov_b32 s11, 0x20000\ns_mov_b32 s18, 0x10000000\ns_mov_b32 s19, 0x20000")
        def ppat():
            s(f"s_and_b32 {sJ}, {sU}, 1\ns_lshl1_add_u32 {sJ}, {sQ4}, {sJ}\ns_lshl_b32 {sE1}, {sWV}, 12")
            s(f"s_mov_b32 s70, {pack(FFN_BLK0[:4])}\ns_mov_b32 s71, {pack(FFN_BLK0[4:])}\ns_lshl_b32 {sC}, {sJ}, 3\ns_lshr_b64 s[70:71], s[70:71], {sC}\ns_and_b32 {sBLKP}, s70, 0xff")
            s(f"s_lshl_b32 {sPCOL}, {sBLKP}, 6\ns_lshl_b32 {sD}, {sJ}, 7\ns_add_u32 {sD}, {sD}, 1024\ns_movk_i32 {sA}, 2752\ns_movk_i32 {sC}, 128\ns_mov_b32 s15, 0x20000")
            s(f"s_cmp_lt_u32 {sU}, 2\ns_cselect_b32 {sPCOL}, {sD}, {sPCOL}\ns_cselect_b32 {sA}, 3072, {sA}\ns_cselect_b32 {sB}, 1, 2\ns_cselect_b32 {sC}, 1024, {sC}\ns_cselect_b32 {sE0}, 7, 5", glue=True)
            s(f"s_lshl_b32 s14, {sA}, 9\ns_mul_i32 {sD}, {sWV}, {sA}\ns_mov_b32 {sSO[1]}, {sPCOL}\ns_lshl4_add_u32 {sPCOL}, {sD}, {sPCOL}\ns_lshl_b32 {sBLKS}, {sA}, 6")
            s(f"v_lshrrev_b32 {v(vT0)}, 4, v0\nv_and_b32 {v(vT1)}, 15, v0\nv_lshlrev_b32 {v(vT3)}, {sB}, {v(vT0)}\nv_xor_b32 {v(vT1)}, {v(vT1)}, {v(vT3)}")
            s(f"v_mul_u32_u24 {v(vT0)}, {sA}, {v(vT0)}\nv_lshrrev_b32 {v(vT3)}, 3, {v(vT1)}\nv_mad_u32_u24 {v(vT0)}, {v(vT3)}, {sC}, {v(vT0)}\nv_and_b32 {v(vT1)}, 7, {v(vT1)}")
            s(f"v_lshl_add_u32 {v(vPD)}, {v(vT1)}, 4, {v(vT0)}\ns_lshl_b32 {sA}, {sA}, 2\ns_sub_u32 {sA}, {sA}, 1024")
            for q in range(1, 4): s(f"v_add_u32 {v(vPD+q)}, {sA}, {v(vPD+q-1)}")
        if o["pgo"]: ppat()
        if o["warmc"] >= 2:
            s(f"s_lshl2_add_u32 {sA}, {sI}, {sWV}\ns_mul_i32 {sA}, {sA}, 384\ns_min_u32 {sA}, {sA}, L_end-{NAME}_kernel-384")
            s(f"s_getpc_b64 s[72:73]\nL_pc:\ns_sub_u32 s72, s72, L_pc-{NAME}_kernel\ns_subb_u32 s73, s73, 0\ns_add_u32 s72, s72, {sA}\ns_addc_u32 s73, s73, 0", glue=True)
        s("s_waitcnt lgkmcnt(0)"); self.stamp(s, "go")
        s("s_mov_b64 s[8:9], s[40:41]\ns_mov_b64 s[16:17], s[62:63]"); s.mark("go")
        if o["stag"]: s(f"s_load_dword {sBA}, s[62:63], 0")
        assert not o["sw"] & 9 and o["warmc"] < 2 and o["stag"]
        def stouch(base, off):
            s(f"s_load_dword {sBB}, s[{base}:{base+1}], {off}"); s[-1].wr = [("s", "junk%d" % len(s))]
        if o["sw"] & 1:
            s(f"s_lshl2_add_u32 {sA}, {sI}, {sWV}\ns_lshl_b32 {sB}, {sA}, 7"); stouch(44, sB)
            s(f"s_add_u32 {sB}, {sB}, 64\ns_min_u32 {sC}, {sA}, 42\ns_lshl_b32 {sC}, {sC}, 6"); stouch(44, sB); stouch(52, sC)
            s(f"s_and_b32 {sC}, {sC}, 0x3c0"); stouch(56, sC)
        if o["sw"] & 2: stouch(62, sFL)
        if o["sw"] & 4:
            s(f"s_lshl2_add_u32 {sA}, s2, {sWV}\ns_min_u32 {sA}, {sA}, 383\ns_lshl_b32 {sA}, {sA}, 6\ns_add_u32 {sA}, {sA}, {WS_FL1}"); stouch(62, sA)
        if o["sw"] & 8:
            s(f"s_lshl2_add_u32 {sA}, s2, {sWV}\ns_bfe_u32 {sB}, {sA}, 0x50004\ns_and_b32 {sA}, {sA}, 15\ns_mul_i32 {sB}, {sB}, {KVREC}\ns_lshl_b32 {sA}, {sA}, 6\ns_add_u32 {sA}, {sA}, {sB}\ns_add_u32 {sA}, {sA}, {WS_KVP+16384}"); stouch(62, sA)
        if o["warmc"] >= 2:
            for k in range(0, 6, o["warmc"] - 1): s(f"s_load_dword {sBB}, s[72:73], {64*k}"); s[-1].wr = [("s", "junk%d" % k)]
        for r in range(2): B(f"buffer_load_dwordx4 {v(tmp+4*r,4)}, {v(vL16)}, {sX}, {sSO[0]} offen offset:{1024*r}", "rows", "go", sp=8)
        if not o["stag"]: B(f"buffer_load_dword {v(vTAG)}, {v(vXD0)}, {sWS}, 0 offen sc1", "tag", sp=8)
        if o["xa"]: dma_x(0, None, o["sp0"], (0,))
        if not o["pgo"]: ppat()
        s(f"s_cmp_lt_u32 {sU}, 2\ns_cselect_b64 s[12:13], s[42:43], s[50:51]", glue=True)
        s.mark("pd")
        def dma_p(ci, after=None):
            mul = sBLKS if ci == 0 else 64 * stride
            run4(f"s_add_u32 {sM}, {sROT}, {ci}\ns_and_b32 {sM}, {sM}, 7\ns_mul_i32 {sM}, {sM}, {mul}\ns_add_u32 m0, {sE1}, {R[1]+ci*16384}\ns_add_u32 {sM}, {sM}, {sPCOL}", vPD, sW, ("p", ci), after, sp1 if ci else 16)
        dma_p(0, "pd")
        if not o["xa"]: dma_x(0, None, o["sp0"], (0,))
        s(f"v_and_b32 {v(vT0)}, 31, v0\nv_lshlrev_b32 {v(vN16)}, 4, {v(vT0)}\nv_lshlrev_b32 {v(vT1)}, 7, {v(vT0)}")
        s(f"v_bfe_u32 {v(vT0)}, v0, 1, 3\nv_lshrrev_b32 {v(vT2)}, 5, v0\nv_xor_b32 {v(vT0)}, {v(vT0)}, {v(vT2)}\nv_lshl_add_u32 {v(vXR)}, {v(vT0)}, 4, {v(vT1)}")
        for cq in range(1, 4): s(f"v_xor_b32 {v(vXR+cq)}, {32*cq}, {v(vXR)}")
        yR, yP, yF, yH, x0, x1 = (ACC[1] + i for i in range(6))
        s(f"v_bfe_u32 {v(yR)}, v0, 2, 2\nv_bfe_u32 {v(yP)}, v0, 4, 1\ns_add_u32 {sB}, {sB}, 4")
        s(f"v_and_b32 {v(yF)}, 16, {v(vL16)}\nv_and_b32 {v(yH)}, 2, v0\nv_lshl_add_u32 {v(yF)}, {v(yH)}, 2, {v(yF)}\nv_lshl_add_u32 {v(yH)}, {v(vT2)}, 3, {v(yR)}")
        s(f"v_xor_b32 {v(x0)}, {sWV}, {v(yR)}\nv_lshl_add_u32 {v(x0)}, {v(x0)}, {sB}, {v(yF)}\nv_lshl_add_u32 {v(x0)}, {v(yP)}, {sE0}, {v(x0)}")
        s(f"v_cmp_eq_u32 vcc, {v(yR)}, {v(yP)}\nv_mov_b32 {v(vT1)}, 0x3f803f80")
        s(f"v_lshl_add_u32 {v(x0)}, {v(yH)}, 8, {v(x0)}\nv_add_u32 {v(vPR)}, {R[1]}, {v(x0)}\nv_add_u32 {v(vPR+1)}, {R[3]}, {v(x0)}")
        for i in range(4): s(f"v_cndmask_b32 {v(CSEL+i)}, 0, {v(vT1)}, vcc")
        if o["cbmix"]: s(f"s_lshr_b32 {sCB}, {sI}, 3\ns_lshl1_add_u32 {sCB}, {sCB}, {sI}")
        s(f"s_xor_b32 {sCB}, {sI}, {o['cbx']}\ns_and_b32 {sCB}, {sCB}, 7\ns_lshl_b32 {sCB}, {sCB}, 7\ns_lshl_b32 {sW16K}, {sWV}, 14\nv_mov_b32 {v(vZ)}, 0")
        s(f"s_and_b32 {sA}, {sWV}, 1\ns_cmp_eq_u32 {sA}, 1\ns_cselect_b64 {sPAR}, -1, 0")
        for i in range(4):
            s(f"s_add_u32 {sA}, {sQ4}, {i}\ns_and_b32 {sA}, {sA}, 3\ns_lshl2_add_u32 {sA}, {sT}, {sA}")
            if i: s(f"s_lshl_b32 {sXB[i]}, {sA}, 15")
            s(f"s_mul_i32 {sAB[i]}, {sA}, {TBSTR}\ns_add_u32 {sAB[i]}, {sAB[i]}, {WS_ACT}")
        srd(s, sB2, 56, 1024)
        srd(s, sW2, 54, 1376 * 1024); srd(s, sWo, 46, 512 * 1024); srd(s, sOut, 58, 2048 * 1024)
        tl.straight(s); s = Stream()
        while tl.bi < len(tl.bg): tl.emit_bg(True)
        s(f"s_cmp_ge_u32 {sU}, 2\ns_cbranch_scc1 L_ffn\nL_split:", glue=True)
        if kP:
            s(f"s_lshl2_add_u32 {sHK}, {sJ}, {sWV}\ns_lshl_b32 {sD}, {sBLKP}, 6\ns_add_u32 {sD}, {sD}, 256")
            s(f"s_lshr_b32 {sB}, {sWV}, 1\ns_add_u32 {sBLKS}, {sBLKP}, {sB}\ns_add_u32 {sBLKS}, {sBLKS}, 4")
        else:
            s(f"s_add_u32 {sA}, {sJ}, {o['qx']}\ns_and_b32 {sA}, {sA}, 7\ns_lshl_b32 {sD}, {sA}, 7\ns_lshl2_add_u32 {sHD}, {sA}, {sWV}\ns_add_u32 {sBLKP}, {sBLKP}, {sWV}")
        srd(s, sAux, 44, 32 * 512)
        t0, t2 = G4, G4 + 1
        s(f"v_and_b32 {v(t0)}, 0x13, v0\nv_and_b32 {v(t2)}, 4, v0\nv_lshl_add_u32 {v(t0)}, {v(t2)}, 1, {v(t0)}\nv_bfe_u32 {v(t2)}, v0, 3, 1\nv_lshl_add_u32 {v(t0)}, {v(t2)}, 2, {v(t0)}")
        s(f"v_and_b32 {v(t2)}, 32, v0\nv_lshl_add_u32 {v(t0)}, {v(t2)}, 8, {v(t0)}\nv_lshlrev_b32 {v(t0)}, 1, {v(t0)}")
        s.mark("aux")
        sWS2 = sB2
        B(f"buffer_load_dwordx4 {v(B2,4)}, {v(vOUT)}, {sB2}, {sCB} offen", None, "aux", sp=16)
        B(f"s_mov_b64 s[36:37], s[52:53]\ns_movk_i32 s38, 2752\ns_lshl_b32 {sM}, {sBLKS if kP else sBLKP}, 6\nbuffer_load_ushort {v(vB1)}, {v(t0)}, {sB2}, {sM} offen", sp=16)
        B(f"s_mov_b64 s[36:37], s[{50 if kP else 42}:{51 if kP else 43}]\ns_mov_b32 s38, {512*strS}\n"
          f"s_lshr_b32 {sM}, {sHD}, 1\ns_add_u32 m0, {sE1}, {SCR}\ns_lshl_b32 {sM}, {sM}, 10\nbuffer_load_dwordx4 {v(vL16)}, {sAux}, {sM} offen lds", "b2", sp=16)
        w1 = vJ + 1
        def warm3(pos):
            if o["warmm"] != pos or (o["wA"] and not kP): return
            wa, wd = (vFL, vFL + 1) if 2 <= pos <= 4 else (XR, XR + 1); m = 2 if o["wA"] else 1
            wid = f"s_and_b32 {sN}, s2, 15\ns_lshl4_add_u32 {sN}, {sROT}, {sN}\ns_lshl2_add_u32 {sN}, {sN}, {sWV}" if o["wA"] else f"s_lshl2_add_u32 {sN}, s2, {sWV}"
            B(f"v_min_u32 {v(wa)}, {11*m-1}, v0\nv_lshlrev_b32 {v(wa)}, 7, {v(wa)}\n{wid}\ns_mul_i32 {sM}, {sN}, {11*128*m}\nbuffer_load_dword {v(wd)}, {v(wa)}, {sW2}, {sM} offen", None, "stok" if 2 <= pos <= 4 else None, sp=16)
            tl.bg[-1].ins[-1].wr = []
            B(f"v_min_u32 {v(wa)}, {(4*m-1)*128}, {v(wa)}\ns_lshl_b32 {sM}, {sN}, {8+m}\nbuffer_load_dword {v(wd)}, {v(wa)}, {sWo}, {sM} offen", sp=32)
        def warmq(pos):
            if o["wq"] != pos or not kP: return
            B(f"v_and_b32 {v(XR+2)}, 15, v0\nv_lshrrev_b32 {v(XR+3)}, 1, {v(XR+2)}\nv_mul_u32_u24 {v(XR+3)}, 3072, {v(XR+3)}\nv_and_b32 {v(XR+2)}, 1, {v(XR+2)}\nv_lshl_add_u32 {v(XR+2)}, {v(XR+2)}, 7, {v(XR+3)}\n"
              f"s_and_b32 {sM}, {sI}, 1\ns_lshl1_add_u32 {sM}, {sROT}, {sM}\ns_lshl2_add_u32 {sM}, {sM}, {sWV}\ns_mul_i32 {sM}, {sM}, {8*3072}\n"
              f"s_lshl_b32 {sN}, {sQ4}, 8\ns_add_u32 {sN}, {sN}, {128*o['qx']}\ns_and_b32 {sN}, {sN}, 0x3ff\ns_add_u32 {sM}, {sM}, {sN}\nbuffer_load_dword {v(XR+3)}, {v(XR+2)}, {sW}, {sM} offen", sp=16)
        warm3(5); dma_x(0, "su", sp1, (1,)); warm3(6)
        def stats_ld(i, r):
            return f"s_add_u32 {r}, {sQ4}, {i}\ns_and_b32 {r}, {r}, 3\ns_lshl_b32 {r}, {r}, 9\ns_add_u32 {r}, {r}, {sSTB}\nbuffer_load_dwordx4 {v(ST+4*i,4)}, {v(vN16)}, {sWS}, {r} offen sc1"
        for ci in range(1, 9):
            if ci == o["s0p"]: B(stats_ld(0, sM), "stat0", "b%d" % o["s0"], sp=32)
            if ci < 8: dma_p(ci, "phi" if ci == 7 else None)
            if ci == 7: warm3(7); warmq(1)
        if True:
            s(f"v_bfe_u32 {v(x0)}, v0, 1, 1\nv_lshl_add_u32 {v(x0)}, {v(yP)}, 1, {v(x0)}\nv_lshlrev_b32 {v(x0)}, 3, {v(x0)}\nv_lshl_add_u32 {v(x0)}, {v(yH)}, 5, {v(x0)}")
            s(f"s_and_b32 {sC}, s98, 0x200\ns_add_u32 {sA}, {sE1}, {sC}\ns_add_u32 {sA}, {sA}, {SCR}")
            s(f"v_add_u32 {v(vJ)}, {sA}, {v(x0)}\nv_xor_b32 {v(vJ+1)}, 0x200, {v(vJ)}"); s.mark("pha")
        s(f"s_movk_i32 {sB}, {strS}")
        for k in range(2):
            s(f"s_add_u32 {sA}, {sWV}, {sROT}\ns_add_u32 {sA}, {sA}, {4*k}\ns_and_b32 {sA}, {sA}, 7\ns_mul_i32 {sA}, {sA}, {64*strS}\ns_add_u32 {sSO[k]}, {sA}, {sD}")
        def dma_s(half, after):
            for k in range(2): run4(f"s_add_u32 m0, {sW8K}, {R[4-4*half]+k*4096}\ns_add_u32 {sM}, {sSO[half]}, {32*strS*k}", vSD, sWS2, ("s", half), after, o["sps%d" % half])
        s(f"v_lshrrev_b32 {v(vT0)}, 3, v0\nv_lshlrev_b32 {v(vT1)}, 2, v0\nv_and_b32 {v(vT1)}, 64, {v(vT1)}\nv_xor_b32 {v(vT1)}, {v(vT1)}, {v(vOUT)}")
        s(f"v_mad_u32_u24 {v(vSD)}, {v(vT0)}, {sB}, {v(vT1)}")
        if kP and o["z5"]:
            five = sum(1 << i for i, n in enumerate(FFN_NBLK) if n == 5)
            s(f"s_lshr_b32 {sC}, {five}, {sJ}\ns_and_b32 {sC}, {sC}, 1\ns_lshl_b32 {sC}, {sC}, 6\nv_and_b32 {v(vSD+1)}, {sC}, {v(vT1)}\nv_lshl_add_u32 {v(vSD)}, {v(vSD+1)}, 20, {v(vSD)}")
        for q in range(1, 4): s(f"v_add_u32 {v(vSD+q)}, {q*(8*strS-1024)}, {v(vSD)}")
        s(f"v_lshl_add_u32 {v(vWD+3)}, {v(vT0)}, 10, {v(vT1)}")
        if kP:
            s(f"v_lshl_add_u32 {v(vT3)}, {v(vT2)}, 9, {v(vN16)}\nv_lshlrev_b32 {v(vT2)}, 5, {v(vT2)}\nv_add_u32 {v(vT2)}, 0x400, {v(vT2)}")
            s(f"v_cmp_gt_u32 vcc, 0x100, {v(vN16)}\nv_add_u32 {v(vT0)}, 16, {v(vT2)}\nv_add_u32 {v(vT1)}, 0x100, {v(vT3)}")
            s(f"v_cndmask_b32 {v(vKA)}, {v(vT2)}, {v(vT3)}, vcc\nv_cndmask_b32 {v(vKA+1)}, {v(vT0)}, {v(vT1)}, vcc")
        s(f"v_lshrrev_b32 {v(x0)}, 1, {v(yR)}\nv_lshl_add_u32 {v(x0)}, {v(x0)}, 6, {v(yF)}\nv_lshl_add_u32 {v(x0)}, {v(yP)}, 5, {v(x0)}\nv_lshl_add_u32 {v(x0)}, {v(yH)}, 7, {v(x0)}")
        s(f"v_lshrrev_b32 {v(vWR)}, 4, v0\nv_lshl_add_u32 {v(vWR)}, {v(vWR)}, 3, {v(yR)}\nv_and_b32 {v(x1)}, 2, {v(yR)}\nv_or_b32 {v(x1)}, {v(x1)}, {v(yP)}")
        s(f"v_lshl_add_u32 {v(vWR)}, {v(vWR)}, 2, {v(x1)}\nv_and_b32 {v(x1)}, 3, v0\nv_lshl_add_u32 {v(vWR)}, {v(vWR)}, 2, {v(x1)}\nv_lshlrev_b32 {v(vWR)}, 3, {v(vWR)}")
        if qS: s(f"s_lshl_b32 {sA}, {sWV}, 5")
        else: s(f"s_and_b32 {sA}, {sWV}, 2\ns_lshl_b32 {sA}, {sA}, 5")
        s(f"v_xor_b32 {v(x0)}, {sA}, {v(x0)}\nv_add_u32 {v(vSR)}, {R[4]}, {v(x0)}")
        if kP:
            if o["kz"] == 0:
                for i in range(4): s(f"v_mov_b32 {v(ONES+i)}, 0x3f803f80")
            elif o["kz"] == 1:
                for i in range(8): s(f"v_mov_b32 {v(F8b+i)}, 0x3f803f80")
            else:
                s(f"v_lshrrev_b32 {v(ONES)}, 4, v0\nv_cmp_eq_u32 vcc, 1, {v(ONES)}\nv_mov_b32 {v(ONES)}, 0\nv_mov_b32 {v(ONES+3)}, 0")
                s(f"v_cndmask_b32 {v(ONES+1)}, 0, 1.0, vcc\nv_lshrrev_b32 {v(ONES+2)}, 16, {v(ONES+1)}")
        s(f"v_and_b32 {v(vFA)}, {15 if qS else 7}, v0\nv_lshlrev_b32 {v(vFA)}, 3, {v(vFA)}")
        if True:
            s(f"v_bfe_u32 {v(vT0)}, v0, 2, 1\nv_lshrrev_b32 {v(vT2)}, 5, v0\nv_cmp_eq_u32 vcc, {v(vT0)}, {v(vT2)}")
            s(f"v_and_b32 {v(vT0)}, 16, {v(vL16)}\nv_mov_b32 {v(vT2)}, 0x3f80\nv_lshlrev_b32 {v(vT2)}, {v(vT0)}, {v(vT2)}\nv_cndmask_b32 {v(vT2)}, 0, {v(vT2)}, vcc")
            s(f"v_bfe_u32 {v(vT0)}, v0, 1, 1\nv_bfe_u32 {v(vT3)}, v0, 3, 2\nv_lshl_add_u32 {v(vT0)}, {v(vT3)}, 1, {v(vT0)}")
            for i in range(0, 4 * len(SEL), 2):
                s(f"v_cmp_eq_u32 vcc, {i}, {v(vT0)}\nv_cmp_eq_u32 s[70:71], {i+1}, {v(vT0)}")
                s(f"s_nop 0\nv_cndmask_b32 {v(SEL[i>>2]+(i&3))}, 0, {v(vT2)}, vcc\nv_cndmask_b32 {v(SEL[i>>2]+(i&3)+1)}, 0, {v(vT2)}, s[70:71]")
            if qS: s(f"s_lshl_b32 {sFK}, {sHD}, 7\ns_add_u32 {sFK}, {sFK}, {WS_FL1}")
        s.mark("su")
        s.waittok("rows", ahead=o["ah0"]); self.stamp(s, "rows")
        q = ST
        s(f"v_mov_b32 {v(vT1)}, 0x3f803f80")
        for i in range(4): s(f"v_mov_b32 {v(q+i)}, 0")
        for i in range(4):
            for r in range(2):
                s(f"v_dot2c_f32_bf16 {v(q+r)}, {v(tmp+4*r+i)}, {v(vT1)}\nv_dot2c_f32_bf16 {v(q+2+r)}, {v(tmp+4*r+i)}, {v(tmp+4*r+i)}")
        if o["stag"]: s(f"s_mov_b32 {sA}, {sBA}\nv_lshrrev_b32 {v(vT0)}, 1, v0")
        else:
            s.waittok("tag")
            s(f"v_readfirstlane_b32 {sA}, {v(vTAG)}\nv_lshrrev_b32 {v(vT0)}, 1, v0")
        s(f"v_permlane32_swap_b32 {v(q)}, {v(q+1)}\nv_permlane32_swap_b32 {v(q+2)}, {v(q+3)}")
        s(f"v_add_f32 {v(q)}, {v(q)}, {v(q+1)}\nv_add_f32 {v(q+2)}, {v(q+2)}, {v(q+3)}\ns_add_u32 {sA}, {sA}, 0x{TAGC:x}")
        s(f"v_mov_b32 {v(vTAG)}, {sA}\nv_permlane16_swap_b32 {v(q)}, {v(q+2)}\nv_add_f32 {v(q)}, {v(q)}, {v(q+2)}")
        s(f"v_mov_b32 {v(vTAG+1)}, {sA}\nv_mov_b32 {v(q+1)}, {sA}")
        for m in ("quad_perm:[1,0,3,2]", "quad_perm:[2,3,0,1]", "row_half_mirror", "row_mirror"):
            s(f"v_add_f32_dpp {v(q)}, {v(q)}, {v(q)} {m} {DPPM}")
        s(f"s_mov_b32 exec_lo, 0x00010001\ns_mov_b32 exec_hi, 0x00010001\nbuffer_store_dwordx2 {v(q,2)}, {v(vT0)}, {sWS}, {sFL} offen sc1\ns_mov_b64 exec, -1", glue=True)
        self.stamp(s, "st")
        s(f"s_lshr_b32 {sFL}, {sTT}, 1\ns_lshl4_add_u32 {sFL}, {sFL}, {sWV}\ns_lshl_b32 {sFL}, {sFL}, 6\ns_add_u32 {sFL}, {sFL}, {WS_FL2}")
        s(f"s_lshl_b32 {sC}, {sWV}, 3")
        for d, tb in ((sBA, FFN_BLK0[0::2]), (sBB, FFN_BLK0[1::2]), (sBS[0], [x[0] for x in SBL]), (sBS[1], [x[1] for x in SBL]), (sBS[2], [x[2] for x in SBL])):
            s(f"s_lshr_b32 {d}, {pack(tb)}, {sC}\ns_and_b32 {d}, {d}, 0xff\ns_lshl_b32 {d}, {d}, 11")
        s.waittok("b2")
        if True:
            for hs in range(len(PHI)):
                for e in range(2): s(f"ds_read_b64_tr_b16 {v(PHI[hs]+2*e,2)}, {v(vJ+(hs&1))} offset:{e*128+(hs>>1)*1024}", tok="phr")
        s(f"v_lshrrev_b32 {v(vT0)}, 3, v0\nv_lshl_add_u32 {v(vOUT)}, {v(vT0)}, 10, {v(vOUT)}")
        if not qS:
            six = sum(1 << i for i, n in enumerate(FFN_NBLK) if n == 6)
            s(f"s_lshr_b32 {sC}, {six}, {sJ}\ns_lshr_b32 {sA}, {sWV}, 1\ns_andn2_b32 {sC}, {sA}, {sC}\ns_and_b32 {sC}, {sC}, 1\ns_lshl_b32 {sC}, {sC}, 18\ns_or_b32 {sBLKS}, {sBLKS}, {sC}")
        if True:
            s(f"v_and_b32 {v(vT2)}, 4, v0\nv_cmp_ne_u32 vcc, 0, {v(vT2)}\nv_mov_b32 {v(vT3)}, 0x80008000\ns_nop 0\nv_cndmask_b32 {v(vT3)}, 0, {v(vT3)}, vcc")
            for i in range(4 * len(PHI)): s(f"v_xor_b32 {v(PHI[i>>2]+(i&3))}, {v(vT3)}, {v(PHI[i>>2]+(i&3))}")
        def stats_ld(i, r):
            return f"s_add_u32 {r}, {sQ4}, {i}\ns_and_b32 {r}, {r}, 3\ns_lshl_b32 {r}, {r}, 9\ns_add_u32 {r}, {r}, {sSTB}\nbuffer_load_dwordx4 {v(ST+4*i,4)}, {v(vN16)}, {sWS}, {r} offen sc1"
        def xread(st, un, region, ks):
            st(f"ds_read_b128 {v(XF+4*(ks%NX),4)}, {v(vXR+(ks&3))} offset:{region+(ks>>2)*4096}", tok=("xf", un, ks))
        def stat_consts(st, i):
            m, va = ST + 4 * i, ST + 4 * i + 2; k = KC[i]
            st(f"v_mul_f32 {v(m)}, {f2u(1/512)}, {v(m)}\nv_mul_f32 {v(va)}, {f2u(1/512)}, {v(va)}\nv_fma_f32 {v(va)}, -{v(m)}, {v(m)}, {v(va)}\nv_max_f32 {v(va)}, 0, {v(va)}")
            st(f"v_add_f32 {v(va)}, {f2u(1e-5)}, {v(va)}\nv_sqrt_f32 {v(va)}, {v(va)}\nv_mov_b32 {v(m+3)}, 0")
            st(f"v_cvt_pk_bf16_f32 {v(m+1)}, -{v(m)}, {v(va)}\nv_rcp_f32 {v(k)}, {v(va)}")
            st(f"v_lshlrev_b32 {v(vT0)}, 16, {v(m+1)}\nv_and_b32 {v(vT1)}, 0xffff0000, {v(m+1)}")
            st(f"v_sub_f32 {v(m)}, -{v(m)}, {v(vT0)}\nv_sub_f32 {v(vT1)}, {v(va)}, {v(vT1)}")
            if kP: st(f"v_mul_f32 {v(k+1)}, {f2u(LOG2E)}, {v(k)}\nv_mov_b32 {v(k+2)}, {v(va)}")
            else:
                st(f"v_mov_b32 {v(k+2)}, {v(va)}\nv_mul_f32 {v(k+1)}, {v(k)}, {v(k)}\nv_mul_f32 {v(k)}, {f2u(K0)}, {v(k)}")
                st(f"v_mul_f32 {v(k+1)}, {v(k+1)}, {v(k)}\nv_mul_f32 {v(k+1)}, {f2u(0.044715)}, {v(k+1)}")
            st(f"v_cvt_pk_bf16_f32 {v(m)}, {v(vT0)}, {v(m)}\nv_cvt_pk_bf16_f32 {v(m+2)}, {v(vT1)}, 0")
        def corr_pre(st, which):
            c = CA[which]
            st(f"v_mov_b32 {v(c+3)}, 0\nv_mov_b32 {v(c+2)}, {v(vB1) if which == kP else 0}")
            if which == kP: st(f"v_lshlrev_b32 {v(vB1)}, 16, {v(vB1)}")
        def corr_a(st, which):
            c = CA[which]
            st(f"v_cvt_pk_bf16_f32 {v(c)}, {v(CS)}, {v(CS)}\nv_lshlrev_b32 {v(vT1)}, 16, {v(c)}\nv_sub_f32 {v(vT0)}, {v(CS)}, {v(vT1)}")
            st(f"v_cvt_pk_bf16_f32 {v(c+1)}, {v(vT0)}, {v(vB1) if which == kP else 0}")
        def spin(st, test, reload_, name):
            lp, ok = self.lab("poll"), self.lab("ok")
            st(test + f"\ns_cbranch_vccz {ok}", glue=True)
            st(f"s_mov_b32 {sC}, 0", cond=True)
            st(lp + ":")
            slp = o["slp"] if name in ("fO", "fS") else o["slpK"]
            if slp: st(f"s_sleep {slp}", cond=True)
            st(reload_, cond=True)
            st(f"s_add_u32 {sC}, {sC}, 1\ns_cmp_gt_u32 {sC}, 100000\ns_cbranch_scc1 {ok}\ns_waitcnt vmcnt(0)", cond=True)
            st(test + f"\ns_nop 4\ns_cbranch_vccnz {lp}", cond=True)
            st(ok + ":\ns_nop 0"); st.mark(name); self.stamp(st, name)
        corr_pre(s, 0); corr_pre(s, 1); s.mark("phi")
        tl.straight(s); s = Stream()
        dma_x(1, "b3", sp1); warm3(8); warmq(2)
        for i in range(1, 4): B(stats_ld(i, sM), "stats", "b%d" % o["s1"], sp=32)
        dma_x(2, o["x2a"], o["spx"])
        if not o["xord"]: dma_x(3, "b7", o["spx3"])
        lag = o["lag"]
        Mp = []
        def mf(kp): return f"{MF} {v(ACC[0],16)}, {ag(4*kp,4)}, {v(XF+4*(kp%NX),4)}, {v(ACC[0],16) if kp else 0}"
        def mf16(kp): return f"{MF16} {v(CS,4)}, {v(CSEL,4)}, {ag(4*kp,4)}, {v(CS,4) if kp else 0}"
        def pread(g, ks):
            ci, kk = ks >> 2, ks & 3
            for e in range(2):
                g(f"ds_read_b64_tr_b16 {ag(4*ks+2*e,2)}, {v(vPR+(ci>>2))} offset:{(ci&3)*16384+kk*4096+e*1024}", tok=("pf", ks))
        def grp(f):
            g = Stream(); f(g); Mp.append(g)
        g = Stream()
        for ks in range(32 if o["p1v"] == 0 else 0):
            ci, kk = ks >> 2, ks & 3; kp = ks - lag
            if kk == 0:
                if ci == 0: g.waittok(("x", 0), ("p", 0), ahead=o["ah0b"], lat=o["plat0"]); self.stamp(g, "x0")
                else: g.waittok(("p", ci), ahead=o["ahead"], lat=o["plat"])
                g("s_barrier"); g.mark("b%d" % ci); self.stamp(g, "b%d" % ci)
            if kp >= 0: g.waittok(("xf", 0, kp), lat=0); g(mf(kp))
            pread(g, ks); xread(g, 0, 0, ks)
            if ks == 31: g.mark("prd")
            Mp.append(g); g = Stream()
            if kp >= 0 and ("b" not in abl or kp < 2): g(mf16(kp)); Mp.append(g); g = Stream()
        for ci in range(8 if o["p1v"] else 0):
            k0 = 4 * ci
            g = Stream()
            if ci == 0: g.waittok(("x", 0), ("p", 0), ahead=o["ah0b"], lat=o["plat0"]); self.stamp(g, "x0")
            else: g.waittok(("p", ci), ahead=o["ahead"], lat=o["plat"])
            g("s_barrier"); g.mark("b%d" % ci); self.stamp(g, "b%d" % ci)
            for h in range(2):
                if ci: g(mf(k0 - 2 + h))
                else: xread(g, 0, 0, 2 * h); xread(g, 0, 0, 2 * h + 1)
                pread(g, k0 + 2 * h); pread(g, k0 + 2 * h + 1)
                if ci == 7 and h: g.mark("prd")
                Mp.append(g); g = Stream()
                if ci: grp(lambda g: g(mf16(k0 - 2 + h)))
            if ci == 7: break
            for h in range(2):
                if h == 0: g.waittok(("pf", k0 + 1), lat=0)
                g(mf(k0 + h)); xread(g, 0, 0, k0 + 4 + 2 * h); xread(g, 0, 0, k0 + 5 + 2 * h)
                Mp.append(g); g = Stream()
                if h: g.waittok(("pf", k0 + 3), lat=0)
                g(mf16(k0 + h)); Mp.append(g); g = Stream()
        x = s
        x.waittok("stat0")
        spin(x, f"v_xor_b32 {v(vT0)}, {v(vTAG)}, {v(ST+1)}\nv_xor_b32 {v(vT1)}, {v(vTAG)}, {v(ST+3)}\nv_cmp_ne_u64 vcc, 0, {v(vT0,2)}", stats_ld(0, sA), "st0")
        stat_consts(x, 0)
        if kP and o["kz"] == 1: x("s_mov_b32 s32, 0xffff\ns_mov_b32 s33, 0xffff")
        x.need("prd")
        x(f"v_mov_b32 {v(vWD)}, {v(vWD+3)}")
        for q in range(1, 4): x(f"v_add_u32 {v(vWD+q)}, {7168*q}, {v(vWD)}")
        for q in (1, 3): x(f"v_xor_b32 {v(vWD+q)}, 32, {v(vWD+q)}")
        x(f"s_lshl_b32 {sPCOL}, {sTT}, 16\ns_add_u32 {sPCOL}, {sPCOL}, {sW16K}\ns_add_u32 {sPCOL}, {sPCOL}, {sCB}")
        x.need("cs0"); corr_a(x, 0); x.mark("ca0")
        if o["p1v"]:
            grp(lambda g: (g.waittok(("pf", 29), lat=0), g(mf16(28))))
            grp(lambda g: g(mf16(29))); grp(lambda g: g(mf(28)))
            grp(lambda g: (g.waittok(("pf", 31), lat=0), g(mf16(30))))
            grp(lambda g: (g(mf16(31)), g.mark("cs0")))
            for kp in range(29, 32): grp(lambda g: g(mf(kp)))
        else:
            grp(lambda g: (g.waittok(("xf", 0, 31)), g(mf16(30))))
            grp(lambda g: (g(mf16(31)), g.mark("cs0")))
            for kp in (30, 31): grp(lambda g: g(mf(kp)))
        g = Stream(); g.need("ca0"); g(f"{MF} {v(ACC[0],16)}, {v(CA[0],4)}, {v(ST,4)}, {v(ACC[0],16)}"); self.stamp(g, "p1"); Mp.append(g)
        tl.sched(Mp, [x])
        if o.get("stop"):
            out = Stream()
            for i in tl.out:
                if "m" in o["stop"] and i.kind == "mfma": continue
                if "s" in o["stop"] and (i.kind == "vst" or i.cond or i.op.startswith("s_cbranch_vcc")): continue
                if "b" in o["stop"] and i.kind == "barrier": continue
                if "d" in o["stop"] and (i.kind == "dsr" or (i.kind == "waittok" and (i.tok[0] == "phr" or i.tok[0][0] == "xf"))): continue
                out.append(i)
            s = out
            s("s_waitcnt vmcnt(0)\ns_memrealtime s[64:65]\ns_waitcnt lgkmcnt(0)")
            s(f"s_lshl2_add_u32 {sA}, s2, {sWV}\ns_lshl_b32 {sA}, {sA}, 6\ns_add_u32 {sA}, {sA}, {WS_STAMP}")
            for i, r in enumerate(["s100"] + ["s%d" % k for k in STAMPR] + ["s64"]):
                s(f"v_mov_b32 {v(vT1)}, {r}\nbuffer_store_dword {v(vT1)}, {v(vZ)}, {sWS}, {sA} offen offset:{4*i}")
            return s

        def gelu(e, acc, k, sbase, sblk, tok):
            e(f"s_lshl_b32 {sB}, {sblk}, 11\ns_add_u32 {sB}, {sB}, {sbase}")
            for q in range(4):
                A = [v(acc + 4 * q + i) for i in range(4)]; T = [v(G4 + i) for i in range(4)]
                for i in range(4): e(f"v_mul_f32 {T[i]}, {A[i]}, {A[i]}")
                for i in range(4): e(f"v_fma_f32 {T[i]}, {T[i]}, {v(k+1)}, {v(k)}")
                for i in range(4): e(f"v_mul_f32 {T[i]}, {A[i]}, {T[i]}")
                for i in range(4): e(f"v_exp_f32 {T[i]}, {T[i]}")
                for i in range(4): e(f"v_fma_f32 {T[i]}, {T[i]}, {v(k+2)}, {v(k+2)}")
                for i in range(4): e(f"v_rcp_f32 {T[i]}, {T[i]}")
                for i in range(4): e(f"v_mul_f32 {T[i]}, {A[i]}, {T[i]}")
                for i in range(2): e(f"v_cvt_pk_bf16_f32 {v(HO+2*q+i)}, {T[2*i]}, {T[2*i+1]}")
                if q & 1: e(f"buffer_store_dwordx4 {v(HO+4*(q>>1),4)}, {v(vL16)}, {sWS}, {sB} offen offset:{1024*(q>>1)} sc1", tok=tok)
        def sm_head(e, src, phi, T_, f4):
            for i in range(4): e(f"v_cvt_pk_bf16_f32 {v(f4+i)}, {v(src+2*i)}, {v(src+2*i+1)}")
            e(f"{MF} {v(T_,16)}, {v(phi,4)}, {v(f4,4)}, 0")
        def sm_body(e, T_, k, dst, scale=False, pk=False):
            t2, t3 = v(vT2), v(vT3); T = lambda i: v(T_ + i)
            e(f"v_max3_f32 {t2}, {T(0)}, {T(1)}, {T(2)}\nv_max3_f32 {t3}, {T(3)}, {T(4)}, {T(5)}")
            for i in range(2): e(f"v_max3_f32 {t2}, {t2}, {T(6+4*i)}, {T(7+4*i)}\nv_max3_f32 {t3}, {t3}, {T(8+4*i)}, {T(9+4*i)}")
            e(f"v_max3_f32 {t2}, {t2}, {T(14)}, {T(15)}\nv_max_f32 {t2}, {t2}, {t3}\nv_mul_f32 {t2}, {t2}, {v(k+1)}")
            P = lambda i: v(T_ + i, 2); tt = v(vT2, 2)
            if pk:
                assert k % 2 == 0 and vT2 % 2 == 0
                for i in range(0, 16, 2): e(f"v_pk_fma_f32 {P(i)}, {P(i)}, {v(k,2)}, {tt} op_sel:[0,1,0] op_sel_hi:[1,1,0] neg_lo:[0,0,1] neg_hi:[0,0,1]")
            else:
                for i in range(16): e(f"v_fma_f32 {T(i)}, {T(i)}, {v(k+1)}, -{t2}")
            for i in range(16): e(f"v_exp_f32 {T(i)}, {T(i)}")
            if pk:
                e(f"v_pk_add_f32 {tt}, {P(0)}, {P(2)}")
                for i in range(4, 16, 2): e(f"v_pk_add_f32 {tt}, {tt}, {P(i)}")
            else:
                e(f"v_add_f32 {t2}, {T(0)}, {T(1)}\nv_add_f32 {t3}, {T(2)}, {T(3)}")
                for i in range(4, 16, 2): e(f"v_add_f32 {t2}, {t2}, {T(i)}\nv_add_f32 {t3}, {t3}, {T(i+1)}")
            e(f"v_add_f32 {t2}, {t2}, {t3}\nv_rcp_f32 {t2}, {t2}")
            if scale: e(f"v_mul_f32 {t2}, {t2}, {v(k)}")
            if pk:
                for i in range(0, 16, 2): e(f"v_pk_mul_f32 {P(i)}, {P(i)}, {tt} op_sel_hi:[1,0]")
            else:
                for i in range(16): e(f"v_mul_f32 {T(i)}, {T(i)}, {t2}")
            for i in range(8): e(f"v_cvt_pk_bf16_f32 {v(dst+i)}, {T(2*i)}, {T(2*i+1)}")
        def kepi(e, un):
            acc, k = ACC[un & 1], KC[un]
            kz = o["kz"]; FV = ONES if kz == 1 else F8b
            if kz == 0: e(f"{MF} {v(TB,16)}, {v(ONES,4)}, {v(SEL[1],4)}, 0")
            if kz == 2:
                if un: e.need("c%d" % un)
                e(f"{MF} {v(TB,16)}, {v(ST+4*un,4)}, {v(ONES,4)}, 0")
            e.need("m%d" % un)
            sm_head(e, acc, PHI[0], TA, F4)
            if kz != 2:
                for i in range(8): e(f"v_mul_f32 {v(acc+8+i)}, {v(acc+8+i)}, {v(k)}")
            for i in range(4): e(f"v_cvt_pk_bf16_f32 {v(FV+i)}, {v(acc+8+2*i)}, {v(acc+9+2*i)}")
            e.mark("e%d" % un)
            b = Stream(); sm_body(b, TA, k, F8a, kz == 2)
            vt = f"{MF} {v(TB,16)}, {v(FV,4)}, {v(SEL[0],4)}, {0 if kz == 1 else v(TB,16)}"
            if kz == 2: e(vt); e.extend(b)
            else: e.extend(b[:2]); e(vt); e.extend(b[2:])
            def cv(r):
                x = "\n".join(f"v_cvt_pk_bf16_f32 {v(F8b+i)}, {v(TB+2*i)}, {v(TB+2*i+1)}" for i in r)
                if kz == 1: e(f"s_mov_b64 exec, s[32:33]\n{x}\ns_mov_b64 exec, -1", glue=True)
                else: e(x)
            cv(range(4 if kz == 1 else 2))
            e(f"{MF} {v(TA,16)}, {v(F8a,4)}, {v(SEL[0],4)}, 0")
            cv(range(4 if kz == 1 else 2, 8))
            e(f"{MF} {v(TA,16)}, {v(F8a+4,4)}, {v(SEL[1],4)}, {v(TA,16)}")
            for i in range(8): e(f"v_cvt_pk_bf16_f32 {v(F8a+i)}, {v(TA+2*i)}, {v(TA+2*i+1)}")
            e(f"{MF} {v(KV,16)}, {v(F8a,4)}, {v(F8b,4)}, {v(KV,16) if un else 0}\n{MF} {v(KV,16)}, {v(F8a+4,4)}, {v(F8b+4,4)}, {v(KV,16)}")
        def kvpub(e):
            e(f"s_mul_i32 {sB}, {sT}, 960\ns_sub_u32 {sB}, 15360, {sB}\nv_lshrrev_b32 {v(vT3)}, 8, {v(vN16)}")
            e(f"v_mad_u32_u24 {v(vT2)}, {v(vT3)}, {sB}, {v(vKA)}\nv_mad_u32_u24 {v(vT3)}, {v(vT3)}, {sB}, {v(vKA+1)}")
            e(f"s_mul_i32 {sB}, {sHK}, 17\ns_add_u32 {sB}, {sB}, {sT}\ns_lshl_b32 {sB}, {sB}, 10\ns_add_u32 {sB}, {sB}, {WS_KVP}")
            for c in range(2):
                for i in range(4): e(f"v_cvt_pk_bf16_f32 {v(F8a+4*c+i)}, {v(KV+8*c+2*i)}, {v(KV+8*c+2*i+1)}")
                e(f"buffer_store_dwordx4 {v(F8a+4*c,4)}, {v(vT2+c)}, {sWS}, {sB} offen sc1", tok="kvp")
        def qepi(e, acc, k, dst):
            for i in range(4): e(f"v_cvt_pk_bf16_f32 {v(F4+i)}, {v(acc+2*i)}, {v(acc+2*i+1)}")
            for i in range(4): e(f"v_cvt_pk_bf16_f32 {v(F8b+i)}, {v(acc+8+2*i)}, {v(acc+9+2*i)}")
            e(f"{MF} {v(acc,16)}, {v(PHI[1],4)}, {v(F8b,4)}, 0\n{MF} {v(TA,16)}, {v(PHI[0],4)}, {v(F4,4)}, 0")
            sm_body(e, acc, k, dst + 8, pk=o["pk"] and dst != PF); e.mark(("sib", dst))
            if not ("e" in abl and dst != PF): sm_body(e, TA, k, dst)
        def flag(st, addr, tok, lat=None):
            st(addr)
            st.waittok(tok, lat=lat or o["stlat"])
            st(f"s_mov_b64 exec, 1\nbuffer_store_dwordx2 {v(vTAG,2)}, {v(vZ)}, {sWS}, {sD} offen sc1\ns_mov_b64 exec, -1", glue=True)
        a_fl1 = f"s_lshl4_add_u32 {sD}, {sHK}, {sT}\ns_lshl_b32 {sD}, {sD}, 3\ns_add_u32 {sD}, {sD}, {WS_FL1}"
        def a_fl2(kind): return (f"s_mov_b32 {sD}, {sHD}\n" if kind == 2 else f"s_lshl2_add_u32 {sD}, {sJ}, {sWV}\n") + f"s_lshl_b32 {sC}, {sT}, 10\ns_lshl3_add_u32 {sD}, {sD}, {sC}\ns_add_u32 {sD}, {sD}, {WS_FL2+256*kind}"
        def fl_txt(sreg, off): return f"buffer_load_dwordx2 {v(vFL,2)}, {v(vFA)}, {sWS}, {sreg} offen offset:{off} sc1"
        skipf = lambda tok: qS and tok[1] in str(o.get("skipf", ""))
        def fl_bg(sreg, off, tok, after):
            if not skipf(tok): B(fl_txt(sreg, off), tok, after, sp=16)
        def fl_check(st, sreg, off, tok):
            if skipf(tok): st.mark(tok); return
            st.waittok(tok)
            spin(st, f"v_cmp_ne_u64 vcc, {v(vFL,2)}, {v(vTAG,2)}", fl_txt(sreg, off), tok)

        SLOT = {"a0": (sW8K, R[0]), "a1": (sW8K, R[0] + 4096), "b0": (sW8K, R[1]), "b1": (sW8K, R[1] + 4096),
                "c0": (sW8K, R[4]), "c1": (sW8K, R[4] + 4096), "d0": (sW16K, R[2])}
        LORD = list(range(8)) + [11, 12, 13, 14, 8, 9, 10]
        WSLOT = dict(zip(LORD, ["b0", "b1", "c0", "c1", "a0", "a1"] * 2 + ["b0", "b1", "d0"]))
        nE = 8
        def blk(b):
            if b < 4: return sBA, b
            if b < 8: return sBB, b - 4
            if b < 11: return sBS[b - 8], 0
            return None, b - 11
        def dma_w(b, after):
            sb, off = SLOT[WSLOT[b]]; r, i = blk(b)
            pre = f"s_add_u32 m0, {sb}, {off}\n"
            if i: pre += f"s_add_u32 {sN}, {sN}, 0x8000"
            elif r: pre += f"s_lshl4_add_u32 {sN}, {r}, {sCB}"
            else: pre += f"s_lshl3_add_u32 {sN}, {sW16K}, {sCB}"
            run4(pre, vWD, sW2 if r else sWo, ("w", b), after, o["spw0"] if b < 4 else o["spw1"] if b < 6 else None, sN)
            if "f" in abl and LORD.index(b) >= 10: del tl.bg[-3:]
        def wfrags(st, dst, base, off, tok):
            for cb in range(4):
                for e in range(2): st(f"ds_read_b64_tr_b16 {dst(4*cb+2*e)}, {v(base+cb)} offset:{off+e*512}", tok=tok)
        def wbump(st, base, d):
            for i in range(4): st(f"v_add_u32 {v(base+i)}, {d}, {v(base+i)}")
        def wread(st, b):
            sl = WSLOT[b]; off = SLOT[sl][1] - {"c": R[4], "d": R[2]}.get(sl[0], 0)
            if b == 2: wbump(st, vWQ, R[4])
            if b == 4: wbump(st, vWQ, -R[4])
            if b == 10: st(f"s_add_u32 {sE1}, {sW8K}, {R[2]}"); wbump(st, vWQ, sE1)
            st.waittok(("w", b), lat=o["wlat"])
            wfrags(st, lambda k: ag(128 + 16 * (b % 8) + k, 2), vWQ, off, ("wr", b))

        D = NX - 1
        M = []
        RG = {1: R[1], 2: 0, 3: R[1], 4: 0, 5: 0}
        def bump(st, d):
            for i in range(4): st(f"v_add_u32 {v(vXR+i)}, {d}, {v(vXR+i)}")
        def opening(g, un):
            if un == 3:
                if o["ssplit"]: g.waittok(("x", 3), ("s", 0))
                else: g.waittok(("x", 3), ("s", 0), ("s", 1))
                g("s_barrier"); g.mark("sl")
            elif un < 3: g.waittok(("x", un)); g("s_barrier"); g.mark("xl%d" % un)
            if un == 2: bump(g, "0x10000")
            if un == 5: g.need("e1s"); bump(g, sE1)
        NP = 8
        for un in range(1, 6):
            acc = ACC[un & 1]
            cm = f"{MF} {v(acc,16)}, {v(CA[un>3],4)}, {v(ST+4*un if un <= 3 else CBS,4)}, "
            g = Stream()
            if un == 1:
                opening(g, 1)
                for ks in range(D): xread(g, 1, RG[1], ks)
            if un >= 2: g.need("f%d" % (un - 2))
            self.stamp(g, "u%d" % un)
            if un != 4:
                g.need("c%d" % un); g(cm + "0"); M.append(g); g = Stream()
            last = o["kvpace" if kP else "fpace"] if un == 4 else 31
            for ks in range(32):
                for k in range(NP):
                    if ks == o["pace"] + (k + 1) * (last - o["pace"]) // NP: g.need(("ep", un - 1, k))
                if ks % 4 == 0:
                    if un == 4: g.need("sr%d" % (ks + 3)); g.waittok(("sr", ks + 3))
                    else: g.waittok(("xf", un, ks + 3))
                if ks == 28 and un == 1: g.mark("u1r")
                if ks == 28 and un == 5: g("s_barrier"); g.mark("r5")
                if ks + D == 32 and un < 5: opening(g, un + 1)
                g(f"{MF} {v(acc,16)}, {ag(4*ks,4)}, {ag(128+4*ks,4) if un == 4 else v(XF+4*(ks%NX),4)}, {v(acc,16) if (ks or un != 4) else 0}")
                if ks + D < 32:
                    if un != 4: xread(g, un, RG[un], ks + D)
                elif un in (1, 2, 4): xread(g, un + 1, RG[un + 1], ks + D - 32)
                if un >= 3: g.mark(("pd", un, ks))
                if un == 5 and ks == o["kvl"]: g.mark("kvl")
                if ks == 31 and un != 4: g.mark("m%d" % un)
                M.append(g); g = Stream()
            if un == 4:
                g.need("c4"); g(cm + v(acc, 16)); g.mark("cb4"); g.mark("m4"); M.append(g)
        tl.marks.add("m0")
        E = Stream()
        def paced(e, un):
            tot = sum(i.cost for i in e); c = 0; k = 0
            for i in e:
                E.append(i); c += i.cost
                while k < NP and c >= tot * (k + 1) / NP - 1e-9 and not i.glue: E.mark(("ep", un, k)); k += 1
            assert k == NP
        def selectk(st, i):
            k = KCS
            st(f"v_cndmask_b32 {v(k)}, {v(KC[i])}, {v(KC[i+1])}, {sPAR}")
            if qS: st(f"v_mul_f32 {v(k+1)}, {f2u(LOG2E/K0)}, {v(k)}")
            else:
                st(f"v_cndmask_b32 {v(k+2)}, {v(KC[i]+2)}, {v(KC[i+1]+2)}, {sPAR}\nv_mul_f32 {v(k+1)}, {v(k)}, {v(k)}\nv_mul_f32 {v(k)}, {f2u(K0)}, {v(k)}")
                st(f"v_mul_f32 {v(k+1)}, {v(k+1)}, {v(k)}\nv_mul_f32 {v(k+1)}, {f2u(0.044715)}, {v(k+1)}")
        for un in range(4):
            e = Stream()
            if kP: kepi(e, un)
            else: e.need("m%d" % un); gelu(e, ACC[un & 1], KC[un], sAB[un], sBLKP, "actP")
            if kP and un == 3: kvpub(e)
            paced(e, un); E.mark("f%d" % un)
        E.mark("kvp")
        E("s_cmp_lg_u32 s98, 0\n" + "\n".join(f"s_cselect_b32 {sB}, {sAB[k+1]}, {sAB[k]}\ns_cselect_b32 {sAB[k+1]}, {sAB[k]}, {sAB[k+1]}\ns_mov_b32 {sAB[k]}, {sB}" for k in (0, 2)), glue=True)
        selectk(E, 0); E.need("m4")
        e = Stream()
        if qS: qepi(e, ACC[0], KCS, PF)
        else: gelu(e, ACC[0], KCS, sAB[0], sBLKS, "actS")
        paced(e, 4)
        selectk(E, 2); E.mark("e4"); E.need("m5"); self.stamp(E, "u6")
        if qS: qepi(E, ACC[1], KCS, PF + 16)
        elif "h" not in abl: gelu(E, ACC[1], KCS, sAB[2], sBLKS, "actS")
        self.stamp(E, "q"); E.mark("q5")
        X = Stream()
        X.waittok("stats")
        t = f"v_xor_b32 {v(vT0)}, {v(vTAG)}, {v(ST+5)}\nv_xor_b32 {v(vT1)}, {v(vTAG)}, {v(ST+7)}\n"
        for r in (9, 13):
            t += f"v_xor_b32 {v(vFL)}, {v(vTAG)}, {v(ST+r)}\nv_xor_b32 {v(vFL+1)}, {v(vTAG)}, {v(ST+r+2)}\nv_or3_b32 {v(vT0)}, {v(vT0)}, {v(vFL)}, {v(vFL+1)}\n"
        spin(X, t + f"v_cmp_ne_u64 vcc, 0, {v(vT0,2)}", "\n".join(stats_ld(i, sA) for i in range(1, 4)), "stok")
        for i in range(1, 4): stat_consts(X, i); X.mark("c%d" % i)
        def select(st, i):
            for r in range(3): st(f"v_cndmask_b32 {v(CBS+r)}, {v(ST+4*i+r)}, {v(ST+4*i+4+r)}, {sPAR}")
        if o["xlate"]: X.need("kvp" if kP else "m3")
        select(X, 0); X(f"v_mov_b32 {v(CBS+3)}, 0")
        X(f"s_mul_i32 {sE0}, {sTT}, {2*TBSTR}\ns_add_u32 {sE0}, {sE0}, {WS_ACT}")
        X.mark("e1s"); X.need("sl")
        X(f"v_and_b32 {v(vT0)}, 0xf0, {v(vL16)}\nv_lshrrev_b32 {v(vT1)}, 4, v0\nv_lshl_add_u32 {v(vT0)}, {v(vT1)}, 9, {v(vT0)}")
        for k in range(4):
            X(f"s_add_u32 {sA}, {sWV}, {k}\ns_bfe_u32 {sSTB}, {sA}, 0x10001\ns_mul_i32 {sSTB}, {sSTB}, {TBSTR}\ns_add_u32 {sSTB}, {sSTB}, {sE0}\ns_and_b32 {sA}, {sA}, 1\ns_lshl_b32 {sA}, {sA}, 8\ns_add_u32 {sA}, {sA}, {sSTB}")
            X(f"v_add_u32 {v(vAA+k)}, {sA}, {v(vT0)}")
        X2 = Stream()
        X2.need("kvp"); flag(X2, a_fl1 if kP else a_fl2(0), "kvp" if kP else "actP")
        X.need("cs"); corr_a(X, 1); X.mark("c4")
        X.need("cb4"); select(X, 2); X.mark("c5")
        S = Stream()
        C = Stream()
        KR = vJ
        S(f"s_and_b32 {sE1}, s98, 0x8000")
        for i in range(4): S(f"v_add_u32 {v(KR+i)}, {sE1}, {v(vXR+i)}")
        S.need("xl1")
        for ks in range(2 if "g" in abl else 32): S(f"ds_read_b128 {ag(128+4*ks,4)}, {v(KR+(ks&3))} offset:{(ks>>2)*4096}", tok="kr")
        S.need("u1r"); S.waittok("kr"); S("s_barrier"); S.mark("k")
        S.need("sl")
        if kP and o["sg0"]: S.need(o["sg0"])
        for half in range(2):
            for ks in range(16 * half, 16 * half + 16):
                S.need(("pd", 3, ks))
                for e in range(1 if "i" in abl else 2): S(f"ds_read_b64_tr_b16 {ag(4*ks+2*e,2)}, {v(vSR)} offset:{(ks&15)*2048+e*512}", tok=("sr", ks))
                if ks % 4 == 3:
                    S.mark("sr%d" % ks); C.need("sr%d" % ks); C.waittok(("sr", ks))
                    if ks == 3: C.need("kvp" if o["prio" if kP else "priof"] else "m3")
                    for k2 in range(ks - 3, ks + 1 if ("a" not in abl or ks == 3) else 0): C(f"{MF16} {v(CS,4)}, {v(CSEL,4)}, {ag(4*k2,4)}, {v(CS,4) if k2 else 0}")
                if ks == 19 and kP and o["sg1"]: S.waittok(("sr", 15)); S("s_barrier"); S.mark("sa"); S.need(o["sg1"])
                if ks == 15: S(f"v_subrev_u32 {v(vSR)}, {R[4]}, {v(vSR)}")
                if ks == 15 and o["ssplit"]: S.waittok(("s", 1)); S.waittok(("sr", 15)); S("s_barrier"); S.mark("sa")
                if ks == 19 and not o["ssplit"] and not (kP and o["sg1"]): S.waittok(("sr", 15)); S("s_barrier"); S.mark("sa")
        S(f"v_add_u32 {v(vWQ)}, {sW8K}, {v(vWR)}")
        for i in range(1, 4): S(f"v_xor_b32 {v(vWQ+i)}, {32*i}, {v(vWQ)}")
        S.waittok(("sr", 31)); S("s_barrier"); S.mark("sb")
        C.mark("cs")
        if o["prio" if kP else "priof"] == 1: S.need("kvp")
        for b in range(nE):
            S.need(("pd", 4, 4 * b + 3)); wread(S, b)
            if b: S.waittok(("wr", b - 1)); S.mark("wr%d" % (b - 1))
        S.waittok(("wr", nE - 1)); S.mark("wr%d" % (nE - 1))
        def res():
            B(f"buffer_load_dwordx4 {v(XR,4)}, {v(vOUT)}, {sX}, {sPCOL} offen", sp=o["spx3"])
            B(f"s_add_u32 {sM}, {sPCOL}, 0x2000\nbuffer_load_dwordx4 {v(XR+4,4)}, {v(vOUT)}, {sX}, {sM} offen", "res", sp=o["spx3"])
        if not o["rord"]: res()
        def tlbw(pos):
            if o["tlbp"] != pos: return
            if o["tlb"] & 1: B(f"buffer_load_dword {v(vFL+1)}, {v(vZ)}, {sOut}, {sPCOL} offen sc1", None, "stok", sp=16); tl.bg[-1].ins[-1].wr = []
            if o["tlb"] & 2: B(f"s_mul_i32 {sM}, {sTT}, {2*TBSTR}\ns_add_u32 {sM}, {sM}, {WS_ACT+TBSTR}\nbuffer_load_dword {v(vFL+1)}, {v(vZ)}, {sWS}, {sM} offen sc1", None, "stok", sp=16); tl.bg[-1].ins[-1].wr = []
            if o["tlb"] & 4 and kP: B(f"buffer_load_dword {v(vFL+1)}, {v(vZ)}, {sWS}, {sAB[0]} offen sc1", None, "stok", sp=16); tl.bg[-1].ins[-1].wr = []
        warm3(2); tlbw(0); dma_s(0, "xl1"); warm3(3); tlbw(1)
        if o["xord"]: dma_x(3, None, o["spx3"])
        dma_s(1, "k"); warm3(4); tlbw(2)
        if o["rord"]: res()
        def wafter(b):
            n = LORD.index(b)
            return "k" if n < 2 else "sa" if n < 4 else "sb" if n < 6 else "wr%d" % (n - 6) if n < 14 else "r5"
        nB = o.get("nB", 13) if qS else o.get("nBf", 11)
        for n in range(nB):
            if qS and n == o.get("nK", 12): fl_bg(sFK, 0, "fK", "kvl")
            dma_w(LORD[n], wafter(LORD[n]))
        if qS and nB <= o.get("nK", 12): fl_bg(sFK, 0, "fK", "kvl")
        late = LORD[nB:]

        AC2 = 0; AF = 64; NB = 4
        fO = o["fO"] if qS else o["fOf"]; fS = o["fSa"] if qS else o["fS"]
        def af(idx): return ag(AF + 4 * (idx % 16), 4)
        def acts():
            for bb in range(11):
                if bb == fS: fl_bg(sFL, 256, "fS", "fP")
                if bb == fO: fl_bg(sFL, 512, "fO", "fa8")
                r, i = blk(bb)
                pre = ""
                if bb == 10: pre = f"s_cmp_eq_u32 {r}, {43*2048}\ns_cselect_b32 {r}, {'0x20000000' if o['z5'] else sBS[0]}, {r}"
                elif i == 2: pre = f"s_add_u32 {r}, {r}, 4096"
                for k in range(4):
                    idx = 4 * bb + k
                    aft = {0: "fP", 32: "fS", (4 * o.get("gate", 99) if qS else 99): "pub"}.get(idx, ("mt", idx - 16) if idx >= 16 else None)
                    B(f"{pre}\nbuffer_load_dwordx4 {af(idx)}, {v(vAA+k)}, {sWS}, {r} offen offset:{2048*(i&1)} sc1", ("act", idx), aft, sp=o["spa"]); pre = ""
            if fO == 11: fl_bg(sFL, 512, "fO", "fa8")
            for n in range(16):
                idx = 44 + n; p = 4 * ((n >> 1) & 3) + 2 * (n >> 3)
                pre = "" if n & 1 else f"s_mov_b32 {sM}, {(43+p)*2048}"
                B(f"{pre}\nbuffer_load_dwordx4 {af(idx)}, {v(vAA)}, {sWS}, {sM} offen offset:{2048*(n&1)} sc1", ("act", idx), "fO" if n == 0 else ("mt", idx - 16), sp=o["spa"])
        assert fS >= 5 and fO >= 8
        s = Stream()
        if not qS:
            fl_bg(sFL, 0, "fP", "r5")
            for b in late: dma_w(b, wafter(b))
            acts()
            X2.need("m5"); fl_check(X2, sFL, 0, "fP")
            E.mark("odone"); FS = [X, X2, S, C, E]
        else:
            Z = ST + 8; ZT = F8a; KA = XF
            X2.need("sb")
            X2(f"s_mul_i32 {sD}, {sHD}, {KVREC}\ns_add_u32 {sD}, {sD}, {WS_KVP}\nv_add_u32 {v(vJ)}, {sD}, {v(vL16)}")
            X2(f"v_and_b32 {v(vXD0)}, 0x30, {v(vL16)}\nv_lshrrev_b32 {v(vSR)}, 4, v0\nv_lshl_add_u32 {v(vXD0)}, {v(vSR)}, 2, {v(vXD0)}")
            X2.need("c5")
            fl_check(X2, sFK, 0, "fK")
            X2(f"v_and_b32 {v(vFA)}, 0x38, {v(vFA)}"); X2.mark("gat")
            gsp = o.get("gsp", 56)
            B(f"s_movk_i32 {sM}, 0x4000\nbuffer_load_dwordx4 {v(Z,4)}, {v(vJ)}, {sWS}, {sM} offen sc1", "z", "gat", sp=gsp)
            NG = 2 if "c" in abl else 16
            for p in range(NG):
                if p == o["nP"]: fl_bg(sFL, 0, "fP", None)
                gq = o["gq"]
                pre = "" if p % gq else f"s_lshl_b32 {sM}, {sROT}, 11\ns_and_b32 {sM}, {sM}, {0x4000-1024*gq}" if p == 0 else f"s_add_u32 {sM}, {sM}, {1024*gq}\ns_and_b32 {sM}, {sM}, 0x3fff"
                B(f"{pre}\nbuffer_load_dwordx4 {ag(4*p,4)}, {v(vJ)}, {sWS}, {sM} offen offset:{(p%gq)*1024} sc1", ("g", p), ("pd", 5, p), sp=gsp)
            nL = o.get("nL", 0)
            for b in late[:nL]: dma_w(b, wafter(b))
            if o["nP"] >= 16: fl_bg(sFL, 0, "fP", None)
            for b in late[nL:]: dma_w(b, wafter(b))
            acts()
            xo, xs, zw, zr = (CA[0] + i for i in range(4))
            X2(f"s_add_u32 {sD}, {sW16K}, {R[2]+4096}\nv_add_u32 {v(xo)}, {sD}, {v(vL16)}\nv_xor_b32 {v(xs)}, 0x4000, {v(xo)}")
            X2(f"v_add_u32 {v(zw)}, {sD}, {v(vXD0)}\nv_lshl_add_u32 {v(zr)}, {v(vSR)}, 4, {sD}"); X2.mark("xa")
            X2.waittok("z")
            for i in range(4): X2(f"v_lshlrev_b32 {v(ZT+i)}, 16, {v(Z+i)}\nv_and_b32 {v(ZT+4+i)}, 0xffff0000, {v(Z+i)}")
            for i in range(0, 8, 2): X2(f"v_permlane16_swap_b32 {v(ZT+i)}, {v(ZT+i+1)}")
            for i in range(0, 8, 2): X2(f"v_add_f32 {v(ZT+i)}, {v(ZT+i)}, {v(ZT+i+1)}")
            for i in (0, 4): X2(f"v_permlane32_swap_b32 {v(ZT+i)}, {v(ZT+i+2)}")
            for i in (0, 4): X2(f"v_add_f32 {v(ZT+i)}, {v(ZT+i)}, {v(ZT+i+2)}")
            for m in ("row_ror:4", "row_ror:8"):
                for i in (0, 4): X2(f"v_add_f32_dpp {v(ZT+i)}, {v(ZT+i)}, {v(ZT+i)} {m} {DPPM}")
            X2(f"v_cvt_pk_bf16_f32 {v(Z)}, {v(ZT)}, {v(ZT+4)}")
            X2.need("r5"); X2(f"ds_write_b32 {v(zw)}, {v(Z)} offset:4096\nds_read_b128 {v(Z,4)}, {v(zr)} offset:4096", tok="zr"); X2.mark("zr")
            X2.need("m5"); fl_check(X2, sFL, 0, "fP")
            XC = Stream(); XC.need("xa"); XC.need("r5"); XC.need(("sib", PF))
            for k in range(4):
                if k == 2: XC.need(("sib", PF + 16))
                XC(f"ds_write_b128 {v(xo)}, {v(PF+8+16*(k>>1)+4*(k&1),4)} offset:{1024*k}", tok="xw")
            XC.waittok("xw"); XC("s_barrier")
            for k in range(4): XC(f"ds_read_b128 {v(PF+8+16*(k>>1)+4*(k&1),4)}, {v(xs)} offset:{1024*k}", tok="xr")
            XC.waittok("xr"); XC("s_barrier"); XC.mark("xr")
            G = Stream(); G.need("m5")
            if o["pk"]: G.need(("sib", PF + 16))
            for p in range(NG):
                if p % 2 == 0: G.waittok(("g", p + 1))
                G(f"{MF} {v(KA,16)}, {v(SEL[0],4)}, {ag(4*p,4)}, {v(KA,16) if p else 0}")
            G.mark("gdone")
            KP = KA + 16
            G(f"s_add_u32 {sSO[0]}, {sHD}, 86\ns_lshl_b32 {sSO[0]}, {sSO[0]}, 10")
            for i in range(4): G(f"v_cvt_pk_bf16_f32 {v(KP+i)}, {v(KA+2*i)}, {v(KA+2*i+1)}")
            G.need("zr"); G.waittok("zr")
            for i in range(4): G(f"v_permlane16_swap_b32 {v(KP+i)}, {v(Z+i)}")
            self.stamp(G, "kvx")
            O = Stream()
            for n, A in ((0, ACC[0]), (1, KA), (3, ACC[1]), (2, TA)):
                if n == 0: G.need("e4")
                if n == 1: G.need("xr")
                if n == 2: G.need("q5")
                G(f"{MF} {v(A,16)}, {v(KP,4)}, {v(PF+8*n,4)}, 0\n{MF} {v(A,16)}, {v(Z,4)}, {v(PF+8*n+4,4)}, {v(A,16)}"); G.mark(("om", n))
                O.need(("om", n))
                O(f"v_add_f32 {v(A+8)}, {f2u(1e-6)}, {v(A+8)}\nv_rcp_f32 {v(A+8)}, {v(A+8)}")
                O(f"s_add_u32 {sSO[1]}, {sAB[n]}, {sSO[0]}")
                for i in range(8): O(f"v_mul_f32 {v(A+i)}, {v(A+i)}, {v(A+8)}")
                for i in range(4): O(f"v_cvt_pk_bf16_f32 {v(A+12+i)}, {v(A+2*i)}, {v(A+2*i+1)}")
                O(f"buffer_store_dwordx4 {v(A+12,4)}, {v(vL16)}, {sWS}, {sSO[1]} offen sc1", tok="actO")
                if o.get("nost") and n != 2: O.pop()
            self.stamp(O, "o"); O.mark("odone")
            FS = [X, X2, S, C, XC, G, E, O]
        def grp2(pre, text, post=None):
            g = Stream(); g.small = o["nds2"]
            if pre: pre(g)
            g(text)
            if post: post(g)
            M.append(g)
        def wo(n): return (lambda k, c=2: v(96 + 16 * n + k, c)) if n < 10 else (lambda k, c=2: ag(128 + 16 * ((n - 7) % 8) + k, c))
        for bb in range(11):
            for kk, k in enumerate((1, 2, 3, 0) if bb == 10 else range(4)):
                idx = 4 * bb + k
                for cc in range(4):
                    cb = 3 - cc if kk & 1 else cc
                    def pre(g):
                        if kk == 0:
                            if bb == 0:
                                g.need("wr7")
                                if qS: g.need("odone" if o["p2hold"] else "gdone")
                            if bb == fS:
                                g.need("pub"); fl_check(g, sFL, 256, "fS")
                                g(f"v_lshrrev_b32 {v(vFA)}, 1, {v(vN16)}\ns_and_b32 {sFL}, {sFL}, 0xffffff3f"); g.mark("fa8")
                            if bb == fO: g.need("pub"); fl_check(g, sFL, 512, "fO")
                            if bb >= nE: g.need("wq%d" % bb); g.waittok(("wr", bb), lat=0)
                        if kk % 2 == 0:
                            g.waittok(("act", 4 * bb + (kk + 1 if bb < 10 else 2 + kk // 2)), ahead=o["ah2"] if bb >= o["p2e"] else 0, lat=0 if bb >= o["p2e"] else None)
                    def post(g):
                        g.mark(("mt", idx))
                        if kk == 3: g.mark(("mm", bb)); self.stamp(g, "mm%d" % bb)
                    A = ag(AC2 + 16 * k + 4 * cb, 4)
                    grp2(pre if cc == 0 else None, f"{MF16} {A}, {ag(128+16*(bb%8)+4*cb,4)}, {af(idx)}, {A if bb else 0}", post if cc == 3 else None)
        if fO == 11:
            g = Stream(); g.need("pub")
            if o.get("qfirst"): g.need(("qa", 2))
            fl_check(g, sFL, 512, "fO"); M.append(g)
        for n in range(16):
            for cb in range(4):
                def pre(g):
                    g.need(("wo", n)); g.waittok(("wo", n), lat=0)
                    if n % 2 == 0 or n > 12: g.waittok(("act", 44 + (n if n >= 12 else n + 1)), ahead=o["ah2"], lat=0)
                def post(g):
                    if n == 15: g.mark("oend"); self.stamp(g, "mm14")
                A = ag(AC2 + 4 * cb, 4)
                grp2(pre if cb == 0 else None, f"{MF16} {A}, {wo(n)(4*cb,4)}, {af(44+n)}, {A}", post if cb == 3 else None)
        W = Stream(); W.need("m5")
        for b in range(nE, 11):
            W.need(("mm", b - 8)); wread(W, b); W.mark("wq%d" % b)
        W2s = Stream(); W2s.need("m5")
        W2s(f"v_add_u32 {v(vXR)}, {R[4]}, {v(vWR)}")
        for i in range(1, 4): W2s(f"v_xor_b32 {v(vXR+i)}, {32*i}, {v(vXR)}")
        W2s.waittok(("w", 14), lat=o["wlat"]); W2s.need("odone"); W2s("s_barrier")
        for n in range(16):
            if n == 8: wbump(W2s, vXR, -R[4])
            if n >= 10: W2s.need(("mm", n - 7))
            wfrags(W2s, wo(n), vXR, (n & 7) * 4096, ("wo", n)); W2s.mark(("wo", n))
        X = Stream(); X.need("odone"); X.need("fP")
        flag(X, a_fl2(2 if qS else 1), "actO" if qS else "actS", o["stlat2"])
        X.mark("pub"); Xf = X; X = Stream(); X.need("pub"); X.need("wq10")
        RW = vKA; RR = [vWD, vWD + 2, vT2, vJ]; Y = ACC[0]; Pp = ACC[1]
        assert Y == 48 and Pp == 64
        vJ2 = (vSR, vXD0)
        rr = lambda k, e: v(RR[k] + e) if k < 3 else v(vJ2[e])
        X(f"v_lshrrev_b32 {v(vT0)}, 4, v0\nv_and_b32 {v(vT1)}, 7, v0\nv_xor_b32 {v(vT0)}, {v(vT0)}, {v(vT1)}\nv_and_b32 {v(RW)}, 0xf0, {v(vL16)}")
        X(f"v_add_lshl_u32 {v(vT0)}, {v(RW)}, {v(vT0)}, 4\ns_add_u32 {sA}, {sW16K}, {R[2]}\nv_add_u32 {v(RW)}, {sA}, {v(vT0)}\nv_xor_b32 {v(RW+1)}, 64, {v(RW)}")
        X(f"v_lshrrev_b32 {v(vT0)}, 3, v0\nv_lshlrev_b32 {v(vT1)}, 1, {v(vT1)}\nv_xor_b32 {v(vT1)}, {v(vT1)}, {v(vT0)}\nv_lshlrev_b32 {v(vT1)}, 4, {v(vT1)}\nv_lshl_add_u32 {v(vT0)}, {v(vT0)}, 8, {v(vT1)}")
        for k in range(4):
            X(f"s_sub_u32 {sA}, {sW16K}, {16384*(k+1)}\ns_and_b32 {sA}, {sA}, 0xc000\ns_add_u32 {sA}, {sA}, {R[2]+4096*k}")
            X(f"v_add_u32 {rr(k,0)}, {sA}, {v(vT0)}\nv_xor_b32 {rr(k,1)}, 16, {rr(k,0)}")
        for it in range(2):
            for i in range(4):
                X(f"v_lshlrev_b32 {v(Y+8*it+2*i)}, 16, {v(XR+4*it+i)}\nv_and_b32 {v(Y+8*it+2*i+1)}, 0xffff0000, {v(XR+4*it+i)}")
        for i in range(4):
            X(f"v_lshlrev_b32 {v(vT0)}, 16, {v(B2+i)}\nv_and_b32 {v(vT1)}, 0xffff0000, {v(B2+i)}")
            for it in range(2):
                X(f"v_add_f32 {v(Y+8*it+2*i)}, {v(Y+8*it+2*i)}, {v(vT0)}\nv_add_f32 {v(Y+8*it+2*i+1)}, {v(Y+8*it+2*i+1)}, {v(vT1)}")
        X(f"s_add_u32 {sB}, {sPCOL}, 0x2000"); X.mark("fin")
        Q = Stream(); Z2 = Stream(); Q.need("fin")
        def qw(k, slot, tok):
            for cb in range(4): Q(f"ds_write_b128 {v(RW+(cb&1))}, {ag(AC2+16*k+4*cb,4)} offset:{slot*4096+(cb>>1)*128}", tok=tok)
        def qr(k):
            for it in range(2):
                for e in range(2): Q(f"ds_read_b128 {v(Pp+16*(k&1)+8*it+4*e,4)}, {rr(k,e)} offset:{it*2048}", tok=("qr", k, it))
            Q.mark(("qr", k))
        for k in range(1, 4): Q.need(("mt", 40 + k)); qw(k, k - 1, "qw")
        Q.waittok("qw", lat=80); Q("s_barrier"); self.stamp(Q, "red0")
        for k in range(3):
            if k == 2: Q.need(("qa", 0))
            qr(k)
            Z2.need(("qr", k)); Z2.waittok(("qr", k, 1))
            for i in range(16): Z2(f"v_add_f32 {v(Y+i)}, {v(Y+i)}, {v(Pp+16*(k&1)+i)}")
            Z2.mark(("qa", k))
        Q.need("oend"); Q.need(("qa", 1)); qw(0, 3, "qw2"); self.stamp(Q, "red"); qr(3)
        Z2.need(("qr", 3))
        for it in range(2):
            Z2.waittok(("qr", 3, it), lat=100)
            for i in range(0, 8, 2): Z2(f"v_pk_add_f32 {v(Y+8*it+i,2)}, {v(Y+8*it+i,2)}, {v(Pp+16+8*it+i,2)}")
            for i in range(4): Z2(f"v_cvt_pk_bf16_f32 {v(XR+4*it+i)}, {v(Y+8*it+2*i)}, {v(Y+8*it+2*i+1)}")
            Z2(f"buffer_store_dwordx4 {v(XR+4*it,4)}, {v(vOUT)}, {sOut}, {sB if it else sPCOL} offen{' sc1' if o['outsc1'] else ''}"); self.stamp(Z2, "out%d" % it)
        tl.sched(M, FS + [Xf, W, Q, Z2, W2s, X], nds=o.get("nds", 3))
        s = Stream()
        if kP:
            noe = self.lab("noe")
            s(f"s_or_b32 {sA}, s2, {sWV}\ns_cmp_lg_u32 {sA}, 0\ns_cbranch_scc1 {noe}")
            s(f"s_mov_b64 exec, 1\nbuffer_store_dword {v(vTAG)}, {v(vZ)}, {sWS}, 0 offen sc1\ns_mov_b64 exec, -1", cond=True)
            s(noe + ":")
        if o.get("probe"):
            lp, l2, l3 = self.lab("pad"), self.lab("ref"), self.lab("skip"); K = o.get("K", 4)
            s("s_waitcnt vmcnt(0)"); self.stamp(s, "end"); s("s_waitcnt lgkmcnt(0)")
            if o.get("st") == "start": s("s_mov_b32 s60, s100")
            s(f"s_or_b32 {sA}, s2, {sWV}\ns_cmp_lg_u32 {sA}, 0\ns_cbranch_scc1 {l2}")
            s(f"v_mov_b32 {v(vT0)}, s100\nv_mov_b32 {v(vT1)}, {v(vTAG)}\nbuffer_store_dwordx2 {v(vT0,2)}, {v(vZ)}, {sWS}, 0 offen offset:2048 sc1", cond=True)
            s(f"{l2}:\ns_sleep 8\nbuffer_load_dwordx2 {v(vT0,2)}, {v(vZ)}, {sWS}, 0 offen offset:2048 sc1\ns_waitcnt vmcnt(0)\nv_cmp_ne_u32 vcc, {v(vT1)}, {v(vTAG)}\ns_nop 4\ns_cbranch_vccnz {l2}")
            s(f"v_readfirstlane_b32 s66, {v(vT0)}\ns_nop 4\ns_sub_u32 s60, s60, s66")
            if o["probe"] == "min": s("s_sub_u32 s60, 1200, s60")
            else: s("s_add_u32 s60, s60, 300")
            if o.get("only", role) != role: s("s_mov_b32 s60, 0")
            s(f"s_mul_i32 s60, s60, {K}\ns_add_u32 s60, s60, 4000")
            s(f"{lp}:\ns_memrealtime s[64:65]\ns_waitcnt lgkmcnt(0)\ns_sub_u32 s64, s64, s66\ns_cmp_lt_u32 s64, s60\ns_cbranch_scc1 {lp}")
        elif o["stamps"]:
            s("s_waitcnt vmcnt(0)\ns_memrealtime s[64:65]\ns_waitcnt lgkmcnt(0)")
            s(f"s_lshl2_add_u32 {sA}, s2, {sWV}\ns_lshl_b32 {sA}, {sA}, 6\ns_add_u32 {sA}, {sA}, {WS_STAMP}")
            for i, r in enumerate(["s100"] + ["s%d" % k for k in STAMPR] + ["s64"]):
                s(f"v_mov_b32 {v(vT1)}, {r}\nbuffer_store_dword {v(vT1)}, {v(vZ)}, {sWS}, {sA} offen offset:{4*i}")
        tl.straight(s)
        assert tl.bi == len(tl.bg)
        tl.log.append("end t=%d forced=%d" % (tl.t, tl.forced))
        if o["log"]: sys.stderr.write("\n".join(role + " " + x for x in tl.log) + "\n")
        return tl.out

    def build(self):
        outs = {}
        for role in ("att", "ffn"):
            st = {}
            outs[role] = finalize(self.role(role), st)
            sys.stderr.write("%s: %s\n" % (role, st))
        ia, jf = outs["att"].index("L_split:"), outs["ffn"].index("L_split:")
        assert outs["att"][:ia] == outs["ffn"][:jf], "common start differs"
        text = outs["att"][:ia] + outs["att"][ia + 1:] + ["s_endpgm", ".p2align 6", "L_ffn:"] + outs["ffn"][jf + 1:] + ["L_end:", "s_endpgm"]
        if self.o.get("al"):
            text, n, c = align_pass([NAME + "_kernel:"] + text, self.o["al"], self.o.get("lam", 30) / 100); text = text[1:]
            sys.stderr.write("alignment: %d re-encoded, residual cost %.1f\n" % (n, c))
        body = "\n".join(t if t.endswith(":") else "    " + t for t in text) + "\n"
        hdr = ["Fused LayerNorm + hedgehog linear attention + GELU FFN + residual, one persistent launch (generated by my own script).",
               "@launch grid=(256,1,1) block=(256,1,1) lds=163840"]
        return module(hdr, [(NAME + "_kernel", body, 512, 256)])

if __name__ == "__main__":
    opt = {}
    for x in sys.argv[2:]:
        k, _, val = x.partition("=")
        opt[k] = (int(val) if val.lstrip("-").isdigit() else val) if val else True
    open(sys.argv[1], "w").write(Gen(**opt).build())
```

```python
import re

TRANS = ("v_exp_f32", "v_log_f32", "v_rcp_f32", "v_rsq_f32", "v_sqrt_f32", "v_sin_f32", "v_cos_f32")
REG = re.compile(r"^(-|abs\()?([vas])(?:(\d+)|\[(\d+):(\d+)\])\)?$")

def regs_of(op):
    op = op.strip()
    if op in ("vcc",): return [("s", "vcc_lo"), ("s", "vcc_hi")]
    if op in ("vcc_lo", "vcc_hi", "m0"): return [("s", op)]
    if op == "exec": return [("s", "exec")]
    m = REG.match(op)
    if not m: return []
    t = m.group(2)
    if m.group(3) is not None: return [(t, int(m.group(3)))]
    return [(t, i) for i in range(int(m.group(4)), int(m.group(5)) + 1)]

class Ins:
    __slots__ = ("text", "op", "kind", "rd", "wr", "srcc", "passes", "tok", "cond", "cost", "wide_store", "sdata", "glue", "ahead", "lat")
    def __init__(self, text, tok=None, cond=False):
        self.text = text.strip(); self.tok = tok; self.cond = cond; self.glue = cond; self.ahead = 0; self.lat = None
        self.rd = []; self.wr = []; self.srcc = []; self.passes = 0; self.wide_store = False; self.sdata = []
        t = self.text.split(";")[0].strip()
        if t.endswith(":") or t.startswith("."):
            self.op = t; self.kind = "label"; self.cost = 0; return
        parts = t.split(None, 1)
        op = self.op = parts[0]
        rest = parts[1] if len(parts) > 1 else ""
        ops = [x.strip() for x in rest.split(",")] if rest else []
        mods = ""
        if ops:
            sp = ops[-1].split(None, 1)
            ops[-1] = sp[0]; mods = sp[1] if len(sp) > 1 else ""
        if "[" in rest and re.search(r"(quad_perm|op_sel|op_sel_hi|neg_lo|neg_hi):\[", rest):
            cut = re.search(r"\s(quad_perm|op_sel|op_sel_hi|neg_lo|neg_hi|row_|bank_mask|bound_ctrl)", rest).start()
            ops = [x.strip() for x in rest[:cut].split(",")]; mods = rest[cut:]
        R = [regs_of(o) for o in ops]
        flat = lambda l: [r for x in l for r in x]
        self.cost = 1
        if op.startswith("v_mfma"):
            self.kind = "mfma"; self.wr = R[0]; self.rd = flat(R[1:]); self.srcc = R[3]
            self.passes = 8 if "32x32" in op else 4
            self.cost = 2
        elif op.startswith("v_cmp"):
            self.kind = "valu"; self.wr = R[0]; self.rd = flat(R[1:])
        elif op.startswith("v_permlane"):
            self.kind = "valu"; self.wr = R[0] + R[1]; self.rd = R[0] + R[1]
        elif op.startswith("v_"):
            self.kind = "trans" if op.replace("_e32", "").replace("_e64", "") in TRANS else "valu"
            if self.kind == "trans": self.cost = 2
            self.wr = R[0]; self.rd = flat(R[1:])
            if op.startswith(("v_add_co", "v_addc_co", "v_sub_co", "v_subb_co")):
                self.wr = R[0] + R[1]; self.rd = flat(R[2:])
            if op.startswith(("v_fmac", "v_dot2c", "v_writelane")) or "_dpp" in op or "_sdwa" in op:
                self.rd = self.rd + R[0]
        elif op.startswith("ds_read") or op.startswith("ds_bpermute"):
            self.kind = "dsr"; self.wr = R[0]; self.rd = flat(R[1:])
        elif op.startswith("ds_"):
            self.kind = "dsw"; self.rd = flat(R)
        elif op.startswith(("buffer_load", "global_load")):
            if " lds" in (" " + mods) or op.startswith("global_load_lds"):
                self.kind = "dma"; self.rd = flat(R) + [("s", "m0")]
            else:
                self.kind = "vld"; self.wr = R[0]; self.rd = flat(R[1:])
                if "d16" in op: self.rd = self.rd + R[0]
        elif op.startswith(("buffer_store", "global_store")):
            self.kind = "vst"; self.rd = flat(R)
            self.sdata = R[0] if op.startswith("buffer") else R[1]
            self.wide_store = op.endswith(("x3", "x4"))
        elif op.startswith(("s_load", "s_memtime", "s_memrealtime")):
            self.kind = "smem"; self.wr = R[0]; self.rd = flat(R[1:])
        elif op == "s_waitcnt": self.kind = "wait"
        elif op == "s_nop": self.kind = "nop"
        elif op == "s_barrier": self.kind = "barrier"
        elif op.startswith(("s_cbranch", "s_branch", "s_endpgm", "s_sleep", "s_setprio")):
            self.kind = "ctl"
            if "vcc" in op: self.rd = regs_of("vcc")
        elif op.startswith(("s_cmp", "s_bitcmp")):
            self.kind = "salu"; self.rd = flat(R)
        elif op.startswith("s_"):
            self.kind = "salu"; self.wr = R[0]; self.rd = flat(R[1:])
            if "saveexec" in op: self.wr = self.wr + [("s", "exec")]
        elif op == "WAITTOK":
            self.kind = "waittok"; self.cost = 1
        elif op == "MARK":
            self.kind = "gap"; self.cost = 0
        elif op == "GAP":
            self.kind = "gap"; self.cost = 0
        else:
            raise ValueError("unknown instruction: " + text)
        if op.startswith("v_cndmask") and len(ops) == 3: self.rd = self.rd + regs_of("vcc")

class Stream(list):
    def __call__(self, s, tok=None, cond=False, glue=False):
        l = [Ins(x, tok, cond) for x in s.split("\n") if x.strip()]
        if glue:
            for i in l[:-1]: i.glue = True
        self.extend(l)
        return self
    def waittok(self, *toks, ahead=0, lat=None):
        i = Ins("WAITTOK"); i.tok = toks; i.ahead = ahead; i.lat = lat; self.append(i)
    def need(self, name):
        i = Ins("MARK"); i.op = "NEED"; i.tok = name; self.append(i)
    def mark(self, name):
        i = Ins("MARK"); i.tok = name; self.append(i)
    def gap(self, n):
        i = Ins("GAP"); i.tok = n; self.append(i)

VM = ("vld", "vst", "dma")
class Haz:
    SW = 4
    def __init__(self):
        self.last_w = {}; self.last_c = {}; self.last_sd = {}
    def need(self, ins, pos):
        last_w, last_c, last_sd = self.last_w, self.last_c, self.last_sd
        k = ins.kind
        need = 0
        def dist(p, n):
            nonlocal need
            need = max(need, n - (pos - p - 1))
        isv = k in ("valu", "trans")
        for r in ins.rd:
            if r not in last_w: continue
            p, pk, ps, pi = last_w[r]
            if pk == "mfma":
                if k == "mfma":
                    if r in ins.srcc and pi.wr == ins.srcc and ps == ins.passes and ins.rd.count(r) == 1: pass
                    elif r in ins.srcc and ins.rd.count(r) == 1: dist(p, ps + 2)
                    else: dist(p, ps + 4)
                else: dist(p, ps + 4)
            elif pk in ("valu", "trans"):
                if r[0] in "va":
                    if k == "mfma": dist(p, 2)
                    if pk == "trans" and isv: dist(p, 1)
                    if "_dpp" in ins.op or ins.op.startswith("v_permlane"): dist(p, 2)
                    if ins.op.startswith(("v_readlane", "v_readfirstlane")): dist(p, 1)
                    if pi.op.startswith("v_dot") and not (pi.op == ins.op and ins.rd.count(r) == 1 and r in ins.wr): dist(p, 3)
                    if ("sdwa" in pi.op or "op_sel" in pi.text) and isv: dist(p, 1)
                else:
                    if k in VM: dist(p, 5)
                    elif isv: dist(p, 4 if ins.op.startswith(("v_readlane", "v_writelane")) else 2)
                    elif k in ("salu", "ctl", "smem"): dist(p, Haz.SW)
            elif pk == "salu":
                if r == ("s", "m0") and k == "dma": dist(p, 1)
        for r in ins.wr:
            if r in last_w:
                p, pk, ps, pi = last_w[r]
                if pk == "mfma" and k != "mfma": dist(p, ps + 4)
                if pk == "mfma" and k == "mfma" and not (pi.wr == ins.wr and ps == ins.passes): dist(p, ps + 4)
                if pi.op.startswith("v_dot") and pi.op != ins.op: dist(p, 3)
            if r in last_c and k != "mfma":
                p, ps = last_c[r]; dist(p, ps - 1)
            if r in last_sd: dist(last_sd[r], 2)
        if ("s", "exec") in last_w and last_w[("s", "exec")][1] in ("valu", "trans"):
            raise ValueError("VALU exec write not modelled")
        return need
    def commit(self, ins, pos):
        for r in ins.wr: self.last_w[r] = (pos, ins.kind, ins.passes, ins)
        if ins.kind == "mfma":
            for r in ins.srcc: self.last_c[r] = (pos, ins.passes)
        if ins.wide_store:
            for r in ins.sdata: self.last_sd[r] = pos

def finalize(stream, stats=None):
    out = []
    vm_n = 0; lg_n = 0
    vm_done = 0; lg_done = 0
    pend_vm = {}; pend_lg = {}
    smem_pend = set()
    toks = {}
    pos = 0
    hz = Haz()
    nnop = 0; nwait = 0
    def emit(t):
        out.append(t)
    for ins in stream:
        k = ins.kind
        if k == "gap": continue
        if k == "label":
            emit(ins.text); continue
        need_vm = None; need_lg = None
        if k == "waittok":
            for t in ins.tok:
                c, idx = toks[t]
                if c == "vm": need_vm = max(need_vm or 0, idx)
                else: need_lg = max(need_lg or 0, idx)
        else:
            for r in ins.rd + ins.wr:
                if r in pend_vm: need_vm = max(need_vm or 0, pend_vm[r])
                if r in pend_lg: need_lg = max(need_lg or 0, pend_lg[r])
                if r in smem_pend: need_lg = 1 << 30
            if k == "vld" and "d16" in ins.op:
                need_vm = None
                for r in ins.rd:
                    if r in pend_vm and r not in ins.wr: need_vm = max(need_vm or 0, pend_vm[r])
        w = []
        if need_vm is not None and need_vm > vm_done:
            n = min(vm_n - need_vm, 63); w.append("vmcnt(%d)" % n)
            if not ins.cond: vm_done = vm_n - n
        if need_lg is not None and (need_lg > lg_done or need_lg == 1 << 30):
            if smem_pend or need_lg == 1 << 30: n = 0
            else: n = min(lg_n - need_lg, 15)
            w.append("lgkmcnt(%d)" % n)
            if not ins.cond:
                lg_done = lg_n - n
                if n == 0: smem_pend = set()
        if w:
            emit("s_waitcnt " + " ".join(w)); nwait += 1
            if not ins.cond: pos += 1
        pend_vm = {r: i for r, i in pend_vm.items() if i > vm_done}
        pend_lg = {r: i for r, i in pend_lg.items() if i > lg_done}
        if k == "waittok": continue
        if k == "wait":
            if not ins.cond:
                m = re.search(r"vmcnt\((\d+)\)", ins.text)
                if m: vm_done = max(vm_done, vm_n - int(m.group(1)))
                m = re.search(r"lgkmcnt\((\d+)\)", ins.text)
                if m:
                    if int(m.group(1)) == 0: smem_pend = set(); lg_done = lg_n
                    elif not smem_pend: lg_done = max(lg_done, lg_n - int(m.group(1)))
                pend_vm = {r: i for r, i in pend_vm.items() if i > vm_done}
                pend_lg = {r: i for r, i in pend_lg.items() if i > lg_done}
        need = hz.need(ins, pos)
        while need > 0:
            n = min(need, 16); emit("s_nop %d" % (n - 1)); nnop += n; need -= n
            if not ins.cond: pos += n
        emit(ins.text)
        hz.commit(ins, pos)
        if not ins.cond:
            if k in VM:
                vm_n += 1
                for r in ins.wr: pend_vm[r] = vm_n
                if ins.tok is not None: toks[ins.tok] = ("vm", vm_n)
            elif k in ("dsr", "dsw"):
                lg_n += 1
                for r in ins.wr: pend_lg[r] = lg_n
                if ins.tok is not None: toks[ins.tok] = ("lg", lg_n)
            elif k == "smem":
                smem_pend |= set(ins.wr)
            if k == "nop": pos += int(ins.text.split()[1]) + 1
            else: pos += 1
    if stats is not None:
        stats["nops"] = nnop; stats["waits"] = nwait; stats["n"] = len(out)
    return out

def merge(main, fill, budget=None, out=None, minb=7.0):
    out = Stream() if out is None else out
    if budget is None:
        tot = sum(i.cost for g in main for i in g) + sum(i.cost for i in fill)
        nm = len(main) + sum(1 for i in fill if i.kind == "mfma")
        budget = max(minb, tot / nm + 0.15)
    fi = 0; gap = 0; credit = 0.0
    for g in main:
        c = 0
        for ins in g:
            out.append(ins); c += ins.cost
            if ins.cost: gap = max(0, gap - 1)
        credit += budget - c
        while fi < len(fill) and (credit > 0 or (fi and fill[fi - 1].glue)):
            f = fill[fi]
            if f.op == "GAP":
                gap = f.tok; fi += 1; continue
            if gap > 0: break
            out.append(f); fi += 1
            if f.kind == "mfma": credit += budget - f.cost
            else: credit -= f.cost
        if fi >= len(fill): credit = min(credit, 0.0)
        elif gap > 0: credit = min(credit, 4.0)
    rest = Stream(fill[fi:])
    return out, rest

class Bg:
    def __init__(self, text, tok=None, after=None, sp=None):
        self.ins = Stream(); self.ins(text, tok=tok); self.tok = tok; self.after = after; self.sp = sp

SCC_USERS = ("s_cbranch_scc", "s_cselect", "s_addc", "s_subb")
def weave(fg, bg, spacing=66, log=None):
    out = Stream(); marks = set(); bi = 0; t = 0.0; pipe = 0.0; last = -1e9
    lasttok = {}
    for k, b in enumerate(bg):
        if b.tok is not None: lasttok[b.tok] = k
    issued_t = {}
    def ready(): return bi < len(bg) and (bg[bi].after is None or bg[bi].after in marks)
    def emit_bg(forced=False):
        nonlocal bi, t, last
        b = bg[bi]
        if forced: t = max(t, last + (b.sp or spacing))
        out.extend(b.ins); t += 4 * len(b.ins); last = t; issued_t[bi] = t; bi += 1
    n = len(fg)
    for idx, ins in enumerate(fg):
        if ins.op == "MARK":
            marks.add(ins.tok)
            if log is not None: log.append("mark %s t=%d bg=%d" % (ins.tok, t, bi))
            continue
        if ins.kind == "waittok":
            ks = [lasttok[x] for x in ins.tok if x in lasttok]
            if ks:
                need = max(ks); nf = 0
                while bi <= need:
                    assert ready(), ("background op blocked", ins.tok, bg[bi].after)
                    emit_bg(True); nf += 1
                while bi <= need + ins.ahead and ready(): emit_bg(True)
                if log is not None: log.append("wait %s t=%d slack=%d forced=%d" % (ins.tok, t, t - issued_t[need], nf))
        out.append(ins)
        if ins.kind == "mfma":
            t = max(t, pipe); pipe = t + 4 * ins.passes; t += 8
        elif ins.op == "ds_read_b128": t += 6
        elif ins.kind == "nop": t += 4 * (int(ins.text.split()[1]) + 1)
        else: t += 4 * ins.cost
        if ins.kind in VM and not ins.cond: last = t
        if ins.glue or ins.kind == "label": continue
        nx = [x for x in fg[idx + 1:idx + 4] if x.kind != "gap"]
        if nx and (nx[0].cond or nx[0].kind == "label"): continue
        if any(x.op.startswith(SCC_USERS) for x in nx[:2]): continue
        if ready() and t >= last + (bg[bi].sp or spacing):
            inm = pipe > t - 40
            good = (not inm) or (ins.kind in ("mfma", "dsr") and not (nx and nx[0].kind == "dsr"))
            if good: emit_bg()
    assert bi == len(bg), "background ops left over"
    if log is not None: log.append("end t=%d" % t)
    return out


class TL:
    def __init__(self, spacing=66, vlat=650, llat=130):
        self.out = Stream(); self.bg = []; self.bi = 0; self.marks = set()
        self.t = 0.0; self.pipe = -1000.0; self.last = -1e9; self.pos = 0; self.hz = Haz()
        self.spacing = spacing; self.vlat = vlat; self.llat = llat
        self.tokt = {}; self.log = []; self.free = 0; self.forced = 0; self.ta = 0; self.m16 = False; self.pen = 4; self.hold = 0; self.vpen = 6; self.lw = 0; self.watch = None; self.seen = set()
    def B(self, text, tok=None, after=None, sp=None): self.bg.append(Bg(text, tok, after, sp))
    def lastbg(self, tok):
        k = None
        for i, b in enumerate(self.bg):
            if b.tok == tok: k = i
        return k
    def bg_ready(self):
        return self.bi < len(self.bg) and (self.bg[self.bi].after is None or self.bg[self.bi].after in self.marks)
    def bg_due(self):
        if not self.bg_ready(): return False
        b = self.bg[self.bi]
        return self.t + 4 * (len(b.ins) - 1) >= self.last + (b.sp or self.spacing)
    def emit_bg(self, forced=False):
        b = self.bg[self.bi]; self.bi += 1
        for i in b.ins[:-1]: self.raw(i)
        self.raw(b.ins[-1])
    def raw(self, ins):
        n = self.hz.need(ins, self.pos)
        if n > 0 and not ins.cond: self.t += 4 * n; self.pos += n
        self.out.append(ins)
        self.hz.commit(ins, self.pos)
        if ins.cond or ins.kind == "label": return
        k = ins.kind
        if k == "mfma":
            self.t = max(self.t, self.pipe); self.pipe = self.t + 4 * ins.passes; self.t += 8; self.free = -1 if (ins.passes == 8 or not self.m16) else 0
        elif k in ("dsr", "dsw") or k in VM:
            if self.free == -1: self.t += self.pen; self.free = 1 if self.pen else 0
            elif self.free == -2: self.t += self.vpen if k in VM else 6; self.free = 0
            if ins.op == 'ds_write_b128': self.t = max(self.t, self.lw); self.lw = self.t + 52
            if k in VM:
                self.t = max(self.t, self.ta); self.ta = self.t + (64 if ins.op.endswith('x4') else 24); self.last = self.t
            self.t += 4
        elif k == "nop": self.t += 4 * (int(ins.text.split()[1]) + 1)
        elif k in ("salu", "wait", "waittok", "ctl", "smem", "barrier"):
            if self.free == 1: self.free = 0
            else: self.t += 4
            if k == "barrier": self.t += 12
        else:
            self.t += 4 * ins.cost
            if self.free != 1: self.free = -2
        if k == "nop": self.pos += int(ins.text.split()[1]) + 1
        elif k != "waittok": self.pos += 1
        if ins.tok is not None and k != "waittok": self.tokt[ins.tok] = (self.t, k in VM)
    def tok_time(self, ins):
        r = 0
        for x in ins.tok:
            k = self.lastbg(x)
            if (k is not None and k >= self.bi) or x not in self.tokt: return 1e18
            t0, vm = self.tokt[x]
            r = max(r, t0 + (ins.lat if ins.lat is not None else (self.vlat if vm else self.llat)))
        return r
    def tok_ready(self, ins):
        for x in ins.tok:
            k = self.lastbg(x)
            if k is not None and k >= self.bi: return False
            t0, vm = self.tokt[x]
            if self.t < t0 + (ins.lat if ins.lat is not None else (self.vlat if vm else self.llat)): return False
        return True
    def emit(self, ins):
        if ins.op == "MARK":
            self.marks.add(ins.tok); self.log.append("mark %s t=%d bg=%d" % (ins.tok, self.t, self.bi)); return
        if ins.op == "NEED":
            assert ins.tok in self.marks, ins.tok; return
        if ins.op == "GAP": return
        if ins.kind == "waittok":
            ks = [k for k in (self.lastbg(x) for x in ins.tok) if k is not None]
            nf = 0
            if ks:
                need = max(ks)
                while self.bi <= need:
                    assert self.bg_ready(), ("background op blocked", ins.tok, self.bg[self.bi].after)
                    self.emit_bg(True); nf += 1
                while self.bi <= need + ins.ahead and self.bg_ready(): self.emit_bg(True)
            t0 = max(self.tokt[x][0] for x in ins.tok); vm = any(self.tokt[x][1] for x in ins.tok)
            if vm: self.log.append("wait %s t=%d slack=%d forced=%d" % (ins.tok, self.t, self.t - t0, nf))
            self.t = max(self.t, t0 + (500 if vm else 100))
            nm = "".join(map(str, ins.tok[0])) if isinstance(ins.tok[0], tuple) else str(ins.tok[0])
            if self.watch and nm not in self.seen:
                self.seen.add(nm)
                a = self.watch("<" + nm); b = self.watch(">" + nm)
                if a: self.out.append(Ins(a))
                self.raw(ins)
                if b: self.out.append(Ins(b))
                return
        self.raw(ins)
    def straight(self, fg):
        for idx, ins in enumerate(fg):
            self.emit(ins)
            if ins.glue or ins.kind in ("label", "gap"): continue
            nx = [x for x in fg[idx + 1:idx + 4] if x.kind != "gap"]
            if nx and (nx[0].cond or nx[0].kind == "label"): continue
            if any(x.op.startswith(SCC_USERS) for x in nx[:2]): continue
            if self.bg_due():
                inm = self.pipe > self.t - 40
                if (not inm) or (ins.kind in ("mfma", "dsr") and not (nx and nx[0].kind == "dsr")): self.emit_bg()
    def sched(self, M, Fs, nds=2):
        mi = 0; fi = [0] * len(Fs)
        def head(k):
            F = Fs[k]
            while fi[k] < len(F):
                x = F[fi[k]]
                if x.op == "MARK": self.emit(x); fi[k] += 1
                elif x.op == "GAP" or (x.op == "NEED" and x.tok in self.marks): fi[k] += 1
                elif x.op == "NEED": return None
                else: return x
            return None
        def take(k):
            F = Fs[k]
            while True:
                x = F[fi[k]]; fi[k] += 1; self.emit(x)
                nxt = F[fi[k]] if fi[k] < len(F) else None
                if not (x.glue or x.kind == "label" or (nxt is not None and (nxt.cond or nxt.kind == "label" or nxt.op.startswith(SCC_USERS)))): break
            head(k)
        def ready(x):
            if x.kind == "waittok": return self.tok_ready(x)
            if x.op == "ds_write_b128" and max(self.t + 6, self.pipe) < self.lw: return False
            return self.hz.need(x, self.pos) <= 0
        def mstate():
            if mi >= len(M): return 0
            st = 2; npre = 0
            for x in M[mi]:
                if x.op == "NEED":
                    if x.tok not in self.marks: return 0
                elif x.kind == "waittok":
                    if not self.tok_ready(x): st = 1
                elif x.kind == "mfma":
                    if self.hz.need(x, self.pos + npre) > 0: st = 1
                    break
                elif x.kind != "gap": npre += 1
            return st
        def window(n):
            for k in range(len(Fs)):
                while n > 0:
                    x = head(k)
                    if x is not None and x.kind == "waittok" and ready(x) and fi[k] + 1 < len(Fs[k]) and Fs[k][fi[k] + 1].kind == "dsr":
                        take(k); continue
                    if x is None or x.kind not in ("dsr", "vst", "dsw") or not ready(x): break
                    take(k); n -= 2 if x.op == 'ds_read_b128' else 1
            if self.bg_due(): self.emit_bg()
        while True:
            hs = [head(k) for k in range(len(Fs))]
            if mi >= len(M) and all(fi[k] >= len(Fs[k]) for k in range(len(Fs))): break
            ms = mstate()
            fm = next((k for k, x in enumerate(hs) if x is not None and x.kind == "mfma" and ready(x)), None)
            def do_m():
                nonlocal mi
                for x in M[mi]: self.emit(x)
                mi += 1
                if getattr(M[mi - 1], "small", False):
                    if self.bg_due(): self.emit_bg(); window(M[mi - 1].small - 1)
                    else: window(M[mi - 1].small)
                else: window(nds + (0 if any(y.kind == 'dsr' for y in M[mi - 1]) else 2))
            def do_fm():
                p = hs[fm].passes; take(fm); window(nds if p == 8 else 1)
            if self.t > self.pipe - 4:
                if fm is not None: do_fm(); continue
                if ms == 2: do_m(); continue
            f = next((k for k, x in enumerate(hs) if x is not None and x.kind not in ("mfma", "dsr", "vst", "dsw") and ready(x)), None)
            idle = ms != 2 and fm is None
            if idle and (f is None or mi >= len(M)):
                f = next((k for k, x in enumerate(hs) if x is not None and x.kind != "mfma" and ready(x)), None)
            if f is not None:
                take(f)
                if idle and self.pipe <= self.t and self.bg_due():
                    paced = mi < len(M) and any(y.op == "NEED" and y.tok not in self.marks and y.tok[0] == "ep" for y in M[mi])
                    if not (self.hold and (mstate() == 2 or (paced and self.t < self.last + self.hold))): self.emit_bg()
                continue
            if True:
                nd = [self.hz.need(x, self.pos) for x in hs if x is not None and x.kind != "waittok"]
                nd = [n for n in nd if n > 0]; room = int((self.pipe - self.t) // 4)
                if nd and room >= 1:
                    self.raw(Ins("s_nop %d" % (min(min(nd), room) - 1))); continue
            if fm is not None: do_fm(); continue
            if ms == 2: do_m(); continue
            f = next((k for k, x in enumerate(hs) if x is not None and x.kind != "waittok"), None)
            if f is not None: self.forced += 1; take(f); continue
            if self.bg_ready(): self.emit_bg(True); continue
            cand = [(self.tok_time(x), k) for k, x in enumerate(hs) if x is not None]
            if ms == 1: cand.append((max([self.tok_time(x) for x in M[mi] if x.kind == "waittok"] + [0]), -1))
            assert cand, ("schedule is stuck", mi, [Fs[k][fi[k]].tok for k in range(len(Fs)) if fi[k] < len(Fs[k])])
            tt, f = min(cand)
            assert tt < 1e17, ("schedule is stuck", mi, [Fs[k][fi[k]].tok for k in range(len(Fs)) if fi[k] < len(Fs[k])], self.bg[self.bi].after)
            if tt > self.t: self.log.append("idle %d at t=%d" % (tt - self.t, self.t)); self.t = tt
            if f < 0: do_m()
            else: take(f)


def align_pass(lines, mode=1, lam=0.3):
    import subprocess, tempfile, os
    d = tempfile.mkdtemp()
    open(d + "/a.s", "w").write('.amdgcn_target "amdgcn-amd-amdhsa--gfx950"\n.text\n' + "\n".join(l for l in lines if not l.startswith(".")) + "\n")
    subprocess.run(["clang", "-x", "assembler", "-target", "amdgcn-amd-amdhsa", "-mcpu=gfx950", "-c", d + "/a.s", "-o", d + "/a.o"], check=True)
    dis = subprocess.run(["llvm-objdump", "-d", "--mcpu=gfx950", d + "/a.o"], capture_output=True, text=True).stdout
    sizes = [4 * len(re.findall(r"\b[0-9A-F]{8}\b", l.split("//")[1].split(":", 1)[1])) for l in dis.split("\n") if "//" in l]
    idx = [i for i, l in enumerate(lines) if not l.endswith(":") and not l.startswith(".")]
    assert len(idx) == len(sizes), (len(idx), len(sizes))
    size = dict(zip(idx, sizes))
    bad = (lambda o: o == 28) if mode == 1 else (lambda o: (1.0 if o == 28 else 0.25) if o % 8 else 0)
    INF = 1e18
    cost = [0.0] + [INF] * 7; back = []
    for i, l in enumerate(lines):
        nc = [INF] * 8; b = [None] * 8
        for s in range(8):
            if cost[s] >= INF: continue
            if l.startswith(".p2align"): opts = [(0, cost[s], 0)]
            elif i not in size: opts = [(s, cost[s], 0)]
            else:
                z = size[i]; opts = [((s + z // 4) % 8, cost[s] + (bad(4 * s) if z >= 8 else 0), 0)]
                op = l.split()[0]
                if z == 4 and op.startswith("v_") and not op.startswith(("v_readfirstlane", "v_nop")):
                    opts.append(((s + 2) % 8, cost[s] + lam + bad(4 * s), 1))
            for ns, c, p in opts:
                if c < nc[ns]: nc[ns] = c; b[ns] = (s, p)
        cost = nc; back.append(b)
    s = min(range(8), key=lambda k: cost[k]); out = list(lines); n = 0
    for i in range(len(lines) - 1, -1, -1):
        s, p = back[i][s]
        if p:
            w = out[i].split(None, 1); out[i] = w[0] + "_e64 " + w[1]; n += 1
    return out, n, min(cost)
```

```python
import sys, struct, os
from asmlib import module
from backend import *

NAME = "parallel_sum__linear_kernel_hedgehog__dense_activation_gelu__prompt"
def f2u(x): return "0x%x" % struct.unpack("<I", struct.pack("<f", x))[0]
LOG2E = 1.4426950408889634
K0 = -2.0 * LOG2E * 0.7978845608028654

WS_G = 0; WS_FL1 = 0x1000; WS_FL2 = 0x3000; WS_STATS = 0x8000; WS_KVP = 0x40000; WS_ACT = 0x200000
KVREC = 17 * 1024; TBSTR = 118 * 1024; WS_STAMP = 0x1000000
TAGC = 0x9E3779B9
R = [0, 32768, 65536, 98304, 131072]
SCR = R[3] + 16384
FFN_BLK0 = [0, 6, 11, 16, 22, 27, 32, 38]
FFN_NBLK = [6, 5, 5, 6, 5, 5, 6, 5]
SBL = [[4, 5, 10], [15, 20, 21], [26, 31, 43], [36, 37, 42]]
def pack(l): return "0x%x" % sum(b << (8 * i) for i, b in enumerate(l))

sX, sW, sWS, sW2, sWo, sOut, sAux, sB2 = ("s[%d:%d]" % (i, i + 3) for i in (8, 12, 16, 20, 24, 28, 32, 36))
sM, sN = "s0", "s1"
sWV, sT, sJ, sU, sI = "s3", "s4", "s5", "s6", "s7"
sROT, sQ4, sTT, sCB, sFL, sSTB = "s64", "s65", "s66", "s67", "s68", "s69"
sA, sB, sC, sD = "s70", "s71", "s72", "s73"
sXB = ["s74", "s75", "s76", "s77"]
sAB = ["s78", "s79", "s80", "s81"]
sXK = ["s82", "s83"]; sSO = ["s84", "s85"]
sBA, sBB = "s86", "s87"; sBS = ["s88", "s89", "s90"]
sPCOL, sW8K, sW16K = "s91", "s92", "s93"
sBLKP, sBLKS = "s94", "s95"; sFK = "s95"; sHD = sHK = "s6"
sE0, sE1 = "s96", "s97"
sPAR = "s[98:99]"
STAMPR = [60, 40, 42, 44, 50, 52, 46, 54, 62, 56, 58, 48]

class VA:
    def __init__(self, start=1): self.n = start
    def __call__(self, k=1, al=1):
        self.n = (self.n + al - 1) // al * al
        r = self.n; self.n += k
        assert self.n <= 256, "out of VGPRs"
        return r
def v(i, k=1): return "v%d" % i if k == 1 else "v[%d:%d]" % (i, i + k - 1)
def ag(i, k=1): return "a%d" % i if k == 1 else "a[%d:%d]" % (i, i + k - 1)
MF = "v_mfma_f32_32x32x16_bf16"; MF16 = "v_mfma_f32_16x16x32_bf16"
DPPM = "row_mask:0xf bank_mask:0xf"

def srd(s, d, p, n):
    d0 = int(d[2:].split(":")[0])
    s(f"s_mov_b32 s{d0}, s{p}\ns_mov_b32 s{d0+1}, s{p+1}\ns_mov_b32 s{d0+2}, {n}\ns_mov_b32 s{d0+3}, 0x20000")

class Gen:
    def __init__(self, **opt):
        self.o = dict(stamps=False, warm=0, outsc1=True, sp=54, sp1=48, ahead=8, log=False, umode=0, vlat=650, stlat=650,
                      ah0=0, s0p=7, pgo=0, c1l=0, warmb=4, phl=1, a1=3, a2=16, a3=30, b2=16, b3=30, srot=1, xrot=1, wrot=0, sg=64, sv=1, x1l=650, NP=20, bh=200, vpen=6, llat=130, tlb=0, tlbp=0, z5=1, cbx=2, wA=0, wq=0, hsw=0, gq=4, pk=1, kz=1, xlate=0, sg0=0, sg1=0, al=1, lam=10, spx=56, spx3=64, sps0=64, sps1=56, spw0=80, spw1=64, ssplit=3, xord=0, rord=1, fpace=22, priof=0, nds2=1, p1v=1, s1=7, x2a="b5", xa=1, npc=2, nP=16, p2hold=1, spa=72, p2e=3, stlat2=600, qx=4, nq=2, plat0=0, plat=0, sp0=40, warmc=1, stag=1, warmf=0, wsp=180, wpos=0, wpos2=6, cbmix=0, warmm=2, sw=0, px=1, slpK=1, ah0b=6, lag=2, s0=4, slp=2, slat=750, wlat=700, wlat0=1100, nE=4, pace=3, kvpace=16, kvhold=99, hold=0, kvl=12, prio=1, fSa=5, fS=6, fO=8, fOf=9, ah2=2, fo=2)
        self.o.update(opt); self.uid = 0
        Haz.SW = self.o["hsw"]
        global TBSTR, WS_ACT
        TBSTR = 118 * 1024 + self.o.get("tbpad", 0); WS_ACT = 0x200000 + self.o.get("actoff", 0)
    def lab(self, p):
        self.uid += 1; return "L_%s_%d" % (p, self.uid)
    def stamp(self, s, name):
        if self.o.get("dly") == name and self.o.get("dr", self.cur) == self.cur:
            s("s_sleep 8"); s[-1].cost = 0
        if not self.o["stamps"]: return
        names = str(self.o.get("st", "x0,b0,p1,u1,u2,u3,u4,u5,q,o,mm14,red")).split(",")
        if name in names:
            r = STAMPR[names.index(name)]; s(f"s_memrealtime s[{r}:{r+1}]")

    def role(self, role):
        kP = role == "att"; qS = not kP; o = self.o; self.cur = role
        tl = TL(o["sp"], o["vlat"]); B = tl.B
        def watch(name):
            x = Stream(); self.stamp(x, name); return x[0].text if x else None
        tl.watch = watch; tl.m16 = True; tl.pen = o.get("pen", 0); tl.hold = o["bh"]; tl.vpen = o["vpen"]; tl.llat = o["llat"]
        s = Stream(); a = VA(1)
        stride, strS = (3072, 2752) if kP else (2752, 3072)
        vL16 = a(); vXD0 = a(); vXD = a(4); vOUT = a(); vTAG = a(2, 2); vN16 = a(); vXR = a(4); vSR = a()
        vT0 = a(1, 2); vT1 = a(); vT2 = a(); vT3 = a()
        vSD = a(4); vWD = a(4); vPR = vWD + 1; vWR = a(2); vFL = a(2, 2); vFA = a(); vZ = a()
        vAA = vXD; vWQ = vSD
        assert vXD == 3
        vKA = a(2)
        XR = a(8, 4); B2 = a(4, 4)
        ACC = [a(16, 4), a(16, 4)]; NX = 8; XF = a(4 * NX, 4)
        CA = [a(4, 4), a(4, 4)]; ST = a(16, 4); CBS = a(4, 4); CS = a(4, 4); CSEL = a(4, 4); vPD = CBS
        KC = [a(3) for _ in range(4)]; KCS = a(3); vB1 = a()
        F4 = a(4, 4); F8a = a(8, 4); TA = a(16, 4); G4 = F4
        if kP:
            ONES = a(4, 4); SEL = [a(4, 4), a(4, 4)]; F8b = a(8, 4); PHI = [a(4, 4)]; KV = a(16, 4); TB = a(16, 4); HO = F8b
        else:
            SEL = [a(4, 4)]; F8b = a(4, 4); PHI = [a(4, 4), a(4, 4)]; PF = a(32, 4); HO = F8a
        vJ = a(4)
        sys.stderr.write("%s VGPRs: %d\n" % (role, a.n))
        sp1 = o["sp1"]; abl = str(o.get("abl", ""))
        tmp = ACC[0]
        def run4(pre, vb, srdn, tok, after, sp=None, so=sM):
            for q in range(4):
                B(f"{pre if q == 0 else ''}\nbuffer_load_dwordx4 {v(vb+q)}, {srdn}, {so} offen offset:{1024*q} lds", tok, after, sp)
        def dma_x(i, after, sp=None, ks=(0, 1)):
            for k in ks:
                pre = f"s_add_u32 m0, {sW8K}, {R[i]+k*4096}"
                if i and o["xrot"]:
                    pre = f"s_xor_b32 m0, {sXB[0]}, {R[i]+k*4096}"
                    if (i, k) == (2, 0):
                        pre = (f"s_bitcmp1_b32 {sI}, {o['xrot']-1}\ns_cselect_b32 {sM}, {sXK[1]}, {sXK[0]}\ns_cselect_b32 {sXK[1]}, {sXK[0]}, {sXK[1]}\ns_cselect_b32 {sXB[0]}, 0x1000, 0\n"
                               f"s_mov_b32 {sXK[0]}, {sM}\ns_or_b32 {sXB[0]}, {sXB[0]}, {sW8K}\n") + pre
                run4(pre + f"\ns_add_u32 {sM}, {sXB[i]}, {sXK[k]}", vXD, sX, ("x", i), after, sp)
        def dma_xp(r, after, sp):
            pre = "" if r == 0 else f"s_add_u32 {sXK[1]}, {sXK[1]}, 256\ns_and_b32 {sXK[1]}, {sXK[1]}, 0x380\n"
            run4(pre + f"s_add_u32 m0, {sXK[0]}, {8192*r}\ns_add_u32 {sM}, {sXB[1]}, {sXK[1]}", vXD, sX, ("xp", r), after, sp)
        PSL = [R[4], R[4] + 16384, R[2], R[2] + 16384, R[3], R[3] + 16384, R[4], R[4] + 16384]
        s("s_cmp_ge_u32 s2, 256\ns_cbranch_scc1 L_end")
        sk = int(os.environ.get("SKEW", "0")) if o["stamps"] else 0
        if sk:
            s(f"s_xor_b32 s4, s2, 7\ns_and_b32 s4, s4, 7\ns_mul_i32 s4, s4, {sk}\nL_sk:\ns_cmp_eq_u32 s4, 0\ns_cbranch_scc1 L_skd\ns_sleep 1\ns_sub_u32 s4, s4, 1\ns_branch L_sk\nL_skd:")
        s("s_load_dwordx16 s[40:55], s[0:1], 0\ns_load_dwordx8 s[56:63], s[0:1], 64")
        if o["stamps"]: s("s_memrealtime s[100:101]")
        s(f"s_lshr_b32 {sI}, s2, 3")
        if o["warmc"] == 1:
            s(f"s_getpc_b64 s[72:73]\nL_pc:\ns_sub_u32 s72, s72, L_pc-{NAME}_kernel\ns_subb_u32 s73, s73, 0", glue=True)
            s(f"s_lshl_b32 {sA}, {sI}, 11\nv_lshrrev_b32 v1, 4, v0\nv_lshl_add_u32 v1, v1, 7, {sA}\nv_min_u32 v1, L_end-{NAME}_kernel, v1")
            s(f"global_load_dword {v(XR+4)}, v1, s[72:73]")
        s(f"v_lshrrev_b32 v1, 6, v0\nv_and_b32 v0, 63, v0\nv_readfirstlane_b32 {sWV}, v1\nv_lshlrev_b32 v1, 4, v0")
        s(f"s_and_b32 {sA}, s2, 7\ns_lshr_b32 {sROT}, {sI}, 2\ns_and_b32 {sU}, {sI}, 3")
        s(f"s_and_b32 {sT}, {sA}, 1\ns_lshl3_add_u32 {sT}, {sT}, {sROT}\ns_lshr_b32 {sQ4}, {sA}, 1")
        if o.get("p2x", 1):
            s(f"s_andn2_b32 {sC}, 1, {sA}\ns_lshl2_add_u32 {sA}, {sC}, {sQ4}")
        s(f"s_lshr_b32 {sC}, {sI}, 3\ns_lshl2_add_u32 {sTT}, {sA}, {sC}")
        s(f"s_lshl2_add_u32 {sA}, {sT}, {sQ4}\ns_lshl_b32 {sXB[0]}, {sA}, 15")
        s(f"s_lshl2_add_u32 {sD}, {sU}, {sWV}\ns_lshl_b32 {sA}, {sD}, 11\ns_add_u32 {sSO[0]}, {sXB[0]}, {sA}")
        s(f"s_lshl_b32 {sSTB}, {sT}, 11\ns_add_u32 {sSTB}, {sSTB}, {WS_STATS}\ns_lshl4_add_u32 {sD}, {sQ4}, {sD}\ns_lshl_b32 {sD}, {sD}, 5\ns_add_u32 {sFL}, {sD}, {sSTB}")
        s(f"v_and_b32 {v(vOUT)}, 0x70, v1\nv_and_b32 v3, 0x30, v0\nv_xor_b32 v2, {v(vOUT)}, v3\nv_lshrrev_b32 v3, 3, v0\nv_lshl_add_u32 v3, v3, 10, v2")
        for q in range(3, 0, -1):
            s(f"v_xor_b32 {v(vXD+q)}, {64*(q&1)}, v3\nv_add_u32 {v(vXD+q)}, {7168*q}, {v(vXD+q)}")
        s(f"s_lshr_b32 {sB}, {sWV}, 1\ns_add_u32 {sA}, {sQ4}, {sB}\ns_and_b32 {sA}, {sA}, 3\ns_lshl2_add_u32 {sA}, {sT}, {sA}\ns_lshl_b32 {sXB[1]}, {sA}, 15")
        s(f"s_and_b32 {sA}, {sWV}, 1\ns_lshl3_add_u32 {sB}, {sB}, {sA}\ns_lshl_b32 {sXK[0]}, {sB}, 12\ns_add_u32 {sA}, {sA}, {sROT}\ns_lshl_b32 {sA}, {sA}, 7\ns_and_b32 {sXK[1]}, {sA}, 0x380")
        s(f"s_mov_b32 s10, {2048*1024}\ns_mov_b32 s11, 0x20000\ns_mov_b32 s18, 0x10000000\ns_mov_b32 s19, 0x20000")
        def ppat():
            s(f"s_and_b32 {sJ}, {sU}, 1\ns_lshl1_add_u32 {sJ}, {sQ4}, {sJ}\ns_lshl_b32 {sE1}, {sWV}, 12")
            s(f"s_mov_b32 s70, {pack(FFN_BLK0[:4])}\ns_mov_b32 s71, {pack(FFN_BLK0[4:])}\ns_lshl_b32 {sC}, {sJ}, 3\ns_lshr_b64 s[70:71], s[70:71], {sC}\ns_and_b32 {sBLKP}, s70, 0xff")
            s(f"s_lshl_b32 {sPCOL}, {sBLKP}, 6\ns_lshl_b32 {sD}, {sJ}, 7\ns_add_u32 {sD}, {sD}, 1024\ns_movk_i32 {sA}, 2752\ns_movk_i32 {sC}, 128\ns_mov_b32 s15, 0x20000")
            s(f"s_cmp_lt_u32 {sU}, 2\ns_cselect_b32 {sPCOL}, {sD}, {sPCOL}\ns_cselect_b32 {sA}, 3072, {sA}\ns_cselect_b32 {sB}, 1, 2\ns_cselect_b32 {sC}, 1024, {sC}\ns_cselect_b32 {sE0}, 7, 5", glue=True)
            s(f"s_lshl_b32 s14, {sA}, 9\ns_mul_i32 {sD}, {sWV}, {sA}\ns_mov_b32 {sSO[1]}, {sPCOL}\ns_lshl4_add_u32 {sPCOL}, {sD}, {sPCOL}\ns_lshl_b32 {sBLKS}, {sA}, 6")
            s(f"v_lshrrev_b32 {v(vT0)}, 4, v0\nv_and_b32 {v(vT1)}, 15, v0\nv_lshlrev_b32 {v(vT3)}, {sB}, {v(vT0)}\nv_xor_b32 {v(vT1)}, {v(vT1)}, {v(vT3)}")
            s(f"v_mul_u32_u24 {v(vT0)}, {sA}, {v(vT0)}\nv_lshrrev_b32 {v(vT3)}, 3, {v(vT1)}\nv_mad_u32_u24 {v(vT0)}, {v(vT3)}, {sC}, {v(vT0)}\nv_and_b32 {v(vT1)}, 7, {v(vT1)}")
            s(f"v_lshl_add_u32 {v(vPD)}, {v(vT1)}, 4, {v(vT0)}\ns_lshl_b32 {sA}, {sA}, 2\ns_sub_u32 {sA}, {sA}, 1024")
            for q in range(1, 4): s(f"v_add_u32 {v(vPD+q)}, {sA}, {v(vPD+q-1)}")
        if o["pgo"]: ppat()
        if o["warmc"] >= 2:
            s(f"s_lshl2_add_u32 {sA}, {sI}, {sWV}\ns_mul_i32 {sA}, {sA}, 384\ns_min_u32 {sA}, {sA}, L_end-{NAME}_kernel-384")
            s(f"s_getpc_b64 s[72:73]\nL_pc:\ns_sub_u32 s72, s72, L_pc-{NAME}_kernel\ns_subb_u32 s73, s73, 0\ns_add_u32 s72, s72, {sA}\ns_addc_u32 s73, s73, 0", glue=True)
        s("s_waitcnt lgkmcnt(0)"); self.stamp(s, "go")
        s("s_mov_b64 s[8:9], s[40:41]\ns_mov_b64 s[16:17], s[62:63]"); s.mark("go")
        if o["stag"]: s(f"s_load_dword {sBA}, s[62:63], 0")
        assert o["kz"] == 1 and not o["sw"] & 9 and o["warmc"] < 2 and o["stag"]
        def stouch(base, off):
            s(f"s_load_dword {sBB}, s[{base}:{base+1}], {off}"); s[-1].wr = [("s", "junk%d" % len(s))]
        if o["sw"] & 1:
            s(f"s_lshl2_add_u32 {sA}, {sI}, {sWV}\ns_lshl_b32 {sB}, {sA}, 7"); stouch(44, sB)
            s(f"s_add_u32 {sB}, {sB}, 64\ns_min_u32 {sC}, {sA}, 42\ns_lshl_b32 {sC}, {sC}, 6"); stouch(44, sB); stouch(52, sC)
            s(f"s_and_b32 {sC}, {sC}, 0x3c0"); stouch(56, sC)
        if o["sw"] & 2: stouch(62, sFL)
        if o["sw"] & 4:
            s(f"s_lshl2_add_u32 {sA}, s2, {sWV}\ns_min_u32 {sA}, {sA}, 383\ns_lshl_b32 {sA}, {sA}, 6\ns_add_u32 {sA}, {sA}, {WS_FL1}"); stouch(62, sA)
        if o["sw"] & 8:
            s(f"s_lshl2_add_u32 {sA}, s2, {sWV}\ns_bfe_u32 {sB}, {sA}, 0x50004\ns_and_b32 {sA}, {sA}, 15\ns_mul_i32 {sB}, {sB}, {KVREC}\ns_lshl_b32 {sA}, {sA}, 6\ns_add_u32 {sA}, {sA}, {sB}\ns_add_u32 {sA}, {sA}, {WS_KVP+16384}"); stouch(62, sA)
        if o["warmc"] >= 2:
            for k in range(0, 6, o["warmc"] - 1): s(f"s_load_dword {sBB}, s[72:73], {64*k}"); s[-1].wr = [("s", "junk%d" % k)]
        for r in range(2): B(f"buffer_load_dwordx4 {v(tmp+4*r,4)}, {v(vL16)}, {sX}, {sSO[0]} offen offset:{1024*r}", "rows", "go", sp=8)
        if not o["stag"]: B(f"buffer_load_dword {v(vTAG)}, {v(vXD0)}, {sWS}, 0 offen sc1", "tag", sp=8)
        if o["xa"]: dma_xp(0, None, o["sp0"])
        if not o["pgo"]: ppat()
        s(f"s_cmp_lt_u32 {sU}, 2\ns_cselect_b64 s[12:13], s[42:43], s[50:51]", glue=True)
        s.mark("pd")
        def dma_p(ci, after=None):
            mul = sBLKS if ci == 0 else 64 * stride
            run4(f"s_add_u32 {sM}, {sROT}, {ci}\ns_and_b32 {sM}, {sM}, 7\ns_mul_i32 {sM}, {sM}, {mul}\ns_add_u32 m0, {sE1}, {PSL[ci]}\ns_add_u32 {sM}, {sM}, {sPCOL}", vPD, sW, ("p", ci), after, sp1 if ci else 16)
        dma_p(0, "pd")
        if not o["xa"]: dma_xp(0, None, o["sp0"])
        s(f"v_and_b32 {v(vT0)}, 31, v0\nv_lshlrev_b32 {v(vN16)}, 4, {v(vT0)}\nv_lshlrev_b32 {v(vT1)}, 7, {v(vT0)}")
        s(f"v_bfe_u32 {v(vT0)}, v0, 1, 3\nv_lshrrev_b32 {v(vT2)}, 5, v0\nv_xor_b32 {v(vT0)}, {v(vT0)}, {v(vT2)}\nv_lshl_add_u32 {v(vXR)}, {v(vT0)}, 4, {v(vT1)}")
        for cq in range(1, 4): s(f"v_xor_b32 {v(vXR+cq)}, {32*cq}, {v(vXR)}")
        yR, yP, yF, yH, x0, x1 = (ACC[1] + i for i in range(6))
        s(f"v_bfe_u32 {v(yR)}, v0, 2, 2\nv_bfe_u32 {v(yP)}, v0, 4, 1\ns_add_u32 {sB}, {sB}, 4")
        s(f"v_and_b32 {v(yF)}, 16, {v(vL16)}\nv_and_b32 {v(yH)}, 2, v0\nv_lshl_add_u32 {v(yF)}, {v(yH)}, 2, {v(yF)}\nv_lshl_add_u32 {v(yH)}, {v(vT2)}, 3, {v(yR)}")
        s(f"v_xor_b32 {v(x0)}, {sWV}, {v(yR)}\nv_lshl_add_u32 {v(x0)}, {v(x0)}, {sB}, {v(yF)}\nv_lshl_add_u32 {v(x0)}, {v(yP)}, {sE0}, {v(x0)}")
        s(f"v_cmp_eq_u32 vcc, {v(yR)}, {v(yP)}\nv_mov_b32 {v(vT1)}, 0x3f803f80")
        s(f"v_lshl_add_u32 {v(x0)}, {v(yH)}, 8, {v(x0)}\nv_add_u32 {v(vPR)}, {R[2]}, {v(x0)}\nv_add_u32 {v(vPR+1)}, {R[4]}, {v(x0)}")
        for i in range(4): s(f"v_cndmask_b32 {v(CSEL+i)}, 0, {v(vT1)}, vcc")
        if o["cbmix"]: s(f"s_lshr_b32 {sCB}, {sI}, 3\ns_lshl1_add_u32 {sCB}, {sCB}, {sI}")
        s(f"s_xor_b32 {sCB}, {sI}, {o['cbx']}\ns_and_b32 {sCB}, {sCB}, 7\ns_lshl_b32 {sCB}, {sCB}, 7\ns_lshl_b32 {sW16K}, {sWV}, 14\ns_lshl_b32 {sW8K}, {sWV}, 13\nv_mov_b32 {v(vZ)}, 0")
        s(f"s_and_b32 {sA}, {sWV}, 1\ns_cmp_eq_u32 {sA}, 1\ns_cselect_b64 {sPAR}, -1, 0")
        for i in range(4):
            s(f"s_add_u32 {sA}, {sQ4}, {i}\ns_and_b32 {sA}, {sA}, 3\ns_lshl2_add_u32 {sA}, {sT}, {sA}")
            if i > 1: s(f"s_lshl_b32 {sXB[i]}, {sA}, 15")
            s(f"s_mul_i32 {sAB[i]}, {sA}, {TBSTR}\ns_add_u32 {sAB[i]}, {sAB[i]}, {WS_ACT}")
        srd(s, sB2, 56, 1024)
        srd(s, sW2, 54, 1376 * 1024); srd(s, sWo, 46, 512 * 1024); srd(s, sOut, 58, 2048 * 1024)
        tl.straight(s); s = Stream()
        while tl.bi < len(tl.bg): tl.emit_bg(True)
        s(f"s_cmp_ge_u32 {sU}, 2\ns_cbranch_scc1 L_ffn\nL_split:", glue=True)
        if kP:
            s(f"s_lshl2_add_u32 {sHK}, {sJ}, {sWV}\ns_lshl_b32 {sD}, {sBLKP}, 6\ns_add_u32 {sD}, {sD}, 256")
            s(f"s_lshr_b32 {sB}, {sWV}, 1\ns_add_u32 {sBLKS}, {sBLKP}, {sB}\ns_add_u32 {sBLKS}, {sBLKS}, 4")
        else:
            s(f"s_add_u32 {sA}, {sJ}, {o['qx']}\ns_and_b32 {sA}, {sA}, 7\ns_lshl_b32 {sD}, {sA}, 7\ns_lshl2_add_u32 {sHD}, {sA}, {sWV}\ns_add_u32 {sBLKP}, {sBLKP}, {sWV}")
        srd(s, sAux, 44, 32 * 512)
        t0, t2 = G4, G4 + 1
        s(f"v_and_b32 {v(t0)}, 0x13, v0\nv_and_b32 {v(t2)}, 4, v0\nv_lshl_add_u32 {v(t0)}, {v(t2)}, 1, {v(t0)}\nv_bfe_u32 {v(t2)}, v0, 3, 1\nv_lshl_add_u32 {v(t0)}, {v(t2)}, 2, {v(t0)}")
        s(f"v_and_b32 {v(t2)}, 32, v0\nv_lshl_add_u32 {v(t0)}, {v(t2)}, 8, {v(t0)}\nv_lshlrev_b32 {v(t0)}, 1, {v(t0)}")
        s.mark("aux")
        sWS2 = sB2
        B(f"buffer_load_dwordx4 {v(B2,4)}, {v(vOUT)}, {sB2}, {sCB} offen", None, "aux", sp=16)
        B(f"s_mov_b64 s[36:37], s[52:53]\ns_movk_i32 s38, 2752\ns_lshl_b32 {sM}, {sBLKS if kP else sBLKP}, 6\nbuffer_load_ushort {v(vB1)}, {v(t0)}, {sB2}, {sM} offen", sp=16)
        B(f"s_mov_b64 s[36:37], s[{50 if kP else 42}:{51 if kP else 43}]\ns_mov_b32 s38, {512*strS}\n"
          f"s_lshr_b32 {sM}, {sHD}, 1\ns_add_u32 m0, {sE1}, {SCR}\ns_lshl_b32 {sM}, {sM}, 10\nbuffer_load_dwordx4 {v(vL16)}, {sAux}, {sM} offen lds", "b2", sp=16)
        w1 = vJ + 1
        def warm3(pos):
            if o["warmm" if (kP or o["wA"] != 2) else "warmb"] != pos or (o["wA"] == 1 and not kP): return
            wa, wd = (vFL, vFL + 1) if 2 <= pos <= 4 else (XR, XR + 1); m = 2 if o["wA"] else 1
            wid = f"s_add_u32 {sN}, s2, {0 if kP else 3}\ns_and_b32 {sM}, s2, 8\ns_and_b32 {sN}, {sN}, 7\ns_or_b32 {sN}, {sN}, {sM}\ns_lshl4_add_u32 {sN}, {sROT}, {sN}\ns_lshl2_add_u32 {sN}, {sN}, {sWV}" if o["wA"] else f"s_lshl2_add_u32 {sN}, s2, {sWV}"
            B(f"v_min_u32 {v(wa)}, {11*m-1}, v0\nv_lshlrev_b32 {v(wa)}, 7, {v(wa)}\n{wid}\ns_mul_i32 {sM}, {sN}, {11*128*m}\nbuffer_load_dword {v(wd)}, {v(wa)}, {sW2}, {sM} offen", None, "stok" if 2 <= pos <= 4 else None, sp=16)
            tl.bg[-1].ins[-1].wr = []
            B(f"v_min_u32 {v(wa)}, {(4*m-1)*128}, {v(wa)}\ns_lshl_b32 {sM}, {sN}, {8+m}\nbuffer_load_dword {v(wd)}, {v(wa)}, {sWo}, {sM} offen", sp=32)
        def warmq(pos):
            if o["wq"] != pos or not kP: return
            B(f"v_and_b32 {v(XR+2)}, 15, v0\nv_lshrrev_b32 {v(XR+3)}, 1, {v(XR+2)}\nv_mul_u32_u24 {v(XR+3)}, 3072, {v(XR+3)}\nv_and_b32 {v(XR+2)}, 1, {v(XR+2)}\nv_lshl_add_u32 {v(XR+2)}, {v(XR+2)}, 7, {v(XR+3)}\n"
              f"s_and_b32 {sM}, {sI}, 1\ns_lshl1_add_u32 {sM}, {sROT}, {sM}\ns_lshl2_add_u32 {sM}, {sM}, {sWV}\ns_mul_i32 {sM}, {sM}, {8*3072}\n"
              f"s_lshl_b32 {sN}, {sQ4}, 8\ns_add_u32 {sN}, {sN}, {128*o['qx']}\ns_and_b32 {sN}, {sN}, 0x3ff\ns_add_u32 {sM}, {sM}, {sN}\nbuffer_load_dword {v(XR+3)}, {v(XR+2)}, {sW}, {sM} offen", sp=16)
        def stats_ld(i, r):
            h = f"s_add_u32 {r}, {sQ4}, {i}" if i > 1 else f"s_and_b32 {r}, {sWV}, 1\ns_xor_b32 {r}, {r}, {i}\ns_add_u32 {r}, {r}, {sQ4}"
            return h + f"\ns_and_b32 {r}, {r}, 3\ns_lshl_b32 {r}, {r}, 9\ns_add_u32 {r}, {r}, {sSTB}\nbuffer_load_dwordx4 {v(ST+4*i,4)}, {v(vN16)}, {sWS}, {r} offen sc1"
        for ci in range(1, 9):
            if ci == o["s0p"]:
                for i in range(2): B(stats_ld(i, sM), "stat0", "b%d" % o["s0"], sp=32)
            if ci < 8 and ci % 2 == 0: dma_xp(ci // 2, None, sp1)
            if ci < 8: dma_p(ci, {1: "su", 5: "phi", 6: "b2", 7: "b3"}.get(ci))
        if True:
            s(f"v_bfe_u32 {v(x0)}, v0, 1, 1\nv_lshl_add_u32 {v(x0)}, {v(yP)}, 1, {v(x0)}\nv_lshlrev_b32 {v(x0)}, 3, {v(x0)}\nv_lshl_add_u32 {v(x0)}, {v(yH)}, 5, {v(x0)}")
            s(f"s_and_b32 {sC}, s98, 0x200\ns_add_u32 {sA}, {sE1}, {sC}\ns_add_u32 {sA}, {sA}, {SCR}")
            s(f"v_add_u32 {v(TA)}, {sA}, {v(x0)}\nv_xor_b32 {v(TA+1)}, 0x200, {v(TA)}"); s.mark("pha")
        s(f"s_movk_i32 {sB}, {strS}")
        if o["srot"]:
            s(f"s_mul_i32 {sSO[0]}, {sROT}, {64*strS}\ns_lshl_b32 {sSO[1]}, {sWV}, 11\ns_mul_i32 {sA}, {sWV}, {16*strS}\ns_add_u32 {sD}, {sD}, {sA}")
        else:
            for k in range(2):
                s(f"s_add_u32 {sA}, {sWV}, {sROT}\ns_add_u32 {sA}, {sA}, {4*k}\ns_and_b32 {sA}, {sA}, 7\ns_mul_i32 {sA}, {sA}, {64*strS}\ns_add_u32 {sSO[k]}, {sA}, {sD}")
        def dma_s(half, after):
            if not o["srot"]:
                for k in range(2): run4(f"s_add_u32 m0, {sW8K}, {R[4-4*half]+k*4096}\ns_add_u32 {sM}, {sSO[half]}, {32*strS*k}", vSD, sWS2, ("s", half), after, o["sps%d" % half])
                return
            for g in range(4):
                pre = f"s_add_u32 m0, {sSO[1]}, {R[4-4*half]+g*8192}\n"
                pre += f"s_add_u32 {sSO[0]}, {sSO[0]}, {64*strS}\ns_cmp_eq_u32 {sSO[0]}, {512*strS}\ns_cselect_b32 {sSO[0]}, 0, {sSO[0]}" if (half or g) else "s_nop 0"
                for q in range(2):
                    sp = o["sg"] if (half, g, q) == (0, 1, 0) else o["sps%d" % half]
                    B(f"{pre if q == 0 else ''}\nbuffer_load_dwordx4 {v(vSD+q)}, {sWS2}, {sSO[0]} offen offset:{1024*q} lds", ("s", half), after, sp)
        s(f"v_lshrrev_b32 {v(vT0)}, 3, v0\nv_lshlrev_b32 {v(vT1)}, 2, v0\nv_and_b32 {v(vT1)}, 64, {v(vT1)}\nv_xor_b32 {v(vT1)}, {v(vT1)}, {v(vOUT)}")
        s(f"v_mad_u32_u24 {v(vSD)}, {v(vT0)}, {sB}, {v(vT1)}")
        if o["srot"]: s(f"v_add_u32 {v(vSD)}, {sD}, {v(vSD)}")
        if kP and o["z5"]:
            five = sum(1 << i for i, n in enumerate(FFN_NBLK) if n == 5)
            s(f"s_lshr_b32 {sC}, {five}, {sJ}\ns_and_b32 {sC}, {sC}, 1\ns_lshl_b32 {sC}, {sC}, 6\nv_and_b32 {v(vSD+1)}, {sC}, {v(vT1)}\nv_lshl_add_u32 {v(vSD)}, {v(vSD+1)}, 20, {v(vSD)}")
        for q in range(1, 2 if o["srot"] else 4): s(f"v_add_u32 {v(vSD+q)}, {q*(8*strS-1024)}, {v(vSD)}")
        s(f"v_lshl_add_u32 {v(vWD+3)}, {v(vT0)}, 10, {v(vT1)}")
        if kP:
            s(f"v_lshl_add_u32 {v(vT3)}, {v(vT2)}, 9, {v(vN16)}\nv_lshlrev_b32 {v(vT2)}, 5, {v(vT2)}\nv_add_u32 {v(vT2)}, 0x400, {v(vT2)}")
            s(f"v_cmp_gt_u32 vcc, 0x100, {v(vN16)}\nv_add_u32 {v(vT0)}, 16, {v(vT2)}\nv_add_u32 {v(vT1)}, 0x100, {v(vT3)}")
            s(f"v_cndmask_b32 {v(vKA)}, {v(vT2)}, {v(vT3)}, vcc\nv_cndmask_b32 {v(vKA+1)}, {v(vT0)}, {v(vT1)}, vcc")
        s(f"v_lshrrev_b32 {v(x0)}, 1, {v(yR)}\nv_lshl_add_u32 {v(x0)}, {v(x0)}, 6, {v(yF)}\nv_lshl_add_u32 {v(x0)}, {v(yP)}, 5, {v(x0)}\nv_lshl_add_u32 {v(x0)}, {v(yH)}, 7, {v(x0)}")
        s(f"v_lshrrev_b32 {v(vWR)}, 4, v0\nv_lshl_add_u32 {v(vWR)}, {v(vWR)}, 3, {v(yR)}\nv_and_b32 {v(x1)}, 2, {v(yR)}\nv_or_b32 {v(x1)}, {v(x1)}, {v(yP)}")
        s(f"v_lshl_add_u32 {v(vWR)}, {v(vWR)}, 2, {v(x1)}\nv_and_b32 {v(x1)}, 3, v0\nv_lshl_add_u32 {v(vWR)}, {v(vWR)}, 2, {v(x1)}\nv_lshlrev_b32 {v(vWR)}, 3, {v(vWR)}")
        if qS: s(f"s_lshl_b32 {sA}, {sWV}, 5")
        else: s(f"s_and_b32 {sA}, {sWV}, 2\ns_lshl_b32 {sA}, {sA}, 5")
        s(f"v_xor_b32 {v(x0)}, {sA}, {v(x0)}\nv_add_u32 {v(vSR)}, {R[4]}, {v(x0)}")
        if kP:
            if o["kz"] == 0:
                for i in range(4): s(f"v_mov_b32 {v(ONES+i)}, 0x3f803f80")
            elif o["kz"] == 1:
                for i in range(8): s(f"v_mov_b32 {v(F8b+i)}, 0x3f803f80")
            else:
                s(f"v_lshrrev_b32 {v(ONES)}, 4, v0\nv_cmp_eq_u32 vcc, 1, {v(ONES)}\nv_mov_b32 {v(ONES)}, 0\nv_mov_b32 {v(ONES+3)}, 0")
                s(f"v_cndmask_b32 {v(ONES+1)}, 0, 1.0, vcc\nv_lshrrev_b32 {v(ONES+2)}, 16, {v(ONES+1)}")
        s(f"v_and_b32 {v(vFA)}, {15 if qS else 7}, v0\nv_lshlrev_b32 {v(vFA)}, 3, {v(vFA)}")
        if True:
            s(f"v_bfe_u32 {v(vT0)}, v0, 2, 1\nv_lshrrev_b32 {v(vT2)}, 5, v0\nv_cmp_eq_u32 vcc, {v(vT0)}, {v(vT2)}")
            s(f"v_and_b32 {v(vT0)}, 16, {v(vL16)}\nv_mov_b32 {v(vT2)}, 0x3f80\nv_lshlrev_b32 {v(vT2)}, {v(vT0)}, {v(vT2)}\nv_cndmask_b32 {v(vT2)}, 0, {v(vT2)}, vcc")
            s(f"v_bfe_u32 {v(vT0)}, v0, 1, 1\nv_bfe_u32 {v(vT3)}, v0, 3, 2\nv_lshl_add_u32 {v(vT0)}, {v(vT3)}, 1, {v(vT0)}")
            for i in range(0, 4 * len(SEL), 2):
                s(f"v_cmp_eq_u32 vcc, {i}, {v(vT0)}\nv_cmp_eq_u32 s[70:71], {i+1}, {v(vT0)}")
                s(f"s_nop 0\nv_cndmask_b32 {v(SEL[i>>2]+(i&3))}, 0, {v(vT2)}, vcc\nv_cndmask_b32 {v(SEL[i>>2]+(i&3)+1)}, 0, {v(vT2)}, s[70:71]")
            if qS: s(f"s_lshl_b32 {sFK}, {sHD}, 7\ns_add_u32 {sFK}, {sFK}, {WS_FL1}")
        s.mark("su")
        s.waittok("rows", ahead=o["ah0"]); self.stamp(s, "rows")
        q = ST
        s(f"v_mov_b32 {v(vT1)}, 0x3f803f80")
        for i in range(4): s(f"v_mov_b32 {v(q+i)}, 0")
        for i in range(4):
            for r in range(2):
                s(f"v_dot2c_f32_bf16 {v(q+r)}, {v(tmp+4*r+i)}, {v(vT1)}\nv_dot2c_f32_bf16 {v(q+2+r)}, {v(tmp+4*r+i)}, {v(tmp+4*r+i)}")
        if o["stag"]: s(f"s_mov_b32 {sA}, {sBA}\nv_lshrrev_b32 {v(vT0)}, 1, v0")
        else:
            s.waittok("tag")
            s(f"v_readfirstlane_b32 {sA}, {v(vTAG)}\nv_lshrrev_b32 {v(vT0)}, 1, v0")
        s(f"v_permlane32_swap_b32 {v(q)}, {v(q+1)}\nv_permlane32_swap_b32 {v(q+2)}, {v(q+3)}")
        s(f"v_add_f32 {v(q)}, {v(q)}, {v(q+1)}\nv_add_f32 {v(q+2)}, {v(q+2)}, {v(q+3)}\ns_add_u32 {sA}, {sA}, 0x{TAGC:x}")
        s(f"v_mov_b32 {v(vTAG)}, {sA}\nv_permlane16_swap_b32 {v(q)}, {v(q+2)}\nv_add_f32 {v(q)}, {v(q)}, {v(q+2)}")
        s(f"v_mov_b32 {v(vTAG+1)}, {sA}\nv_mov_b32 {v(q+1)}, {sA}")
        for m in ("quad_perm:[1,0,3,2]", "quad_perm:[2,3,0,1]", "row_half_mirror", "row_mirror"):
            s(f"v_add_f32_dpp {v(q)}, {v(q)}, {v(q)} {m} {DPPM}")
        if o["sv"]:
            s(f"v_mul_f32 {v(q)}, {f2u(1/512)}, {v(q)}\nv_mov_b32 {v(q+2)}, {v(q)}\nv_mov_b32 {v(q+3)}, {v(q)}\nv_and_b32 {v(vT1)}, 16, v0")
            s(f"v_permlane16_swap_b32 {v(q+2)}, {v(q+3)}\nv_cmp_ne_u32 vcc, 0, {v(vT1)}")
            s(f"v_fma_f32 {v(q+3)}, -{v(q+2)}, {v(q+2)}, {v(q+3)}\nv_max_f32 {v(q+3)}, 0, {v(q+3)}\nv_add_f32 {v(q+3)}, {f2u(1e-5)}, {v(q+3)}\nv_sqrt_f32 {v(q+3)}, {v(q+3)}")
            s(f"v_cndmask_b32 {v(q+2)}, -{v(q+2)}, {v(q+3)}, vcc\nv_cvt_pk_bf16_f32 {v(q)}, {v(q+2)}, {v(q+2)}\nv_lshlrev_b32 {v(q+3)}, 16, {v(q)}")
            s(f"v_sub_f32 {v(q+2)}, {v(q+2)}, {v(q+3)}\nv_cvt_pk_bf16_f32 {v(q)}, {v(q+3)}, {v(q+2)}")
        s(f"s_mov_b32 exec_lo, 0x00010001\ns_mov_b32 exec_hi, 0x00010001\nbuffer_store_dwordx2 {v(q,2)}, {v(vT0)}, {sWS}, {sFL} offen sc1\ns_mov_b64 exec, -1", glue=True)
        self.stamp(s, "st")
        s(f"s_lshr_b32 {sFL}, {sTT}, 1\ns_lshl4_add_u32 {sFL}, {sFL}, {sWV}\ns_lshl_b32 {sFL}, {sFL}, 6\ns_add_u32 {sFL}, {sFL}, {WS_FL2}")
        s(f"s_lshl_b32 {sC}, {sWV}, 3")
        for d, tb in ((sBA, FFN_BLK0[0::2]), (sBB, FFN_BLK0[1::2]), (sBS[0], [x[0] for x in SBL]), (sBS[1], [x[1] for x in SBL]), (sBS[2], [x[2] for x in SBL])):
            s(f"s_lshr_b32 {d}, {pack(tb)}, {sC}\ns_and_b32 {d}, {d}, 0xff\ns_lshl_b32 {d}, {d}, 11")
        KR = vJ
        s(f"s_and_b32 {sA}, s98, 0x8000\ns_xor_b32 {sB}, {sA}, 0x8000")
        for i in range(4): s(f"v_add_u32 {v(KR+i)}, {sA}, {v(vXR+i)}\nv_add_u32 {v(vXR+i)}, {sB}, {v(vXR+i)}")
        assert all(b.tok != "b2" for b in tl.bg[tl.bi:]) or True
        PH = Stream() if o["phl"] else s
        s.mark("auxi")
        s(f"v_lshrrev_b32 {v(vT0)}, 3, v0\nv_lshl_add_u32 {v(vOUT)}, {v(vT0)}, 10, {v(vOUT)}")
        if not qS:
            six = sum(1 << i for i, n in enumerate(FFN_NBLK) if n == 6)
            s(f"s_lshr_b32 {sC}, {six}, {sJ}\ns_lshr_b32 {sA}, {sWV}, 1\ns_andn2_b32 {sC}, {sA}, {sC}\ns_and_b32 {sC}, {sC}, 1\ns_lshl_b32 {sC}, {sC}, 18\ns_or_b32 {sBLKS}, {sBLKS}, {sC}")
        if True:
            s(f"v_and_b32 {v(vT2)}, 4, v0\nv_cmp_ne_u32 vcc, 0, {v(vT2)}\nv_mov_b32 {v(vT3)}, 0x80008000\ns_nop 0\nv_cndmask_b32 {v(vT3)}, 0, {v(vT3)}, vcc")
            PH.waittok("b2", lat=0)
            for hs in range(len(PHI)):
                for e in range(2): PH(f"ds_read_b64_tr_b16 {v(PHI[hs]+2*e,2)}, {v(TA+hs)} offset:{e*128}", tok="phr")
            PH.waittok("phr"); PH.mark("phi")
            for i in range(4 * len(PHI)): PH(f"v_xor_b32 {v(PHI[i>>2]+(i&3))}, {v(vT3)}, {v(PHI[i>>2]+(i&3))}")
        def xread(st, un, region, ks):
            st(f"ds_read_b128 {v(XF+4*(ks%NX),4)}, {v(vXR+(ks&3))} offset:{region+(ks>>2)*4096}", tok=("xf", un, ks))
        def stat_consts0(st, i):
            m, va = ST + 4 * i, ST + 4 * i + 2; k = KC[i]
            st(f"v_mul_f32 {v(m)}, {f2u(1/512)}, {v(m)}\nv_mul_f32 {v(va)}, {f2u(1/512)}, {v(va)}\nv_fma_f32 {v(va)}, -{v(m)}, {v(m)}, {v(va)}\nv_max_f32 {v(va)}, 0, {v(va)}")
            st(f"v_add_f32 {v(va)}, {f2u(1e-5)}, {v(va)}\nv_sqrt_f32 {v(va)}, {v(va)}\nv_mov_b32 {v(m+3)}, 0")
            st(f"v_cvt_pk_bf16_f32 {v(m+1)}, -{v(m)}, {v(va)}\nv_rcp_f32 {v(k)}, {v(va)}")
            st(f"v_lshlrev_b32 {v(vT0)}, 16, {v(m+1)}\nv_and_b32 {v(vT1)}, 0xffff0000, {v(m+1)}")
            st(f"v_sub_f32 {v(m)}, -{v(m)}, {v(vT0)}\nv_sub_f32 {v(vT1)}, {v(va)}, {v(vT1)}")
            if kP: st(f"v_mul_f32 {v(k+1)}, {f2u(LOG2E)}, {v(k)}\nv_mov_b32 {v(k+2)}, {v(va)}")
            else:
                st(f"v_mov_b32 {v(k+2)}, {v(va)}\nv_mul_f32 {v(k+1)}, {v(k)}, {v(k)}\nv_mul_f32 {v(k)}, {f2u(K0)}, {v(k)}")
                st(f"v_mul_f32 {v(k+1)}, {v(k+1)}, {v(k)}\nv_mul_f32 {v(k+1)}, {f2u(0.044715)}, {v(k+1)}")
            st(f"v_cvt_pk_bf16_f32 {v(m)}, {v(vT0)}, {v(m)}\nv_cvt_pk_bf16_f32 {v(m+2)}, {v(va)}, {v(vT1)}\nv_mov_b32 {v(m+1)}, {v(m)}")
        def stat_consts(st, i):
            if not o["sv"]: return stat_consts0(st, i)
            m = ST + 4 * i; k = KC[i]
            st(f"v_lshlrev_b32 {v(k)}, 16, {v(m+2)}\nv_and_b32 {v(k+2)}, 0xffff0000, {v(m+2)}\nv_add_f32 {v(k+2)}, {v(k+2)}, {v(k)}")
            st(f"v_rcp_f32 {v(k)}, {v(k+2)}\nv_mov_b32 {v(m+1)}, {v(m)}\nv_mov_b32 {v(m+3)}, 0")
            if kP: st(f"v_mul_f32 {v(k+1)}, {f2u(LOG2E)}, {v(k)}")
            else:
                st(f"v_mul_f32 {v(k+1)}, {v(k)}, {v(k)}\nv_mul_f32 {v(k)}, {f2u(K0)}, {v(k)}")
                st(f"v_mul_f32 {v(k+1)}, {v(k+1)}, {v(k)}\nv_mul_f32 {v(k+1)}, {f2u(0.044715)}, {v(k+1)}")
        def corr_pre(st, which):
            c = CA[which]
            st(f"v_mov_b32 {v(c+3)}, 0")
            if which == kP: st(f"v_lshl_or_b32 {v(c+2)}, {v(vB1)}, 16, {v(vB1)}")
            else: st(f"v_mov_b32 {v(c+2)}, 0")
        def corr_a(st, which):
            c = CA[which]
            st(f"v_cvt_pk_bf16_f32 {v(c)}, {v(CS)}, {v(CS)}\nv_lshlrev_b32 {v(vT1)}, 16, {v(c)}\nv_sub_f32 {v(vT0)}, {v(CS)}, {v(vT1)}")
            st(f"v_cvt_pk_bf16_f32 {v(c+1)}, {v(vT0)}, {v(vT0)}")
        def spin(st, test, reload_, name):
            lp, ok = self.lab("poll"), self.lab("ok")
            st(test + f"\ns_cbranch_vccz {ok}", glue=True)
            st(f"s_mov_b32 {sC}, 0", cond=True)
            st(lp + ":")
            slp = o["slp"] if name in ("fO", "fS") else o["slpK"]
            if slp: st(f"s_sleep {slp}", cond=True)
            st(reload_, cond=True)
            st(f"s_add_u32 {sC}, {sC}, 1\ns_cmp_gt_u32 {sC}, 100000\ns_cbranch_scc1 {ok}\ns_waitcnt vmcnt(0)", cond=True)
            st(test + f"\ns_nop 4\ns_cbranch_vccnz {lp}", cond=True)
            st(ok + ":\ns_nop 0"); st.mark(name); self.stamp(st, name)
        corr_pre(PH, 0); corr_pre(PH, 1)
        tl.straight(s)
        ia = [x for x in tl.log if x.startswith("mark auxi")][0]
        assert int(ia.split("bg=")[1]) > tl.lastbg("b2"), "small loads must be issued before their address registers change"
        s = Stream()
        if o["phl"]: s.need("b0"); s.extend(PH)
        n0 = len(tl.bg)
        dma_x(2, "b5", o["spx"])
        x2pre = Stream(); x2pre(f"s_lshl1_add_u32 {sM}, {sWV}, {sROT}\ns_lshl_b32 {sM}, {sM}, 7\ns_and_b32 {sXK[0]}, {sM}, 0x380\ns_add_u32 {sM}, {sM}, 128\ns_and_b32 {sXK[1]}, {sM}, 0x380")
        tl.bg[n0].ins = Stream(x2pre + tl.bg[n0].ins)
        for i in range(2, 4): B(stats_ld(i, sM), "stats", None, sp=32)
        if not o["xord"]: dma_x(3, "b7", o["spx3"])
        lag = o["lag"]
        Mp = []
        def mfa(kp): return f"{MF} {v(ACC[0],16)}, {ag(4*kp,4)}, {ag(128+4*kp,4)}, {v(ACC[0],16) if kp else 0}"
        def mfb(kp): return f"{MF} {v(ACC[1],16)}, {ag(4*kp,4)}, {v(XF+4*(kp%NX),4)}, {v(ACC[1],16) if kp else 0}"
        def mf16(kp): return f"{MF16} {v(CS,4)}, {v(CSEL,4)}, {ag(4*kp,4)}, {v(CS,4) if kp else 0}"
        def pread(g, ks):
            ci, kk = ks >> 2, ks & 3; hi = PSL[ci] >= R[4]
            for e in range(2):
                g(f"ds_read_b64_tr_b16 {ag(4*ks+2*e,2)}, {v(vPR+hi)} offset:{PSL[ci]-R[4 if hi else 2]+kk*4096+e*1024}", tok=("pf", ks))
        def grp(f):
            g = Stream(); f(g); Mp.append(g)
        for ks in range(32):
            ci, kk = ks >> 2, ks & 3; kp = ks - lag
            g = Stream()
            if kk == 0:
                if ci == 0: g.waittok(("xp", 0), ("p", 0), ahead=o["ah0b"], lat=o["plat0"]); self.stamp(g, "x0")
                else: g.waittok(("p", ci), ahead=o["ahead"], lat=o["plat"])
                g("s_barrier"); g.mark("b%d" % ci); self.stamp(g, "b%d" % ci)
            if kp >= 0: g.waittok(("xf", 0, kp), lat=0); g(mfa(kp))
            pread(g, ks); Mp.append(g); g = Stream()
            if kp >= 0: g(mfb(kp))
            g(f"ds_read_b128 {ag(128+4*ks,4)}, {v(KR+(ks&3))} offset:{(ks>>2)*4096}"); xread(g, 0, 0, ks)
            if ks == 31: g.mark("prd")
            Mp.append(g)
            if kp >= 0: grp(lambda g: g(mf16(kp)))
        x = s
        x.waittok("stat0")
        def tagtest(b):
            return (f"v_xor_b32 {v(vT0)}, {v(vTAG)}, {v(b+1)}\nv_xor_b32 {v(vT1)}, {v(vTAG)}, {v(b+3)}\nv_xor_b32 {v(vFL)}, {v(vTAG)}, {v(b+5)}\nv_xor_b32 {v(vFL+1)}, {v(vTAG)}, {v(b+7)}\n"
                    f"v_or3_b32 {v(vT0)}, {v(vT0)}, {v(vFL)}, {v(vFL+1)}\nv_cmp_ne_u64 vcc, 0, {v(vT0,2)}")
        def swapab(st, k):
            st(f"s_cmp_lg_u32 s98, 0\ns_cselect_b32 {sB}, {sAB[k+1]}, {sAB[k]}\ns_cselect_b32 {sAB[k+1]}, {sAB[k]}, {sAB[k+1]}\ns_mov_b32 {sAB[k]}, {sB}", glue=True)
        spin(x, tagtest(ST), stats_ld(0, sA) + "\n" + stats_ld(1, sA), "st0")
        stat_consts(x, 0); stat_consts(x, 1); swapab(x, 0)
        if kP and o["kz"] == 1: x("s_mov_b32 s32, 0xffff\ns_mov_b32 s33, 0xffff")
        x.need("prd")
        x(f"v_mov_b32 {v(vWD)}, {v(vWD+3)}")
        for q in range(1, 4): x(f"v_add_u32 {v(vWD+q)}, {7168*q}, {v(vWD)}")
        for q in (1, 3): x(f"v_xor_b32 {v(vWD+q)}, 32, {v(vWD+q)}")
        x(f"s_lshl_b32 {sPCOL}, {sTT}, 16\ns_add_u32 {sPCOL}, {sPCOL}, {sW16K}\ns_add_u32 {sPCOL}, {sPCOL}, {sCB}")
        x(f"s_and_b32 {sE1}, s98, 0x8000\ns_add_u32 {sA}, {sE1}, 0x8000")
        for i in range(4): x(f"v_add_u32 {v(vXR+i)}, {sA}, {v(vXR+i)}")
        x.need("cs0"); corr_a(x, 0); x.mark("ca0")
        for n, kp in enumerate(range(32 - lag, 32)):
            grp(lambda g: (g.waittok(("xf", 0, 31), lat=0) if n == 0 else None, g(mf16(kp)), g.mark("cs0") if kp == 31 else None))
        for kp in range(32 - lag, 32): grp(lambda g: g(mfa(kp)))
        grp(lambda g: g(mfb(32 - lag)))
        grp(lambda g: (g.need("ca0"), g(f"{MF} {v(ACC[0],16)}, {v(CA[0],4)}, {v(ST,4)}, {v(ACC[0],16)}"), self.stamp(g, "p1")))
        for kp in range(33 - lag, 32): grp(lambda g: g(mfb(kp)))
        grp(lambda g: g(f"{MF} {v(ACC[1],16)}, {v(CA[0],4)}, {v(ST+4,4)}, {v(ACC[1],16)}"))
        tl.sched(Mp, [x])
        if o.get("stop"):
            out = Stream()
            for i in tl.out:
                if "m" in o["stop"] and i.kind == "mfma": continue
                if "s" in o["stop"] and (i.kind == "vst" or i.cond or i.op.startswith("s_cbranch_vcc")): continue
                if "b" in o["stop"] and i.kind == "barrier": continue
                if "d" in o["stop"] and (i.kind == "dsr" or (i.kind == "waittok" and (i.tok[0] == "phr" or i.tok[0][0] == "xf"))): continue
                out.append(i)
            s = out
            s("s_waitcnt vmcnt(0)\ns_memrealtime s[64:65]\ns_waitcnt lgkmcnt(0)")
            s(f"s_lshl2_add_u32 {sA}, s2, {sWV}\ns_lshl_b32 {sA}, {sA}, 6\ns_add_u32 {sA}, {sA}, {WS_STAMP}")
            for i, r in enumerate(["s100"] + ["s%d" % k for k in STAMPR] + ["s64"]):
                s(f"v_mov_b32 {v(vT1)}, {r}\nbuffer_store_dword {v(vT1)}, {v(vZ)}, {sWS}, {sA} offen offset:{4*i}")
            return s

        def gelu(e, acc, k, sbase, sblk, tok):
            e(f"s_lshl_b32 {sB}, {sblk}, 11\ns_add_u32 {sB}, {sB}, {sbase}")
            for q in range(4):
                A = [v(acc + 4 * q + i) for i in range(4)]; T = [v(G4 + i) for i in range(4)]
                for i in range(4): e(f"v_mul_f32 {T[i]}, {A[i]}, {A[i]}")
                for i in range(4): e(f"v_fma_f32 {T[i]}, {T[i]}, {v(k+1)}, {v(k)}")
                for i in range(4): e(f"v_mul_f32 {T[i]}, {A[i]}, {T[i]}")
                for i in range(4): e(f"v_exp_f32 {T[i]}, {T[i]}")
                for i in range(4): e(f"v_fma_f32 {T[i]}, {T[i]}, {v(k+2)}, {v(k+2)}")
                for i in range(4): e(f"v_rcp_f32 {T[i]}, {T[i]}")
                for i in range(4): e(f"v_mul_f32 {T[i]}, {A[i]}, {T[i]}")
                for i in range(2): e(f"v_cvt_pk_bf16_f32 {v(HO+2*q+i)}, {T[2*i]}, {T[2*i+1]}")
                if q & 1: e(f"buffer_store_dwordx4 {v(HO+4*(q>>1),4)}, {v(vL16)}, {sWS}, {sB} offen offset:{1024*(q>>1)} sc1", tok=tok)
        def sm_head(e, src, phi, T_, f4):
            for i in range(4): e(f"v_cvt_pk_bf16_f32 {v(f4+i)}, {v(src+2*i)}, {v(src+2*i+1)}")
            e(f"{MF} {v(T_,16)}, {v(phi,4)}, {v(f4,4)}, 0")
        def sm_body(e, T_, k, dst, scale=False, pk=False):
            t2, t3 = v(vT2), v(vT3); T = lambda i: v(T_ + i)
            e(f"v_max3_f32 {t2}, {T(0)}, {T(1)}, {T(2)}\nv_max3_f32 {t3}, {T(3)}, {T(4)}, {T(5)}")
            for i in range(2): e(f"v_max3_f32 {t2}, {t2}, {T(6+4*i)}, {T(7+4*i)}\nv_max3_f32 {t3}, {t3}, {T(8+4*i)}, {T(9+4*i)}")
            e(f"v_max3_f32 {t2}, {t2}, {T(14)}, {T(15)}\nv_max_f32 {t2}, {t2}, {t3}\nv_mul_f32 {t2}, {t2}, {v(k+1)}")
            P = lambda i: v(T_ + i, 2); tt = v(vT2, 2)
            if pk:
                assert k % 2 == 0 and vT2 % 2 == 0
                for i in range(0, 16, 2): e(f"v_pk_fma_f32 {P(i)}, {P(i)}, {v(k,2)}, {tt} op_sel:[0,1,0] op_sel_hi:[1,1,0] neg_lo:[0,0,1] neg_hi:[0,0,1]")
            else:
                for i in range(16): e(f"v_fma_f32 {T(i)}, {T(i)}, {v(k+1)}, -{t2}")
            for i in range(16): e(f"v_exp_f32 {T(i)}, {T(i)}")
            if pk:
                e(f"v_pk_add_f32 {tt}, {P(0)}, {P(2)}")
                for i in range(4, 16, 2): e(f"v_pk_add_f32 {tt}, {tt}, {P(i)}")
            else:
                e(f"v_add_f32 {t2}, {T(0)}, {T(1)}\nv_add_f32 {t3}, {T(2)}, {T(3)}")
                for i in range(4, 16, 2): e(f"v_add_f32 {t2}, {t2}, {T(i)}\nv_add_f32 {t3}, {t3}, {T(i+1)}")
            e(f"v_add_f32 {t2}, {t2}, {t3}\nv_rcp_f32 {t2}, {t2}")
            if scale: e(f"v_mul_f32 {t2}, {t2}, {v(k)}")
            if pk:
                for i in range(0, 16, 2): e(f"v_pk_mul_f32 {P(i)}, {P(i)}, {tt} op_sel_hi:[1,0]")
            else:
                for i in range(16): e(f"v_mul_f32 {T(i)}, {T(i)}, {t2}")
            for i in range(8): e(f"v_cvt_pk_bf16_f32 {v(dst+i)}, {T(2*i)}, {T(2*i+1)}")
        def kepi(e, un):
            acc, k = ACC[un & 1], KC[un]
            kz = o["kz"]; FV = ONES if kz == 1 else F8b
            if kz == 0: e(f"{MF} {v(TB,16)}, {v(ONES,4)}, {v(SEL[1],4)}, 0")
            if kz == 2:
                if un: e.need("c%d" % un)
                e(f"{MF} {v(TB,16)}, {v(ST+4*un,4)}, {v(ONES,4)}, 0")
            e.need("m%d" % un)
            sm_head(e, acc, PHI[0], TA, F4)
            if kz != 2:
                for i in range(8): e(f"v_mul_f32 {v(acc+8+i)}, {v(acc+8+i)}, {v(k)}")
            for i in range(4): e(f"v_cvt_pk_bf16_f32 {v(FV+i)}, {v(acc+8+2*i)}, {v(acc+9+2*i)}")
            e.mark("e%d" % un)
            b = Stream(); sm_body(b, TA, k, F8a, kz == 2)
            vt = f"{MF} {v(TB,16)}, {v(FV,4)}, {v(SEL[0],4)}, {0 if kz == 1 else v(TB,16)}"
            if kz == 2: e(vt); e.extend(b)
            else: e.extend(b[:2]); e(vt); e.extend(b[2:])
            def cv(r):
                x = "\n".join(f"v_cvt_pk_bf16_f32 {v(F8b+i)}, {v(TB+2*i)}, {v(TB+2*i+1)}" for i in r)
                if kz == 1: e(f"s_mov_b64 exec, s[32:33]\n{x}\ns_mov_b64 exec, -1", glue=True)
                else: e(x)
            cv(range(4 if kz == 1 else 2))
            e(f"{MF} {v(TA,16)}, {v(F8a,4)}, {v(SEL[0],4)}, 0")
            cv(range(4 if kz == 1 else 2, 8))
            e(f"{MF} {v(TA,16)}, {v(F8a+4,4)}, {v(SEL[1],4)}, {v(TA,16)}")
            for i in range(8): e(f"v_cvt_pk_bf16_f32 {v(F8a+i)}, {v(TA+2*i)}, {v(TA+2*i+1)}")
            e(f"{MF} {v(KV,16)}, {v(F8a,4)}, {v(F8b,4)}, {v(KV,16) if un else 0}\n{MF} {v(KV,16)}, {v(F8a+4,4)}, {v(F8b+4,4)}, {v(KV,16)}")
        def kvpub(e):
            e(f"s_mul_i32 {sB}, {sT}, 960\ns_sub_u32 {sB}, 15360, {sB}\nv_lshrrev_b32 {v(vT3)}, 8, {v(vN16)}")
            e(f"v_mad_u32_u24 {v(vT2)}, {v(vT3)}, {sB}, {v(vKA)}\nv_mad_u32_u24 {v(vT3)}, {v(vT3)}, {sB}, {v(vKA+1)}")
            e(f"s_mul_i32 {sB}, {sHK}, 17\ns_add_u32 {sB}, {sB}, {sT}\ns_lshl_b32 {sB}, {sB}, 10\ns_add_u32 {sB}, {sB}, {WS_KVP}")
            for c in range(2):
                for i in range(4): e(f"v_cvt_pk_bf16_f32 {v(F8a+4*c+i)}, {v(KV+8*c+2*i)}, {v(KV+8*c+2*i+1)}")
                e(f"buffer_store_dwordx4 {v(F8a+4*c,4)}, {v(vT2+c)}, {sWS}, {sB} offen sc1", tok="kvp")
        def qepi(e, acc, k, dst):
            for i in range(4): e(f"v_cvt_pk_bf16_f32 {v(F4+i)}, {v(acc+2*i)}, {v(acc+2*i+1)}")
            for i in range(4): e(f"v_cvt_pk_bf16_f32 {v(F8b+i)}, {v(acc+8+2*i)}, {v(acc+9+2*i)}")
            e(f"{MF} {v(acc,16)}, {v(PHI[1],4)}, {v(F8b,4)}, 0\n{MF} {v(TA,16)}, {v(PHI[0],4)}, {v(F4,4)}, 0")
            sm_body(e, acc, k, dst + 8, pk=o["pk"] and dst != PF); e.mark(("sib", dst))
            if not ("e" in abl and dst != PF): sm_body(e, TA, k, dst)
        def flag(st, addr, tok, lat=None):
            st(addr)
            st.waittok(tok, lat=lat or o["stlat"])
            st(f"s_mov_b64 exec, 1\nbuffer_store_dwordx2 {v(vTAG,2)}, {v(vZ)}, {sWS}, {sD} offen sc1\ns_mov_b64 exec, -1", glue=True)
        a_fl1 = f"s_lshl4_add_u32 {sD}, {sHK}, {sT}\ns_lshl_b32 {sD}, {sD}, 3\ns_add_u32 {sD}, {sD}, {WS_FL1}"
        def a_fl2(kind): return (f"s_mov_b32 {sD}, {sHD}\n" if kind == 2 else f"s_lshl2_add_u32 {sD}, {sJ}, {sWV}\n") + f"s_lshl_b32 {sC}, {sT}, 10\ns_lshl3_add_u32 {sD}, {sD}, {sC}\ns_add_u32 {sD}, {sD}, {WS_FL2+256*kind}"
        def fl_txt(sreg, off): return f"buffer_load_dwordx2 {v(vFL,2)}, {v(vFA)}, {sWS}, {sreg} offen offset:{off} sc1"
        skipf = lambda tok: qS and tok[1] in str(o.get("skipf", ""))
        def fl_bg(sreg, off, tok, after):
            if not skipf(tok): B(fl_txt(sreg, off), tok, after, sp=16)
        def fl_check(st, sreg, off, tok):
            if skipf(tok): st.mark(tok); return
            st.waittok(tok)
            spin(st, f"v_cmp_ne_u64 vcc, {v(vFL,2)}, {v(vTAG,2)}", fl_txt(sreg, off), tok)

        SLOT = {"a0": (sW8K, R[0]), "a1": (sW8K, R[0] + 4096), "b0": (sW8K, R[1]), "b1": (sW8K, R[1] + 4096),
                "c0": (sW8K, R[4]), "c1": (sW8K, R[4] + 4096), "d0": (sW16K, R[2])}
        LORD = list(range(8)) + [11, 12, 13, 14, 8, 9, 10]
        WSLOT = dict(zip(LORD, ["b0", "b1", "c0", "c1", "a0", "a1"] * 2 + ["b0", "b1", "d0"]))
        nE = 8
        def blk(b):
            if b < 4: return sBA, b
            if b < 8: return sBB, b - 4
            if b < 11: return sBS[b - 8], 0
            return None, b - 11
        sRW = sXK[0]
        def dma_w(b, after):
            sb, off = SLOT[WSLOT[b]]; r, i = blk(b)
            pre = f"s_add_u32 m0, {sb}, {off}\n"
            if o["wrot"] and b < 8:
                pre += f"s_lshl_b32 {sRW}, {sTT}, 11\n" if b == 0 else f"s_add_u32 {sRW}, {sRW}, 0x800\n"
                pre += f"s_and_b32 {sRW}, {sRW}, 0x1800\ns_add_u32 {sN}, {r}, {sRW}\ns_lshl4_add_u32 {sN}, {sN}, {sCB}"
            elif i: pre += f"s_add_u32 {sN}, {sN}, 0x8000"
            elif r: pre += f"s_lshl4_add_u32 {sN}, {r}, {sCB}"
            else: pre += f"s_lshl3_add_u32 {sN}, {sW16K}, {sCB}"
            run4(pre, vWD, sW2 if r else sWo, ("w", b), after, o["spw0"] if b < 4 else o["spw1"] if b < 6 else None, sN)
            if "f" in abl and LORD.index(b) >= 10: del tl.bg[-3:]
        def wfrags(st, dst, base, off, tok):
            for cb in range(4):
                for e in range(2): st(f"ds_read_b64_tr_b16 {dst(4*cb+2*e)}, {v(base+cb)} offset:{off+e*512}", tok=tok)
        def wbump(st, base, d):
            for i in range(4): st(f"v_add_u32 {v(base+i)}, {d}, {v(base+i)}")
        def wread(st, b):
            sl = WSLOT[b]; off = SLOT[sl][1] - {"c": R[4], "d": R[2]}.get(sl[0], 0)
            if b == 2: wbump(st, vWQ, R[4])
            if b == 4: wbump(st, vWQ, -R[4])
            if b == 10: st(f"s_add_u32 {sE1}, {sW8K}, {R[2]}"); wbump(st, vWQ, sE1)
            st.waittok(("w", b), lat=o["wlat"])
            wfrags(st, lambda k: ag(128 + 16 * (b % 8) + k, 2), vWQ, off, ("wr", b))

        D = NX - 1
        M = []
        RG = {1: R[1], 2: 0, 3: R[1], 4: 0, 5: 0}
        def bump(st, d):
            for i in range(4): st(f"v_add_u32 {v(vXR+i)}, {d}, {v(vXR+i)}")
        def opening(g, un):
            if un == 3:
                if o["ssplit"] >= 2: g.waittok(("x", 3))
                elif o["ssplit"]: g.waittok(("x", 3), ("s", 0))
                else: g.waittok(("x", 3), ("s", 0), ("s", 1))
                g("s_barrier"); g.mark("sl")
            elif un < 3: g.waittok(("x", un), lat=o["x1l"]); g("s_barrier"); g.mark("xl%d" % un)
            if un == 5: g.need("e1s"); bump(g, sE1)
        NP = o["NP"]
        AU = [ACC[0], ACC[1]] * 3 if kP else [ACC[0], ACC[1], PF + 16, ACC[0], ACC[1], ACC[0]]
        NEED = {2: "e0", 3: "e1", 4: "e2", 5: "e3"} if kP else {3: "f0", 4: "f1", 5: "f3"}
        a2, a3 = (o["a2" if kP else "b2"] / 10, o["a3" if kP else "b3"] / 10)
        SPAN = {2: (o["a1"] / 10, a2), 3: (a2, a3), 4: (a3, 4), 5: (4, 5)}
        for un in range(2, 6):
            acc = AU[un]
            cm = f"{MF} {v(acc,16)}, {v(CA[un>3],4)}, {v(ST+4*un if un <= 3 else ST if un == 4 else CBS,4)}, "
            g = Stream()
            if un == 2:
                opening(g, 2)
                for ks in range(D): xread(g, 2, RG[2], ks)
                M.append(g); g = Stream()
            if un in NEED: g.need(NEED[un])
            self.stamp(g, "u%d" % un)
            clast = un == 4 or (un == 2 and o["c1l"])
            if not clast:
                g.need("c%d" % un); g(cm + "0"); M.append(g); g = Stream()
            last = o["kvpace" if kP else "fpace"] if un == 4 else 31
            for ks in range(32):
                for k in range(NP):
                    if ks == o["pace"] + (k + 1) * (last - o["pace"]) // NP:
                        n = int(round((SPAN[un][0] + (SPAN[un][1] - SPAN[un][0]) * (k + 1) / NP) * NP)) - 1
                        if n >= 0: g.need(("ep", n // NP, n % NP))
                if ks % 4 == 0:
                    if un == 4: g.need("sr%d" % (ks + 3)); g.waittok(("sr", ks + 3))
                    else: g.waittok(("xf", un, ks + 3))
                if ks == 28 and un == 5: g("s_barrier"); g.mark("r5")
                if ks + D == 32 and un < 5: opening(g, un + 1)
                g(f"{MF} {v(acc,16)}, {ag(4*ks,4)}, {ag(128+4*ks,4) if un == 4 else v(XF+4*(ks%NX),4)}, {v(acc,16) if (ks or not clast) else 0}")
                if ks + D < 32:
                    if un != 4: xread(g, un, RG[un], ks + D)
                elif un in (2, 4): xread(g, un + 1, RG[un + 1], ks + D - 32)
                if un >= 3: g.mark(("pd", un, ks))
                if un == 5 and ks == o["kvl"]: g.mark("kvl")
                if ks == 31 and not clast: g.mark("m%d" % un)
                M.append(g); g = Stream()
            if clast:
                g.need("c%d" % un); g(cm + v(acc, 16)); g.mark("cb%d" % un); g.mark("m%d" % un); M.append(g)
        tl.marks.add("m0"); tl.marks.add("m1")
        E = Stream()
        def paced(e, un):
            tot = sum(i.cost for i in e); c = 0; k = 0
            for i in e:
                E.append(i); c += i.cost
                while k < NP and c >= tot * (k + 1) / NP - 1e-9 and not i.glue: E.mark(("ep", un, k)); k += 1
            assert k == NP
        def selectk(st, i):
            k = KCS; j = i + 1 if i else 0
            st(f"v_cndmask_b32 {v(k)}, {v(KC[i])}, {v(KC[j])}, {sPAR}")
            if qS: st(f"v_mul_f32 {v(k+1)}, {f2u(LOG2E/K0)}, {v(k)}")
            else:
                st(f"v_cndmask_b32 {v(k+2)}, {v(KC[i]+2)}, {v(KC[j]+2)}, {sPAR}\nv_mul_f32 {v(k+1)}, {v(k)}, {v(k)}\nv_mul_f32 {v(k)}, {f2u(K0)}, {v(k)}")
                st(f"v_mul_f32 {v(k+1)}, {v(k+1)}, {v(k)}\nv_mul_f32 {v(k+1)}, {f2u(0.044715)}, {v(k+1)}")
        for un in range(4):
            e = Stream()
            if kP: kepi(e, un)
            else: e.need("m%d" % un); gelu(e, AU[un], KC[un], sAB[un], sBLKP, "actP")
            if kP and un == 3: kvpub(e)
            paced(e, un); E.mark("f%d" % un)
        E.mark("kvp")
        swapab(E, 2)
        selectk(E, 0); E.need("m4")
        e = Stream()
        if qS: qepi(e, AU[4], KCS, PF)
        else: gelu(e, ACC[0], KCS, sAB[0], sBLKS, "actS")
        paced(e, 4)
        selectk(E, 2); E.mark("e4"); E.need("m5"); self.stamp(E, "u6")
        if qS: qepi(E, AU[5], KCS, PF + 16)
        elif "h" not in abl: gelu(E, ACC[1], KCS, sAB[2], sBLKS, "actS")
        self.stamp(E, "q"); E.mark("q5")
        X = Stream()
        X.waittok("stats")
        spin(X, tagtest(ST + 8), stats_ld(2, sA) + "\n" + stats_ld(3, sA), "stok")
        for i in range(2, 4): stat_consts(X, i); X.mark("c%d" % i)
        def select(st, i):
            for r in range(3): st(f"v_cndmask_b32 {v(CBS+r)}, {v(ST+4*i+r)}, {v(ST+4*i+4+r)}, {sPAR}")
        if o["xlate"]: X.need("kvp" if kP else "m3")
        select(X, 2); X(f"v_mov_b32 {v(CBS+3)}, 0")
        X.mark("e1s")
        X(f"s_and_b32 {sA}, s98, 0x100\ns_add_u32 {sA}, {sA}, {WS_ACT}\nv_and_b32 {v(vWR+1)}, 0xf0, {v(vL16)}\nv_and_b32 {v(vT0)}, 0x30, v0\nv_lshl_add_u32 {v(vT0)}, {v(vT0)}, 5, {sA}\nv_add_u32 {v(vWR+1)}, {v(vWR+1)}, {v(vT0)}")
        X.need("sl")
        X(f"s_lshr_b32 {sA}, {sWV}, 1\ns_lshl1_add_u32 {sA}, {sTT}, {sA}\ns_xor_b32 {sE0}, {sA}, 1\ns_mul_i32 {sA}, {sA}, {TBSTR}\ns_mul_i32 {sE0}, {sE0}, {TBSTR}")
        X(f"v_add_u32 {v(vAA)}, {sA}, {v(vWR+1)}\nv_add_u32 {v(vAA+2)}, {sE0}, {v(vWR+1)}\nv_xor_b32 {v(vAA+1)}, 0x100, {v(vAA)}\nv_xor_b32 {v(vAA+3)}, 0x100, {v(vAA+2)}")
        X2 = Stream()
        X2.need("kvp"); flag(X2, a_fl1 if kP else a_fl2(0), "kvp" if kP else "actP")
        X.need("cs"); corr_a(X, 1); X.mark("c4")
        X.mark("c5")
        S = Stream()
        C = Stream()
        S.need("xl2"); S.mark("k")
        S.need("sl")
        if o["ssplit"] == 2: S.waittok(("s", 0)); S("s_barrier")
        if o["ssplit"] == 3: S.waittok(("s", 1)); S("s_barrier")
        if kP and o["sg0"]: S.need(o["sg0"])
        for half in range(2):
            for ks in range(16 * half, 16 * half + 16):
                S.need(("pd", 3, ks))
                for e in range(1 if "i" in abl else 2): S(f"ds_read_b64_tr_b16 {ag(4*ks+2*e,2)}, {v(vSR)} offset:{(ks&15)*2048+e*512}", tok=("sr", ks))
                if ks % 4 == 3:
                    S.mark("sr%d" % ks); C.need("sr%d" % ks); C.waittok(("sr", ks))
                    if ks == 3: C.need("kvp" if o["prio" if kP else "priof"] else "m3")
                    for k2 in range(ks - 3, ks + 1 if ("a" not in abl or ks == 3) else 0): C(f"{MF16} {v(CS,4)}, {v(CSEL,4)}, {ag(4*k2,4)}, {v(CS,4) if k2 else 0}")
                if ks == 19 and kP and o["sg1"]: S.waittok(("sr", 15)); S("s_barrier"); S.mark("sa"); S.need(o["sg1"])
                if ks == 15: S(f"v_subrev_u32 {v(vSR)}, {R[4]}, {v(vSR)}")
                if ks == 15 and o["ssplit"] in (1, 2): S.waittok(("s", 1)); S.waittok(("sr", 15)); S("s_barrier"); S.mark("sa")
                if ks == 19 and o["ssplit"] in (0, 3) and not (kP and o["sg1"]): S.waittok(("sr", 15)); S("s_barrier"); S.mark("sa")
        S(f"v_add_u32 {v(vWQ)}, {sW8K}, {v(vWR)}")
        for i in range(1, 4): S(f"v_xor_b32 {v(vWQ+i)}, {32*i}, {v(vWQ)}")
        S.waittok(("sr", 31)); S("s_barrier"); S.mark("sb")
        C.mark("cs")
        if o["prio" if kP else "priof"] == 1: S.need("kvp")
        for b in range(nE):
            S.need(("pd", 4, 4 * b + 3)); wread(S, b)
            if b: S.waittok(("wr", b - 1)); S.mark("wr%d" % (b - 1))
        S.waittok(("wr", nE - 1)); S.mark("wr%d" % (nE - 1))
        def res():
            B(f"buffer_load_dwordx4 {v(XR,4)}, {v(vOUT)}, {sX}, {sPCOL} offen", sp=o["spx3"])
            B(f"s_add_u32 {sM}, {sPCOL}, 0x2000\nbuffer_load_dwordx4 {v(XR+4,4)}, {v(vOUT)}, {sX}, {sM} offen", "res", sp=o["spx3"])
        if not o["rord"]: res()
        def tlbw(pos):
            if o["tlbp"] != pos: return
            if o["tlb"] & 1: B(f"buffer_load_dword {v(vFL+1)}, {v(vZ)}, {sOut}, {sPCOL} offen sc1", None, "stok", sp=16); tl.bg[-1].ins[-1].wr = []
            if o["tlb"] & 2: B(f"s_mul_i32 {sM}, {sTT}, {2*TBSTR}\ns_add_u32 {sM}, {sM}, {WS_ACT+TBSTR}\nbuffer_load_dword {v(vFL+1)}, {v(vZ)}, {sWS}, {sM} offen sc1", None, "stok", sp=16); tl.bg[-1].ins[-1].wr = []
            if o["tlb"] & 4 and kP: B(f"buffer_load_dword {v(vFL+1)}, {v(vZ)}, {sWS}, {sAB[0]} offen sc1", None, "stok", sp=16); tl.bg[-1].ins[-1].wr = []
        warm3(2); tlbw(0); dma_s(0, "k"); warm3(3); tlbw(1)
        if o["xord"]: dma_x(3, None, o["spx3"])
        dma_s(1, "k"); warm3(4); tlbw(2)
        if o["rord"]: res()
        def wafter(b):
            n = LORD.index(b)
            return "k" if n < 2 else "sa" if n < 4 else "sb" if n < 6 else "wr%d" % (n - 6) if n < 14 else "r5"
        nB = o.get("nB", 13) if qS else o.get("nBf", 11)
        for n in range(nB):
            if qS and n == o.get("nK", 12): fl_bg(sFK, 0, "fK", "kvl")
            dma_w(LORD[n], wafter(LORD[n]))
        if qS and nB <= o.get("nK", 12): fl_bg(sFK, 0, "fK", "kvl")
        late = LORD[nB:]

        AC2 = 0; AF = 64; NB = 4
        fO = o["fO"] if qS else o["fOf"]; fS = o["fSa"] if qS else o["fS"]
        def af(idx): return ag(AF + 4 * (idx % 16), 4)
        def acts():
            for bb in range(11):
                if bb == fS: fl_bg(sFL, 256, "fS", "fP")
                if bb == fO: fl_bg(sFL, 512, "fO", "fa8")
                r, i = blk(bb)
                pre = ""
                if bb == 10: pre = f"s_cmp_eq_u32 {r}, {43*2048}\ns_cselect_b32 {r}, {'0x20000000' if o['z5'] else sBS[0]}, {r}"
                elif o["wrot"] and bb < 8:
                    pre = f"s_add_u32 {sRW}, {sRW}, 0x800\ns_and_b32 {sRW}, {sRW}, 0x1800\ns_add_u32 {sM}, {r}, {sRW}"; r, i = sM, 0
                elif i == 2: pre = f"s_add_u32 {r}, {r}, 4096"
                for k in range(4):
                    idx = 4 * bb + k
                    aft = {0: "fP", 32: "fS", (4 * o.get("gate", 99) if qS else 99): "pub"}.get(idx, ("mt", idx - 16) if idx >= 16 else None)
                    B(f"{pre}\nbuffer_load_dwordx4 {af(idx)}, {v(vAA+k)}, {sWS}, {r} offen offset:{2048*(i&1)} sc1", ("act", idx), aft, sp=o["spa"]); pre = ""
            if fO == 11: fl_bg(sFL, 512, "fO", "fa8")
            for n in range(16):
                idx = 44 + n; p = 4 * ((n >> 1) & 3) + 2 * (n >> 3)
                pre = "" if n & 1 else f"s_mov_b32 {sM}, {(43+p)*2048}"
                B(f"{pre}\nbuffer_load_dwordx4 {af(idx)}, {v(vAA)}, {sWS}, {sM} offen offset:{2048*(n&1)} sc1", ("act", idx), "fO" if n == 0 else ("mt", idx - 16), sp=o["spa"])
        assert fS >= 5 and fO >= 8
        s = Stream()
        if not qS:
            fl_bg(sFL, 0, "fP", "r5")
            for b in late: dma_w(b, wafter(b))
            acts()
            X2.need("m5"); fl_check(X2, sFL, 0, "fP")
            E.mark("odone"); FS = [X, X2, S, C, E]
        else:
            Z = ST + 8; ZT = F8a; KA = XF
            X2.need("sb")
            X2(f"s_mul_i32 {sD}, {sHD}, {KVREC}\ns_add_u32 {sD}, {sD}, {WS_KVP}\nv_add_u32 {v(vJ)}, {sD}, {v(vL16)}")
            X2(f"v_and_b32 {v(vXD0)}, 0x30, {v(vL16)}\nv_lshrrev_b32 {v(vSR)}, 4, v0\nv_lshl_add_u32 {v(vXD0)}, {v(vSR)}, 2, {v(vXD0)}")
            X2.need("c5")
            fl_check(X2, sFK, 0, "fK")
            X2(f"v_and_b32 {v(vFA)}, 0x38, {v(vFA)}"); X2.mark("gat")
            gsp = o.get("gsp", 56)
            B(f"s_movk_i32 {sM}, 0x4000\nbuffer_load_dwordx4 {v(Z,4)}, {v(vJ)}, {sWS}, {sM} offen sc1", "z", "gat", sp=gsp)
            NG = 2 if "c" in abl else 16
            for p in range(NG):
                if p == o["nP"]: fl_bg(sFL, 0, "fP", None)
                gq = o["gq"]
                pre = "" if p % gq else f"s_lshl_b32 {sM}, {sROT}, 11\ns_and_b32 {sM}, {sM}, {0x4000-1024*gq}" if p == 0 else f"s_add_u32 {sM}, {sM}, {1024*gq}\ns_and_b32 {sM}, {sM}, 0x3fff"
                B(f"{pre}\nbuffer_load_dwordx4 {ag(4*p,4)}, {v(vJ)}, {sWS}, {sM} offen offset:{(p%gq)*1024} sc1", ("g", p), ("pd", 5, p), sp=gsp)
            nL = o.get("nL", 0)
            for b in late[:nL]: dma_w(b, wafter(b))
            if o["nP"] >= 16: fl_bg(sFL, 0, "fP", None)
            for b in late[nL:]: dma_w(b, wafter(b))
            acts()
            xo, xs, zw, zr = (CA[0] + i for i in range(4))
            X2(f"s_add_u32 {sD}, {sW16K}, {R[2]+4096}\nv_add_u32 {v(xo)}, {sD}, {v(vL16)}\nv_xor_b32 {v(xs)}, 0x4000, {v(xo)}")
            X2(f"v_add_u32 {v(zw)}, {sD}, {v(vXD0)}\nv_lshl_add_u32 {v(zr)}, {v(vSR)}, 4, {sD}"); X2.mark("xa")
            X2.waittok("z")
            for i in range(4): X2(f"v_lshlrev_b32 {v(ZT+i)}, 16, {v(Z+i)}\nv_and_b32 {v(ZT+4+i)}, 0xffff0000, {v(Z+i)}")
            for i in range(0, 8, 2): X2(f"v_permlane16_swap_b32 {v(ZT+i)}, {v(ZT+i+1)}")
            for i in range(0, 8, 2): X2(f"v_add_f32 {v(ZT+i)}, {v(ZT+i)}, {v(ZT+i+1)}")
            for i in (0, 4): X2(f"v_permlane32_swap_b32 {v(ZT+i)}, {v(ZT+i+2)}")
            for i in (0, 4): X2(f"v_add_f32 {v(ZT+i)}, {v(ZT+i)}, {v(ZT+i+2)}")
            for m in ("row_ror:4", "row_ror:8"):
                for i in (0, 4): X2(f"v_add_f32_dpp {v(ZT+i)}, {v(ZT+i)}, {v(ZT+i)} {m} {DPPM}")
            X2(f"v_cvt_pk_bf16_f32 {v(Z)}, {v(ZT)}, {v(ZT+4)}")
            X2.need("r5"); X2(f"ds_write_b32 {v(zw)}, {v(Z)} offset:4096\nds_read_b128 {v(Z,4)}, {v(zr)} offset:4096", tok="zr"); X2.mark("zr")
            X2.need("m5"); fl_check(X2, sFL, 0, "fP")
            XC = Stream(); XC.need("xa"); XC.need("r5"); XC.need(("sib", PF))
            for k in range(4):
                if k == 2: XC.need(("sib", PF + 16))
                XC(f"ds_write_b128 {v(xo)}, {v(PF+8+16*(k>>1)+4*(k&1),4)} offset:{1024*k}", tok="xw")
            XC.waittok("xw"); XC("s_barrier")
            for k in range(4): XC(f"ds_read_b128 {v(PF+8+16*(k>>1)+4*(k&1),4)}, {v(xs)} offset:{1024*k}", tok="xr")
            XC.waittok("xr"); XC("s_barrier"); XC.mark("xr")
            G = Stream(); G.need("m5")
            if o["pk"]: G.need(("sib", PF + 16))
            for p in range(NG):
                if p % 2 == 0: G.waittok(("g", p + 1))
                G(f"{MF} {v(KA,16)}, {v(SEL[0],4)}, {ag(4*p,4)}, {v(KA,16) if p else 0}")
            G.mark("gdone")
            KP = KA + 16
            G(f"s_add_u32 {sSO[0]}, {sHD}, 86\ns_lshl_b32 {sSO[0]}, {sSO[0]}, 10")
            for i in range(4): G(f"v_cvt_pk_bf16_f32 {v(KP+i)}, {v(KA+2*i)}, {v(KA+2*i+1)}")
            G.need("zr"); G.waittok("zr")
            for i in range(4): G(f"v_permlane16_swap_b32 {v(KP+i)}, {v(Z+i)}")
            self.stamp(G, "kvx")
            O = Stream()
            for n, A in ((0, AU[4]), (1, KA), (3, AU[5]), (2, TA)):
                if n == 0: G.need("e4")
                if n == 1: G.need("xr")
                if n == 2: G.need("q5")
                G(f"{MF} {v(A,16)}, {v(KP,4)}, {v(PF+8*n,4)}, 0\n{MF} {v(A,16)}, {v(Z,4)}, {v(PF+8*n+4,4)}, {v(A,16)}"); G.mark(("om", n))
                O.need(("om", n))
                O(f"v_add_f32 {v(A+8)}, {f2u(1e-6)}, {v(A+8)}\nv_rcp_f32 {v(A+8)}, {v(A+8)}")
                O(f"s_add_u32 {sSO[1]}, {sAB[n]}, {sSO[0]}")
                for i in range(8): O(f"v_mul_f32 {v(A+i)}, {v(A+i)}, {v(A+8)}")
                for i in range(4): O(f"v_cvt_pk_bf16_f32 {v(A+12+i)}, {v(A+2*i)}, {v(A+2*i+1)}")
                O(f"buffer_store_dwordx4 {v(A+12,4)}, {v(vL16)}, {sWS}, {sSO[1]} offen sc1", tok="actO")
                if o.get("nost") and n != 2: O.pop()
            self.stamp(O, "o"); O.mark("odone")
            FS = [X, X2, S, C, XC, G, E, O]
        def grp2(pre, text, post=None):
            g = Stream(); g.small = o["nds2"]
            if pre: pre(g)
            g(text)
            if post: post(g)
            M.append(g)
        def wo(n): return (lambda k, c=2: v(96 + 16 * n + k, c)) if n < 10 else (lambda k, c=2: ag(128 + 16 * ((n - 7) % 8) + k, c))
        for bb in range(11):
            for kk, k in enumerate((1, 2, 3, 0) if bb == 10 else range(4)):
                idx = 4 * bb + k
                for cc in range(4):
                    cb = 3 - cc if kk & 1 else cc
                    def pre(g):
                        if kk == 0:
                            if bb == 0:
                                g.need("wr7")
                                if qS: g.need("odone" if o["p2hold"] else "gdone")
                            if bb == fS:
                                g.need("pub"); fl_check(g, sFL, 256, "fS")
                                g(f"v_lshrrev_b32 {v(vFA)}, 1, {v(vN16)}\ns_and_b32 {sFL}, {sFL}, 0xffffff3f"); g.mark("fa8")
                            if bb == fO: g.need("pub"); fl_check(g, sFL, 512, "fO")
                            if bb >= nE: g.need("wq%d" % bb); g.waittok(("wr", bb), lat=0)
                        if kk % 2 == 0:
                            g.waittok(("act", 4 * bb + (kk + 1 if bb < 10 else 2 + kk // 2)), ahead=o["ah2"] if bb >= o["p2e"] else 0, lat=0 if bb >= o["p2e"] else None)
                    def post(g):
                        g.mark(("mt", idx))
                        if kk == 3: g.mark(("mm", bb)); self.stamp(g, "mm%d" % bb)
                    A = ag(AC2 + 16 * k + 4 * cb, 4)
                    grp2(pre if cc == 0 else None, f"{MF16} {A}, {ag(128+16*(bb%8)+4*cb,4)}, {af(idx)}, {A if bb else 0}", post if cc == 3 else None)
        if fO == 11:
            g = Stream(); g.need("pub")
            if o.get("qfirst"): g.need(("qa", 2))
            fl_check(g, sFL, 512, "fO"); M.append(g)
        for n in range(16):
            for cb in range(4):
                def pre(g):
                    g.need(("wo", n)); g.waittok(("wo", n), lat=0)
                    if n % 2 == 0 or n > 12: g.waittok(("act", 44 + (n if n >= 12 else n + 1)), ahead=o["ah2"], lat=0)
                def post(g):
                    if n == 15: g.mark("oend"); self.stamp(g, "mm14")
                A = ag(AC2 + 4 * cb, 4)
                grp2(pre if cb == 0 else None, f"{MF16} {A}, {wo(n)(4*cb,4)}, {af(44+n)}, {A}", post if cb == 3 else None)
        W = Stream(); W.need("m5")
        for b in range(nE, 11):
            W.need(("mm", b - 8)); wread(W, b); W.mark("wq%d" % b)
        W2s = Stream(); W2s.need("m5")
        W2s(f"v_add_u32 {v(vXR)}, {R[4]}, {v(vWR)}")
        for i in range(1, 4): W2s(f"v_xor_b32 {v(vXR+i)}, {32*i}, {v(vXR)}")
        W2s.waittok(("w", 14), lat=o["wlat"]); W2s.need("odone"); W2s("s_barrier")
        for n in range(16):
            if n == 8: wbump(W2s, vXR, -R[4])
            if n >= 10: W2s.need(("mm", n - 7))
            wfrags(W2s, wo(n), vXR, (n & 7) * 4096, ("wo", n)); W2s.mark(("wo", n))
        X = Stream(); X.need("odone"); X.need("fP")
        flag(X, a_fl2(2 if qS else 1), "actO" if qS else "actS", o["stlat2"])
        X.mark("pub"); Xf = X; X = Stream(); X.need("pub"); X.need("wq10")
        RW = vKA; RR = [vWD, vWD + 2, vT2, vJ]; Y = ACC[0]; Pp = ACC[1]
        assert Y == 48 and Pp == 64
        vJ2 = (vSR, vXD0)
        rr = lambda k, e: v(RR[k] + e) if k < 3 else v(vJ2[e])
        X(f"v_lshrrev_b32 {v(vT0)}, 4, v0\nv_and_b32 {v(vT1)}, 7, v0\nv_xor_b32 {v(vT0)}, {v(vT0)}, {v(vT1)}\nv_and_b32 {v(RW)}, 0xf0, {v(vL16)}")
        X(f"v_add_lshl_u32 {v(vT0)}, {v(RW)}, {v(vT0)}, 4\ns_add_u32 {sA}, {sW16K}, {R[2]}\nv_add_u32 {v(RW)}, {sA}, {v(vT0)}\nv_xor_b32 {v(RW+1)}, 64, {v(RW)}")
        X(f"v_lshrrev_b32 {v(vT0)}, 3, v0\nv_lshlrev_b32 {v(vT1)}, 1, {v(vT1)}\nv_xor_b32 {v(vT1)}, {v(vT1)}, {v(vT0)}\nv_lshlrev_b32 {v(vT1)}, 4, {v(vT1)}\nv_lshl_add_u32 {v(vT0)}, {v(vT0)}, 8, {v(vT1)}")
        X(f"v_add_u32 {v(vT0)}, {sA}, {v(vT0)}")
        for k in range(4):
            m = 16384 * ((k + 1) & 3) + 4096 * k
            X(f"v_xor_b32 {rr(k,0)}, {m}, {v(vT0)}\nv_xor_b32 {rr(k,1)}, {m+16}, {v(vT0)}")
        for it in range(2):
            for i in range(4):
                X(f"v_lshlrev_b32 {v(Y+8*it+2*i)}, 16, {v(XR+4*it+i)}\nv_and_b32 {v(Y+8*it+2*i+1)}, 0xffff0000, {v(XR+4*it+i)}")
        for i in range(4):
            X(f"v_lshlrev_b32 {v(vT0)}, 16, {v(B2+i)}\nv_and_b32 {v(vT1)}, 0xffff0000, {v(B2+i)}")
            for it in range(2):
                X(f"v_add_f32 {v(Y+8*it+2*i)}, {v(Y+8*it+2*i)}, {v(vT0)}\nv_add_f32 {v(Y+8*it+2*i+1)}, {v(Y+8*it+2*i+1)}, {v(vT1)}")
        X(f"s_add_u32 {sB}, {sPCOL}, 0x2000"); X.mark("fin")
        Q = Stream(); Z2 = Stream(); Q.need("fin")
        def qw(k, slot, tok):
            for cb in range(4): Q(f"ds_write_b128 {v(RW+(cb&1))}, {ag(AC2+16*k+4*cb,4)} offset:{slot*4096+(cb>>1)*128}", tok=tok)
        def qr(k):
            for it in range(2):
                for e in range(2): Q(f"ds_read_b128 {v(Pp+16*(k&1)+8*it+4*e,4)}, {rr(k,e)} offset:{it*2048}", tok=("qr", k, it))
            Q.mark(("qr", k))
        for k in range(1, 4): Q.need(("mt", 40 + k)); qw(k, k - 1, "qw")
        Q.waittok("qw", lat=80); Q("s_barrier"); self.stamp(Q, "red0")
        for k in range(3):
            if k == 2: Q.need(("qa", 0))
            qr(k)
            Z2.need(("qr", k)); Z2.waittok(("qr", k, 1))
            for i in range(16): Z2(f"v_add_f32 {v(Y+i)}, {v(Y+i)}, {v(Pp+16*(k&1)+i)}")
            Z2.mark(("qa", k))
        Q.need("oend"); Q.need(("qa", 1)); qw(0, 3, "qw2"); self.stamp(Q, "red"); qr(3)
        Z2.need(("qr", 3))
        for it in range(2):
            Z2.waittok(("qr", 3, it), lat=100)
            for i in range(0, 8, 2): Z2(f"v_pk_add_f32 {v(Y+8*it+i,2)}, {v(Y+8*it+i,2)}, {v(Pp+16+8*it+i,2)}")
            for i in range(4): Z2(f"v_cvt_pk_bf16_f32 {v(XR+4*it+i)}, {v(Y+8*it+2*i)}, {v(Y+8*it+2*i+1)}")
            Z2(f"buffer_store_dwordx4 {v(XR+4*it,4)}, {v(vOUT)}, {sOut}, {sB if it else sPCOL} offen{' sc1' if o['outsc1'] else ''}"); self.stamp(Z2, "out%d" % it)
        tl.sched(M, FS + [Xf, W, Q, Z2, W2s, X], nds=o.get("nds", 3))
        s = Stream()
        if kP:
            noe = self.lab("noe")
            s(f"s_or_b32 {sA}, s2, {sWV}\ns_cmp_lg_u32 {sA}, 0\ns_cbranch_scc1 {noe}")
            s(f"s_mov_b64 exec, 1\nbuffer_store_dword {v(vTAG)}, {v(vZ)}, {sWS}, 0 offen sc1\ns_mov_b64 exec, -1", cond=True)
            s(noe + ":")
        if o.get("probe"):
            lp, l2, l3 = self.lab("pad"), self.lab("ref"), self.lab("skip"); K = o.get("K", 4)
            s("s_waitcnt vmcnt(0)"); self.stamp(s, "end"); s("s_waitcnt lgkmcnt(0)")
            if o.get("st") == "start": s("s_mov_b32 s60, s100")
            s(f"s_or_b32 {sA}, s2, {sWV}\ns_cmp_lg_u32 {sA}, 0\ns_cbranch_scc1 {l2}")
            s(f"v_mov_b32 {v(vT0)}, s100\nv_mov_b32 {v(vT1)}, {v(vTAG)}\nbuffer_store_dwordx2 {v(vT0,2)}, {v(vZ)}, {sWS}, 0 offen offset:2048 sc1", cond=True)
            s(f"{l2}:\ns_sleep 8\nbuffer_load_dwordx2 {v(vT0,2)}, {v(vZ)}, {sWS}, 0 offen offset:2048 sc1\ns_waitcnt vmcnt(0)\nv_cmp_ne_u32 vcc, {v(vT1)}, {v(vTAG)}\ns_nop 4\ns_cbranch_vccnz {l2}")
            s(f"v_readfirstlane_b32 s66, {v(vT0)}\ns_nop 4\ns_sub_u32 s60, s60, s66")
            if o["probe"] == "min": s("s_sub_u32 s60, 1200, s60")
            else: s("s_add_u32 s60, s60, 300")
            if o.get("only", role) != role: s("s_mov_b32 s60, 0")
            s(f"s_mul_i32 s60, s60, {K}\ns_add_u32 s60, s60, 4000")
            s(f"{lp}:\ns_memrealtime s[64:65]\ns_waitcnt lgkmcnt(0)\ns_sub_u32 s64, s64, s66\ns_cmp_lt_u32 s64, s60\ns_cbranch_scc1 {lp}")
        elif o["stamps"]:
            s("s_waitcnt vmcnt(0)\ns_memrealtime s[64:65]\ns_waitcnt lgkmcnt(0)")
            s(f"s_lshl2_add_u32 {sA}, s2, {sWV}\ns_lshl_b32 {sA}, {sA}, 6\ns_add_u32 {sA}, {sA}, {WS_STAMP}")
            for i, r in enumerate(["s100"] + ["s%d" % k for k in STAMPR] + ["s64"]):
                s(f"v_mov_b32 {v(vT1)}, {r}\nbuffer_store_dword {v(vT1)}, {v(vZ)}, {sWS}, {sA} offen offset:{4*i}")
        tl.straight(s)
        assert tl.bi == len(tl.bg)
        tl.log.append("end t=%d forced=%d" % (tl.t, tl.forced))
        if o["log"]: sys.stderr.write("\n".join(role + " " + x for x in tl.log) + "\n")
        return tl.out

    def build(self):
        outs = {}
        for role in ("att", "ffn"):
            st = {}
            outs[role] = finalize(self.role(role), st)
            sys.stderr.write("%s: %s\n" % (role, st))
        ia, jf = outs["att"].index("L_split:"), outs["ffn"].index("L_split:")
        assert outs["att"][:ia] == outs["ffn"][:jf], "common start differs"
        text = outs["att"][:ia] + outs["att"][ia + 1:] + ["s_endpgm", ".p2align 6", "L_ffn:"] + outs["ffn"][jf + 1:] + ["L_end:", "s_endpgm"]
        if self.o.get("al"):
            text, n, c = align_pass([NAME + "_kernel:"] + text, self.o["al"], self.o.get("lam", 30) / 100); text = text[1:]
            sys.stderr.write("alignment: %d re-encoded, residual cost %.1f\n" % (n, c))
        body = "\n".join(t if t.endswith(":") else "    " + t for t in text) + "\n"
        hdr = ["Fused LayerNorm + hedgehog linear attention + GELU FFN + residual, one persistent launch (generated by my own script).",
               "@launch grid=(256,1,1) block=(256,1,1) lds=163840"]
        return module(hdr, [(NAME + "_kernel", body, 512, 256)])

if __name__ == "__main__":
    opt = {}
    for x in sys.argv[2:]:
        k, _, val = x.partition("=")
        opt[k] = (int(val) if val.lstrip("-").isdigit() else val) if val else True
    open(sys.argv[1], "w").write(Gen(**opt).build())
```

```python
import sys, struct, os
from asmlib import module
from backend import *

NAME = "parallel_sum__linear_kernel_hedgehog__dense_activation_gelu__prompt"
def f2u(x): return "0x%x" % struct.unpack("<I", struct.pack("<f", x))[0]
LOG2E = 1.4426950408889634
K0 = -2.0 * LOG2E * 0.7978845608028654

WS_G = 0; WS_FL1 = 0x1000; WS_FL2 = 0x3000; WS_STATS = 0x8000; WS_KVP = 0x40000; WS_ACT = 0x200000
KVREC = 17 * 1024; TBSTR = 118 * 1024; WS_STAMP = 0x1000000
TAGC = 0x9E3779B9
R = [0, 32768, 65536, 98304, 131072]
SCR = R[3] + 16384
FFN_BLK0 = [0, 6, 11, 16, 22, 27, 32, 38]
FFN_NBLK = [6, 5, 5, 6, 5, 5, 6, 5]
SBL = [[4, 5, 10], [15, 20, 21], [26, 31, 43], [36, 37, 42]]
def pack(l): return "0x%x" % sum(b << (8 * i) for i, b in enumerate(l))

sX, sW, sWS, sW2, sWo, sOut, sAux, sB2 = ("s[%d:%d]" % (i, i + 3) for i in (8, 12, 16, 20, 24, 28, 32, 36))
sM, sN = "s0", "s1"
sWV, sT, sJ, sU, sI = "s3", "s4", "s5", "s6", "s7"
sROT, sQ4, sTT, sCB, sFL, sSTB = "s64", "s65", "s66", "s67", "s68", "s69"
sA, sB, sC, sD = "s70", "s71", "s72", "s73"
sXB = ["s74", "s75", "s76", "s77"]
sAB = ["s78", "s79", "s80", "s81"]
sXK = ["s82", "s83"]; sSO = ["s84", "s85"]
sBA, sBB = "s86", "s87"; sBS = ["s88", "s89", "s90"]
sPCOL, sW8K, sW16K = "s91", "s92", "s93"
sBLKP, sBLKS = "s94", "s95"; sFK = "s95"; sHD = sHK = "s6"
sE0, sE1 = "s96", "s97"
sPAR = "s[98:99]"
STAMPR = [60, 40, 42, 44, 50, 52, 46, 54, 62, 56, 58, 48]

class VA:
    def __init__(self, start=1): self.n = start
    def __call__(self, k=1, al=1):
        self.n = (self.n + al - 1) // al * al
        r = self.n; self.n += k
        assert self.n <= 256, "out of VGPRs"
        return r
def v(i, k=1): return "v%d" % i if k == 1 else "v[%d:%d]" % (i, i + k - 1)
def ag(i, k=1): return "a%d" % i if k == 1 else "a[%d:%d]" % (i, i + k - 1)
MF = "v_mfma_f32_32x32x16_bf16"; MF16 = "v_mfma_f32_16x16x32_bf16"
DPPM = "row_mask:0xf bank_mask:0xf"

def srd(s, d, p, n):
    d0 = int(d[2:].split(":")[0])
    s(f"s_mov_b32 s{d0}, s{p}\ns_mov_b32 s{d0+1}, s{p+1}\ns_mov_b32 s{d0+2}, {n}\ns_mov_b32 s{d0+3}, 0x20000")

class Gen:
    def __init__(self, **opt):
        self.o = dict(stamps=False, warm=0, outsc1=True, sp=54, sp1=48, ahead=10, log=False, umode=0, vlat=600, stlat=650,
                      ah0=0, s0p=7, pgo=0, c1l=0, warmb=4, phl=1, a1=3, a2=14, a3=30, b2=16, b3=30, srot=1, xrot=1, wrot=0, sg=200, sv=1, x1l=650, NP=20, bh=100, vpen=6, llat=130, tlb=0, tlbp=0, z5=1, cbx=2, wA=0, wq=0, hsw=0, gq=4, pk=1, kz=1, xlate=0, sg0=0, sg1=0, al=1, lam=10, spx=56, spx3=64, sps0=64, sps1=56, spw0=80, spw1=64, ssplit=3, xord=0, rord=1, fpace=22, priof=0, nds2=1, p1v=1, s1=7, x2a="b5", xa=1, npc=2, nP=16, p2hold=1, spa=72, p2e=3, stlat2=600, qx=4, nq=2, plat0=0, plat=0, sp0=24, warmc=1, stag=1, warmf=0, wsp=180, wpos=0, wpos2=6, cbmix=0, warmm=2, sw=0, px=1, slpK=1, ah0b=6, lag=2, s0=4, slp=8, slat=750, wlat=700, wlat0=1100, nE=4, pace=3, kvpace=8, kvhold=99, hold=0, kvl=6, prio=1, fSa=5, fS=6, fO=8, fOf=10, ah2=2, fo=2)
        self.o.update(opt); self.uid = 0
        Haz.SW = self.o["hsw"]
        global TBSTR, WS_ACT
        TBSTR = 118 * 1024 + self.o.get("tbpad", 0); WS_ACT = 0x200000 + self.o.get("actoff", 0)
    def lab(self, p):
        self.uid += 1; return "L_%s_%d" % (p, self.uid)
    def stamp(self, s, name):
        if self.o.get("dly") == name and self.o.get("dr", self.cur) == self.cur:
            s("s_sleep 8"); s[-1].cost = 0
        if not self.o["stamps"]: return
        names = str(self.o.get("st", "x0,b0,p1,u1,u2,u3,u4,u5,q,o,mm14,red")).split(",")
        if name in names:
            r = STAMPR[names.index(name)]; s(f"s_memrealtime s[{r}:{r+1}]")

    def role(self, role):
        kP = role == "att"; qS = not kP; o = self.o; self.cur = role
        tl = TL(o["sp"], o["vlat"]); B = tl.B
        def watch(name):
            x = Stream(); self.stamp(x, name); return x[0].text if x else None
        tl.watch = watch; tl.m16 = True; tl.pen = o.get("pen", 0); tl.hold = o["bh"]; tl.vpen = o["vpen"]; tl.llat = o["llat"]
        s = Stream(); a = VA(1)
        stride, strS = (3072, 2752) if kP else (2752, 3072)
        vL16 = a(); vXD0 = a(); vXD = a(4); vOUT = a(); vTAG = a(2, 2); vN16 = a(); vXR = a(4); vSR = a()
        vT0 = a(1, 2); vT1 = a(); vT2 = a(); vT3 = a()
        vSD = a(4); vWD = a(4); vPR = vWD + 1; vWR = a(2); vFL = a(2, 2); vFA = a(); vZ = a()
        vAA = vXD; vWQ = vSD
        assert vXD == 3
        vKA = a(2)
        XR = a(8, 4); B2 = a(4, 4)
        ACC = [a(16, 4), a(16, 4)]; NX = 8; XF = a(4 * NX, 4)
        CA = [a(4, 4), a(4, 4)]; ST = a(16, 4); CBS = a(4, 4); CS = a(4, 4); CSEL = a(4, 4); vPD = CBS
        KC = [a(3) for _ in range(4)]; KCS = a(3); vB1 = a()
        F4 = a(4, 4); F8a = a(8, 4); TA = a(16, 4); G4 = F4
        if kP:
            ONES = a(4, 4); SEL = [a(4, 4), a(4, 4)]; F8b = a(8, 4); PHI = [a(4, 4)]; KV = a(16, 4); TB = a(16, 4); HO = F8b
        else:
            SEL = [a(4, 4)]; F8b = a(4, 4); PHI = [a(4, 4), a(4, 4)]; PF = a(32, 4); HO = F8a
        vJ = a(4)
        sys.stderr.write("%s VGPRs: %d\n" % (role, a.n))
        sp1 = o["sp1"]; abl = str(o.get("abl", ""))
        tmp = ACC[0]
        def run4(pre, vb, srdn, tok, after, sp=None, so=sM):
            for q in range(4):
                B(f"{pre if q == 0 else ''}\nbuffer_load_dwordx4 {v(vb+q)}, {srdn}, {so} offen offset:{1024*q} lds", tok, after, sp)
        def dma_x(i, after, sp=None, ks=(0, 1)):
            for k in ks:
                pre = f"s_add_u32 m0, {sW8K}, {R[i]+k*4096}"
                if i and o["xrot"]:
                    pre = f"s_xor_b32 m0, {sXB[0]}, {R[i]+k*4096}"
                    if (i, k) == (2, 0):
                        pre = (f"s_bitcmp1_b32 {sI}, {o['xrot']-1}\ns_cselect_b32 {sM}, {sXK[1]}, {sXK[0]}\ns_cselect_b32 {sXK[1]}, {sXK[0]}, {sXK[1]}\ns_cselect_b32 {sXB[0]}, 0x1000, 0\n"
                               f"s_mov_b32 {sXK[0]}, {sM}\ns_or_b32 {sXB[0]}, {sXB[0]}, {sW8K}\n") + pre
                run4(pre + f"\ns_add_u32 {sM}, {sXB[i]}, {sXK[k]}", vXD, sX, ("x", i), after, sp)
        def dma_xp(r, after, sp):
            pre = "" if r == 0 else f"s_add_u32 {sXK[1]}, {sXK[1]}, 256\ns_and_b32 {sXK[1]}, {sXK[1]}, 0x380\n"
            run4(pre + f"s_add_u32 m0, {sXK[0]}, {8192*r}\ns_add_u32 {sM}, {sXB[1]}, {sXK[1]}", vXD, sX, ("xp", r), after, sp)
        PSL = [R[4], R[4] + 16384, R[2], R[2] + 16384, R[3], R[3] + 16384, R[4], R[4] + 16384]
        s("s_cmp_ge_u32 s2, 256\ns_cbranch_scc1 L_end")
        sk = int(os.environ.get("SKEW", "0")) if o["stamps"] else 0
        if sk:
            s(f"s_xor_b32 s4, s2, 7\ns_and_b32 s4, s4, 7\ns_mul_i32 s4, s4, {sk}\nL_sk:\ns_cmp_eq_u32 s4, 0\ns_cbranch_scc1 L_skd\ns_sleep 1\ns_sub_u32 s4, s4, 1\ns_branch L_sk\nL_skd:")
        s("s_load_dwordx16 s[40:55], s[0:1], 0\ns_load_dwordx8 s[56:63], s[0:1], 64")
        if o["stamps"]: s("s_memrealtime s[100:101]")
        s(f"s_lshr_b32 {sI}, s2, 3")
        if o["warmc"] == 1:
            s(f"s_getpc_b64 s[72:73]\nL_pc:\ns_sub_u32 s72, s72, L_pc-{NAME}_kernel\ns_subb_u32 s73, s73, 0", glue=True)
            s(f"s_lshl_b32 {sA}, {sI}, 11\nv_lshrrev_b32 v1, 4, v0\nv_lshl_add_u32 v1, v1, 7, {sA}\nv_min_u32 v1, L_end-{NAME}_kernel, v1")
            s(f"global_load_dword {v(XR+4)}, v1, s[72:73]")
        s(f"v_lshrrev_b32 v1, 6, v0\nv_and_b32 v0, 63, v0\nv_readfirstlane_b32 {sWV}, v1\nv_lshlrev_b32 v1, 4, v0")
        s(f"s_and_b32 {sA}, s2, 7\ns_lshr_b32 {sROT}, {sI}, 2\ns_and_b32 {sU}, {sI}, 3")
        s(f"s_and_b32 {sT}, {sA}, 1\ns_lshl3_add_u32 {sT}, {sT}, {sROT}\ns_lshr_b32 {sQ4}, {sA}, 1")
        if o.get("p2x", 1):
            s(f"s_andn2_b32 {sC}, 1, {sA}\ns_lshl2_add_u32 {sA}, {sC}, {sQ4}")
        s(f"s_lshr_b32 {sC}, {sI}, 3\ns_lshl2_add_u32 {sTT}, {sA}, {sC}")
        s(f"s_lshl2_add_u32 {sA}, {sT}, {sQ4}\ns_lshl_b32 {sXB[0]}, {sA}, 15")
        s(f"s_lshl2_add_u32 {sD}, {sU}, {sWV}\ns_lshl_b32 {sA}, {sD}, 11\ns_add_u32 {sSO[0]}, {sXB[0]}, {sA}")
        s(f"s_lshl_b32 {sSTB}, {sT}, 11\ns_add_u32 {sSTB}, {sSTB}, {WS_STATS}\ns_lshl4_add_u32 {sD}, {sQ4}, {sD}\ns_lshl_b32 {sD}, {sD}, 5\ns_add_u32 {sFL}, {sD}, {sSTB}")
        s(f"v_and_b32 {v(vOUT)}, 0x70, v1\nv_and_b32 v3, 0x30, v0\nv_xor_b32 v2, {v(vOUT)}, v3\nv_lshrrev_b32 v3, 3, v0\nv_lshl_add_u32 v3, v3, 10, v2")
        for q in range(3, 0, -1):
            s(f"v_xor_b32 {v(vXD+q)}, {64*(q&1)}, v3\nv_add_u32 {v(vXD+q)}, {7168*q}, {v(vXD+q)}")
        s(f"s_lshr_b32 {sB}, {sWV}, 1\ns_add_u32 {sA}, {sQ4}, {sB}\ns_and_b32 {sA}, {sA}, 3\ns_lshl2_add_u32 {sA}, {sT}, {sA}\ns_lshl_b32 {sXB[1]}, {sA}, 15")
        s(f"s_and_b32 {sA}, {sWV}, 1\ns_lshl3_add_u32 {sB}, {sB}, {sA}\ns_lshl_b32 {sXK[0]}, {sB}, 12\ns_add_u32 {sA}, {sA}, {sROT}\ns_lshl_b32 {sA}, {sA}, 7\ns_and_b32 {sXK[1]}, {sA}, 0x380")
        s(f"s_mov_b32 s10, {2048*1024}\ns_mov_b32 s11, 0x20000\ns_mov_b32 s18, 0x10000000\ns_mov_b32 s19, 0x20000")
        def ppat():
            s(f"s_and_b32 {sJ}, {sU}, 1\ns_lshl1_add_u32 {sJ}, {sQ4}, {sJ}\ns_lshl_b32 {sE1}, {sWV}, 12")
            s(f"s_mov_b32 s70, {pack(FFN_BLK0[:4])}\ns_mov_b32 s71, {pack(FFN_BLK0[4:])}\ns_lshl_b32 {sC}, {sJ}, 3\ns_lshr_b64 s[70:71], s[70:71], {sC}\ns_and_b32 {sBLKP}, s70, 0xff")
            s(f"s_lshl_b32 {sPCOL}, {sBLKP}, 6\ns_lshl_b32 {sD}, {sJ}, 7\ns_add_u32 {sD}, {sD}, 1024\ns_movk_i32 {sA}, 2752\ns_movk_i32 {sC}, 128\ns_mov_b32 s15, 0x20000")
            s(f"s_cmp_lt_u32 {sU}, 2\ns_cselect_b32 {sPCOL}, {sD}, {sPCOL}\ns_cselect_b32 {sA}, 3072, {sA}\ns_cselect_b32 {sB}, 1, 2\ns_cselect_b32 {sC}, 1024, {sC}\ns_cselect_b32 {sE0}, 7, 5", glue=True)
            s(f"s_lshl_b32 s14, {sA}, 9\ns_mul_i32 {sD}, {sWV}, {sA}\ns_mov_b32 {sSO[1]}, {sPCOL}\ns_lshl4_add_u32 {sPCOL}, {sD}, {sPCOL}\ns_lshl_b32 {sBLKS}, {sA}, 6")
            s(f"v_lshrrev_b32 {v(vT0)}, 4, v0\nv_and_b32 {v(vT1)}, 15, v0\nv_lshlrev_b32 {v(vT3)}, {sB}, {v(vT0)}\nv_xor_b32 {v(vT1)}, {v(vT1)}, {v(vT3)}")
            s(f"v_mul_u32_u24 {v(vT0)}, {sA}, {v(vT0)}\nv_lshrrev_b32 {v(vT3)}, 3, {v(vT1)}\nv_mad_u32_u24 {v(vT0)}, {v(vT3)}, {sC}, {v(vT0)}\nv_and_b32 {v(vT1)}, 7, {v(vT1)}")
            s(f"v_lshl_add_u32 {v(vPD)}, {v(vT1)}, 4, {v(vT0)}\ns_lshl_b32 {sA}, {sA}, 2\ns_sub_u32 {sA}, {sA}, 1024")
            for q in range(1, 4): s(f"v_add_u32 {v(vPD+q)}, {sA}, {v(vPD+q-1)}")
        if o["pgo"]: ppat()
        if o["warmc"] >= 2:
            s(f"s_lshl2_add_u32 {sA}, {sI}, {sWV}\ns_mul_i32 {sA}, {sA}, 384\ns_min_u32 {sA}, {sA}, L_end-{NAME}_kernel-384")
            s(f"s_getpc_b64 s[72:73]\nL_pc:\ns_sub_u32 s72, s72, L_pc-{NAME}_kernel\ns_subb_u32 s73, s73, 0\ns_add_u32 s72, s72, {sA}\ns_addc_u32 s73, s73, 0", glue=True)
        s("s_waitcnt lgkmcnt(0)"); self.stamp(s, "go")
        s("s_mov_b64 s[8:9], s[40:41]\ns_mov_b64 s[16:17], s[62:63]"); s.mark("go")
        if o["stag"]: s(f"s_load_dword {sBA}, s[62:63], 0")
        assert o["kz"] == 1 and not o["sw"] & 9 and o["warmc"] < 2 and o["stag"]
        def stouch(base, off):
            s(f"s_load_dword {sBB}, s[{base}:{base+1}], {off}"); s[-1].wr = [("s", "junk%d" % len(s))]
        if o["sw"] & 1:
            s(f"s_lshl2_add_u32 {sA}, {sI}, {sWV}\ns_lshl_b32 {sB}, {sA}, 7"); stouch(44, sB)
            s(f"s_add_u32 {sB}, {sB}, 64\ns_min_u32 {sC}, {sA}, 42\ns_lshl_b32 {sC}, {sC}, 6"); stouch(44, sB); stouch(52, sC)
            s(f"s_and_b32 {sC}, {sC}, 0x3c0"); stouch(56, sC)
        if o["sw"] & 2: stouch(62, sFL)
        if o["sw"] & 4:
            s(f"s_lshl2_add_u32 {sA}, s2, {sWV}\ns_min_u32 {sA}, {sA}, 383\ns_lshl_b32 {sA}, {sA}, 6\ns_add_u32 {sA}, {sA}, {WS_FL1}"); stouch(62, sA)
        if o["sw"] & 8:
            s(f"s_lshl2_add_u32 {sA}, s2, {sWV}\ns_bfe_u32 {sB}, {sA}, 0x50004\ns_and_b32 {sA}, {sA}, 15\ns_mul_i32 {sB}, {sB}, {KVREC}\ns_lshl_b32 {sA}, {sA}, 6\ns_add_u32 {sA}, {sA}, {sB}\ns_add_u32 {sA}, {sA}, {WS_KVP+16384}"); stouch(62, sA)
        if o["warmc"] >= 2:
            for k in range(0, 6, o["warmc"] - 1): s(f"s_load_dword {sBB}, s[72:73], {64*k}"); s[-1].wr = [("s", "junk%d" % k)]
        for r in range(2): B(f"buffer_load_dwordx4 {v(tmp+4*r,4)}, {v(vL16)}, {sX}, {sSO[0]} offen offset:{1024*r}", "rows", "go", sp=8)
        if not o["stag"]: B(f"buffer_load_dword {v(vTAG)}, {v(vXD0)}, {sWS}, 0 offen sc1", "tag", sp=8)
        if o["xa"]: dma_xp(0, None, o["sp0"])
        if not o["pgo"]: ppat()
        s(f"s_cmp_lt_u32 {sU}, 2\ns_cselect_b64 s[12:13], s[42:43], s[50:51]", glue=True)
        s.mark("pd")
        def dma_p(ci, after=None):
            mul = sBLKS if ci == 0 else 64 * stride
            run4(f"s_add_u32 {sM}, {sROT}, {ci}\ns_and_b32 {sM}, {sM}, 7\ns_mul_i32 {sM}, {sM}, {mul}\ns_add_u32 m0, {sE1}, {PSL[ci]}\ns_add_u32 {sM}, {sM}, {sPCOL}", vPD, sW, ("p", ci), after, sp1 if ci else 16)
        dma_p(0, "pd")
        if not o["xa"]: dma_xp(0, None, o["sp0"])
        s(f"v_and_b32 {v(vT0)}, 31, v0\nv_lshlrev_b32 {v(vN16)}, 4, {v(vT0)}\nv_lshlrev_b32 {v(vT1)}, 7, {v(vT0)}")
        s(f"v_bfe_u32 {v(vT0)}, v0, 1, 3\nv_lshrrev_b32 {v(vT2)}, 5, v0\nv_xor_b32 {v(vT0)}, {v(vT0)}, {v(vT2)}\nv_lshl_add_u32 {v(vXR)}, {v(vT0)}, 4, {v(vT1)}")
        for cq in range(1, 4): s(f"v_xor_b32 {v(vXR+cq)}, {32*cq}, {v(vXR)}")
        yR, yP, yF, yH, x0, x1 = (ACC[1] + i for i in range(6))
        s(f"v_bfe_u32 {v(yR)}, v0, 2, 2\nv_bfe_u32 {v(yP)}, v0, 4, 1\ns_add_u32 {sB}, {sB}, 4")
        s(f"v_and_b32 {v(yF)}, 16, {v(vL16)}\nv_and_b32 {v(yH)}, 2, v0\nv_lshl_add_u32 {v(yF)}, {v(yH)}, 2, {v(yF)}\nv_lshl_add_u32 {v(yH)}, {v(vT2)}, 3, {v(yR)}")
        s(f"v_xor_b32 {v(x0)}, {sWV}, {v(yR)}\nv_lshl_add_u32 {v(x0)}, {v(x0)}, {sB}, {v(yF)}\nv_lshl_add_u32 {v(x0)}, {v(yP)}, {sE0}, {v(x0)}")
        s(f"v_cmp_eq_u32 vcc, {v(yR)}, {v(yP)}\nv_mov_b32 {v(vT1)}, 0x3f803f80")
        s(f"v_lshl_add_u32 {v(x0)}, {v(yH)}, 8, {v(x0)}\nv_add_u32 {v(vPR)}, {R[2]}, {v(x0)}\nv_add_u32 {v(vPR+1)}, {R[4]}, {v(x0)}")
        for i in range(4): s(f"v_cndmask_b32 {v(CSEL+i)}, 0, {v(vT1)}, vcc")
        if o["cbmix"]: s(f"s_lshr_b32 {sCB}, {sI}, 3\ns_lshl1_add_u32 {sCB}, {sCB}, {sI}")
        s(f"s_xor_b32 {sCB}, {sI}, {o['cbx']}\ns_and_b32 {sCB}, {sCB}, 7\ns_lshl_b32 {sCB}, {sCB}, 7\ns_lshl_b32 {sW16K}, {sWV}, 14\ns_lshl_b32 {sW8K}, {sWV}, 13\nv_mov_b32 {v(vZ)}, 0")
        s(f"s_and_b32 {sA}, {sWV}, 1\ns_cmp_eq_u32 {sA}, 1\ns_cselect_b64 {sPAR}, -1, 0")
        for i in range(4):
            s(f"s_add_u32 {sA}, {sQ4}, {i}\ns_and_b32 {sA}, {sA}, 3\ns_lshl2_add_u32 {sA}, {sT}, {sA}")
            if i > 1: s(f"s_lshl_b32 {sXB[i]}, {sA}, 15")
            s(f"s_mul_i32 {sAB[i]}, {sA}, {TBSTR}\ns_add_u32 {sAB[i]}, {sAB[i]}, {WS_ACT}")
        srd(s, sB2, 56, 1024)
        srd(s, sW2, 54, 1376 * 1024); srd(s, sWo, 46, 512 * 1024); srd(s, sOut, 58, 2048 * 1024)
        tl.straight(s); s = Stream()
        while tl.bi < len(tl.bg): tl.emit_bg(True)
        s(f"s_cmp_ge_u32 {sU}, 2\ns_cbranch_scc1 L_ffn\nL_split:", glue=True)
        if kP:
            s(f"s_lshl2_add_u32 {sHK}, {sJ}, {sWV}\ns_lshl_b32 {sD}, {sBLKP}, 6\ns_add_u32 {sD}, {sD}, 256")
            s(f"s_lshr_b32 {sB}, {sWV}, 1\ns_add_u32 {sBLKS}, {sBLKP}, {sB}\ns_add_u32 {sBLKS}, {sBLKS}, 4")
        else:
            s(f"s_add_u32 {sA}, {sJ}, {o['qx']}\ns_and_b32 {sA}, {sA}, 7\ns_lshl_b32 {sD}, {sA}, 7\ns_lshl2_add_u32 {sHD}, {sA}, {sWV}\ns_add_u32 {sBLKP}, {sBLKP}, {sWV}")
        srd(s, sAux, 44, 32 * 512)
        t0, t2 = G4, G4 + 1
        s(f"v_and_b32 {v(t0)}, 0x13, v0\nv_and_b32 {v(t2)}, 4, v0\nv_lshl_add_u32 {v(t0)}, {v(t2)}, 1, {v(t0)}\nv_bfe_u32 {v(t2)}, v0, 3, 1\nv_lshl_add_u32 {v(t0)}, {v(t2)}, 2, {v(t0)}")
        s(f"v_and_b32 {v(t2)}, 32, v0\nv_lshl_add_u32 {v(t0)}, {v(t2)}, 8, {v(t0)}\nv_lshlrev_b32 {v(t0)}, 1, {v(t0)}")
        s.mark("aux")
        sWS2 = sB2
        B(f"buffer_load_dwordx4 {v(B2,4)}, {v(vOUT)}, {sB2}, {sCB} offen", None, "aux", sp=16)
        B(f"s_mov_b64 s[36:37], s[52:53]\ns_movk_i32 s38, 2752\ns_lshl_b32 {sM}, {sBLKS if kP else sBLKP}, 6\nbuffer_load_ushort {v(vB1)}, {v(t0)}, {sB2}, {sM} offen", sp=16)
        B(f"s_mov_b64 s[36:37], s[{50 if kP else 42}:{51 if kP else 43}]\ns_mov_b32 s38, {512*strS}\n"
          f"s_lshr_b32 {sM}, {sHD}, 1\ns_add_u32 m0, {sE1}, {SCR}\ns_lshl_b32 {sM}, {sM}, 10\nbuffer_load_dwordx4 {v(vL16)}, {sAux}, {sM} offen lds", "b2", sp=16)
        w1 = vJ + 1
        def warm3(pos):
            if o["warmm" if (kP or o["wA"] != 2) else "warmb"] != pos or (o["wA"] == 1 and not kP): return
            wa, wd = (vFL, vFL + 1) if 2 <= pos <= 4 else (XR, XR + 1); m = 2 if o["wA"] else 1
            wid = f"s_add_u32 {sN}, s2, {0 if kP else 3}\ns_and_b32 {sM}, s2, 8\ns_and_b32 {sN}, {sN}, 7\ns_or_b32 {sN}, {sN}, {sM}\ns_lshl4_add_u32 {sN}, {sROT}, {sN}\ns_lshl2_add_u32 {sN}, {sN}, {sWV}" if o["wA"] else f"s_lshl2_add_u32 {sN}, s2, {sWV}"
            B(f"v_min_u32 {v(wa)}, {11*m-1}, v0\nv_lshlrev_b32 {v(wa)}, 7, {v(wa)}\n{wid}\ns_mul_i32 {sM}, {sN}, {11*128*m}\nbuffer_load_dword {v(wd)}, {v(wa)}, {sW2}, {sM} offen", None, "stok" if 2 <= pos <= 4 else None, sp=16)
            tl.bg[-1].ins[-1].wr = []
            B(f"v_min_u32 {v(wa)}, {(4*m-1)*128}, {v(wa)}\ns_lshl_b32 {sM}, {sN}, {8+m}\nbuffer_load_dword {v(wd)}, {v(wa)}, {sWo}, {sM} offen", sp=32)
        def warmq(pos):
            if o["wq"] != pos or not kP: return
            B(f"v_and_b32 {v(XR+2)}, 15, v0\nv_lshrrev_b32 {v(XR+3)}, 1, {v(XR+2)}\nv_mul_u32_u24 {v(XR+3)}, 3072, {v(XR+3)}\nv_and_b32 {v(XR+2)}, 1, {v(XR+2)}\nv_lshl_add_u32 {v(XR+2)}, {v(XR+2)}, 7, {v(XR+3)}\n"
              f"s_and_b32 {sM}, {sI}, 1\ns_lshl1_add_u32 {sM}, {sROT}, {sM}\ns_lshl2_add_u32 {sM}, {sM}, {sWV}\ns_mul_i32 {sM}, {sM}, {8*3072}\n"
              f"s_lshl_b32 {sN}, {sQ4}, 8\ns_add_u32 {sN}, {sN}, {128*o['qx']}\ns_and_b32 {sN}, {sN}, 0x3ff\ns_add_u32 {sM}, {sM}, {sN}\nbuffer_load_dword {v(XR+3)}, {v(XR+2)}, {sW}, {sM} offen", sp=16)
        def stats_ld(i, r):
            h = f"s_add_u32 {r}, {sQ4}, {i}" if i > 1 else f"s_and_b32 {r}, {sWV}, 1\ns_xor_b32 {r}, {r}, {i}\ns_add_u32 {r}, {r}, {sQ4}"
            return h + f"\ns_and_b32 {r}, {r}, 3\ns_lshl_b32 {r}, {r}, 9\ns_add_u32 {r}, {r}, {sSTB}\nbuffer_load_dwordx4 {v(ST+4*i,4)}, {v(vN16)}, {sWS}, {r} offen sc1"
        for ci in range(1, 9):
            if ci == o["s0p"]:
                for i in range(2): B(stats_ld(i, sM), "stat0", "b%d" % o["s0"], sp=32)
            if ci < 8 and ci % 2 == 0: dma_xp(ci // 2, None, sp1)
            if ci < 8: dma_p(ci, {1: "su", 5: "phi", 6: "b2", 7: "b3"}.get(ci))
        if True:
            s(f"v_bfe_u32 {v(x0)}, v0, 1, 1\nv_lshl_add_u32 {v(x0)}, {v(yP)}, 1, {v(x0)}\nv_lshlrev_b32 {v(x0)}, 3, {v(x0)}\nv_lshl_add_u32 {v(x0)}, {v(yH)}, 5, {v(x0)}")
            s(f"s_and_b32 {sC}, s98, 0x200\ns_add_u32 {sA}, {sE1}, {sC}\ns_add_u32 {sA}, {sA}, {SCR}")
            s(f"v_add_u32 {v(TA)}, {sA}, {v(x0)}\nv_xor_b32 {v(TA+1)}, 0x200, {v(TA)}"); s.mark("pha")
        s(f"s_movk_i32 {sB}, {strS}")
        if o["srot"]:
            s(f"s_mul_i32 {sSO[0]}, {sROT}, {64*strS}\ns_lshl_b32 {sSO[1]}, {sWV}, 11\ns_mul_i32 {sA}, {sWV}, {16*strS}\ns_add_u32 {sD}, {sD}, {sA}")
        else:
            for k in range(2):
                s(f"s_add_u32 {sA}, {sWV}, {sROT}\ns_add_u32 {sA}, {sA}, {4*k}\ns_and_b32 {sA}, {sA}, 7\ns_mul_i32 {sA}, {sA}, {64*strS}\ns_add_u32 {sSO[k]}, {sA}, {sD}")
        def dma_s(half, after):
            if not o["srot"]:
                for k in range(2): run4(f"s_add_u32 m0, {sW8K}, {R[4-4*half]+k*4096}\ns_add_u32 {sM}, {sSO[half]}, {32*strS*k}", vSD, sWS2, ("s", half), after, o["sps%d" % half])
                return
            for g in range(4):
                pre = f"s_add_u32 m0, {sSO[1]}, {R[4-4*half]+g*8192}\n"
                pre += f"s_add_u32 {sSO[0]}, {sSO[0]}, {64*strS}\ns_cmp_eq_u32 {sSO[0]}, {512*strS}\ns_cselect_b32 {sSO[0]}, 0, {sSO[0]}" if (half or g) else "s_nop 0"
                for q in range(2):
                    sp = o["sg"] if (half, g, q) == (0, 1, 0) else o["sps%d" % half]
                    B(f"{pre if q == 0 else ''}\nbuffer_load_dwordx4 {v(vSD+q)}, {sWS2}, {sSO[0]} offen offset:{1024*q} lds", ("s", half), after, sp)
        s(f"v_lshrrev_b32 {v(vT0)}, 3, v0\nv_lshlrev_b32 {v(vT1)}, 2, v0\nv_and_b32 {v(vT1)}, 64, {v(vT1)}\nv_xor_b32 {v(vT1)}, {v(vT1)}, {v(vOUT)}")
        s(f"v_mad_u32_u24 {v(vSD)}, {v(vT0)}, {sB}, {v(vT1)}")
        if o["srot"]: s(f"v_add_u32 {v(vSD)}, {sD}, {v(vSD)}")
        if kP and o["z5"]:
            five = sum(1 << i for i, n in enumerate(FFN_NBLK) if n == 5)
            s(f"s_lshr_b32 {sC}, {five}, {sJ}\ns_and_b32 {sC}, {sC}, 1\ns_lshl_b32 {sC}, {sC}, 6\nv_and_b32 {v(vSD+1)}, {sC}, {v(vT1)}\nv_lshl_add_u32 {v(vSD)}, {v(vSD+1)}, 20, {v(vSD)}")
        for q in range(1, 2 if o["srot"] else 4): s(f"v_add_u32 {v(vSD+q)}, {q*(8*strS-1024)}, {v(vSD)}")
        s(f"v_lshl_add_u32 {v(vWD+3)}, {v(vT0)}, 10, {v(vT1)}")
        if kP:
            s(f"v_lshl_add_u32 {v(vT3)}, {v(vT2)}, 9, {v(vN16)}\nv_lshlrev_b32 {v(vT2)}, 5, {v(vT2)}\nv_add_u32 {v(vT2)}, 0x400, {v(vT2)}")
            s(f"v_cmp_gt_u32 vcc, 0x100, {v(vN16)}\nv_add_u32 {v(vT0)}, 16, {v(vT2)}\nv_add_u32 {v(vT1)}, 0x100, {v(vT3)}")
            s(f"v_cndmask_b32 {v(vKA)}, {v(vT2)}, {v(vT3)}, vcc\nv_cndmask_b32 {v(vKA+1)}, {v(vT0)}, {v(vT1)}, vcc")
        s(f"v_lshrrev_b32 {v(x0)}, 1, {v(yR)}\nv_lshl_add_u32 {v(x0)}, {v(x0)}, 6, {v(yF)}\nv_lshl_add_u32 {v(x0)}, {v(yP)}, 5, {v(x0)}\nv_lshl_add_u32 {v(x0)}, {v(yH)}, 7, {v(x0)}")
        s(f"v_lshrrev_b32 {v(vWR)}, 4, v0\nv_lshl_add_u32 {v(vWR)}, {v(vWR)}, 3, {v(yR)}\nv_and_b32 {v(x1)}, 2, {v(yR)}\nv_or_b32 {v(x1)}, {v(x1)}, {v(yP)}")
        s(f"v_lshl_add_u32 {v(vWR)}, {v(vWR)}, 2, {v(x1)}\nv_and_b32 {v(x1)}, 3, v0\nv_lshl_add_u32 {v(vWR)}, {v(vWR)}, 2, {v(x1)}\nv_lshlrev_b32 {v(vWR)}, 3, {v(vWR)}")
        if qS: s(f"s_lshl_b32 {sA}, {sWV}, 5")
        else: s(f"s_and_b32 {sA}, {sWV}, 2\ns_lshl_b32 {sA}, {sA}, 5")
        s(f"v_xor_b32 {v(x0)}, {sA}, {v(x0)}\nv_add_u32 {v(vSR)}, {R[4]}, {v(x0)}")
        if kP:
            if o["kz"] == 0:
                for i in range(4): s(f"v_mov_b32 {v(ONES+i)}, 0x3f803f80")
            elif o["kz"] == 1:
                for i in range(8): s(f"v_mov_b32 {v(F8b+i)}, 0x3f803f80")
            else:
                s(f"v_lshrrev_b32 {v(ONES)}, 4, v0\nv_cmp_eq_u32 vcc, 1, {v(ONES)}\nv_mov_b32 {v(ONES)}, 0\nv_mov_b32 {v(ONES+3)}, 0")
                s(f"v_cndmask_b32 {v(ONES+1)}, 0, 1.0, vcc\nv_lshrrev_b32 {v(ONES+2)}, 16, {v(ONES+1)}")
        s(f"v_and_b32 {v(vFA)}, {15 if qS else 7}, v0\nv_lshlrev_b32 {v(vFA)}, 3, {v(vFA)}")
        if True:
            s(f"v_bfe_u32 {v(vT0)}, v0, 2, 1\nv_lshrrev_b32 {v(vT2)}, 5, v0\nv_cmp_eq_u32 vcc, {v(vT0)}, {v(vT2)}")
            s(f"v_and_b32 {v(vT0)}, 16, {v(vL16)}\nv_mov_b32 {v(vT2)}, 0x3f80\nv_lshlrev_b32 {v(vT2)}, {v(vT0)}, {v(vT2)}\nv_cndmask_b32 {v(vT2)}, 0, {v(vT2)}, vcc")
            s(f"v_bfe_u32 {v(vT0)}, v0, 1, 1\nv_bfe_u32 {v(vT3)}, v0, 3, 2\nv_lshl_add_u32 {v(vT0)}, {v(vT3)}, 1, {v(vT0)}")
            for i in range(0, 4 * len(SEL), 2):
                s(f"v_cmp_eq_u32 vcc, {i}, {v(vT0)}\nv_cmp_eq_u32 s[70:71], {i+1}, {v(vT0)}")
                s(f"s_nop 0\nv_cndmask_b32 {v(SEL[i>>2]+(i&3))}, 0, {v(vT2)}, vcc\nv_cndmask_b32 {v(SEL[i>>2]+(i&3)+1)}, 0, {v(vT2)}, s[70:71]")
            if qS: s(f"s_lshl_b32 {sFK}, {sHD}, 7\ns_add_u32 {sFK}, {sFK}, {WS_FL1}")
        s.mark("su")
        s.waittok("rows", ahead=o["ah0"]); self.stamp(s, "rows")
        q = ST
        s(f"v_mov_b32 {v(vT1)}, 0x3f803f80")
        for i in range(4): s(f"v_mov_b32 {v(q+i)}, 0")
        for i in range(4):
            for r in range(2):
                s(f"v_dot2c_f32_bf16 {v(q+r)}, {v(tmp+4*r+i)}, {v(vT1)}\nv_dot2c_f32_bf16 {v(q+2+r)}, {v(tmp+4*r+i)}, {v(tmp+4*r+i)}")
        if o["stag"]: s(f"s_mov_b32 {sA}, {sBA}\nv_lshrrev_b32 {v(vT0)}, 1, v0")
        else:
            s.waittok("tag")
            s(f"v_readfirstlane_b32 {sA}, {v(vTAG)}\nv_lshrrev_b32 {v(vT0)}, 1, v0")
        s(f"v_permlane32_swap_b32 {v(q)}, {v(q+1)}\nv_permlane32_swap_b32 {v(q+2)}, {v(q+3)}")
        s(f"v_add_f32 {v(q)}, {v(q)}, {v(q+1)}\nv_add_f32 {v(q+2)}, {v(q+2)}, {v(q+3)}\ns_add_u32 {sA}, {sA}, 0x{TAGC:x}")
        s(f"v_mov_b32 {v(vTAG)}, {sA}\nv_permlane16_swap_b32 {v(q)}, {v(q+2)}\nv_add_f32 {v(q)}, {v(q)}, {v(q+2)}")
        s(f"v_mov_b32 {v(vTAG+1)}, {sA}\nv_mov_b32 {v(q+1)}, {sA}")
        for m in ("quad_perm:[1,0,3,2]", "quad_perm:[2,3,0,1]", "row_half_mirror", "row_mirror"):
            s(f"v_add_f32_dpp {v(q)}, {v(q)}, {v(q)} {m} {DPPM}")
        if o["sv"]:
            s(f"v_mul_f32 {v(q)}, {f2u(1/512)}, {v(q)}\nv_mov_b32 {v(q+2)}, {v(q)}\nv_mov_b32 {v(q+3)}, {v(q)}\nv_and_b32 {v(vT1)}, 16, v0")
            s(f"v_permlane16_swap_b32 {v(q+2)}, {v(q+3)}\nv_cmp_ne_u32 vcc, 0, {v(vT1)}")
            s(f"v_fma_f32 {v(q+3)}, -{v(q+2)}, {v(q+2)}, {v(q+3)}\nv_max_f32 {v(q+3)}, 0, {v(q+3)}\nv_add_f32 {v(q+3)}, {f2u(1e-5)}, {v(q+3)}\nv_sqrt_f32 {v(q+3)}, {v(q+3)}")
            s(f"v_cndmask_b32 {v(q+2)}, -{v(q+2)}, {v(q+3)}, vcc\nv_cvt_pk_bf16_f32 {v(q)}, {v(q+2)}, {v(q+2)}\nv_lshlrev_b32 {v(q+3)}, 16, {v(q)}")
            s(f"v_sub_f32 {v(q+2)}, {v(q+2)}, {v(q+3)}\nv_cvt_pk_bf16_f32 {v(q)}, {v(q+3)}, {v(q+2)}")
        s(f"s_mov_b32 exec_lo, 0x00010001\ns_mov_b32 exec_hi, 0x00010001\nbuffer_store_dwordx2 {v(q,2)}, {v(vT0)}, {sWS}, {sFL} offen sc1\ns_mov_b64 exec, -1", glue=True)
        self.stamp(s, "st")
        s(f"s_lshr_b32 {sFL}, {sTT}, 1\ns_lshl4_add_u32 {sFL}, {sFL}, {sWV}\ns_lshl_b32 {sFL}, {sFL}, 6\ns_add_u32 {sFL}, {sFL}, {WS_FL2}")
        s(f"s_lshl_b32 {sC}, {sWV}, 3")
        for d, tb in ((sBA, FFN_BLK0[0::2]), (sBB, FFN_BLK0[1::2]), (sBS[0], [x[0] for x in SBL]), (sBS[1], [x[1] for x in SBL]), (sBS[2], [x[2] for x in SBL])):
            s(f"s_lshr_b32 {d}, {pack(tb)}, {sC}\ns_and_b32 {d}, {d}, 0xff\ns_lshl_b32 {d}, {d}, 11")
        KR = vJ
        s(f"s_and_b32 {sA}, s98, 0x8000\ns_xor_b32 {sB}, {sA}, 0x8000")
        for i in range(4): s(f"v_add_u32 {v(KR+i)}, {sA}, {v(vXR+i)}\nv_add_u32 {v(vXR+i)}, {sB}, {v(vXR+i)}")
        assert all(b.tok != "b2" for b in tl.bg[tl.bi:]) or True
        PH = Stream() if o["phl"] else s
        s.mark("auxi")
        s(f"v_lshrrev_b32 {v(vT0)}, 3, v0\nv_lshl_add_u32 {v(vOUT)}, {v(vT0)}, 10, {v(vOUT)}")
        if not qS:
            six = sum(1 << i for i, n in enumerate(FFN_NBLK) if n == 6)
            s(f"s_lshr_b32 {sC}, {six}, {sJ}\ns_lshr_b32 {sA}, {sWV}, 1\ns_andn2_b32 {sC}, {sA}, {sC}\ns_and_b32 {sC}, {sC}, 1\ns_lshl_b32 {sC}, {sC}, 18\ns_or_b32 {sBLKS}, {sBLKS}, {sC}")
        if True:
            s(f"v_and_b32 {v(vT2)}, 4, v0\nv_cmp_ne_u32 vcc, 0, {v(vT2)}\nv_mov_b32 {v(vT3)}, 0x80008000\ns_nop 0\nv_cndmask_b32 {v(vT3)}, 0, {v(vT3)}, vcc")
            PH.waittok("b2", lat=0)
            for hs in range(len(PHI)):
                for e in range(2): PH(f"ds_read_b64_tr_b16 {v(PHI[hs]+2*e,2)}, {v(TA+hs)} offset:{e*128}", tok="phr")
            PH.waittok("phr"); PH.mark("phi")
            for i in range(4 * len(PHI)): PH(f"v_xor_b32 {v(PHI[i>>2]+(i&3))}, {v(vT3)}, {v(PHI[i>>2]+(i&3))}")
        def xread(st, un, region, ks):
            st(f"ds_read_b128 {v(XF+4*(ks%NX),4)}, {v(vXR+(ks&3))} offset:{region+(ks>>2)*4096}", tok=("xf", un, ks))
        def stat_consts0(st, i):
            m, va = ST + 4 * i, ST + 4 * i + 2; k = KC[i]
            st(f"v_mul_f32 {v(m)}, {f2u(1/512)}, {v(m)}\nv_mul_f32 {v(va)}, {f2u(1/512)}, {v(va)}\nv_fma_f32 {v(va)}, -{v(m)}, {v(m)}, {v(va)}\nv_max_f32 {v(va)}, 0, {v(va)}")
            st(f"v_add_f32 {v(va)}, {f2u(1e-5)}, {v(va)}\nv_sqrt_f32 {v(va)}, {v(va)}\nv_mov_b32 {v(m+3)}, 0")
            st(f"v_cvt_pk_bf16_f32 {v(m+1)}, -{v(m)}, {v(va)}\nv_rcp_f32 {v(k)}, {v(va)}")
            st(f"v_lshlrev_b32 {v(vT0)}, 16, {v(m+1)}\nv_and_b32 {v(vT1)}, 0xffff0000, {v(m+1)}")
            st(f"v_sub_f32 {v(m)}, -{v(m)}, {v(vT0)}\nv_sub_f32 {v(vT1)}, {v(va)}, {v(vT1)}")
            if kP: st(f"v_mul_f32 {v(k+1)}, {f2u(LOG2E)}, {v(k)}\nv_mov_b32 {v(k+2)}, {v(va)}")
            else:
                st(f"v_mov_b32 {v(k+2)}, {v(va)}\nv_mul_f32 {v(k+1)}, {v(k)}, {v(k)}\nv_mul_f32 {v(k)}, {f2u(K0)}, {v(k)}")
                st(f"v_mul_f32 {v(k+1)}, {v(k+1)}, {v(k)}\nv_mul_f32 {v(k+1)}, {f2u(0.044715)}, {v(k+1)}")
            st(f"v_cvt_pk_bf16_f32 {v(m)}, {v(vT0)}, {v(m)}\nv_cvt_pk_bf16_f32 {v(m+2)}, {v(va)}, {v(vT1)}\nv_mov_b32 {v(m+1)}, {v(m)}")
        def stat_consts(st, i):
            if not o["sv"]: return stat_consts0(st, i)
            m = ST + 4 * i; k = KC[i]
            st(f"v_lshlrev_b32 {v(k)}, 16, {v(m+2)}\nv_and_b32 {v(k+2)}, 0xffff0000, {v(m+2)}\nv_add_f32 {v(k+2)}, {v(k+2)}, {v(k)}")
            st(f"v_rcp_f32 {v(k)}, {v(k+2)}\nv_mov_b32 {v(m+1)}, {v(m)}\nv_mov_b32 {v(m+3)}, 0")
            if kP: st(f"v_mul_f32 {v(k+1)}, {f2u(LOG2E)}, {v(k)}")
            else:
                st(f"v_mul_f32 {v(k+1)}, {v(k)}, {v(k)}\nv_mul_f32 {v(k)}, {f2u(K0)}, {v(k)}")
                st(f"v_mul_f32 {v(k+1)}, {v(k+1)}, {v(k)}\nv_mul_f32 {v(k+1)}, {f2u(0.044715)}, {v(k+1)}")
        def corr_pre(st, which):
            c = CA[which]
            st(f"v_mov_b32 {v(c+3)}, 0")
            if which == kP: st(f"v_lshl_or_b32 {v(c+2)}, {v(vB1)}, 16, {v(vB1)}")
            else: st(f"v_mov_b32 {v(c+2)}, 0")
        def corr_a(st, which):
            c = CA[which]
            st(f"v_cvt_pk_bf16_f32 {v(c)}, {v(CS)}, {v(CS)}\nv_lshlrev_b32 {v(vT1)}, 16, {v(c)}\nv_sub_f32 {v(vT0)}, {v(CS)}, {v(vT1)}")
            st(f"v_cvt_pk_bf16_f32 {v(c+1)}, {v(vT0)}, {v(vT0)}")
        def spin(st, test, reload_, name):
            lp, ok = self.lab("poll"), self.lab("ok")
            st(test + f"\ns_cbranch_vccz {ok}", glue=True)
            st(f"s_mov_b32 {sC}, 0", cond=True)
            st(lp + ":")
            slp = o["slp"] if name in ("fO", "fS") else o["slpK"]
            if slp: st(f"s_sleep {slp}", cond=True)
            st(reload_, cond=True)
            st(f"s_add_u32 {sC}, {sC}, 1\ns_cmp_gt_u32 {sC}, 100000\ns_cbranch_scc1 {ok}\ns_waitcnt vmcnt(0)", cond=True)
            st(test + f"\ns_nop 4\ns_cbranch_vccnz {lp}", cond=True)
            st(ok + ":\ns_nop 0"); st.mark(name); self.stamp(st, name)
        corr_pre(PH, 0); corr_pre(PH, 1)
        tl.straight(s)
        ia = [x for x in tl.log if x.startswith("mark auxi")][0]
        assert int(ia.split("bg=")[1]) > tl.lastbg("b2"), "small loads must be issued before their address registers change"
        s = Stream()
        if o["phl"]: s.need("b0"); s.extend(PH)
        n0 = len(tl.bg)
        dma_x(2, "b5", o["spx"])
        x2pre = Stream(); x2pre(f"s_lshl1_add_u32 {sM}, {sWV}, {sROT}\ns_lshl_b32 {sM}, {sM}, 7\ns_and_b32 {sXK[0]}, {sM}, 0x380\ns_add_u32 {sM}, {sM}, 128\ns_and_b32 {sXK[1]}, {sM}, 0x380")
        tl.bg[n0].ins = Stream(x2pre + tl.bg[n0].ins)
        for i in range(2, 4): B(stats_ld(i, sM), "stats", None, sp=32)
        if not o["xord"]: dma_x(3, "b7", o["spx3"])
        lag = o["lag"]
        Mp = []
        def mfa(kp): return f"{MF} {v(ACC[0],16)}, {ag(4*kp,4)}, {ag(128+4*kp,4)}, {v(ACC[0],16) if kp else 0}"
        def mfb(kp): return f"{MF} {v(ACC[1],16)}, {ag(4*kp,4)}, {v(XF+4*(kp%NX),4)}, {v(ACC[1],16) if kp else 0}"
        def mf16(kp): return f"{MF16} {v(CS,4)}, {v(CSEL,4)}, {ag(4*kp,4)}, {v(CS,4) if kp else 0}"
        def pread(g, ks):
            ci, kk = ks >> 2, ks & 3; hi = PSL[ci] >= R[4]
            for e in range(2):
                g(f"ds_read_b64_tr_b16 {ag(4*ks+2*e,2)}, {v(vPR+hi)} offset:{PSL[ci]-R[4 if hi else 2]+kk*4096+e*1024}", tok=("pf", ks))
        def grp(f):
            g = Stream(); f(g); Mp.append(g)
        for ks in range(32):
            ci, kk = ks >> 2, ks & 3; kp = ks - lag
            g = Stream()
            if kk == 0:
                if ci == 0: g.waittok(("xp", 0), ("p", 0), ahead=o["ah0b"], lat=o["plat0"]); self.stamp(g, "x0")
                else: g.waittok(("p", ci), ahead=o["ahead"], lat=o["plat"])
                g("s_barrier"); g.mark("b%d" % ci); self.stamp(g, "b%d" % ci)
            if kp >= 0: g.waittok(("xf", 0, kp), lat=0); g(mfa(kp))
            pread(g, ks); Mp.append(g); g = Stream()
            if kp >= 0: g(mfb(kp))
            g(f"ds_read_b128 {ag(128+4*ks,4)}, {v(KR+(ks&3))} offset:{(ks>>2)*4096}"); xread(g, 0, 0, ks)
            if ks == 31: g.mark("prd")
            Mp.append(g)
            if kp >= 0: grp(lambda g: g(mf16(kp)))
        x = s
        x.waittok("stat0")
        def tagtest(b):
            return (f"v_xor_b32 {v(vT0)}, {v(vTAG)}, {v(b+1)}\nv_xor_b32 {v(vT1)}, {v(vTAG)}, {v(b+3)}\nv_xor_b32 {v(vFL)}, {v(vTAG)}, {v(b+5)}\nv_xor_b32 {v(vFL+1)}, {v(vTAG)}, {v(b+7)}\n"
                    f"v_or3_b32 {v(vT0)}, {v(vT0)}, {v(vFL)}, {v(vFL+1)}\nv_cmp_ne_u64 vcc, 0, {v(vT0,2)}")
        def swapab(st, k):
            st(f"s_cmp_lg_u32 s98, 0\ns_cselect_b32 {sB}, {sAB[k+1]}, {sAB[k]}\ns_cselect_b32 {sAB[k+1]}, {sAB[k]}, {sAB[k+1]}\ns_mov_b32 {sAB[k]}, {sB}", glue=True)
        spin(x, tagtest(ST), stats_ld(0, sA) + "\n" + stats_ld(1, sA), "st0")
        stat_consts(x, 0); stat_consts(x, 1); swapab(x, 0)
        if kP and o["kz"] == 1: x("s_mov_b32 s32, 0xffff\ns_mov_b32 s33, 0xffff")
        x.need("prd")
        x(f"v_mov_b32 {v(vWD)}, {v(vWD+3)}")
        for q in range(1, 4): x(f"v_add_u32 {v(vWD+q)}, {7168*q}, {v(vWD)}")
        for q in (1, 3): x(f"v_xor_b32 {v(vWD+q)}, 32, {v(vWD+q)}")
        x(f"s_lshl_b32 {sPCOL}, {sTT}, 16\ns_add_u32 {sPCOL}, {sPCOL}, {sW16K}\ns_add_u32 {sPCOL}, {sPCOL}, {sCB}")
        x(f"s_and_b32 {sE1}, s98, 0x8000\ns_add_u32 {sA}, {sE1}, 0x8000")
        for i in range(4): x(f"v_add_u32 {v(vXR+i)}, {sA}, {v(vXR+i)}")
        x.need("cs0"); corr_a(x, 0); x.mark("ca0")
        for n, kp in enumerate(range(32 - lag, 32)):
            grp(lambda g: (g.waittok(("xf", 0, 31), lat=0) if n == 0 else None, g(mf16(kp)), g.mark("cs0") if kp == 31 else None))
        for kp in range(32 - lag, 32): grp(lambda g: g(mfa(kp)))
        grp(lambda g: g(mfb(32 - lag)))
        grp(lambda g: (g.need("ca0"), g(f"{MF} {v(ACC[0],16)}, {v(CA[0],4)}, {v(ST,4)}, {v(ACC[0],16)}"), self.stamp(g, "p1")))
        for kp in range(33 - lag, 32): grp(lambda g: g(mfb(kp)))
        grp(lambda g: g(f"{MF} {v(ACC[1],16)}, {v(CA[0],4)}, {v(ST+4,4)}, {v(ACC[1],16)}"))
        tl.sched(Mp, [x])
        if o.get("stop"):
            out = Stream()
            for i in tl.out:
                if "m" in o["stop"] and i.kind == "mfma": continue
                if "s" in o["stop"] and (i.kind == "vst" or i.cond or i.op.startswith("s_cbranch_vcc")): continue
                if "b" in o["stop"] and i.kind == "barrier": continue
                if "d" in o["stop"] and (i.kind == "dsr" or (i.kind == "waittok" and (i.tok[0] == "phr" or i.tok[0][0] == "xf"))): continue
                out.append(i)
            s = out
            s("s_waitcnt vmcnt(0)\ns_memrealtime s[64:65]\ns_waitcnt lgkmcnt(0)")
            s(f"s_lshl2_add_u32 {sA}, s2, {sWV}\ns_lshl_b32 {sA}, {sA}, 6\ns_add_u32 {sA}, {sA}, {WS_STAMP}")
            for i, r in enumerate(["s100"] + ["s%d" % k for k in STAMPR] + ["s64"]):
                s(f"v_mov_b32 {v(vT1)}, {r}\nbuffer_store_dword {v(vT1)}, {v(vZ)}, {sWS}, {sA} offen offset:{4*i}")
            return s

        def gelu(e, acc, k, sbase, sblk, tok):
            e(f"s_lshl_b32 {sB}, {sblk}, 11\ns_add_u32 {sB}, {sB}, {sbase}")
            for q in range(4):
                A = [v(acc + 4 * q + i) for i in range(4)]; T = [v(G4 + i) for i in range(4)]
                for i in range(4): e(f"v_mul_f32 {T[i]}, {A[i]}, {A[i]}")
                for i in range(4): e(f"v_fma_f32 {T[i]}, {T[i]}, {v(k+1)}, {v(k)}")
                for i in range(4): e(f"v_mul_f32 {T[i]}, {A[i]}, {T[i]}")
                for i in range(4): e(f"v_exp_f32 {T[i]}, {T[i]}")
                for i in range(4): e(f"v_fma_f32 {T[i]}, {T[i]}, {v(k+2)}, {v(k+2)}")
                for i in range(4): e(f"v_rcp_f32 {T[i]}, {T[i]}")
                for i in range(4): e(f"v_mul_f32 {T[i]}, {A[i]}, {T[i]}")
                for i in range(2): e(f"v_cvt_pk_bf16_f32 {v(HO+2*q+i)}, {T[2*i]}, {T[2*i+1]}")
                if q & 1: e(f"buffer_store_dwordx4 {v(HO+4*(q>>1),4)}, {v(vL16)}, {sWS}, {sB} offen offset:{1024*(q>>1)} sc1", tok=tok)
        def sm_head(e, src, phi, T_, f4):
            for i in range(4): e(f"v_cvt_pk_bf16_f32 {v(f4+i)}, {v(src+2*i)}, {v(src+2*i+1)}")
            e(f"{MF} {v(T_,16)}, {v(phi,4)}, {v(f4,4)}, 0")
        def sm_body(e, T_, k, dst, scale=False, pk=False):
            t2, t3 = v(vT2), v(vT3); T = lambda i: v(T_ + i)
            e(f"v_max3_f32 {t2}, {T(0)}, {T(1)}, {T(2)}\nv_max3_f32 {t3}, {T(3)}, {T(4)}, {T(5)}")
            for i in range(2): e(f"v_max3_f32 {t2}, {t2}, {T(6+4*i)}, {T(7+4*i)}\nv_max3_f32 {t3}, {t3}, {T(8+4*i)}, {T(9+4*i)}")
            e(f"v_max3_f32 {t2}, {t2}, {T(14)}, {T(15)}\nv_max_f32 {t2}, {t2}, {t3}\nv_mul_f32 {t2}, {t2}, {v(k+1)}")
            P = lambda i: v(T_ + i, 2); tt = v(vT2, 2)
            if pk:
                assert k % 2 == 0 and vT2 % 2 == 0
                for i in range(0, 16, 2): e(f"v_pk_fma_f32 {P(i)}, {P(i)}, {v(k,2)}, {tt} op_sel:[0,1,0] op_sel_hi:[1,1,0] neg_lo:[0,0,1] neg_hi:[0,0,1]")
            else:
                for i in range(16): e(f"v_fma_f32 {T(i)}, {T(i)}, {v(k+1)}, -{t2}")
            for i in range(16): e(f"v_exp_f32 {T(i)}, {T(i)}")
            if pk:
                e(f"v_pk_add_f32 {tt}, {P(0)}, {P(2)}")
                for i in range(4, 16, 2): e(f"v_pk_add_f32 {tt}, {tt}, {P(i)}")
            else:
                e(f"v_add_f32 {t2}, {T(0)}, {T(1)}\nv_add_f32 {t3}, {T(2)}, {T(3)}")
                for i in range(4, 16, 2): e(f"v_add_f32 {t2}, {t2}, {T(i)}\nv_add_f32 {t3}, {t3}, {T(i+1)}")
            e(f"v_add_f32 {t2}, {t2}, {t3}\nv_rcp_f32 {t2}, {t2}")
            if scale: e(f"v_mul_f32 {t2}, {t2}, {v(k)}")
            if pk:
                for i in range(0, 16, 2): e(f"v_pk_mul_f32 {P(i)}, {P(i)}, {tt} op_sel_hi:[1,0]")
            else:
                for i in range(16): e(f"v_mul_f32 {T(i)}, {T(i)}, {t2}")
            for i in range(8): e(f"v_cvt_pk_bf16_f32 {v(dst+i)}, {T(2*i)}, {T(2*i+1)}")
        def kepi(e, un):
            acc, k = ACC[un & 1], KC[un]
            kz = o["kz"]; FV = ONES if kz == 1 else F8b
            if kz == 0: e(f"{MF} {v(TB,16)}, {v(ONES,4)}, {v(SEL[1],4)}, 0")
            if kz == 2:
                if un: e.need("c%d" % un)
                e(f"{MF} {v(TB,16)}, {v(ST+4*un,4)}, {v(ONES,4)}, 0")
            e.need("m%d" % un)
            sm_head(e, acc, PHI[0], TA, F4)
            if kz != 2:
                for i in range(8): e(f"v_mul_f32 {v(acc+8+i)}, {v(acc+8+i)}, {v(k)}")
            for i in range(4): e(f"v_cvt_pk_bf16_f32 {v(FV+i)}, {v(acc+8+2*i)}, {v(acc+9+2*i)}")
            e.mark("e%d" % un)
            b = Stream(); sm_body(b, TA, k, F8a, kz == 2)
            vt = f"{MF} {v(TB,16)}, {v(FV,4)}, {v(SEL[0],4)}, {0 if kz == 1 else v(TB,16)}"
            if kz == 2: e(vt); e.extend(b)
            else: e.extend(b[:2]); e(vt); e.extend(b[2:])
            def cv(r):
                x = "\n".join(f"v_cvt_pk_bf16_f32 {v(F8b+i)}, {v(TB+2*i)}, {v(TB+2*i+1)}" for i in r)
                if kz == 1: e(f"s_mov_b64 exec, s[32:33]\n{x}\ns_mov_b64 exec, -1", glue=True)
                else: e(x)
            cv(range(4 if kz == 1 else 2))
            e(f"{MF} {v(TA,16)}, {v(F8a,4)}, {v(SEL[0],4)}, 0")
            cv(range(4 if kz == 1 else 2, 8))
            e(f"{MF} {v(TA,16)}, {v(F8a+4,4)}, {v(SEL[1],4)}, {v(TA,16)}")
            for i in range(8): e(f"v_cvt_pk_bf16_f32 {v(F8a+i)}, {v(TA+2*i)}, {v(TA+2*i+1)}")
            e(f"{MF} {v(KV,16)}, {v(F8a,4)}, {v(F8b,4)}, {v(KV,16) if un else 0}\n{MF} {v(KV,16)}, {v(F8a+4,4)}, {v(F8b+4,4)}, {v(KV,16)}")
        def kvpub(e):
            e(f"s_mul_i32 {sB}, {sT}, 960\ns_sub_u32 {sB}, 15360, {sB}\nv_lshrrev_b32 {v(vT3)}, 8, {v(vN16)}")
            e(f"v_mad_u32_u24 {v(vT2)}, {v(vT3)}, {sB}, {v(vKA)}\nv_mad_u32_u24 {v(vT3)}, {v(vT3)}, {sB}, {v(vKA+1)}")
            e(f"s_mul_i32 {sB}, {sHK}, 17\ns_add_u32 {sB}, {sB}, {sT}\ns_lshl_b32 {sB}, {sB}, 10\ns_add_u32 {sB}, {sB}, {WS_KVP}")
            for c in range(2):
                for i in range(4): e(f"v_cvt_pk_bf16_f32 {v(F8a+4*c+i)}, {v(KV+8*c+2*i)}, {v(KV+8*c+2*i+1)}")
                e(f"buffer_store_dwordx4 {v(F8a+4*c,4)}, {v(vT2+c)}, {sWS}, {sB} offen sc1", tok="kvp")
        def qepi(e, acc, k, dst):
            for i in range(4): e(f"v_cvt_pk_bf16_f32 {v(F4+i)}, {v(acc+2*i)}, {v(acc+2*i+1)}")
            for i in range(4): e(f"v_cvt_pk_bf16_f32 {v(F8b+i)}, {v(acc+8+2*i)}, {v(acc+9+2*i)}")
            e(f"{MF} {v(acc,16)}, {v(PHI[1],4)}, {v(F8b,4)}, 0\n{MF} {v(TA,16)}, {v(PHI[0],4)}, {v(F4,4)}, 0")
            sm_body(e, acc, k, dst + 8, pk=o["pk"] and dst != PF); e.mark(("sib", dst))
            if not ("e" in abl and dst != PF): sm_body(e, TA, k, dst)
        def flag(st, addr, tok, lat=None):
            st(addr)
            st.waittok(tok, lat=lat or o["stlat"])
            st(f"s_mov_b64 exec, 1\nbuffer_store_dwordx2 {v(vTAG,2)}, {v(vZ)}, {sWS}, {sD} offen sc1\ns_mov_b64 exec, -1", glue=True)
        a_fl1 = f"s_lshl4_add_u32 {sD}, {sHK}, {sT}\ns_lshl_b32 {sD}, {sD}, 3\ns_add_u32 {sD}, {sD}, {WS_FL1}"
        def a_fl2(kind): return (f"s_mov_b32 {sD}, {sHD}\n" if kind == 2 else f"s_lshl2_add_u32 {sD}, {sJ}, {sWV}\n") + f"s_lshl_b32 {sC}, {sT}, 10\ns_lshl3_add_u32 {sD}, {sD}, {sC}\ns_add_u32 {sD}, {sD}, {WS_FL2+256*kind}"
        def fl_txt(sreg, off): return f"buffer_load_dwordx2 {v(vFL,2)}, {v(vFA)}, {sWS}, {sreg} offen offset:{off} sc1"
        skipf = lambda tok: qS and tok[1] in str(o.get("skipf", ""))
        def fl_bg(sreg, off, tok, after):
            if not skipf(tok): B(fl_txt(sreg, off), tok, after, sp=16)
        def fl_check(st, sreg, off, tok):
            if skipf(tok): st.mark(tok); return
            st.waittok(tok)
            spin(st, f"v_cmp_ne_u64 vcc, {v(vFL,2)}, {v(vTAG,2)}", fl_txt(sreg, off), tok)

        SLOT = {"a0": (sW8K, R[0]), "a1": (sW8K, R[0] + 4096), "b0": (sW8K, R[1]), "b1": (sW8K, R[1] + 4096),
                "c0": (sW8K, R[4]), "c1": (sW8K, R[4] + 4096), "d0": (sW16K, R[2])}
        LORD = list(range(8)) + [11, 12, 13, 14, 8, 9, 10]
        WSLOT = dict(zip(LORD, ["b0", "b1", "c0", "c1", "a0", "a1"] * 2 + ["b0", "b1", "d0"]))
        nE = 8
        def blk(b):
            if b < 4: return sBA, b
            if b < 8: return sBB, b - 4
            if b < 11: return sBS[b - 8], 0
            return None, b - 11
        sRW = sXK[0]
        def dma_w(b, after):
            sb, off = SLOT[WSLOT[b]]; r, i = blk(b)
            pre = f"s_add_u32 m0, {sb}, {off}\n"
            if o["wrot"] and b < 8:
                pre += f"s_lshl_b32 {sRW}, {sTT}, 11\n" if b == 0 else f"s_add_u32 {sRW}, {sRW}, 0x800\n"
                pre += f"s_and_b32 {sRW}, {sRW}, 0x1800\ns_add_u32 {sN}, {r}, {sRW}\ns_lshl4_add_u32 {sN}, {sN}, {sCB}"
            elif i: pre += f"s_add_u32 {sN}, {sN}, 0x8000"
            elif r: pre += f"s_lshl4_add_u32 {sN}, {r}, {sCB}"
            else: pre += f"s_lshl3_add_u32 {sN}, {sW16K}, {sCB}"
            run4(pre, vWD, sW2 if r else sWo, ("w", b), after, o["spw0"] if b < 4 else o["spw1"] if b < 6 else None, sN)
            if "f" in abl and LORD.index(b) >= 10: del tl.bg[-3:]
        def wfrags(st, dst, base, off, tok):
            for cb in range(4):
                for e in range(2): st(f"ds_read_b64_tr_b16 {dst(4*cb+2*e)}, {v(base+cb)} offset:{off+e*512}", tok=tok)
        def wbump(st, base, d):
            for i in range(4): st(f"v_add_u32 {v(base+i)}, {d}, {v(base+i)}")
        def wread(st, b):
            sl = WSLOT[b]; off = SLOT[sl][1] - {"c": R[4], "d": R[2]}.get(sl[0], 0)
            if b == 2: wbump(st, vWQ, R[4])
            if b == 4: wbump(st, vWQ, -R[4])
            if b == 10: st(f"s_add_u32 {sE1}, {sW8K}, {R[2]}"); wbump(st, vWQ, sE1)
            st.waittok(("w", b), lat=o["wlat"])
            wfrags(st, lambda k: ag(128 + 16 * (b % 8) + k, 2), vWQ, off, ("wr", b))

        D = NX - 1
        M = []
        RG = {1: R[1], 2: 0, 3: R[1], 4: 0, 5: 0}
        def bump(st, d):
            for i in range(4): st(f"v_add_u32 {v(vXR+i)}, {d}, {v(vXR+i)}")
        def opening(g, un):
            if un == 3:
                if o["ssplit"] >= 2: g.waittok(("x", 3))
                elif o["ssplit"]: g.waittok(("x", 3), ("s", 0))
                else: g.waittok(("x", 3), ("s", 0), ("s", 1))
                g("s_barrier"); g.mark("sl")
            elif un < 3: g.waittok(("x", un), lat=o["x1l"]); g("s_barrier"); g.mark("xl%d" % un)
            if un == 5: g.need("e1s"); bump(g, sE1)
        NP = o["NP"]
        AU = [ACC[0], ACC[1]] * 3 if kP else [ACC[0], ACC[1], PF + 16, ACC[0], ACC[1], ACC[0]]
        NEED = {2: "e0", 3: "e1", 4: "e2", 5: "e3"} if kP else {3: "f0", 4: "f1", 5: "f3"}
        a2, a3 = (o["a2" if kP else "b2"] / 10, o["a3" if kP else "b3"] / 10)
        SPAN = {2: (o["a1"] / 10, a2), 3: (a2, a3), 4: (a3, 4), 5: (4, 5)}
        for un in range(2, 6):
            acc = AU[un]
            cm = f"{MF} {v(acc,16)}, {v(CA[un>3],4)}, {v(ST+4*un if un <= 3 else ST if un == 4 else CBS,4)}, "
            g = Stream()
            if un == 2:
                opening(g, 2)
                for ks in range(D): xread(g, 2, RG[2], ks)
                M.append(g); g = Stream()
            if un in NEED: g.need(NEED[un])
            self.stamp(g, "u%d" % un)
            clast = un == 4 or (un == 2 and o["c1l"])
            if not clast:
                g.need("c%d" % un); g(cm + "0"); M.append(g); g = Stream()
            last = o["kvpace" if kP else "fpace"] if un == 4 else 31
            for ks in range(32):
                for k in range(NP):
                    if ks == o["pace"] + (k + 1) * (last - o["pace"]) // NP:
                        n = int(round((SPAN[un][0] + (SPAN[un][1] - SPAN[un][0]) * (k + 1) / NP) * NP)) - 1
                        if n >= 0: g.need(("ep", n // NP, n % NP))
                if ks % 4 == 0:
                    if un == 4: g.need("sr%d" % (ks + 3)); g.waittok(("sr", ks + 3))
                    else: g.waittok(("xf", un, ks + 3))
                if ks == 28 and un == 5: g("s_barrier"); g.mark("r5")
                if ks + D == 32 and un < 5: opening(g, un + 1)
                g(f"{MF} {v(acc,16)}, {ag(4*ks,4)}, {ag(128+4*ks,4) if un == 4 else v(XF+4*(ks%NX),4)}, {v(acc,16) if (ks or not clast) else 0}")
                if ks + D < 32:
                    if un != 4: xread(g, un, RG[un], ks + D)
                elif un in (2, 4): xread(g, un + 1, RG[un + 1], ks + D - 32)
                if un >= 3: g.mark(("pd", un, ks))
                if un == 5 and ks == o["kvl"]: g.mark("kvl")
                if ks == 31 and not clast: g.mark("m%d" % un)
                M.append(g); g = Stream()
            if clast:
                g.need("c%d" % un); g(cm + v(acc, 16)); g.mark("cb%d" % un); g.mark("m%d" % un); M.append(g)
        tl.marks.add("m0"); tl.marks.add("m1")
        E = Stream()
        def paced(e, un):
            tot = sum(i.cost for i in e); c = 0; k = 0
            for i in e:
                E.append(i); c += i.cost
                while k < NP and c >= tot * (k + 1) / NP - 1e-9 and not i.glue: E.mark(("ep", un, k)); k += 1
            assert k == NP
        def selectk(st, i):
            k = KCS; j = i + 1 if i else 0
            st(f"v_cndmask_b32 {v(k)}, {v(KC[i])}, {v(KC[j])}, {sPAR}")
            if qS: st(f"v_mul_f32 {v(k+1)}, {f2u(LOG2E/K0)}, {v(k)}")
            else:
                st(f"v_cndmask_b32 {v(k+2)}, {v(KC[i]+2)}, {v(KC[j]+2)}, {sPAR}\nv_mul_f32 {v(k+1)}, {v(k)}, {v(k)}\nv_mul_f32 {v(k)}, {f2u(K0)}, {v(k)}")
                st(f"v_mul_f32 {v(k+1)}, {v(k+1)}, {v(k)}\nv_mul_f32 {v(k+1)}, {f2u(0.044715)}, {v(k+1)}")
        for un in range(4):
            e = Stream()
            if kP: kepi(e, un)
            else: e.need("m%d" % un); gelu(e, AU[un], KC[un], sAB[un], sBLKP, "actP")
            if kP and un == 3: kvpub(e)
            paced(e, un); E.mark("f%d" % un)
        E.mark("kvp")
        swapab(E, 2)
        selectk(E, 0); E.need("m4")
        e = Stream()
        if qS: qepi(e, AU[4], KCS, PF)
        else: gelu(e, ACC[0], KCS, sAB[0], sBLKS, "actS")
        paced(e, 4)
        selectk(E, 2); E.mark("e4"); E.need("m5"); self.stamp(E, "u6")
        if qS: qepi(E, AU[5], KCS, PF + 16)
        elif "h" not in abl: gelu(E, ACC[1], KCS, sAB[2], sBLKS, "actS")
        self.stamp(E, "q"); E.mark("q5")
        X = Stream()
        X.waittok("stats")
        spin(X, tagtest(ST + 8), stats_ld(2, sA) + "\n" + stats_ld(3, sA), "stok")
        for i in range(2, 4): stat_consts(X, i); X.mark("c%d" % i)
        def select(st, i):
            for r in range(3): st(f"v_cndmask_b32 {v(CBS+r)}, {v(ST+4*i+r)}, {v(ST+4*i+4+r)}, {sPAR}")
        if o["xlate"]: X.need("kvp" if kP else "m3")
        select(X, 2); X(f"v_mov_b32 {v(CBS+3)}, 0")
        X.mark("e1s")
        X(f"s_and_b32 {sA}, s98, 0x100\ns_add_u32 {sA}, {sA}, {WS_ACT}\nv_and_b32 {v(vWR+1)}, 0xf0, {v(vL16)}\nv_and_b32 {v(vT0)}, 0x30, v0\nv_lshl_add_u32 {v(vT0)}, {v(vT0)}, 5, {sA}\nv_add_u32 {v(vWR+1)}, {v(vWR+1)}, {v(vT0)}")
        X.need("sl")
        X(f"s_lshr_b32 {sA}, {sWV}, 1\ns_lshl1_add_u32 {sA}, {sTT}, {sA}\ns_xor_b32 {sE0}, {sA}, 1\ns_mul_i32 {sA}, {sA}, {TBSTR}\ns_mul_i32 {sE0}, {sE0}, {TBSTR}")
        X(f"v_add_u32 {v(vAA)}, {sA}, {v(vWR+1)}\nv_add_u32 {v(vAA+2)}, {sE0}, {v(vWR+1)}\nv_xor_b32 {v(vAA+1)}, 0x100, {v(vAA)}\nv_xor_b32 {v(vAA+3)}, 0x100, {v(vAA+2)}")
        X2 = Stream()
        X2.need("kvp"); flag(X2, a_fl1 if kP else a_fl2(0), "kvp" if kP else "actP")
        X.need("cs"); corr_a(X, 1); X.mark("c4")
        X.mark("c5")
        S = Stream()
        C = Stream()
        S.need("xl2"); S.mark("k")
        S.need("sl")
        if o["ssplit"] == 2: S.waittok(("s", 0)); S("s_barrier")
        if o["ssplit"] == 3: S.waittok(("s", 1)); S("s_barrier")
        if kP and o["sg0"]: S.need(o["sg0"])
        for half in range(2):
            for ks in range(16 * half, 16 * half + 16):
                S.need(("pd", 3, ks))
                for e in range(1 if "i" in abl else 2): S(f"ds_read_b64_tr_b16 {ag(4*ks+2*e,2)}, {v(vSR)} offset:{(ks&15)*2048+e*512}", tok=("sr", ks))
                if ks % 4 == 3:
                    S.mark("sr%d" % ks); C.need("sr%d" % ks); C.waittok(("sr", ks))
                    if ks == 3: C.need("kvp" if o["prio" if kP else "priof"] else "m3")
                    for k2 in range(ks - 3, ks + 1 if ("a" not in abl or ks == 3) else 0): C(f"{MF16} {v(CS,4)}, {v(CSEL,4)}, {ag(4*k2,4)}, {v(CS,4) if k2 else 0}")
                if ks == 19 and kP and o["sg1"]: S.waittok(("sr", 15)); S("s_barrier"); S.mark("sa"); S.need(o["sg1"])
                if ks == 15: S(f"v_subrev_u32 {v(vSR)}, {R[4]}, {v(vSR)}")
                if ks == 15 and o["ssplit"] in (1, 2): S.waittok(("s", 1)); S.waittok(("sr", 15)); S("s_barrier"); S.mark("sa")
                if ks == 19 and o["ssplit"] in (0, 3) and not (kP and o["sg1"]): S.waittok(("sr", 15)); S("s_barrier"); S.mark("sa")
        S(f"v_add_u32 {v(vWQ)}, {sW8K}, {v(vWR)}")
        for i in range(1, 4): S(f"v_xor_b32 {v(vWQ+i)}, {32*i}, {v(vWQ)}")
        S.waittok(("sr", 31)); S("s_barrier"); S.mark("sb")
        C.mark("cs")
        if o["prio" if kP else "priof"] == 1: S.need("kvp")
        for b in range(nE):
            S.need(("pd", 4, 4 * b + 3)); wread(S, b)
            if b: S.waittok(("wr", b - 1)); S.mark("wr%d" % (b - 1))
        S.waittok(("wr", nE - 1)); S.mark("wr%d" % (nE - 1))
        def res():
            B(f"buffer_load_dwordx4 {v(XR,4)}, {v(vOUT)}, {sX}, {sPCOL} offen", sp=o["spx3"])
            B(f"s_add_u32 {sM}, {sPCOL}, 0x2000\nbuffer_load_dwordx4 {v(XR+4,4)}, {v(vOUT)}, {sX}, {sM} offen", "res", sp=o["spx3"])
        if not o["rord"]: res()
        def tlbw(pos):
            if o["tlbp"] != pos: return
            if o["tlb"] & 1: B(f"buffer_load_dword {v(vFL+1)}, {v(vZ)}, {sOut}, {sPCOL} offen sc1", None, "stok", sp=16); tl.bg[-1].ins[-1].wr = []
            if o["tlb"] & 2: B(f"s_mul_i32 {sM}, {sTT}, {2*TBSTR}\ns_add_u32 {sM}, {sM}, {WS_ACT+TBSTR}\nbuffer_load_dword {v(vFL+1)}, {v(vZ)}, {sWS}, {sM} offen sc1", None, "stok", sp=16); tl.bg[-1].ins[-1].wr = []
            if o["tlb"] & 4 and kP: B(f"buffer_load_dword {v(vFL+1)}, {v(vZ)}, {sWS}, {sAB[0]} offen sc1", None, "stok", sp=16); tl.bg[-1].ins[-1].wr = []
        warm3(2); tlbw(0); dma_s(0, "k"); warm3(3); tlbw(1)
        if o["xord"]: dma_x(3, None, o["spx3"])
        dma_s(1, "k"); warm3(4); tlbw(2)
        if o["rord"]: res()
        def wafter(b):
            n = LORD.index(b)
            return "k" if n < 2 else "sa" if n < 4 else "sb" if n < 6 else "wr%d" % (n - 6) if n < 14 else "r5"
        nB = o.get("nB", 13) if qS else o.get("nBf", 11)
        for n in range(nB):
            if qS and n == o.get("nK", 10): fl_bg(sFK, 0, "fK", "kvl")
            dma_w(LORD[n], wafter(LORD[n]))
        if qS and nB <= o.get("nK", 10): fl_bg(sFK, 0, "fK", "kvl")
        late = LORD[nB:]

        AC2 = 0; AF = 64; NB = 4
        fO = o["fO"] if qS else o["fOf"]; fS = o["fSa"] if qS else o["fS"]
        def af(idx): return ag(AF + 4 * (idx % 16), 4)
        def acts():
            for bb in range(11):
                if bb == fS: fl_bg(sFL, 256, "fS", "fP")
                if bb == fO: fl_bg(sFL, 512, "fO", "fa8")
                r, i = blk(bb)
                pre = ""
                if bb == 10: pre = f"s_cmp_eq_u32 {r}, {43*2048}\ns_cselect_b32 {r}, {'0x20000000' if o['z5'] else sBS[0]}, {r}"
                elif o["wrot"] and bb < 8:
                    pre = f"s_add_u32 {sRW}, {sRW}, 0x800\ns_and_b32 {sRW}, {sRW}, 0x1800\ns_add_u32 {sM}, {r}, {sRW}"; r, i = sM, 0
                elif i == 2: pre = f"s_add_u32 {r}, {r}, 4096"
                for k in range(4):
                    idx = 4 * bb + k
                    aft = {0: "fP", 32: "fS", (4 * o.get("gate", 99) if qS else 99): "pub"}.get(idx, ("mt", idx - 16) if idx >= 16 else None)
                    B(f"{pre}\nbuffer_load_dwordx4 {af(idx)}, {v(vAA+k)}, {sWS}, {r} offen offset:{2048*(i&1)} sc1", ("act", idx), aft, sp=o["spa"]); pre = ""
            if fO == 11: fl_bg(sFL, 512, "fO", "fa8")
            for n in range(16):
                idx = 44 + n; p = 4 * ((n >> 1) & 3) + 2 * (n >> 3)
                pre = "" if n & 1 else f"s_mov_b32 {sM}, {(43+p)*2048}"
                B(f"{pre}\nbuffer_load_dwordx4 {af(idx)}, {v(vAA)}, {sWS}, {sM} offen offset:{2048*(n&1)} sc1", ("act", idx), "fO" if n == 0 else ("mt", idx - 16), sp=o["spa"])
        assert fS >= 5 and fO >= 8
        s = Stream()
        if not qS:
            fl_bg(sFL, 0, "fP", "r5")
            for b in late: dma_w(b, wafter(b))
            acts()
            X2.need("m5"); fl_check(X2, sFL, 0, "fP")
            E.mark("odone"); FS = [X, X2, S, C, E]
        else:
            Z = ST + 8; ZT = F8a; KA = XF
            X2.need("sb")
            X2(f"s_mul_i32 {sD}, {sHD}, {KVREC}\ns_add_u32 {sD}, {sD}, {WS_KVP}\nv_add_u32 {v(vJ)}, {sD}, {v(vL16)}")
            X2(f"v_and_b32 {v(vXD0)}, 0x30, {v(vL16)}\nv_lshrrev_b32 {v(vSR)}, 4, v0\nv_lshl_add_u32 {v(vXD0)}, {v(vSR)}, 2, {v(vXD0)}")
            X2.need("c5")
            fl_check(X2, sFK, 0, "fK")
            X2(f"v_and_b32 {v(vFA)}, 0x38, {v(vFA)}"); X2.mark("gat")
            gsp = o.get("gsp", 48)
            B(f"s_movk_i32 {sM}, 0x4000\nbuffer_load_dwordx4 {v(Z,4)}, {v(vJ)}, {sWS}, {sM} offen sc1", "z", "gat", sp=gsp)
            NG = 2 if "c" in abl else 16
            for p in range(NG):
                if p == o["nP"]: fl_bg(sFL, 0, "fP", None)
                gq = o["gq"]
                pre = "" if p % gq else f"s_lshl_b32 {sM}, {sROT}, 11\ns_and_b32 {sM}, {sM}, {0x4000-1024*gq}" if p == 0 else f"s_add_u32 {sM}, {sM}, {1024*gq}\ns_and_b32 {sM}, {sM}, 0x3fff"
                B(f"{pre}\nbuffer_load_dwordx4 {ag(4*p,4)}, {v(vJ)}, {sWS}, {sM} offen offset:{(p%gq)*1024} sc1", ("g", p), ("pd", 5, p), sp=gsp)
            nL = o.get("nL", 0)
            for b in late[:nL]: dma_w(b, wafter(b))
            if o["nP"] >= 16: fl_bg(sFL, 0, "fP", None)
            for b in late[nL:]: dma_w(b, wafter(b))
            acts()
            xo, xs, zw, zr = (CA[0] + i for i in range(4))
            X2(f"s_add_u32 {sD}, {sW16K}, {R[2]+4096}\nv_add_u32 {v(xo)}, {sD}, {v(vL16)}\nv_xor_b32 {v(xs)}, 0x4000, {v(xo)}")
            X2(f"v_add_u32 {v(zw)}, {sD}, {v(vXD0)}\nv_lshl_add_u32 {v(zr)}, {v(vSR)}, 4, {sD}"); X2.mark("xa")
            X2.waittok("z")
            for i in range(4): X2(f"v_lshlrev_b32 {v(ZT+i)}, 16, {v(Z+i)}\nv_and_b32 {v(ZT+4+i)}, 0xffff0000, {v(Z+i)}")
            for i in range(0, 8, 2): X2(f"v_permlane16_swap_b32 {v(ZT+i)}, {v(ZT+i+1)}")
            for i in range(0, 8, 2): X2(f"v_add_f32 {v(ZT+i)}, {v(ZT+i)}, {v(ZT+i+1)}")
            for i in (0, 4): X2(f"v_permlane32_swap_b32 {v(ZT+i)}, {v(ZT+i+2)}")
            for i in (0, 4): X2(f"v_add_f32 {v(ZT+i)}, {v(ZT+i)}, {v(ZT+i+2)}")
            for m in ("row_ror:4", "row_ror:8"):
                for i in (0, 4): X2(f"v_add_f32_dpp {v(ZT+i)}, {v(ZT+i)}, {v(ZT+i)} {m} {DPPM}")
            X2(f"v_cvt_pk_bf16_f32 {v(Z)}, {v(ZT)}, {v(ZT+4)}")
            X2.need("r5"); X2(f"ds_write_b32 {v(zw)}, {v(Z)} offset:4096\nds_read_b128 {v(Z,4)}, {v(zr)} offset:4096", tok="zr"); X2.mark("zr")
            X2.need("m5"); fl_check(X2, sFL, 0, "fP")
            XC = Stream(); XC.need("xa"); XC.need("r5"); XC.need(("sib", PF))
            for k in range(4):
                if k == 2: XC.need(("sib", PF + 16))
                XC(f"ds_write_b128 {v(xo)}, {v(PF+8+16*(k>>1)+4*(k&1),4)} offset:{1024*k}", tok="xw")
            XC.waittok("xw"); XC("s_barrier")
            for k in range(4): XC(f"ds_read_b128 {v(PF+8+16*(k>>1)+4*(k&1),4)}, {v(xs)} offset:{1024*k}", tok="xr")
            XC.waittok("xr"); XC("s_barrier"); XC.mark("xr")
            G = Stream(); G.need("m5")
            if o["pk"]: G.need(("sib", PF + 16))
            for p in range(NG):
                if p % 2 == 0: G.waittok(("g", p + 1))
                G(f"{MF} {v(KA,16)}, {v(SEL[0],4)}, {ag(4*p,4)}, {v(KA,16) if p else 0}")
            G.mark("gdone")
            KP = KA + 16
            G(f"s_add_u32 {sSO[0]}, {sHD}, 86\ns_lshl_b32 {sSO[0]}, {sSO[0]}, 10")
            for i in range(4): G(f"v_cvt_pk_bf16_f32 {v(KP+i)}, {v(KA+2*i)}, {v(KA+2*i+1)}")
            G.need("zr"); G.waittok("zr")
            for i in range(4): G(f"v_permlane16_swap_b32 {v(KP+i)}, {v(Z+i)}")
            self.stamp(G, "kvx")
            O = Stream()
            for n, A in ((0, AU[4]), (1, KA), (3, AU[5]), (2, TA)):
                if n == 0: G.need("e4")
                if n == 1: G.need("xr")
                if n == 2: G.need("q5")
                G(f"{MF} {v(A,16)}, {v(KP,4)}, {v(PF+8*n,4)}, 0\n{MF} {v(A,16)}, {v(Z,4)}, {v(PF+8*n+4,4)}, {v(A,16)}"); G.mark(("om", n))
                O.need(("om", n))
                O(f"v_add_f32 {v(A+8)}, {f2u(1e-6)}, {v(A+8)}\nv_rcp_f32 {v(A+8)}, {v(A+8)}")
                O(f"s_add_u32 {sSO[1]}, {sAB[n]}, {sSO[0]}")
                for i in range(8): O(f"v_mul_f32 {v(A+i)}, {v(A+i)}, {v(A+8)}")
                for i in range(4): O(f"v_cvt_pk_bf16_f32 {v(A+12+i)}, {v(A+2*i)}, {v(A+2*i+1)}")
                O(f"buffer_store_dwordx4 {v(A+12,4)}, {v(vL16)}, {sWS}, {sSO[1]} offen sc1", tok="actO")
                if o.get("nost") and n != 2: O.pop()
            self.stamp(O, "o"); O.mark("odone")
            FS = [X, X2, S, C, XC, G, E, O]
        def grp2(pre, text, post=None):
            g = Stream(); g.small = o["nds2"]
            if pre: pre(g)
            g(text)
            if post: post(g)
            M.append(g)
        def wo(n): return (lambda k, c=2: v(96 + 16 * n + k, c)) if n < 10 else (lambda k, c=2: ag(128 + 16 * ((n - 7) % 8) + k, c))
        for bb in range(11):
            for kk, k in enumerate((1, 2, 3, 0) if bb == 10 else range(4)):
                idx = 4 * bb + k
                for cc in range(4):
                    cb = 3 - cc if kk & 1 else cc
                    def pre(g):
                        if kk == 0:
                            if bb == 0:
                                g.need("wr7")
                                if qS: g.need("odone" if o["p2hold"] else "gdone")
                            if bb == fS:
                                g.need("pub"); fl_check(g, sFL, 256, "fS")
                                g(f"v_lshrrev_b32 {v(vFA)}, 1, {v(vN16)}\ns_and_b32 {sFL}, {sFL}, 0xffffff3f"); g.mark("fa8")
                            if bb == fO: g.need("pub"); fl_check(g, sFL, 512, "fO")
                            if bb >= nE: g.need("wq%d" % bb); g.waittok(("wr", bb), lat=0)
                        if kk % 2 == 0:
                            g.waittok(("act", 4 * bb + (kk + 1 if bb < 10 else 2 + kk // 2)), ahead=o["ah2"] if bb >= o["p2e"] else 0, lat=0 if bb >= o["p2e"] else None)
                    def post(g):
                        g.mark(("mt", idx))
                        if kk == 3: g.mark(("mm", bb)); self.stamp(g, "mm%d" % bb)
                    A = ag(AC2 + 16 * k + 4 * cb, 4)
                    grp2(pre if cc == 0 else None, f"{MF16} {A}, {ag(128+16*(bb%8)+4*cb,4)}, {af(idx)}, {A if bb else 0}", post if cc == 3 else None)
        if fO == 11:
            g = Stream(); g.need("pub")
            if o.get("qfirst"): g.need(("qa", 2))
            fl_check(g, sFL, 512, "fO"); M.append(g)
        for n in range(16):
            for cb in range(4):
                def pre(g):
                    g.need(("wo", n)); g.waittok(("wo", n), lat=0)
                    if n % 2 == 0 or n > 12: g.waittok(("act", 44 + (n if n >= 12 else n + 1)), ahead=o["ah2"], lat=0)
                def post(g):
                    if n == 15: g.mark("oend"); self.stamp(g, "mm14")
                A = ag(AC2 + 4 * cb, 4)
                grp2(pre if cb == 0 else None, f"{MF16} {A}, {wo(n)(4*cb,4)}, {af(44+n)}, {A}", post if cb == 3 else None)
        W = Stream(); W.need("m5")
        for b in range(nE, 11):
            W.need(("mm", b - 8)); wread(W, b); W.mark("wq%d" % b)
        W2s = Stream(); W2s.need("m5")
        W2s(f"v_add_u32 {v(vXR)}, {R[4]}, {v(vWR)}")
        for i in range(1, 4): W2s(f"v_xor_b32 {v(vXR+i)}, {32*i}, {v(vXR)}")
        W2s.waittok(("w", 14), lat=o["wlat"]); W2s.need("odone"); W2s("s_barrier")
        for n in range(16):
            if n == 8: wbump(W2s, vXR, -R[4])
            if n >= 10: W2s.need(("mm", n - 7))
            wfrags(W2s, wo(n), vXR, (n & 7) * 4096, ("wo", n)); W2s.mark(("wo", n))
        X = Stream(); X.need("odone"); X.need("fP")
        flag(X, a_fl2(2 if qS else 1), "actO" if qS else "actS", o["stlat2"])
        X.mark("pub"); Xf = X; X = Stream(); X.need("pub"); X.need("wq10")
        RW = vKA; RR = [vWD, vWD + 2, vT2, vJ]; Y = ACC[0]; Pp = ACC[1]
        assert Y == 48 and Pp == 64
        vJ2 = (vSR, vXD0)
        rr = lambda k, e: v(RR[k] + e) if k < 3 else v(vJ2[e])
        X(f"v_lshrrev_b32 {v(vT0)}, 4, v0\nv_and_b32 {v(vT1)}, 7, v0\nv_xor_b32 {v(vT0)}, {v(vT0)}, {v(vT1)}\nv_and_b32 {v(RW)}, 0xf0, {v(vL16)}")
        X(f"v_add_lshl_u32 {v(vT0)}, {v(RW)}, {v(vT0)}, 4\ns_add_u32 {sA}, {sW16K}, {R[2]}\nv_add_u32 {v(RW)}, {sA}, {v(vT0)}\nv_xor_b32 {v(RW+1)}, 64, {v(RW)}")
        X(f"v_lshrrev_b32 {v(vT0)}, 3, v0\nv_lshlrev_b32 {v(vT1)}, 1, {v(vT1)}\nv_xor_b32 {v(vT1)}, {v(vT1)}, {v(vT0)}\nv_lshlrev_b32 {v(vT1)}, 4, {v(vT1)}\nv_lshl_add_u32 {v(vT0)}, {v(vT0)}, 8, {v(vT1)}")
        X(f"v_add_u32 {v(vT0)}, {sA}, {v(vT0)}")
        for k in range(4):
            m = 16384 * ((k + 1) & 3) + 4096 * k
            X(f"v_xor_b32 {rr(k,0)}, {m}, {v(vT0)}\nv_xor_b32 {rr(k,1)}, {m+16}, {v(vT0)}")
        for it in range(2):
            for i in range(4):
                X(f"v_lshlrev_b32 {v(Y+8*it+2*i)}, 16, {v(XR+4*it+i)}\nv_and_b32 {v(Y+8*it+2*i+1)}, 0xffff0000, {v(XR+4*it+i)}")
        for i in range(4):
            X(f"v_lshlrev_b32 {v(vT0)}, 16, {v(B2+i)}\nv_and_b32 {v(vT1)}, 0xffff0000, {v(B2+i)}")
            for it in range(2):
                X(f"v_add_f32 {v(Y+8*it+2*i)}, {v(Y+8*it+2*i)}, {v(vT0)}\nv_add_f32 {v(Y+8*it+2*i+1)}, {v(Y+8*it+2*i+1)}, {v(vT1)}")
        X(f"s_add_u32 {sB}, {sPCOL}, 0x2000"); X.mark("fin")
        Q = Stream(); Z2 = Stream(); Q.need("fin")
        def qw(k, slot, tok):
            for cb in range(4): Q(f"ds_write_b128 {v(RW+(cb&1))}, {ag(AC2+16*k+4*cb,4)} offset:{slot*4096+(cb>>1)*128}", tok=tok)
        def qr(k):
            for it in range(2):
                for e in range(2): Q(f"ds_read_b128 {v(Pp+16*(k&1)+8*it+4*e,4)}, {rr(k,e)} offset:{it*2048}", tok=("qr", k, it))
            Q.mark(("qr", k))
        for k in range(1, 4): Q.need(("mt", 40 + k)); qw(k, k - 1, "qw")
        Q.waittok("qw", lat=80); Q("s_barrier"); self.stamp(Q, "red0")
        for k in range(3):
            if k == 2: Q.need(("qa", 0))
            qr(k)
            Z2.need(("qr", k)); Z2.waittok(("qr", k, 1))
            for i in range(16): Z2(f"v_add_f32 {v(Y+i)}, {v(Y+i)}, {v(Pp+16*(k&1)+i)}")
            Z2.mark(("qa", k))
        Q.need("oend"); Q.need(("qa", 1)); qw(0, 3, "qw2"); self.stamp(Q, "red"); qr(3)
        Z2.need(("qr", 3))
        for it in range(2):
            Z2.waittok(("qr", 3, it), lat=100)
            for i in range(0, 8, 2): Z2(f"v_pk_add_f32 {v(Y+8*it+i,2)}, {v(Y+8*it+i,2)}, {v(Pp+16+8*it+i,2)}")
            for i in range(4): Z2(f"v_cvt_pk_bf16_f32 {v(XR+4*it+i)}, {v(Y+8*it+2*i)}, {v(Y+8*it+2*i+1)}")
            Z2(f"buffer_store_dwordx4 {v(XR+4*it,4)}, {v(vOUT)}, {sOut}, {sB if it else sPCOL} offen{' sc1' if o['outsc1'] else ''}"); self.stamp(Z2, "out%d" % it)
        tl.sched(M, FS + [Xf, W, Q, Z2, W2s, X], nds=o.get("nds", 3))
        s = Stream()
        if kP:
            noe = self.lab("noe")
            s(f"s_or_b32 {sA}, s2, {sWV}\ns_cmp_lg_u32 {sA}, 0\ns_cbranch_scc1 {noe}")
            s(f"s_mov_b64 exec, 1\nbuffer_store_dword {v(vTAG)}, {v(vZ)}, {sWS}, 0 offen sc1\ns_mov_b64 exec, -1", cond=True)
            s(noe + ":")
        if o.get("probe"):
            lp, l2, l3 = self.lab("pad"), self.lab("ref"), self.lab("skip"); K = o.get("K", 4)
            s("s_waitcnt vmcnt(0)"); self.stamp(s, "end"); s("s_waitcnt lgkmcnt(0)")
            if o.get("st") == "start": s("s_mov_b32 s60, s100")
            s(f"s_or_b32 {sA}, s2, {sWV}\ns_cmp_lg_u32 {sA}, 0\ns_cbranch_scc1 {l2}")
            s(f"v_mov_b32 {v(vT0)}, s100\nv_mov_b32 {v(vT1)}, {v(vTAG)}\nbuffer_store_dwordx2 {v(vT0,2)}, {v(vZ)}, {sWS}, 0 offen offset:2048 sc1", cond=True)
            s(f"{l2}:\ns_sleep 64\nbuffer_load_dwordx2 {v(vT0,2)}, {v(vZ)}, {sWS}, 0 offen offset:2048 sc1\ns_waitcnt vmcnt(0)\nv_cmp_ne_u32 vcc, {v(vT1)}, {v(vTAG)}\ns_nop 4\ns_cbranch_vccnz {l2}")
            s(f"v_readfirstlane_b32 s66, {v(vT0)}\ns_nop 4\ns_sub_u32 s60, s60, s66")
            if o["probe"] == "min": s("s_sub_u32 s60, 1200, s60")
            else: s("s_add_u32 s60, s60, 300")
            if o.get("only", role) != role: s("s_mov_b32 s60, 0")
            s(f"s_mul_i32 s60, s60, {K}\ns_add_u32 s60, s60, 4000")
            s(f"{lp}:\ns_memrealtime s[64:65]\ns_waitcnt lgkmcnt(0)\ns_sub_u32 s64, s64, s66\ns_cmp_lt_u32 s64, s60\ns_cbranch_scc1 {lp}")
        elif o["stamps"]:
            s("s_waitcnt vmcnt(0)\ns_memrealtime s[64:65]\ns_waitcnt lgkmcnt(0)")
            s(f"s_lshl2_add_u32 {sA}, s2, {sWV}\ns_lshl_b32 {sA}, {sA}, 6\ns_add_u32 {sA}, {sA}, {WS_STAMP}")
            for i, r in enumerate(["s100"] + ["s%d" % k for k in STAMPR] + ["s64"]):
                s(f"v_mov_b32 {v(vT1)}, {r}\nbuffer_store_dword {v(vT1)}, {v(vZ)}, {sWS}, {sA} offen offset:{4*i}")
        tl.straight(s)
        assert tl.bi == len(tl.bg)
        tl.log.append("end t=%d forced=%d" % (tl.t, tl.forced))
        if o["log"]: sys.stderr.write("\n".join(role + " " + x for x in tl.log) + "\n")
        return tl.out

    def build(self):
        outs = {}
        for role in ("att", "ffn"):
            st = {}
            outs[role] = finalize(self.role(role), st)
            sys.stderr.write("%s: %s\n" % (role, st))
        ia, jf = outs["att"].index("L_split:"), outs["ffn"].index("L_split:")
        assert outs["att"][:ia] == outs["ffn"][:jf], "common start differs"
        text = outs["att"][:ia] + outs["att"][ia + 1:] + ["s_endpgm", ".p2align 6", "L_ffn:"] + outs["ffn"][jf + 1:] + ["L_end:", "s_endpgm"]
        if self.o.get("al"):
            text, n, c = align_pass([NAME + "_kernel:"] + text, self.o["al"], self.o.get("lam", 30) / 100); text = text[1:]
            sys.stderr.write("alignment: %d re-encoded, residual cost %.1f\n" % (n, c))
        body = "\n".join(t if t.endswith(":") else "    " + t for t in text) + "\n"
        hdr = ["Fused LayerNorm + hedgehog linear attention + GELU FFN + residual, one persistent launch (generated by my own script).",
               "@launch grid=(256,1,1) block=(256,1,1) lds=163840"]
        return module(hdr, [(NAME + "_kernel", body, 512, 256)])

if __name__ == "__main__":
    opt = {}
    for x in sys.argv[2:]:
        k, _, val = x.partition("=")
        opt[k] = (int(val) if val.lstrip("-").isdigit() else val) if val else True
    open(sys.argv[1], "w").write(Gen(**opt).build())
```

```python
import sys, struct, os
from asmlib import module
from backend import *

NAME = "parallel_sum__linear_kernel_hedgehog__dense_activation_gelu__prompt"
def f2u(x): return "0x%x" % struct.unpack("<I", struct.pack("<f", x))[0]
LOG2E = 1.4426950408889634
K0 = -2.0 * LOG2E * 0.7978845608028654

WS_G = 0; WS_FL1 = 0x1000; WS_FL2 = 0x3000; WS_STATS = 0x8000; WS_KVP = 0x40000; WS_ACT = 0x200000
KVREC = 17 * 1024; TBSTR = 118 * 1024; WS_STAMP = 0x1000000
TAGC = 0x9E3779B9
R = [0, 32768, 65536, 98304, 131072]
SCR = R[3] + 16384
FFN_BLK0 = [0, 6, 11, 16, 22, 27, 32, 38]
FFN_NBLK = [6, 5, 5, 6, 5, 5, 6, 5]
SBL = [[4, 5, 10], [15, 20, 21], [26, 31, 43], [36, 37, 42]]
def pack(l): return "0x%x" % sum(b << (8 * i) for i, b in enumerate(l))

sX, sW, sWS, sW2, sWo, sOut, sAux, sB2 = ("s[%d:%d]" % (i, i + 3) for i in (8, 12, 16, 20, 24, 28, 32, 36))
sM, sN = "s0", "s1"
sWV, sT, sJ, sU, sI = "s3", "s4", "s5", "s6", "s7"
sROT, sQ4, sTT, sCB, sFL, sSTB = "s64", "s65", "s66", "s67", "s68", "s69"
sA, sB, sC, sD = "s70", "s71", "s72", "s73"
sXB = ["s74", "s75", "s76", "s77"]
sAB = ["s78", "s79", "s80", "s81"]
sXK = ["s82", "s83"]; sSO = ["s84", "s85"]
sBA, sBB = "s86", "s87"; sBS = ["s88", "s89", "s90"]
sPCOL, sW8K, sW16K = "s91", "s92", "s93"
sBLKP, sBLKS = "s94", "s95"; sFK = "s95"; sHD = sHK = "s6"
sE0, sE1 = "s96", "s97"
sPAR = "s[98:99]"
STAMPR = [60, 40, 42, 44, 50, 52, 46, 54, 62, 56, 58, 48]

class VA:
    def __init__(self, start=1): self.n = start
    def __call__(self, k=1, al=1):
        self.n = (self.n + al - 1) // al * al
        r = self.n; self.n += k
        assert self.n <= 256, "out of VGPRs"
        return r
def v(i, k=1): return "v%d" % i if k == 1 else "v[%d:%d]" % (i, i + k - 1)
def ag(i, k=1): return "a%d" % i if k == 1 else "a[%d:%d]" % (i, i + k - 1)
MF = "v_mfma_f32_32x32x16_bf16"; MF16 = "v_mfma_f32_16x16x32_bf16"
DPPM = "row_mask:0xf bank_mask:0xf"

def srd(s, d, p, n):
    d0 = int(d[2:].split(":")[0])
    s(f"s_mov_b32 s{d0}, s{p}\ns_mov_b32 s{d0+1}, s{p+1}\ns_mov_b32 s{d0+2}, {n}\ns_mov_b32 s{d0+3}, 0x20000")

class Gen:
    def __init__(self, **opt):
        self.o = dict(stamps=False, warm=0, outsc1=True, sp=54, sp1=48, ahead=10, log=False, umode=0, vlat=600, stlat=650,
                      ah0=0, s0p=7, pgo=0, c1l=0, blag=0, bhalf=20, t1=0, t1s=0, spaA=72, ah2A=2, p2eA=3, spo=72, aho=2, spoA=48, ahoA=8, xb2=0, opk=0, ofirst=0, gpk=0, warmb=4, phl=1, a1=5, a2=15, a3=26, b2=17, b3=27, srot=1, xrot=1, wrot=0, sg=200, sv=1, x1l=650, NP=20, bh=100, vpen=6, llat=130, tlb=0, tlbp=0, z5=1, cbx=2, wA=0, wq=0, hsw=2, gq=4, pk=1, kz=1, xlate=0, sg0=0, sg1=0, al=1, lam=10, spx=56, spx3=64, sps0=64, sps1=56, spw0=80, spw1=64, ssplit=3, xord=0, rord=1, fpace=18, priof=0, nds2=1, p1v=1, s1=7, x2a="b5", xa=1, npc=2, nP=16, p2hold=1, spa=72, p2e=3, stlat2=600, qx=4, nq=2, plat0=0, plat=0, sp0=24, warmc=1, stag=1, warmf=0, wsp=180, wpos=0, wpos2=6, cbmix=0, warmm=2, sw=0, px=1, slpK=1, ah0b=6, lag=2, s0=4, slp=3, slat=750, wlat=700, wlat0=1100, nE=4, pace=3, kvpace=8, kvhold=99, hold=0, kvl=6, prio=1, fSa=5, fS=6, fO=8, fOf=10, ah2=4, fo=2)
        self.o.update(opt); self.uid = 0
        Haz.SW = self.o["hsw"]
        global TBSTR, WS_ACT
        TBSTR = 118 * 1024 + self.o.get("tbpad", 0); WS_ACT = 0x200000 + self.o.get("actoff", 0)
    def lab(self, p):
        self.uid += 1; return "L_%s_%d" % (p, self.uid)
    def stamp(self, s, name):
        if self.o.get("dly") == name and self.o.get("dr", self.cur) == self.cur:
            s("s_sleep 8"); s[-1].cost = 0
        if not self.o["stamps"]: return
        names = str(self.o.get("st", "x0,b0,p1,u1,u2,u3,u4,u5,q,o,mm14,red")).split(",")
        if name in names:
            r = STAMPR[names.index(name)]; s(f"s_memrealtime s[{r}:{r+1}]")
        if "c:" + name in names:
            r = STAMPR[names.index("c:" + name)]; s(f"s_memtime s[{r}:{r+1}]")

    def role(self, role):
        kP = role == "att"; qS = not kP; o = self.o; self.cur = role
        tl = TL(o["sp"], o["vlat"]); B = tl.B
        def watch(name):
            x = Stream(); self.stamp(x, name); return x[0].text if x else None
        tl.watch = watch; tl.m16 = True; tl.pen = o.get("pen", 0); tl.hold = o["bh"]; tl.vpen = o["vpen"]; tl.llat = o["llat"]
        s = Stream(); a = VA(1)
        stride, strS = (3072, 2752) if kP else (2752, 3072)
        vL16 = a(); vXD0 = a(); vXD = a(4); vOUT = a(); vTAG = a(2, 2); vN16 = a(); vXR = a(4); vSR = a()
        vT0 = a(1, 2); vT1 = a(); vT2 = a(); vT3 = a()
        vSD = a(4); vWD = a(4); vPR = vWD + 1; vWR = a(2); vFL = a(2, 2); vFA = a(); vZ = a()
        vAA = vXD; vWQ = vSD
        assert vXD == 3
        vKA = a(2)
        XR = a(8, 4); B2 = a(4, 4)
        ACC = [a(16, 4), a(16, 4)]; NX = 8; XF = a(4 * NX, 4)
        CA = [a(4, 4), a(4, 4)]; ST = a(16, 4); CBS = a(4, 4); CS = a(4, 4); CSEL = a(4, 4); vPD = CBS
        KC = [a(3) for _ in range(4)]; KCS = a(3); vB1 = a()
        F4 = a(4, 4); F8a = a(8, 4); TA = a(16, 4); G4 = F4
        if kP:
            ONES = a(4, 4); SEL = [a(4, 4), a(4, 4)]; F8b = a(8, 4); PHI = [a(4, 4)]; KV = a(16, 4); TB = a(16, 4); HO = F8b
        else:
            SEL = [a(4, 4)]; F8b = a(4, 4); PHI = [a(4, 4), a(4, 4)]; PF = a(32, 4); HO = F8a
        vJ = a(4)
        sys.stderr.write("%s VGPRs: %d\n" % (role, a.n))
        if kP:
            o = dict(o)
            for k in ("spa", "ah2", "p2e", "spo", "aho"): o[k] = o[k + "A"]
        sp1 = o["sp1"]; abl = str(o.get("abl", ""))
        tmp = ACC[0]
        def run4(pre, vb, srdn, tok, after, sp=None, so=sM):
            for q in range(4):
                B(f"{pre if q == 0 else ''}\nbuffer_load_dwordx4 {v(vb+q)}, {srdn}, {so} offen offset:{1024*q} lds", tok, after, sp)
        def dma_x(i, after, sp=None, ks=(0, 1)):
            for k in ks:
                pre = f"s_add_u32 m0, {sW8K}, {R[i]+k*4096}"
                if i and o["xrot"]:
                    pre = f"s_xor_b32 m0, {sXB[0]}, {R[i]+k*4096}"
                    if (i, k) == (2, 0):
                        pre = (f"s_bitcmp1_b32 {sI}, {o['xrot']-1}\ns_cselect_b32 {sM}, {sXK[1]}, {sXK[0]}\ns_cselect_b32 {sXK[1]}, {sXK[0]}, {sXK[1]}\ns_cselect_b32 {sXB[0]}, 0x1000, 0\n"
                               f"s_mov_b32 {sXK[0]}, {sM}\ns_or_b32 {sXB[0]}, {sXB[0]}, {sW8K}\n") + pre
                run4(pre + f"\ns_add_u32 {sM}, {sXB[i]}, {sXK[k]}", vXD, sX, ("x", i), after, sp)
        def dma_xp(r, after, sp):
            pre = "" if r == 0 else f"s_add_u32 {sXK[1]}, {sXK[1]}, 256\ns_and_b32 {sXK[1]}, {sXK[1]}, 0x380\n"
            run4(pre + f"s_add_u32 m0, {sXK[0]}, {8192*r}\ns_add_u32 {sM}, {sXB[1]}, {sXK[1]}", vXD, sX, ("xp", r), after, sp)
        PSL = [R[4], R[4] + 16384, R[2], R[2] + 16384, R[3], R[3] + 16384, R[4], R[4] + 16384]
        s("s_cmp_ge_u32 s2, 256\ns_cbranch_scc1 L_end")
        sk = int(os.environ.get("SKEW", "0")) if o["stamps"] else 0
        if sk:
            s(f"s_xor_b32 s4, s2, 7\ns_and_b32 s4, s4, 7\ns_mul_i32 s4, s4, {sk}\nL_sk:\ns_cmp_eq_u32 s4, 0\ns_cbranch_scc1 L_skd\ns_sleep 1\ns_sub_u32 s4, s4, 1\ns_branch L_sk\nL_skd:")
        s("s_load_dwordx16 s[40:55], s[0:1], 0\ns_load_dwordx8 s[56:63], s[0:1], 64")
        if o["stamps"]: s("s_memrealtime s[100:101]")
        s(f"s_lshr_b32 {sI}, s2, 3")
        if o["warmc"] == 1:
            s(f"s_getpc_b64 s[72:73]\nL_pc:\ns_sub_u32 s72, s72, L_pc-{NAME}_kernel\ns_subb_u32 s73, s73, 0", glue=True)
            s(f"s_lshl_b32 {sA}, {sI}, 11\nv_lshrrev_b32 v1, 4, v0\nv_lshl_add_u32 v1, v1, 7, {sA}\nv_min_u32 v1, L_end-{NAME}_kernel, v1")
            s(f"global_load_dword {v(XR+4)}, v1, s[72:73]")
        s(f"v_lshrrev_b32 v1, 6, v0\nv_and_b32 v0, 63, v0\nv_readfirstlane_b32 {sWV}, v1\nv_lshlrev_b32 v1, 4, v0")
        s(f"s_and_b32 {sA}, s2, 7\ns_lshr_b32 {sROT}, {sI}, 2\ns_and_b32 {sU}, {sI}, 3")
        s(f"s_and_b32 {sT}, {sA}, 1\ns_lshl3_add_u32 {sT}, {sT}, {sROT}\ns_lshr_b32 {sQ4}, {sA}, 1")
        if o.get("p2x", 1):
            s(f"s_andn2_b32 {sC}, 1, {sA}\ns_lshl2_add_u32 {sA}, {sC}, {sQ4}")
        s(f"s_lshr_b32 {sC}, {sI}, 3\ns_lshl2_add_u32 {sTT}, {sA}, {sC}")
        s(f"s_lshl2_add_u32 {sA}, {sT}, {sQ4}\ns_lshl_b32 {sXB[0]}, {sA}, 15")
        s(f"s_lshl2_add_u32 {sD}, {sU}, {sWV}\ns_lshl_b32 {sA}, {sD}, 11\ns_add_u32 {sSO[0]}, {sXB[0]}, {sA}")
        s(f"s_lshl_b32 {sSTB}, {sT}, 11\ns_add_u32 {sSTB}, {sSTB}, {WS_STATS}\ns_lshl4_add_u32 {sD}, {sQ4}, {sD}\ns_lshl_b32 {sD}, {sD}, 5\ns_add_u32 {sFL}, {sD}, {sSTB}")
        s(f"v_and_b32 {v(vOUT)}, 0x70, v1\nv_and_b32 v3, 0x30, v0\nv_xor_b32 v2, {v(vOUT)}, v3\nv_lshrrev_b32 v3, 3, v0\nv_lshl_add_u32 v3, v3, 10, v2")
        for q in range(3, 0, -1):
            s(f"v_xor_b32 {v(vXD+q)}, {64*(q&1)}, v3\nv_add_u32 {v(vXD+q)}, {7168*q}, {v(vXD+q)}")
        s(f"s_lshr_b32 {sB}, {sWV}, 1\ns_add_u32 {sA}, {sQ4}, {0 if 'n' in abl else sB}\ns_and_b32 {sA}, {sA}, 3\ns_lshl2_add_u32 {sA}, {sT}, {sA}\ns_lshl_b32 {sXB[1]}, {sA}, 15")
        s(f"s_and_b32 {sA}, {sWV}, 1\ns_lshl3_add_u32 {sB}, {sB}, {sA}\ns_lshl_b32 {sXK[0]}, {sB}, 12\ns_add_u32 {sA}, {sA}, {sROT}\ns_lshl_b32 {sA}, {sA}, 7\ns_and_b32 {sXK[1]}, {sA}, 0x380")
        s(f"s_mov_b32 s10, {2048*1024}\ns_mov_b32 s11, 0x20000\ns_mov_b32 s18, 0x10000000\ns_mov_b32 s19, 0x20000")
        def ppat():
            s(f"s_and_b32 {sJ}, {sU}, 1\ns_lshl1_add_u32 {sJ}, {sQ4}, {sJ}\ns_lshl_b32 {sE1}, {sWV}, 12")
            s(f"s_mov_b32 s70, {pack(FFN_BLK0[:4])}\ns_mov_b32 s71, {pack(FFN_BLK0[4:])}\ns_lshl_b32 {sC}, {sJ}, 3\ns_lshr_b64 s[70:71], s[70:71], {sC}\ns_and_b32 {sBLKP}, s70, 0xff")
            s(f"s_lshl_b32 {sPCOL}, {sBLKP}, 6\ns_lshl_b32 {sD}, {sJ}, 7\ns_add_u32 {sD}, {sD}, 1024\ns_movk_i32 {sA}, 2752\ns_movk_i32 {sC}, 128\ns_mov_b32 s15, 0x20000")
            s(f"s_cmp_lt_u32 {sU}, 2\ns_cselect_b32 {sPCOL}, {sD}, {sPCOL}\ns_cselect_b32 {sA}, 3072, {sA}\ns_cselect_b32 {sB}, 1, 2\ns_cselect_b32 {sC}, 1024, {sC}\ns_cselect_b32 {sE0}, 7, 5", glue=True)
            s(f"s_lshl_b32 s14, {sA}, 9\ns_mul_i32 {sD}, {sWV}, {sA}\ns_mov_b32 {sSO[1]}, {sPCOL}\ns_lshl4_add_u32 {sPCOL}, {sD}, {sPCOL}\ns_lshl_b32 {sBLKS}, {sA}, 6")
            s(f"v_lshrrev_b32 {v(vT0)}, 4, v0\nv_and_b32 {v(vT1)}, 15, v0\nv_lshlrev_b32 {v(vT3)}, {sB}, {v(vT0)}\nv_xor_b32 {v(vT1)}, {v(vT1)}, {v(vT3)}")
            s(f"v_mul_u32_u24 {v(vT0)}, {sA}, {v(vT0)}\nv_lshrrev_b32 {v(vT3)}, 3, {v(vT1)}\nv_mad_u32_u24 {v(vT0)}, {v(vT3)}, {sC}, {v(vT0)}\nv_and_b32 {v(vT1)}, 7, {v(vT1)}")
            s(f"v_lshl_add_u32 {v(vPD)}, {v(vT1)}, 4, {v(vT0)}\ns_lshl_b32 {sA}, {sA}, 2\ns_sub_u32 {sA}, {sA}, 1024")
            for q in range(1, 4): s(f"v_add_u32 {v(vPD+q)}, {sA}, {v(vPD+q-1)}")
        if o["pgo"]: ppat()
        if o["warmc"] >= 2:
            s(f"s_lshl2_add_u32 {sA}, {sI}, {sWV}\ns_mul_i32 {sA}, {sA}, 384\ns_min_u32 {sA}, {sA}, L_end-{NAME}_kernel-384")
            s(f"s_getpc_b64 s[72:73]\nL_pc:\ns_sub_u32 s72, s72, L_pc-{NAME}_kernel\ns_subb_u32 s73, s73, 0\ns_add_u32 s72, s72, {sA}\ns_addc_u32 s73, s73, 0", glue=True)
        s("s_waitcnt lgkmcnt(0)"); self.stamp(s, "go")
        s("s_mov_b64 s[8:9], s[40:41]\ns_mov_b64 s[16:17], s[62:63]"); s.mark("go")
        if o["stag"]: s(f"s_load_dword {sBA}, s[62:63], 0")
        assert o["kz"] == 1 and not o["sw"] & 9 and o["warmc"] < 2 and o["stag"]
        def stouch(base, off):
            s(f"s_load_dword {sBB}, s[{base}:{base+1}], {off}"); s[-1].wr = [("s", "junk%d" % len(s))]
        if o["sw"] & 1:
            s(f"s_lshl2_add_u32 {sA}, {sI}, {sWV}\ns_lshl_b32 {sB}, {sA}, 7"); stouch(44, sB)
            s(f"s_add_u32 {sB}, {sB}, 64\ns_min_u32 {sC}, {sA}, 42\ns_lshl_b32 {sC}, {sC}, 6"); stouch(44, sB); stouch(52, sC)
            s(f"s_and_b32 {sC}, {sC}, 0x3c0"); stouch(56, sC)
        if o["sw"] & 2: stouch(62, sFL)
        if o["sw"] & 4:
            s(f"s_lshl2_add_u32 {sA}, s2, {sWV}\ns_min_u32 {sA}, {sA}, 383\ns_lshl_b32 {sA}, {sA}, 6\ns_add_u32 {sA}, {sA}, {WS_FL1}"); stouch(62, sA)
        if o["sw"] & 8:
            s(f"s_lshl2_add_u32 {sA}, s2, {sWV}\ns_bfe_u32 {sB}, {sA}, 0x50004\ns_and_b32 {sA}, {sA}, 15\ns_mul_i32 {sB}, {sB}, {KVREC}\ns_lshl_b32 {sA}, {sA}, 6\ns_add_u32 {sA}, {sA}, {sB}\ns_add_u32 {sA}, {sA}, {WS_KVP+16384}"); stouch(62, sA)
        if o["warmc"] >= 2:
            for k in range(0, 6, o["warmc"] - 1): s(f"s_load_dword {sBB}, s[72:73], {64*k}"); s[-1].wr = [("s", "junk%d" % k)]
        for r in range(2): B(f"buffer_load_dwordx4 {v(tmp+4*r,4)}, {v(vL16)}, {sX}, {sSO[0]} offen offset:{1024*r}", "rows", "go", sp=8)
        if not o["stag"]: B(f"buffer_load_dword {v(vTAG)}, {v(vXD0)}, {sWS}, 0 offen sc1", "tag", sp=8)
        if o["xa"]: dma_xp(0, None, o["sp0"])
        if not o["pgo"]: ppat()
        s(f"s_cmp_lt_u32 {sU}, 2\ns_cselect_b64 s[12:13], s[42:43], s[50:51]", glue=True)
        s.mark("pd")
        def dma_p(ci, after=None):
            mul = sBLKS if ci == 0 else 64 * stride
            run4(f"s_add_u32 {sM}, {sROT}, {ci}\ns_and_b32 {sM}, {sM}, 7\ns_mul_i32 {sM}, {sM}, {mul}\ns_add_u32 m0, {sE1}, {PSL[ci]}\ns_add_u32 {sM}, {sM}, {sPCOL}", vPD, sW, ("p", ci), after, sp1 if ci else 16)
        dma_p(0, "pd")
        if not o["xa"]: dma_xp(0, None, o["sp0"])
        s(f"v_and_b32 {v(vT0)}, 31, v0\nv_lshlrev_b32 {v(vN16)}, 4, {v(vT0)}\nv_lshlrev_b32 {v(vT1)}, 7, {v(vT0)}")
        s(f"v_bfe_u32 {v(vT0)}, v0, 1, 3\nv_lshrrev_b32 {v(vT2)}, 5, v0\nv_xor_b32 {v(vT0)}, {v(vT0)}, {v(vT2)}\nv_lshl_add_u32 {v(vXR)}, {v(vT0)}, 4, {v(vT1)}")
        for cq in range(1, 4): s(f"v_xor_b32 {v(vXR+cq)}, {32*cq}, {v(vXR)}")
        yR, yP, yF, yH, x0, x1 = (ACC[1] + i for i in range(6))
        s(f"v_bfe_u32 {v(yR)}, v0, 2, 2\nv_bfe_u32 {v(yP)}, v0, 4, 1\ns_add_u32 {sB}, {sB}, 4")
        s(f"v_and_b32 {v(yF)}, 16, {v(vL16)}\nv_and_b32 {v(yH)}, 2, v0\nv_lshl_add_u32 {v(yF)}, {v(yH)}, 2, {v(yF)}\nv_lshl_add_u32 {v(yH)}, {v(vT2)}, 3, {v(yR)}")
        s(f"v_xor_b32 {v(x0)}, {sWV}, {v(yR)}\nv_lshl_add_u32 {v(x0)}, {v(x0)}, {sB}, {v(yF)}\nv_lshl_add_u32 {v(x0)}, {v(yP)}, {sE0}, {v(x0)}")
        s(f"v_cmp_eq_u32 vcc, {v(yR)}, {v(yP)}\nv_mov_b32 {v(vT1)}, 0x3f803f80")
        s(f"v_lshl_add_u32 {v(x0)}, {v(yH)}, 8, {v(x0)}\nv_add_u32 {v(vPR)}, {R[2]}, {v(x0)}\nv_add_u32 {v(vPR+1)}, {R[4]}, {v(x0)}")
        for i in range(4): s(f"v_cndmask_b32 {v(CSEL+i)}, 0, {v(vT1)}, vcc")
        if o["cbmix"]: s(f"s_lshr_b32 {sCB}, {sI}, 3\ns_lshl1_add_u32 {sCB}, {sCB}, {sI}")
        s(f"s_xor_b32 {sCB}, {sI}, {o['cbx']}\ns_and_b32 {sCB}, {sCB}, 7\ns_lshl_b32 {sCB}, {sCB}, 7\ns_lshl_b32 {sW16K}, {sWV}, 14\ns_lshl_b32 {sW8K}, {sWV}, 13\nv_mov_b32 {v(vZ)}, 0")
        s(f"s_and_b32 {sA}, {sWV}, 1\ns_cmp_eq_u32 {sA}, 1\ns_cselect_b64 {sPAR}, -1, 0")
        for i in range(4):
            s(f"s_add_u32 {sA}, {sQ4}, {i}\ns_and_b32 {sA}, {sA}, 3\ns_lshl2_add_u32 {sA}, {sT}, {sA}")
            if i > 1: s(f"s_lshl_b32 {sXB[i]}, {sA}, 15")
            s(f"s_mul_i32 {sAB[i]}, {sA}, {TBSTR}\ns_add_u32 {sAB[i]}, {sAB[i]}, {WS_ACT}")
        srd(s, sB2, 56, 1024)
        srd(s, sW2, 54, 1376 * 1024); srd(s, sWo, 46, 512 * 1024); srd(s, sOut, 58, 2048 * 1024)
        tl.straight(s); s = Stream()
        while tl.bi < len(tl.bg): tl.emit_bg(True)
        s(f"s_cmp_ge_u32 {sU}, 2\ns_cbranch_scc1 L_ffn\nL_split:", glue=True)
        if kP:
            s(f"s_lshl2_add_u32 {sHK}, {sJ}, {sWV}\ns_lshl_b32 {sD}, {sBLKP}, 6\ns_add_u32 {sD}, {sD}, 256")
            s(f"s_lshr_b32 {sB}, {sWV}, 1\ns_add_u32 {sBLKS}, {sBLKP}, {sB}\ns_add_u32 {sBLKS}, {sBLKS}, 4")
        else:
            s(f"s_add_u32 {sA}, {sJ}, {o['qx']}\ns_and_b32 {sA}, {sA}, 7\ns_lshl_b32 {sD}, {sA}, 7\ns_lshl2_add_u32 {sHD}, {sA}, {sWV}\ns_add_u32 {sBLKP}, {sBLKP}, {sWV}")
        srd(s, sAux, 44, 32 * 512)
        t0, t2 = G4, G4 + 1
        s(f"v_and_b32 {v(t0)}, 0x13, v0\nv_and_b32 {v(t2)}, 4, v0\nv_lshl_add_u32 {v(t0)}, {v(t2)}, 1, {v(t0)}\nv_bfe_u32 {v(t2)}, v0, 3, 1\nv_lshl_add_u32 {v(t0)}, {v(t2)}, 2, {v(t0)}")
        s(f"v_and_b32 {v(t2)}, 32, v0\nv_lshl_add_u32 {v(t0)}, {v(t2)}, 8, {v(t0)}\nv_lshlrev_b32 {v(t0)}, 1, {v(t0)}")
        s.mark("aux")
        sWS2 = sB2
        B(f"buffer_load_dwordx4 {v(B2,4)}, {v(vOUT)}, {sB2}, {sCB} offen", None, "aux", sp=16)
        B(f"s_mov_b64 s[36:37], s[52:53]\ns_movk_i32 s38, 2752\ns_lshl_b32 {sM}, {sBLKS if kP else sBLKP}, 6\nbuffer_load_ushort {v(vB1)}, {v(t0)}, {sB2}, {sM} offen", sp=16)
        B(f"s_mov_b64 s[36:37], s[{50 if kP else 42}:{51 if kP else 43}]\ns_mov_b32 s38, {512*strS}\n"
          f"s_lshr_b32 {sM}, {sHD}, 1\ns_add_u32 m0, {sE1}, {SCR}\ns_lshl_b32 {sM}, {sM}, 10\nbuffer_load_dwordx4 {v(vL16)}, {sAux}, {sM} offen lds", "b2", sp=16)
        w1 = vJ + 1
        def warm3(pos):
            if o["warmm" if (kP or o["wA"] != 2) else "warmb"] != pos or (o["wA"] == 1 and not kP): return
            wa, wd = (vFL, vFL + 1) if 2 <= pos <= 4 else (XR, XR + 1); m = 2 if o["wA"] else 1
            wid = f"s_add_u32 {sN}, s2, {0 if kP else 3}\ns_and_b32 {sM}, s2, 8\ns_and_b32 {sN}, {sN}, 7\ns_or_b32 {sN}, {sN}, {sM}\ns_lshl4_add_u32 {sN}, {sROT}, {sN}\ns_lshl2_add_u32 {sN}, {sN}, {sWV}" if o["wA"] else f"s_lshl2_add_u32 {sN}, s2, {sWV}"
            B(f"v_min_u32 {v(wa)}, {11*m-1}, v0\nv_lshlrev_b32 {v(wa)}, 7, {v(wa)}\n{wid}\ns_mul_i32 {sM}, {sN}, {11*128*m}\nbuffer_load_dword {v(wd)}, {v(wa)}, {sW2}, {sM} offen", None, "stok" if 2 <= pos <= 4 else None, sp=16)
            tl.bg[-1].ins[-1].wr = []
            B(f"v_min_u32 {v(wa)}, {(4*m-1)*128}, {v(wa)}\ns_lshl_b32 {sM}, {sN}, {8+m}\nbuffer_load_dword {v(wd)}, {v(wa)}, {sWo}, {sM} offen", sp=32)
        def warmq(pos):
            if o["wq"] != pos or not kP: return
            B(f"v_and_b32 {v(XR+2)}, 15, v0\nv_lshrrev_b32 {v(XR+3)}, 1, {v(XR+2)}\nv_mul_u32_u24 {v(XR+3)}, 3072, {v(XR+3)}\nv_and_b32 {v(XR+2)}, 1, {v(XR+2)}\nv_lshl_add_u32 {v(XR+2)}, {v(XR+2)}, 7, {v(XR+3)}\n"
              f"s_and_b32 {sM}, {sI}, 1\ns_lshl1_add_u32 {sM}, {sROT}, {sM}\ns_lshl2_add_u32 {sM}, {sM}, {sWV}\ns_mul_i32 {sM}, {sM}, {8*3072}\n"
              f"s_lshl_b32 {sN}, {sQ4}, 8\ns_add_u32 {sN}, {sN}, {128*o['qx']}\ns_and_b32 {sN}, {sN}, 0x3ff\ns_add_u32 {sM}, {sM}, {sN}\nbuffer_load_dword {v(XR+3)}, {v(XR+2)}, {sW}, {sM} offen", sp=16)
        def stats_ld(i, r):
            h = f"s_add_u32 {r}, {sQ4}, {i}" if i > 1 else f"s_and_b32 {r}, {sWV}, 1\ns_xor_b32 {r}, {r}, {i}\ns_add_u32 {r}, {r}, {sQ4}"
            return h + f"\ns_and_b32 {r}, {r}, 3\ns_lshl_b32 {r}, {r}, 9\ns_add_u32 {r}, {r}, {sSTB}\nbuffer_load_dwordx4 {v(ST+4*i,4)}, {v(vN16)}, {sWS}, {r} offen sc1"
        for ci in range(1, 9):
            if ci == o["s0p"]:
                for i in range(2): B(stats_ld(i, sM), "stat0", "b%d" % o["s0"], sp=32)
            if ci == o["t1"]:
                B(f"v_min_u32 {v(XR)}, 15, v0\nv_lshlrev_b32 {v(XR)}, 7, {v(XR)}\ns_xor_b32 {sM}, {sXB[3]}, 0x10000\ns_and_b32 {sN}, {sI}, 3\ns_lshl2_add_u32 {sN}, {sN}, {sWV}\ns_lshl_b32 {sN}, {sN}, 11\ns_add_u32 {sM}, {sM}, {sN}\n"
                  f"buffer_load_dword {v(XR+1)}, {v(XR)}, {sX}, {sM} offen", None, "su" if o["t1s"] else None, sp=16)
            if ci < 8 and ci % 2 == 0: dma_xp(ci // 2, None, sp1)
            if ci < 8: dma_p(ci, {1: "su", 5: "phi", 6: "b2", 7: "b3"}.get(ci))
        if True:
            s(f"v_bfe_u32 {v(x0)}, v0, 1, 1\nv_lshl_add_u32 {v(x0)}, {v(yP)}, 1, {v(x0)}\nv_lshlrev_b32 {v(x0)}, 3, {v(x0)}\nv_lshl_add_u32 {v(x0)}, {v(yH)}, 5, {v(x0)}")
            s(f"s_and_b32 {sC}, s98, 0x200\ns_add_u32 {sA}, {sE1}, {sC}\ns_add_u32 {sA}, {sA}, {SCR}")
            s(f"v_add_u32 {v(TA)}, {sA}, {v(x0)}\nv_xor_b32 {v(TA+1)}, 0x200, {v(TA)}"); s.mark("pha")
        s(f"s_movk_i32 {sB}, {strS}")
        if o["srot"]:
            s(f"s_mul_i32 {sSO[0]}, {sROT}, {64*strS}\ns_lshl_b32 {sSO[1]}, {sWV}, 11\ns_mul_i32 {sA}, {sWV}, {16*strS}\ns_add_u32 {sD}, {sD}, {sA}")
        else:
            for k in range(2):
                s(f"s_add_u32 {sA}, {sWV}, {sROT}\ns_add_u32 {sA}, {sA}, {4*k}\ns_and_b32 {sA}, {sA}, 7\ns_mul_i32 {sA}, {sA}, {64*strS}\ns_add_u32 {sSO[k]}, {sA}, {sD}")
        def dma_s(half, after):
            if not o["srot"]:
                for k in range(2): run4(f"s_add_u32 m0, {sW8K}, {R[4-4*half]+k*4096}\ns_add_u32 {sM}, {sSO[half]}, {32*strS*k}", vSD, sWS2, ("s", half), after, o["sps%d" % half])
                return
            for g in range(4):
                pre = f"s_add_u32 m0, {sSO[1]}, {R[4-4*half]+g*8192}\n"
                pre += f"s_add_u32 {sSO[0]}, {sSO[0]}, {64*strS}\ns_cmp_eq_u32 {sSO[0]}, {512*strS}\ns_cselect_b32 {sSO[0]}, 0, {sSO[0]}" if (half or g) else "s_nop 0"
                for q in range(2):
                    sp = o["sg"] if (half, g, q) == (0, 1, 0) else o["sps%d" % half]
                    B(f"{pre if q == 0 else ''}\nbuffer_load_dwordx4 {v(vSD+q)}, {sWS2}, {sSO[0]} offen offset:{1024*q} lds", ("s", half), after, sp)
        s(f"v_lshrrev_b32 {v(vT0)}, 3, v0\nv_lshlrev_b32 {v(vT1)}, 2, v0\nv_and_b32 {v(vT1)}, 64, {v(vT1)}\nv_xor_b32 {v(vT1)}, {v(vT1)}, {v(vOUT)}")
        s(f"v_mad_u32_u24 {v(vSD)}, {v(vT0)}, {sB}, {v(vT1)}")
        if o["srot"]: s(f"v_add_u32 {v(vSD)}, {sD}, {v(vSD)}")
        if kP and o["z5"]:
            five = sum(1 << i for i, n in enumerate(FFN_NBLK) if n == 5)
            s(f"s_lshr_b32 {sC}, {five}, {sJ}\ns_and_b32 {sC}, {sC}, 1\ns_lshl_b32 {sC}, {sC}, 6\nv_and_b32 {v(vSD+1)}, {sC}, {v(vT1)}\nv_lshl_add_u32 {v(vSD)}, {v(vSD+1)}, 20, {v(vSD)}")
        for q in range(1, 2 if o["srot"] else 4): s(f"v_add_u32 {v(vSD+q)}, {q*(8*strS-1024)}, {v(vSD)}")
        s(f"v_lshl_add_u32 {v(vWD+3)}, {v(vT0)}, 10, {v(vT1)}")
        if kP:
            s(f"v_lshl_add_u32 {v(vT3)}, {v(vT2)}, 9, {v(vN16)}\nv_lshlrev_b32 {v(vT2)}, 5, {v(vT2)}\nv_add_u32 {v(vT2)}, 0x400, {v(vT2)}")
            s(f"v_cmp_gt_u32 vcc, 0x100, {v(vN16)}\nv_add_u32 {v(vT0)}, 16, {v(vT2)}\nv_add_u32 {v(vT1)}, 0x100, {v(vT3)}")
            s(f"v_cndmask_b32 {v(vKA)}, {v(vT2)}, {v(vT3)}, vcc\nv_cndmask_b32 {v(vKA+1)}, {v(vT0)}, {v(vT1)}, vcc")
        s(f"v_lshrrev_b32 {v(x0)}, 1, {v(yR)}\nv_lshl_add_u32 {v(x0)}, {v(x0)}, 6, {v(yF)}\nv_lshl_add_u32 {v(x0)}, {v(yP)}, 5, {v(x0)}\nv_lshl_add_u32 {v(x0)}, {v(yH)}, 7, {v(x0)}")
        s(f"v_lshrrev_b32 {v(vWR)}, 4, v0\nv_lshl_add_u32 {v(vWR)}, {v(vWR)}, 3, {v(yR)}\nv_and_b32 {v(x1)}, 2, {v(yR)}\nv_or_b32 {v(x1)}, {v(x1)}, {v(yP)}")
        s(f"v_lshl_add_u32 {v(vWR)}, {v(vWR)}, 2, {v(x1)}\nv_and_b32 {v(x1)}, 3, v0\nv_lshl_add_u32 {v(vWR)}, {v(vWR)}, 2, {v(x1)}\nv_lshlrev_b32 {v(vWR)}, 3, {v(vWR)}")
        if qS: s(f"s_lshl_b32 {sA}, {sWV}, 5")
        else: s(f"s_and_b32 {sA}, {sWV}, 2\ns_lshl_b32 {sA}, {sA}, 5")
        s(f"v_xor_b32 {v(x0)}, {sA}, {v(x0)}\nv_add_u32 {v(vSR)}, {R[4]}, {v(x0)}")
        if kP:
            if o["kz"] == 0:
                for i in range(4): s(f"v_mov_b32 {v(ONES+i)}, 0x3f803f80")
            elif o["kz"] == 1:
                for i in range(8): s(f"v_mov_b32 {v(F8b+i)}, 0x3f803f80")
            else:
                s(f"v_lshrrev_b32 {v(ONES)}, 4, v0\nv_cmp_eq_u32 vcc, 1, {v(ONES)}\nv_mov_b32 {v(ONES)}, 0\nv_mov_b32 {v(ONES+3)}, 0")
                s(f"v_cndmask_b32 {v(ONES+1)}, 0, 1.0, vcc\nv_lshrrev_b32 {v(ONES+2)}, 16, {v(ONES+1)}")
        s(f"v_and_b32 {v(vFA)}, {15 if qS else 7}, v0\nv_lshlrev_b32 {v(vFA)}, 3, {v(vFA)}")
        if True:
            s(f"v_bfe_u32 {v(vT0)}, v0, 2, 1\nv_lshrrev_b32 {v(vT2)}, 5, v0\nv_cmp_eq_u32 vcc, {v(vT0)}, {v(vT2)}")
            s(f"v_and_b32 {v(vT0)}, 16, {v(vL16)}\nv_mov_b32 {v(vT2)}, 0x3f80\nv_lshlrev_b32 {v(vT2)}, {v(vT0)}, {v(vT2)}\nv_cndmask_b32 {v(vT2)}, 0, {v(vT2)}, vcc")
            s(f"v_bfe_u32 {v(vT0)}, v0, 1, 1\nv_bfe_u32 {v(vT3)}, v0, 3, 2\nv_lshl_add_u32 {v(vT0)}, {v(vT3)}, 1, {v(vT0)}")
            for i in range(0, 4 * len(SEL), 2):
                s(f"v_cmp_eq_u32 vcc, {i}, {v(vT0)}\nv_cmp_eq_u32 s[70:71], {i+1}, {v(vT0)}")
                s(f"s_nop 0\nv_cndmask_b32 {v(SEL[i>>2]+(i&3))}, 0, {v(vT2)}, vcc\nv_cndmask_b32 {v(SEL[i>>2]+(i&3)+1)}, 0, {v(vT2)}, s[70:71]")
            if qS: s(f"s_lshl_b32 {sFK}, {sHD}, 7\ns_add_u32 {sFK}, {sFK}, {WS_FL1}")
        s.mark("su")
        s.waittok("rows", ahead=o["ah0"]); self.stamp(s, "rows")
        q = ST
        s(f"v_mov_b32 {v(vT1)}, 0x3f803f80")
        for i in range(4): s(f"v_mov_b32 {v(q+i)}, 0")
        for i in range(4):
            for r in range(2):
                s(f"v_dot2c_f32_bf16 {v(q+r)}, {v(tmp+4*r+i)}, {v(vT1)}\nv_dot2c_f32_bf16 {v(q+2+r)}, {v(tmp+4*r+i)}, {v(tmp+4*r+i)}")
        if o["stag"]: s(f"s_mov_b32 {sA}, {sBA}\nv_lshrrev_b32 {v(vT0)}, 1, v0")
        else:
            s.waittok("tag")
            s(f"v_readfirstlane_b32 {sA}, {v(vTAG)}\nv_lshrrev_b32 {v(vT0)}, 1, v0")
        s(f"v_permlane32_swap_b32 {v(q)}, {v(q+1)}\nv_permlane32_swap_b32 {v(q+2)}, {v(q+3)}")
        s(f"v_add_f32 {v(q)}, {v(q)}, {v(q+1)}\nv_add_f32 {v(q+2)}, {v(q+2)}, {v(q+3)}\ns_add_u32 {sA}, {sA}, 0x{TAGC:x}")
        s(f"v_mov_b32 {v(vTAG)}, {sA}\nv_permlane16_swap_b32 {v(q)}, {v(q+2)}\nv_add_f32 {v(q)}, {v(q)}, {v(q+2)}")
        s(f"v_mov_b32 {v(vTAG+1)}, {sA}\nv_mov_b32 {v(q+1)}, {sA}")
        for m in ("quad_perm:[1,0,3,2]", "quad_perm:[2,3,0,1]", "row_half_mirror", "row_mirror"):
            s(f"v_add_f32_dpp {v(q)}, {v(q)}, {v(q)} {m} {DPPM}")
        if o["sv"]:
            s(f"v_mul_f32 {v(q)}, {f2u(1/512)}, {v(q)}\nv_mov_b32 {v(q+2)}, {v(q)}\nv_mov_b32 {v(q+3)}, {v(q)}\nv_and_b32 {v(vT1)}, 16, v0")
            s(f"v_permlane16_swap_b32 {v(q+2)}, {v(q+3)}\nv_cmp_ne_u32 vcc, 0, {v(vT1)}")
            s(f"v_fma_f32 {v(q+3)}, -{v(q+2)}, {v(q+2)}, {v(q+3)}\nv_max_f32 {v(q+3)}, 0, {v(q+3)}\nv_add_f32 {v(q+3)}, {f2u(1e-5)}, {v(q+3)}\nv_sqrt_f32 {v(q+3)}, {v(q+3)}")
            s(f"v_cndmask_b32 {v(q+2)}, -{v(q+2)}, {v(q+3)}, vcc\nv_cvt_pk_bf16_f32 {v(q)}, {v(q+2)}, {v(q+2)}\nv_lshlrev_b32 {v(q+3)}, 16, {v(q)}")
            s(f"v_sub_f32 {v(q+2)}, {v(q+2)}, {v(q+3)}\nv_cvt_pk_bf16_f32 {v(q)}, {v(q+3)}, {v(q+2)}")
        s(f"s_mov_b32 exec_lo, 0x00010001\ns_mov_b32 exec_hi, 0x00010001\nbuffer_store_dwordx2 {v(q,2)}, {v(vT0)}, {sWS}, {sFL} offen sc1\ns_mov_b64 exec, -1", glue=True)
        self.stamp(s, "st")
        s(f"s_lshr_b32 {sFL}, {sTT}, 1\ns_lshl4_add_u32 {sFL}, {sFL}, {sWV}\ns_lshl_b32 {sFL}, {sFL}, 6\ns_add_u32 {sFL}, {sFL}, {WS_FL2}")
        s(f"s_lshl_b32 {sC}, {sWV}, 3")
        for d, tb in ((sBA, FFN_BLK0[0::2]), (sBB, FFN_BLK0[1::2]), (sBS[0], [x[0] for x in SBL]), (sBS[1], [x[1] for x in SBL]), (sBS[2], [x[2] for x in SBL])):
            s(f"s_lshr_b32 {d}, {pack(tb)}, {sC}\ns_and_b32 {d}, {d}, 0xff\ns_lshl_b32 {d}, {d}, 11")
        KR = vJ
        s(f"s_and_b32 {sA}, s98, 0x8000\ns_xor_b32 {sB}, {sA}, 0x8000")
        for i in range(4): s(f"v_add_u32 {v(KR+i)}, {sA}, {v(vXR+i)}\nv_add_u32 {v(vXR+i)}, {sB}, {v(vXR+i)}")
        assert all(b.tok != "b2" for b in tl.bg[tl.bi:]) or True
        PH = Stream() if o["phl"] else s
        s.mark("auxi")
        s(f"v_lshrrev_b32 {v(vT0)}, 3, v0\nv_lshl_add_u32 {v(vOUT)}, {v(vT0)}, 10, {v(vOUT)}")
        if not qS:
            six = sum(1 << i for i, n in enumerate(FFN_NBLK) if n == 6)
            s(f"s_lshr_b32 {sC}, {six}, {sJ}\ns_lshr_b32 {sA}, {sWV}, 1\ns_andn2_b32 {sC}, {sA}, {sC}\ns_and_b32 {sC}, {sC}, 1\ns_lshl_b32 {sC}, {sC}, 18\ns_or_b32 {sBLKS}, {sBLKS}, {sC}")
        if True:
            s(f"v_and_b32 {v(vT2)}, 4, v0\nv_cmp_ne_u32 vcc, 0, {v(vT2)}\nv_mov_b32 {v(vT3)}, 0x80008000\ns_nop 0\nv_cndmask_b32 {v(vT3)}, 0, {v(vT3)}, vcc")
            PH.waittok("b2", lat=0)
            for hs in range(len(PHI)):
                for e in range(2): PH(f"ds_read_b64_tr_b16 {v(PHI[hs]+2*e,2)}, {v(TA+hs)} offset:{e*128}", tok="phr")
            PH.waittok("phr"); PH.mark("phi")
            for i in range(4 * len(PHI)): PH(f"v_xor_b32 {v(PHI[i>>2]+(i&3))}, {v(vT3)}, {v(PHI[i>>2]+(i&3))}")
        def xread(st, un, region, ks):
            st(f"ds_read_b128 {v(XF+4*(ks%NX),4)}, {v(vXR+(ks&3))} offset:{region+(ks>>2)*4096}", tok=("xf", un, ks))
        def stat_consts0(st, i):
            m, va = ST + 4 * i, ST + 4 * i + 2; k = KC[i]
            st(f"v_mul_f32 {v(m)}, {f2u(1/512)}, {v(m)}\nv_mul_f32 {v(va)}, {f2u(1/512)}, {v(va)}\nv_fma_f32 {v(va)}, -{v(m)}, {v(m)}, {v(va)}\nv_max_f32 {v(va)}, 0, {v(va)}")
            st(f"v_add_f32 {v(va)}, {f2u(1e-5)}, {v(va)}\nv_sqrt_f32 {v(va)}, {v(va)}\nv_mov_b32 {v(m+3)}, 0")
            st(f"v_cvt_pk_bf16_f32 {v(m+1)}, -{v(m)}, {v(va)}\nv_rcp_f32 {v(k)}, {v(va)}")
            st(f"v_lshlrev_b32 {v(vT0)}, 16, {v(m+1)}\nv_and_b32 {v(vT1)}, 0xffff0000, {v(m+1)}")
            st(f"v_sub_f32 {v(m)}, -{v(m)}, {v(vT0)}\nv_sub_f32 {v(vT1)}, {v(va)}, {v(vT1)}")
            if kP: st(f"v_mul_f32 {v(k+1)}, {f2u(LOG2E)}, {v(k)}\nv_mov_b32 {v(k+2)}, {v(va)}")
            else:
                st(f"v_mov_b32 {v(k+2)}, {v(va)}\nv_mul_f32 {v(k+1)}, {v(k)}, {v(k)}\nv_mul_f32 {v(k)}, {f2u(K0)}, {v(k)}")
                st(f"v_mul_f32 {v(k+1)}, {v(k+1)}, {v(k)}\nv_mul_f32 {v(k+1)}, {f2u(0.044715)}, {v(k+1)}")
            st(f"v_cvt_pk_bf16_f32 {v(m)}, {v(vT0)}, {v(m)}\nv_cvt_pk_bf16_f32 {v(m+2)}, {v(va)}, {v(vT1)}\nv_mov_b32 {v(m+1)}, {v(m)}")
        def stat_consts(st, i):
            if not o["sv"]: return stat_consts0(st, i)
            m = ST + 4 * i; k = KC[i]
            st(f"v_lshlrev_b32 {v(k)}, 16, {v(m+2)}\nv_and_b32 {v(k+2)}, 0xffff0000, {v(m+2)}\nv_add_f32 {v(k+2)}, {v(k+2)}, {v(k)}")
            st(f"v_rcp_f32 {v(k)}, {v(k+2)}\nv_mov_b32 {v(m+1)}, {v(m)}\nv_mov_b32 {v(m+3)}, 0")
            if kP: st(f"v_mul_f32 {v(k+1)}, {f2u(LOG2E)}, {v(k)}")
            else:
                st(f"v_mul_f32 {v(k+1)}, {v(k)}, {v(k)}\nv_mul_f32 {v(k)}, {f2u(K0)}, {v(k)}")
                st(f"v_mul_f32 {v(k+1)}, {v(k+1)}, {v(k)}\nv_mul_f32 {v(k+1)}, {f2u(0.044715)}, {v(k+1)}")
        def corr_pre(st, which):
            c = CA[which]
            st(f"v_mov_b32 {v(c+3)}, 0")
            if which == kP: st(f"v_lshl_or_b32 {v(c+2)}, {v(vB1)}, 16, {v(vB1)}")
            else: st(f"v_mov_b32 {v(c+2)}, 0")
        def corr_a(st, which):
            c = CA[which]
            st(f"v_cvt_pk_bf16_f32 {v(c)}, {v(CS)}, {v(CS)}\nv_lshlrev_b32 {v(vT1)}, 16, {v(c)}\nv_sub_f32 {v(vT0)}, {v(CS)}, {v(vT1)}")
            st(f"v_cvt_pk_bf16_f32 {v(c+1)}, {v(vT0)}, {v(vT0)}")
        def spin(st, test, reload_, name):
            lp, ok = self.lab("poll"), self.lab("ok")
            st(test + f"\ns_cbranch_vccz {ok}", glue=True)
            st(f"s_mov_b32 {sC}, 0", cond=True)
            st(lp + ":")
            slp = o["slp"] if name in ("fO", "fS") else o["slpK"]
            if slp: st(f"s_sleep {slp}", cond=True)
            st(reload_, cond=True)
            st(f"s_add_u32 {sC}, {sC}, 1\ns_cmp_gt_u32 {sC}, 100000\ns_cbranch_scc1 {ok}\ns_waitcnt vmcnt(0)", cond=True)
            st(test + f"\ns_nop 4\ns_cbranch_vccnz {lp}", cond=True)
            st(ok + ":\ns_nop 0"); st.mark(name); self.stamp(st, name)
        corr_pre(PH, 0); corr_pre(PH, 1)
        tl.straight(s)
        ia = [x for x in tl.log if x.startswith("mark auxi")][0]
        assert int(ia.split("bg=")[1]) > tl.lastbg("b2"), "small loads must be issued before their address registers change"
        s = Stream()
        if o["phl"]: s.need("b0"); s.extend(PH)
        n0 = len(tl.bg)
        dma_x(2, "b5", o["spx"])
        x2pre = Stream(); x2pre(f"s_lshl1_add_u32 {sM}, {sWV}, {sROT}\ns_lshl_b32 {sM}, {sM}, 7\ns_and_b32 {sXK[0]}, {sM}, 0x380\ns_add_u32 {sM}, {sM}, 128\ns_and_b32 {sXK[1]}, {sM}, 0x380")
        tl.bg[n0].ins = Stream(x2pre + tl.bg[n0].ins)
        for i in range(2, 4): B(stats_ld(i, sM), "stats", None, sp=32)
        if not o["xord"]: dma_x(3, "b7", o["spx3"])
        lag = o["lag"]
        Mp = []
        def mfa(kp): return f"{MF} {v(ACC[0],16)}, {ag(4*kp,4)}, {ag(128+4*kp,4)}, {v(ACC[0],16) if kp else 0}"
        def mfb(kp): return f"{MF} {v(ACC[1],16)}, {ag(4*kp,4)}, {v(XF+4*(kp%NX),4)}, {v(ACC[1],16) if kp else 0}"
        def mf16(kp): return f"{MF16} {v(CS,4)}, {v(CSEL,4)}, {ag(4*kp,4)}, {v(CS,4) if kp else 0}"
        def pread(g, ks):
            ci, kk = ks >> 2, ks & 3; hi = PSL[ci] >= R[4]
            for e in range(2):
                g(f"ds_read_b64_tr_b16 {ag(4*ks+2*e,2)}, {v(vPR+hi)} offset:{PSL[ci]-R[4 if hi else 2]+kk*4096+e*1024}", tok=("pf", ks))
        def grp(f):
            g = Stream(); f(g); Mp.append(g)
        bsteps = [ks for ks in range(32) if ks >= o["blag"] and (ks >= o["bhalf"] or ks & 1)]
        for ks in range(32):
            ci, kk = ks >> 2, ks & 3; kp = ks - lag
            g = Stream()
            if kk == 0:
                if ci == 0: g.waittok(("xp", 0), ("p", 0), ahead=o["ah0b"], lat=o["plat0"]); self.stamp(g, "x0")
                else: g.waittok(("p", ci), ahead=o["ahead"], lat=o["plat"])
                g("s_barrier"); g.mark("b%d" % ci); self.stamp(g, "b%d" % ci)
            if kp >= 0: g.waittok(("xf", 0, bsteps.index(kp)) if kp in bsteps else ("ka", kp), lat=0); g(mfa(kp))
            pread(g, ks)
            if kp in bsteps: Mp.append(g); g = Stream(); g(mfb(bsteps.index(kp)))
            g(f"ds_read_b128 {ag(128+4*ks,4)}, {v(KR+(ks&3))} offset:{(ks>>2)*4096}", tok=("ka", ks))
            if ks in bsteps: xread(g, 0, 0, bsteps.index(ks))
            if ks == 31: g.mark("prd")
            Mp.append(g)
            if kp >= 0: grp(lambda g: g(mf16(kp)))
        x = s
        x.waittok("stat0")
        def tagtest(b):
            return (f"v_xor_b32 {v(vT0)}, {v(vTAG)}, {v(b+1)}\nv_xor_b32 {v(vT1)}, {v(vTAG)}, {v(b+3)}\nv_xor_b32 {v(vFL)}, {v(vTAG)}, {v(b+5)}\nv_xor_b32 {v(vFL+1)}, {v(vTAG)}, {v(b+7)}\n"
                    f"v_or3_b32 {v(vT0)}, {v(vT0)}, {v(vFL)}, {v(vFL+1)}\nv_cmp_ne_u64 vcc, 0, {v(vT0,2)}")
        def swapab(st, k):
            st(f"s_cmp_lg_u32 s98, 0\ns_cselect_b32 {sB}, {sAB[k+1]}, {sAB[k]}\ns_cselect_b32 {sAB[k+1]}, {sAB[k]}, {sAB[k+1]}\ns_mov_b32 {sAB[k]}, {sB}", glue=True)
        spin(x, tagtest(ST), stats_ld(0, sA) + "\n" + stats_ld(1, sA), "st0")
        stat_consts(x, 0); stat_consts(x, 1); swapab(x, 0)
        if kP and o["kz"] == 1: x("s_mov_b32 s32, 0xffff\ns_mov_b32 s33, 0xffff")
        x.need("prd")
        x(f"v_mov_b32 {v(vWD)}, {v(vWD+3)}")
        for q in range(1, 4): x(f"v_add_u32 {v(vWD+q)}, {7168*q}, {v(vWD)}")
        for q in (1, 3): x(f"v_xor_b32 {v(vWD+q)}, 32, {v(vWD+q)}")
        x(f"s_lshl_b32 {sPCOL}, {sTT}, 16\ns_add_u32 {sPCOL}, {sPCOL}, {sW16K}\ns_add_u32 {sPCOL}, {sPCOL}, {sCB}")
        x(f"s_and_b32 {sE1}, s98, 0x8000\ns_add_u32 {sE0}, {sE1}, 0x8000")
        x.need("cs0"); corr_a(x, 0); x.mark("ca0")
        nr = len(bsteps); b0 = nr - lag
        for n, kp in enumerate(range(32 - lag, 32)):
            grp(lambda g: (g.waittok(("xf", 0, nr - 1), lat=0) if n == 0 else None, g(mf16(kp)), g.mark("cs0") if kp == 31 else None))
        rd = [nr]
        def bread(g, n, upto):
            while n and rd[0] < 32 and rd[0] < upto + NX: xread(g, 0, 0, rd[0]); rd[0] += 1; n -= 1
        for kp in range(32 - lag, 32): grp(lambda g: (g(mfa(kp)), bread(g, 2, b0)))
        grp(lambda g: (g(mfb(b0)), bread(g, 2, b0)))
        grp(lambda g: (g.need("ca0"), g(f"{MF} {v(ACC[0],16)}, {v(CA[0],4)}, {v(ST,4)}, {v(ACC[0],16)}"), self.stamp(g, "p1")))
        Mb = []
        for kp in range(b0 + 1, 32):
            g = Stream()
            if kp >= nr and (kp - nr) % 2 == 0: g.waittok(("xf", 0, min(31, kp + 1)))
            g(mfb(kp)); bread(g, 1, kp); Mb.append(g)
        g = Stream(); g(f"{MF} {v(ACC[1],16)}, {v(CA[0],4)}, {v(ST+4,4)}, {v(ACC[1],16)}"); g.mark("m1"); Mb.append(g)
        tl.sched(Mp, [x])
        if o.get("stop"):
            out = Stream()
            for i in tl.out:
                if "m" in o["stop"] and i.kind == "mfma": continue
                if "s" in o["stop"] and (i.kind == "vst" or i.cond or i.op.startswith("s_cbranch_vcc")): continue
                if "b" in o["stop"] and i.kind == "barrier": continue
                if "d" in o["stop"] and (i.kind == "dsr" or (i.kind == "waittok" and (i.tok[0] == "phr" or i.tok[0][0] == "xf"))): continue
                out.append(i)
            s = out
            s("s_waitcnt vmcnt(0)\ns_memrealtime s[64:65]\ns_waitcnt lgkmcnt(0)")
            s(f"s_lshl2_add_u32 {sA}, s2, {sWV}\ns_lshl_b32 {sA}, {sA}, 6\ns_add_u32 {sA}, {sA}, {WS_STAMP}")
            for i, r in enumerate(["s100"] + ["s%d" % k for k in STAMPR] + ["s64"]):
                s(f"v_mov_b32 {v(vT1)}, {r}\nbuffer_store_dword {v(vT1)}, {v(vZ)}, {sWS}, {sA} offen offset:{4*i}")
            return s

        def gelu(e, acc, k, sbase, sblk, tok, pk=False):
            e(f"s_lshl_b32 {sB}, {sblk}, 11\ns_add_u32 {sB}, {sB}, {sbase}")
            for q in range(4):
                A = [v(acc + 4 * q + i) for i in range(4)]; T = [v(G4 + i) for i in range(4)]
                if pk:
                    assert k % 2 == 0
                    A2 = [v(acc + 4 * q + i, 2) for i in (0, 2)]; T2 = [v(G4 + i, 2) for i in (0, 2)]
                    for i in range(2): e(f"v_pk_mul_f32 {T2[i]}, {A2[i]}, {A2[i]}")
                    for i in range(2): e(f"v_pk_fma_f32 {T2[i]}, {T2[i]}, {v(k,2)}, {v(k,2)} op_sel:[0,1,0] op_sel_hi:[1,1,0]")
                    for i in range(2): e(f"v_pk_mul_f32 {T2[i]}, {A2[i]}, {T2[i]}")
                    for i in range(4): e(f"v_exp_f32 {T[i]}, {T[i]}")
                    for i in range(2): e(f"v_pk_fma_f32 {T2[i]}, {T2[i]}, {v(k+2,2)}, {v(k+2,2)} op_sel_hi:[1,0,0]")
                    for i in range(4): e(f"v_rcp_f32 {T[i]}, {T[i]}")
                    for i in range(2): e(f"v_pk_mul_f32 {T2[i]}, {A2[i]}, {T2[i]}")
                    for i in range(2): e(f"v_cvt_pk_bf16_f32 {v(HO+2*q+i)}, {T[2*i]}, {T[2*i+1]}")
                    if q & 1: e(f"buffer_store_dwordx4 {v(HO+4*(q>>1),4)}, {v(vL16)}, {sWS}, {sB} offen offset:{1024*(q>>1)} sc1", tok=tok)
                    continue
                for i in range(4): e(f"v_mul_f32 {T[i]}, {A[i]}, {A[i]}")
                for i in range(4): e(f"v_fma_f32 {T[i]}, {T[i]}, {v(k+1)}, {v(k)}")
                for i in range(4): e(f"v_mul_f32 {T[i]}, {A[i]}, {T[i]}")
                for i in range(4): e(f"v_exp_f32 {T[i]}, {T[i]}")
                for i in range(4): e(f"v_fma_f32 {T[i]}, {T[i]}, {v(k+2)}, {v(k+2)}")
                for i in range(4): e(f"v_rcp_f32 {T[i]}, {T[i]}")
                for i in range(4): e(f"v_mul_f32 {T[i]}, {A[i]}, {T[i]}")
                for i in range(2): e(f"v_cvt_pk_bf16_f32 {v(HO+2*q+i)}, {T[2*i]}, {T[2*i+1]}")
                if q & 1: e(f"buffer_store_dwordx4 {v(HO+4*(q>>1),4)}, {v(vL16)}, {sWS}, {sB} offen offset:{1024*(q>>1)} sc1", tok=tok)
        def sm_head(e, src, phi, T_, f4):
            for i in range(4): e(f"v_cvt_pk_bf16_f32 {v(f4+i)}, {v(src+2*i)}, {v(src+2*i+1)}")
            e(f"{MF} {v(T_,16)}, {v(phi,4)}, {v(f4,4)}, 0")
        def sm_body(e, T_, k, dst, scale=False, pk=False):
            t2, t3 = v(vT2), v(vT3); T = lambda i: v(T_ + i)
            e(f"v_max3_f32 {t2}, {T(0)}, {T(1)}, {T(2)}\nv_max3_f32 {t3}, {T(3)}, {T(4)}, {T(5)}")
            for i in range(2): e(f"v_max3_f32 {t2}, {t2}, {T(6+4*i)}, {T(7+4*i)}\nv_max3_f32 {t3}, {t3}, {T(8+4*i)}, {T(9+4*i)}")
            e(f"v_max3_f32 {t2}, {t2}, {T(14)}, {T(15)}\nv_max_f32 {t2}, {t2}, {t3}\nv_mul_f32 {t2}, {t2}, {v(k+1)}")
            P = lambda i: v(T_ + i, 2); tt = v(vT2, 2)
            if pk:
                assert k % 2 == 0 and vT2 % 2 == 0
                for i in range(0, 16, 2): e(f"v_pk_fma_f32 {P(i)}, {P(i)}, {v(k,2)}, {tt} op_sel:[0,1,0] op_sel_hi:[1,1,0] neg_lo:[0,0,1] neg_hi:[0,0,1]")
            else:
                for i in range(16): e(f"v_fma_f32 {T(i)}, {T(i)}, {v(k+1)}, -{t2}")
            for i in range(16): e(f"v_exp_f32 {T(i)}, {T(i)}")
            if pk:
                e(f"v_pk_add_f32 {tt}, {P(0)}, {P(2)}")
                for i in range(4, 16, 2): e(f"v_pk_add_f32 {tt}, {tt}, {P(i)}")
            else:
                e(f"v_add_f32 {t2}, {T(0)}, {T(1)}\nv_add_f32 {t3}, {T(2)}, {T(3)}")
                for i in range(4, 16, 2): e(f"v_add_f32 {t2}, {t2}, {T(i)}\nv_add_f32 {t3}, {t3}, {T(i+1)}")
            e(f"v_add_f32 {t2}, {t2}, {t3}\nv_rcp_f32 {t2}, {t2}")
            if scale: e(f"v_mul_f32 {t2}, {t2}, {v(k)}")
            if pk:
                for i in range(0, 16, 2): e(f"v_pk_mul_f32 {P(i)}, {P(i)}, {tt} op_sel_hi:[1,0]")
            else:
                for i in range(16): e(f"v_mul_f32 {T(i)}, {T(i)}, {t2}")
            for i in range(8): e(f"v_cvt_pk_bf16_f32 {v(dst+i)}, {T(2*i)}, {T(2*i+1)}")
        def kepi(e, un):
            acc, k = ACC[un & 1], KC[un]
            kz = o["kz"]; FV = ONES if kz == 1 else F8b
            if kz == 0: e(f"{MF} {v(TB,16)}, {v(ONES,4)}, {v(SEL[1],4)}, 0")
            if kz == 2:
                if un: e.need("c%d" % un)
                e(f"{MF} {v(TB,16)}, {v(ST+4*un,4)}, {v(ONES,4)}, 0")
            e.need("m%d" % un)
            sm_head(e, acc, PHI[0], TA, F4)
            if kz != 2:
                for i in range(8): e(f"v_mul_f32 {v(acc+8+i)}, {v(acc+8+i)}, {v(k)}")
            for i in range(4): e(f"v_cvt_pk_bf16_f32 {v(FV+i)}, {v(acc+8+2*i)}, {v(acc+9+2*i)}")
            e.mark("e%d" % un)
            b = Stream(); sm_body(b, TA, k, F8a, kz == 2)
            vt = f"{MF} {v(TB,16)}, {v(FV,4)}, {v(SEL[0],4)}, {0 if kz == 1 else v(TB,16)}"
            if kz == 2: e(vt); e.extend(b)
            else: e.extend(b[:2]); e(vt); e.extend(b[2:])
            def cv(r):
                x = "\n".join(f"v_cvt_pk_bf16_f32 {v(F8b+i)}, {v(TB+2*i)}, {v(TB+2*i+1)}" for i in r)
                if kz == 1: e(f"s_mov_b64 exec, s[32:33]\n{x}\ns_mov_b64 exec, -1", glue=True)
                else: e(x)
            cv(range(4 if kz == 1 else 2))
            e(f"{MF} {v(TA,16)}, {v(F8a,4)}, {v(SEL[0],4)}, 0")
            cv(range(4 if kz == 1 else 2, 8))
            e(f"{MF} {v(TA,16)}, {v(F8a+4,4)}, {v(SEL[1],4)}, {v(TA,16)}")
            for i in range(8): e(f"v_cvt_pk_bf16_f32 {v(F8a+i)}, {v(TA+2*i)}, {v(TA+2*i+1)}")
            e(f"{MF} {v(KV,16)}, {v(F8a,4)}, {v(F8b,4)}, {v(KV,16) if un else 0}\n{MF} {v(KV,16)}, {v(F8a+4,4)}, {v(F8b+4,4)}, {v(KV,16)}")
        def kvpub(e):
            e(f"s_mul_i32 {sB}, {sT}, 960\ns_sub_u32 {sB}, 15360, {sB}\nv_lshrrev_b32 {v(vT3)}, 8, {v(vN16)}")
            e(f"v_mad_u32_u24 {v(vT2)}, {v(vT3)}, {sB}, {v(vKA)}\nv_mad_u32_u24 {v(vT3)}, {v(vT3)}, {sB}, {v(vKA+1)}")
            e(f"s_mul_i32 {sB}, {sHK}, 17\ns_add_u32 {sB}, {sB}, {sT}\ns_lshl_b32 {sB}, {sB}, 10\ns_add_u32 {sB}, {sB}, {WS_KVP}")
            for c in range(2):
                for i in range(4): e(f"v_cvt_pk_bf16_f32 {v(F8a+4*c+i)}, {v(KV+8*c+2*i)}, {v(KV+8*c+2*i+1)}")
                e(f"buffer_store_dwordx4 {v(F8a+4*c,4)}, {v(vT2+c)}, {sWS}, {sB} offen sc1", tok="kvp")
        def qepi(e, acc, k, dst):
            for i in range(4): e(f"v_cvt_pk_bf16_f32 {v(F4+i)}, {v(acc+2*i)}, {v(acc+2*i+1)}")
            for i in range(4): e(f"v_cvt_pk_bf16_f32 {v(F8b+i)}, {v(acc+8+2*i)}, {v(acc+9+2*i)}")
            e(f"{MF} {v(acc,16)}, {v(PHI[1],4)}, {v(F8b,4)}, 0\n{MF} {v(TA,16)}, {v(PHI[0],4)}, {v(F4,4)}, 0")
            sm_body(e, acc, k, dst + 8, pk=o["pk"] and dst != PF); e.mark(("sib", dst))
            if not ("e" in abl and dst != PF): sm_body(e, TA, k, dst)
        def flag(st, addr, tok, lat=None):
            st(addr)
            st.waittok(tok, lat=lat or o["stlat"])
            st(f"s_mov_b64 exec, 1\nbuffer_store_dwordx2 {v(vTAG,2)}, {v(vZ)}, {sWS}, {sD} offen sc1\ns_mov_b64 exec, -1", glue=True)
        a_fl1 = f"s_lshl4_add_u32 {sD}, {sHK}, {sT}\ns_lshl_b32 {sD}, {sD}, 3\ns_add_u32 {sD}, {sD}, {WS_FL1}"
        def a_fl2(kind): return (f"s_mov_b32 {sD}, {sHD}\n" if kind == 2 else f"s_lshl2_add_u32 {sD}, {sJ}, {sWV}\n") + f"s_lshl_b32 {sC}, {sT}, 10\ns_lshl3_add_u32 {sD}, {sD}, {sC}\ns_add_u32 {sD}, {sD}, {WS_FL2+256*kind}"
        def fl_txt(sreg, off): return f"buffer_load_dwordx2 {v(vFL,2)}, {v(vFA)}, {sWS}, {sreg} offen offset:{off} sc1"
        skipf = lambda tok: qS and tok[1] in str(o.get("skipf", ""))
        def fl_bg(sreg, off, tok, after):
            if not skipf(tok): B(fl_txt(sreg, off), tok, after, sp=16)
        def fl_check(st, sreg, off, tok):
            if skipf(tok): st.mark(tok); return
            st.waittok(tok)
            spin(st, f"v_cmp_ne_u64 vcc, {v(vFL,2)}, {v(vTAG,2)}", fl_txt(sreg, off), tok)

        SLOT = {"a0": (sW8K, R[0]), "a1": (sW8K, R[0] + 4096), "b0": (sW8K, R[1]), "b1": (sW8K, R[1] + 4096),
                "c0": (sW8K, R[4]), "c1": (sW8K, R[4] + 4096), "d0": (sW16K, R[2])}
        LORD = list(range(8)) + [11, 12, 13, 14, 8, 9, 10]
        WSLOT = dict(zip(LORD, ["b0", "b1", "c0", "c1", "a0", "a1"] * 2 + ["b0", "b1", "d0"]))
        nE = 8
        def blk(b):
            if b < 4: return sBA, b
            if b < 8: return sBB, b - 4
            if b < 11: return sBS[b - 8], 0
            return None, b - 11
        sRW = sXK[0]
        def dma_w(b, after):
            sb, off = SLOT[WSLOT[b]]; r, i = blk(b)
            pre = f"s_add_u32 m0, {sb}, {off}\n"
            if o["wrot"] and b < 8:
                pre += f"s_lshl_b32 {sRW}, {sTT}, 11\n" if b == 0 else f"s_add_u32 {sRW}, {sRW}, 0x800\n"
                pre += f"s_and_b32 {sRW}, {sRW}, 0x1800\ns_add_u32 {sN}, {r}, {sRW}\ns_lshl4_add_u32 {sN}, {sN}, {sCB}"
            elif i: pre += f"s_add_u32 {sN}, {sN}, 0x8000"
            elif r: pre += f"s_lshl4_add_u32 {sN}, {r}, {sCB}"
            else: pre += f"s_lshl3_add_u32 {sN}, {sW16K}, {sCB}"
            run4(pre, vWD, sW2 if r else sWo, ("w", b), after, o["spw0"] if b < 4 else o["spw1"] if b < 6 else None, sN)
            if "f" in abl and LORD.index(b) >= 10: del tl.bg[-3:]
        def wfrags(st, dst, base, off, tok):
            for cb in range(4):
                for e in range(2): st(f"ds_read_b64_tr_b16 {dst(4*cb+2*e)}, {v(base+cb)} offset:{off+e*512}", tok=tok)
        def wbump(st, base, d):
            for i in range(4): st(f"v_add_u32 {v(base+i)}, {d}, {v(base+i)}")
        def wread(st, b):
            sl = WSLOT[b]; off = SLOT[sl][1] - {"c": R[4], "d": R[2]}.get(sl[0], 0)
            if b == 2: wbump(st, vWQ, R[4])
            if b == 4: wbump(st, vWQ, -R[4])
            if b == 10: st(f"s_add_u32 {sE1}, {sW8K}, {R[2]}"); wbump(st, vWQ, sE1)
            st.waittok(("w", b), lat=o["wlat"])
            wfrags(st, lambda k: ag(128 + 16 * (b % 8) + k, 2), vWQ, off, ("wr", b))

        D = NX - 1
        M = list(Mb)
        RG = {1: R[1], 2: 0, 3: R[1], 4: 0, 5: 0}
        def bump(st, d):
            for i in range(4): st(f"v_add_u32 {v(vXR+i)}, {d}, {v(vXR+i)}")
        def opening(g, un):
            if un == 3:
                if o["ssplit"] >= 2: g.waittok(("x", 3))
                elif o["ssplit"]: g.waittok(("x", 3), ("s", 0))
                else: g.waittok(("x", 3), ("s", 0), ("s", 1))
                g("s_barrier"); g.mark("sl")
            elif un < 3: g.waittok(("x", un), lat=o["x1l"]); g("s_barrier"); g.mark("xl%d" % un)
            if un == 2: bump(g, sE0)
            if un == 5: g.need("e1s"); bump(g, sE1)
        NP = o["NP"]
        AU = [ACC[0], ACC[1]] * 3 if kP else [ACC[0], ACC[1], PF + 16, ACC[0], ACC[1], ACC[0]]
        NEED = {2: "e0", 3: "e1", 4: "e2", 5: "e3"} if kP else {3: "f0", 4: "f1", 5: "f3"}
        a2, a3 = (o["a2" if kP else "b2"] / 10, o["a3" if kP else "b3"] / 10)
        SPAN = {2: (o["a1"] / 10, a2), 3: (a2, a3), 4: (a3, 4), 5: (4, 5)}
        for un in range(2, 6):
            acc = AU[un]
            cm = f"{MF} {v(acc,16)}, {v(CA[un>3],4)}, {v(ST+4*un if un <= 3 else ST if un == 4 else CBS,4)}, "
            g = Stream()
            if un == 2:
                opening(g, 2)
                for ks in range(D): xread(g, 2, RG[2], ks)
                M.append(g); g = Stream()
            if un in NEED: g.need(NEED[un])
            self.stamp(g, "u%d" % un)
            clast = un == 4 or (un == 2 and o["c1l"])
            if not clast:
                g.need("c%d" % un); g(cm + "0"); M.append(g); g = Stream()
            last = o["kvpace" if kP else "fpace"] if un == 4 else 31
            for ks in range(32):
                for k in range(NP):
                    if ks == o["pace"] + (k + 1) * (last - o["pace"]) // NP:
                        n = int(round((SPAN[un][0] + (SPAN[un][1] - SPAN[un][0]) * (k + 1) / NP) * NP)) - 1
                        if n >= 0: g.need(("ep", n // NP, n % NP))
                if ks % 4 == 0:
                    if un == 4: g.need("sr%d" % (ks + 3)); g.waittok(("sr", ks + 3))
                    else: g.waittok(("xf", un, ks + 3))
                if ks == 28 and un == 5: g("s_barrier"); g.mark("r5")
                if ks + D == 32 and un < 5: opening(g, un + 1)
                g(f"{MF} {v(acc,16)}, {ag(4*ks,4)}, {ag(128+4*ks,4) if un == 4 else v(XF+4*(ks%NX),4)}, {v(acc,16) if (ks or not clast) else 0}")
                if ks + D < 32:
                    if un != 4: xread(g, un, RG[un], ks + D)
                elif un in (2, 4): xread(g, un + 1, RG[un + 1], ks + D - 32)
                if un >= 3: g.mark(("pd", un, ks))
                if un == 5 and ks == o["kvl"]: g.mark("kvl")
                if ks == 31 and not clast: g.mark("m%d" % un)
                M.append(g); g = Stream()
            if clast:
                g.need("c%d" % un); g(cm + v(acc, 16)); g.mark("cb%d" % un); g.mark("m%d" % un); M.append(g)
        tl.marks.add("m0")
        E = Stream()
        def paced(e, un):
            tot = sum(i.cost for i in e); c = 0; k = 0
            for i in e:
                E.append(i); c += i.cost
                while k < NP and c >= tot * (k + 1) / NP - 1e-9 and not i.glue: E.mark(("ep", un, k)); k += 1
            assert k == NP
        def selectk(st, i):
            k = KCS; j = i + 1 if i else 0
            st(f"v_cndmask_b32 {v(k)}, {v(KC[i])}, {v(KC[j])}, {sPAR}")
            if qS: st(f"v_mul_f32 {v(k+1)}, {f2u(LOG2E/K0)}, {v(k)}")
            else:
                st(f"v_cndmask_b32 {v(k+2)}, {v(KC[i]+2)}, {v(KC[j]+2)}, {sPAR}\nv_mul_f32 {v(k+1)}, {v(k)}, {v(k)}\nv_mul_f32 {v(k)}, {f2u(K0)}, {v(k)}")
                st(f"v_mul_f32 {v(k+1)}, {v(k+1)}, {v(k)}\nv_mul_f32 {v(k+1)}, {f2u(0.044715)}, {v(k+1)}")
        for un in range(4):
            e = Stream()
            if kP: kepi(e, un)
            else: e.need("m%d" % un); gelu(e, AU[un], KC[un], sAB[un], sBLKP, "actP")
            if kP and un == 3: kvpub(e)
            paced(e, un); E.mark("f%d" % un)
        E.mark("kvp")
        swapab(E, 2)
        selectk(E, 0); E.need("m4")
        e = Stream()
        if qS: qepi(e, AU[4], KCS, PF)
        else: gelu(e, ACC[0], KCS, sAB[0], sBLKS, "actS")
        paced(e, 4)
        selectk(E, 2); E.mark("e4"); E.need("m5"); self.stamp(E, "u6")
        if qS: qepi(E, AU[5], KCS, PF + 16)
        elif "h" not in abl: gelu(E, ACC[1], KCS, sAB[2], sBLKS, "actS", o["gpk"])
        self.stamp(E, "q"); E.mark("q5")
        X = Stream()
        X.waittok("stats")
        spin(X, tagtest(ST + 8), stats_ld(2, sA) + "\n" + stats_ld(3, sA), "stok")
        for i in range(2, 4): stat_consts(X, i); X.mark("c%d" % i)
        def select(st, i):
            for r in range(3): st(f"v_cndmask_b32 {v(CBS+r)}, {v(ST+4*i+r)}, {v(ST+4*i+4+r)}, {sPAR}")
        if o["xlate"]: X.need("kvp" if kP else "m3")
        select(X, 2); X(f"v_mov_b32 {v(CBS+3)}, 0")
        X.mark("e1s")
        X(f"s_and_b32 {sA}, s98, 0x100\ns_add_u32 {sA}, {sA}, {WS_ACT}\nv_and_b32 {v(vWR+1)}, 0xf0, {v(vL16)}\nv_and_b32 {v(vT0)}, 0x30, v0\nv_lshl_add_u32 {v(vT0)}, {v(vT0)}, 5, {sA}\nv_add_u32 {v(vWR+1)}, {v(vWR+1)}, {v(vT0)}")
        X.need("sl")
        X(f"s_lshr_b32 {sA}, {sWV}, 1\ns_lshl1_add_u32 {sA}, {sTT}, {sA}\ns_xor_b32 {sE0}, {sA}, 1\ns_mul_i32 {sA}, {sA}, {TBSTR}\ns_mul_i32 {sE0}, {sE0}, {TBSTR}")
        X(f"v_add_u32 {v(vAA)}, {sA}, {v(vWR+1)}\nv_add_u32 {v(vAA+2)}, {sE0}, {v(vWR+1)}\nv_xor_b32 {v(vAA+1)}, 0x100, {v(vAA)}\nv_xor_b32 {v(vAA+3)}, 0x100, {v(vAA+2)}")
        X2 = Stream()
        X2.need("kvp"); flag(X2, a_fl1 if kP else a_fl2(0), "kvp" if kP else "actP")
        X.need("cs"); corr_a(X, 1); X.mark("c4")
        X.mark("c5")
        S = Stream()
        C = Stream()
        S.need("xl2"); S.mark("k")
        S.need("sl")
        if o["ssplit"] == 2: S.waittok(("s", 0)); S("s_barrier")
        if o["ssplit"] == 3: S.waittok(("s", 1)); S("s_barrier")
        if kP and o["sg0"]: S.need(o["sg0"])
        for half in range(2):
            for ks in range(16 * half, 16 * half + 16):
                S.need(("pd", 3, ks))
                for e in range(1 if "i" in abl else 2): S(f"ds_read_b64_tr_b16 {ag(4*ks+2*e,2)}, {v(vSR)} offset:{(ks&15)*2048+e*512}", tok=("sr", ks))
                if ks % 4 == 3:
                    S.mark("sr%d" % ks); C.need("sr%d" % ks); C.waittok(("sr", ks))
                    if ks == 3: C.need("kvp" if o["prio" if kP else "priof"] else "m3")
                    for k2 in range(ks - 3, ks + 1 if ("a" not in abl or ks == 3) else 0): C(f"{MF16} {v(CS,4)}, {v(CSEL,4)}, {ag(4*k2,4)}, {v(CS,4) if k2 else 0}")
                if ks == 19 and kP and o["sg1"]: S.waittok(("sr", 15)); S("s_barrier"); S.mark("sa"); S.need(o["sg1"])
                if ks == 15: S(f"v_subrev_u32 {v(vSR)}, {R[4]}, {v(vSR)}")
                if ks == 15 and o["ssplit"] in (1, 2): S.waittok(("s", 1)); S.waittok(("sr", 15)); S("s_barrier"); S.mark("sa")
                if ks == 19 and o["ssplit"] in (0, 3) and not (kP and o["sg1"]): S.waittok(("sr", 15)); S("s_barrier"); S.mark("sa")
        S(f"v_add_u32 {v(vWQ)}, {sW8K}, {v(vWR)}")
        for i in range(1, 4): S(f"v_xor_b32 {v(vWQ+i)}, {32*i}, {v(vWQ)}")
        S.waittok(("sr", 31)); S("s_barrier"); S.mark("sb")
        C.mark("cs")
        if o["prio" if kP else "priof"] == 1: S.need("kvp")
        for b in range(nE):
            S.need(("pd", 4, 4 * b + 3)); wread(S, b)
            if b: S.waittok(("wr", b - 1)); S.mark("wr%d" % (b - 1))
        S.waittok(("wr", nE - 1)); S.mark("wr%d" % (nE - 1))
        def res():
            B(f"buffer_load_dwordx4 {v(XR,4)}, {v(vOUT)}, {sX}, {sPCOL} offen", sp=o["spx3"])
            B(f"s_add_u32 {sM}, {sPCOL}, 0x2000\nbuffer_load_dwordx4 {v(XR+4,4)}, {v(vOUT)}, {sX}, {sM} offen", "res", sp=o["spx3"])
        if not o["rord"]: res()
        def tlbw(pos):
            if o["tlbp"] != pos: return
            if o["tlb"] & 1: B(f"buffer_load_dword {v(vFL+1)}, {v(vZ)}, {sOut}, {sPCOL} offen sc1", None, "stok", sp=16); tl.bg[-1].ins[-1].wr = []
            if o["tlb"] & 2: B(f"s_mul_i32 {sM}, {sTT}, {2*TBSTR}\ns_add_u32 {sM}, {sM}, {WS_ACT+TBSTR}\nbuffer_load_dword {v(vFL+1)}, {v(vZ)}, {sWS}, {sM} offen sc1", None, "stok", sp=16); tl.bg[-1].ins[-1].wr = []
            if o["tlb"] & 4 and kP: B(f"buffer_load_dword {v(vFL+1)}, {v(vZ)}, {sWS}, {sAB[0]} offen sc1", None, "stok", sp=16); tl.bg[-1].ins[-1].wr = []
        warm3(2); tlbw(0); dma_s(0, "k"); warm3(3); tlbw(1)
        if o["xord"]: dma_x(3, None, o["spx3"])
        dma_s(1, "k"); warm3(4); tlbw(2)
        if o["rord"]: res()
        def wafter(b):
            n = LORD.index(b)
            return "k" if n < 2 else "sa" if n < 4 else "sb" if n < 6 else "wr%d" % (n - 6) if n < 14 else "r5"
        nB = o.get("nB", 13) if qS else o.get("nBf", 11)
        for n in range(nB):
            if qS and n == o.get("nK", 10): fl_bg(sFK, 0, "fK", "kvl")
            dma_w(LORD[n], wafter(LORD[n]))
        if qS and nB <= o.get("nK", 10): fl_bg(sFK, 0, "fK", "kvl")
        late = LORD[nB:]

        AC2 = 0; AF = 64; NB = 4
        fO = o["fO"] if qS else o["fOf"]; fS = o["fSa"] if qS else o["fS"]
        def af(idx): return ag(AF + 4 * (idx % 16), 4)
        def acts():
            for bb in range(11):
                if bb == fS: fl_bg(sFL, 256, "fS", "fP")
                if bb == fO: fl_bg(sFL, 512, "fO", "fa8")
                r, i = blk(bb)
                pre = ""
                if bb == 10: pre = f"s_cmp_eq_u32 {r}, {43*2048}\ns_cselect_b32 {r}, {'0x20000000' if o['z5'] else sBS[0]}, {r}"
                elif o["wrot"] and bb < 8:
                    pre = f"s_add_u32 {sRW}, {sRW}, 0x800\ns_and_b32 {sRW}, {sRW}, 0x1800\ns_add_u32 {sM}, {r}, {sRW}"; r, i = sM, 0
                elif i == 2: pre = f"s_add_u32 {r}, {r}, 4096"
                for k in range(4):
                    idx = 4 * bb + k
                    aft = {0: "fP", 32: "fS", (4 * o.get("gate", 99) if qS else 99): "pub"}.get(idx, ("mt", idx - 16) if idx >= 16 else None)
                    B(f"{pre}\nbuffer_load_dwordx4 {af(idx)}, {v(vAA+k)}, {sWS}, {r} offen offset:{2048*(i&1)} sc1", ("act", idx), aft, sp=o["spa"]); pre = ""
            if fO == 11: fl_bg(sFL, 512, "fO", "fa8")
            for n in range(16):
                idx = 44 + n; p = 4 * ((n >> 1) & 3) + 2 * (n >> 3)
                pre = "" if n & 1 else f"s_mov_b32 {sM}, {(43+p)*2048}"
                B(f"{pre}\nbuffer_load_dwordx4 {af(idx)}, {v(vAA)}, {sWS}, {sM} offen offset:{2048*(n&1)} sc1", ("act", idx), "fO" if n == 0 else ("mt", idx - 16), sp=o["spo"])
        assert fS >= 5 and fO >= 8
        s = Stream()
        if not qS:
            fl_bg(sFL, 0, "fP", "r5")
            for b in late: dma_w(b, wafter(b))
            acts()
            X2.need("m5"); fl_check(X2, sFL, 0, "fP")
            E.mark("odone"); FS = [X, X2, S, C, E]
        else:
            Z = ST + 8; ZT = F8a; KA = XF
            X2.need("sb")
            X2(f"s_mul_i32 {sD}, {sHD}, {KVREC}\ns_add_u32 {sD}, {sD}, {WS_KVP}\nv_add_u32 {v(vJ)}, {sD}, {v(vL16)}")
            X2(f"v_and_b32 {v(vXD0)}, 0x30, {v(vL16)}\nv_lshrrev_b32 {v(vSR)}, 4, v0\nv_lshl_add_u32 {v(vXD0)}, {v(vSR)}, 2, {v(vXD0)}")
            X2.need("c5")
            fl_check(X2, sFK, 0, "fK")
            X2(f"v_and_b32 {v(vFA)}, 0x38, {v(vFA)}"); X2.mark("gat")
            gsp = o.get("gsp", 48)
            B(f"s_movk_i32 {sM}, 0x4000\nbuffer_load_dwordx4 {v(Z,4)}, {v(vJ)}, {sWS}, {sM} offen sc1", "z", "gat", sp=gsp)
            NG = 2 if "c" in abl else 16
            for p in range(NG):
                if p == o["nP"]: fl_bg(sFL, 0, "fP", None)
                gq = o["gq"]
                pre = "" if p % gq else f"s_lshl_b32 {sM}, {sROT}, 11\ns_and_b32 {sM}, {sM}, {0x4000-1024*gq}" if p == 0 else f"s_add_u32 {sM}, {sM}, {1024*gq}\ns_and_b32 {sM}, {sM}, 0x3fff"
                B(f"{pre}\nbuffer_load_dwordx4 {ag(4*p,4)}, {v(vJ)}, {sWS}, {sM} offen offset:{(p%gq)*1024} sc1", ("g", p), ("pd", 5, p), sp=gsp)
            nL = o.get("nL", 0)
            for b in late[:nL]: dma_w(b, wafter(b))
            if o["nP"] >= 16: fl_bg(sFL, 0, "fP", None)
            for b in late[nL:]: dma_w(b, wafter(b))
            acts()
            xo, xs, zw, zr = (CA[0] + i for i in range(4))
            X2(f"s_add_u32 {sD}, {sW16K}, {R[2]+4096}\nv_add_u32 {v(xo)}, {sD}, {v(vL16)}\nv_xor_b32 {v(xs)}, 0x4000, {v(xo)}")
            X2(f"v_add_u32 {v(zw)}, {sD}, {v(vXD0)}\nv_lshl_add_u32 {v(zr)}, {v(vSR)}, 4, {sD}"); X2.mark("xa")
            X2.waittok("z")
            for i in range(4): X2(f"v_lshlrev_b32 {v(ZT+i)}, 16, {v(Z+i)}\nv_and_b32 {v(ZT+4+i)}, 0xffff0000, {v(Z+i)}")
            for i in range(0, 8, 2): X2(f"v_permlane16_swap_b32 {v(ZT+i)}, {v(ZT+i+1)}")
            for i in range(0, 8, 2): X2(f"v_add_f32 {v(ZT+i)}, {v(ZT+i)}, {v(ZT+i+1)}")
            for i in (0, 4): X2(f"v_permlane32_swap_b32 {v(ZT+i)}, {v(ZT+i+2)}")
            for i in (0, 4): X2(f"v_add_f32 {v(ZT+i)}, {v(ZT+i)}, {v(ZT+i+2)}")
            for m in ("row_ror:4", "row_ror:8"):
                for i in (0, 4): X2(f"v_add_f32_dpp {v(ZT+i)}, {v(ZT+i)}, {v(ZT+i)} {m} {DPPM}")
            X2(f"v_cvt_pk_bf16_f32 {v(Z)}, {v(ZT)}, {v(ZT+4)}")
            X2.need("r5"); X2(f"ds_write_b32 {v(zw)}, {v(Z)} offset:4096\nds_read_b128 {v(Z,4)}, {v(zr)} offset:4096", tok="zr"); X2.mark("zr")
            X2.need("m5"); fl_check(X2, sFL, 0, "fP")
            XC = Stream(); XC.need("xa"); XC.need("r5"); XC.need(("sib", PF))
            for k in range(4):
                if k == 2: XC.need(("sib", PF + 16))
                XC(f"ds_write_b128 {v(xo)}, {v(PF+8+16*(k>>1)+4*(k&1),4)} offset:{1024*k}", tok="xw")
            XC.waittok("xw"); XC("s_barrier")
            for k in range(4): XC(f"ds_read_b128 {v(PF+8+16*(k>>1)+4*(k&1),4)}, {v(xs)} offset:{1024*k}", tok="xr")
            XC.waittok("xr")
            if o["xb2"]: XC("s_barrier")
            XC.mark("xr")
            G = Stream(); G.need("m5")
            if o["pk"]: G.need(("sib", PF + 16))
            for p in range(NG):
                if p % 2 == 0: G.waittok(("g", p + 1))
                G(f"{MF} {v(KA,16)}, {v(SEL[0],4)}, {ag(4*p,4)}, {v(KA,16) if p else 0}")
            G.mark("gdone")
            KP = KA + 16
            G(f"s_add_u32 {sSO[0]}, {sHD}, 86\ns_lshl_b32 {sSO[0]}, {sSO[0]}, 10")
            for i in range(4): G(f"v_cvt_pk_bf16_f32 {v(KP+i)}, {v(KA+2*i)}, {v(KA+2*i+1)}")
            G.need("zr"); G.waittok("zr")
            for i in range(4): G(f"v_permlane16_swap_b32 {v(KP+i)}, {v(Z+i)}")
            self.stamp(G, "kvx")
            O = Stream()
            for n, A in ((0, AU[4]), (1, KA), (3, AU[5]), (2, TA)):
                if n == 0: G.need("e4")
                if n == 1: G.need("xr")
                if n == 2: G.need("q5")
                G(f"{MF} {v(A,16)}, {v(KP,4)}, {v(PF+8*n,4)}, 0\n{MF} {v(A,16)}, {v(Z,4)}, {v(PF+8*n+4,4)}, {v(A,16)}"); G.mark(("om", n))
                O.need(("om", n))
                O(f"v_add_f32 {v(A+8)}, {f2u(1e-6)}, {v(A+8)}\nv_rcp_f32 {v(A+8)}, {v(A+8)}")
                O(f"s_add_u32 {sSO[1]}, {sAB[n]}, {sSO[0]}")
                if o["opk"] and n:
                    for i in range(0, 8, 2): O(f"v_pk_mul_f32 {v(A+i,2)}, {v(A+i,2)}, {v(A+8,2)} op_sel_hi:[1,0]")
                else:
                    for i in range(8): O(f"v_mul_f32 {v(A+i)}, {v(A+i)}, {v(A+8)}")
                for i in range(4): O(f"v_cvt_pk_bf16_f32 {v(A+12+i)}, {v(A+2*i)}, {v(A+2*i+1)}")
                O(f"buffer_store_dwordx4 {v(A+12,4)}, {v(vL16)}, {sWS}, {sSO[1]} offen sc1", tok="actO")
                if o.get("nost") and n != 2: O.pop()
            self.stamp(O, "o"); O.mark("odone")
            FS = [X, X2, S, C, XC, G, O, E] if o["ofirst"] else [X, X2, S, C, XC, G, E, O]
        def grp2(pre, text, post=None):
            g = Stream(); g.small = o["nds2"]
            if pre: pre(g)
            g(text)
            if post: post(g)
            M.append(g)
        def wo(n): return (lambda k, c=2: v(96 + 16 * n + k, c)) if n < 10 else (lambda k, c=2: ag(128 + 16 * ((n - 7) % 8) + k, c))
        for bb in range(11):
            for kk, k in enumerate((1, 2, 3, 0) if bb == 10 else range(4)):
                idx = 4 * bb + k
                for cc in range(4):
                    cb = 3 - cc if kk & 1 else cc
                    def pre(g):
                        if kk == 0:
                            if bb == 0:
                                g.need("wr7")
                                if qS: g.need("odone" if o["p2hold"] else "gdone")
                            if bb == fS:
                                g.need("pub"); fl_check(g, sFL, 256, "fS")
                                g(f"v_lshrrev_b32 {v(vFA)}, 1, {v(vN16)}\ns_and_b32 {sFL}, {sFL}, 0xffffff3f"); g.mark("fa8")
                            if bb == fO: g.need("pub"); fl_check(g, sFL, 512, "fO")
                            if bb >= nE: g.need("wq%d" % bb); g.waittok(("wr", bb), lat=0)
                        if kk % 2 == 0:
                            g.waittok(("act", 4 * bb + (kk + 1 if bb < 10 else 2 + kk // 2)), ahead=o["ah2"] if bb >= o["p2e"] else 0, lat=0 if bb >= o["p2e"] else None)
                    def post(g):
                        g.mark(("mt", idx))
                        if kk == 3: g.mark(("mm", bb)); self.stamp(g, "mm%d" % bb)
                    A = ag(AC2 + 16 * k + 4 * cb, 4)
                    grp2(pre if cc == 0 else None, f"{MF16} {A}, {ag(128+16*(bb%8)+4*cb,4)}, {af(idx)}, {A if bb else 0}", post if cc == 3 else None)
        if fO == 11:
            g = Stream(); g.need("pub")
            if o.get("qfirst"): g.need(("qa", 2))
            fl_check(g, sFL, 512, "fO"); M.append(g)
        for n in range(16):
            for cb in range(4):
                def pre(g):
                    g.need(("wo", n)); g.waittok(("wo", n), lat=0)
                    if n % 2 == 0 or n > 12: g.waittok(("act", 44 + (n if n >= 12 else n + 1)), ahead=o["aho"], lat=0)
                def post(g):
                    if n == 15: g.mark("oend"); self.stamp(g, "mm14")
                A = ag(AC2 + 4 * cb, 4)
                grp2(pre if cb == 0 else None, f"{MF16} {A}, {wo(n)(4*cb,4)}, {af(44+n)}, {A}", post if cb == 3 else None)
        W = Stream(); W.need("m5")
        for b in range(nE, 11):
            W.need(("mm", b - 8)); wread(W, b); W.mark("wq%d" % b)
        W2s = Stream(); W2s.need("m5")
        W2s(f"v_add_u32 {v(vXR)}, {R[4]}, {v(vWR)}")
        for i in range(1, 4): W2s(f"v_xor_b32 {v(vXR+i)}, {32*i}, {v(vXR)}")
        W2s.waittok(("w", 14), lat=o["wlat"]); W2s.need("odone"); W2s("s_barrier"); W2s.mark("wob")
        for n in range(16):
            if n == 8: wbump(W2s, vXR, -R[4])
            if n >= 10: W2s.need(("mm", n - 7))
            wfrags(W2s, wo(n), vXR, (n & 7) * 4096, ("wo", n)); W2s.mark(("wo", n))
        X = Stream(); X.need("odone"); X.need("fP")
        flag(X, a_fl2(2 if qS else 1), "actO" if qS else "actS", o["stlat2"])
        X.mark("pub"); Xf = X; X = Stream(); X.need("pub"); X.need("wq10")
        RW = vKA; RR = [vWD, vWD + 2, vT2, vJ]; Y = ACC[0]; Pp = ACC[1]
        assert Y == 48 and Pp == 64
        vJ2 = (vSR, vXD0)
        rr = lambda k, e: v(RR[k] + e) if k < 3 else v(vJ2[e])
        X(f"v_lshrrev_b32 {v(vT0)}, 4, v0\nv_and_b32 {v(vT1)}, 7, v0\nv_xor_b32 {v(vT0)}, {v(vT0)}, {v(vT1)}\nv_and_b32 {v(RW)}, 0xf0, {v(vL16)}")
        X(f"v_add_lshl_u32 {v(vT0)}, {v(RW)}, {v(vT0)}, 4\ns_add_u32 {sA}, {sW16K}, {R[2]}\nv_add_u32 {v(RW)}, {sA}, {v(vT0)}\nv_xor_b32 {v(RW+1)}, 64, {v(RW)}")
        X(f"v_lshrrev_b32 {v(vT0)}, 3, v0\nv_lshlrev_b32 {v(vT1)}, 1, {v(vT1)}\nv_xor_b32 {v(vT1)}, {v(vT1)}, {v(vT0)}\nv_lshlrev_b32 {v(vT1)}, 4, {v(vT1)}\nv_lshl_add_u32 {v(vT0)}, {v(vT0)}, 8, {v(vT1)}")
        X(f"v_add_u32 {v(vT0)}, {sA}, {v(vT0)}")
        for k in range(4):
            m = 16384 * ((k + 1) & 3) + 4096 * k
            X(f"v_xor_b32 {rr(k,0)}, {m}, {v(vT0)}\nv_xor_b32 {rr(k,1)}, {m+16}, {v(vT0)}")
        for it in range(2):
            for i in range(4):
                X(f"v_lshlrev_b32 {v(Y+8*it+2*i)}, 16, {v(XR+4*it+i)}\nv_and_b32 {v(Y+8*it+2*i+1)}, 0xffff0000, {v(XR+4*it+i)}")
        for i in range(4):
            X(f"v_lshlrev_b32 {v(vT0)}, 16, {v(B2+i)}\nv_and_b32 {v(vT1)}, 0xffff0000, {v(B2+i)}")
            for it in range(2):
                X(f"v_add_f32 {v(Y+8*it+2*i)}, {v(Y+8*it+2*i)}, {v(vT0)}\nv_add_f32 {v(Y+8*it+2*i+1)}, {v(Y+8*it+2*i+1)}, {v(vT1)}")
        X(f"s_add_u32 {sB}, {sPCOL}, 0x2000"); X.mark("fin")
        Q = Stream(); Z2 = Stream(); Q.need("fin"); Q.need("wob")
        def qw(k, slot, tok):
            for cb in range(4): Q(f"ds_write_b128 {v(RW+(cb&1))}, {ag(AC2+16*k+4*cb,4)} offset:{slot*4096+(cb>>1)*128}", tok=tok)
        def qr(k):
            for it in range(2):
                for e in range(2): Q(f"ds_read_b128 {v(Pp+16*(k&1)+8*it+4*e,4)}, {rr(k,e)} offset:{it*2048}", tok=("qr", k, it))
            Q.mark(("qr", k))
        for k in range(1, 4): Q.need(("mt", 40 + k)); qw(k, k - 1, "qw")
        Q.waittok("qw", lat=80); Q("s_barrier"); self.stamp(Q, "red0")
        for k in range(3):
            if k == 2: Q.need(("qa", 0))
            qr(k)
            Z2.need(("qr", k)); Z2.waittok(("qr", k, 1))
            for i in range(16): Z2(f"v_add_f32 {v(Y+i)}, {v(Y+i)}, {v(Pp+16*(k&1)+i)}")
            Z2.mark(("qa", k))
        Q.need("oend"); Q.need(("qa", 1)); qw(0, 3, "qw2"); self.stamp(Q, "red"); qr(3)
        Z2.need(("qr", 3))
        for it in range(2):
            Z2.waittok(("qr", 3, it), lat=100)
            for i in range(0, 8, 2): Z2(f"v_pk_add_f32 {v(Y+8*it+i,2)}, {v(Y+8*it+i,2)}, {v(Pp+16+8*it+i,2)}")
            for i in range(4): Z2(f"v_cvt_pk_bf16_f32 {v(XR+4*it+i)}, {v(Y+8*it+2*i)}, {v(Y+8*it+2*i+1)}")
            Z2(f"buffer_store_dwordx4 {v(XR+4*it,4)}, {v(vOUT)}, {sOut}, {sB if it else sPCOL} offen{' sc1' if o['outsc1'] else ''}"); self.stamp(Z2, "out%d" % it)
        tl.sched(M, FS + [Xf, W, Q, Z2, W2s, X], nds=o.get("nds", 3))
        s = Stream()
        if kP:
            noe = self.lab("noe")
            s(f"s_or_b32 {sA}, s2, {sWV}\ns_cmp_lg_u32 {sA}, 0\ns_cbranch_scc1 {noe}")
            s(f"s_mov_b64 exec, 1\nbuffer_store_dword {v(vTAG)}, {v(vZ)}, {sWS}, 0 offen sc1\ns_mov_b64 exec, -1", cond=True)
            s(noe + ":")
        if o.get("probe"):
            lp, l2, l3 = self.lab("pad"), self.lab("ref"), self.lab("skip"); K = o.get("K", 4)
            s("s_waitcnt vmcnt(0)"); self.stamp(s, "end"); s("s_waitcnt lgkmcnt(0)")
            if o.get("st") == "start": s("s_mov_b32 s60, s100")
            s(f"s_or_b32 {sA}, s2, {sWV}\ns_cmp_lg_u32 {sA}, 0\ns_cbranch_scc1 {l2}")
            s(f"v_mov_b32 {v(vT0)}, s100\nv_mov_b32 {v(vT1)}, {v(vTAG)}\nbuffer_store_dwordx2 {v(vT0,2)}, {v(vZ)}, {sWS}, 0 offen offset:2048 sc1", cond=True)
            s(f"{l2}:\ns_sleep 64\nbuffer_load_dwordx2 {v(vT0,2)}, {v(vZ)}, {sWS}, 0 offen offset:2048 sc1\ns_waitcnt vmcnt(0)\nv_cmp_ne_u32 vcc, {v(vT1)}, {v(vTAG)}\ns_nop 4\ns_cbranch_vccnz {l2}")
            s(f"v_readfirstlane_b32 s66, {v(vT0)}\ns_nop 4\ns_sub_u32 s60, s60, s66")
            if o["probe"] == "min": s("s_sub_u32 s60, 1200, s60")
            else: s("s_add_u32 s60, s60, 300")
            if o.get("only", role) != role: s("s_mov_b32 s60, 0")
            s(f"s_mul_i32 s60, s60, {K}\ns_add_u32 s60, s60, 4000")
            s(f"{lp}:\ns_memrealtime s[64:65]\ns_waitcnt lgkmcnt(0)\ns_sub_u32 s64, s64, s66\ns_cmp_lt_u32 s64, s60\ns_cbranch_scc1 {lp}")
        elif o["stamps"]:
            s("s_waitcnt vmcnt(0)\ns_memrealtime s[64:65]\ns_waitcnt lgkmcnt(0)")
            s(f"s_lshl2_add_u32 {sA}, s2, {sWV}\ns_lshl_b32 {sA}, {sA}, 6\ns_add_u32 {sA}, {sA}, {WS_STAMP}")
            for i, r in enumerate(["s100"] + ["s%d" % k for k in STAMPR] + ["s64"]):
                s(f"v_mov_b32 {v(vT1)}, {r}\nbuffer_store_dword {v(vT1)}, {v(vZ)}, {sWS}, {sA} offen offset:{4*i}")
        tl.straight(s)
        assert tl.bi == len(tl.bg)
        tl.log.append("end t=%d forced=%d" % (tl.t, tl.forced))
        if o["log"]: sys.stderr.write("\n".join(role + " " + x for x in tl.log) + "\n")
        return tl.out

    def build(self):
        outs = {}
        for role in ("att", "ffn"):
            st = {}
            outs[role] = finalize(self.role(role), st)
            sys.stderr.write("%s: %s\n" % (role, st))
        ia, jf = outs["att"].index("L_split:"), outs["ffn"].index("L_split:")
        assert outs["att"][:ia] == outs["ffn"][:jf], "common start differs"
        text = outs["att"][:ia] + outs["att"][ia + 1:] + ["s_endpgm", ".p2align 6", "L_ffn:"] + outs["ffn"][jf + 1:] + ["L_end:", "s_endpgm"]
        if self.o.get("al"):
            text, n, c = align_pass([NAME + "_kernel:"] + text, self.o["al"], self.o.get("lam", 30) / 100); text = text[1:]
            sys.stderr.write("alignment: %d re-encoded, residual cost %.1f\n" % (n, c))
        body = "\n".join(t if t.endswith(":") else "    " + t for t in text) + "\n"
        hdr = ["Fused LayerNorm + hedgehog linear attention + GELU FFN + residual, one persistent launch (generated by my own script).",
               "@launch grid=(256,1,1) block=(256,1,1) lds=163840"]
        return module(hdr, [(NAME + "_kernel", body, 512, 256)])

if __name__ == "__main__":
    opt = {}
    for x in sys.argv[2:]:
        k, _, val = x.partition("=")
        opt[k] = (int(val) if val.lstrip("-").isdigit() else val) if val else True
    open(sys.argv[1], "w").write(Gen(**opt).build())
```

```python
import re

TRANS = ("v_exp_f32", "v_log_f32", "v_rcp_f32", "v_rsq_f32", "v_sqrt_f32", "v_sin_f32", "v_cos_f32")
REG = re.compile(r"^(-|abs\()?([vas])(?:(\d+)|\[(\d+):(\d+)\])\)?$")

def regs_of(op):
    op = op.strip()
    if op in ("vcc",): return [("s", "vcc_lo"), ("s", "vcc_hi")]
    if op in ("vcc_lo", "vcc_hi", "m0"): return [("s", op)]
    if op == "exec": return [("s", "exec")]
    m = REG.match(op)
    if not m: return []
    t = m.group(2)
    if m.group(3) is not None: return [(t, int(m.group(3)))]
    return [(t, i) for i in range(int(m.group(4)), int(m.group(5)) + 1)]

class Ins:
    __slots__ = ("text", "op", "kind", "rd", "wr", "srcc", "passes", "tok", "cond", "cost", "wide_store", "sdata", "glue", "ahead", "lat")
    def __init__(self, text, tok=None, cond=False):
        self.text = text.strip(); self.tok = tok; self.cond = cond; self.glue = cond; self.ahead = 0; self.lat = None
        self.rd = []; self.wr = []; self.srcc = []; self.passes = 0; self.wide_store = False; self.sdata = []
        t = self.text.split(";")[0].strip()
        if t.endswith(":") or t.startswith("."):
            self.op = t; self.kind = "label"; self.cost = 0; return
        parts = t.split(None, 1)
        op = self.op = parts[0]
        rest = parts[1] if len(parts) > 1 else ""
        ops = [x.strip() for x in rest.split(",")] if rest else []
        mods = ""
        if ops:
            sp = ops[-1].split(None, 1)
            ops[-1] = sp[0]; mods = sp[1] if len(sp) > 1 else ""
        if "[" in rest and re.search(r"(quad_perm|op_sel|op_sel_hi|neg_lo|neg_hi):\[", rest):
            cut = re.search(r"\s(quad_perm|op_sel|op_sel_hi|neg_lo|neg_hi|row_|bank_mask|bound_ctrl)", rest).start()
            ops = [x.strip() for x in rest[:cut].split(",")]; mods = rest[cut:]
        R = [regs_of(o) for o in ops]
        flat = lambda l: [r for x in l for r in x]
        self.cost = 1
        if op.startswith("v_mfma"):
            self.kind = "mfma"; self.wr = R[0]; self.rd = flat(R[1:]); self.srcc = R[3]
            self.passes = 8 if "32x32" in op else 4
            self.cost = 2
        elif op.startswith("v_cmp"):
            self.kind = "valu"; self.wr = R[0]; self.rd = flat(R[1:])
        elif op.startswith("v_permlane"):
            self.kind = "valu"; self.wr = R[0] + R[1]; self.rd = R[0] + R[1]
        elif op.startswith("v_"):
            self.kind = "trans" if op.replace("_e32", "").replace("_e64", "") in TRANS else "valu"
            if self.kind == "trans": self.cost = 2
            self.wr = R[0]; self.rd = flat(R[1:])
            if op.startswith(("v_add_co", "v_addc_co", "v_sub_co", "v_subb_co")):
                self.wr = R[0] + R[1]; self.rd = flat(R[2:])
            if op.startswith(("v_fmac", "v_dot2c", "v_writelane")) or "_dpp" in op or "_sdwa" in op:
                self.rd = self.rd + R[0]
        elif op.startswith("ds_read") or op.startswith("ds_bpermute"):
            self.kind = "dsr"; self.wr = R[0]; self.rd = flat(R[1:])
        elif op.startswith("ds_"):
            self.kind = "dsw"; self.rd = flat(R)
        elif op.startswith(("buffer_load", "global_load")):
            if " lds" in (" " + mods) or op.startswith("global_load_lds"):
                self.kind = "dma"; self.rd = flat(R) + [("s", "m0")]
            else:
                self.kind = "vld"; self.wr = R[0]; self.rd = flat(R[1:])
                if "d16" in op: self.rd = self.rd + R[0]
        elif op.startswith(("buffer_store", "global_store")):
            self.kind = "vst"; self.rd = flat(R)
            self.sdata = R[0] if op.startswith("buffer") else R[1]
            self.wide_store = op.endswith(("x3", "x4"))
        elif op.startswith(("s_load", "s_memtime", "s_memrealtime")):
            self.kind = "smem"; self.wr = R[0]; self.rd = flat(R[1:])
        elif op == "s_waitcnt": self.kind = "wait"
        elif op == "s_nop": self.kind = "nop"
        elif op == "s_barrier": self.kind = "barrier"
        elif op.startswith(("s_cbranch", "s_branch", "s_endpgm", "s_sleep", "s_setprio")):
            self.kind = "ctl"
            if "vcc" in op: self.rd = regs_of("vcc")
        elif op.startswith(("s_cmp", "s_bitcmp")):
            self.kind = "salu"; self.rd = flat(R)
        elif op.startswith("s_"):
            self.kind = "salu"; self.wr = R[0]; self.rd = flat(R[1:])
            if "saveexec" in op: self.wr = self.wr + [("s", "exec")]
        elif op == "WAITTOK":
            self.kind = "waittok"; self.cost = 1
        elif op == "MARK":
            self.kind = "gap"; self.cost = 0
        elif op == "GAP":
            self.kind = "gap"; self.cost = 0
        else:
            raise ValueError("unknown instruction: " + text)
        if op.startswith("v_cndmask") and len(ops) == 3: self.rd = self.rd + regs_of("vcc")

class Stream(list):
    def __call__(self, s, tok=None, cond=False, glue=False):
        l = [Ins(x, tok, cond) for x in s.split("\n") if x.strip()]
        if glue:
            for i in l[:-1]: i.glue = True
        self.extend(l)
        return self
    def waittok(self, *toks, ahead=0, lat=None):
        i = Ins("WAITTOK"); i.tok = toks; i.ahead = ahead; i.lat = lat; self.append(i)
    def need(self, name):
        i = Ins("MARK"); i.op = "NEED"; i.tok = name; self.append(i)
    def mark(self, name):
        i = Ins("MARK"); i.tok = name; self.append(i)
    def gap(self, n):
        i = Ins("GAP"); i.tok = n; self.append(i)

VM = ("vld", "vst", "dma")
class Haz:
    SW = 4
    def __init__(self):
        self.last_w = {}; self.last_c = {}; self.last_sd = {}
    def need(self, ins, pos):
        last_w, last_c, last_sd = self.last_w, self.last_c, self.last_sd
        k = ins.kind
        need = 0
        def dist(p, n):
            nonlocal need
            need = max(need, n - (pos - p - 1))
        isv = k in ("valu", "trans")
        for r in ins.rd:
            if r not in last_w: continue
            p, pk, ps, pi = last_w[r]
            if pk == "mfma":
                if k == "mfma":
                    if r in ins.srcc and pi.wr == ins.srcc and ps == ins.passes and ins.rd.count(r) == 1: pass
                    elif r in ins.srcc and ins.rd.count(r) == 1: dist(p, ps + 2)
                    else: dist(p, ps + 4)
                else: dist(p, ps + 4)
            elif pk in ("valu", "trans"):
                if r[0] in "va":
                    if k == "mfma": dist(p, 2)
                    if pk == "trans" and isv: dist(p, 1)
                    if "_dpp" in ins.op or ins.op.startswith("v_permlane"): dist(p, 2)
                    if ins.op.startswith(("v_readlane", "v_readfirstlane")): dist(p, 1)
                    if pi.op.startswith("v_dot") and not (pi.op == ins.op and ins.rd.count(r) == 1 and r in ins.wr): dist(p, 3)
                    if ("sdwa" in pi.op or "op_sel" in pi.text) and isv: dist(p, 1)
                else:
                    if k in VM: dist(p, 5)
                    elif isv: dist(p, 4 if ins.op.startswith(("v_readlane", "v_writelane")) else 2)
                    elif k in ("salu", "ctl", "smem"): dist(p, Haz.SW)
            elif pk == "salu":
                if r == ("s", "m0") and k == "dma": dist(p, 1)
        for r in ins.wr:
            if r in last_w:
                p, pk, ps, pi = last_w[r]
                if pk == "mfma" and k != "mfma": dist(p, ps + 4)
                if pk == "mfma" and k == "mfma" and not (pi.wr == ins.wr and ps == ins.passes): dist(p, ps + 4)
                if pi.op.startswith("v_dot") and pi.op != ins.op: dist(p, 3)
            if r in last_c and k != "mfma":
                p, ps = last_c[r]; dist(p, ps - 1)
            if r in last_sd: dist(last_sd[r], 2)
        if ("s", "exec") in last_w and last_w[("s", "exec")][1] in ("valu", "trans"):
            raise ValueError("VALU exec write not modelled")
        return need
    def commit(self, ins, pos):
        for r in ins.wr: self.last_w[r] = (pos, ins.kind, ins.passes, ins)
        if ins.kind == "mfma":
            for r in ins.srcc: self.last_c[r] = (pos, ins.passes)
        if ins.wide_store:
            for r in ins.sdata: self.last_sd[r] = pos

def finalize(stream, stats=None):
    out = []
    vm_n = 0; lg_n = 0
    vm_done = 0; lg_done = 0
    pend_vm = {}; pend_lg = {}
    smem_pend = set()
    toks = {}
    pos = 0
    hz = Haz()
    nnop = 0; nwait = 0
    def emit(t):
        out.append(t)
    for ins in stream:
        k = ins.kind
        if k == "gap": continue
        if k == "label":
            emit(ins.text); continue
        need_vm = None; need_lg = None
        if k == "waittok":
            for t in ins.tok:
                c, idx = toks[t]
                if c == "vm": need_vm = max(need_vm or 0, idx)
                else: need_lg = max(need_lg or 0, idx)
        else:
            for r in ins.rd + ins.wr:
                if r in pend_vm: need_vm = max(need_vm or 0, pend_vm[r])
                if r in pend_lg: need_lg = max(need_lg or 0, pend_lg[r])
                if r in smem_pend: need_lg = 1 << 30
            if k == "vld" and "d16" in ins.op:
                need_vm = None
                for r in ins.rd:
                    if r in pend_vm and r not in ins.wr: need_vm = max(need_vm or 0, pend_vm[r])
        w = []
        if need_vm is not None and need_vm > vm_done:
            n = min(vm_n - need_vm, 63); w.append("vmcnt(%d)" % n)
            if not ins.cond: vm_done = vm_n - n
        if need_lg is not None and (need_lg > lg_done or need_lg == 1 << 30):
            if smem_pend or need_lg == 1 << 30: n = 0
            else: n = min(lg_n - need_lg, 15)
            w.append("lgkmcnt(%d)" % n)
            if not ins.cond:
                lg_done = lg_n - n
                if n == 0: smem_pend = set()
        if w:
            emit("s_waitcnt " + " ".join(w)); nwait += 1
            if not ins.cond: pos += 1
        pend_vm = {r: i for r, i in pend_vm.items() if i > vm_done}
        pend_lg = {r: i for r, i in pend_lg.items() if i > lg_done}
        if k == "waittok": continue
        if k == "wait":
            if not ins.cond:
                m = re.search(r"vmcnt\((\d+)\)", ins.text)
                if m: vm_done = max(vm_done, vm_n - int(m.group(1)))
                m = re.search(r"lgkmcnt\((\d+)\)", ins.text)
                if m:
                    if int(m.group(1)) == 0: smem_pend = set(); lg_done = lg_n
                    elif not smem_pend: lg_done = max(lg_done, lg_n - int(m.group(1)))
                pend_vm = {r: i for r, i in pend_vm.items() if i > vm_done}
                pend_lg = {r: i for r, i in pend_lg.items() if i > lg_done}
        need = hz.need(ins, pos)
        while need > 0:
            n = min(need, 16); emit("s_nop %d" % (n - 1)); nnop += n; need -= n
            if not ins.cond: pos += n
        emit(ins.text)
        hz.commit(ins, pos)
        if not ins.cond:
            if k in VM:
                vm_n += 1
                for r in ins.wr: pend_vm[r] = vm_n
                if ins.tok is not None: toks[ins.tok] = ("vm", vm_n)
            elif k in ("dsr", "dsw"):
                lg_n += 1
                for r in ins.wr: pend_lg[r] = lg_n
                if ins.tok is not None: toks[ins.tok] = ("lg", lg_n)
            elif k == "smem":
                smem_pend |= set(ins.wr)
            if k == "nop": pos += int(ins.text.split()[1]) + 1
            else: pos += 1
    if stats is not None:
        stats["nops"] = nnop; stats["waits"] = nwait; stats["n"] = len(out)
    return out

def merge(main, fill, budget=None, out=None, minb=7.0):
    out = Stream() if out is None else out
    if budget is None:
        tot = sum(i.cost for g in main for i in g) + sum(i.cost for i in fill)
        nm = len(main) + sum(1 for i in fill if i.kind == "mfma")
        budget = max(minb, tot / nm + 0.15)
    fi = 0; gap = 0; credit = 0.0
    for g in main:
        c = 0
        for ins in g:
            out.append(ins); c += ins.cost
            if ins.cost: gap = max(0, gap - 1)
        credit += budget - c
        while fi < len(fill) and (credit > 0 or (fi and fill[fi - 1].glue)):
            f = fill[fi]
            if f.op == "GAP":
                gap = f.tok; fi += 1; continue
            if gap > 0: break
            out.append(f); fi += 1
            if f.kind == "mfma": credit += budget - f.cost
            else: credit -= f.cost
        if fi >= len(fill): credit = min(credit, 0.0)
        elif gap > 0: credit = min(credit, 4.0)
    rest = Stream(fill[fi:])
    return out, rest

class Bg:
    def __init__(self, text, tok=None, after=None, sp=None):
        self.ins = Stream(); self.ins(text, tok=tok); self.tok = tok; self.after = after; self.sp = sp

SCC_USERS = ("s_cbranch_scc", "s_cselect", "s_addc", "s_subb")
def weave(fg, bg, spacing=66, log=None):
    out = Stream(); marks = set(); bi = 0; t = 0.0; pipe = 0.0; last = -1e9
    lasttok = {}
    for k, b in enumerate(bg):
        if b.tok is not None: lasttok[b.tok] = k
    issued_t = {}
    def ready(): return bi < len(bg) and (bg[bi].after is None or bg[bi].after in marks)
    def emit_bg(forced=False):
        nonlocal bi, t, last
        b = bg[bi]
        if forced: t = max(t, last + (b.sp or spacing))
        out.extend(b.ins); t += 4 * len(b.ins); last = t; issued_t[bi] = t; bi += 1
    n = len(fg)
    for idx, ins in enumerate(fg):
        if ins.op == "MARK":
            marks.add(ins.tok)
            if log is not None: log.append("mark %s t=%d bg=%d" % (ins.tok, t, bi))
            continue
        if ins.kind == "waittok":
            ks = [lasttok[x] for x in ins.tok if x in lasttok]
            if ks:
                need = max(ks); nf = 0
                while bi <= need:
                    assert ready(), ("background op blocked", ins.tok, bg[bi].after)
                    emit_bg(True); nf += 1
                while bi <= need + ins.ahead and ready(): emit_bg(True)
                if log is not None: log.append("wait %s t=%d slack=%d forced=%d" % (ins.tok, t, t - issued_t[need], nf))
        out.append(ins)
        if ins.kind == "mfma":
            t = max(t, pipe); pipe = t + 4 * ins.passes; t += 8
        elif ins.op == "ds_read_b128": t += 6
        elif ins.kind == "nop": t += 4 * (int(ins.text.split()[1]) + 1)
        else: t += 4 * ins.cost
        if ins.kind in VM and not ins.cond: last = t
        if ins.glue or ins.kind == "label": continue
        nx = [x for x in fg[idx + 1:idx + 4] if x.kind != "gap"]
        if nx and (nx[0].cond or nx[0].kind == "label"): continue
        if any(x.op.startswith(SCC_USERS) for x in nx[:2]): continue
        if ready() and t >= last + (bg[bi].sp or spacing):
            inm = pipe > t - 40
            good = (not inm) or (ins.kind in ("mfma", "dsr") and not (nx and nx[0].kind == "dsr"))
            if good: emit_bg()
    assert bi == len(bg), "background ops left over"
    if log is not None: log.append("end t=%d" % t)
    return out


class TL:
    def __init__(self, spacing=66, vlat=650, llat=130):
        self.out = Stream(); self.bg = []; self.bi = 0; self.marks = set()
        self.t = 0.0; self.pipe = -1000.0; self.last = -1e9; self.pos = 0; self.hz = Haz()
        self.spacing = spacing; self.vlat = vlat; self.llat = llat
        self.tokt = {}; self.log = []; self.free = 0; self.forced = 0; self.ta = 0; self.m16 = False; self.pen = 4; self.hold = 0; self.vpen = 6; self.lw = 0; self.watch = None; self.seen = set()
    def B(self, text, tok=None, after=None, sp=None): self.bg.append(Bg(text, tok, after, sp))
    def lastbg(self, tok):
        k = None
        for i, b in enumerate(self.bg):
            if b.tok == tok: k = i
        return k
    def bg_ready(self):
        return self.bi < len(self.bg) and (self.bg[self.bi].after is None or self.bg[self.bi].after in self.marks)
    def bg_due(self):
        if not self.bg_ready(): return False
        b = self.bg[self.bi]
        return self.t + 4 * (len(b.ins) - 1) >= self.last + (b.sp or self.spacing)
    def emit_bg(self, forced=False):
        b = self.bg[self.bi]; self.bi += 1
        for i in b.ins[:-1]: self.raw(i)
        self.raw(b.ins[-1])
    def raw(self, ins):
        n = self.hz.need(ins, self.pos)
        if n > 0 and not ins.cond: self.t += 4 * n; self.pos += n
        self.out.append(ins)
        self.hz.commit(ins, self.pos)
        if ins.cond or ins.kind == "label": return
        k = ins.kind
        if k == "mfma":
            self.t = max(self.t, self.pipe); self.pipe = self.t + 4 * ins.passes; self.t += 8; self.free = -1 if (ins.passes == 8 or not self.m16) else 0
        elif k in ("dsr", "dsw") or k in VM:
            if self.free == -1: self.t += self.pen; self.free = 1 if self.pen else 0
            elif self.free == -2: self.t += self.vpen if k in VM else 6; self.free = 0
            if ins.op == 'ds_write_b128': self.t = max(self.t, self.lw); self.lw = self.t + 52
            if k in VM:
                self.t = max(self.t, self.ta); self.ta = self.t + (64 if ins.op.endswith('x4') else 24); self.last = self.t
            self.t += 4
        elif k == "nop": self.t += 4 * (int(ins.text.split()[1]) + 1)
        elif k in ("salu", "wait", "waittok", "ctl", "smem", "barrier"):
            if self.free == 1: self.free = 0
            else: self.t += 4
            if k == "barrier": self.t += 12
        else:
            self.t += 4 * ins.cost
            if self.free != 1: self.free = -2
        if k == "nop": self.pos += int(ins.text.split()[1]) + 1
        elif k != "waittok": self.pos += 1
        if ins.tok is not None and k != "waittok": self.tokt[ins.tok] = (self.t, k in VM)
    def tok_time(self, ins):
        r = 0
        for x in ins.tok:
            k = self.lastbg(x)
            if (k is not None and k >= self.bi) or x not in self.tokt: return 1e18
            t0, vm = self.tokt[x]
            r = max(r, t0 + (ins.lat if ins.lat is not None else (self.vlat if vm else self.llat)))
        return r
    def tok_ready(self, ins):
        for x in ins.tok:
            k = self.lastbg(x)
            if k is not None and k >= self.bi: return False
            t0, vm = self.tokt[x]
            if self.t < t0 + (ins.lat if ins.lat is not None else (self.vlat if vm else self.llat)): return False
        return True
    def emit(self, ins):
        if ins.op == "MARK":
            self.marks.add(ins.tok); self.log.append("mark %s t=%d bg=%d" % (ins.tok, self.t, self.bi)); return
        if ins.op == "NEED":
            assert ins.tok in self.marks, ins.tok; return
        if ins.op == "GAP": return
        if ins.kind == "waittok":
            ks = [k for k in (self.lastbg(x) for x in ins.tok) if k is not None]
            nf = 0
            if ks:
                need = max(ks)
                while self.bi <= need:
                    assert self.bg_ready(), ("background op blocked", ins.tok, self.bg[self.bi].after)
                    self.emit_bg(True); nf += 1
                while self.bi <= need + ins.ahead and self.bg_ready(): self.emit_bg(True)
            t0 = max(self.tokt[x][0] for x in ins.tok); vm = any(self.tokt[x][1] for x in ins.tok)
            if vm: self.log.append("wait %s t=%d slack=%d forced=%d" % (ins.tok, self.t, self.t - t0, nf))
            self.t = max(self.t, t0 + (500 if vm else 100))
            nm = "".join(map(str, ins.tok[0])) if isinstance(ins.tok[0], tuple) else str(ins.tok[0])
            if self.watch and nm not in self.seen:
                self.seen.add(nm)
                a = self.watch("<" + nm); b = self.watch(">" + nm)
                if a: self.out.append(Ins(a))
                self.raw(ins)
                if b: self.out.append(Ins(b))
                return
        self.raw(ins)
    def straight(self, fg):
        for idx, ins in enumerate(fg):
            self.emit(ins)
            if ins.glue or ins.kind in ("label", "gap"): continue
            nx = [x for x in fg[idx + 1:idx + 4] if x.kind != "gap"]
            if nx and (nx[0].cond or nx[0].kind == "label"): continue
            if any(x.op.startswith(SCC_USERS) for x in nx[:2]): continue
            if self.bg_due():
                inm = self.pipe > self.t - 40
                if (not inm) or (ins.kind in ("mfma", "dsr") and not (nx and nx[0].kind == "dsr")): self.emit_bg()
    def sched(self, M, Fs, nds=2):
        mi = 0; fi = [0] * len(Fs)
        def head(k):
            F = Fs[k]
            while fi[k] < len(F):
                x = F[fi[k]]
                if x.op == "MARK": self.emit(x); fi[k] += 1
                elif x.op == "GAP" or (x.op == "NEED" and x.tok in self.marks): fi[k] += 1
                elif x.op == "NEED": return None
                else: return x
            return None
        def take(k):
            F = Fs[k]
            while True:
                x = F[fi[k]]; fi[k] += 1; self.emit(x)
                nxt = F[fi[k]] if fi[k] < len(F) else None
                if x.op == "OKLABEL" or not (x.glue or x.kind == "label" or (nxt is not None and (nxt.cond or nxt.kind == "label" or nxt.op.startswith(SCC_USERS)))): break
            head(k)
        def ready(x):
            if x.kind == "waittok": return self.tok_ready(x)
            if x.op == "ds_write_b128" and max(self.t + 6, self.pipe) < self.lw: return False
            return self.hz.need(x, self.pos) <= 0
        def mstate():
            if mi >= len(M): return 0
            st = 2; npre = 0
            for x in M[mi]:
                if x.op == "NEED":
                    if x.tok not in self.marks: return 0
                elif x.kind == "waittok":
                    if not self.tok_ready(x): st = 1
                elif x.kind == "mfma":
                    if self.hz.need(x, self.pos + npre) > 0: st = 1
                    break
                elif x.kind != "gap": npre += 1
            return st
        def window(n):
            for k in range(len(Fs)):
                while n > 0:
                    x = head(k)
                    if x is not None and x.kind == "waittok" and ready(x) and fi[k] + 1 < len(Fs[k]) and Fs[k][fi[k] + 1].kind == "dsr":
                        take(k); continue
                    if x is None or x.kind not in ("dsr", "vst", "dsw") or not ready(x): break
                    take(k); n -= 2 if x.op == 'ds_read_b128' else 1
            if self.bg_due(): self.emit_bg()
        while True:
            hs = [head(k) for k in range(len(Fs))]
            if mi >= len(M) and all(fi[k] >= len(Fs[k]) for k in range(len(Fs))): break
            ms = mstate()
            fm = next((k for k, x in enumerate(hs) if x is not None and x.kind == "mfma" and ready(x)), None)
            def do_m():
                nonlocal mi
                for x in M[mi]: self.emit(x)
                mi += 1
                if getattr(M[mi - 1], "small", False):
                    if self.bg_due(): self.emit_bg(); window(M[mi - 1].small - 1)
                    else: window(M[mi - 1].small)
                else: window(nds + (0 if any(y.kind == 'dsr' for y in M[mi - 1]) else 2))
            def do_fm():
                p = hs[fm].passes; take(fm); window(nds if p == 8 else 1)
            if self.t > self.pipe - 4:
                if fm is not None: do_fm(); continue
                if ms == 2: do_m(); continue
            f = next((k for k, x in enumerate(hs) if x is not None and x.kind not in ("mfma", "dsr", "vst", "dsw") and ready(x)), None)
            idle = ms != 2 and fm is None
            if idle and (f is None or mi >= len(M)):
                f = next((k for k, x in enumerate(hs) if x is not None and x.kind != "mfma" and ready(x)), None)
            if f is not None:
                take(f)
                if idle and self.pipe <= self.t and self.bg_due():
                    paced = mi < len(M) and any(y.op == "NEED" and y.tok not in self.marks and y.tok[0] == "ep" for y in M[mi])
                    if not (self.hold and (mstate() == 2 or (paced and self.t < self.last + self.hold))): self.emit_bg()
                continue
            if True:
                nd = [self.hz.need(x, self.pos) for x in hs if x is not None and x.kind != "waittok"]
                nd = [n for n in nd if n > 0]; room = int((self.pipe - self.t) // 4)
                if nd and room >= 1:
                    self.raw(Ins("s_nop %d" % (min(min(nd), room) - 1))); continue
            if fm is not None: do_fm(); continue
            if ms == 2: do_m(); continue
            f = next((k for k, x in enumerate(hs) if x is not None and x.kind != "waittok"), None)
            if f is not None: self.forced += 1; take(f); continue
            if self.bg_ready(): self.emit_bg(True); continue
            cand = [(self.tok_time(x), k) for k, x in enumerate(hs) if x is not None]
            if ms == 1: cand.append((max([self.tok_time(x) for x in M[mi] if x.kind == "waittok"] + [0]), -1))
            assert cand, ("schedule is stuck", mi, [Fs[k][fi[k]].tok for k in range(len(Fs)) if fi[k] < len(Fs[k])])
            tt, f = min(cand)
            assert tt < 1e17, ("schedule is stuck", mi, [Fs[k][fi[k]].tok for k in range(len(Fs)) if fi[k] < len(Fs[k])], self.bg[self.bi].after)
            if tt > self.t: self.log.append("idle %d at t=%d" % (tt - self.t, self.t)); self.t = tt
            if f < 0: do_m()
            else: take(f)


def align_pass(lines, mode=1, lam=0.3):
    import subprocess, tempfile, os
    d = tempfile.mkdtemp()
    open(d + "/a.s", "w").write('.amdgcn_target "amdgcn-amd-amdhsa--gfx950"\n.text\n' + "\n".join(l for l in lines if not l.startswith(".")) + "\n")
    subprocess.run(["clang", "-x", "assembler", "-target", "amdgcn-amd-amdhsa", "-mcpu=gfx950", "-c", d + "/a.s", "-o", d + "/a.o"], check=True)
    dis = subprocess.run(["llvm-objdump", "-d", "--mcpu=gfx950", d + "/a.o"], capture_output=True, text=True).stdout
    sizes = [4 * len(re.findall(r"\b[0-9A-F]{8}\b", l.split("//")[1].split(":", 1)[1])) for l in dis.split("\n") if "//" in l]
    idx = [i for i, l in enumerate(lines) if not l.endswith(":") and not l.startswith(".")]
    assert len(idx) == len(sizes), (len(idx), len(sizes))
    size = dict(zip(idx, sizes))
    bad = (lambda o: o == 28) if mode == 1 else (lambda o: (1.0 if o == 28 else 0.25) if o % 8 else 0)
    INF = 1e18
    cost = [0.0] + [INF] * 7; back = []
    for i, l in enumerate(lines):
        nc = [INF] * 8; b = [None] * 8
        for s in range(8):
            if cost[s] >= INF: continue
            if l.startswith(".p2align"): opts = [(0, cost[s], 0)]
            elif i not in size: opts = [(s, cost[s], 0)]
            else:
                z = size[i]; opts = [((s + z // 4) % 8, cost[s] + (bad(4 * s) if z >= 8 else 0), 0)]
                op = l.split()[0]
                if z == 4 and op.startswith("v_") and not op.startswith(("v_readfirstlane", "v_nop")):
                    opts.append(((s + 2) % 8, cost[s] + lam + bad(4 * s), 1))
            for ns, c, p in opts:
                if c < nc[ns]: nc[ns] = c; b[ns] = (s, p)
        cost = nc; back.append(b)
    s = min(range(8), key=lambda k: cost[k]); out = list(lines); n = 0
    for i in range(len(lines) - 1, -1, -1):
        s, p = back[i][s]
        if p:
            w = out[i].split(None, 1); out[i] = w[0] + "_e64 " + w[1]; n += 1
    return out, n, min(cost)


def instr_sizes(lines):
    import subprocess, tempfile
    d = tempfile.mkdtemp()
    open(d + "/a.s", "w").write('.amdgcn_target "amdgcn-amd-amdhsa--gfx950"\n.text\n' + "\n".join(l for l in lines if not l.startswith(".")) + "\n")
    subprocess.run(["clang", "-x", "assembler", "-target", "amdgcn-amd-amdhsa", "-mcpu=gfx950", "-c", d + "/a.s", "-o", d + "/a.o"], check=True)
    dis = subprocess.run(["llvm-objdump", "-d", "--mcpu=gfx950", d + "/a.o"], capture_output=True, text=True).stdout
    sz = [4 * len(re.findall(r"\b[0-9A-F]{8}\b", l.split("//")[1].split(":", 1)[1])) for l in dis.split("\n") if "//" in l]
    it = iter(sz); out = [0 if (l.endswith(":") or l.startswith(".")) else next(it) for l in lines]
    assert next(it, None) is None
    return out

def align_dp(lines, sizes, start, lam):
    INF = 1e18
    cost = [INF] * 8; cost[(start // 4) % 8] = 0.0; back = []
    for l, z in zip(lines, sizes):
        nc = [INF] * 8; b = [None] * 8
        for s in range(8):
            if cost[s] >= INF: continue
            opts = [((s + z // 4) % 8, cost[s] + (1 if (z >= 8 and s == 7) else 0), 0)]
            if z == 4 and l.startswith("v_") and not l.startswith(("v_readfirstlane", "v_nop")):
                opts.append(((s + 2) % 8, cost[s] + lam + (1 if s == 7 else 0), 1))
            for ns, c, p in opts:
                if c < nc[ns]: nc[ns] = c; b[ns] = (s, p)
        cost = nc; back.append(b)
    s = min(range(8), key=lambda k: cost[k]); pro = [0] * len(lines)
    for i in range(len(lines) - 1, -1, -1): s, pro[i] = back[i][s]
    return pro

def layout(lines, sizes, lam, pad=None, start=0):
    out = []; off = start; k = 0; i = 0
    while i < len(lines):
        pro = align_dp(lines[i:], sizes[i:], off, lam); j = 0
        while i + j < len(lines) and not (pad and off >= 4096 * (k + 1) and 's_endpgm' not in out):
            l = lines[i + j]
            if pro[j]: w = l.split(None, 1); l = w[0] + "_e64 " + w[1]
            out.append(l); off += sizes[i + j] + 4 * pro[j]; j += 1
        i += j
        if i < len(lines): out += pad(k); off += 4; k += 1
    return out, k
```

```python
import sys, struct, os, re
from asmlib import module
from backend import *

NAME = "parallel_sum__linear_kernel_hedgehog__dense_activation_gelu__prompt"
def f2u(x): return "0x%x" % struct.unpack("<I", struct.pack("<f", x))[0]
LOG2E = 1.4426950408889634
K0 = -2.0 * LOG2E * 0.7978845608028654

WS_G = 0; WS_FL1 = 0x1000; WS_FL2 = 0x3000; WS_STATS = 0x8000; WS_KVP = 0x40000; WS_ACT = 0x200000
KVREC = 17 * 1024; TBSTR = 118 * 1024; WS_STAMP = 0x1000000
TAGC = 0x9E3779B9
R = [0, 32768, 65536, 98304, 131072]
SCR = R[3] + 16384
FFN_BLK0 = [0, 6, 11, 16, 22, 27, 32, 38]
FFN_NBLK = [6, 5, 5, 6, 5, 5, 6, 5]
SBL = [[4, 5, 10], [15, 20, 21], [26, 31, 43], [36, 37, 42]]
def pack(l): return "0x%x" % sum(b << (8 * i) for i, b in enumerate(l))

sX, sW, sWS, sW2, sWo, sOut, sAux, sB2 = ("s[%d:%d]" % (i, i + 3) for i in (8, 12, 16, 20, 24, 28, 32, 36))
sM, sN = "s0", "s1"
sWV, sT, sJ, sU, sI = "s3", "s4", "s5", "s6", "s7"
sROT, sQ4, sTT, sCB, sFL, sSTB = "s64", "s65", "s66", "s67", "s68", "s69"
sA, sB, sC, sD = "s70", "s71", "s72", "s73"
sXB = ["s74", "s75", "s76", "s77"]
sAB = ["s78", "s79", "s80", "s81"]
sXK = ["s82", "s83"]; sSO = ["s84", "s85"]
sBA, sBB = "s86", "s87"; sBS = ["s88", "s89", "s90"]
sPCOL, sW8K, sW16K = "s91", "s92", "s93"
sBLKP, sBLKS = "s94", "s95"; sFK = "s95"; sHD = sHK = "s6"
sE0, sE1 = "s96", "s97"
sPAR = "s[98:99]"
STAMPR = [60, 40, 42, 44, 50, 52, 46, 54, 62, 56, 58, 48]

class VA:
    def __init__(self, start=1): self.n = start
    def __call__(self, k=1, al=1):
        self.n = (self.n + al - 1) // al * al
        r = self.n; self.n += k
        assert self.n <= 256, "out of VGPRs"
        return r
def v(i, k=1): return "v%d" % i if k == 1 else "v[%d:%d]" % (i, i + k - 1)
def ag(i, k=1): return "a%d" % i if k == 1 else "a[%d:%d]" % (i, i + k - 1)
MF = "v_mfma_f32_32x32x16_bf16"; MF16 = "v_mfma_f32_16x16x32_bf16"
DPPM = "row_mask:0xf bank_mask:0xf"

def srd(s, d, p, n):
    d0 = int(d[2:].split(":")[0])
    s(f"s_mov_b32 s{d0}, s{p}\ns_mov_b32 s{d0+1}, s{p+1}\ns_mov_b32 s{d0+2}, {n}\ns_mov_b32 s{d0+3}, 0x20000")

class Gen:
    def __init__(self, **opt):
        self.o = dict(stamps=False, warm=0, outsc1=True, sp=54, sp1=48, ahead=10, log=False, umode=0, vlat=600, stlat=650,
                      ah0=0, s0p=7, pgo=0, c1l=0, pa=1, po=0, pad=2, ro=0, pf=6, tw=0, blag=0, bhalf=20, t1=0, t1s=0, spaA=72, ah2A=2, p2eA=3, spo=72, aho=2, spoA=48, ahoA=8, xb2=0, opk=0, ofirst=0, gpk=0, warmb=4, phl=1, a1=5, a2=15, a3=26, b2=17, b3=27, srot=1, xrot=1, wrot=0, sg=200, sv=1, x1l=650, NP=20, bh=100, vpen=6, llat=130, tlb=0, tlbp=0, z5=1, cbx=2, wA=0, wq=0, hsw=2, gq=4, pk=1, kz=1, xlate=0, sg0=0, sg1=0, al=1, lam=10, spx=56, spx3=64, sps0=64, sps1=56, spw0=80, spw1=64, ssplit=3, xord=0, rord=1, fpace=18, priof=0, nds2=1, p1v=1, s1=7, x2a="b5", xa=1, npc=2, nP=16, p2hold=1, spa=72, p2e=3, stlat2=600, qx=4, nq=2, plat0=0, plat=0, sp0=24, warmc=1, stag=1, warmf=0, wsp=180, wpos=0, wpos2=6, cbmix=0, warmm=2, sw=0, px=1, slpK=0, ah0b=6, lag=2, s0=4, slp=0, slat=750, wlat=700, wlat0=1100, nE=4, pace=3, kvpace=8, kvhold=99, hold=0, kvl=6, prio=1, fSa=5, fS=6, fO=8, fOf=10, ah2=4, fo=2)
        self.o.update(opt); self.uid = 0
        Haz.SW = self.o["hsw"]
        global TBSTR, WS_ACT
        TBSTR = 118 * 1024 + self.o.get("tbpad", 0); WS_ACT = 0x200000 + self.o.get("actoff", 0)
    def lab(self, p):
        self.uid += 1; return "L_%s_%d" % (p, self.uid)
    def stamp(self, s, name):
        if self.o.get("dly") == name and self.o.get("dr", self.cur) == self.cur:
            s("s_sleep 8"); s[-1].cost = 0
        if not self.o["stamps"]: return
        names = str(self.o.get("st", "x0,b0,p1,u1,u2,u3,u4,u5,q,o,mm14,red")).split(",")
        if name in names:
            r = STAMPR[names.index(name)]; s(f"s_memrealtime s[{r}:{r+1}]")
        if "c:" + name in names:
            r = STAMPR[names.index("c:" + name)]; s(f"s_memtime s[{r}:{r+1}]")

    def role(self, role):
        kP = role == "att"; qS = not kP; o = self.o; self.cur = role
        tl = TL(o["sp"], o["vlat"]); B = tl.B
        def watch(name):
            x = Stream(); self.stamp(x, name); return x[0].text if x else None
        tl.watch = watch; tl.m16 = True; tl.pen = o.get("pen", 0); tl.hold = o["bh"]; tl.vpen = o["vpen"]; tl.llat = o["llat"]
        s = Stream(); a = VA(1)
        stride, strS = (3072, 2752) if kP else (2752, 3072)
        vL16 = a(); vXD0 = a(); vXD = a(4); vOUT = a(); vTAG = a(2, 2); vN16 = a(); vXR = a(4); vSR = a()
        vT0 = a(1, 2); vT1 = a(); vT2 = a(); vT3 = a()
        vSD = a(4); vWD = a(4); vPR = vWD + 1; vWR = a(2); vFL = a(2, 2); vFA = a(); vZ = a()
        vAA = vXD; vWQ = vSD
        assert vXD == 3
        vKA = a(2)
        XR = a(8, 4); B2 = a(4, 4)
        ACC = [a(16, 4), a(16, 4)]; NX = 8; XF = a(4 * NX, 4)
        CA = [a(4, 4), a(4, 4)]; ST = a(16, 4); CBS = a(4, 4); CS = a(4, 4); CSEL = a(4, 4); vPD = CBS
        KC = [a(3) for _ in range(4)]; KCS = a(3); vB1 = a()
        F4 = a(4, 4); F8a = a(8, 4); TA = a(16, 4); G4 = F4
        if kP:
            ONES = a(4, 4); SEL = [a(4, 4), a(4, 4)]; F8b = a(8, 4); PHI = [a(4, 4)]; KV = a(16, 4); TB = a(16, 4); HO = F8b
        else:
            SEL = [a(4, 4)]; F8b = a(4, 4); PHI = [a(4, 4), a(4, 4)]; PF = a(32, 4); HO = F8a
        vJ = a(4)
        sys.stderr.write("%s VGPRs: %d\n" % (role, a.n))
        if kP:
            o = dict(o)
            for k in ("spa", "ah2", "p2e", "spo", "aho"): o[k] = o[k + "A"]
        sp1 = o["sp1"]; abl = str(o.get("abl", ""))
        tmp = ACC[0]
        def run4(pre, vb, srdn, tok, after, sp=None, so=sM):
            for q in range(4):
                B(f"{pre if q == 0 else ''}\nbuffer_load_dwordx4 {v(vb+q)}, {srdn}, {so} offen offset:{1024*q} lds", tok, after, sp)
        def dma_x(i, after, sp=None, ks=(0, 1)):
            for k in ks:
                pre = f"s_add_u32 m0, {sW8K}, {R[i]+k*4096}"
                if i and o["xrot"]:
                    pre = f"s_xor_b32 m0, {sXB[0]}, {R[i]+k*4096}"
                    if (i, k) == (2, 0):
                        pre = (f"s_bitcmp1_b32 {sI}, {o['xrot']-1}\ns_cselect_b32 {sM}, {sXK[1]}, {sXK[0]}\ns_cselect_b32 {sXK[1]}, {sXK[0]}, {sXK[1]}\ns_cselect_b32 {sXB[0]}, 0x1000, 0\n"
                               f"s_mov_b32 {sXK[0]}, {sM}\ns_or_b32 {sXB[0]}, {sXB[0]}, {sW8K}\n") + pre
                run4(pre + f"\ns_add_u32 {sM}, {sXB[i]}, {sXK[k]}", vXD, sX, ("x", i), after, sp)
        def dma_xp(r, after, sp):
            pre = "" if r == 0 else f"s_add_u32 {sXK[1]}, {sXK[1]}, 256\ns_and_b32 {sXK[1]}, {sXK[1]}, 0x380\n"
            run4(pre + f"s_add_u32 m0, {sXK[0]}, {8192*r}\ns_add_u32 {sM}, {sXB[1]}, {sXK[1]}", vXD, sX, ("xp", r), after, sp)
        PSL = [R[4], R[4] + 16384, R[2], R[2] + 16384, R[3], R[3] + 16384, R[4], R[4] + 16384]
        s("s_cmp_ge_u32 s2, 256\ns_cbranch_scc1 L_end")
        sk = int(os.environ.get("SKEW", "0")) if o["stamps"] else 0
        if sk:
            s(f"s_xor_b32 s4, s2, 7\ns_and_b32 s4, s4, 7\ns_mul_i32 s4, s4, {sk}\nL_sk:\ns_cmp_eq_u32 s4, 0\ns_cbranch_scc1 L_skd\ns_sleep 1\ns_sub_u32 s4, s4, 1\ns_branch L_sk\nL_skd:")
        s("s_load_dwordx16 s[40:55], s[0:1], 0\ns_load_dwordx8 s[56:63], s[0:1], 64")
        if o["stamps"]: s("s_memrealtime s[100:101]")
        s(f"s_lshr_b32 {sI}, s2, 3")
        if o["warmc"] == 1:
            s(f"s_getpc_b64 s[72:73]\nL_pc:\ns_sub_u32 s72, s72, L_pc-{NAME}_kernel\ns_subb_u32 s73, s73, 0", glue=True)
            s(f"s_lshl_b32 {sA}, {sI}, 11\nv_lshrrev_b32 v1, 4, v0\nv_lshl_add_u32 v1, v1, 7, {sA}\nv_min_u32 v1, L_end-{NAME}_kernel, v1")
            s(f"global_load_dword {v(XR+4)}, v1, s[72:73]")
        s(f"v_lshrrev_b32 v1, 6, v0\nv_and_b32 v0, 63, v0\nv_readfirstlane_b32 {sWV}, v1\nv_lshlrev_b32 v1, 4, v0")
        s(f"s_and_b32 {sA}, s2, 7\ns_lshr_b32 {sROT}, {sI}, 2\ns_and_b32 {sU}, {sI}, 3")
        s(f"s_and_b32 {sT}, {sA}, 1\ns_lshl3_add_u32 {sT}, {sT}, {sROT}\ns_lshr_b32 {sQ4}, {sA}, 1")
        if o.get("p2x", 1):
            s(f"s_andn2_b32 {sC}, 1, {sA}\ns_lshl2_add_u32 {sA}, {sC}, {sQ4}")
        s(f"s_lshr_b32 {sC}, {sI}, 3\ns_lshl2_add_u32 {sTT}, {sA}, {sC}")
        s(f"s_lshl2_add_u32 {sA}, {sT}, {sQ4}\ns_lshl_b32 {sXB[0]}, {sA}, 15")
        s(f"s_lshl2_add_u32 {sD}, {sU}, {sWV}\ns_lshl_b32 {sA}, {sD}, 11\ns_add_u32 {sSO[0]}, {sXB[0]}, {sA}")
        s(f"s_lshl_b32 {sSTB}, {sT}, 11\ns_add_u32 {sSTB}, {sSTB}, {WS_STATS}\ns_lshl4_add_u32 {sD}, {sQ4}, {sD}\ns_lshl_b32 {sD}, {sD}, 5\ns_add_u32 {sFL}, {sD}, {sSTB}")
        s(f"v_and_b32 {v(vOUT)}, 0x70, v1\nv_and_b32 v3, 0x30, v0\nv_xor_b32 v2, {v(vOUT)}, v3\nv_lshrrev_b32 v3, 3, v0\nv_lshl_add_u32 v3, v3, 10, v2")
        for q in range(3, 0, -1):
            s(f"v_xor_b32 {v(vXD+q)}, {64*(q&1)}, v3\nv_add_u32 {v(vXD+q)}, {7168*q}, {v(vXD+q)}")
        s(f"s_lshr_b32 {sB}, {sWV}, 1\ns_add_u32 {sA}, {sQ4}, {0 if 'n' in abl else sB}\ns_and_b32 {sA}, {sA}, 3\ns_lshl2_add_u32 {sA}, {sT}, {sA}\ns_lshl_b32 {sXB[1]}, {sA}, 15")
        s(f"s_and_b32 {sA}, {sWV}, 1\ns_lshl3_add_u32 {sB}, {sB}, {sA}\ns_lshl_b32 {sXK[0]}, {sB}, 12\ns_add_u32 {sA}, {sA}, {sROT}\ns_lshl_b32 {sA}, {sA}, 7\ns_and_b32 {sXK[1]}, {sA}, 0x380")
        s(f"s_mov_b32 s10, {2048*1024}\ns_mov_b32 s11, 0x20000\ns_mov_b32 s18, 0x10000000\ns_mov_b32 s19, 0x20000")
        def ppat():
            s(f"s_and_b32 {sJ}, {sU}, 1\ns_lshl1_add_u32 {sJ}, {sQ4}, {sJ}\ns_lshl_b32 {sE1}, {sWV}, 12")
            s(f"s_mov_b32 s70, {pack(FFN_BLK0[:4])}\ns_mov_b32 s71, {pack(FFN_BLK0[4:])}\ns_lshl_b32 {sC}, {sJ}, 3\ns_lshr_b64 s[70:71], s[70:71], {sC}\ns_and_b32 {sBLKP}, s70, 0xff")
            s(f"s_lshl_b32 {sPCOL}, {sBLKP}, 6\ns_lshl_b32 {sD}, {sJ}, 7\ns_add_u32 {sD}, {sD}, 1024\ns_movk_i32 {sA}, 2752\ns_movk_i32 {sC}, 128\ns_mov_b32 s15, 0x20000")
            s(f"s_cmp_lt_u32 {sU}, 2\ns_cselect_b32 {sPCOL}, {sD}, {sPCOL}\ns_cselect_b32 {sA}, 3072, {sA}\ns_cselect_b32 {sB}, 1, 2\ns_cselect_b32 {sC}, 1024, {sC}\ns_cselect_b32 {sE0}, 7, 5", glue=True)
            s(f"s_lshl_b32 s14, {sA}, 9\ns_mul_i32 {sD}, {sWV}, {sA}\ns_mov_b32 {sSO[1]}, {sPCOL}\ns_lshl4_add_u32 {sPCOL}, {sD}, {sPCOL}\ns_lshl_b32 {sBLKS}, {sA}, 6")
            s(f"v_lshrrev_b32 {v(vT0)}, 4, v0\nv_and_b32 {v(vT1)}, 15, v0\nv_lshlrev_b32 {v(vT3)}, {sB}, {v(vT0)}\nv_xor_b32 {v(vT1)}, {v(vT1)}, {v(vT3)}")
            s(f"v_mul_u32_u24 {v(vT0)}, {sA}, {v(vT0)}\nv_lshrrev_b32 {v(vT3)}, 3, {v(vT1)}\nv_mad_u32_u24 {v(vT0)}, {v(vT3)}, {sC}, {v(vT0)}\nv_and_b32 {v(vT1)}, 7, {v(vT1)}")
            s(f"v_lshl_add_u32 {v(vPD)}, {v(vT1)}, 4, {v(vT0)}\ns_lshl_b32 {sA}, {sA}, 2\ns_sub_u32 {sA}, {sA}, 1024")
            for q in range(1, 4): s(f"v_add_u32 {v(vPD+q)}, {sA}, {v(vPD+q-1)}")
        if o["pgo"]: ppat()
        if o["warmc"] >= 2:
            s(f"s_lshl2_add_u32 {sA}, {sI}, {sWV}\ns_mul_i32 {sA}, {sA}, 384\ns_min_u32 {sA}, {sA}, L_end-{NAME}_kernel-384")
            s(f"s_getpc_b64 s[72:73]\nL_pc:\ns_sub_u32 s72, s72, L_pc-{NAME}_kernel\ns_subb_u32 s73, s73, 0\ns_add_u32 s72, s72, {sA}\ns_addc_u32 s73, s73, 0", glue=True)
        s("s_waitcnt lgkmcnt(0)"); self.stamp(s, "go")
        s("s_mov_b64 s[8:9], s[40:41]\ns_mov_b64 s[16:17], s[62:63]"); s.mark("go")
        if o["stag"]: s(f"s_load_dword {sBA}, s[62:63], 0")
        assert o["kz"] == 1 and not o["sw"] & 9 and o["warmc"] < 2 and o["stag"]
        def stouch(base, off):
            s(f"s_load_dword {sBB}, s[{base}:{base+1}], {off}"); s[-1].wr = [("s", "junk%d" % len(s))]
        for k, base in enumerate((42, 50, 44, 52, 56, 54, 46)):
            if o["tw"] >> k & 1: stouch(base, 0)
        if o["sw"] & 1:
            s(f"s_lshl2_add_u32 {sA}, {sI}, {sWV}\ns_lshl_b32 {sB}, {sA}, 7"); stouch(44, sB)
            s(f"s_add_u32 {sB}, {sB}, 64\ns_min_u32 {sC}, {sA}, 42\ns_lshl_b32 {sC}, {sC}, 6"); stouch(44, sB); stouch(52, sC)
            s(f"s_and_b32 {sC}, {sC}, 0x3c0"); stouch(56, sC)
        if o["sw"] & 2: stouch(62, sFL)
        if o["sw"] & 4:
            s(f"s_lshl2_add_u32 {sA}, s2, {sWV}\ns_min_u32 {sA}, {sA}, 383\ns_lshl_b32 {sA}, {sA}, 6\ns_add_u32 {sA}, {sA}, {WS_FL1}"); stouch(62, sA)
        if o["sw"] & 8:
            s(f"s_lshl2_add_u32 {sA}, s2, {sWV}\ns_bfe_u32 {sB}, {sA}, 0x50004\ns_and_b32 {sA}, {sA}, 15\ns_mul_i32 {sB}, {sB}, {KVREC}\ns_lshl_b32 {sA}, {sA}, 6\ns_add_u32 {sA}, {sA}, {sB}\ns_add_u32 {sA}, {sA}, {WS_KVP+16384}"); stouch(62, sA)
        if o["warmc"] >= 2:
            for k in range(0, 6, o["warmc"] - 1): s(f"s_load_dword {sBB}, s[72:73], {64*k}"); s[-1].wr = [("s", "junk%d" % k)]
        for r in range(2): B(f"buffer_load_dwordx4 {v(tmp+4*r,4)}, {v(vL16)}, {sX}, {sSO[0]} offen offset:{1024*r}", "rows", "go", sp=8)
        if not o["stag"]: B(f"buffer_load_dword {v(vTAG)}, {v(vXD0)}, {sWS}, 0 offen sc1", "tag", sp=8)
        if o["xa"]: dma_xp(0, None, o["sp0"])
        if not o["pgo"]: ppat()
        s(f"s_cmp_lt_u32 {sU}, 2\ns_cselect_b64 s[12:13], s[42:43], s[50:51]", glue=True)
        s.mark("pd"); self.stamp(s, "pd")
        def dma_p(ci, after=None):
            mul = sBLKS if ci == 0 else 64 * stride
            run4(f"s_add_u32 {sM}, {sROT}, {ci}\ns_and_b32 {sM}, {sM}, 7\ns_mul_i32 {sM}, {sM}, {mul}\ns_add_u32 m0, {sE1}, {PSL[ci]}\ns_add_u32 {sM}, {sM}, {sPCOL}", vPD, sW, ("p", ci), after, sp1 if ci else 16)
        dma_p(0, "pd")
        if not o["xa"]: dma_xp(0, None, o["sp0"])
        s(f"v_and_b32 {v(vT0)}, 31, v0\nv_lshlrev_b32 {v(vN16)}, 4, {v(vT0)}\nv_lshlrev_b32 {v(vT1)}, 7, {v(vT0)}")
        s(f"v_bfe_u32 {v(vT0)}, v0, 1, 3\nv_lshrrev_b32 {v(vT2)}, 5, v0\nv_xor_b32 {v(vT0)}, {v(vT0)}, {v(vT2)}\nv_lshl_add_u32 {v(vXR)}, {v(vT0)}, 4, {v(vT1)}")
        for cq in range(1, 4): s(f"v_xor_b32 {v(vXR+cq)}, {32*cq}, {v(vXR)}")
        yR, yP, yF, yH, x0, x1 = (ACC[1] + i for i in range(6))
        s(f"v_bfe_u32 {v(yR)}, v0, 2, 2\nv_bfe_u32 {v(yP)}, v0, 4, 1\ns_add_u32 {sB}, {sB}, 4")
        s(f"v_and_b32 {v(yF)}, 16, {v(vL16)}\nv_and_b32 {v(yH)}, 2, v0\nv_lshl_add_u32 {v(yF)}, {v(yH)}, 2, {v(yF)}\nv_lshl_add_u32 {v(yH)}, {v(vT2)}, 3, {v(yR)}")
        s(f"v_xor_b32 {v(x0)}, {sWV}, {v(yR)}\nv_lshl_add_u32 {v(x0)}, {v(x0)}, {sB}, {v(yF)}\nv_lshl_add_u32 {v(x0)}, {v(yP)}, {sE0}, {v(x0)}")
        s(f"v_cmp_eq_u32 vcc, {v(yR)}, {v(yP)}\nv_mov_b32 {v(vT1)}, 0x3f803f80")
        s(f"v_lshl_add_u32 {v(x0)}, {v(yH)}, 8, {v(x0)}\nv_add_u32 {v(vPR)}, {R[2]}, {v(x0)}\nv_add_u32 {v(vPR+1)}, {R[4]}, {v(x0)}")
        for i in range(4): s(f"v_cndmask_b32 {v(CSEL+i)}, 0, {v(vT1)}, vcc")
        if o["cbmix"]: s(f"s_lshr_b32 {sCB}, {sI}, 3\ns_lshl1_add_u32 {sCB}, {sCB}, {sI}")
        s(f"s_xor_b32 {sCB}, {sI}, {o['cbx']}\ns_and_b32 {sCB}, {sCB}, 7\ns_lshl_b32 {sCB}, {sCB}, 7\ns_lshl_b32 {sW16K}, {sWV}, 14\ns_lshl_b32 {sW8K}, {sWV}, 13\nv_mov_b32 {v(vZ)}, 0")
        s(f"s_and_b32 {sA}, {sWV}, 1\ns_cmp_eq_u32 {sA}, 1\ns_cselect_b64 {sPAR}, -1, 0")
        for i in range(4):
            s(f"s_add_u32 {sA}, {sQ4}, {i}\ns_and_b32 {sA}, {sA}, 3\ns_lshl2_add_u32 {sA}, {sT}, {sA}")
            if i > 1: s(f"s_lshl_b32 {sXB[i]}, {sA}, 15")
            s(f"s_mul_i32 {sAB[i]}, {sA}, {TBSTR}\ns_add_u32 {sAB[i]}, {sAB[i]}, {WS_ACT}")
        srd(s, sB2, 56, 1024)
        srd(s, sW2, 54, 1376 * 1024); srd(s, sWo, 46, 512 * 1024); srd(s, sOut, 58, 2048 * 1024)
        tl.straight(s); s = Stream()
        while tl.bi < len(tl.bg): tl.emit_bg(True)
        self.stamp(s, "split")
        s(f"s_cmp_ge_u32 {sU}, 2\ns_cbranch_scc1 L_ffn\nL_split:", glue=True)
        if kP:
            s(f"s_lshl2_add_u32 {sHK}, {sJ}, {sWV}\ns_lshl_b32 {sD}, {sBLKP}, 6\ns_add_u32 {sD}, {sD}, 256")
            s(f"s_lshr_b32 {sB}, {sWV}, 1\ns_add_u32 {sBLKS}, {sBLKP}, {sB}\ns_add_u32 {sBLKS}, {sBLKS}, 4")
        else:
            s(f"s_add_u32 {sA}, {sJ}, {o['qx']}\ns_and_b32 {sA}, {sA}, 7\ns_lshl_b32 {sD}, {sA}, 7\ns_lshl2_add_u32 {sHD}, {sA}, {sWV}\ns_add_u32 {sBLKP}, {sBLKP}, {sWV}")
        srd(s, sAux, 44, 32 * 512)
        t0, t2 = G4, G4 + 1
        s(f"v_and_b32 {v(t0)}, 0x13, v0\nv_and_b32 {v(t2)}, 4, v0\nv_lshl_add_u32 {v(t0)}, {v(t2)}, 1, {v(t0)}\nv_bfe_u32 {v(t2)}, v0, 3, 1\nv_lshl_add_u32 {v(t0)}, {v(t2)}, 2, {v(t0)}")
        s(f"v_and_b32 {v(t2)}, 32, v0\nv_lshl_add_u32 {v(t0)}, {v(t2)}, 8, {v(t0)}\nv_lshlrev_b32 {v(t0)}, 1, {v(t0)}")
        s.mark("aux"); self.stamp(s, "aux")
        sWS2 = sB2
        B(f"buffer_load_dwordx4 {v(B2,4)}, {v(vOUT)}, {sB2}, {sCB} offen", None, "aux", sp=16)
        B(f"s_mov_b64 s[36:37], s[52:53]\ns_movk_i32 s38, 2752\ns_lshl_b32 {sM}, {sBLKS if kP else sBLKP}, 6\nbuffer_load_ushort {v(vB1)}, {v(t0)}, {sB2}, {sM} offen", sp=16)
        B(f"s_mov_b64 s[36:37], s[{50 if kP else 42}:{51 if kP else 43}]\ns_mov_b32 s38, {512*strS}\n"
          f"s_lshr_b32 {sM}, {sHD}, 1\ns_add_u32 m0, {sE1}, {SCR}\ns_lshl_b32 {sM}, {sM}, 10\nbuffer_load_dwordx4 {v(vL16)}, {sAux}, {sM} offen lds", "b2", sp=16)
        w1 = vJ + 1
        def warm3(pos):
            if o["warmm" if (kP or o["wA"] != 2) else "warmb"] != pos or (o["wA"] == 1 and not kP): return
            wa, wd = (vFL, vFL + 1) if 2 <= pos <= 4 else (XR, XR + 1); m = 2 if o["wA"] else 1
            wid = f"s_add_u32 {sN}, s2, {0 if kP else 3}\ns_and_b32 {sM}, s2, 8\ns_and_b32 {sN}, {sN}, 7\ns_or_b32 {sN}, {sN}, {sM}\ns_lshl4_add_u32 {sN}, {sROT}, {sN}\ns_lshl2_add_u32 {sN}, {sN}, {sWV}" if o["wA"] else f"s_lshl2_add_u32 {sN}, s2, {sWV}"
            B(f"v_min_u32 {v(wa)}, {11*m-1}, v0\nv_lshlrev_b32 {v(wa)}, 7, {v(wa)}\n{wid}\ns_mul_i32 {sM}, {sN}, {11*128*m}\nbuffer_load_dword {v(wd)}, {v(wa)}, {sW2}, {sM} offen", None, "stok" if 2 <= pos <= 4 else None, sp=16)
            tl.bg[-1].ins[-1].wr = []
            B(f"v_min_u32 {v(wa)}, {(4*m-1)*128}, {v(wa)}\ns_lshl_b32 {sM}, {sN}, {8+m}\nbuffer_load_dword {v(wd)}, {v(wa)}, {sWo}, {sM} offen", sp=32)
        def warmq(pos):
            if o["wq"] != pos or not kP: return
            B(f"v_and_b32 {v(XR+2)}, 15, v0\nv_lshrrev_b32 {v(XR+3)}, 1, {v(XR+2)}\nv_mul_u32_u24 {v(XR+3)}, 3072, {v(XR+3)}\nv_and_b32 {v(XR+2)}, 1, {v(XR+2)}\nv_lshl_add_u32 {v(XR+2)}, {v(XR+2)}, 7, {v(XR+3)}\n"
              f"s_and_b32 {sM}, {sI}, 1\ns_lshl1_add_u32 {sM}, {sROT}, {sM}\ns_lshl2_add_u32 {sM}, {sM}, {sWV}\ns_mul_i32 {sM}, {sM}, {8*3072}\n"
              f"s_lshl_b32 {sN}, {sQ4}, 8\ns_add_u32 {sN}, {sN}, {128*o['qx']}\ns_and_b32 {sN}, {sN}, 0x3ff\ns_add_u32 {sM}, {sM}, {sN}\nbuffer_load_dword {v(XR+3)}, {v(XR+2)}, {sW}, {sM} offen", sp=16)
        def stats_ld(i, r):
            h = f"s_add_u32 {r}, {sQ4}, {i}" if i > 1 else f"s_and_b32 {r}, {sWV}, 1\ns_xor_b32 {r}, {r}, {i}\ns_add_u32 {r}, {r}, {sQ4}"
            return h + f"\ns_and_b32 {r}, {r}, 3\ns_lshl_b32 {r}, {r}, 9\ns_add_u32 {r}, {r}, {sSTB}\nbuffer_load_dwordx4 {v(ST+4*i,4)}, {v(vN16)}, {sWS}, {r} offen sc1"
        for ci in range(1, 9):
            if ci == o["s0p"]:
                for i in range(2): B(stats_ld(i, sM), "stat0", "b%d" % o["s0"], sp=32)
            if ci == o["t1"]:
                B(f"v_min_u32 {v(XR)}, 15, v0\nv_lshlrev_b32 {v(XR)}, 7, {v(XR)}\ns_xor_b32 {sM}, {sXB[3]}, 0x10000\ns_and_b32 {sN}, {sI}, 3\ns_lshl2_add_u32 {sN}, {sN}, {sWV}\ns_lshl_b32 {sN}, {sN}, 11\ns_add_u32 {sM}, {sM}, {sN}\n"
                  f"buffer_load_dword {v(XR+1)}, {v(XR)}, {sX}, {sM} offen", None, "su" if o["t1s"] else None, sp=16)
            if ci < 8 and ci % 2 == 0: dma_xp(ci // 2, None, sp1)
            if ci < 8: dma_p(ci, {1: "su", 5: "phi", 6: "b2", 7: "b3"}.get(ci))
        if True:
            s(f"v_bfe_u32 {v(x0)}, v0, 1, 1\nv_lshl_add_u32 {v(x0)}, {v(yP)}, 1, {v(x0)}\nv_lshlrev_b32 {v(x0)}, 3, {v(x0)}\nv_lshl_add_u32 {v(x0)}, {v(yH)}, 5, {v(x0)}")
            s(f"s_and_b32 {sC}, s98, 0x200\ns_add_u32 {sA}, {sE1}, {sC}\ns_add_u32 {sA}, {sA}, {SCR}")
            s(f"v_add_u32 {v(TA)}, {sA}, {v(x0)}\nv_xor_b32 {v(TA+1)}, 0x200, {v(TA)}"); s.mark("pha")
        s(f"s_movk_i32 {sB}, {strS}")
        if o["srot"]:
            s(f"s_mul_i32 {sSO[0]}, {sROT}, {64*strS}\ns_lshl_b32 {sSO[1]}, {sWV}, 11\ns_mul_i32 {sA}, {sWV}, {16*strS}\ns_add_u32 {sD}, {sD}, {sA}")
        else:
            for k in range(2):
                s(f"s_add_u32 {sA}, {sWV}, {sROT}\ns_add_u32 {sA}, {sA}, {4*k}\ns_and_b32 {sA}, {sA}, 7\ns_mul_i32 {sA}, {sA}, {64*strS}\ns_add_u32 {sSO[k]}, {sA}, {sD}")
        def dma_s(half, after):
            if not o["srot"]:
                for k in range(2): run4(f"s_add_u32 m0, {sW8K}, {R[4-4*half]+k*4096}\ns_add_u32 {sM}, {sSO[half]}, {32*strS*k}", vSD, sWS2, ("s", half), after, o["sps%d" % half])
                return
            for g in range(4):
                pre = f"s_add_u32 m0, {sSO[1]}, {R[4-4*half]+g*8192}\n"
                pre += f"s_add_u32 {sSO[0]}, {sSO[0]}, {64*strS}\ns_cmp_eq_u32 {sSO[0]}, {512*strS}\ns_cselect_b32 {sSO[0]}, 0, {sSO[0]}" if (half or g) else "s_nop 0"
                for q in range(2):
                    sp = o["sg"] if (half, g, q) == (0, 1, 0) else o["sps%d" % half]
                    B(f"{pre if q == 0 else ''}\nbuffer_load_dwordx4 {v(vSD+q)}, {sWS2}, {sSO[0]} offen offset:{1024*q} lds", ("s", half), after, sp)
        s(f"v_lshrrev_b32 {v(vT0)}, 3, v0\nv_lshlrev_b32 {v(vT1)}, 2, v0\nv_and_b32 {v(vT1)}, 64, {v(vT1)}\nv_xor_b32 {v(vT1)}, {v(vT1)}, {v(vOUT)}")
        s(f"v_mad_u32_u24 {v(vSD)}, {v(vT0)}, {sB}, {v(vT1)}")
        if o["srot"]: s(f"v_add_u32 {v(vSD)}, {sD}, {v(vSD)}")
        if kP and o["z5"]:
            five = sum(1 << i for i, n in enumerate(FFN_NBLK) if n == 5)
            s(f"s_lshr_b32 {sC}, {five}, {sJ}\ns_and_b32 {sC}, {sC}, 1\ns_lshl_b32 {sC}, {sC}, 6\nv_and_b32 {v(vSD+1)}, {sC}, {v(vT1)}\nv_lshl_add_u32 {v(vSD)}, {v(vSD+1)}, 20, {v(vSD)}")
        for q in range(1, 2 if o["srot"] else 4): s(f"v_add_u32 {v(vSD+q)}, {q*(8*strS-1024)}, {v(vSD)}")
        s(f"v_lshl_add_u32 {v(vWD+3)}, {v(vT0)}, 10, {v(vT1)}")
        if kP:
            s(f"v_lshl_add_u32 {v(vT3)}, {v(vT2)}, 9, {v(vN16)}\nv_lshlrev_b32 {v(vT2)}, 5, {v(vT2)}\nv_add_u32 {v(vT2)}, 0x400, {v(vT2)}")
            s(f"v_cmp_gt_u32 vcc, 0x100, {v(vN16)}\nv_add_u32 {v(vT0)}, 16, {v(vT2)}\nv_add_u32 {v(vT1)}, 0x100, {v(vT3)}")
            s(f"v_cndmask_b32 {v(vKA)}, {v(vT2)}, {v(vT3)}, vcc\nv_cndmask_b32 {v(vKA+1)}, {v(vT0)}, {v(vT1)}, vcc")
        s(f"v_lshrrev_b32 {v(x0)}, 1, {v(yR)}\nv_lshl_add_u32 {v(x0)}, {v(x0)}, 6, {v(yF)}\nv_lshl_add_u32 {v(x0)}, {v(yP)}, 5, {v(x0)}\nv_lshl_add_u32 {v(x0)}, {v(yH)}, 7, {v(x0)}")
        s(f"v_lshrrev_b32 {v(vWR)}, 4, v0\nv_lshl_add_u32 {v(vWR)}, {v(vWR)}, 3, {v(yR)}\nv_and_b32 {v(x1)}, 2, {v(yR)}\nv_or_b32 {v(x1)}, {v(x1)}, {v(yP)}")
        s(f"v_lshl_add_u32 {v(vWR)}, {v(vWR)}, 2, {v(x1)}\nv_and_b32 {v(x1)}, 3, v0\nv_lshl_add_u32 {v(vWR)}, {v(vWR)}, 2, {v(x1)}\nv_lshlrev_b32 {v(vWR)}, 3, {v(vWR)}")
        if qS: s(f"s_lshl_b32 {sA}, {sWV}, 5")
        else: s(f"s_and_b32 {sA}, {sWV}, 2\ns_lshl_b32 {sA}, {sA}, 5")
        s(f"v_xor_b32 {v(x0)}, {sA}, {v(x0)}\nv_add_u32 {v(vSR)}, {R[4]}, {v(x0)}")
        if kP:
            if o["kz"] == 0:
                for i in range(4): s(f"v_mov_b32 {v(ONES+i)}, 0x3f803f80")
            elif o["kz"] == 1:
                for i in range(8): s(f"v_mov_b32 {v(F8b+i)}, 0x3f803f80")
            else:
                s(f"v_lshrrev_b32 {v(ONES)}, 4, v0\nv_cmp_eq_u32 vcc, 1, {v(ONES)}\nv_mov_b32 {v(ONES)}, 0\nv_mov_b32 {v(ONES+3)}, 0")
                s(f"v_cndmask_b32 {v(ONES+1)}, 0, 1.0, vcc\nv_lshrrev_b32 {v(ONES+2)}, 16, {v(ONES+1)}")
        s(f"v_and_b32 {v(vFA)}, {15 if qS else 7}, v0\nv_lshlrev_b32 {v(vFA)}, 3, {v(vFA)}")
        if True:
            s(f"v_bfe_u32 {v(vT0)}, v0, 2, 1\nv_lshrrev_b32 {v(vT2)}, 5, v0\nv_cmp_eq_u32 vcc, {v(vT0)}, {v(vT2)}")
            s(f"v_and_b32 {v(vT0)}, 16, {v(vL16)}\nv_mov_b32 {v(vT2)}, 0x3f80\nv_lshlrev_b32 {v(vT2)}, {v(vT0)}, {v(vT2)}\nv_cndmask_b32 {v(vT2)}, 0, {v(vT2)}, vcc")
            s(f"v_bfe_u32 {v(vT0)}, v0, 1, 1\nv_bfe_u32 {v(vT3)}, v0, 3, 2\nv_lshl_add_u32 {v(vT0)}, {v(vT3)}, 1, {v(vT0)}")
            for i in range(0, 4 * len(SEL), 2):
                s(f"v_cmp_eq_u32 vcc, {i}, {v(vT0)}\nv_cmp_eq_u32 s[70:71], {i+1}, {v(vT0)}")
                s(f"s_nop 0\nv_cndmask_b32 {v(SEL[i>>2]+(i&3))}, 0, {v(vT2)}, vcc\nv_cndmask_b32 {v(SEL[i>>2]+(i&3)+1)}, 0, {v(vT2)}, s[70:71]")
            if qS: s(f"s_lshl_b32 {sFK}, {sHD}, 7\ns_add_u32 {sFK}, {sFK}, {WS_FL1}")
        def visit(pos):
            if o["pad"] != pos: return
            x = "s_mov_b64 exec, 0\n"
            for k in range(3): x += f"s_cmp_eq_u32 {sWV}, {k}\ns_cbranch_scc1 L_pad_{role}_{k}\n"
            s(x + f"s_branch L_pad_{role}_3\nL_ret_{role}:\ns_mov_b64 exec, -1", glue=True)
        visit(1)
        s.mark("su")
        s.waittok("rows", ahead=o["ah0"]); self.stamp(s, "rows")
        q = ST
        s(f"v_mov_b32 {v(vT1)}, 0x3f803f80")
        for i in range(4): s(f"v_mov_b32 {v(q+i)}, 0")
        for i in range(4):
            for r in range(2):
                s(f"v_dot2c_f32_bf16 {v(q+r)}, {v(tmp+4*r+i)}, {v(vT1)}\nv_dot2c_f32_bf16 {v(q+2+r)}, {v(tmp+4*r+i)}, {v(tmp+4*r+i)}")
        if o["stag"]: s(f"s_mov_b32 {sA}, {sBA}\nv_lshrrev_b32 {v(vT0)}, 1, v0")
        else:
            s.waittok("tag")
            s(f"v_readfirstlane_b32 {sA}, {v(vTAG)}\nv_lshrrev_b32 {v(vT0)}, 1, v0")
        s(f"v_permlane32_swap_b32 {v(q)}, {v(q+1)}\nv_permlane32_swap_b32 {v(q+2)}, {v(q+3)}")
        s(f"v_add_f32 {v(q)}, {v(q)}, {v(q+1)}\nv_add_f32 {v(q+2)}, {v(q+2)}, {v(q+3)}\ns_add_u32 {sA}, {sA}, 0x{TAGC:x}")
        s(f"v_mov_b32 {v(vTAG)}, {sA}\nv_permlane16_swap_b32 {v(q)}, {v(q+2)}\nv_add_f32 {v(q)}, {v(q)}, {v(q+2)}")
        s(f"v_mov_b32 {v(vTAG+1)}, {sA}\nv_mov_b32 {v(q+1)}, {sA}")
        for m in ("quad_perm:[1,0,3,2]", "quad_perm:[2,3,0,1]", "row_half_mirror", "row_mirror"):
            s(f"v_add_f32_dpp {v(q)}, {v(q)}, {v(q)} {m} {DPPM}")
        if o["sv"]:
            s(f"v_mul_f32 {v(q)}, {f2u(1/512)}, {v(q)}\nv_mov_b32 {v(q+2)}, {v(q)}\nv_mov_b32 {v(q+3)}, {v(q)}\nv_and_b32 {v(vT1)}, 16, v0")
            s(f"v_permlane16_swap_b32 {v(q+2)}, {v(q+3)}\nv_cmp_ne_u32 vcc, 0, {v(vT1)}")
            s(f"v_fma_f32 {v(q+3)}, -{v(q+2)}, {v(q+2)}, {v(q+3)}\nv_max_f32 {v(q+3)}, 0, {v(q+3)}\nv_add_f32 {v(q+3)}, {f2u(1e-5)}, {v(q+3)}\nv_sqrt_f32 {v(q+3)}, {v(q+3)}")
            s(f"v_cndmask_b32 {v(q+2)}, -{v(q+2)}, {v(q+3)}, vcc\nv_cvt_pk_bf16_f32 {v(q)}, {v(q+2)}, {v(q+2)}\nv_lshlrev_b32 {v(q+3)}, 16, {v(q)}")
            s(f"v_sub_f32 {v(q+2)}, {v(q+2)}, {v(q+3)}\nv_cvt_pk_bf16_f32 {v(q)}, {v(q+3)}, {v(q+2)}")
        s(f"s_mov_b32 exec_lo, 0x00010001\ns_mov_b32 exec_hi, 0x00010001\nbuffer_store_dwordx2 {v(q,2)}, {v(vT0)}, {sWS}, {sFL} offen sc1\ns_mov_b64 exec, -1", glue=True)
        self.stamp(s, "st"); visit(2)
        s(f"s_lshr_b32 {sFL}, {sTT}, 1\ns_lshl4_add_u32 {sFL}, {sFL}, {sWV}\ns_lshl_b32 {sFL}, {sFL}, 6\ns_add_u32 {sFL}, {sFL}, {WS_FL2}")
        s(f"s_lshl_b32 {sC}, {sWV}, 3")
        for d, tb in ((sBA, FFN_BLK0[0::2]), (sBB, FFN_BLK0[1::2]), (sBS[0], [x[0] for x in SBL]), (sBS[1], [x[1] for x in SBL]), (sBS[2], [x[2] for x in SBL])):
            s(f"s_lshr_b32 {d}, {pack(tb)}, {sC}\ns_and_b32 {d}, {d}, 0xff\ns_lshl_b32 {d}, {d}, 11")
        KR = vJ
        s(f"s_and_b32 {sA}, s98, 0x8000\ns_xor_b32 {sB}, {sA}, 0x8000")
        for i in range(4): s(f"v_add_u32 {v(KR+i)}, {sA}, {v(vXR+i)}\nv_add_u32 {v(vXR+i)}, {sB}, {v(vXR+i)}")
        assert all(b.tok != "b2" for b in tl.bg[tl.bi:]) or True
        visit(3)
        PH = Stream() if o["phl"] else s
        s.mark("auxi")
        s(f"v_lshrrev_b32 {v(vT0)}, 3, v0\nv_lshl_add_u32 {v(vOUT)}, {v(vT0)}, 10, {v(vOUT)}")
        if not qS:
            six = sum(1 << i for i, n in enumerate(FFN_NBLK) if n == 6)
            s(f"s_lshr_b32 {sC}, {six}, {sJ}\ns_lshr_b32 {sA}, {sWV}, 1\ns_andn2_b32 {sC}, {sA}, {sC}\ns_and_b32 {sC}, {sC}, 1\ns_lshl_b32 {sC}, {sC}, 18\ns_or_b32 {sBLKS}, {sBLKS}, {sC}")
        if True:
            s(f"v_and_b32 {v(vT2)}, 4, v0\nv_cmp_ne_u32 vcc, 0, {v(vT2)}\nv_mov_b32 {v(vT3)}, 0x80008000\ns_nop 0\nv_cndmask_b32 {v(vT3)}, 0, {v(vT3)}, vcc")
            PH.waittok("b2", lat=0)
            for hs in range(len(PHI)):
                for e in range(2): PH(f"ds_read_b64_tr_b16 {v(PHI[hs]+2*e,2)}, {v(TA+hs)} offset:{e*128}", tok="phr")
            PH.waittok("phr"); PH.mark("phi")
            for i in range(4 * len(PHI)): PH(f"v_xor_b32 {v(PHI[i>>2]+(i&3))}, {v(vT3)}, {v(PHI[i>>2]+(i&3))}")
        def xread(st, un, region, ks):
            st(f"ds_read_b128 {v(XF+4*(ks%NX),4)}, {v(vXR+(ks&3))} offset:{region+(ks>>2)*4096}", tok=("xf", un, ks))
        def stat_consts0(st, i):
            m, va = ST + 4 * i, ST + 4 * i + 2; k = KC[i]
            st(f"v_mul_f32 {v(m)}, {f2u(1/512)}, {v(m)}\nv_mul_f32 {v(va)}, {f2u(1/512)}, {v(va)}\nv_fma_f32 {v(va)}, -{v(m)}, {v(m)}, {v(va)}\nv_max_f32 {v(va)}, 0, {v(va)}")
            st(f"v_add_f32 {v(va)}, {f2u(1e-5)}, {v(va)}\nv_sqrt_f32 {v(va)}, {v(va)}\nv_mov_b32 {v(m+3)}, 0")
            st(f"v_cvt_pk_bf16_f32 {v(m+1)}, -{v(m)}, {v(va)}\nv_rcp_f32 {v(k)}, {v(va)}")
            st(f"v_lshlrev_b32 {v(vT0)}, 16, {v(m+1)}\nv_and_b32 {v(vT1)}, 0xffff0000, {v(m+1)}")
            st(f"v_sub_f32 {v(m)}, -{v(m)}, {v(vT0)}\nv_sub_f32 {v(vT1)}, {v(va)}, {v(vT1)}")
            if kP: st(f"v_mul_f32 {v(k+1)}, {f2u(LOG2E)}, {v(k)}\nv_mov_b32 {v(k+2)}, {v(va)}")
            else:
                st(f"v_mov_b32 {v(k+2)}, {v(va)}\nv_mul_f32 {v(k+1)}, {v(k)}, {v(k)}\nv_mul_f32 {v(k)}, {f2u(K0)}, {v(k)}")
                st(f"v_mul_f32 {v(k+1)}, {v(k+1)}, {v(k)}\nv_mul_f32 {v(k+1)}, {f2u(0.044715)}, {v(k+1)}")
            st(f"v_cvt_pk_bf16_f32 {v(m)}, {v(vT0)}, {v(m)}\nv_cvt_pk_bf16_f32 {v(m+2)}, {v(va)}, {v(vT1)}\nv_mov_b32 {v(m+1)}, {v(m)}")
        def stat_consts(st, i):
            if not o["sv"]: return stat_consts0(st, i)
            m = ST + 4 * i; k = KC[i]
            st(f"v_lshlrev_b32 {v(k)}, 16, {v(m+2)}\nv_and_b32 {v(k+2)}, 0xffff0000, {v(m+2)}\nv_add_f32 {v(k+2)}, {v(k+2)}, {v(k)}")
            st(f"v_rcp_f32 {v(k)}, {v(k+2)}\nv_mov_b32 {v(m+1)}, {v(m)}\nv_mov_b32 {v(m+3)}, 0")
            if kP: st(f"v_mul_f32 {v(k+1)}, {f2u(LOG2E)}, {v(k)}")
            else:
                st(f"v_mul_f32 {v(k+1)}, {v(k)}, {v(k)}\nv_mul_f32 {v(k)}, {f2u(K0)}, {v(k)}")
                st(f"v_mul_f32 {v(k+1)}, {v(k+1)}, {v(k)}\nv_mul_f32 {v(k+1)}, {f2u(0.044715)}, {v(k+1)}")
        def corr_pre(st, which):
            c = CA[which]
            st(f"v_mov_b32 {v(c+3)}, 0")
            if which == kP: st(f"v_lshl_or_b32 {v(c+2)}, {v(vB1)}, 16, {v(vB1)}")
            else: st(f"v_mov_b32 {v(c+2)}, 0")
        def corr_a(st, which):
            c = CA[which]
            st(f"v_cvt_pk_bf16_f32 {v(c)}, {v(CS)}, {v(CS)}\nv_lshlrev_b32 {v(vT1)}, 16, {v(c)}\nv_sub_f32 {v(vT0)}, {v(CS)}, {v(vT1)}")
            st(f"v_cvt_pk_bf16_f32 {v(c+1)}, {v(vT0)}, {v(vT0)}")
        def spin(st, test, reload_, name):
            lp, ok = self.lab("poll"), self.lab("ok")
            st(test + f"\ns_cbranch_vccz {ok}", glue=True)
            st(f"s_mov_b32 {sC}, 0", cond=True)
            st(lp + ":")
            slp = o["slp"] if name in ("fO", "fS") else o["slpK"]
            if slp: st(f"s_sleep {slp}", cond=True)
            st(reload_, cond=True)
            st(f"s_add_u32 {sC}, {sC}, 1\ns_cmp_gt_u32 {sC}, 2000000\ns_cbranch_scc1 {ok}\ns_waitcnt vmcnt(0)", cond=True)
            st(test + f"\ns_nop 4\ns_cbranch_vccnz {lp}", cond=True)
            st(ok + ":\ns_nop 0"); st.mark(name); self.stamp(st, name)
        corr_pre(PH, 0); corr_pre(PH, 1)
        tl.straight(s)
        ia = [x for x in tl.log if x.startswith("mark auxi")][0]
        assert int(ia.split("bg=")[1]) > tl.lastbg("b2"), "small loads must be issued before their address registers change"
        s = Stream()
        if o["phl"]: s.need("b0"); s.extend(PH)
        n0 = len(tl.bg)
        dma_x(2, "b5", o["spx"])
        x2pre = Stream(); x2pre(f"s_lshl1_add_u32 {sM}, {sWV}, {sROT}\ns_lshl_b32 {sM}, {sM}, 7\ns_and_b32 {sXK[0]}, {sM}, 0x380\ns_add_u32 {sM}, {sM}, 128\ns_and_b32 {sXK[1]}, {sM}, 0x380")
        tl.bg[n0].ins = Stream(x2pre + tl.bg[n0].ins)
        for i in range(2, 4): B(stats_ld(i, sM), "stats", None, sp=32)
        if not o["xord"]: dma_x(3, "b7", o["spx3"])
        lag = o["lag"]
        Mp = []
        def mfa(kp): return f"{MF} {v(ACC[0],16)}, {ag(4*kp,4)}, {ag(128+4*kp,4)}, {v(ACC[0],16) if kp else 0}"
        def mfb(kp): return f"{MF} {v(ACC[1],16)}, {ag(4*kp,4)}, {v(XF+4*(kp%NX),4)}, {v(ACC[1],16) if kp else 0}"
        def mf16(kp): return f"{MF16} {v(CS,4)}, {v(CSEL,4)}, {ag(4*kp,4)}, {v(CS,4) if kp else 0}"
        def pread(g, ks):
            ci, kk = ks >> 2, ks & 3; hi = PSL[ci] >= R[4]
            for e in range(2):
                g(f"ds_read_b64_tr_b16 {ag(4*ks+2*e,2)}, {v(vPR+hi)} offset:{PSL[ci]-R[4 if hi else 2]+kk*4096+e*1024}", tok=("pf", ks))
        def grp(f):
            g = Stream(); f(g); Mp.append(g)
        bsteps = [ks for ks in range(32) if ks >= o["blag"] and (ks >= o["bhalf"] or ks & 1)]
        for ks in range(32):
            ci, kk = ks >> 2, ks & 3; kp = ks - lag
            g = Stream()
            if kk == 0:
                if ci == 0: g.waittok(("xp", 0), ("p", 0), ahead=o["ah0b"], lat=o["plat0"]); self.stamp(g, "x0")
                else: g.waittok(("p", ci), ahead=o["ahead"], lat=o["plat"])
                g("s_barrier"); g.mark("b%d" % ci); self.stamp(g, "b%d" % ci)
            if kp >= 0: g.waittok(("xf", 0, bsteps.index(kp)) if kp in bsteps else ("ka", kp), lat=0); g(mfa(kp))
            pread(g, ks)
            if kp in bsteps: Mp.append(g); g = Stream(); g(mfb(bsteps.index(kp)))
            g(f"ds_read_b128 {ag(128+4*ks,4)}, {v(KR+(ks&3))} offset:{(ks>>2)*4096}", tok=("ka", ks))
            if ks in bsteps: xread(g, 0, 0, bsteps.index(ks))
            if ks == 31: g.mark("prd")
            Mp.append(g)
            if kp >= 0: grp(lambda g: g(mf16(kp)))
        x = s
        x.waittok("stat0")
        def tagtest(b):
            return (f"v_xor_b32 {v(vT0)}, {v(vTAG)}, {v(b+1)}\nv_xor_b32 {v(vT1)}, {v(vTAG)}, {v(b+3)}\nv_xor_b32 {v(vFL)}, {v(vTAG)}, {v(b+5)}\nv_xor_b32 {v(vFL+1)}, {v(vTAG)}, {v(b+7)}\n"
                    f"v_or3_b32 {v(vT0)}, {v(vT0)}, {v(vFL)}, {v(vFL+1)}\nv_cmp_ne_u64 vcc, 0, {v(vT0,2)}")
        def swapab(st, k):
            st(f"s_cmp_lg_u32 s98, 0\ns_cselect_b32 {sB}, {sAB[k+1]}, {sAB[k]}\ns_cselect_b32 {sAB[k+1]}, {sAB[k]}, {sAB[k+1]}\ns_mov_b32 {sAB[k]}, {sB}", glue=True)
        spin(x, tagtest(ST), stats_ld(0, sA) + "\n" + stats_ld(1, sA), "st0")
        stat_consts(x, 0); stat_consts(x, 1); swapab(x, 0)
        if kP and o["kz"] == 1: x("s_mov_b32 s32, 0xffff\ns_mov_b32 s33, 0xffff")
        x.need("prd")
        x(f"v_mov_b32 {v(vWD)}, {v(vWD+3)}")
        for q in range(1, 4): x(f"v_add_u32 {v(vWD+q)}, {7168*q}, {v(vWD)}")
        for q in (1, 3): x(f"v_xor_b32 {v(vWD+q)}, 32, {v(vWD+q)}")
        x(f"s_lshl_b32 {sPCOL}, {sTT}, 16\ns_add_u32 {sPCOL}, {sPCOL}, {sW16K}\ns_add_u32 {sPCOL}, {sPCOL}, {sCB}")
        x(f"s_and_b32 {sE1}, s98, 0x8000\ns_add_u32 {sE0}, {sE1}, 0x8000")
        x.need("cs0"); corr_a(x, 0); x.mark("ca0")
        nr = len(bsteps); b0 = nr - lag
        for n, kp in enumerate(range(32 - lag, 32)):
            grp(lambda g: (g.waittok(("xf", 0, nr - 1), lat=0) if n == 0 else None, g(mf16(kp)), g.mark("cs0") if kp == 31 else None))
        rd = [nr]
        def bread(g, n, upto):
            while n and rd[0] < 32 and rd[0] < upto + NX: xread(g, 0, 0, rd[0]); rd[0] += 1; n -= 1
        for kp in range(32 - lag, 32): grp(lambda g: (g(mfa(kp)), bread(g, 2, b0)))
        grp(lambda g: (g(mfb(b0)), bread(g, 2, b0)))
        grp(lambda g: (g.need("ca0"), g(f"{MF} {v(ACC[0],16)}, {v(CA[0],4)}, {v(ST,4)}, {v(ACC[0],16)}"), self.stamp(g, "p1")))
        Mb = []
        for kp in range(b0 + 1, 32):
            g = Stream()
            if kp >= nr and (kp - nr) % 2 == 0: g.waittok(("xf", 0, min(31, kp + 1)))
            g(mfb(kp)); bread(g, 1, kp); Mb.append(g)
        g = Stream(); g(f"{MF} {v(ACC[1],16)}, {v(CA[0],4)}, {v(ST+4,4)}, {v(ACC[1],16)}"); g.mark("m1"); Mb.append(g)
        tl.sched(Mp, [x])
        if o.get("stop"):
            out = Stream()
            for i in tl.out:
                if "m" in o["stop"] and i.kind == "mfma": continue
                if "s" in o["stop"] and (i.kind == "vst" or i.cond or i.op.startswith("s_cbranch_vcc")): continue
                if "b" in o["stop"] and i.kind == "barrier": continue
                if "d" in o["stop"] and (i.kind == "dsr" or (i.kind == "waittok" and (i.tok[0] == "phr" or i.tok[0][0] == "xf"))): continue
                out.append(i)
            s = out
            s("s_waitcnt vmcnt(0)\ns_memrealtime s[64:65]\ns_waitcnt lgkmcnt(0)")
            s(f"s_lshl2_add_u32 {sA}, s2, {sWV}\ns_lshl_b32 {sA}, {sA}, 6\ns_add_u32 {sA}, {sA}, {WS_STAMP}")
            for i, r in enumerate(["s100"] + ["s%d" % k for k in STAMPR] + ["s64"]):
                s(f"v_mov_b32 {v(vT1)}, {r}\nbuffer_store_dword {v(vT1)}, {v(vZ)}, {sWS}, {sA} offen offset:{4*i}")
            return s

        def gelu(e, acc, k, sbase, sblk, tok, pk=False):
            e(f"s_lshl_b32 {sB}, {sblk}, 11\ns_add_u32 {sB}, {sB}, {sbase}")
            for q in range(4):
                A = [v(acc + 4 * q + i) for i in range(4)]; T = [v(G4 + i) for i in range(4)]
                if pk:
                    assert k % 2 == 0
                    A2 = [v(acc + 4 * q + i, 2) for i in (0, 2)]; T2 = [v(G4 + i, 2) for i in (0, 2)]
                    for i in range(2): e(f"v_pk_mul_f32 {T2[i]}, {A2[i]}, {A2[i]}")
                    for i in range(2): e(f"v_pk_fma_f32 {T2[i]}, {T2[i]}, {v(k,2)}, {v(k,2)} op_sel:[0,1,0] op_sel_hi:[1,1,0]")
                    for i in range(2): e(f"v_pk_mul_f32 {T2[i]}, {A2[i]}, {T2[i]}")
                    for i in range(4): e(f"v_exp_f32 {T[i]}, {T[i]}")
                    for i in range(2): e(f"v_pk_fma_f32 {T2[i]}, {T2[i]}, {v(k+2,2)}, {v(k+2,2)} op_sel_hi:[1,0,0]")
                    for i in range(4): e(f"v_rcp_f32 {T[i]}, {T[i]}")
                    for i in range(2): e(f"v_pk_mul_f32 {T2[i]}, {A2[i]}, {T2[i]}")
                    for i in range(2): e(f"v_cvt_pk_bf16_f32 {v(HO+2*q+i)}, {T[2*i]}, {T[2*i+1]}")
                    if q & 1: e(f"buffer_store_dwordx4 {v(HO+4*(q>>1),4)}, {v(vL16)}, {sWS}, {sB} offen offset:{1024*(q>>1)} sc1", tok=tok)
                    continue
                for i in range(4): e(f"v_mul_f32 {T[i]}, {A[i]}, {A[i]}")
                for i in range(4): e(f"v_fma_f32 {T[i]}, {T[i]}, {v(k+1)}, {v(k)}")
                for i in range(4): e(f"v_mul_f32 {T[i]}, {A[i]}, {T[i]}")
                for i in range(4): e(f"v_exp_f32 {T[i]}, {T[i]}")
                for i in range(4): e(f"v_fma_f32 {T[i]}, {T[i]}, {v(k+2)}, {v(k+2)}")
                for i in range(4): e(f"v_rcp_f32 {T[i]}, {T[i]}")
                for i in range(4): e(f"v_mul_f32 {T[i]}, {A[i]}, {T[i]}")
                for i in range(2): e(f"v_cvt_pk_bf16_f32 {v(HO+2*q+i)}, {T[2*i]}, {T[2*i+1]}")
                if q & 1: e(f"buffer_store_dwordx4 {v(HO+4*(q>>1),4)}, {v(vL16)}, {sWS}, {sB} offen offset:{1024*(q>>1)} sc1", tok=tok)
        def sm_head(e, src, phi, T_, f4):
            for i in range(4): e(f"v_cvt_pk_bf16_f32 {v(f4+i)}, {v(src+2*i)}, {v(src+2*i+1)}")
            e(f"{MF} {v(T_,16)}, {v(phi,4)}, {v(f4,4)}, 0")
        def sm_body(e, T_, k, dst, scale=False, pk=False):
            t2, t3 = v(vT2), v(vT3); T = lambda i: v(T_ + i)
            e(f"v_max3_f32 {t2}, {T(0)}, {T(1)}, {T(2)}\nv_max3_f32 {t3}, {T(3)}, {T(4)}, {T(5)}")
            for i in range(2): e(f"v_max3_f32 {t2}, {t2}, {T(6+4*i)}, {T(7+4*i)}\nv_max3_f32 {t3}, {t3}, {T(8+4*i)}, {T(9+4*i)}")
            e(f"v_max3_f32 {t2}, {t2}, {T(14)}, {T(15)}\nv_max_f32 {t2}, {t2}, {t3}\nv_mul_f32 {t2}, {t2}, {v(k+1)}")
            P = lambda i: v(T_ + i, 2); tt = v(vT2, 2)
            if pk:
                assert k % 2 == 0 and vT2 % 2 == 0
                for i in range(0, 16, 2): e(f"v_pk_fma_f32 {P(i)}, {P(i)}, {v(k,2)}, {tt} op_sel:[0,1,0] op_sel_hi:[1,1,0] neg_lo:[0,0,1] neg_hi:[0,0,1]")
            else:
                for i in range(16): e(f"v_fma_f32 {T(i)}, {T(i)}, {v(k+1)}, -{t2}")
            for i in range(16): e(f"v_exp_f32 {T(i)}, {T(i)}")
            if pk:
                e(f"v_pk_add_f32 {tt}, {P(0)}, {P(2)}")
                for i in range(4, 16, 2): e(f"v_pk_add_f32 {tt}, {tt}, {P(i)}")
            else:
                e(f"v_add_f32 {t2}, {T(0)}, {T(1)}\nv_add_f32 {t3}, {T(2)}, {T(3)}")
                for i in range(4, 16, 2): e(f"v_add_f32 {t2}, {t2}, {T(i)}\nv_add_f32 {t3}, {t3}, {T(i+1)}")
            e(f"v_add_f32 {t2}, {t2}, {t3}\nv_rcp_f32 {t2}, {t2}")
            if scale: e(f"v_mul_f32 {t2}, {t2}, {v(k)}")
            if pk:
                for i in range(0, 16, 2): e(f"v_pk_mul_f32 {P(i)}, {P(i)}, {tt} op_sel_hi:[1,0]")
            else:
                for i in range(16): e(f"v_mul_f32 {T(i)}, {T(i)}, {t2}")
            for i in range(8): e(f"v_cvt_pk_bf16_f32 {v(dst+i)}, {T(2*i)}, {T(2*i+1)}")
        def kepi(e, un):
            acc, k = ACC[un & 1], KC[un]
            kz = o["kz"]; FV = ONES if kz == 1 else F8b
            if kz == 0: e(f"{MF} {v(TB,16)}, {v(ONES,4)}, {v(SEL[1],4)}, 0")
            if kz == 2:
                if un: e.need("c%d" % un)
                e(f"{MF} {v(TB,16)}, {v(ST+4*un,4)}, {v(ONES,4)}, 0")
            e.need("m%d" % un)
            sm_head(e, acc, PHI[0], TA, F4)
            if kz != 2:
                for i in range(8): e(f"v_mul_f32 {v(acc+8+i)}, {v(acc+8+i)}, {v(k)}")
            for i in range(4): e(f"v_cvt_pk_bf16_f32 {v(FV+i)}, {v(acc+8+2*i)}, {v(acc+9+2*i)}")
            e.mark("e%d" % un)
            b = Stream(); sm_body(b, TA, k, F8a, kz == 2)
            vt = f"{MF} {v(TB,16)}, {v(FV,4)}, {v(SEL[0],4)}, {0 if kz == 1 else v(TB,16)}"
            if kz == 2: e(vt); e.extend(b)
            else: e.extend(b[:2]); e(vt); e.extend(b[2:])
            def cv(r):
                x = "\n".join(f"v_cvt_pk_bf16_f32 {v(F8b+i)}, {v(TB+2*i)}, {v(TB+2*i+1)}" for i in r)
                if kz == 1: e(f"s_mov_b64 exec, s[32:33]\n{x}\ns_mov_b64 exec, -1", glue=True)
                else: e(x)
            cv(range(4 if kz == 1 else 2))
            e(f"{MF} {v(TA,16)}, {v(F8a,4)}, {v(SEL[0],4)}, 0")
            cv(range(4 if kz == 1 else 2, 8))
            e(f"{MF} {v(TA,16)}, {v(F8a+4,4)}, {v(SEL[1],4)}, {v(TA,16)}")
            for i in range(8): e(f"v_cvt_pk_bf16_f32 {v(F8a+i)}, {v(TA+2*i)}, {v(TA+2*i+1)}")
            e(f"{MF} {v(KV,16)}, {v(F8a,4)}, {v(F8b,4)}, {v(KV,16) if un else 0}\n{MF} {v(KV,16)}, {v(F8a+4,4)}, {v(F8b+4,4)}, {v(KV,16)}")
        def kvpub(e):
            e(f"s_mul_i32 {sB}, {sT}, 960\ns_sub_u32 {sB}, 15360, {sB}\nv_lshrrev_b32 {v(vT3)}, 8, {v(vN16)}")
            e(f"v_mad_u32_u24 {v(vT2)}, {v(vT3)}, {sB}, {v(vKA)}\nv_mad_u32_u24 {v(vT3)}, {v(vT3)}, {sB}, {v(vKA+1)}")
            e(f"s_mul_i32 {sB}, {sHK}, 17\ns_add_u32 {sB}, {sB}, {sT}\ns_lshl_b32 {sB}, {sB}, 10\ns_add_u32 {sB}, {sB}, {WS_KVP}")
            for c in range(2):
                for i in range(4): e(f"v_cvt_pk_bf16_f32 {v(F8a+4*c+i)}, {v(KV+8*c+2*i)}, {v(KV+8*c+2*i+1)}")
                e(f"buffer_store_dwordx4 {v(F8a+4*c,4)}, {v(vT2+c)}, {sWS}, {sB} offen sc1", tok="kvp")
        def qepi(e, acc, k, dst):
            for i in range(4): e(f"v_cvt_pk_bf16_f32 {v(F4+i)}, {v(acc+2*i)}, {v(acc+2*i+1)}")
            for i in range(4): e(f"v_cvt_pk_bf16_f32 {v(F8b+i)}, {v(acc+8+2*i)}, {v(acc+9+2*i)}")
            e(f"{MF} {v(acc,16)}, {v(PHI[1],4)}, {v(F8b,4)}, 0\n{MF} {v(TA,16)}, {v(PHI[0],4)}, {v(F4,4)}, 0")
            sm_body(e, acc, k, dst + 8, pk=o["pk"] and dst != PF); e.mark(("sib", dst))
            if not ("e" in abl and dst != PF): sm_body(e, TA, k, dst)
        def flag(st, addr, tok, lat=None):
            st(addr)
            st.waittok(tok, lat=lat or o["stlat"])
            st(f"s_mov_b64 exec, 1\nbuffer_store_dwordx2 {v(vTAG,2)}, {v(vZ)}, {sWS}, {sD} offen sc1\ns_mov_b64 exec, -1", glue=True)
        a_fl1 = f"s_lshl4_add_u32 {sD}, {sHK}, {sT}\ns_lshl_b32 {sD}, {sD}, 3\ns_add_u32 {sD}, {sD}, {WS_FL1}"
        def a_fl2(kind): return (f"s_mov_b32 {sD}, {sHD}\n" if kind == 2 else f"s_lshl2_add_u32 {sD}, {sJ}, {sWV}\n") + f"s_lshl_b32 {sC}, {sT}, 10\ns_lshl3_add_u32 {sD}, {sD}, {sC}\ns_add_u32 {sD}, {sD}, {WS_FL2+256*kind}"
        def fl_txt(sreg, off): return f"buffer_load_dwordx2 {v(vFL,2)}, {v(vFA)}, {sWS}, {sreg} offen offset:{off} sc1"
        skipf = lambda tok: qS and tok[1] in str(o.get("skipf", ""))
        def fl_bg(sreg, off, tok, after):
            if not skipf(tok): B(fl_txt(sreg, off), tok, after, sp=16)
        def fl_check(st, sreg, off, tok):
            if skipf(tok): st.mark(tok); return
            st.waittok(tok)
            spin(st, f"v_cmp_ne_u64 vcc, {v(vFL,2)}, {v(vTAG,2)}", fl_txt(sreg, off), tok)

        SLOT = {"a0": (sW8K, R[0]), "a1": (sW8K, R[0] + 4096), "b0": (sW8K, R[1]), "b1": (sW8K, R[1] + 4096),
                "c0": (sW8K, R[4]), "c1": (sW8K, R[4] + 4096), "d0": (sW16K, R[2])}
        LORD = list(range(8)) + [11, 12, 13, 14, 8, 9, 10]
        WSLOT = dict(zip(LORD, ["b0", "b1", "c0", "c1", "a0", "a1"] * 2 + ["b0", "b1", "d0"]))
        nE = 8
        def blk(b):
            if b < 4: return sBA, b
            if b < 8: return sBB, b - 4
            if b < 11: return sBS[b - 8], 0
            return None, b - 11
        sRW = sXK[0]
        def dma_w(b, after):
            sb, off = SLOT[WSLOT[b]]; r, i = blk(b)
            pre = f"s_add_u32 m0, {sb}, {off}\n"
            if o["wrot"] and b < 8:
                pre += f"s_lshl_b32 {sRW}, {sTT}, 11\n" if b == 0 else f"s_add_u32 {sRW}, {sRW}, 0x800\n"
                pre += f"s_and_b32 {sRW}, {sRW}, 0x1800\ns_add_u32 {sN}, {r}, {sRW}\ns_lshl4_add_u32 {sN}, {sN}, {sCB}"
            elif i: pre += f"s_add_u32 {sN}, {sN}, 0x8000"
            elif r: pre += f"s_lshl4_add_u32 {sN}, {r}, {sCB}"
            else: pre += f"s_lshl3_add_u32 {sN}, {sW16K}, {sCB}"
            run4(pre, vWD, sW2 if r else sWo, ("w", b), after, o["spw0"] if b < 4 else o["spw1"] if b < 6 else None, sN)
            if "f" in abl and LORD.index(b) >= 10: del tl.bg[-3:]
        def wfrags(st, dst, base, off, tok):
            for cb in range(4):
                for e in range(2): st(f"ds_read_b64_tr_b16 {dst(4*cb+2*e)}, {v(base+cb)} offset:{off+e*512}", tok=tok)
        def wbump(st, base, d):
            for i in range(4): st(f"v_add_u32 {v(base+i)}, {d}, {v(base+i)}")
        def wread(st, b):
            sl = WSLOT[b]; off = SLOT[sl][1] - {"c": R[4], "d": R[2]}.get(sl[0], 0)
            if b == 2: wbump(st, vWQ, R[4])
            if b == 4: wbump(st, vWQ, -R[4])
            if b == 10: st(f"s_add_u32 {sE1}, {sW8K}, {R[2]}"); wbump(st, vWQ, sE1)
            st.waittok(("w", b), lat=o["wlat"])
            wfrags(st, lambda k: ag(128 + 16 * (b % 8) + k, 2), vWQ, off, ("wr", b))

        D = NX - 1
        M = list(Mb)
        RG = {1: R[1], 2: 0, 3: R[1], 4: 0, 5: 0}
        def bump(st, d):
            for i in range(4): st(f"v_add_u32 {v(vXR+i)}, {d}, {v(vXR+i)}")
        def opening(g, un):
            if un == 3:
                if o["ssplit"] >= 2: g.waittok(("x", 3))
                elif o["ssplit"]: g.waittok(("x", 3), ("s", 0))
                else: g.waittok(("x", 3), ("s", 0), ("s", 1))
                g("s_barrier"); g.mark("sl")
            elif un < 3: g.waittok(("x", un), lat=o["x1l"]); g("s_barrier"); g.mark("xl%d" % un)
            if un == 2: bump(g, sE0)
            if un == 5: g.need("e1s"); bump(g, sE1)
        NP = o["NP"]
        AU = [ACC[0], ACC[1]] * 3 if kP else [ACC[0], ACC[1], PF + 16, ACC[0], ACC[1], ACC[0]]
        NEED = {2: "e0", 3: "e1", 4: "e2", 5: "e3"} if kP else {3: "f0", 4: "f1", 5: "f3"}
        a2, a3 = (o["a2" if kP else "b2"] / 10, o["a3" if kP else "b3"] / 10)
        SPAN = {2: (o["a1"] / 10, a2), 3: (a2, a3), 4: (a3, 4), 5: (4, 5)}
        for un in range(2, 6):
            acc = AU[un]
            cm = f"{MF} {v(acc,16)}, {v(CA[un>3],4)}, {v(ST+4*un if un <= 3 else ST if un == 4 else CBS,4)}, "
            g = Stream()
            if un == 2:
                opening(g, 2)
                for ks in range(D): xread(g, 2, RG[2], ks)
                M.append(g); g = Stream()
            if un in NEED: g.need(NEED[un])
            self.stamp(g, "u%d" % un)
            clast = un == 4 or (un == 2 and o["c1l"])
            if not clast:
                g.need("c%d" % un); g(cm + "0"); M.append(g); g = Stream()
            last = o["kvpace" if kP else "fpace"] if un == 4 else 31
            for ks in range(32):
                for k in range(NP):
                    if ks == o["pace"] + (k + 1) * (last - o["pace"]) // NP:
                        n = int(round((SPAN[un][0] + (SPAN[un][1] - SPAN[un][0]) * (k + 1) / NP) * NP)) - 1
                        if n >= 0: g.need(("ep", n // NP, n % NP))
                if ks % 4 == 0:
                    if un == 4: g.need("sr%d" % (ks + 3)); g.waittok(("sr", ks + 3))
                    else: g.waittok(("xf", un, ks + 3))
                if ks == 28 and un == 5: g("s_barrier"); g.mark("r5")
                if ks + D == 32 and un < 5: opening(g, un + 1)
                g(f"{MF} {v(acc,16)}, {ag(4*ks,4)}, {ag(128+4*ks,4) if un == 4 else v(XF+4*(ks%NX),4)}, {v(acc,16) if (ks or not clast) else 0}")
                if ks + D < 32:
                    if un != 4: xread(g, un, RG[un], ks + D)
                elif un in (2, 4): xread(g, un + 1, RG[un + 1], ks + D - 32)
                if un >= 3: g.mark(("pd", un, ks))
                if un == 5 and ks == o["kvl"]: g.mark("kvl")
                if ks == 31 and not clast: g.mark("m%d" % un)
                M.append(g); g = Stream()
            if clast:
                g.need("c%d" % un); g(cm + v(acc, 16)); g.mark("cb%d" % un); g.mark("m%d" % un); M.append(g)
        tl.marks.add("m0")
        E = Stream()
        def paced(e, un):
            tot = sum(i.cost for i in e); c = 0; k = 0
            for i in e:
                E.append(i); c += i.cost
                while k < NP and c >= tot * (k + 1) / NP - 1e-9 and not i.glue: E.mark(("ep", un, k)); k += 1
            assert k == NP
        def selectk(st, i):
            k = KCS; j = i + 1 if i else 0
            st(f"v_cndmask_b32 {v(k)}, {v(KC[i])}, {v(KC[j])}, {sPAR}")
            if qS: st(f"v_mul_f32 {v(k+1)}, {f2u(LOG2E/K0)}, {v(k)}")
            else:
                st(f"v_cndmask_b32 {v(k+2)}, {v(KC[i]+2)}, {v(KC[j]+2)}, {sPAR}\nv_mul_f32 {v(k+1)}, {v(k)}, {v(k)}\nv_mul_f32 {v(k)}, {f2u(K0)}, {v(k)}")
                st(f"v_mul_f32 {v(k+1)}, {v(k+1)}, {v(k)}\nv_mul_f32 {v(k+1)}, {f2u(0.044715)}, {v(k+1)}")
        for un in range(4):
            e = Stream()
            if kP: kepi(e, un)
            else: e.need("m%d" % un); gelu(e, AU[un], KC[un], sAB[un], sBLKP, "actP")
            if kP and un == 3: kvpub(e)
            paced(e, un); E.mark("f%d" % un)
        E.mark("kvp")
        swapab(E, 2)
        selectk(E, 0); E.need("m4")
        e = Stream()
        if qS: qepi(e, AU[4], KCS, PF)
        else: gelu(e, ACC[0], KCS, sAB[0], sBLKS, "actS")
        paced(e, 4)
        selectk(E, 2); E.mark("e4"); E.need("m5"); self.stamp(E, "u6")
        if qS: qepi(E, AU[5], KCS, PF + 16)
        elif "h" not in abl: gelu(E, ACC[1], KCS, sAB[2], sBLKS, "actS", o["gpk"])
        self.stamp(E, "q"); E.mark("q5")
        X = Stream()
        X.waittok("stats")
        spin(X, tagtest(ST + 8), stats_ld(2, sA) + "\n" + stats_ld(3, sA), "stok")
        for i in range(2, 4): stat_consts(X, i); X.mark("c%d" % i)
        def select(st, i):
            for r in range(3): st(f"v_cndmask_b32 {v(CBS+r)}, {v(ST+4*i+r)}, {v(ST+4*i+4+r)}, {sPAR}")
        if o["xlate"]: X.need("kvp" if kP else "m3")
        select(X, 2); X(f"v_mov_b32 {v(CBS+3)}, 0")
        X.mark("e1s")
        X(f"s_and_b32 {sA}, s98, 0x100\ns_add_u32 {sA}, {sA}, {WS_ACT}\nv_and_b32 {v(vWR+1)}, 0xf0, {v(vL16)}\nv_and_b32 {v(vT0)}, 0x30, v0\nv_lshl_add_u32 {v(vT0)}, {v(vT0)}, 5, {sA}\nv_add_u32 {v(vWR+1)}, {v(vWR+1)}, {v(vT0)}")
        X.need("sl")
        X(f"s_lshr_b32 {sA}, {sWV}, 1\ns_lshl1_add_u32 {sA}, {sTT}, {sA}\ns_xor_b32 {sE0}, {sA}, 1\ns_mul_i32 {sA}, {sA}, {TBSTR}\ns_mul_i32 {sE0}, {sE0}, {TBSTR}")
        X(f"v_add_u32 {v(vAA)}, {sA}, {v(vWR+1)}\nv_add_u32 {v(vAA+2)}, {sE0}, {v(vWR+1)}\nv_xor_b32 {v(vAA+1)}, 0x100, {v(vAA)}\nv_xor_b32 {v(vAA+3)}, 0x100, {v(vAA+2)}")
        X2 = Stream()
        X2.need("kvp"); flag(X2, a_fl1 if kP else a_fl2(0), "kvp" if kP else "actP")
        X.need("cs"); corr_a(X, 1); X.mark("c4")
        X.mark("c5")
        S = Stream()
        C = Stream()
        S.need("xl2"); S.mark("k")
        S.need("sl")
        if o["ssplit"] == 2: S.waittok(("s", 0)); S("s_barrier")
        if o["ssplit"] == 3: S.waittok(("s", 1)); S("s_barrier")
        if kP and o["sg0"]: S.need(o["sg0"])
        for half in range(2):
            for ks in range(16 * half, 16 * half + 16):
                S.need(("pd", 3, ks))
                for e in range(1 if "i" in abl else 2): S(f"ds_read_b64_tr_b16 {ag(4*ks+2*e,2)}, {v(vSR)} offset:{(ks&15)*2048+e*512}", tok=("sr", ks))
                if ks % 4 == 3:
                    S.mark("sr%d" % ks); C.need("sr%d" % ks); C.waittok(("sr", ks))
                    if ks == 3: C.need("kvp" if o["prio" if kP else "priof"] else "m3")
                    for k2 in range(ks - 3, ks + 1 if ("a" not in abl or ks == 3) else 0): C(f"{MF16} {v(CS,4)}, {v(CSEL,4)}, {ag(4*k2,4)}, {v(CS,4) if k2 else 0}")
                if ks == 19 and kP and o["sg1"]: S.waittok(("sr", 15)); S("s_barrier"); S.mark("sa"); S.need(o["sg1"])
                if ks == 15: S(f"v_subrev_u32 {v(vSR)}, {R[4]}, {v(vSR)}")
                if ks == 15 and o["ssplit"] in (1, 2): S.waittok(("s", 1)); S.waittok(("sr", 15)); S("s_barrier"); S.mark("sa")
                if ks == 19 and o["ssplit"] in (0, 3) and not (kP and o["sg1"]): S.waittok(("sr", 15)); S("s_barrier"); S.mark("sa")
        S(f"v_add_u32 {v(vWQ)}, {sW8K}, {v(vWR)}")
        for i in range(1, 4): S(f"v_xor_b32 {v(vWQ+i)}, {32*i}, {v(vWQ)}")
        S.waittok(("sr", 31)); S("s_barrier"); S.mark("sb")
        C.mark("cs")
        if o["prio" if kP else "priof"] == 1: S.need("kvp")
        for b in range(nE):
            S.need(("pd", 4, 4 * b + 3)); wread(S, b)
            if b: S.waittok(("wr", b - 1)); S.mark("wr%d" % (b - 1))
        S.waittok(("wr", nE - 1)); S.mark("wr%d" % (nE - 1))
        def res():
            B(f"buffer_load_dwordx4 {v(XR,4)}, {v(vOUT)}, {sX}, {sPCOL} offen", sp=o["spx3"])
            B(f"s_add_u32 {sM}, {sPCOL}, 0x2000\nbuffer_load_dwordx4 {v(XR+4,4)}, {v(vOUT)}, {sX}, {sM} offen", "res", sp=o["spx3"])
        if not o["rord"]: res()
        def tlbw(pos):
            if o["tlbp"] != pos: return
            if o["tlb"] & 1: B(f"buffer_load_dword {v(vFL+1)}, {v(vZ)}, {sOut}, {sPCOL} offen sc1", None, "stok", sp=16); tl.bg[-1].ins[-1].wr = []
            if o["tlb"] & 2: B(f"s_mul_i32 {sM}, {sTT}, {2*TBSTR}\ns_add_u32 {sM}, {sM}, {WS_ACT+TBSTR}\nbuffer_load_dword {v(vFL+1)}, {v(vZ)}, {sWS}, {sM} offen sc1", None, "stok", sp=16); tl.bg[-1].ins[-1].wr = []
            if o["tlb"] & 4 and kP: B(f"buffer_load_dword {v(vFL+1)}, {v(vZ)}, {sWS}, {sAB[0]} offen sc1", None, "stok", sp=16); tl.bg[-1].ins[-1].wr = []
        warm3(2); tlbw(0); dma_s(0, "k"); warm3(3); tlbw(1)
        if o["xord"]: dma_x(3, None, o["spx3"])
        dma_s(1, "k"); warm3(4); tlbw(2)
        if o["rord"]: res()
        def wafter(b):
            n = LORD.index(b)
            return "k" if n < 2 else "sa" if n < 4 else "sb" if n < 6 else "wr%d" % (n - 6) if n < 14 else "r5"
        nB = o.get("nB", 13) if qS else o.get("nBf", 11)
        for n in range(nB):
            if qS and n == o.get("nK", 10): fl_bg(sFK, 0, "fK", "kvl")
            dma_w(LORD[n], wafter(LORD[n]))
        if qS and nB <= o.get("nK", 10): fl_bg(sFK, 0, "fK", "kvl")
        late = LORD[nB:]

        AC2 = 0; AF = 64; NB = 4
        fO = o["fO"] if qS else o["fOf"]; fS = o["fSa"] if qS else o["fS"]
        def af(idx): return ag(AF + 4 * (idx % 16), 4)
        def acts():
            for bb in range(11):
                if bb == fS: fl_bg(sFL, 256, "fS", "fP")
                if bb == fO: fl_bg(sFL, 512, "fO", "fa8")
                r, i = blk(bb)
                pre = ""
                if bb == 10: pre = f"s_cmp_eq_u32 {r}, {43*2048}\ns_cselect_b32 {r}, {'0x20000000' if o['z5'] else sBS[0]}, {r}"
                elif o["wrot"] and bb < 8:
                    pre = f"s_add_u32 {sRW}, {sRW}, 0x800\ns_and_b32 {sRW}, {sRW}, 0x1800\ns_add_u32 {sM}, {r}, {sRW}"; r, i = sM, 0
                elif i == 2: pre = f"s_add_u32 {r}, {r}, 4096"
                for k in range(4):
                    idx = 4 * bb + k
                    aft = {0: "fP", 32: "fS", (4 * o.get("gate", 99) if qS else 99): "pub"}.get(idx, ("mt", idx - 16) if idx >= 16 else None)
                    B(f"{pre}\nbuffer_load_dwordx4 {af(idx)}, {v(vAA+k)}, {sWS}, {r} offen offset:{2048*(i&1)} sc1", ("act", idx), aft, sp=o["spa"]); pre = ""
            if fO == 11: fl_bg(sFL, 512, "fO", "fa8")
            for n in range(16):
                idx = 44 + n; p = 4 * ((n >> 1) & 3) + 2 * (n >> 3)
                pre = "" if n & 1 else f"s_mov_b32 {sM}, {(43+p)*2048}"
                B(f"{pre}\nbuffer_load_dwordx4 {af(idx)}, {v(vAA)}, {sWS}, {sM} offen offset:{2048*(n&1)} sc1", ("act", idx), "fO" if n == 0 else ("mt", idx - 16), sp=o["spo"])
        assert fS >= 5 and fO >= 8
        s = Stream()
        if not qS:
            fl_bg(sFL, 0, "fP", "r5")
            for b in late: dma_w(b, wafter(b))
            acts()
            X2.need("m5"); fl_check(X2, sFL, 0, "fP")
            E.mark("odone"); FS = [X, X2, S, C, E]
        else:
            Z = ST + 8; ZT = F8a; KA = XF
            X2.need("sb")
            X2(f"s_mul_i32 {sD}, {sHD}, {KVREC}\ns_add_u32 {sD}, {sD}, {WS_KVP}\nv_add_u32 {v(vJ)}, {sD}, {v(vL16)}")
            X2(f"v_and_b32 {v(vXD0)}, 0x30, {v(vL16)}\nv_lshrrev_b32 {v(vSR)}, 4, v0\nv_lshl_add_u32 {v(vXD0)}, {v(vSR)}, 2, {v(vXD0)}")
            X2.need("c5")
            fl_check(X2, sFK, 0, "fK")
            X2(f"v_and_b32 {v(vFA)}, 0x38, {v(vFA)}"); X2.mark("gat")
            gsp = o.get("gsp", 48)
            B(f"s_movk_i32 {sM}, 0x4000\nbuffer_load_dwordx4 {v(Z,4)}, {v(vJ)}, {sWS}, {sM} offen sc1", "z", "gat", sp=gsp)
            NG = 2 if "c" in abl else 16
            for p in range(NG):
                if p == o["nP"]: fl_bg(sFL, 0, "fP", None)
                gq = o["gq"]
                pre = "" if p % gq else f"s_lshl_b32 {sM}, {sROT}, 11\ns_and_b32 {sM}, {sM}, {0x4000-1024*gq}" if p == 0 else f"s_add_u32 {sM}, {sM}, {1024*gq}\ns_and_b32 {sM}, {sM}, 0x3fff"
                B(f"{pre}\nbuffer_load_dwordx4 {ag(4*p,4)}, {v(vJ)}, {sWS}, {sM} offen offset:{(p%gq)*1024} sc1", ("g", p), ("pd", 5, p), sp=gsp)
            nL = o.get("nL", 0)
            for b in late[:nL]: dma_w(b, wafter(b))
            if o["nP"] >= 16: fl_bg(sFL, 0, "fP", None)
            for b in late[nL:]: dma_w(b, wafter(b))
            acts()
            xo, xs, zw, zr = (CA[0] + i for i in range(4))
            X2(f"s_add_u32 {sD}, {sW16K}, {R[2]+4096}\nv_add_u32 {v(xo)}, {sD}, {v(vL16)}\nv_xor_b32 {v(xs)}, 0x4000, {v(xo)}")
            X2(f"v_add_u32 {v(zw)}, {sD}, {v(vXD0)}\nv_lshl_add_u32 {v(zr)}, {v(vSR)}, 4, {sD}"); X2.mark("xa")
            X2.waittok("z")
            for i in range(4): X2(f"v_lshlrev_b32 {v(ZT+i)}, 16, {v(Z+i)}\nv_and_b32 {v(ZT+4+i)}, 0xffff0000, {v(Z+i)}")
            for i in range(0, 8, 2): X2(f"v_permlane16_swap_b32 {v(ZT+i)}, {v(ZT+i+1)}")
            for i in range(0, 8, 2): X2(f"v_add_f32 {v(ZT+i)}, {v(ZT+i)}, {v(ZT+i+1)}")
            for i in (0, 4): X2(f"v_permlane32_swap_b32 {v(ZT+i)}, {v(ZT+i+2)}")
            for i in (0, 4): X2(f"v_add_f32 {v(ZT+i)}, {v(ZT+i)}, {v(ZT+i+2)}")
            for m in ("row_ror:4", "row_ror:8"):
                for i in (0, 4): X2(f"v_add_f32_dpp {v(ZT+i)}, {v(ZT+i)}, {v(ZT+i)} {m} {DPPM}")
            X2(f"v_cvt_pk_bf16_f32 {v(Z)}, {v(ZT)}, {v(ZT+4)}")
            X2.need("r5"); X2(f"ds_write_b32 {v(zw)}, {v(Z)} offset:4096\nds_read_b128 {v(Z,4)}, {v(zr)} offset:4096", tok="zr"); X2.mark("zr")
            X2.need("m5"); fl_check(X2, sFL, 0, "fP")
            XC = Stream(); XC.need("xa"); XC.need("r5"); XC.need(("sib", PF))
            for k in range(4):
                if k == 2: XC.need(("sib", PF + 16))
                XC(f"ds_write_b128 {v(xo)}, {v(PF+8+16*(k>>1)+4*(k&1),4)} offset:{1024*k}", tok="xw")
            XC.waittok("xw"); XC("s_barrier")
            for k in range(4): XC(f"ds_read_b128 {v(PF+8+16*(k>>1)+4*(k&1),4)}, {v(xs)} offset:{1024*k}", tok="xr")
            XC.waittok("xr")
            if o["xb2"]: XC("s_barrier")
            XC.mark("xr")
            G = Stream(); G.need("m5")
            if o["pk"]: G.need(("sib", PF + 16))
            for p in range(NG):
                if p % 2 == 0: G.waittok(("g", p + 1))
                G(f"{MF} {v(KA,16)}, {v(SEL[0],4)}, {ag(4*p,4)}, {v(KA,16) if p else 0}")
            G.mark("gdone")
            KP = KA + 16
            G(f"s_add_u32 {sSO[0]}, {sHD}, 86\ns_lshl_b32 {sSO[0]}, {sSO[0]}, 10")
            for i in range(4): G(f"v_cvt_pk_bf16_f32 {v(KP+i)}, {v(KA+2*i)}, {v(KA+2*i+1)}")
            G.need("zr"); G.waittok("zr")
            for i in range(4): G(f"v_permlane16_swap_b32 {v(KP+i)}, {v(Z+i)}")
            self.stamp(G, "kvx")
            O = Stream()
            for n, A in ((0, AU[4]), (1, KA), (3, AU[5]), (2, TA)):
                if n == 0: G.need("e4")
                if n == 1: G.need("xr")
                if n == 2: G.need("q5")
                G(f"{MF} {v(A,16)}, {v(KP,4)}, {v(PF+8*n,4)}, 0\n{MF} {v(A,16)}, {v(Z,4)}, {v(PF+8*n+4,4)}, {v(A,16)}"); G.mark(("om", n))
                O.need(("om", n))
                O(f"v_add_f32 {v(A+8)}, {f2u(1e-6)}, {v(A+8)}\nv_rcp_f32 {v(A+8)}, {v(A+8)}")
                O(f"s_add_u32 {sSO[1]}, {sAB[n]}, {sSO[0]}")
                if o["opk"] and n:
                    for i in range(0, 8, 2): O(f"v_pk_mul_f32 {v(A+i,2)}, {v(A+i,2)}, {v(A+8,2)} op_sel_hi:[1,0]")
                else:
                    for i in range(8): O(f"v_mul_f32 {v(A+i)}, {v(A+i)}, {v(A+8)}")
                for i in range(4): O(f"v_cvt_pk_bf16_f32 {v(A+12+i)}, {v(A+2*i)}, {v(A+2*i+1)}")
                O(f"buffer_store_dwordx4 {v(A+12,4)}, {v(vL16)}, {sWS}, {sSO[1]} offen sc1", tok="actO")
                if o.get("nost") and n != 2: O.pop()
            self.stamp(O, "o"); O.mark("odone")
            FS = [X, X2, S, C, XC, G, O, E] if o["ofirst"] else [X, X2, S, C, XC, G, E, O]
        def grp2(pre, text, post=None):
            g = Stream(); g.small = o["nds2"]
            if pre: pre(g)
            g(text)
            if post: post(g)
            M.append(g)
        def wo(n): return (lambda k, c=2: v(96 + 16 * n + k, c)) if n < 10 else (lambda k, c=2: ag(128 + 16 * ((n - 7) % 8) + k, c))
        for bb in range(11):
            for kk, k in enumerate((1, 2, 3, 0) if bb == 10 else range(4)):
                idx = 4 * bb + k
                for cc in range(4):
                    cb = 3 - cc if kk & 1 else cc
                    def pre(g):
                        if kk == 0:
                            if bb == 0:
                                g.need("wr7")
                                if qS: g.need("odone" if o["p2hold"] else "gdone")
                            if bb == fS:
                                g.need("pub"); fl_check(g, sFL, 256, "fS")
                                g(f"v_lshrrev_b32 {v(vFA)}, 1, {v(vN16)}\ns_and_b32 {sFL}, {sFL}, 0xffffff3f"); g.mark("fa8")
                            if bb == fO: g.need("pub"); fl_check(g, sFL, 512, "fO")
                            if bb >= nE: g.need("wq%d" % bb); g.waittok(("wr", bb), lat=0)
                        if kk % 2 == 0:
                            g.waittok(("act", 4 * bb + (kk + 1 if bb < 10 else 2 + kk // 2)), ahead=o["ah2"] if bb >= o["p2e"] else 0, lat=0 if bb >= o["p2e"] else None)
                    def post(g):
                        g.mark(("mt", idx))
                        if kk == 3: g.mark(("mm", bb)); self.stamp(g, "mm%d" % bb)
                    A = ag(AC2 + 16 * k + 4 * cb, 4)
                    grp2(pre if cc == 0 else None, f"{MF16} {A}, {ag(128+16*(bb%8)+4*cb,4)}, {af(idx)}, {A if bb else 0}", post if cc == 3 else None)
        if fO == 11:
            g = Stream(); g.need("pub")
            if o.get("qfirst"): g.need(("qa", 2))
            fl_check(g, sFL, 512, "fO"); M.append(g)
        for n in range(16):
            for cb in range(4):
                def pre(g):
                    g.need(("wo", n)); g.waittok(("wo", n), lat=0)
                    if n % 2 == 0 or n > 12: g.waittok(("act", 44 + (n if n >= 12 else n + 1)), ahead=o["aho"], lat=0)
                def post(g):
                    if n == 15: g.mark("oend"); self.stamp(g, "mm14")
                A = ag(AC2 + 4 * cb, 4)
                grp2(pre if cb == 0 else None, f"{MF16} {A}, {wo(n)(4*cb,4)}, {af(44+n)}, {A}", post if cb == 3 else None)
        W = Stream(); W.need("m5")
        for b in range(nE, 11):
            W.need(("mm", b - 8)); wread(W, b); W.mark("wq%d" % b)
        W2s = Stream(); W2s.need("m5")
        W2s(f"v_add_u32 {v(vXR)}, {R[4]}, {v(vWR)}")
        for i in range(1, 4): W2s(f"v_xor_b32 {v(vXR+i)}, {32*i}, {v(vXR)}")
        W2s.waittok(("w", 14), lat=o["wlat"]); W2s.need("odone"); W2s("s_barrier"); W2s.mark("wob")
        for n in range(16):
            if n == 8: wbump(W2s, vXR, -R[4])
            if n >= 10: W2s.need(("mm", n - 7))
            wfrags(W2s, wo(n), vXR, (n & 7) * 4096, ("wo", n)); W2s.mark(("wo", n))
        X = Stream(); X.need("odone"); X.need("fP")
        flag(X, a_fl2(2 if qS else 1), "actO" if qS else "actS", o["stlat2"])
        X.mark("pub"); Xf = X; X = Stream(); X.need("pub"); X.need("wq10")
        RW = vKA; RR = [vWD, vWD + 2, vT2, vJ]; Y = ACC[0]; Pp = ACC[1]
        assert Y == 48 and Pp == 64
        vJ2 = (vSR, vXD0)
        rr = lambda k, e: v(RR[k] + e) if k < 3 else v(vJ2[e])
        X(f"v_lshrrev_b32 {v(vT0)}, 4, v0\nv_and_b32 {v(vT1)}, 7, v0\nv_xor_b32 {v(vT0)}, {v(vT0)}, {v(vT1)}\nv_and_b32 {v(RW)}, 0xf0, {v(vL16)}")
        X(f"v_add_lshl_u32 {v(vT0)}, {v(RW)}, {v(vT0)}, 4\ns_add_u32 {sA}, {sW16K}, {R[2]}\nv_add_u32 {v(RW)}, {sA}, {v(vT0)}\nv_xor_b32 {v(RW+1)}, 64, {v(RW)}")
        X(f"v_lshrrev_b32 {v(vT0)}, 3, v0\nv_lshlrev_b32 {v(vT1)}, 1, {v(vT1)}\nv_xor_b32 {v(vT1)}, {v(vT1)}, {v(vT0)}\nv_lshlrev_b32 {v(vT1)}, 4, {v(vT1)}\nv_lshl_add_u32 {v(vT0)}, {v(vT0)}, 8, {v(vT1)}")
        X(f"v_add_u32 {v(vT0)}, {sA}, {v(vT0)}")
        for k in range(4):
            m = 16384 * ((k + 1) & 3) + 4096 * k
            X(f"v_xor_b32 {rr(k,0)}, {m}, {v(vT0)}\nv_xor_b32 {rr(k,1)}, {m+16}, {v(vT0)}")
        for it in range(2):
            for i in range(4):
                X(f"v_lshlrev_b32 {v(Y+8*it+2*i)}, 16, {v(XR+4*it+i)}\nv_and_b32 {v(Y+8*it+2*i+1)}, 0xffff0000, {v(XR+4*it+i)}")
        for i in range(4):
            X(f"v_lshlrev_b32 {v(vT0)}, 16, {v(B2+i)}\nv_and_b32 {v(vT1)}, 0xffff0000, {v(B2+i)}")
            for it in range(2):
                X(f"v_add_f32 {v(Y+8*it+2*i)}, {v(Y+8*it+2*i)}, {v(vT0)}\nv_add_f32 {v(Y+8*it+2*i+1)}, {v(Y+8*it+2*i+1)}, {v(vT1)}")
        X(f"s_add_u32 {sB}, {sPCOL}, 0x2000"); X.mark("fin")
        Q = Stream(); Z2 = Stream(); Q.need("fin"); Q.need("wob")
        def qw(k, slot, tok):
            for cb in range(4): Q(f"ds_write_b128 {v(RW+(cb&1))}, {ag(AC2+16*k+4*cb,4)} offset:{slot*4096+(cb>>1)*128}", tok=tok)
        def qr(k):
            for it in range(2):
                for e in range(2): Q(f"ds_read_b128 {v(Pp+16*(k&1)+8*it+4*e,4)}, {rr(k,e)} offset:{it*2048}", tok=("qr", k, it))
            Q.mark(("qr", k))
        for k in range(1, 4): Q.need(("mt", 40 + k)); qw(k, k - 1, "qw")
        Q.waittok("qw", lat=80); Q("s_barrier"); self.stamp(Q, "red0")
        for k in range(3):
            if k == 2: Q.need(("qa", 0))
            qr(k)
            Z2.need(("qr", k)); Z2.waittok(("qr", k, 1))
            for i in range(16): Z2(f"v_add_f32 {v(Y+i)}, {v(Y+i)}, {v(Pp+16*(k&1)+i)}")
            Z2.mark(("qa", k))
        Q.need("oend"); Q.need(("qa", 1)); qw(0, 3, "qw2"); self.stamp(Q, "red"); qr(3)
        Z2.need(("qr", 3))
        for it in range(2):
            Z2.waittok(("qr", 3, it), lat=100)
            for i in range(0, 8, 2): Z2(f"v_pk_add_f32 {v(Y+8*it+i,2)}, {v(Y+8*it+i,2)}, {v(Pp+16+8*it+i,2)}")
            for i in range(4): Z2(f"v_cvt_pk_bf16_f32 {v(XR+4*it+i)}, {v(Y+8*it+2*i)}, {v(Y+8*it+2*i+1)}")
            Z2(f"buffer_store_dwordx4 {v(XR+4*it,4)}, {v(vOUT)}, {sOut}, {sB if it else sPCOL} offen{' sc1' if o['outsc1'] else ''}"); self.stamp(Z2, "out%d" % it)
        tl.sched(M, FS + [Xf, W, Q, Z2, W2s, X], nds=o.get("nds", 3))
        s = Stream()
        if kP:
            noe = self.lab("noe")
            s(f"s_or_b32 {sA}, s2, {sWV}\ns_cmp_lg_u32 {sA}, 0\ns_cbranch_scc1 {noe}")
            s(f"s_mov_b64 exec, 1\nbuffer_store_dword {v(vTAG)}, {v(vZ)}, {sWS}, 0 offen sc1\ns_mov_b64 exec, -1", cond=True)
            s(noe + ":")
        if o.get("probe"):
            lp, l2, l3 = self.lab("pad"), self.lab("ref"), self.lab("skip"); K = o.get("K", 4)
            s("s_waitcnt vmcnt(0)"); self.stamp(s, "end"); s("s_waitcnt lgkmcnt(0)")
            if o.get("st") == "start": s("s_mov_b32 s60, s100")
            s(f"s_or_b32 {sA}, s2, {sWV}\ns_cmp_lg_u32 {sA}, 0\ns_cbranch_scc1 {l2}")
            s(f"v_mov_b32 {v(vT0)}, s100\nv_mov_b32 {v(vT1)}, {v(vTAG)}\nbuffer_store_dwordx2 {v(vT0,2)}, {v(vZ)}, {sWS}, 0 offen offset:2048 sc1", cond=True)
            s(f"{l2}:\ns_sleep 64\nbuffer_load_dwordx2 {v(vT0,2)}, {v(vZ)}, {sWS}, 0 offen offset:2048 sc1\ns_waitcnt vmcnt(0)\nv_cmp_ne_u32 vcc, {v(vT1)}, {v(vTAG)}\ns_nop 4\ns_cbranch_vccnz {l2}")
            s(f"v_readfirstlane_b32 s66, {v(vT0)}\ns_nop 4\ns_sub_u32 s60, s60, s66")
            if o["probe"] == "min": s("s_sub_u32 s60, 1200, s60")
            else: s("s_add_u32 s60, s60, 300")
            if o.get("only", role) != role: s("s_mov_b32 s60, 0")
            s(f"s_mul_i32 s60, s60, {K}\ns_add_u32 s60, s60, 4000")
            s(f"{lp}:\ns_memrealtime s[64:65]\ns_waitcnt lgkmcnt(0)\ns_sub_u32 s64, s64, s66\ns_cmp_lt_u32 s64, s60\ns_cbranch_scc1 {lp}")
        elif o["stamps"]:
            s("s_waitcnt vmcnt(0)\ns_memrealtime s[64:65]\ns_waitcnt lgkmcnt(0)")
            s(f"s_lshl2_add_u32 {sA}, s2, {sWV}\ns_lshl_b32 {sA}, {sA}, 6\ns_add_u32 {sA}, {sA}, {WS_STAMP}")
            for i, r in enumerate(["s100"] + ["s%d" % k for k in STAMPR] + ["s64"]):
                s(f"v_mov_b32 {v(vT1)}, {r}\nbuffer_store_dword {v(vT1)}, {v(vZ)}, {sWS}, {sA} offen offset:{4*i}")
        tl.straight(s)
        assert tl.bi == len(tl.bg)
        tl.log.append("end t=%d forced=%d" % (tl.t, tl.forced))
        if o["log"]: sys.stderr.write("\n".join(role + " " + x for x in tl.log) + "\n")
        return tl.out

    def build(self):
        outs = {}
        for role in ("att", "ffn"):
            st = {}
            outs[role] = finalize(self.role(role), st)
            sys.stderr.write("%s: %s\n" % (role, st))
        ia, jf = outs["att"].index("L_split:"), outs["ffn"].index("L_split:")
        assert outs["att"][:ia] == outs["ffn"][:jf], "common start differs"
        parts = [outs["att"][:ia] + ["s_branch L_att"], outs["att"][ia + 1:] + ["s_endpgm"], outs["ffn"][jf + 1:]]
        tmp = [f"L_pad_{r}_{k}:" for r in ("att", "ffn") for k in range(4)] + ["L_att:", "L_ffn:", "L_end:", NAME + "_kernel:"]
        sz = instr_sizes(parts[0] + parts[1] + parts[2] + tmp); lam = self.o["lam"] / 100
        text, _ = layout(parts[0], sz[:len(parts[0])], lam); p0 = len(parts[0])
        for r, part in (("att", parts[1]), ("ffn", parts[2])):
            so = 64 * self.o["ro"]
            x, n = layout(part, sz[p0:p0 + len(part)], lam, (lambda k: [f"L_pad_{r}_{k}:", f"s_cbranch_execz PADNEXT{k}"]) if self.o["pad"] else None, so)
            p0 += len(part)
            assert not self.o["pad"] or 4 <= n <= 8
            x = [re.sub(r"PADNEXT(\d)", lambda m: f"L_pad_{r}_{int(m.group(1))+4}" if int(m.group(1)) + 4 < n else f"L_ret_{r}", l) for l in x]
            text += [".p2align 12"] + ([".fill %d, 4, 0xbf800000" % (so // 4)] if so else []) + [f"L_{r}:"] + x
            sys.stderr.write("%s: %d landing pads\n" % (r, n))
        text += ["L_end:", "s_endpgm"]
        body = "\n".join(t if t.endswith(":") else "    " + t for t in text) + "\n"
        hdr = ["@launch grid=(256,1,1) block=(256,1,1) lds=163840",
               "out = x + Hedgehog-linear-attention(LN(x)) + FFN_gelu(LN(x)); one persistent launch, 256 co-resident workgroups (one per CU).",
               "Straight-line code written by my own generator (instruction lists + list scheduler + wait/hazard pass).",
               "Phase 1 (128 tokens x 192 features per workgroup, weights held in AGPRs, x staged in LDS by DMA):",
               "  role A: K,V of 4 heads -> dual softmax (true max subtracted) -> partial phi_k^T [v|1]; then 1-2 hidden blocks -> GELU(tanh form)",
               "  role B: 4 hidden blocks -> GELU; then Q of 4 heads -> dual softmax; sums the 16 partial kv/z records; o = num / (den + 1e-6)",
               "  LayerNorm is applied after the product: rank-1 MFMA with column sums (mean, bias) and a per-token 1/std scale.",
               "Phase 2 (64 tokens x 64 columns per workgroup): [h | o] @ [w2 ; wo] + b2 + x.",
               "Hand-offs through d_ws: write-through (sc1) stores, vmcnt wait, then a tagged flag per producing wave; consumers poll with sc1 loads.",
               "The tag is d_ws[0] + constant (read at entry, advanced by workgroup 0 at its end); it only tells this launch's hand-offs from older ones.",
               "Poll loops are bounded so that a broken launch cannot hang the device."]
        m = module(hdr, [(NAME + "_kernel", body, 512, 256)])
        if self.o["pa"]:
            pad = ".p2align 12\n" + (".fill %d, 4, 0xbf800000\n" % (64 * self.o["po"]) if self.o["po"] else "")
            m = m.replace(".text\n", ".text\n" + pad, 1)
        return m

if __name__ == "__main__":
    opt = {}
    for x in sys.argv[2:]:
        k, _, val = x.partition("=")
        opt[k] = (int(val) if val.lstrip("-").isdigit() else val) if val else True
    open(sys.argv[1], "w").write(Gen(**opt).build())
```

```python
import sys, struct, os, re
from asmlib import module
from backend import *

NAME = "parallel_sum__linear_kernel_hedgehog__dense_activation_gelu__prompt"
def f2u(x): return "0x%x" % struct.unpack("<I", struct.pack("<f", x))[0]
LOG2E = 1.4426950408889634
K0 = -2.0 * LOG2E * 0.7978845608028654

WS_G = 0; WS_FL1 = 0x1000; WS_FL2 = 0x3000; WS_STATS = 0x8000; WS_KVP = 0x40000; WS_ACT = 0x200000
KVREC = 17 * 1024; TBSTR = 118 * 1024; WS_STAMP = 0x1000000
TAGC = 0x9E3779B9
R = [0, 32768, 65536, 98304, 131072]
SCR = R[3] + 16384
FFN_BLK0 = [0, 6, 11, 16, 22, 27, 32, 38]
FFN_NBLK = [6, 5, 5, 6, 5, 5, 6, 5]
SBL = [[4, 5, 10], [15, 20, 21], [26, 31, 43], [36, 37, 42]]
def pack(l): return "0x%x" % sum(b << (8 * i) for i, b in enumerate(l))

sX, sW, sWS, sW2, sWo, sOut, sAux, sB2 = ("s[%d:%d]" % (i, i + 3) for i in (8, 12, 16, 20, 24, 28, 32, 36))
sM, sN = "s0", "s1"
sWV, sT, sJ, sU, sI = "s3", "s4", "s5", "s6", "s7"
sROT, sQ4, sTT, sCB, sFL, sSTB = "s64", "s65", "s66", "s67", "s68", "s69"
sA, sB, sC, sD = "s70", "s71", "s72", "s73"
sXB = ["s74", "s75", "s76", "s77"]
sAB = ["s78", "s79", "s80", "s81"]
sXK = ["s82", "s83"]; sSO = ["s84", "s85"]
sBA, sBB = "s86", "s87"; sBS = ["s88", "s89", "s90"]
sPCOL, sW8K, sW16K = "s91", "s92", "s93"
sBLKP, sBLKS = "s94", "s95"; sFK = "s95"; sHD = sHK = "s6"
sE0, sE1 = "s96", "s97"
sPAR = "s[98:99]"
STAMPR = [60, 40, 42, 44, 50, 52, 46, 54, 62, 56, 58, 48]

class VA:
    def __init__(self, start=1): self.n = start
    def __call__(self, k=1, al=1):
        self.n = (self.n + al - 1) // al * al
        r = self.n; self.n += k
        assert self.n <= 256, "out of VGPRs"
        return r
def v(i, k=1): return "v%d" % i if k == 1 else "v[%d:%d]" % (i, i + k - 1)
def ag(i, k=1): return "a%d" % i if k == 1 else "a[%d:%d]" % (i, i + k - 1)
MF = "v_mfma_f32_32x32x16_bf16"; MF16 = "v_mfma_f32_16x16x32_bf16"
DPPM = "row_mask:0xf bank_mask:0xf"

def srd(s, d, p, n):
    d0 = int(d[2:].split(":")[0])
    s(f"s_mov_b32 s{d0}, s{p}\ns_mov_b32 s{d0+1}, s{p+1}\ns_mov_b32 s{d0+2}, {n}\ns_mov_b32 s{d0+3}, 0x20000")

class Gen:
    def __init__(self, **opt):
        self.o = dict(stamps=False, warm=0, outsc1=True, sp=54, sp1=48, ahead=10, log=False, umode=0, vlat=600, stlat=600,
                      ah0=0, s0p=7, pgo=0, c1l=0, spre=0, mb=0, sp0g=0, pa=1, po=0, pad=2, ro=0, pf=6, tw=0, blag=0, bhalf=20, t1=0, t1s=0, spaA=72, ah2A=2, p2eA=3, spo=72, aho=2, spoA=48, ahoA=8, xb2=0, opk=0, ofirst=0, gpk=0, warmb=4, phl=1, a1=5, a2=15, a3=26, b2=17, b3=27, srot=1, xrot=1, wrot=0, sg=200, sv=1, x1l=650, NP=20, bh=100, vpen=6, llat=130, tlb=0, tlbp=0, z5=1, cbx=2, wA=0, wq=0, hsw=2, gq=4, pk=1, kz=1, xlate=0, sg0=0, sg1=0, al=1, lam=10, spx=56, spx3=64, sps0=64, sps1=56, spw0=80, spw1=64, ssplit=3, xord=0, rord=1, fpace=18, priof=0, nds2=1, p1v=1, s1=7, x2a="b5", xa=1, npc=2, nP=16, p2hold=1, spa=72, p2e=3, stlat2=600, qx=4, nq=2, plat0=0, plat=0, sp0=24, warmc=1, stag=1, warmf=0, wsp=180, wpos=0, wpos2=6, cbmix=0, warmm=2, sw=0, px=1, slpK=0, ah0b=6, lag=2, s0=4, slp=0, slat=750, wlat=700, wlat0=1100, nE=4, pace=3, kvpace=8, kvhold=99, hold=0, kvl=6, prio=1, fSa=5, fS=6, fO=8, fOf=10, ah2=4, fo=2)
        self.o.update(opt); self.uid = 0
        Haz.SW = self.o["hsw"]
        global TBSTR, WS_ACT
        TBSTR = 118 * 1024 + self.o.get("tbpad", 0); WS_ACT = 0x200000 + self.o.get("actoff", 0)
    def lab(self, p):
        self.uid += 1; return "L_%s_%d" % (p, self.uid)
    def stamp(self, s, name):
        if self.o.get("dly") == name and self.o.get("dr", self.cur) == self.cur:
            s("s_sleep 8"); s[-1].cost = 0
        if not self.o["stamps"]: return
        names = str(self.o.get("st", "x0,b0,p1,u1,u2,u3,u4,u5,q,o,mm14,red")).split(",")
        if name in names:
            r = STAMPR[names.index(name)]; s(f"s_memrealtime s[{r}:{r+1}]")
        if "c:" + name in names:
            r = STAMPR[names.index("c:" + name)]; s(f"s_memtime s[{r}:{r+1}]")

    def role(self, role):
        kP = role == "att"; qS = not kP; o = self.o; self.cur = role; self.side = getattr(self, "side", {}); self.side[role] = []
        tl = TL(o["sp"], o["vlat"]); B = tl.B
        def watch(name):
            x = Stream(); self.stamp(x, name); return x[0].text if x else None
        tl.watch = watch; tl.m16 = True; tl.pen = o.get("pen", 0); tl.hold = o["bh"]; tl.vpen = o["vpen"]; tl.llat = o["llat"]
        s = Stream(); a = VA(1)
        stride, strS = (3072, 2752) if kP else (2752, 3072)
        vL16 = a(); vXD0 = a(); vXD = a(4); vOUT = a(); vTAG = a(2, 2); vN16 = a(); vXR = a(4); vSR = a()
        vT0 = a(1, 2); vT1 = a(); vT2 = a(); vT3 = a()
        vSD = a(4); vWD = a(4); vPR = vWD + 1; vWR = a(2); vFL = a(2, 2); vFA = a(); vZ = a()
        vAA = vXD; vWQ = vSD
        assert vXD == 3
        vKA = a(2)
        XR = a(8, 4); B2 = a(4, 4)
        ACC = [a(16, 4), a(16, 4)]; NX = 8; XF = a(4 * NX, 4)
        CA = [a(4, 4), a(4, 4)]; ST = a(16, 4); CBS = a(4, 4); CS = a(4, 4); CSEL = a(4, 4); vPD = CBS
        KC = [a(3) for _ in range(4)]; KCS = a(3); vB1 = a()
        F4 = a(4, 4); F8a = a(8, 4); TA = a(16, 4); G4 = F4
        if kP:
            ONES = a(4, 4); SEL = [a(4, 4), a(4, 4)]; F8b = a(8, 4); PHI = [a(4, 4)]; KV = a(16, 4); TB = a(16, 4); HO = F8b
        else:
            SEL = [a(4, 4)]; F8b = a(4, 4); PHI = [a(4, 4), a(4, 4)]; PF = a(32, 4); HO = F8a
        vJ = a(4)
        sys.stderr.write("%s VGPRs: %d\n" % (role, a.n))
        if kP:
            o = dict(o)
            for k in ("spa", "ah2", "p2e", "spo", "aho"): o[k] = o[k + "A"]
        sp1 = o["sp1"]; abl = str(o.get("abl", ""))
        tmp = ACC[0]
        def run4(pre, vb, srdn, tok, after, sp=None, so=sM):
            for q in range(4):
                B(f"{pre if q == 0 else ''}\nbuffer_load_dwordx4 {v(vb+q)}, {srdn}, {so} offen offset:{1024*q} lds", tok, after, sp)
        def dma_x(i, after, sp=None, ks=(0, 1)):
            for k in ks:
                pre = f"s_add_u32 m0, {sW8K}, {R[i]+k*4096}"
                if i and o["xrot"]:
                    pre = f"s_xor_b32 m0, {sXB[0]}, {R[i]+k*4096}"
                    if (i, k) == (2, 0):
                        pre = (f"s_bitcmp1_b32 {sI}, {o['xrot']-1}\ns_cselect_b32 {sM}, {sXK[1]}, {sXK[0]}\ns_cselect_b32 {sXK[1]}, {sXK[0]}, {sXK[1]}\ns_cselect_b32 {sXB[0]}, 0x1000, 0\n"
                               f"s_mov_b32 {sXK[0]}, {sM}\ns_or_b32 {sXB[0]}, {sXB[0]}, {sW8K}\n") + pre
                run4(pre + f"\ns_add_u32 {sM}, {sXB[i]}, {sXK[k]}", vXD, sX, ("x", i), after, sp)
        def dma_xp(r, after, sp):
            pre = "" if r == 0 else f"s_add_u32 {sXK[1]}, {sXK[1]}, 256\ns_and_b32 {sXK[1]}, {sXK[1]}, 0x380\n"
            run4(pre + f"s_add_u32 m0, {sXK[0]}, {8192*r}\ns_add_u32 {sM}, {sXB[1]}, {sXK[1]}", vXD, sX, ("xp", r), after, sp)
        PSL = [R[4], R[4] + 16384, R[2], R[2] + 16384, R[3], R[3] + 16384, R[4], R[4] + 16384]
        s("s_cmp_ge_u32 s2, 256\ns_cbranch_scc1 L_end")
        sk = int(os.environ.get("SKEW", "0")) if o["stamps"] else 0
        if sk:
            s(f"s_xor_b32 s4, s2, 7\ns_and_b32 s4, s4, 7\ns_mul_i32 s4, s4, {sk}\nL_sk:\ns_cmp_eq_u32 s4, 0\ns_cbranch_scc1 L_skd\ns_sleep 1\ns_sub_u32 s4, s4, 1\ns_branch L_sk\nL_skd:")
        s("s_load_dwordx16 s[40:55], s[0:1], 0\ns_load_dwordx8 s[56:63], s[0:1], 64")
        if o["stamps"]: s("s_memrealtime s[100:101]")
        s(f"s_lshr_b32 {sI}, s2, 3")
        if o["warmc"] == 1:
            s(f"s_getpc_b64 s[72:73]\nL_pc:\ns_sub_u32 s72, s72, L_pc-{NAME}_kernel\ns_subb_u32 s73, s73, 0", glue=True)
            s(f"s_lshl_b32 {sA}, {sI}, 11\nv_lshrrev_b32 v1, 4, v0\nv_lshl_add_u32 v1, v1, 7, {sA}\nv_min_u32 v1, L_end-{NAME}_kernel, v1")
            s(f"global_load_dword {v(XR+4)}, v1, s[72:73]")
        s(f"v_lshrrev_b32 v1, 6, v0\nv_and_b32 v0, 63, v0\nv_readfirstlane_b32 {sWV}, v1\nv_lshlrev_b32 v1, 4, v0")
        s(f"s_and_b32 {sA}, s2, 7\ns_lshr_b32 {sROT}, {sI}, 2\ns_and_b32 {sU}, {sI}, 3")
        s(f"s_and_b32 {sT}, {sA}, 1\ns_lshl3_add_u32 {sT}, {sT}, {sROT}\ns_lshr_b32 {sQ4}, {sA}, 1")
        if o.get("p2x", 1):
            s(f"s_andn2_b32 {sC}, 1, {sA}\ns_lshl2_add_u32 {sA}, {sC}, {sQ4}")
        s(f"s_lshr_b32 {sC}, {sI}, 3\ns_lshl2_add_u32 {sTT}, {sA}, {sC}")
        s(f"s_lshl2_add_u32 {sA}, {sT}, {sQ4}\ns_lshl_b32 {sXB[0]}, {sA}, 15")
        s(f"s_lshl2_add_u32 {sD}, {sU}, {sWV}\ns_lshl_b32 {sA}, {sD}, 11\ns_add_u32 {sSO[0]}, {sXB[0]}, {sA}")
        s(f"s_lshl_b32 {sSTB}, {sT}, 11\ns_add_u32 {sSTB}, {sSTB}, {WS_STATS}\ns_lshl4_add_u32 {sD}, {sQ4}, {sD}\ns_lshl_b32 {sD}, {sD}, 5\ns_add_u32 {sFL}, {sD}, {sSTB}")
        s(f"v_and_b32 {v(vOUT)}, 0x70, v1\nv_and_b32 v3, 0x30, v0\nv_xor_b32 v2, {v(vOUT)}, v3\nv_lshrrev_b32 v3, 3, v0\nv_lshl_add_u32 v3, v3, 10, v2")
        for q in range(3, 0, -1):
            s(f"v_xor_b32 {v(vXD+q)}, {64*(q&1)}, v3\nv_add_u32 {v(vXD+q)}, {7168*q}, {v(vXD+q)}")
        s(f"s_lshr_b32 {sB}, {sWV}, 1\ns_add_u32 {sA}, {sQ4}, {0 if 'n' in abl else sB}\ns_and_b32 {sA}, {sA}, 3\ns_lshl2_add_u32 {sA}, {sT}, {sA}\ns_lshl_b32 {sXB[1]}, {sA}, 15")
        s(f"s_and_b32 {sA}, {sWV}, 1\ns_lshl3_add_u32 {sB}, {sB}, {sA}\ns_lshl_b32 {sXK[0]}, {sB}, 12\ns_add_u32 {sA}, {sA}, {sROT}\ns_lshl_b32 {sA}, {sA}, 7\ns_and_b32 {sXK[1]}, {sA}, 0x380")
        s(f"s_mov_b32 s10, {2048*1024}\ns_mov_b32 s11, 0x20000\ns_mov_b32 s18, 0x10000000\ns_mov_b32 s19, 0x20000")
        def ppat():
            s(f"s_and_b32 {sJ}, {sU}, 1\ns_lshl1_add_u32 {sJ}, {sQ4}, {sJ}\ns_lshl_b32 {sE1}, {sWV}, 12")
            s(f"s_mov_b32 s70, {pack(FFN_BLK0[:4])}\ns_mov_b32 s71, {pack(FFN_BLK0[4:])}\ns_lshl_b32 {sC}, {sJ}, 3\ns_lshr_b64 s[70:71], s[70:71], {sC}\ns_and_b32 {sBLKP}, s70, 0xff")
            s(f"s_lshl_b32 {sPCOL}, {sBLKP}, 6\ns_lshl_b32 {sD}, {sJ}, 7\ns_add_u32 {sD}, {sD}, 1024\ns_movk_i32 {sA}, 2752\ns_movk_i32 {sC}, 128\ns_mov_b32 s15, 0x20000")
            s(f"s_cmp_lt_u32 {sU}, 2\ns_cselect_b32 {sPCOL}, {sD}, {sPCOL}\ns_cselect_b32 {sA}, 3072, {sA}\ns_cselect_b32 {sB}, 1, 2\ns_cselect_b32 {sC}, 1024, {sC}\ns_cselect_b32 {sE0}, 7, 5", glue=True)
            s(f"s_lshl_b32 s14, {sA}, 9\ns_mul_i32 {sD}, {sWV}, {sA}\ns_mov_b32 {sSO[1]}, {sPCOL}\ns_lshl4_add_u32 {sPCOL}, {sD}, {sPCOL}\ns_lshl_b32 {sBLKS}, {sA}, 6")
            s(f"v_lshrrev_b32 {v(vT0)}, 4, v0\nv_and_b32 {v(vT1)}, 15, v0\nv_lshlrev_b32 {v(vT3)}, {sB}, {v(vT0)}\nv_xor_b32 {v(vT1)}, {v(vT1)}, {v(vT3)}")
            s(f"v_mul_u32_u24 {v(vT0)}, {sA}, {v(vT0)}\nv_lshrrev_b32 {v(vT3)}, 3, {v(vT1)}\nv_mad_u32_u24 {v(vT0)}, {v(vT3)}, {sC}, {v(vT0)}\nv_and_b32 {v(vT1)}, 7, {v(vT1)}")
            s(f"v_lshl_add_u32 {v(vPD)}, {v(vT1)}, 4, {v(vT0)}\ns_lshl_b32 {sA}, {sA}, 2\ns_sub_u32 {sA}, {sA}, 1024")
            for q in range(1, 4): s(f"v_add_u32 {v(vPD+q)}, {sA}, {v(vPD+q-1)}")
        if o["pgo"]: ppat()
        if o["warmc"] >= 2:
            s(f"s_lshl2_add_u32 {sA}, {sI}, {sWV}\ns_mul_i32 {sA}, {sA}, 384\ns_min_u32 {sA}, {sA}, L_end-{NAME}_kernel-384")
            s(f"s_getpc_b64 s[72:73]\nL_pc:\ns_sub_u32 s72, s72, L_pc-{NAME}_kernel\ns_subb_u32 s73, s73, 0\ns_add_u32 s72, s72, {sA}\ns_addc_u32 s73, s73, 0", glue=True)
        s("s_waitcnt lgkmcnt(0)"); self.stamp(s, "go")
        s("s_mov_b64 s[8:9], s[40:41]\ns_mov_b64 s[16:17], s[62:63]"); s.mark("go")
        if o["stag"]: s(f"s_load_dword {sBA}, s[62:63], 0")
        assert o["kz"] == 1 and not o["sw"] & 9 and o["warmc"] < 2 and o["stag"]
        def stouch(base, off):
            s(f"s_load_dword {sBB}, s[{base}:{base+1}], {off}"); s[-1].wr = [("s", "junk%d" % len(s))]
        for k, base in enumerate((42, 50, 44, 52, 56, 54, 46)):
            if o["tw"] >> k & 1: stouch(base, 0)
        if o["sw"] & 1:
            s(f"s_lshl2_add_u32 {sA}, {sI}, {sWV}\ns_lshl_b32 {sB}, {sA}, 7"); stouch(44, sB)
            s(f"s_add_u32 {sB}, {sB}, 64\ns_min_u32 {sC}, {sA}, 42\ns_lshl_b32 {sC}, {sC}, 6"); stouch(44, sB); stouch(52, sC)
            s(f"s_and_b32 {sC}, {sC}, 0x3c0"); stouch(56, sC)
        if o["sw"] & 2: stouch(62, sFL)
        if o["sw"] & 4:
            s(f"s_lshl2_add_u32 {sA}, s2, {sWV}\ns_min_u32 {sA}, {sA}, 383\ns_lshl_b32 {sA}, {sA}, 6\ns_add_u32 {sA}, {sA}, {WS_FL1}"); stouch(62, sA)
        if o["sw"] & 8:
            s(f"s_lshl2_add_u32 {sA}, s2, {sWV}\ns_bfe_u32 {sB}, {sA}, 0x50004\ns_and_b32 {sA}, {sA}, 15\ns_mul_i32 {sB}, {sB}, {KVREC}\ns_lshl_b32 {sA}, {sA}, 6\ns_add_u32 {sA}, {sA}, {sB}\ns_add_u32 {sA}, {sA}, {WS_KVP+16384}"); stouch(62, sA)
        if o["warmc"] >= 2:
            for k in range(0, 6, o["warmc"] - 1): s(f"s_load_dword {sBB}, s[72:73], {64*k}"); s[-1].wr = [("s", "junk%d" % k)]
        for r in range(2): B(f"buffer_load_dwordx4 {v(tmp+4*r,4)}, {v(vL16)}, {sX}, {sSO[0]} offen offset:{1024*r}", "rows", "go", sp=8)
        if not o["stag"]: B(f"buffer_load_dword {v(vTAG)}, {v(vXD0)}, {sWS}, 0 offen sc1", "tag", sp=8)
        if o["xa"]: dma_xp(0, None, o["sp0"])
        if not o["pgo"]: ppat()
        s(f"s_cmp_lt_u32 {sU}, 2\ns_cselect_b64 s[12:13], s[42:43], s[50:51]", glue=True)
        s.mark("pd"); self.stamp(s, "pd")
        def dma_p(ci, after=None):
            mul = sBLKS if ci == 0 else 64 * stride
            run4(f"s_add_u32 {sM}, {sROT}, {ci}\ns_and_b32 {sM}, {sM}, 7\ns_mul_i32 {sM}, {sM}, {mul}\ns_add_u32 m0, {sE1}, {PSL[ci]}\ns_add_u32 {sM}, {sM}, {sPCOL}", vPD, sW, ("p", ci), after, sp1 if ci else 16)
        dma_p(0, "pd")
        if not o["xa"]: dma_xp(0, None, o["sp0"])
        s(f"v_and_b32 {v(vT0)}, 31, v0\nv_lshlrev_b32 {v(vN16)}, 4, {v(vT0)}\nv_lshlrev_b32 {v(vT1)}, 7, {v(vT0)}")
        s(f"v_bfe_u32 {v(vT0)}, v0, 1, 3\nv_lshrrev_b32 {v(vT2)}, 5, v0\nv_xor_b32 {v(vT0)}, {v(vT0)}, {v(vT2)}\nv_lshl_add_u32 {v(vXR)}, {v(vT0)}, 4, {v(vT1)}")
        for cq in range(1, 4): s(f"v_xor_b32 {v(vXR+cq)}, {32*cq}, {v(vXR)}")
        yR, yP, yF, yH, x0, x1 = (ACC[1] + i for i in range(6))
        s(f"v_bfe_u32 {v(yR)}, v0, 2, 2\nv_bfe_u32 {v(yP)}, v0, 4, 1\ns_add_u32 {sB}, {sB}, 4")
        s(f"v_and_b32 {v(yF)}, 16, {v(vL16)}\nv_and_b32 {v(yH)}, 2, v0\nv_lshl_add_u32 {v(yF)}, {v(yH)}, 2, {v(yF)}\nv_lshl_add_u32 {v(yH)}, {v(vT2)}, 3, {v(yR)}")
        s(f"v_xor_b32 {v(x0)}, {sWV}, {v(yR)}\nv_lshl_add_u32 {v(x0)}, {v(x0)}, {sB}, {v(yF)}\nv_lshl_add_u32 {v(x0)}, {v(yP)}, {sE0}, {v(x0)}")
        s(f"v_cmp_eq_u32 vcc, {v(yR)}, {v(yP)}\nv_mov_b32 {v(vT1)}, 0x3f803f80")
        s(f"v_lshl_add_u32 {v(x0)}, {v(yH)}, 8, {v(x0)}\nv_add_u32 {v(vPR)}, {R[2]}, {v(x0)}\nv_add_u32 {v(vPR+1)}, {R[4]}, {v(x0)}")
        for i in range(4): s(f"v_cndmask_b32 {v(CSEL+i)}, 0, {v(vT1)}, vcc")
        if o["cbmix"]: s(f"s_lshr_b32 {sCB}, {sI}, 3\ns_lshl1_add_u32 {sCB}, {sCB}, {sI}")
        s(f"s_xor_b32 {sCB}, {sI}, {o['cbx']}\ns_and_b32 {sCB}, {sCB}, 7\ns_lshl_b32 {sCB}, {sCB}, 7\ns_lshl_b32 {sW16K}, {sWV}, 14\ns_lshl_b32 {sW8K}, {sWV}, 13\nv_mov_b32 {v(vZ)}, 0")
        s(f"s_and_b32 {sA}, {sWV}, 1\ns_cmp_eq_u32 {sA}, 1\ns_cselect_b64 {sPAR}, -1, 0")
        for i in range(4):
            s(f"s_add_u32 {sA}, {sQ4}, {i}\ns_and_b32 {sA}, {sA}, 3\ns_lshl2_add_u32 {sA}, {sT}, {sA}")
            if i > 1: s(f"s_lshl_b32 {sXB[i]}, {sA}, 15")
            s(f"s_mul_i32 {sAB[i]}, {sA}, {TBSTR}\ns_add_u32 {sAB[i]}, {sAB[i]}, {WS_ACT}")
        srd(s, sB2, 56, 1024)
        srd(s, sW2, 54, 1376 * 1024); srd(s, sWo, 46, 512 * 1024); srd(s, sOut, 58, 2048 * 1024)
        tl.straight(s); s = Stream()
        while tl.bi < len(tl.bg): tl.emit_bg(True)
        self.stamp(s, "split")
        s(f"s_cmp_ge_u32 {sU}, 2\ns_cbranch_scc1 L_ffn\nL_split:", glue=True)
        if kP:
            s(f"s_lshl2_add_u32 {sHK}, {sJ}, {sWV}\ns_lshl_b32 {sD}, {sBLKP}, 6\ns_add_u32 {sD}, {sD}, 256")
            s(f"s_lshr_b32 {sB}, {sWV}, 1\ns_add_u32 {sBLKS}, {sBLKP}, {sB}\ns_add_u32 {sBLKS}, {sBLKS}, 4")
        else:
            s(f"s_add_u32 {sA}, {sJ}, {o['qx']}\ns_and_b32 {sA}, {sA}, 7\ns_lshl_b32 {sD}, {sA}, 7\ns_lshl2_add_u32 {sHD}, {sA}, {sWV}\ns_add_u32 {sBLKP}, {sBLKP}, {sWV}")
        srd(s, sAux, 44, 32 * 512)
        t0, t2 = G4, G4 + 1
        s(f"v_and_b32 {v(t0)}, 0x13, v0\nv_and_b32 {v(t2)}, 4, v0\nv_lshl_add_u32 {v(t0)}, {v(t2)}, 1, {v(t0)}\nv_bfe_u32 {v(t2)}, v0, 3, 1\nv_lshl_add_u32 {v(t0)}, {v(t2)}, 2, {v(t0)}")
        s(f"v_and_b32 {v(t2)}, 32, v0\nv_lshl_add_u32 {v(t0)}, {v(t2)}, 8, {v(t0)}\nv_lshlrev_b32 {v(t0)}, 1, {v(t0)}")
        s.mark("aux"); self.stamp(s, "aux")
        sWS2 = sB2
        B(f"buffer_load_dwordx4 {v(B2,4)}, {v(vOUT)}, {sB2}, {sCB} offen", None, "aux", sp=16)
        B(f"s_mov_b64 s[36:37], s[52:53]\ns_movk_i32 s38, 2752\ns_lshl_b32 {sM}, {sBLKS if kP else sBLKP}, 6\nbuffer_load_ushort {v(vB1)}, {v(t0)}, {sB2}, {sM} offen", sp=16)
        B(f"s_mov_b64 s[36:37], s[{50 if kP else 42}:{51 if kP else 43}]\ns_mov_b32 s38, {512*strS}\n"
          f"s_lshr_b32 {sM}, {sHD}, 1\ns_add_u32 m0, {sE1}, {SCR}\ns_lshl_b32 {sM}, {sM}, 10\nbuffer_load_dwordx4 {v(vL16)}, {sAux}, {sM} offen lds", "b2", sp=16)
        w1 = vJ + 1
        def warm3(pos):
            if o["warmm" if (kP or o["wA"] != 2) else "warmb"] != pos or (o["wA"] == 1 and not kP): return
            wa, wd = (vFL, vFL + 1) if 2 <= pos <= 4 else (XR, XR + 1); m = 2 if o["wA"] else 1
            wid = f"s_add_u32 {sN}, s2, {0 if kP else 3}\ns_and_b32 {sM}, s2, 8\ns_and_b32 {sN}, {sN}, 7\ns_or_b32 {sN}, {sN}, {sM}\ns_lshl4_add_u32 {sN}, {sROT}, {sN}\ns_lshl2_add_u32 {sN}, {sN}, {sWV}" if o["wA"] else f"s_lshl2_add_u32 {sN}, s2, {sWV}"
            B(f"v_min_u32 {v(wa)}, {11*m-1}, v0\nv_lshlrev_b32 {v(wa)}, 7, {v(wa)}\n{wid}\ns_mul_i32 {sM}, {sN}, {11*128*m}\nbuffer_load_dword {v(wd)}, {v(wa)}, {sW2}, {sM} offen", None, "stok" if 2 <= pos <= 4 else None, sp=16)
            tl.bg[-1].ins[-1].wr = []
            B(f"v_min_u32 {v(wa)}, {(4*m-1)*128}, {v(wa)}\ns_lshl_b32 {sM}, {sN}, {8+m}\nbuffer_load_dword {v(wd)}, {v(wa)}, {sWo}, {sM} offen", sp=32)
        def warmq(pos):
            if o["wq"] != pos or not kP: return
            B(f"v_and_b32 {v(XR+2)}, 15, v0\nv_lshrrev_b32 {v(XR+3)}, 1, {v(XR+2)}\nv_mul_u32_u24 {v(XR+3)}, 3072, {v(XR+3)}\nv_and_b32 {v(XR+2)}, 1, {v(XR+2)}\nv_lshl_add_u32 {v(XR+2)}, {v(XR+2)}, 7, {v(XR+3)}\n"
              f"s_and_b32 {sM}, {sI}, 1\ns_lshl1_add_u32 {sM}, {sROT}, {sM}\ns_lshl2_add_u32 {sM}, {sM}, {sWV}\ns_mul_i32 {sM}, {sM}, {8*3072}\n"
              f"s_lshl_b32 {sN}, {sQ4}, 8\ns_add_u32 {sN}, {sN}, {128*o['qx']}\ns_and_b32 {sN}, {sN}, 0x3ff\ns_add_u32 {sM}, {sM}, {sN}\nbuffer_load_dword {v(XR+3)}, {v(XR+2)}, {sW}, {sM} offen", sp=16)
        def stats_ld(i, r):
            h = f"s_add_u32 {r}, {sQ4}, {i}" if i > 1 else f"s_and_b32 {r}, {sWV}, 1\ns_xor_b32 {r}, {r}, {i}\ns_add_u32 {r}, {r}, {sQ4}"
            return h + f"\ns_and_b32 {r}, {r}, 3\ns_lshl_b32 {r}, {r}, 9\ns_add_u32 {r}, {r}, {sSTB}\nbuffer_load_dwordx4 {v(ST+4*i,4)}, {v(vN16)}, {sWS}, {r} offen sc1"
        for ci in range(1, 9):
            if ci == o["s0p"]:
                for i in range(2): B(stats_ld(i, sM), "stat0", "b%d" % o["s0"], sp=32)
            if ci == o["t1"]:
                B(f"v_min_u32 {v(XR)}, 15, v0\nv_lshlrev_b32 {v(XR)}, 7, {v(XR)}\ns_xor_b32 {sM}, {sXB[3]}, 0x10000\ns_and_b32 {sN}, {sI}, 3\ns_lshl2_add_u32 {sN}, {sN}, {sWV}\ns_lshl_b32 {sN}, {sN}, 11\ns_add_u32 {sM}, {sM}, {sN}\n"
                  f"buffer_load_dword {v(XR+1)}, {v(XR)}, {sX}, {sM} offen", None, "su" if o["t1s"] else None, sp=16)
            if ci < 8 and ci % 2 == 0: dma_xp(ci // 2, None, sp1)
            if ci < 8: dma_p(ci, {1: "su", 5: "phi", 6: "b2", 7: "b3"}.get(ci))
        if True:
            s(f"v_bfe_u32 {v(x0)}, v0, 1, 1\nv_lshl_add_u32 {v(x0)}, {v(yP)}, 1, {v(x0)}\nv_lshlrev_b32 {v(x0)}, 3, {v(x0)}\nv_lshl_add_u32 {v(x0)}, {v(yH)}, 5, {v(x0)}")
            s(f"s_and_b32 {sC}, s98, 0x200\ns_add_u32 {sA}, {sE1}, {sC}\ns_add_u32 {sA}, {sA}, {SCR}")
            s(f"v_add_u32 {v(TA)}, {sA}, {v(x0)}\nv_xor_b32 {v(TA+1)}, 0x200, {v(TA)}"); s.mark("pha")
        s(f"s_movk_i32 {sB}, {strS}")
        if o["srot"]:
            s(f"s_mul_i32 {sSO[0]}, {sROT}, {64*strS}\ns_lshl_b32 {sSO[1]}, {sWV}, 11\ns_mul_i32 {sA}, {sWV}, {16*strS}\ns_add_u32 {sD}, {sD}, {sA}")
        else:
            for k in range(2):
                s(f"s_add_u32 {sA}, {sWV}, {sROT}\ns_add_u32 {sA}, {sA}, {4*k}\ns_and_b32 {sA}, {sA}, 7\ns_mul_i32 {sA}, {sA}, {64*strS}\ns_add_u32 {sSO[k]}, {sA}, {sD}")
        spre = o["spre"] and o["srot"] and (not o["stamps"] or o.get("st") == "none")
        if spre:
            for g in range(8): s(f"s_add_u32 {sA}, {sROT}, {g}\ns_and_b32 {sA}, {sA}, 7\ns_mul_i32 s{54+g}, {sA}, {64*strS}")
        def dma_s(half, after):
            if not o["srot"]:
                for k in range(2): run4(f"s_add_u32 m0, {sW8K}, {R[4-4*half]+k*4096}\ns_add_u32 {sM}, {sSO[half]}, {32*strS*k}", vSD, sWS2, ("s", half), after, o["sps%d" % half])
                return
            for g in range(4):
                pre = f"s_add_u32 m0, {sSO[1]}, {R[4-4*half]+g*8192}\n"
                pre += f"s_add_u32 {sSO[0]}, {sSO[0]}, {64*strS}\ns_cmp_eq_u32 {sSO[0]}, {512*strS}\ns_cselect_b32 {sSO[0]}, 0, {sSO[0]}" if (half or g) else "s_nop 0"
                so = sSO[0]
                if spre: pre = pre.split("\n")[0]; so = "s%d" % (54 + 4 * half + g)
                for q in range(2):
                    sp = o["sg"] if (half, g, q) == (0, 1, 0) else o["sps%d" % half]
                    B(f"{pre if q == 0 else ''}\nbuffer_load_dwordx4 {v(vSD+q)}, {sWS2}, {so} offen offset:{1024*q} lds", ("s", half), after, sp)
        s(f"v_lshrrev_b32 {v(vT0)}, 3, v0\nv_lshlrev_b32 {v(vT1)}, 2, v0\nv_and_b32 {v(vT1)}, 64, {v(vT1)}\nv_xor_b32 {v(vT1)}, {v(vT1)}, {v(vOUT)}")
        s(f"v_mad_u32_u24 {v(vSD)}, {v(vT0)}, {sB}, {v(vT1)}")
        if o["srot"]: s(f"v_add_u32 {v(vSD)}, {sD}, {v(vSD)}")
        if kP and o["z5"]:
            five = sum(1 << i for i, n in enumerate(FFN_NBLK) if n == 5)
            s(f"s_lshr_b32 {sC}, {five}, {sJ}\ns_and_b32 {sC}, {sC}, 1\ns_lshl_b32 {sC}, {sC}, 6\nv_and_b32 {v(vSD+1)}, {sC}, {v(vT1)}\nv_lshl_add_u32 {v(vSD)}, {v(vSD+1)}, 20, {v(vSD)}")
        for q in range(1, 2 if o["srot"] else 4): s(f"v_add_u32 {v(vSD+q)}, {q*(8*strS-1024)}, {v(vSD)}")
        s(f"v_lshl_add_u32 {v(vWD+3)}, {v(vT0)}, 10, {v(vT1)}")
        if kP:
            s(f"v_lshl_add_u32 {v(vT3)}, {v(vT2)}, 9, {v(vN16)}\nv_lshlrev_b32 {v(vT2)}, 5, {v(vT2)}\nv_add_u32 {v(vT2)}, 0x400, {v(vT2)}")
            s(f"v_cmp_gt_u32 vcc, 0x100, {v(vN16)}\nv_add_u32 {v(vT0)}, 16, {v(vT2)}\nv_add_u32 {v(vT1)}, 0x100, {v(vT3)}")
            s(f"v_cndmask_b32 {v(vKA)}, {v(vT2)}, {v(vT3)}, vcc\nv_cndmask_b32 {v(vKA+1)}, {v(vT0)}, {v(vT1)}, vcc")
        s(f"v_lshrrev_b32 {v(x0)}, 1, {v(yR)}\nv_lshl_add_u32 {v(x0)}, {v(x0)}, 6, {v(yF)}\nv_lshl_add_u32 {v(x0)}, {v(yP)}, 5, {v(x0)}\nv_lshl_add_u32 {v(x0)}, {v(yH)}, 7, {v(x0)}")
        s(f"v_lshrrev_b32 {v(vWR)}, 4, v0\nv_lshl_add_u32 {v(vWR)}, {v(vWR)}, 3, {v(yR)}\nv_and_b32 {v(x1)}, 2, {v(yR)}\nv_or_b32 {v(x1)}, {v(x1)}, {v(yP)}")
        s(f"v_lshl_add_u32 {v(vWR)}, {v(vWR)}, 2, {v(x1)}\nv_and_b32 {v(x1)}, 3, v0\nv_lshl_add_u32 {v(vWR)}, {v(vWR)}, 2, {v(x1)}\nv_lshlrev_b32 {v(vWR)}, 3, {v(vWR)}")
        if qS: s(f"s_lshl_b32 {sA}, {sWV}, 5")
        else: s(f"s_and_b32 {sA}, {sWV}, 2\ns_lshl_b32 {sA}, {sA}, 5")
        s(f"v_xor_b32 {v(x0)}, {sA}, {v(x0)}\nv_add_u32 {v(vSR)}, {R[4]}, {v(x0)}")
        if kP:
            if o["kz"] == 0:
                for i in range(4): s(f"v_mov_b32 {v(ONES+i)}, 0x3f803f80")
            elif o["kz"] == 1:
                for i in range(8): s(f"v_mov_b32 {v(F8b+i)}, 0x3f803f80")
            else:
                s(f"v_lshrrev_b32 {v(ONES)}, 4, v0\nv_cmp_eq_u32 vcc, 1, {v(ONES)}\nv_mov_b32 {v(ONES)}, 0\nv_mov_b32 {v(ONES+3)}, 0")
                s(f"v_cndmask_b32 {v(ONES+1)}, 0, 1.0, vcc\nv_lshrrev_b32 {v(ONES+2)}, 16, {v(ONES+1)}")
        s(f"v_and_b32 {v(vFA)}, {15 if qS else 7}, v0\nv_lshlrev_b32 {v(vFA)}, 3, {v(vFA)}")
        if True:
            s(f"v_bfe_u32 {v(vT0)}, v0, 2, 1\nv_lshrrev_b32 {v(vT2)}, 5, v0\nv_cmp_eq_u32 vcc, {v(vT0)}, {v(vT2)}")
            s(f"v_and_b32 {v(vT0)}, 16, {v(vL16)}\nv_mov_b32 {v(vT2)}, 0x3f80\nv_lshlrev_b32 {v(vT2)}, {v(vT0)}, {v(vT2)}\nv_cndmask_b32 {v(vT2)}, 0, {v(vT2)}, vcc")
            s(f"v_bfe_u32 {v(vT0)}, v0, 1, 1\nv_bfe_u32 {v(vT3)}, v0, 3, 2\nv_lshl_add_u32 {v(vT0)}, {v(vT3)}, 1, {v(vT0)}")
            for i in range(0, 4 * len(SEL), 2):
                s(f"v_cmp_eq_u32 vcc, {i}, {v(vT0)}\nv_cmp_eq_u32 s[70:71], {i+1}, {v(vT0)}")
                s(f"s_nop 0\nv_cndmask_b32 {v(SEL[i>>2]+(i&3))}, 0, {v(vT2)}, vcc\nv_cndmask_b32 {v(SEL[i>>2]+(i&3)+1)}, 0, {v(vT2)}, s[70:71]")
            if qS: s(f"s_lshl_b32 {sFK}, {sHD}, 7\ns_add_u32 {sFK}, {sFK}, {WS_FL1}")
        def visit(pos):
            if o["pad"] != pos: return
            x = "s_mov_b64 exec, 0\n"
            for k in range(3): x += f"s_cmp_eq_u32 {sWV}, {k}\ns_cbranch_scc1 L_pad_{role}_{k}\n"
            s(x + f"s_branch L_pad_{role}_3\nL_ret_{role}:\ns_mov_b64 exec, -1", glue=True)
        visit(1)
        s.mark("su")
        s.waittok("rows", ahead=o["ah0"]); self.stamp(s, "rows")
        q = ST
        s(f"v_mov_b32 {v(vT1)}, 0x3f803f80")
        for i in range(4): s(f"v_mov_b32 {v(q+i)}, 0")
        for i in range(4):
            for r in range(2):
                s(f"v_dot2c_f32_bf16 {v(q+r)}, {v(tmp+4*r+i)}, {v(vT1)}\nv_dot2c_f32_bf16 {v(q+2+r)}, {v(tmp+4*r+i)}, {v(tmp+4*r+i)}")
        if o["stag"]: s(f"s_mov_b32 {sA}, {sBA}\nv_lshrrev_b32 {v(vT0)}, 1, v0")
        else:
            s.waittok("tag")
            s(f"v_readfirstlane_b32 {sA}, {v(vTAG)}\nv_lshrrev_b32 {v(vT0)}, 1, v0")
        s(f"v_permlane32_swap_b32 {v(q)}, {v(q+1)}\nv_permlane32_swap_b32 {v(q+2)}, {v(q+3)}")
        s(f"v_add_f32 {v(q)}, {v(q)}, {v(q+1)}\nv_add_f32 {v(q+2)}, {v(q+2)}, {v(q+3)}\ns_add_u32 {sA}, {sA}, 0x{TAGC:x}")
        s(f"v_mov_b32 {v(vTAG)}, {sA}\nv_permlane16_swap_b32 {v(q)}, {v(q+2)}\nv_add_f32 {v(q)}, {v(q)}, {v(q+2)}")
        s(f"v_mov_b32 {v(vTAG+1)}, {sA}\nv_mov_b32 {v(q+1)}, {sA}")
        for m in ("quad_perm:[1,0,3,2]", "quad_perm:[2,3,0,1]", "row_half_mirror", "row_mirror"):
            s(f"v_add_f32_dpp {v(q)}, {v(q)}, {v(q)} {m} {DPPM}")
        if o["sv"]:
            s(f"v_mul_f32 {v(q)}, {f2u(1/512)}, {v(q)}\nv_mov_b32 {v(q+2)}, {v(q)}\nv_mov_b32 {v(q+3)}, {v(q)}\nv_and_b32 {v(vT1)}, 16, v0")
            s(f"v_permlane16_swap_b32 {v(q+2)}, {v(q+3)}\nv_cmp_ne_u32 vcc, 0, {v(vT1)}")
            s(f"v_fma_f32 {v(q+3)}, -{v(q+2)}, {v(q+2)}, {v(q+3)}\nv_max_f32 {v(q+3)}, 0, {v(q+3)}\nv_add_f32 {v(q+3)}, {f2u(1e-5)}, {v(q+3)}\nv_sqrt_f32 {v(q+3)}, {v(q+3)}")
            s(f"v_cndmask_b32 {v(q+2)}, -{v(q+2)}, {v(q+3)}, vcc\nv_cvt_pk_bf16_f32 {v(q)}, {v(q+2)}, {v(q+2)}\nv_lshlrev_b32 {v(q+3)}, 16, {v(q)}")
            s(f"v_sub_f32 {v(q+2)}, {v(q+2)}, {v(q+3)}\nv_cvt_pk_bf16_f32 {v(q)}, {v(q+3)}, {v(q+2)}")
        s(f"s_mov_b32 exec_lo, 0x00010001\ns_mov_b32 exec_hi, 0x00010001\nbuffer_store_dwordx2 {v(q,2)}, {v(vT0)}, {sWS}, {sFL} offen sc1\ns_mov_b64 exec, -1", glue=True)
        self.stamp(s, "st"); visit(2)
        s(f"s_lshr_b32 {sFL}, {sTT}, 1\ns_lshl4_add_u32 {sFL}, {sFL}, {sWV}\ns_lshl_b32 {sFL}, {sFL}, 6\ns_add_u32 {sFL}, {sFL}, {WS_FL2}")
        s(f"s_lshl_b32 {sC}, {sWV}, 3")
        for d, tb in ((sBA, FFN_BLK0[0::2]), (sBB, FFN_BLK0[1::2]), (sBS[0], [x[0] for x in SBL]), (sBS[1], [x[1] for x in SBL]), (sBS[2], [x[2] for x in SBL])):
            s(f"s_lshr_b32 {d}, {pack(tb)}, {sC}\ns_and_b32 {d}, {d}, 0xff\ns_lshl_b32 {d}, {d}, 11")
        KR = vJ
        s(f"s_and_b32 {sA}, s98, 0x8000\ns_xor_b32 {sB}, {sA}, 0x8000")
        for i in range(4): s(f"v_add_u32 {v(KR+i)}, {sA}, {v(vXR+i)}\nv_add_u32 {v(vXR+i)}, {sB}, {v(vXR+i)}")
        assert all(b.tok != "b2" for b in tl.bg[tl.bi:]) or True
        visit(3)
        PH = Stream() if o["phl"] else s
        s.mark("auxi")
        s(f"v_lshrrev_b32 {v(vT0)}, 3, v0\nv_lshl_add_u32 {v(vOUT)}, {v(vT0)}, 10, {v(vOUT)}")
        if not qS:
            six = sum(1 << i for i, n in enumerate(FFN_NBLK) if n == 6)
            s(f"s_lshr_b32 {sC}, {six}, {sJ}\ns_lshr_b32 {sA}, {sWV}, 1\ns_andn2_b32 {sC}, {sA}, {sC}\ns_and_b32 {sC}, {sC}, 1\ns_lshl_b32 {sC}, {sC}, 18\ns_or_b32 {sBLKS}, {sBLKS}, {sC}")
        if True:
            s(f"v_and_b32 {v(vT2)}, 4, v0\nv_cmp_ne_u32 vcc, 0, {v(vT2)}\nv_mov_b32 {v(vT3)}, 0x80008000\ns_nop 0\nv_cndmask_b32 {v(vT3)}, 0, {v(vT3)}, vcc")
            PH.waittok("b2", lat=0)
            for hs in range(len(PHI)):
                for e in range(2): PH(f"ds_read_b64_tr_b16 {v(PHI[hs]+2*e,2)}, {v(TA+hs)} offset:{e*128}", tok="phr")
            PH.waittok("phr"); PH.mark("phi")
            for i in range(4 * len(PHI)): PH(f"v_xor_b32 {v(PHI[i>>2]+(i&3))}, {v(vT3)}, {v(PHI[i>>2]+(i&3))}")
        def xread(st, un, region, ks):
            st(f"ds_read_b128 {v(XF+4*(ks%NX),4)}, {v(vXR+(ks&3))} offset:{region+(ks>>2)*4096}", tok=("xf", un, ks))
        def stat_consts0(st, i):
            m, va = ST + 4 * i, ST + 4 * i + 2; k = KC[i]
            st(f"v_mul_f32 {v(m)}, {f2u(1/512)}, {v(m)}\nv_mul_f32 {v(va)}, {f2u(1/512)}, {v(va)}\nv_fma_f32 {v(va)}, -{v(m)}, {v(m)}, {v(va)}\nv_max_f32 {v(va)}, 0, {v(va)}")
            st(f"v_add_f32 {v(va)}, {f2u(1e-5)}, {v(va)}\nv_sqrt_f32 {v(va)}, {v(va)}\nv_mov_b32 {v(m+3)}, 0")
            st(f"v_cvt_pk_bf16_f32 {v(m+1)}, -{v(m)}, {v(va)}\nv_rcp_f32 {v(k)}, {v(va)}")
            st(f"v_lshlrev_b32 {v(vT0)}, 16, {v(m+1)}\nv_and_b32 {v(vT1)}, 0xffff0000, {v(m+1)}")
            st(f"v_sub_f32 {v(m)}, -{v(m)}, {v(vT0)}\nv_sub_f32 {v(vT1)}, {v(va)}, {v(vT1)}")
            if kP: st(f"v_mul_f32 {v(k+1)}, {f2u(LOG2E)}, {v(k)}\nv_mov_b32 {v(k+2)}, {v(va)}")
            else:
                st(f"v_mov_b32 {v(k+2)}, {v(va)}\nv_mul_f32 {v(k+1)}, {v(k)}, {v(k)}\nv_mul_f32 {v(k)}, {f2u(K0)}, {v(k)}")
                st(f"v_mul_f32 {v(k+1)}, {v(k+1)}, {v(k)}\nv_mul_f32 {v(k+1)}, {f2u(0.044715)}, {v(k+1)}")
            st(f"v_cvt_pk_bf16_f32 {v(m)}, {v(vT0)}, {v(m)}\nv_cvt_pk_bf16_f32 {v(m+2)}, {v(va)}, {v(vT1)}\nv_mov_b32 {v(m+1)}, {v(m)}")
        def stat_consts(st, i):
            if not o["sv"]: return stat_consts0(st, i)
            m = ST + 4 * i; k = KC[i]
            st(f"v_lshlrev_b32 {v(k)}, 16, {v(m+2)}\nv_and_b32 {v(k+2)}, 0xffff0000, {v(m+2)}\nv_add_f32 {v(k+2)}, {v(k+2)}, {v(k)}")
            st(f"v_rcp_f32 {v(k)}, {v(k+2)}\nv_mov_b32 {v(m+1)}, {v(m)}\nv_mov_b32 {v(m+3)}, 0")
            if kP: st(f"v_mul_f32 {v(k+1)}, {f2u(LOG2E)}, {v(k)}")
            else:
                st(f"v_mul_f32 {v(k+1)}, {v(k)}, {v(k)}\nv_mul_f32 {v(k)}, {f2u(K0)}, {v(k)}")
                st(f"v_mul_f32 {v(k+1)}, {v(k+1)}, {v(k)}\nv_mul_f32 {v(k+1)}, {f2u(0.044715)}, {v(k+1)}")
        def corr_pre(st, which):
            c = CA[which]
            st(f"v_mov_b32 {v(c+3)}, 0")
            if which == kP: st(f"v_lshl_or_b32 {v(c+2)}, {v(vB1)}, 16, {v(vB1)}")
            else: st(f"v_mov_b32 {v(c+2)}, 0")
        def corr_a(st, which):
            c = CA[which]
            st(f"v_cvt_pk_bf16_f32 {v(c)}, {v(CS)}, {v(CS)}\nv_lshlrev_b32 {v(vT1)}, 16, {v(c)}\nv_sub_f32 {v(vT0)}, {v(CS)}, {v(vT1)}")
            st(f"v_cvt_pk_bf16_f32 {v(c+1)}, {v(vT0)}, {v(vT0)}")
        def spin(st, test, reload_, name):
            en, lp, ok = self.lab("retry"), self.lab("poll"), self.lab("ok")
            st(test + f"\ns_cbranch_vccnz {en}\n{ok}:", glue=True); st[-1].op = "OKLABEL"
            st.mark(name); self.stamp(st, name)
            x = Stream()
            x(f"{en}:\ns_mov_b32 {sC}, 0\n{lp}:"); x(reload_)
            x(f"s_add_u32 {sC}, {sC}, 1\ns_cmp_gt_u32 {sC}, 2000000\ns_cbranch_scc1 {ok}\ns_waitcnt vmcnt(0)")
            x(test + f"\ns_nop 4\ns_cbranch_vccnz {lp}\ns_branch {ok}")
            self.side[role] += finalize(x)
        corr_pre(PH, 0); corr_pre(PH, 1)
        tl.straight(s)
        ia = [x for x in tl.log if x.startswith("mark auxi")][0]
        assert int(ia.split("bg=")[1]) > tl.lastbg("b2"), "small loads must be issued before their address registers change"
        s = Stream()
        if o["phl"]: s.need("b0"); s.extend(PH)
        n0 = len(tl.bg)
        dma_x(2, "b5", o["spx"])
        x2pre = Stream(); x2pre(f"s_lshl1_add_u32 {sM}, {sWV}, {sROT}\ns_lshl_b32 {sM}, {sM}, 7\ns_and_b32 {sXK[0]}, {sM}, 0x380\ns_add_u32 {sM}, {sM}, 128\ns_and_b32 {sXK[1]}, {sM}, 0x380")
        tl.bg[n0].ins = Stream(x2pre + tl.bg[n0].ins)
        for i in range(2, 4): B(stats_ld(i, sM), "stats", None, sp=32)
        if not o["xord"]: dma_x(3, "b7", o["spx3"])
        lag = o["lag"]
        Mp = []
        def mfa(kp): return f"{MF} {v(ACC[0],16)}, {ag(4*kp,4)}, {ag(128+4*kp,4)}, {v(ACC[0],16) if kp else 0}"
        def mfb(kp): return f"{MF} {v(ACC[1],16)}, {ag(4*kp,4)}, {v(XF+4*(kp%NX),4)}, {v(ACC[1],16) if kp else 0}"
        def mf16(kp): return f"{MF16} {v(CS,4)}, {v(CSEL,4)}, {ag(4*kp,4)}, {v(CS,4) if kp else 0}"
        def pread(g, ks):
            ci, kk = ks >> 2, ks & 3; hi = PSL[ci] >= R[4]
            for e in range(2):
                g(f"ds_read_b64_tr_b16 {ag(4*ks+2*e,2)}, {v(vPR+hi)} offset:{PSL[ci]-R[4 if hi else 2]+kk*4096+e*1024}", tok=("pf", ks))
        def grp(f):
            g = Stream(); f(g); Mp.append(g)
        bsteps = [ks for ks in range(32) if ks >= o["blag"] and (ks >= o["bhalf"] or ks & 1)]
        for ks in range(32):
            ci, kk = ks >> 2, ks & 3; kp = ks - lag
            g = Stream()
            if kk == 0:
                if ci == 0: g.waittok(("xp", 0), ("p", 0), ahead=o["ah0b"], lat=o["plat0"]); self.stamp(g, "x0")
                else: g.waittok(("p", ci), ahead=o["ahead"], lat=o["plat"])
                g("s_barrier"); g.mark("b%d" % ci); self.stamp(g, "b%d" % ci)
            if kp >= 0: g.waittok(("xf", 0, bsteps.index(kp)) if kp in bsteps else ("ka", kp), lat=0); g(mfa(kp))
            pread(g, ks)
            if kp in bsteps: Mp.append(g); g = Stream(); g(mfb(bsteps.index(kp)))
            g(f"ds_read_b128 {ag(128+4*ks,4)}, {v(KR+(ks&3))} offset:{(ks>>2)*4096}", tok=("ka", ks))
            if ks in bsteps: xread(g, 0, 0, bsteps.index(ks))
            if ks == 31: g.mark("prd")
            Mp.append(g)
            if kp >= 0: grp(lambda g: g(mf16(kp)))
        x = s
        x.waittok("stat0")
        def tagtest(b):
            return (f"v_xor_b32 {v(vT0)}, {v(vTAG)}, {v(b+1)}\nv_xor_b32 {v(vT1)}, {v(vTAG)}, {v(b+3)}\nv_xor_b32 {v(vFL)}, {v(vTAG)}, {v(b+5)}\nv_xor_b32 {v(vFL+1)}, {v(vTAG)}, {v(b+7)}\n"
                    f"v_or3_b32 {v(vT0)}, {v(vT0)}, {v(vFL)}, {v(vFL+1)}\nv_cmp_ne_u64 vcc, 0, {v(vT0,2)}")
        def swapab(st, k):
            st(f"s_cmp_lg_u32 s98, 0\ns_cselect_b32 {sB}, {sAB[k+1]}, {sAB[k]}\ns_cselect_b32 {sAB[k+1]}, {sAB[k]}, {sAB[k+1]}\ns_mov_b32 {sAB[k]}, {sB}", glue=True)
        spin(x, tagtest(ST), stats_ld(0, sA) + "\n" + stats_ld(1, sA), "st0")
        stat_consts(x, 0); stat_consts(x, 1); swapab(x, 0)
        if kP and o["kz"] == 1: x("s_mov_b32 s32, 0xffff\ns_mov_b32 s33, 0xffff")
        x.need("prd")
        x(f"v_mov_b32 {v(vWD)}, {v(vWD+3)}")
        for q in range(1, 4): x(f"v_add_u32 {v(vWD+q)}, {7168*q}, {v(vWD)}")
        for q in (1, 3): x(f"v_xor_b32 {v(vWD+q)}, 32, {v(vWD+q)}")
        x(f"s_lshl_b32 {sPCOL}, {sTT}, 16\ns_add_u32 {sPCOL}, {sPCOL}, {sW16K}\ns_add_u32 {sPCOL}, {sPCOL}, {sCB}")
        x(f"s_and_b32 {sE1}, s98, 0x8000\ns_add_u32 {sE0}, {sE1}, 0x8000")
        x.need("cs0"); corr_a(x, 0); x.mark("ca0")
        nr = len(bsteps); b0 = nr - lag
        for n, kp in enumerate(range(32 - lag, 32)):
            grp(lambda g: (g.waittok(("xf", 0, nr - 1), lat=0) if n == 0 else None, g(mf16(kp)), g.mark("cs0") if kp == 31 else None))
        rd = [nr]
        def bread(g, n, upto):
            while n and rd[0] < 32 and rd[0] < upto + NX: xread(g, 0, 0, rd[0]); rd[0] += 1; n -= 1
        for kp in range(32 - lag, 32): grp(lambda g: (g(mfa(kp)), bread(g, 2, b0)))
        grp(lambda g: (g(mfb(b0)), bread(g, 2, b0)))
        grp(lambda g: (g.need("ca0"), g(f"{MF} {v(ACC[0],16)}, {v(CA[0],4)}, {v(ST,4)}, {v(ACC[0],16)}"), self.stamp(g, "p1")))
        Mb = []
        for kp in range(b0 + 1, 32):
            g = Stream()
            if kp >= nr and (kp - nr) % 2 == 0: g.waittok(("xf", 0, min(31, kp + 1)))
            g(mfb(kp)); bread(g, 1, kp); Mb.append(g)
        g = Stream(); g(f"{MF} {v(ACC[1],16)}, {v(CA[0],4)}, {v(ST+4,4)}, {v(ACC[1],16)}"); g.mark("m1"); Mb.append(g)
        tl.sched(Mp, [x])
        if o.get("stop"):
            out = Stream()
            for i in tl.out:
                if "m" in o["stop"] and i.kind == "mfma": continue
                if "s" in o["stop"] and (i.kind == "vst" or i.cond or i.op.startswith("s_cbranch_vcc")): continue
                if "b" in o["stop"] and i.kind == "barrier": continue
                if "d" in o["stop"] and (i.kind == "dsr" or (i.kind == "waittok" and (i.tok[0] == "phr" or i.tok[0][0] == "xf"))): continue
                out.append(i)
            s = out
            s("s_waitcnt vmcnt(0)\ns_memrealtime s[64:65]\ns_waitcnt lgkmcnt(0)")
            s(f"s_lshl2_add_u32 {sA}, s2, {sWV}\ns_lshl_b32 {sA}, {sA}, 6\ns_add_u32 {sA}, {sA}, {WS_STAMP}")
            for i, r in enumerate(["s100"] + ["s%d" % k for k in STAMPR] + ["s64"]):
                s(f"v_mov_b32 {v(vT1)}, {r}\nbuffer_store_dword {v(vT1)}, {v(vZ)}, {sWS}, {sA} offen offset:{4*i}")
            return s

        def gelu(e, acc, k, sbase, sblk, tok, pk=False):
            e(f"s_lshl_b32 {sB}, {sblk}, 11\ns_add_u32 {sB}, {sB}, {sbase}")
            for q in range(4):
                A = [v(acc + 4 * q + i) for i in range(4)]; T = [v(G4 + i) for i in range(4)]
                if pk:
                    assert k % 2 == 0
                    A2 = [v(acc + 4 * q + i, 2) for i in (0, 2)]; T2 = [v(G4 + i, 2) for i in (0, 2)]
                    for i in range(2): e(f"v_pk_mul_f32 {T2[i]}, {A2[i]}, {A2[i]}")
                    for i in range(2): e(f"v_pk_fma_f32 {T2[i]}, {T2[i]}, {v(k,2)}, {v(k,2)} op_sel:[0,1,0] op_sel_hi:[1,1,0]")
                    for i in range(2): e(f"v_pk_mul_f32 {T2[i]}, {A2[i]}, {T2[i]}")
                    for i in range(4): e(f"v_exp_f32 {T[i]}, {T[i]}")
                    for i in range(2): e(f"v_pk_fma_f32 {T2[i]}, {T2[i]}, {v(k+2,2)}, {v(k+2,2)} op_sel_hi:[1,0,0]")
                    for i in range(4): e(f"v_rcp_f32 {T[i]}, {T[i]}")
                    for i in range(2): e(f"v_pk_mul_f32 {T2[i]}, {A2[i]}, {T2[i]}")
                    for i in range(2): e(f"v_cvt_pk_bf16_f32 {v(HO+2*q+i)}, {T[2*i]}, {T[2*i+1]}")
                    if q & 1: e(f"buffer_store_dwordx4 {v(HO+4*(q>>1),4)}, {v(vL16)}, {sWS}, {sB} offen offset:{1024*(q>>1)} sc1", tok=tok)
                    continue
                for i in range(4): e(f"v_mul_f32 {T[i]}, {A[i]}, {A[i]}")
                for i in range(4): e(f"v_fma_f32 {T[i]}, {T[i]}, {v(k+1)}, {v(k)}")
                for i in range(4): e(f"v_mul_f32 {T[i]}, {A[i]}, {T[i]}")
                for i in range(4): e(f"v_exp_f32 {T[i]}, {T[i]}")
                for i in range(4): e(f"v_fma_f32 {T[i]}, {T[i]}, {v(k+2)}, {v(k+2)}")
                for i in range(4): e(f"v_rcp_f32 {T[i]}, {T[i]}")
                for i in range(4): e(f"v_mul_f32 {T[i]}, {A[i]}, {T[i]}")
                for i in range(2): e(f"v_cvt_pk_bf16_f32 {v(HO+2*q+i)}, {T[2*i]}, {T[2*i+1]}")
                if q & 1: e(f"buffer_store_dwordx4 {v(HO+4*(q>>1),4)}, {v(vL16)}, {sWS}, {sB} offen offset:{1024*(q>>1)} sc1", tok=tok)
        def sm_head(e, src, phi, T_, f4):
            for i in range(4): e(f"v_cvt_pk_bf16_f32 {v(f4+i)}, {v(src+2*i)}, {v(src+2*i+1)}")
            e(f"{MF} {v(T_,16)}, {v(phi,4)}, {v(f4,4)}, 0")
        def sm_body(e, T_, k, dst, scale=False, pk=False):
            t2, t3 = v(vT2), v(vT3); T = lambda i: v(T_ + i)
            e(f"v_max3_f32 {t2}, {T(0)}, {T(1)}, {T(2)}\nv_max3_f32 {t3}, {T(3)}, {T(4)}, {T(5)}")
            for i in range(2): e(f"v_max3_f32 {t2}, {t2}, {T(6+4*i)}, {T(7+4*i)}\nv_max3_f32 {t3}, {t3}, {T(8+4*i)}, {T(9+4*i)}")
            e(f"v_max3_f32 {t2}, {t2}, {T(14)}, {T(15)}\nv_max_f32 {t2}, {t2}, {t3}\nv_mul_f32 {t2}, {t2}, {v(k+1)}")
            P = lambda i: v(T_ + i, 2); tt = v(vT2, 2)
            if pk:
                assert k % 2 == 0 and vT2 % 2 == 0
                for i in range(0, 16, 2): e(f"v_pk_fma_f32 {P(i)}, {P(i)}, {v(k,2)}, {tt} op_sel:[0,1,0] op_sel_hi:[1,1,0] neg_lo:[0,0,1] neg_hi:[0,0,1]")
            else:
                for i in range(16): e(f"v_fma_f32 {T(i)}, {T(i)}, {v(k+1)}, -{t2}")
            for i in range(16): e(f"v_exp_f32 {T(i)}, {T(i)}")
            if pk:
                e(f"v_pk_add_f32 {tt}, {P(0)}, {P(2)}")
                for i in range(4, 16, 2): e(f"v_pk_add_f32 {tt}, {tt}, {P(i)}")
            else:
                e(f"v_add_f32 {t2}, {T(0)}, {T(1)}\nv_add_f32 {t3}, {T(2)}, {T(3)}")
                for i in range(4, 16, 2): e(f"v_add_f32 {t2}, {t2}, {T(i)}\nv_add_f32 {t3}, {t3}, {T(i+1)}")
            e(f"v_add_f32 {t2}, {t2}, {t3}\nv_rcp_f32 {t2}, {t2}")
            if scale: e(f"v_mul_f32 {t2}, {t2}, {v(k)}")
            if pk:
                for i in range(0, 16, 2): e(f"v_pk_mul_f32 {P(i)}, {P(i)}, {tt} op_sel_hi:[1,0]")
            else:
                for i in range(16): e(f"v_mul_f32 {T(i)}, {T(i)}, {t2}")
            for i in range(8): e(f"v_cvt_pk_bf16_f32 {v(dst+i)}, {T(2*i)}, {T(2*i+1)}")
        def kepi(e, un):
            acc, k = ACC[un & 1], KC[un]
            kz = o["kz"]; FV = ONES if kz == 1 else F8b
            if kz == 0: e(f"{MF} {v(TB,16)}, {v(ONES,4)}, {v(SEL[1],4)}, 0")
            if kz == 2:
                if un: e.need("c%d" % un)
                e(f"{MF} {v(TB,16)}, {v(ST+4*un,4)}, {v(ONES,4)}, 0")
            e.need("m%d" % un)
            sm_head(e, acc, PHI[0], TA, F4)
            if kz != 2:
                for i in range(8): e(f"v_mul_f32 {v(acc+8+i)}, {v(acc+8+i)}, {v(k)}")
            for i in range(4): e(f"v_cvt_pk_bf16_f32 {v(FV+i)}, {v(acc+8+2*i)}, {v(acc+9+2*i)}")
            e.mark("e%d" % un)
            b = Stream(); sm_body(b, TA, k, F8a, kz == 2)
            vt = f"{MF} {v(TB,16)}, {v(FV,4)}, {v(SEL[0],4)}, {0 if kz == 1 else v(TB,16)}"
            if kz == 2: e(vt); e.extend(b)
            else: e.extend(b[:2]); e(vt); e.extend(b[2:])
            def cv(r):
                x = "\n".join(f"v_cvt_pk_bf16_f32 {v(F8b+i)}, {v(TB+2*i)}, {v(TB+2*i+1)}" for i in r)
                if kz == 1: e(f"s_mov_b64 exec, s[32:33]\n{x}\ns_mov_b64 exec, -1", glue=True)
                else: e(x)
            cv(range(4 if kz == 1 else 2))
            e(f"{MF} {v(TA,16)}, {v(F8a,4)}, {v(SEL[0],4)}, 0")
            cv(range(4 if kz == 1 else 2, 8))
            e(f"{MF} {v(TA,16)}, {v(F8a+4,4)}, {v(SEL[1],4)}, {v(TA,16)}")
            for i in range(8): e(f"v_cvt_pk_bf16_f32 {v(F8a+i)}, {v(TA+2*i)}, {v(TA+2*i+1)}")
            e(f"{MF} {v(KV,16)}, {v(F8a,4)}, {v(F8b,4)}, {v(KV,16) if un else 0}\n{MF} {v(KV,16)}, {v(F8a+4,4)}, {v(F8b+4,4)}, {v(KV,16)}")
        def kvpub(e):
            e(f"s_mul_i32 {sB}, {sT}, 960\ns_sub_u32 {sB}, 15360, {sB}\nv_lshrrev_b32 {v(vT3)}, 8, {v(vN16)}")
            e(f"v_mad_u32_u24 {v(vT2)}, {v(vT3)}, {sB}, {v(vKA)}\nv_mad_u32_u24 {v(vT3)}, {v(vT3)}, {sB}, {v(vKA+1)}")
            e(f"s_mul_i32 {sB}, {sHK}, 17\ns_add_u32 {sB}, {sB}, {sT}\ns_lshl_b32 {sB}, {sB}, 10\ns_add_u32 {sB}, {sB}, {WS_KVP}")
            for c in range(2):
                for i in range(4): e(f"v_cvt_pk_bf16_f32 {v(F8a+4*c+i)}, {v(KV+8*c+2*i)}, {v(KV+8*c+2*i+1)}")
                e(f"buffer_store_dwordx4 {v(F8a+4*c,4)}, {v(vT2+c)}, {sWS}, {sB} offen sc1", tok="kvp")
        def qepi(e, acc, k, dst):
            for i in range(4): e(f"v_cvt_pk_bf16_f32 {v(F4+i)}, {v(acc+2*i)}, {v(acc+2*i+1)}")
            for i in range(4): e(f"v_cvt_pk_bf16_f32 {v(F8b+i)}, {v(acc+8+2*i)}, {v(acc+9+2*i)}")
            e(f"{MF} {v(acc,16)}, {v(PHI[1],4)}, {v(F8b,4)}, 0\n{MF} {v(TA,16)}, {v(PHI[0],4)}, {v(F4,4)}, 0")
            sm_body(e, acc, k, dst + 8, pk=o["pk"] and dst != PF); e.mark(("sib", dst))
            if not ("e" in abl and dst != PF): sm_body(e, TA, k, dst)
        def flag(st, addr, tok, lat=None):
            st(addr)
            st.waittok(tok, lat=lat or o["stlat"])
            st(f"s_mov_b64 exec, 1\nbuffer_store_dwordx2 {v(vTAG,2)}, {v(vZ)}, {sWS}, {sD} offen sc1\ns_mov_b64 exec, -1", glue=True)
        a_fl1 = f"s_lshl4_add_u32 {sD}, {sHK}, {sT}\ns_lshl_b32 {sD}, {sD}, 3\ns_add_u32 {sD}, {sD}, {WS_FL1}"
        def a_fl2(kind): return (f"s_mov_b32 {sD}, {sHD}\n" if kind == 2 else f"s_lshl2_add_u32 {sD}, {sJ}, {sWV}\n") + f"s_lshl_b32 {sC}, {sT}, 10\ns_lshl3_add_u32 {sD}, {sD}, {sC}\ns_add_u32 {sD}, {sD}, {WS_FL2+256*kind}"
        def fl_txt(sreg, off): return f"buffer_load_dwordx2 {v(vFL,2)}, {v(vFA)}, {sWS}, {sreg} offen offset:{off} sc1"
        skipf = lambda tok: qS and tok[1] in str(o.get("skipf", ""))
        def fl_bg(sreg, off, tok, after):
            if not skipf(tok): B(fl_txt(sreg, off), tok, after, sp=16)
        def fl_check(st, sreg, off, tok):
            if skipf(tok): st.mark(tok); return
            st.waittok(tok)
            spin(st, f"v_cmp_ne_u64 vcc, {v(vFL,2)}, {v(vTAG,2)}", fl_txt(sreg, off), tok)

        SLOT = {"a0": (sW8K, R[0]), "a1": (sW8K, R[0] + 4096), "b0": (sW8K, R[1]), "b1": (sW8K, R[1] + 4096),
                "c0": (sW8K, R[4]), "c1": (sW8K, R[4] + 4096), "d0": (sW16K, R[2])}
        LORD = list(range(8)) + [11, 12, 13, 14, 8, 9, 10]
        WSLOT = dict(zip(LORD, ["b0", "b1", "c0", "c1", "a0", "a1"] * 2 + ["b0", "b1", "d0"]))
        nE = 8
        def blk(b):
            if b < 4: return sBA, b
            if b < 8: return sBB, b - 4
            if b < 11: return sBS[b - 8], 0
            return None, b - 11
        sRW = sXK[0]
        def dma_w(b, after):
            sb, off = SLOT[WSLOT[b]]; r, i = blk(b)
            pre = f"s_add_u32 m0, {sb}, {off}\n"
            if o["wrot"] and b < 8:
                pre += f"s_lshl_b32 {sRW}, {sTT}, 11\n" if b == 0 else f"s_add_u32 {sRW}, {sRW}, 0x800\n"
                pre += f"s_and_b32 {sRW}, {sRW}, 0x1800\ns_add_u32 {sN}, {r}, {sRW}\ns_lshl4_add_u32 {sN}, {sN}, {sCB}"
            elif i: pre += f"s_add_u32 {sN}, {sN}, 0x8000"
            elif r: pre += f"s_lshl4_add_u32 {sN}, {r}, {sCB}"
            else: pre += f"s_lshl3_add_u32 {sN}, {sW16K}, {sCB}"
            run4(pre, vWD, sW2 if r else sWo, ("w", b), after, o["spw0"] if b < 4 else o["spw1"] if b < 6 else None, sN)
            if "f" in abl and LORD.index(b) >= 10: del tl.bg[-3:]
        def wfrags(st, dst, base, off, tok):
            for cb in range(4):
                for e in range(2): st(f"ds_read_b64_tr_b16 {dst(4*cb+2*e)}, {v(base+cb)} offset:{off+e*512}", tok=tok)
        def wbump(st, base, d):
            for i in range(4): st(f"v_add_u32 {v(base+i)}, {d}, {v(base+i)}")
        def wread(st, b):
            sl = WSLOT[b]; off = SLOT[sl][1] - {"c": R[4], "d": R[2]}.get(sl[0], 0)
            if b == 2: wbump(st, vWQ, R[4])
            if b == 4: wbump(st, vWQ, -R[4])
            if b == 10: st(f"s_add_u32 {sE1}, {sW8K}, {R[2]}"); wbump(st, vWQ, sE1)
            st.waittok(("w", b), lat=o["wlat"])
            wfrags(st, lambda k: ag(128 + 16 * (b % 8) + k, 2), vWQ, off, ("wr", b))

        D = NX - 1
        M = list(Mb)
        RG = {1: R[1], 2: 0, 3: R[1], 4: 0, 5: 0}
        def bump(st, d):
            for i in range(4): st(f"v_add_u32 {v(vXR+i)}, {d}, {v(vXR+i)}")
        def opening(g, un):
            if un == 3:
                if o["ssplit"] >= 2: g.waittok(("x", 3))
                elif o["ssplit"]: g.waittok(("x", 3), ("s", 0))
                else: g.waittok(("x", 3), ("s", 0), ("s", 1))
                g("s_barrier"); g.mark("sl")
            elif un < 3: g.waittok(("x", un), lat=o["x1l"]); g("s_barrier"); g.mark("xl%d" % un)
            if un == 2: bump(g, sE0)
            if un == 5: g.need("e1s"); bump(g, sE1)
        NP = o["NP"]
        AU = [ACC[0], ACC[1]] * 3 if kP else [ACC[0], ACC[1], PF + 16, ACC[0], ACC[1], ACC[0]]
        NEED = {2: "e0", 3: "e1", 4: "e2", 5: "e3"} if kP else {3: "f0", 4: "f1", 5: "f3"}
        a2, a3 = (o["a2" if kP else "b2"] / 10, o["a3" if kP else "b3"] / 10)
        SPAN = {2: (o["a1"] / 10, a2), 3: (a2, a3), 4: (a3, 4), 5: (4, 5)}
        for un in range(2, 6):
            acc = AU[un]
            cm = f"{MF} {v(acc,16)}, {v(CA[un>3],4)}, {v(ST+4*un if un <= 3 else ST if un == 4 else CBS,4)}, "
            g = Stream()
            if un == 2:
                opening(g, 2)
                for ks in range(D): xread(g, 2, RG[2], ks)
                M.append(g); g = Stream()
            if un in NEED: g.need(NEED[un])
            self.stamp(g, "u%d" % un)
            clast = un == 4 or (un == 2 and o["c1l"])
            if not clast:
                g.need("c%d" % un); g(cm + "0"); M.append(g); g = Stream()
            last = o["kvpace" if kP else "fpace"] if un == 4 else 31
            for ks in range(32):
                for k in range(NP):
                    if ks == o["pace"] + (k + 1) * (last - o["pace"]) // NP:
                        n = int(round((SPAN[un][0] + (SPAN[un][1] - SPAN[un][0]) * (k + 1) / NP) * NP)) - 1
                        if n >= 0: g.need(("ep", n // NP, n % NP))
                if ks % 4 == 0:
                    if un == 4: g.need("sr%d" % (ks + 3)); g.waittok(("sr", ks + 3))
                    else: g.waittok(("xf", un, ks + 3))
                if ks == 28 and un == 5: g("s_barrier"); g.mark("r5")
                if ks + D == 32 and un < 5: opening(g, un + 1)
                g(f"{MF} {v(acc,16)}, {ag(4*ks,4)}, {ag(128+4*ks,4) if un == 4 else v(XF+4*(ks%NX),4)}, {v(acc,16) if (ks or not clast) else 0}")
                if ks + D < 32:
                    if un != 4: xread(g, un, RG[un], ks + D)
                elif un in (2, 4): xread(g, un + 1, RG[un + 1], ks + D - 32)
                if un >= 3: g.mark(("pd", un, ks))
                if un == 5 and ks == o["kvl"]: g.mark("kvl")
                if ks == 31 and not clast: g.mark("m%d" % un)
                M.append(g); g = Stream()
            if clast:
                g.need("c%d" % un); g(cm + v(acc, 16)); g.mark("cb%d" % un); g.mark("m%d" % un); M.append(g)
        tl.marks.add("m0")
        E = Stream()
        def paced(e, un):
            tot = sum(i.cost for i in e); c = 0; k = 0
            for i in e:
                E.append(i); c += i.cost
                while k < NP and c >= tot * (k + 1) / NP - 1e-9 and not i.glue: E.mark(("ep", un, k)); k += 1
            assert k == NP
        def selectk(st, i):
            k = KCS; j = i + 1 if i else 0
            st(f"v_cndmask_b32 {v(k)}, {v(KC[i])}, {v(KC[j])}, {sPAR}")
            if qS: st(f"v_mul_f32 {v(k+1)}, {f2u(LOG2E/K0)}, {v(k)}")
            else:
                st(f"v_cndmask_b32 {v(k+2)}, {v(KC[i]+2)}, {v(KC[j]+2)}, {sPAR}\nv_mul_f32 {v(k+1)}, {v(k)}, {v(k)}\nv_mul_f32 {v(k)}, {f2u(K0)}, {v(k)}")
                st(f"v_mul_f32 {v(k+1)}, {v(k+1)}, {v(k)}\nv_mul_f32 {v(k+1)}, {f2u(0.044715)}, {v(k+1)}")
        for un in range(4):
            e = Stream()
            if kP: kepi(e, un)
            else: e.need("m%d" % un); gelu(e, AU[un], KC[un], sAB[un], sBLKP, "actP")
            if kP and un == 3: kvpub(e)
            paced(e, un); E.mark("f%d" % un)
        E.mark("kvp")
        swapab(E, 2)
        selectk(E, 0); E.need("m4")
        e = Stream()
        if qS: qepi(e, AU[4], KCS, PF)
        else: gelu(e, ACC[0], KCS, sAB[0], sBLKS, "actS")
        paced(e, 4)
        selectk(E, 2); E.mark("e4"); E.need("m5"); self.stamp(E, "u6")
        if qS: qepi(E, AU[5], KCS, PF + 16)
        elif "h" not in abl: gelu(E, ACC[1], KCS, sAB[2], sBLKS, "actS", o["gpk"])
        self.stamp(E, "q"); E.mark("q5")
        X = Stream()
        X.waittok("stats")
        spin(X, tagtest(ST + 8), stats_ld(2, sA) + "\n" + stats_ld(3, sA), "stok")
        for i in range(2, 4): stat_consts(X, i); X.mark("c%d" % i)
        def select(st, i):
            for r in range(3): st(f"v_cndmask_b32 {v(CBS+r)}, {v(ST+4*i+r)}, {v(ST+4*i+4+r)}, {sPAR}")
        if o["xlate"]: X.need("kvp" if kP else "m3")
        select(X, 2); X(f"v_mov_b32 {v(CBS+3)}, 0")
        X.mark("e1s")
        X(f"s_and_b32 {sA}, s98, 0x100\ns_add_u32 {sA}, {sA}, {WS_ACT}\nv_and_b32 {v(vWR+1)}, 0xf0, {v(vL16)}\nv_and_b32 {v(vT0)}, 0x30, v0\nv_lshl_add_u32 {v(vT0)}, {v(vT0)}, 5, {sA}\nv_add_u32 {v(vWR+1)}, {v(vWR+1)}, {v(vT0)}")
        X.need("sl")
        X(f"s_lshr_b32 {sA}, {sWV}, 1\ns_lshl1_add_u32 {sA}, {sTT}, {sA}\ns_xor_b32 {sE0}, {sA}, 1\ns_mul_i32 {sA}, {sA}, {TBSTR}\ns_mul_i32 {sE0}, {sE0}, {TBSTR}")
        X(f"v_add_u32 {v(vAA)}, {sA}, {v(vWR+1)}\nv_add_u32 {v(vAA+2)}, {sE0}, {v(vWR+1)}\nv_xor_b32 {v(vAA+1)}, 0x100, {v(vAA)}\nv_xor_b32 {v(vAA+3)}, 0x100, {v(vAA+2)}")
        X2 = Stream()
        X2.need("kvp"); flag(X2, a_fl1 if kP else a_fl2(0), "kvp" if kP else "actP")
        X.need("cs"); corr_a(X, 1); X.mark("c4")
        X.mark("c5")
        S = Stream()
        C = Stream()
        S.need("xl2"); S.mark("k")
        S.need("sl")
        if o["ssplit"] == 2: S.waittok(("s", 0)); S("s_barrier")
        if o["ssplit"] == 3: S.waittok(("s", 1)); S("s_barrier")
        if kP and o["sg0"]: S.need(o["sg0"])
        for half in range(2):
            for ks in range(16 * half, 16 * half + 16):
                S.need(("pd", 3, ks))
                for e in range(1 if "i" in abl else 2): S(f"ds_read_b64_tr_b16 {ag(4*ks+2*e,2)}, {v(vSR)} offset:{(ks&15)*2048+e*512}", tok=("sr", ks))
                if ks % 4 == 3:
                    S.mark("sr%d" % ks); C.need("sr%d" % ks); C.waittok(("sr", ks))
                    if ks == 3: C.need("kvp" if o["prio" if kP else "priof"] else "m3")
                    for k2 in range(ks - 3, ks + 1 if ("a" not in abl or ks == 3) else 0): C(f"{MF16} {v(CS,4)}, {v(CSEL,4)}, {ag(4*k2,4)}, {v(CS,4) if k2 else 0}")
                if ks == 19 and kP and o["sg1"]: S.waittok(("sr", 15)); S("s_barrier"); S.mark("sa"); S.need(o["sg1"])
                if ks == 15: S(f"v_subrev_u32 {v(vSR)}, {R[4]}, {v(vSR)}")
                if ks == 15 and o["ssplit"] in (1, 2): S.waittok(("s", 1)); S.waittok(("sr", 15)); S("s_barrier"); S.mark("sa")
                if ks == 19 and o["ssplit"] in (0, 3) and not (kP and o["sg1"]): S.waittok(("sr", 15)); S("s_barrier"); S.mark("sa")
        S(f"v_add_u32 {v(vWQ)}, {sW8K}, {v(vWR)}")
        for i in range(1, 4): S(f"v_xor_b32 {v(vWQ+i)}, {32*i}, {v(vWQ)}")
        S.waittok(("sr", 31)); S("s_barrier"); S.mark("sb")
        C.mark("cs")
        if o["prio" if kP else "priof"] == 1: S.need("kvp")
        for b in range(nE):
            S.need(("pd", 4, 4 * b + 3)); wread(S, b)
            if b: S.waittok(("wr", b - 1)); S.mark("wr%d" % (b - 1))
        S.waittok(("wr", nE - 1)); S.mark("wr%d" % (nE - 1))
        def res():
            B(f"buffer_load_dwordx4 {v(XR,4)}, {v(vOUT)}, {sX}, {sPCOL} offen", sp=o["spx3"])
            B(f"s_add_u32 {sM}, {sPCOL}, 0x2000\nbuffer_load_dwordx4 {v(XR+4,4)}, {v(vOUT)}, {sX}, {sM} offen", "res", sp=o["spx3"])
        if not o["rord"]: res()
        def tlbw(pos):
            if o["tlbp"] != pos: return
            if o["tlb"] & 1: B(f"buffer_load_dword {v(vFL+1)}, {v(vZ)}, {sOut}, {sPCOL} offen sc1", None, "stok", sp=16); tl.bg[-1].ins[-1].wr = []
            if o["tlb"] & 2: B(f"s_mul_i32 {sM}, {sTT}, {2*TBSTR}\ns_add_u32 {sM}, {sM}, {WS_ACT+TBSTR}\nbuffer_load_dword {v(vFL+1)}, {v(vZ)}, {sWS}, {sM} offen sc1", None, "stok", sp=16); tl.bg[-1].ins[-1].wr = []
            if o["tlb"] & 4 and kP: B(f"buffer_load_dword {v(vFL+1)}, {v(vZ)}, {sWS}, {sAB[0]} offen sc1", None, "stok", sp=16); tl.bg[-1].ins[-1].wr = []
        warm3(2); tlbw(0); dma_s(0, "k"); warm3(3); tlbw(1)
        if o["xord"]: dma_x(3, None, o["spx3"])
        dma_s(1, "k"); warm3(4); tlbw(2)
        if o["rord"]: res()
        def wafter(b):
            n = LORD.index(b)
            return "k" if n < 2 else "sa" if n < 4 else "sb" if n < 6 else "wr%d" % (n - 6) if n < 14 else "r5"
        nB = o.get("nB", 13) if qS else o.get("nBf", 11)
        for n in range(nB):
            if qS and n == o.get("nK", 10): fl_bg(sFK, 0, "fK", "kvl")
            dma_w(LORD[n], wafter(LORD[n]))
        if qS and nB <= o.get("nK", 10): fl_bg(sFK, 0, "fK", "kvl")
        late = LORD[nB:]

        AC2 = 0; AF = 64; NB = 4
        fO = o["fO"] if qS else o["fOf"]; fS = o["fSa"] if qS else o["fS"]
        def af(idx): return ag(AF + 4 * (idx % 16), 4)
        def acts():
            for bb in range(11):
                if bb == fS: fl_bg(sFL, 256, "fS", "fP")
                if bb == fO: fl_bg(sFL, 512, "fO", "fa8")
                r, i = blk(bb)
                pre = ""
                if bb == 10: pre = f"s_cmp_eq_u32 {r}, {43*2048}\ns_cselect_b32 {r}, {'0x20000000' if o['z5'] else sBS[0]}, {r}"
                elif o["wrot"] and bb < 8:
                    pre = f"s_add_u32 {sRW}, {sRW}, 0x800\ns_and_b32 {sRW}, {sRW}, 0x1800\ns_add_u32 {sM}, {r}, {sRW}"; r, i = sM, 0
                elif i == 2: pre = f"s_add_u32 {r}, {r}, 4096"
                for k in range(4):
                    idx = 4 * bb + k
                    aft = {0: "fP", 32: "fS", (4 * o.get("gate", 99) if qS else 99): "pub"}.get(idx, ("mt", idx - 16) if idx >= 16 else None)
                    B(f"{pre}\nbuffer_load_dwordx4 {af(idx)}, {v(vAA+k)}, {sWS}, {r} offen offset:{2048*(i&1)} sc1", ("act", idx), aft, sp=o["spa"]); pre = ""
            if fO == 11: fl_bg(sFL, 512, "fO", "fa8")
            for n in range(16):
                idx = 44 + n; p = 4 * ((n >> 1) & 3) + 2 * (n >> 3)
                pre = "" if n & 1 else f"s_mov_b32 {sM}, {(43+p)*2048}"
                B(f"{pre}\nbuffer_load_dwordx4 {af(idx)}, {v(vAA)}, {sWS}, {sM} offen offset:{2048*(n&1)} sc1", ("act", idx), "fO" if n == 0 else ("mt", idx - 16), sp=o["spo"])
        assert fS >= 5 and fO >= 8
        s = Stream()
        if not qS:
            fl_bg(sFL, 0, "fP", "r5")
            for b in late: dma_w(b, wafter(b))
            acts()
            X2.need("m5"); fl_check(X2, sFL, 0, "fP")
            E.mark("odone"); FS = [X, X2, S, C, E]
        else:
            Z = ST + 8; ZT = F8a; KA = XF
            X2.need("sb")
            X2(f"s_mul_i32 {sD}, {sHD}, {KVREC}\ns_add_u32 {sD}, {sD}, {WS_KVP}\nv_add_u32 {v(vJ)}, {sD}, {v(vL16)}")
            X2(f"v_and_b32 {v(vXD0)}, 0x30, {v(vL16)}\nv_lshrrev_b32 {v(vSR)}, 4, v0\nv_lshl_add_u32 {v(vXD0)}, {v(vSR)}, 2, {v(vXD0)}")
            X2.need("c5")
            fl_check(X2, sFK, 0, "fK")
            X2(f"v_and_b32 {v(vFA)}, 0x38, {v(vFA)}"); X2.mark("gat")
            gsp = o.get("gsp", 48)
            B(f"s_movk_i32 {sM}, 0x4000\nbuffer_load_dwordx4 {v(Z,4)}, {v(vJ)}, {sWS}, {sM} offen sc1", "z", "gat", sp=gsp)
            NG = 2 if "c" in abl else 16
            for p in range(NG):
                if p == o["nP"]: fl_bg(sFL, 0, "fP", None)
                gq = o["gq"]
                pre = "" if p % gq else f"s_lshl_b32 {sM}, {sROT}, 11\ns_and_b32 {sM}, {sM}, {0x4000-1024*gq}" if p == 0 else f"s_add_u32 {sM}, {sM}, {1024*gq}\ns_and_b32 {sM}, {sM}, 0x3fff"
                B(f"{pre}\nbuffer_load_dwordx4 {ag(4*p,4)}, {v(vJ)}, {sWS}, {sM} offen offset:{(p%gq)*1024} sc1", ("g", p), ("pd", 5, p), sp=gsp)
            nL = o.get("nL", 0)
            for b in late[:nL]: dma_w(b, wafter(b))
            if o["nP"] >= 16: fl_bg(sFL, 0, "fP", None)
            for b in late[nL:]: dma_w(b, wafter(b))
            acts()
            xo, xs, zw, zr = (CA[0] + i for i in range(4))
            X2(f"s_add_u32 {sD}, {sW16K}, {R[2]+4096}\nv_add_u32 {v(xo)}, {sD}, {v(vL16)}\nv_xor_b32 {v(xs)}, 0x4000, {v(xo)}")
            X2(f"v_add_u32 {v(zw)}, {sD}, {v(vXD0)}\nv_lshl_add_u32 {v(zr)}, {v(vSR)}, 4, {sD}"); X2.mark("xa")
            X2.waittok("z")
            for i in range(4): X2(f"v_lshlrev_b32 {v(ZT+i)}, 16, {v(Z+i)}\nv_and_b32 {v(ZT+4+i)}, 0xffff0000, {v(Z+i)}")
            for i in range(0, 8, 2): X2(f"v_permlane16_swap_b32 {v(ZT+i)}, {v(ZT+i+1)}")
            for i in range(0, 8, 2): X2(f"v_add_f32 {v(ZT+i)}, {v(ZT+i)}, {v(ZT+i+1)}")
            for i in (0, 4): X2(f"v_permlane32_swap_b32 {v(ZT+i)}, {v(ZT+i+2)}")
            for i in (0, 4): X2(f"v_add_f32 {v(ZT+i)}, {v(ZT+i)}, {v(ZT+i+2)}")
            for m in ("row_ror:4", "row_ror:8"):
                for i in (0, 4): X2(f"v_add_f32_dpp {v(ZT+i)}, {v(ZT+i)}, {v(ZT+i)} {m} {DPPM}")
            X2(f"v_cvt_pk_bf16_f32 {v(Z)}, {v(ZT)}, {v(ZT+4)}")
            X2.need("r5"); X2(f"ds_write_b32 {v(zw)}, {v(Z)} offset:4096\nds_read_b128 {v(Z,4)}, {v(zr)} offset:4096", tok="zr"); X2.mark("zr")
            X2.need("m5"); fl_check(X2, sFL, 0, "fP")
            XC = Stream(); XC.need("xa"); XC.need("r5"); XC.need(("sib", PF))
            for k in range(4):
                if k == 2: XC.need(("sib", PF + 16))
                XC(f"ds_write_b128 {v(xo)}, {v(PF+8+16*(k>>1)+4*(k&1),4)} offset:{1024*k+8192*o['mb']}", tok="xw")
            if o["mb"]: XC.waittok(("w", 14), lat=o["wlat"])
            XC.waittok("xw"); XC("s_barrier"); XC.mark("xwb")
            for k in range(4): XC(f"ds_read_b128 {v(PF+8+16*(k>>1)+4*(k&1),4)}, {v(xs)} offset:{1024*k+8192*o['mb']}", tok="xr")
            XC.waittok("xr")
            if o["xb2"]: XC("s_barrier")
            XC.mark("xr")
            G = Stream(); G.need("m5")
            if o["pk"]: G.need(("sib", PF + 16))
            for p in range(NG):
                if p % 2 == 0: G.waittok(("g", p + 1))
                G(f"{MF} {v(KA,16)}, {v(SEL[0],4)}, {ag(4*p,4)}, {v(KA,16) if p else 0}")
            G.mark("gdone")
            KP = KA + 16
            G(f"s_add_u32 {sSO[0]}, {sHD}, 86\ns_lshl_b32 {sSO[0]}, {sSO[0]}, 10")
            for i in range(4): G(f"v_cvt_pk_bf16_f32 {v(KP+i)}, {v(KA+2*i)}, {v(KA+2*i+1)}")
            G.need("zr"); G.waittok("zr")
            for i in range(4): G(f"v_permlane16_swap_b32 {v(KP+i)}, {v(Z+i)}")
            self.stamp(G, "kvx")
            O = Stream()
            for n, A in ((0, AU[4]), (1, KA), (3, AU[5]), (2, TA)):
                if n == 0: G.need("e4")
                if n == 1: G.need("xr")
                if n == 2: G.need("q5")
                G(f"{MF} {v(A,16)}, {v(KP,4)}, {v(PF+8*n,4)}, 0\n{MF} {v(A,16)}, {v(Z,4)}, {v(PF+8*n+4,4)}, {v(A,16)}"); G.mark(("om", n))
                O.need(("om", n))
                O(f"v_add_f32 {v(A+8)}, {f2u(1e-6)}, {v(A+8)}\nv_rcp_f32 {v(A+8)}, {v(A+8)}")
                O(f"s_add_u32 {sSO[1]}, {sAB[n]}, {sSO[0]}")
                if o["opk"] and n:
                    for i in range(0, 8, 2): O(f"v_pk_mul_f32 {v(A+i,2)}, {v(A+i,2)}, {v(A+8,2)} op_sel_hi:[1,0]")
                else:
                    for i in range(8): O(f"v_mul_f32 {v(A+i)}, {v(A+i)}, {v(A+8)}")
                for i in range(4): O(f"v_cvt_pk_bf16_f32 {v(A+12+i)}, {v(A+2*i)}, {v(A+2*i+1)}")
                O(f"buffer_store_dwordx4 {v(A+12,4)}, {v(vL16)}, {sWS}, {sSO[1]} offen sc1", tok="actO")
                if o.get("nost") and n != 2: O.pop()
            self.stamp(O, "o"); O.mark("odone")
            FS = [X, X2, S, C, XC, G, O, E] if o["ofirst"] else [X, X2, S, C, XC, G, E, O]
        def grp2(pre, text, post=None):
            g = Stream(); g.small = o["nds2"]
            if pre: pre(g)
            g(text)
            if post: post(g)
            M.append(g)
        def wo(n): return (lambda k, c=2: v(96 + 16 * n + k, c)) if n < 10 else (lambda k, c=2: ag(128 + 16 * ((n - 7) % 8) + k, c))
        for bb in range(11):
            for kk, k in enumerate((1, 2, 3, 0) if bb == 10 else range(4)):
                idx = 4 * bb + k
                for cc in range(4):
                    cb = 3 - cc if kk & 1 else cc
                    def pre(g):
                        if kk == 0:
                            if bb == 0:
                                g.need("wr7")
                                if qS: g.need("odone" if o["p2hold"] else "gdone")
                            if bb == fS:
                                g.need("pub"); fl_check(g, sFL, 256, "fS")
                                g(f"v_lshrrev_b32 {v(vFA)}, 1, {v(vN16)}\ns_and_b32 {sFL}, {sFL}, 0xffffff3f"); g.mark("fa8")
                            if bb == fO: g.need("pub"); fl_check(g, sFL, 512, "fO")
                            if bb >= nE: g.need("wq%d" % bb); g.waittok(("wr", bb), lat=0)
                        if kk % 2 == 0:
                            g.waittok(("act", 4 * bb + (kk + 1 if bb < 10 else 2 + kk // 2)), ahead=o["ah2"] if bb >= o["p2e"] else 0, lat=0 if bb >= o["p2e"] else None)
                    def post(g):
                        g.mark(("mt", idx))
                        if kk == 3: g.mark(("mm", bb)); self.stamp(g, "mm%d" % bb)
                    A = ag(AC2 + 16 * k + 4 * cb, 4)
                    grp2(pre if cc == 0 else None, f"{MF16} {A}, {ag(128+16*(bb%8)+4*cb,4)}, {af(idx)}, {A if bb else 0}", post if cc == 3 else None)
        if fO == 11:
            g = Stream(); g.need("pub")
            if o.get("qfirst"): g.need(("qa", 2))
            fl_check(g, sFL, 512, "fO"); M.append(g)
        for n in range(16):
            for cb in range(4):
                def pre(g):
                    g.need(("wo", n)); g.waittok(("wo", n), lat=0)
                    if n % 2 == 0 or n > 12: g.waittok(("act", 44 + (n if n >= 12 else n + 1)), ahead=o["aho"], lat=0)
                def post(g):
                    if n == 15: g.mark("oend"); self.stamp(g, "mm14")
                A = ag(AC2 + 4 * cb, 4)
                grp2(pre if cb == 0 else None, f"{MF16} {A}, {wo(n)(4*cb,4)}, {af(44+n)}, {A}", post if cb == 3 else None)
        W = Stream(); W.need("m5")
        for b in range(nE, 11):
            W.need(("mm", b - 8)); wread(W, b); W.mark("wq%d" % b)
        W2s = Stream(); W2s.need("m5")
        W2s(f"v_add_u32 {v(vXR)}, {R[4]}, {v(vWR)}")
        for i in range(1, 4): W2s(f"v_xor_b32 {v(vXR+i)}, {32*i}, {v(vXR)}")
        if qS and o["mb"]: W2s.need("xwb"); W2s.need("odone")
        else: W2s.waittok(("w", 14), lat=o["wlat"]); W2s.need("odone"); W2s("s_barrier")
        W2s.mark("wob")
        for n in range(16):
            if n == 8: wbump(W2s, vXR, -R[4])
            if n >= 10: W2s.need(("mm", n - 7))
            wfrags(W2s, wo(n), vXR, (n & 7) * 4096, ("wo", n)); W2s.mark(("wo", n))
        X = Stream(); X.need("odone"); X.need("fP")
        flag(X, a_fl2(2 if qS else 1), "actO" if qS else "actS", o["stlat2"])
        X.mark("pub"); Xf = X; X = Stream(); X.need("pub"); X.need("wq10")
        RW = vKA; RR = [vWD, vWD + 2, vT2, vJ]; Y = ACC[0]; Pp = ACC[1]
        assert Y == 48 and Pp == 64
        vJ2 = (vSR, vXD0)
        rr = lambda k, e: v(RR[k] + e) if k < 3 else v(vJ2[e])
        X(f"v_lshrrev_b32 {v(vT0)}, 4, v0\nv_and_b32 {v(vT1)}, 7, v0\nv_xor_b32 {v(vT0)}, {v(vT0)}, {v(vT1)}\nv_and_b32 {v(RW)}, 0xf0, {v(vL16)}")
        X(f"v_add_lshl_u32 {v(vT0)}, {v(RW)}, {v(vT0)}, 4\ns_add_u32 {sA}, {sW16K}, {R[2]}\nv_add_u32 {v(RW)}, {sA}, {v(vT0)}\nv_xor_b32 {v(RW+1)}, 64, {v(RW)}")
        X(f"v_lshrrev_b32 {v(vT0)}, 3, v0\nv_lshlrev_b32 {v(vT1)}, 1, {v(vT1)}\nv_xor_b32 {v(vT1)}, {v(vT1)}, {v(vT0)}\nv_lshlrev_b32 {v(vT1)}, 4, {v(vT1)}\nv_lshl_add_u32 {v(vT0)}, {v(vT0)}, 8, {v(vT1)}")
        X(f"v_add_u32 {v(vT0)}, {sA}, {v(vT0)}")
        for k in range(4):
            m = 16384 * ((k + 1) & 3) + 4096 * k
            X(f"v_xor_b32 {rr(k,0)}, {m}, {v(vT0)}\nv_xor_b32 {rr(k,1)}, {m+16}, {v(vT0)}")
        for it in range(2):
            for i in range(4):
                X(f"v_lshlrev_b32 {v(Y+8*it+2*i)}, 16, {v(XR+4*it+i)}\nv_and_b32 {v(Y+8*it+2*i+1)}, 0xffff0000, {v(XR+4*it+i)}")
        for i in range(4):
            X(f"v_lshlrev_b32 {v(vT0)}, 16, {v(B2+i)}\nv_and_b32 {v(vT1)}, 0xffff0000, {v(B2+i)}")
            for it in range(2):
                X(f"v_add_f32 {v(Y+8*it+2*i)}, {v(Y+8*it+2*i)}, {v(vT0)}\nv_add_f32 {v(Y+8*it+2*i+1)}, {v(Y+8*it+2*i+1)}, {v(vT1)}")
        X(f"s_add_u32 {sB}, {sPCOL}, 0x2000"); X.mark("fin")
        Q = Stream(); Z2 = Stream(); Q.need("fin"); Q.need("wob")
        def qw(k, slot, tok):
            for cb in range(4): Q(f"ds_write_b128 {v(RW+(cb&1))}, {ag(AC2+16*k+4*cb,4)} offset:{slot*4096+(cb>>1)*128}", tok=tok)
        def qr(k):
            for it in range(2):
                for e in range(2): Q(f"ds_read_b128 {v(Pp+16*(k&1)+8*it+4*e,4)}, {rr(k,e)} offset:{it*2048}", tok=("qr", k, it))
            Q.mark(("qr", k))
        for k in range(1, 4): Q.need(("mt", 40 + k)); qw(k, k - 1, "qw")
        Q.waittok("qw", lat=80); Q("s_barrier"); self.stamp(Q, "red0")
        for k in range(3):
            if k == 2: Q.need(("qa", 0))
            qr(k)
            Z2.need(("qr", k)); Z2.waittok(("qr", k, 1))
            for i in range(16): Z2(f"v_add_f32 {v(Y+i)}, {v(Y+i)}, {v(Pp+16*(k&1)+i)}")
            Z2.mark(("qa", k))
        Q.need("oend"); Q.need(("qa", 1)); qw(0, 3, "qw2"); self.stamp(Q, "red"); qr(3)
        Z2.need(("qr", 3))
        for it in range(2):
            Z2.waittok(("qr", 3, it), lat=100)
            for i in range(0, 8, 2): Z2(f"v_pk_add_f32 {v(Y+8*it+i,2)}, {v(Y+8*it+i,2)}, {v(Pp+16+8*it+i,2)}")
            for i in range(4): Z2(f"v_cvt_pk_bf16_f32 {v(XR+4*it+i)}, {v(Y+8*it+2*i)}, {v(Y+8*it+2*i+1)}")
            Z2(f"buffer_store_dwordx4 {v(XR+4*it,4)}, {v(vOUT)}, {sOut}, {sB if it else sPCOL} offen{' sc1' if o['outsc1'] else ''}"); self.stamp(Z2, "out%d" % it)
        tl.sched(M, FS + [Xf, W, Q, Z2, W2s, X], nds=o.get("nds", 3))
        s = Stream()
        if kP:
            noe = self.lab("noe")
            s(f"s_or_b32 {sA}, s2, {sWV}\ns_cmp_lg_u32 {sA}, 0\ns_cbranch_scc1 {noe}")
            s(f"s_mov_b64 exec, 1\nbuffer_store_dword {v(vTAG)}, {v(vZ)}, {sWS}, 0 offen sc1\ns_mov_b64 exec, -1", cond=True)
            s(noe + ":")
        if o.get("probe"):
            lp, l2, l3 = self.lab("pad"), self.lab("ref"), self.lab("skip"); K = o.get("K", 4)
            s("s_waitcnt vmcnt(0)"); self.stamp(s, "end"); s("s_waitcnt lgkmcnt(0)")
            if o.get("st") == "start": s("s_mov_b32 s60, s100")
            s(f"s_or_b32 {sA}, s2, {sWV}\ns_cmp_lg_u32 {sA}, 0\ns_cbranch_scc1 {l2}")
            s(f"v_mov_b32 {v(vT0)}, s100\nv_mov_b32 {v(vT1)}, {v(vTAG)}\nbuffer_store_dwordx2 {v(vT0,2)}, {v(vZ)}, {sWS}, 0 offen offset:2048 sc1", cond=True)
            s(f"{l2}:\ns_sleep 64\nbuffer_load_dwordx2 {v(vT0,2)}, {v(vZ)}, {sWS}, 0 offen offset:2048 sc1\ns_waitcnt vmcnt(0)\nv_cmp_ne_u32 vcc, {v(vT1)}, {v(vTAG)}\ns_nop 4\ns_cbranch_vccnz {l2}")
            s(f"v_readfirstlane_b32 s66, {v(vT0)}\ns_nop 4\ns_sub_u32 s60, s60, s66")
            if o["probe"] == "min": s("s_sub_u32 s60, 1200, s60")
            else: s("s_add_u32 s60, s60, 300")
            if o.get("only", role) != role: s("s_mov_b32 s60, 0")
            s(f"s_mul_i32 s60, s60, {K}\ns_add_u32 s60, s60, 4000")
            s(f"{lp}:\ns_memrealtime s[64:65]\ns_waitcnt lgkmcnt(0)\ns_sub_u32 s64, s64, s66\ns_cmp_lt_u32 s64, s60\ns_cbranch_scc1 {lp}")
        elif o["stamps"]:
            s("s_waitcnt vmcnt(0)\ns_memrealtime s[64:65]\ns_waitcnt lgkmcnt(0)")
            s(f"s_lshl2_add_u32 {sA}, s2, {sWV}\ns_lshl_b32 {sA}, {sA}, 6\ns_add_u32 {sA}, {sA}, {WS_STAMP}")
            for i, r in enumerate(["s100"] + ["s%d" % k for k in STAMPR] + ["s64"]):
                s(f"v_mov_b32 {v(vT1)}, {r}\nbuffer_store_dword {v(vT1)}, {v(vZ)}, {sWS}, {sA} offen offset:{4*i}")
        tl.straight(s)
        assert tl.bi == len(tl.bg)
        tl.log.append("end t=%d forced=%d" % (tl.t, tl.forced))
        if o["log"]: sys.stderr.write("\n".join(role + " " + x for x in tl.log) + "\n")
        return tl.out

    def build(self):
        outs = {}
        for role in ("att", "ffn"):
            st = {}
            outs[role] = finalize(self.role(role), st)
            sys.stderr.write("%s: %s\n" % (role, st))
        ia, jf = outs["att"].index("L_split:"), outs["ffn"].index("L_split:")
        assert outs["att"][:ia] == outs["ffn"][:jf], "common start differs"
        parts = [outs["att"][:ia] + ["s_branch L_att"], outs["att"][ia + 1:] + ["s_endpgm"] + self.side["att"], outs["ffn"][jf + 1:] + ["s_endpgm"] + self.side["ffn"]]
        if self.o["sp0g"]:
            parts = [parts[0] + self.side["att"] + self.side["ffn"], outs["att"][ia + 1:] + ["s_endpgm"], outs["ffn"][jf + 1:]]
        tmp = [f"L_pad_{r}_{k}:" for r in ("att", "ffn") for k in range(4)] + ["L_att:", "L_ffn:", "L_end:", NAME + "_kernel:"]
        sz = instr_sizes(parts[0] + parts[1] + parts[2] + tmp); lam = self.o["lam"] / 100
        text, _ = layout(parts[0], sz[:len(parts[0])], lam); p0 = len(parts[0])
        for r, part in (("att", parts[1]), ("ffn", parts[2])):
            so = 64 * self.o["ro"]
            x, n = layout(part, sz[p0:p0 + len(part)], lam, (lambda k: [f"L_pad_{r}_{k}:", f"s_cbranch_execz PADNEXT{k}"]) if self.o["pad"] else None, so)
            p0 += len(part)
            assert not self.o["pad"] or 4 <= n <= 8
            x = [re.sub(r"PADNEXT(\d)", lambda m: f"L_pad_{r}_{int(m.group(1))+4}" if int(m.group(1)) + 4 < n else f"L_ret_{r}", l) for l in x]
            text += [".p2align 12"] + ([".fill %d, 4, 0xbf800000" % (so // 4)] if so else []) + [f"L_{r}:"] + x
            sys.stderr.write("%s: %d landing pads\n" % (r, n))
        text += ["L_end:", "s_endpgm"]
        body = "\n".join(t if t.endswith(":") else "    " + t for t in text) + "\n"
        hdr = ["@launch grid=(256,1,1) block=(256,1,1) lds=163840",
               "out = x + Hedgehog-linear-attention(LN(x)) + FFN_gelu(LN(x)); one persistent launch, 256 co-resident workgroups (one per CU).",
               "Straight-line code written by my own generator (instruction lists + list scheduler + wait/hazard pass).",
               "Phase 1 (128 tokens x 192 features per workgroup, weights held in AGPRs, x staged in LDS by DMA):",
               "  role A: K,V of 4 heads -> dual softmax (true max subtracted) -> partial phi_k^T [v|1]; then 1-2 hidden blocks -> GELU(tanh form)",
               "  role B: 4 hidden blocks -> GELU; then Q of 4 heads -> dual softmax; sums the 16 partial kv/z records; o = num / (den + 1e-6)",
               "  LayerNorm is applied after the product: rank-1 MFMA with column sums (mean, bias) and a per-token 1/std scale.",
               "Phase 2 (64 tokens x 64 columns per workgroup): [h | o] @ [w2 ; wo] + b2 + x.",
               "Hand-offs through d_ws: write-through (sc1) stores, vmcnt wait, then a tagged flag per producing wave; consumers poll with sc1 loads.",
               "The tag is d_ws[0] + constant (read at entry, advanced by workgroup 0 at its end); it only tells this launch's hand-offs from older ones.",
               "Poll loops (L_retry_*) are bounded so that a broken launch cannot hang the device.",
               "Instruction prefetch stops at 4-KB pages: early on each wave jumps once to the first line of a later page (L_pad_*, branches only) and back."]
        m = module(hdr, [(NAME + "_kernel", body, 512, 256)])
        if self.o["pa"]:
            pad = ".p2align 12\n" + (".fill %d, 4, 0xbf800000\n" % (64 * self.o["po"]) if self.o["po"] else "")
            m = m.replace(".text\n", ".text\n" + pad, 1)
        return m

if __name__ == "__main__":
    opt = {}
    for x in sys.argv[2:]:
        k, _, val = x.partition("=")
        opt[k] = (int(val) if val.lstrip("-").isdigit() else val) if val else True
    open(sys.argv[1], "w").write(Gen(**opt).build())
```

```python
import sys, struct, os, re
from asmlib import module
from backend import *

NAME = "parallel_sum__linear_kernel_hedgehog__dense_activation_gelu__prompt"
def f2u(x): return "0x%x" % struct.unpack("<I", struct.pack("<f", x))[0]
LOG2E = 1.4426950408889634
K0 = -2.0 * LOG2E * 0.7978845608028654

WS_G = 0; WS_FL1 = 0x1000; WS_FL2 = 0x3000; WS_STATS = 0x8000; WS_KVP = 0x40000; WS_ACT = 0x200000
KVREC = 17 * 1024; TBSTR = 118 * 1024; WS_STAMP = 0x1000000
TAGC = 0x9E3779B9
R = [0, 32768, 65536, 98304, 131072]
SCR = R[3] + 16384
FFN_BLK0 = [0, 6, 11, 16, 22, 27, 32, 38]
FFN_NBLK = [6, 5, 5, 6, 5, 5, 6, 5]
SBL = [[4, 5, 10], [15, 20, 21], [26, 31, 43], [36, 37, 42]]
def pack(l): return "0x%x" % sum(b << (8 * i) for i, b in enumerate(l))

sX, sW, sWS, sW2, sWo, sOut, sAux, sB2 = ("s[%d:%d]" % (i, i + 3) for i in (8, 12, 16, 20, 24, 28, 32, 36))
sM, sN = "s0", "s1"
sWV, sT, sJ, sU, sI = "s3", "s4", "s5", "s6", "s7"
sROT, sQ4, sTT, sCB, sFL, sSTB = "s64", "s65", "s66", "s67", "s68", "s69"
sA, sB, sC, sD = "s70", "s71", "s72", "s73"
sXB = ["s74", "s75", "s76", "s77"]
sAB = ["s78", "s79", "s80", "s81"]
sXK = ["s82", "s83"]; sSO = ["s84", "s85"]
sBA, sBB = "s86", "s87"; sBS = ["s88", "s89", "s90"]
sPCOL, sW8K, sW16K = "s91", "s92", "s93"
sBLKP, sBLKS = "s94", "s95"; sFK = "s95"; sHD = sHK = "s6"
sE0, sE1 = "s96", "s97"
sPAR = "s[98:99]"
STAMPR = [60, 40, 42, 44, 50, 52, 46, 54, 62, 56, 58, 48]

class VA:
    def __init__(self, start=1): self.n = start
    def __call__(self, k=1, al=1):
        self.n = (self.n + al - 1) // al * al
        r = self.n; self.n += k
        assert self.n <= 256, "out of VGPRs"
        return r
def v(i, k=1): return "v%d" % i if k == 1 else "v[%d:%d]" % (i, i + k - 1)
def ag(i, k=1): return "a%d" % i if k == 1 else "a[%d:%d]" % (i, i + k - 1)
MF = "v_mfma_f32_32x32x16_bf16"; MF16 = "v_mfma_f32_16x16x32_bf16"
DPPM = "row_mask:0xf bank_mask:0xf"

def srd(s, d, p, n):
    d0 = int(d[2:].split(":")[0])
    s(f"s_mov_b32 s{d0}, s{p}\ns_mov_b32 s{d0+1}, s{p+1}\ns_mov_b32 s{d0+2}, {n}\ns_mov_b32 s{d0+3}, 0x20000")

class Gen:
    def __init__(self, **opt):
        self.o = dict(stamps=False, warm=0, outsc1=True, sp=54, sp1=48, ahead=10, log=False, umode=0, vlat=600, stlat=600,
                      ah0=0, s0p=7, pgo=0, c1l=0, rm=0, ru=0, sW=0, spre=0, mb=0, sp0g=0, pa=1, po=0, pad=2, ro=0, pf=6, tw=0, blag=0, bhalf=20, t1=0, t1s=0, spaA=72, ah2A=2, p2eA=3, spo=72, aho=2, spoA=48, ahoA=8, xb2=0, opk=0, ofirst=0, gpk=0, warmb=4, phl=1, a1=5, a2=15, a3=26, b2=17, b3=27, srot=1, xrot=1, wrot=0, sg=200, sv=1, x1l=650, NP=20, bh=100, vpen=6, llat=130, tlb=0, tlbp=0, z5=1, cbx=2, wA=0, wq=0, hsw=2, gq=4, pk=1, kz=1, xlate=0, sg0=0, sg1=0, al=1, lam=10, spx=56, spx3=64, sps0=64, sps1=56, spw0=80, spw1=64, ssplit=3, xord=0, rord=1, fpace=18, priof=0, nds2=1, p1v=1, s1=7, x2a="b5", xa=1, npc=2, nP=16, p2hold=1, spa=72, p2e=3, stlat2=600, qx=4, nq=2, plat0=0, plat=0, sp0=24, warmc=1, stag=1, warmf=0, wsp=180, wpos=0, wpos2=6, cbmix=0, warmm=2, sw=0, px=1, slpK=0, ah0b=6, lag=2, s0=4, slp=0, slat=750, wlat=700, wlat0=1100, nE=4, pace=3, kvpace=8, kvhold=99, hold=0, kvl=6, prio=1, fSa=5, fS=6, fO=8, fOf=10, ah2=4, fo=2)
        self.o.update(opt); self.uid = 0
        Haz.SW = self.o["hsw"]
        global TBSTR, WS_ACT
        TBSTR = 118 * 1024 + self.o.get("tbpad", 0); WS_ACT = 0x200000 + self.o.get("actoff", 0)
    def lab(self, p):
        self.uid += 1; return "L_%s_%d" % (p, self.uid)
    def stamp(self, s, name):
        if self.o.get("dly") == name and self.o.get("dr", self.cur) == self.cur:
            s("s_sleep 8"); s[-1].cost = 0
        if not self.o["stamps"]: return
        names = str(self.o.get("st", "x0,b0,p1,u1,u2,u3,u4,u5,q,o,mm14,red")).split(",")
        if name in names:
            r = STAMPR[names.index(name)]; s(f"s_memrealtime s[{r}:{r+1}]")
        if "c:" + name in names:
            r = STAMPR[names.index("c:" + name)]; s(f"s_memtime s[{r}:{r+1}]")

    def role(self, role):
        kP = role == "att"; qS = not kP; o = self.o; self.cur = role; self.side = getattr(self, "side", {}); self.side[role] = []
        tl = TL(o["sp"], o["vlat"]); B = tl.B
        def watch(name):
            x = Stream(); self.stamp(x, name); return x[0].text if x else None
        tl.watch = watch; tl.m16 = True; tl.pen = o.get("pen", 0); tl.hold = o["bh"]; tl.vpen = o["vpen"]; tl.llat = o["llat"]
        s = Stream(); a = VA(1)
        stride, strS = (3072, 2752) if kP else (2752, 3072)
        vL16 = a(); vXD0 = a(); vXD = a(4); vOUT = a(); vTAG = a(2, 2); vN16 = a(); vXR = a(4); vSR = a()
        vT0 = a(1, 2); vT1 = a(); vT2 = a(); vT3 = a()
        vSD = a(4); vWD = a(4); vPR = vWD + 1; vWR = a(2); vFL = a(2, 2); vFA = a(); vZ = a()
        vAA = vXD; vWQ = vSD
        assert vXD == 3
        vKA = a(2)
        XR = a(8, 4); B2 = a(4, 4)
        ACC = [a(16, 4), a(16, 4)]; NX = 8; XF = a(4 * NX, 4)
        CA = [a(4, 4), a(4, 4)]; ST = a(16, 4); CBS = a(4, 4); CS = a(4, 4); CSEL = a(4, 4); vPD = CBS
        KC = [a(3) for _ in range(4)]; KCS = a(3); vB1 = a()
        F4 = a(4, 4); F8a = a(8, 4); TA = a(16, 4); G4 = F4
        if kP:
            ONES = a(4, 4); SEL = [a(4, 4), a(4, 4)]; F8b = a(8, 4); PHI = [a(4, 4)]; KV = a(16, 4); TB = a(16, 4); HO = F8b
        else:
            SEL = [a(4, 4)]; F8b = a(4, 4); PHI = [a(4, 4), a(4, 4)]; PF = a(32, 4); HO = F8a
        vJ = a(4)
        sys.stderr.write("%s VGPRs: %d\n" % (role, a.n))
        if kP:
            o = dict(o)
            for k in ("spa", "ah2", "p2e", "spo", "aho"): o[k] = o[k + "A"]
        sp1 = o["sp1"]; abl = str(o.get("abl", ""))
        tmp = ACC[0]
        def run4(pre, vb, srdn, tok, after, sp=None, so=sM):
            for q in range(4):
                B(f"{pre if q == 0 else ''}\nbuffer_load_dwordx4 {v(vb+q)}, {srdn}, {so} offen offset:{1024*q} lds", tok, after, sp)
        def dma_x(i, after, sp=None, ks=(0, 1)):
            for k in ks:
                pre = f"s_add_u32 m0, {sW8K}, {R[i]+k*4096}"
                if i and o["xrot"]:
                    pre = f"s_xor_b32 m0, {sXB[0]}, {R[i]+k*4096}"
                    if (i, k) == (2, 0):
                        pre = (f"s_bitcmp1_b32 {sI}, {o['xrot']-1}\ns_cselect_b32 {sM}, {sXK[1]}, {sXK[0]}\ns_cselect_b32 {sXK[1]}, {sXK[0]}, {sXK[1]}\ns_cselect_b32 {sXB[0]}, 0x1000, 0\n"
                               f"s_mov_b32 {sXK[0]}, {sM}\ns_or_b32 {sXB[0]}, {sXB[0]}, {sW8K}\n") + pre
                run4(pre + f"\ns_add_u32 {sM}, {sXB[i]}, {sXK[k]}", vXD, sX, ("x", i), after, sp)
        def dma_xp(r, after, sp):
            pre = "" if r == 0 else f"s_add_u32 {sXK[1]}, {sXK[1]}, 256\ns_and_b32 {sXK[1]}, {sXK[1]}, 0x380\n"
            run4(pre + f"s_add_u32 m0, {sXK[0]}, {8192*r}\ns_add_u32 {sM}, {sXB[1]}, {sXK[1]}", vXD, sX, ("xp", r), after, sp)
        PSL = [R[4], R[4] + 16384, R[2], R[2] + 16384, R[3], R[3] + 16384, R[4], R[4] + 16384]
        s("s_cmp_ge_u32 s2, 256\ns_cbranch_scc1 L_end")
        sk = int(os.environ.get("SKEW", "0")) if o["stamps"] else 0
        if sk:
            s(f"s_xor_b32 s4, s2, 7\ns_and_b32 s4, s4, 7\ns_mul_i32 s4, s4, {sk}\nL_sk:\ns_cmp_eq_u32 s4, 0\ns_cbranch_scc1 L_skd\ns_sleep 1\ns_sub_u32 s4, s4, 1\ns_branch L_sk\nL_skd:")
        s("s_load_dwordx16 s[40:55], s[0:1], 0\ns_load_dwordx8 s[56:63], s[0:1], 64")
        if o["stamps"]: s("s_memrealtime s[100:101]")
        s(f"s_lshr_b32 {sI}, s2, 3")
        if o["warmc"] == 1:
            s(f"s_getpc_b64 s[72:73]\nL_pc:\ns_sub_u32 s72, s72, L_pc-{NAME}_kernel\ns_subb_u32 s73, s73, 0", glue=True)
            s(f"s_lshl_b32 {sA}, {sI}, 11\nv_lshrrev_b32 v1, 4, v0\nv_lshl_add_u32 v1, v1, 7, {sA}\nv_min_u32 v1, L_end-{NAME}_kernel, v1")
            s(f"global_load_dword {v(XR+4)}, v1, s[72:73]")
        s(f"v_lshrrev_b32 v1, 6, v0\nv_and_b32 v0, 63, v0\nv_readfirstlane_b32 {sWV}, v1\nv_lshlrev_b32 v1, 4, v0")
        s(f"s_and_b32 {sA}, s2, 7\ns_lshr_b32 {sROT}, {sI}, 2\ns_and_b32 {sU}, {sI}, 3")
        s(f"s_and_b32 {sT}, {sA}, 1\ns_lshl3_add_u32 {sT}, {sT}, {sROT}\ns_lshr_b32 {sQ4}, {sA}, 1")
        if o["ru"]:
            assert not o["wA"] and not o["wq"]
            s(f"s_and_b32 {sC}, {sU}, {o['ru']}\ns_lshl1_add_u32 {sROT}, {sC}, {sROT}\ns_and_b32 {sROT}, {sROT}, 7")
        if o["rm"]:
            assert not o["wA"] and not o["wq"]
            msk, sh = {1: (6, 0), 2: (4, 1), 3: (6, None), 4: (4, 0)}[o["rm"]]
            s(f"s_and_b32 {sROT}, {sROT}, {msk}")
            if sh is not None: s(f"s_and_b32 {sC}, s2, 1\ns_lshl_b32 {sC}, {sC}, {sh}\ns_or_b32 {sROT}, {sROT}, {sC}")
        if o.get("p2x", 1):
            s(f"s_andn2_b32 {sC}, 1, {sA}\ns_lshl2_add_u32 {sA}, {sC}, {sQ4}")
        s(f"s_lshr_b32 {sC}, {sI}, 3\ns_lshl2_add_u32 {sTT}, {sA}, {sC}")
        s(f"s_lshl2_add_u32 {sA}, {sT}, {sQ4}\ns_lshl_b32 {sXB[0]}, {sA}, 15")
        s(f"s_lshl2_add_u32 {sD}, {sU}, {sWV}\ns_lshl_b32 {sA}, {sD}, 11\ns_add_u32 {sSO[0]}, {sXB[0]}, {sA}")
        s(f"s_lshl_b32 {sSTB}, {sT}, 11\ns_add_u32 {sSTB}, {sSTB}, {WS_STATS}\ns_lshl4_add_u32 {sD}, {sQ4}, {sD}\ns_lshl_b32 {sD}, {sD}, 5\ns_add_u32 {sFL}, {sD}, {sSTB}")
        s(f"v_and_b32 {v(vOUT)}, 0x70, v1\nv_and_b32 v3, 0x30, v0\nv_xor_b32 v2, {v(vOUT)}, v3\nv_lshrrev_b32 v3, 3, v0\nv_lshl_add_u32 v3, v3, 10, v2")
        for q in range(3, 0, -1):
            s(f"v_xor_b32 {v(vXD+q)}, {64*(q&1)}, v3\nv_add_u32 {v(vXD+q)}, {7168*q}, {v(vXD+q)}")
        s(f"s_lshr_b32 {sB}, {sWV}, 1\ns_add_u32 {sA}, {sQ4}, {0 if 'n' in abl else sB}\ns_and_b32 {sA}, {sA}, 3\ns_lshl2_add_u32 {sA}, {sT}, {sA}\ns_lshl_b32 {sXB[1]}, {sA}, 15")
        s(f"s_and_b32 {sA}, {sWV}, 1\ns_lshl3_add_u32 {sB}, {sB}, {sA}\ns_lshl_b32 {sXK[0]}, {sB}, 12\ns_add_u32 {sA}, {sA}, {sROT}\ns_lshl_b32 {sA}, {sA}, 7\ns_and_b32 {sXK[1]}, {sA}, 0x380")
        s(f"s_mov_b32 s10, {2048*1024}\ns_mov_b32 s11, 0x20000\ns_mov_b32 s18, 0x10000000\ns_mov_b32 s19, 0x20000")
        def ppat():
            s(f"s_and_b32 {sJ}, {sU}, 1\ns_lshl1_add_u32 {sJ}, {sQ4}, {sJ}\ns_lshl_b32 {sE1}, {sWV}, 12")
            s(f"s_mov_b32 s70, {pack(FFN_BLK0[:4])}\ns_mov_b32 s71, {pack(FFN_BLK0[4:])}\ns_lshl_b32 {sC}, {sJ}, 3\ns_lshr_b64 s[70:71], s[70:71], {sC}\ns_and_b32 {sBLKP}, s70, 0xff")
            s(f"s_lshl_b32 {sPCOL}, {sBLKP}, 6\ns_lshl_b32 {sD}, {sJ}, 7\ns_add_u32 {sD}, {sD}, 1024\ns_movk_i32 {sA}, 2752\ns_movk_i32 {sC}, 128\ns_mov_b32 s15, 0x20000")
            s(f"s_cmp_lt_u32 {sU}, 2\ns_cselect_b32 {sPCOL}, {sD}, {sPCOL}\ns_cselect_b32 {sA}, 3072, {sA}\ns_cselect_b32 {sB}, 1, 2\ns_cselect_b32 {sC}, 1024, {sC}\ns_cselect_b32 {sE0}, 7, 5", glue=True)
            s(f"s_lshl_b32 s14, {sA}, 9\ns_mul_i32 {sD}, {sWV}, {sA}\ns_mov_b32 {sSO[1]}, {sPCOL}\ns_lshl4_add_u32 {sPCOL}, {sD}, {sPCOL}\ns_lshl_b32 {sBLKS}, {sA}, 6")
            s(f"v_lshrrev_b32 {v(vT0)}, 4, v0\nv_and_b32 {v(vT1)}, 15, v0\nv_lshlrev_b32 {v(vT3)}, {sB}, {v(vT0)}\nv_xor_b32 {v(vT1)}, {v(vT1)}, {v(vT3)}")
            s(f"v_mul_u32_u24 {v(vT0)}, {sA}, {v(vT0)}\nv_lshrrev_b32 {v(vT3)}, 3, {v(vT1)}\nv_mad_u32_u24 {v(vT0)}, {v(vT3)}, {sC}, {v(vT0)}\nv_and_b32 {v(vT1)}, 7, {v(vT1)}")
            s(f"v_lshl_add_u32 {v(vPD)}, {v(vT1)}, 4, {v(vT0)}\ns_lshl_b32 {sA}, {sA}, 2\ns_sub_u32 {sA}, {sA}, 1024")
            for q in range(1, 4): s(f"v_add_u32 {v(vPD+q)}, {sA}, {v(vPD+q-1)}")
        if o["pgo"]: ppat()
        if o["warmc"] >= 2:
            s(f"s_lshl2_add_u32 {sA}, {sI}, {sWV}\ns_mul_i32 {sA}, {sA}, 384\ns_min_u32 {sA}, {sA}, L_end-{NAME}_kernel-384")
            s(f"s_getpc_b64 s[72:73]\nL_pc:\ns_sub_u32 s72, s72, L_pc-{NAME}_kernel\ns_subb_u32 s73, s73, 0\ns_add_u32 s72, s72, {sA}\ns_addc_u32 s73, s73, 0", glue=True)
        s("s_waitcnt lgkmcnt(0)"); self.stamp(s, "go")
        s("s_mov_b64 s[8:9], s[40:41]\ns_mov_b64 s[16:17], s[62:63]"); s.mark("go")
        if o["stag"]: s(f"s_load_dword {sBA}, s[62:63], 0")
        assert o["kz"] == 1 and not o["sw"] & 9 and o["warmc"] < 2 and o["stag"]
        def stouch(base, off):
            s(f"s_load_dword {sBB}, s[{base}:{base+1}], {off}"); s[-1].wr = [("s", "junk%d" % len(s))]
        for k, base in enumerate((42, 50, 44, 52, 56, 54, 46)):
            if o["tw"] >> k & 1: stouch(base, 0)
        if o["sw"] & 1:
            s(f"s_lshl2_add_u32 {sA}, {sI}, {sWV}\ns_lshl_b32 {sB}, {sA}, 7"); stouch(44, sB)
            s(f"s_add_u32 {sB}, {sB}, 64\ns_min_u32 {sC}, {sA}, 42\ns_lshl_b32 {sC}, {sC}, 6"); stouch(44, sB); stouch(52, sC)
            s(f"s_and_b32 {sC}, {sC}, 0x3c0"); stouch(56, sC)
        if o["sw"] & 2: stouch(62, sFL)
        if o["sw"] & 4:
            s(f"s_lshl2_add_u32 {sA}, s2, {sWV}\ns_min_u32 {sA}, {sA}, 383\ns_lshl_b32 {sA}, {sA}, 6\ns_add_u32 {sA}, {sA}, {WS_FL1}"); stouch(62, sA)
        if o["sw"] & 8:
            s(f"s_lshl2_add_u32 {sA}, s2, {sWV}\ns_bfe_u32 {sB}, {sA}, 0x50004\ns_and_b32 {sA}, {sA}, 15\ns_mul_i32 {sB}, {sB}, {KVREC}\ns_lshl_b32 {sA}, {sA}, 6\ns_add_u32 {sA}, {sA}, {sB}\ns_add_u32 {sA}, {sA}, {WS_KVP+16384}"); stouch(62, sA)
        if o["warmc"] >= 2:
            for k in range(0, 6, o["warmc"] - 1): s(f"s_load_dword {sBB}, s[72:73], {64*k}"); s[-1].wr = [("s", "junk%d" % k)]
        for r in range(2): B(f"buffer_load_dwordx4 {v(tmp+4*r,4)}, {v(vL16)}, {sX}, {sSO[0]} offen offset:{1024*r}", "rows", "go", sp=8)
        if not o["stag"]: B(f"buffer_load_dword {v(vTAG)}, {v(vXD0)}, {sWS}, 0 offen sc1", "tag", sp=8)
        if o["xa"]: dma_xp(0, None, o["sp0"])
        if not o["pgo"]: ppat()
        s(f"s_cmp_lt_u32 {sU}, 2\ns_cselect_b64 s[12:13], s[42:43], s[50:51]", glue=True)
        s.mark("pd"); self.stamp(s, "pd")
        def dma_p(ci, after=None):
            mul = sBLKS if ci == 0 else 64 * stride
            run4(f"s_add_u32 {sM}, {sROT}, {ci}\ns_and_b32 {sM}, {sM}, 7\ns_mul_i32 {sM}, {sM}, {mul}\ns_add_u32 m0, {sE1}, {PSL[ci]}\ns_add_u32 {sM}, {sM}, {sPCOL}", vPD, sW, ("p", ci), after, sp1 if ci else 16)
        dma_p(0, "pd")
        if not o["xa"]: dma_xp(0, None, o["sp0"])
        s(f"v_and_b32 {v(vT0)}, 31, v0\nv_lshlrev_b32 {v(vN16)}, 4, {v(vT0)}\nv_lshlrev_b32 {v(vT1)}, 7, {v(vT0)}")
        s(f"v_bfe_u32 {v(vT0)}, v0, 1, 3\nv_lshrrev_b32 {v(vT2)}, 5, v0\nv_xor_b32 {v(vT0)}, {v(vT0)}, {v(vT2)}\nv_lshl_add_u32 {v(vXR)}, {v(vT0)}, 4, {v(vT1)}")
        for cq in range(1, 4): s(f"v_xor_b32 {v(vXR+cq)}, {32*cq}, {v(vXR)}")
        yR, yP, yF, yH, x0, x1 = (ACC[1] + i for i in range(6))
        s(f"v_bfe_u32 {v(yR)}, v0, 2, 2\nv_bfe_u32 {v(yP)}, v0, 4, 1\ns_add_u32 {sB}, {sB}, 4")
        s(f"v_and_b32 {v(yF)}, 16, {v(vL16)}\nv_and_b32 {v(yH)}, 2, v0\nv_lshl_add_u32 {v(yF)}, {v(yH)}, 2, {v(yF)}\nv_lshl_add_u32 {v(yH)}, {v(vT2)}, 3, {v(yR)}")
        s(f"v_xor_b32 {v(x0)}, {sWV}, {v(yR)}\nv_lshl_add_u32 {v(x0)}, {v(x0)}, {sB}, {v(yF)}\nv_lshl_add_u32 {v(x0)}, {v(yP)}, {sE0}, {v(x0)}")
        s(f"v_cmp_eq_u32 vcc, {v(yR)}, {v(yP)}\nv_mov_b32 {v(vT1)}, 0x3f803f80")
        s(f"v_lshl_add_u32 {v(x0)}, {v(yH)}, 8, {v(x0)}\nv_add_u32 {v(vPR)}, {R[2]}, {v(x0)}\nv_add_u32 {v(vPR+1)}, {R[4]}, {v(x0)}")
        for i in range(4): s(f"v_cndmask_b32 {v(CSEL+i)}, 0, {v(vT1)}, vcc")
        if o["cbmix"]: s(f"s_lshr_b32 {sCB}, {sI}, 3\ns_lshl1_add_u32 {sCB}, {sCB}, {sI}")
        s(f"s_xor_b32 {sCB}, {sI}, {o['cbx']}\ns_and_b32 {sCB}, {sCB}, 7\ns_lshl_b32 {sCB}, {sCB}, 7\ns_lshl_b32 {sW16K}, {sWV}, 14\ns_lshl_b32 {sW8K}, {sWV}, 13\nv_mov_b32 {v(vZ)}, 0")
        s(f"s_and_b32 {sA}, {sWV}, 1\ns_cmp_eq_u32 {sA}, 1\ns_cselect_b64 {sPAR}, -1, 0")
        for i in range(4):
            s(f"s_add_u32 {sA}, {sQ4}, {i}\ns_and_b32 {sA}, {sA}, 3\ns_lshl2_add_u32 {sA}, {sT}, {sA}")
            if i > 1: s(f"s_lshl_b32 {sXB[i]}, {sA}, 15")
            s(f"s_mul_i32 {sAB[i]}, {sA}, {TBSTR}\ns_add_u32 {sAB[i]}, {sAB[i]}, {WS_ACT}")
        srd(s, sB2, 56, 1024)
        srd(s, sW2, 54, 1376 * 1024); srd(s, sWo, 46, 512 * 1024); srd(s, sOut, 58, 2048 * 1024)
        tl.straight(s); s = Stream()
        while tl.bi < len(tl.bg): tl.emit_bg(True)
        def swarm(part):
            if not o["sW"]: return
            if part == 0:
                s(f"s_lshl2_add_u32 {sA}, s2, {sWV}\ns_mul_i32 {sB}, {sA}, 1408\ns_min_u32 {sB}, {sB}, {1376*1024-1408}\ns_lshl_b32 {sA}, {sA}, 9")
                s(f"s_add_u32 s54, s54, {sB}\ns_addc_u32 s55, s55, 0", glue=True); s(f"s_add_u32 s46, s46, {sA}\ns_addc_u32 s47, s47, 0", glue=True)
            L = [(54, k) for k in range(22)] + [(46, k) for k in range(8)]
            for b, k in (L[:14] if part == 0 else L[14:29] if part == 1 else L[29:]):
                s(f"s_load_dword s48, s[{b}:{b+1}], {64*k}"); s[-1].wr = [("s", "junk%d" % len(s))]
        if o["sW"] == 1: swarm(0)
        self.stamp(s, "split")
        s(f"s_cmp_ge_u32 {sU}, 2\ns_cbranch_scc1 L_ffn\nL_split:", glue=True)
        if kP:
            s(f"s_lshl2_add_u32 {sHK}, {sJ}, {sWV}\ns_lshl_b32 {sD}, {sBLKP}, 6\ns_add_u32 {sD}, {sD}, 256")
            s(f"s_lshr_b32 {sB}, {sWV}, 1\ns_add_u32 {sBLKS}, {sBLKP}, {sB}\ns_add_u32 {sBLKS}, {sBLKS}, 4")
        else:
            s(f"s_add_u32 {sA}, {sJ}, {o['qx']}\ns_and_b32 {sA}, {sA}, 7\ns_lshl_b32 {sD}, {sA}, 7\ns_lshl2_add_u32 {sHD}, {sA}, {sWV}\ns_add_u32 {sBLKP}, {sBLKP}, {sWV}")
        srd(s, sAux, 44, 32 * 512)
        t0, t2 = G4, G4 + 1
        s(f"v_and_b32 {v(t0)}, 0x13, v0\nv_and_b32 {v(t2)}, 4, v0\nv_lshl_add_u32 {v(t0)}, {v(t2)}, 1, {v(t0)}\nv_bfe_u32 {v(t2)}, v0, 3, 1\nv_lshl_add_u32 {v(t0)}, {v(t2)}, 2, {v(t0)}")
        s(f"v_and_b32 {v(t2)}, 32, v0\nv_lshl_add_u32 {v(t0)}, {v(t2)}, 8, {v(t0)}\nv_lshlrev_b32 {v(t0)}, 1, {v(t0)}")
        s.mark("aux"); self.stamp(s, "aux")
        sWS2 = sB2
        B(f"buffer_load_dwordx4 {v(B2,4)}, {v(vOUT)}, {sB2}, {sCB} offen", None, "aux", sp=16)
        B(f"s_mov_b64 s[36:37], s[52:53]\ns_movk_i32 s38, 2752\ns_lshl_b32 {sM}, {sBLKS if kP else sBLKP}, 6\nbuffer_load_ushort {v(vB1)}, {v(t0)}, {sB2}, {sM} offen", sp=16)
        B(f"s_mov_b64 s[36:37], s[{50 if kP else 42}:{51 if kP else 43}]\ns_mov_b32 s38, {512*strS}\n"
          f"s_lshr_b32 {sM}, {sHD}, 1\ns_add_u32 m0, {sE1}, {SCR}\ns_lshl_b32 {sM}, {sM}, 10\nbuffer_load_dwordx4 {v(vL16)}, {sAux}, {sM} offen lds", "b2", sp=16)
        w1 = vJ + 1
        def warm3(pos):
            if o["warmm" if (kP or o["wA"] != 2) else "warmb"] != pos or (o["wA"] == 1 and not kP): return
            wa, wd = (vFL, vFL + 1) if 2 <= pos <= 4 else (XR, XR + 1); m = 2 if o["wA"] else 1
            wid = f"s_add_u32 {sN}, s2, {0 if kP else 3}\ns_and_b32 {sM}, s2, 8\ns_and_b32 {sN}, {sN}, 7\ns_or_b32 {sN}, {sN}, {sM}\ns_lshl4_add_u32 {sN}, {sROT}, {sN}\ns_lshl2_add_u32 {sN}, {sN}, {sWV}" if o["wA"] else f"s_lshl2_add_u32 {sN}, s2, {sWV}"
            B(f"v_min_u32 {v(wa)}, {11*m-1}, v0\nv_lshlrev_b32 {v(wa)}, 7, {v(wa)}\n{wid}\ns_mul_i32 {sM}, {sN}, {11*128*m}\nbuffer_load_dword {v(wd)}, {v(wa)}, {sW2}, {sM} offen", None, "stok" if 2 <= pos <= 4 else None, sp=16)
            tl.bg[-1].ins[-1].wr = []
            B(f"v_min_u32 {v(wa)}, {(4*m-1)*128}, {v(wa)}\ns_lshl_b32 {sM}, {sN}, {8+m}\nbuffer_load_dword {v(wd)}, {v(wa)}, {sWo}, {sM} offen", sp=32)
        def warmq(pos):
            if o["wq"] != pos or not kP: return
            B(f"v_and_b32 {v(XR+2)}, 15, v0\nv_lshrrev_b32 {v(XR+3)}, 1, {v(XR+2)}\nv_mul_u32_u24 {v(XR+3)}, 3072, {v(XR+3)}\nv_and_b32 {v(XR+2)}, 1, {v(XR+2)}\nv_lshl_add_u32 {v(XR+2)}, {v(XR+2)}, 7, {v(XR+3)}\n"
              f"s_and_b32 {sM}, {sI}, 1\ns_lshl1_add_u32 {sM}, {sROT}, {sM}\ns_lshl2_add_u32 {sM}, {sM}, {sWV}\ns_mul_i32 {sM}, {sM}, {8*3072}\n"
              f"s_lshl_b32 {sN}, {sQ4}, 8\ns_add_u32 {sN}, {sN}, {128*o['qx']}\ns_and_b32 {sN}, {sN}, 0x3ff\ns_add_u32 {sM}, {sM}, {sN}\nbuffer_load_dword {v(XR+3)}, {v(XR+2)}, {sW}, {sM} offen", sp=16)
        def stats_ld(i, r):
            h = f"s_add_u32 {r}, {sQ4}, {i}" if i > 1 else f"s_and_b32 {r}, {sWV}, 1\ns_xor_b32 {r}, {r}, {i}\ns_add_u32 {r}, {r}, {sQ4}"
            return h + f"\ns_and_b32 {r}, {r}, 3\ns_lshl_b32 {r}, {r}, 9\ns_add_u32 {r}, {r}, {sSTB}\nbuffer_load_dwordx4 {v(ST+4*i,4)}, {v(vN16)}, {sWS}, {r} offen sc1"
        for ci in range(1, 9):
            if ci == o["s0p"]:
                for i in range(2): B(stats_ld(i, sM), "stat0", "b%d" % o["s0"], sp=32)
            if ci == o["t1"]:
                B(f"v_min_u32 {v(XR)}, 15, v0\nv_lshlrev_b32 {v(XR)}, 7, {v(XR)}\ns_xor_b32 {sM}, {sXB[3]}, 0x10000\ns_and_b32 {sN}, {sI}, 3\ns_lshl2_add_u32 {sN}, {sN}, {sWV}\ns_lshl_b32 {sN}, {sN}, 11\ns_add_u32 {sM}, {sM}, {sN}\n"
                  f"buffer_load_dword {v(XR+1)}, {v(XR)}, {sX}, {sM} offen", None, "su" if o["t1s"] else None, sp=16)
            if ci < 8 and ci % 2 == 0: dma_xp(ci // 2, None, sp1)
            if ci < 8: dma_p(ci, {1: "su", 5: "phi", 6: "b2", 7: "b3"}.get(ci))
        if True:
            s(f"v_bfe_u32 {v(x0)}, v0, 1, 1\nv_lshl_add_u32 {v(x0)}, {v(yP)}, 1, {v(x0)}\nv_lshlrev_b32 {v(x0)}, 3, {v(x0)}\nv_lshl_add_u32 {v(x0)}, {v(yH)}, 5, {v(x0)}")
            s(f"s_and_b32 {sC}, s98, 0x200\ns_add_u32 {sA}, {sE1}, {sC}\ns_add_u32 {sA}, {sA}, {SCR}")
            s(f"v_add_u32 {v(TA)}, {sA}, {v(x0)}\nv_xor_b32 {v(TA+1)}, 0x200, {v(TA)}"); s.mark("pha")
        s(f"s_movk_i32 {sB}, {strS}")
        if o["srot"]:
            s(f"s_mul_i32 {sSO[0]}, {sROT}, {64*strS}\ns_lshl_b32 {sSO[1]}, {sWV}, 11\ns_mul_i32 {sA}, {sWV}, {16*strS}\ns_add_u32 {sD}, {sD}, {sA}")
        else:
            for k in range(2):
                s(f"s_add_u32 {sA}, {sWV}, {sROT}\ns_add_u32 {sA}, {sA}, {4*k}\ns_and_b32 {sA}, {sA}, 7\ns_mul_i32 {sA}, {sA}, {64*strS}\ns_add_u32 {sSO[k]}, {sA}, {sD}")
        spre = o["spre"] and o["srot"] and (not o["stamps"] or o.get("st") == "none")
        if spre:
            for g in range(8): s(f"s_add_u32 {sA}, {sROT}, {g}\ns_and_b32 {sA}, {sA}, 7\ns_mul_i32 s{54+g}, {sA}, {64*strS}")
        def dma_s(half, after):
            if not o["srot"]:
                for k in range(2): run4(f"s_add_u32 m0, {sW8K}, {R[4-4*half]+k*4096}\ns_add_u32 {sM}, {sSO[half]}, {32*strS*k}", vSD, sWS2, ("s", half), after, o["sps%d" % half])
                return
            for g in range(4):
                pre = f"s_add_u32 m0, {sSO[1]}, {R[4-4*half]+g*8192}\n"
                pre += f"s_add_u32 {sSO[0]}, {sSO[0]}, {64*strS}\ns_cmp_eq_u32 {sSO[0]}, {512*strS}\ns_cselect_b32 {sSO[0]}, 0, {sSO[0]}" if (half or g) else "s_nop 0"
                so = sSO[0]
                if spre: pre = pre.split("\n")[0]; so = "s%d" % (54 + 4 * half + g)
                for q in range(2):
                    sp = o["sg"] if (half, g, q) == (0, 1, 0) else o["sps%d" % half]
                    B(f"{pre if q == 0 else ''}\nbuffer_load_dwordx4 {v(vSD+q)}, {sWS2}, {so} offen offset:{1024*q} lds", ("s", half), after, sp)
        s(f"v_lshrrev_b32 {v(vT0)}, 3, v0\nv_lshlrev_b32 {v(vT1)}, 2, v0\nv_and_b32 {v(vT1)}, 64, {v(vT1)}\nv_xor_b32 {v(vT1)}, {v(vT1)}, {v(vOUT)}")
        s(f"v_mad_u32_u24 {v(vSD)}, {v(vT0)}, {sB}, {v(vT1)}")
        if o["srot"]: s(f"v_add_u32 {v(vSD)}, {sD}, {v(vSD)}")
        if kP and o["z5"]:
            five = sum(1 << i for i, n in enumerate(FFN_NBLK) if n == 5)
            s(f"s_lshr_b32 {sC}, {five}, {sJ}\ns_and_b32 {sC}, {sC}, 1\ns_lshl_b32 {sC}, {sC}, 6\nv_and_b32 {v(vSD+1)}, {sC}, {v(vT1)}\nv_lshl_add_u32 {v(vSD)}, {v(vSD+1)}, 20, {v(vSD)}")
        for q in range(1, 2 if o["srot"] else 4): s(f"v_add_u32 {v(vSD+q)}, {q*(8*strS-1024)}, {v(vSD)}")
        s(f"v_lshl_add_u32 {v(vWD+3)}, {v(vT0)}, 10, {v(vT1)}")
        if kP:
            s(f"v_lshl_add_u32 {v(vT3)}, {v(vT2)}, 9, {v(vN16)}\nv_lshlrev_b32 {v(vT2)}, 5, {v(vT2)}\nv_add_u32 {v(vT2)}, 0x400, {v(vT2)}")
            s(f"v_cmp_gt_u32 vcc, 0x100, {v(vN16)}\nv_add_u32 {v(vT0)}, 16, {v(vT2)}\nv_add_u32 {v(vT1)}, 0x100, {v(vT3)}")
            s(f"v_cndmask_b32 {v(vKA)}, {v(vT2)}, {v(vT3)}, vcc\nv_cndmask_b32 {v(vKA+1)}, {v(vT0)}, {v(vT1)}, vcc")
        s(f"v_lshrrev_b32 {v(x0)}, 1, {v(yR)}\nv_lshl_add_u32 {v(x0)}, {v(x0)}, 6, {v(yF)}\nv_lshl_add_u32 {v(x0)}, {v(yP)}, 5, {v(x0)}\nv_lshl_add_u32 {v(x0)}, {v(yH)}, 7, {v(x0)}")
        s(f"v_lshrrev_b32 {v(vWR)}, 4, v0\nv_lshl_add_u32 {v(vWR)}, {v(vWR)}, 3, {v(yR)}\nv_and_b32 {v(x1)}, 2, {v(yR)}\nv_or_b32 {v(x1)}, {v(x1)}, {v(yP)}")
        s(f"v_lshl_add_u32 {v(vWR)}, {v(vWR)}, 2, {v(x1)}\nv_and_b32 {v(x1)}, 3, v0\nv_lshl_add_u32 {v(vWR)}, {v(vWR)}, 2, {v(x1)}\nv_lshlrev_b32 {v(vWR)}, 3, {v(vWR)}")
        if qS: s(f"s_lshl_b32 {sA}, {sWV}, 5")
        else: s(f"s_and_b32 {sA}, {sWV}, 2\ns_lshl_b32 {sA}, {sA}, 5")
        s(f"v_xor_b32 {v(x0)}, {sA}, {v(x0)}\nv_add_u32 {v(vSR)}, {R[4]}, {v(x0)}")
        if kP:
            if o["kz"] == 0:
                for i in range(4): s(f"v_mov_b32 {v(ONES+i)}, 0x3f803f80")
            elif o["kz"] == 1:
                for i in range(8): s(f"v_mov_b32 {v(F8b+i)}, 0x3f803f80")
            else:
                s(f"v_lshrrev_b32 {v(ONES)}, 4, v0\nv_cmp_eq_u32 vcc, 1, {v(ONES)}\nv_mov_b32 {v(ONES)}, 0\nv_mov_b32 {v(ONES+3)}, 0")
                s(f"v_cndmask_b32 {v(ONES+1)}, 0, 1.0, vcc\nv_lshrrev_b32 {v(ONES+2)}, 16, {v(ONES+1)}")
        s(f"v_and_b32 {v(vFA)}, {15 if qS else 7}, v0\nv_lshlrev_b32 {v(vFA)}, 3, {v(vFA)}")
        if True:
            s(f"v_bfe_u32 {v(vT0)}, v0, 2, 1\nv_lshrrev_b32 {v(vT2)}, 5, v0\nv_cmp_eq_u32 vcc, {v(vT0)}, {v(vT2)}")
            s(f"v_and_b32 {v(vT0)}, 16, {v(vL16)}\nv_mov_b32 {v(vT2)}, 0x3f80\nv_lshlrev_b32 {v(vT2)}, {v(vT0)}, {v(vT2)}\nv_cndmask_b32 {v(vT2)}, 0, {v(vT2)}, vcc")
            s(f"v_bfe_u32 {v(vT0)}, v0, 1, 1\nv_bfe_u32 {v(vT3)}, v0, 3, 2\nv_lshl_add_u32 {v(vT0)}, {v(vT3)}, 1, {v(vT0)}")
            for i in range(0, 4 * len(SEL), 2):
                s(f"v_cmp_eq_u32 vcc, {i}, {v(vT0)}\nv_cmp_eq_u32 s[70:71], {i+1}, {v(vT0)}")
                s(f"s_nop 0\nv_cndmask_b32 {v(SEL[i>>2]+(i&3))}, 0, {v(vT2)}, vcc\nv_cndmask_b32 {v(SEL[i>>2]+(i&3)+1)}, 0, {v(vT2)}, s[70:71]")
            if qS: s(f"s_lshl_b32 {sFK}, {sHD}, 7\ns_add_u32 {sFK}, {sFK}, {WS_FL1}")
        def visit(pos):
            if o["pad"] != pos: return
            x = "s_mov_b64 exec, 0\n"
            for k in range(3): x += f"s_cmp_eq_u32 {sWV}, {k}\ns_cbranch_scc1 L_pad_{role}_{k}\n"
            s(x + f"s_branch L_pad_{role}_3\nL_ret_{role}:\ns_mov_b64 exec, -1", glue=True)
        if o["sW"] == 2: swarm(0)
        visit(1)
        s.mark("su")
        s.waittok("rows", ahead=o["ah0"]); self.stamp(s, "rows")
        q = ST
        s(f"v_mov_b32 {v(vT1)}, 0x3f803f80")
        for i in range(4): s(f"v_mov_b32 {v(q+i)}, 0")
        for i in range(4):
            for r in range(2):
                s(f"v_dot2c_f32_bf16 {v(q+r)}, {v(tmp+4*r+i)}, {v(vT1)}\nv_dot2c_f32_bf16 {v(q+2+r)}, {v(tmp+4*r+i)}, {v(tmp+4*r+i)}")
        if o["stag"]: s(f"s_mov_b32 {sA}, {sBA}\nv_lshrrev_b32 {v(vT0)}, 1, v0")
        else:
            s.waittok("tag")
            s(f"v_readfirstlane_b32 {sA}, {v(vTAG)}\nv_lshrrev_b32 {v(vT0)}, 1, v0")
        s(f"v_permlane32_swap_b32 {v(q)}, {v(q+1)}\nv_permlane32_swap_b32 {v(q+2)}, {v(q+3)}")
        s(f"v_add_f32 {v(q)}, {v(q)}, {v(q+1)}\nv_add_f32 {v(q+2)}, {v(q+2)}, {v(q+3)}\ns_add_u32 {sA}, {sA}, 0x{TAGC:x}")
        s(f"v_mov_b32 {v(vTAG)}, {sA}\nv_permlane16_swap_b32 {v(q)}, {v(q+2)}\nv_add_f32 {v(q)}, {v(q)}, {v(q+2)}")
        s(f"v_mov_b32 {v(vTAG+1)}, {sA}\nv_mov_b32 {v(q+1)}, {sA}")
        for m in ("quad_perm:[1,0,3,2]", "quad_perm:[2,3,0,1]", "row_half_mirror", "row_mirror"):
            s(f"v_add_f32_dpp {v(q)}, {v(q)}, {v(q)} {m} {DPPM}")
        if o["sv"]:
            s(f"v_mul_f32 {v(q)}, {f2u(1/512)}, {v(q)}\nv_mov_b32 {v(q+2)}, {v(q)}\nv_mov_b32 {v(q+3)}, {v(q)}\nv_and_b32 {v(vT1)}, 16, v0")
            s(f"v_permlane16_swap_b32 {v(q+2)}, {v(q+3)}\nv_cmp_ne_u32 vcc, 0, {v(vT1)}")
            s(f"v_fma_f32 {v(q+3)}, -{v(q+2)}, {v(q+2)}, {v(q+3)}\nv_max_f32 {v(q+3)}, 0, {v(q+3)}\nv_add_f32 {v(q+3)}, {f2u(1e-5)}, {v(q+3)}\nv_sqrt_f32 {v(q+3)}, {v(q+3)}")
            s(f"v_cndmask_b32 {v(q+2)}, -{v(q+2)}, {v(q+3)}, vcc\nv_cvt_pk_bf16_f32 {v(q)}, {v(q+2)}, {v(q+2)}\nv_lshlrev_b32 {v(q+3)}, 16, {v(q)}")
            s(f"v_sub_f32 {v(q+2)}, {v(q+2)}, {v(q+3)}\nv_cvt_pk_bf16_f32 {v(q)}, {v(q+3)}, {v(q+2)}")
        s(f"s_mov_b32 exec_lo, 0x00010001\ns_mov_b32 exec_hi, 0x00010001\nbuffer_store_dwordx2 {v(q,2)}, {v(vT0)}, {sWS}, {sFL} offen sc1\ns_mov_b64 exec, -1", glue=True)
        self.stamp(s, "st"); swarm(1); visit(2); swarm(2)
        s(f"s_lshr_b32 {sFL}, {sTT}, 1\ns_lshl4_add_u32 {sFL}, {sFL}, {sWV}\ns_lshl_b32 {sFL}, {sFL}, 6\ns_add_u32 {sFL}, {sFL}, {WS_FL2}")
        s(f"s_lshl_b32 {sC}, {sWV}, 3")
        for d, tb in ((sBA, FFN_BLK0[0::2]), (sBB, FFN_BLK0[1::2]), (sBS[0], [x[0] for x in SBL]), (sBS[1], [x[1] for x in SBL]), (sBS[2], [x[2] for x in SBL])):
            s(f"s_lshr_b32 {d}, {pack(tb)}, {sC}\ns_and_b32 {d}, {d}, 0xff\ns_lshl_b32 {d}, {d}, 11")
        KR = vJ
        s(f"s_and_b32 {sA}, s98, 0x8000\ns_xor_b32 {sB}, {sA}, 0x8000")
        for i in range(4): s(f"v_add_u32 {v(KR+i)}, {sA}, {v(vXR+i)}\nv_add_u32 {v(vXR+i)}, {sB}, {v(vXR+i)}")
        assert all(b.tok != "b2" for b in tl.bg[tl.bi:]) or True
        visit(3)
        PH = Stream() if o["phl"] else s
        s.mark("auxi")
        s(f"v_lshrrev_b32 {v(vT0)}, 3, v0\nv_lshl_add_u32 {v(vOUT)}, {v(vT0)}, 10, {v(vOUT)}")
        if not qS:
            six = sum(1 << i for i, n in enumerate(FFN_NBLK) if n == 6)
            s(f"s_lshr_b32 {sC}, {six}, {sJ}\ns_lshr_b32 {sA}, {sWV}, 1\ns_andn2_b32 {sC}, {sA}, {sC}\ns_and_b32 {sC}, {sC}, 1\ns_lshl_b32 {sC}, {sC}, 18\ns_or_b32 {sBLKS}, {sBLKS}, {sC}")
        if True:
            s(f"v_and_b32 {v(vT2)}, 4, v0\nv_cmp_ne_u32 vcc, 0, {v(vT2)}\nv_mov_b32 {v(vT3)}, 0x80008000\ns_nop 0\nv_cndmask_b32 {v(vT3)}, 0, {v(vT3)}, vcc")
            PH.waittok("b2", lat=0)
            for hs in range(len(PHI)):
                for e in range(2): PH(f"ds_read_b64_tr_b16 {v(PHI[hs]+2*e,2)}, {v(TA+hs)} offset:{e*128}", tok="phr")
            PH.waittok("phr"); PH.mark("phi")
            for i in range(4 * len(PHI)): PH(f"v_xor_b32 {v(PHI[i>>2]+(i&3))}, {v(vT3)}, {v(PHI[i>>2]+(i&3))}")
        def xread(st, un, region, ks):
            st(f"ds_read_b128 {v(XF+4*(ks%NX),4)}, {v(vXR+(ks&3))} offset:{region+(ks>>2)*4096}", tok=("xf", un, ks))
        def stat_consts0(st, i):
            m, va = ST + 4 * i, ST + 4 * i + 2; k = KC[i]
            st(f"v_mul_f32 {v(m)}, {f2u(1/512)}, {v(m)}\nv_mul_f32 {v(va)}, {f2u(1/512)}, {v(va)}\nv_fma_f32 {v(va)}, -{v(m)}, {v(m)}, {v(va)}\nv_max_f32 {v(va)}, 0, {v(va)}")
            st(f"v_add_f32 {v(va)}, {f2u(1e-5)}, {v(va)}\nv_sqrt_f32 {v(va)}, {v(va)}\nv_mov_b32 {v(m+3)}, 0")
            st(f"v_cvt_pk_bf16_f32 {v(m+1)}, -{v(m)}, {v(va)}\nv_rcp_f32 {v(k)}, {v(va)}")
            st(f"v_lshlrev_b32 {v(vT0)}, 16, {v(m+1)}\nv_and_b32 {v(vT1)}, 0xffff0000, {v(m+1)}")
            st(f"v_sub_f32 {v(m)}, -{v(m)}, {v(vT0)}\nv_sub_f32 {v(vT1)}, {v(va)}, {v(vT1)}")
            if kP: st(f"v_mul_f32 {v(k+1)}, {f2u(LOG2E)}, {v(k)}\nv_mov_b32 {v(k+2)}, {v(va)}")
            else:
                st(f"v_mov_b32 {v(k+2)}, {v(va)}\nv_mul_f32 {v(k+1)}, {v(k)}, {v(k)}\nv_mul_f32 {v(k)}, {f2u(K0)}, {v(k)}")
                st(f"v_mul_f32 {v(k+1)}, {v(k+1)}, {v(k)}\nv_mul_f32 {v(k+1)}, {f2u(0.044715)}, {v(k+1)}")
            st(f"v_cvt_pk_bf16_f32 {v(m)}, {v(vT0)}, {v(m)}\nv_cvt_pk_bf16_f32 {v(m+2)}, {v(va)}, {v(vT1)}\nv_mov_b32 {v(m+1)}, {v(m)}")
        def stat_consts(st, i):
            if not o["sv"]: return stat_consts0(st, i)
            m = ST + 4 * i; k = KC[i]
            st(f"v_lshlrev_b32 {v(k)}, 16, {v(m+2)}\nv_and_b32 {v(k+2)}, 0xffff0000, {v(m+2)}\nv_add_f32 {v(k+2)}, {v(k+2)}, {v(k)}")
            st(f"v_rcp_f32 {v(k)}, {v(k+2)}\nv_mov_b32 {v(m+1)}, {v(m)}\nv_mov_b32 {v(m+3)}, 0")
            if kP: st(f"v_mul_f32 {v(k+1)}, {f2u(LOG2E)}, {v(k)}")
            else:
                st(f"v_mul_f32 {v(k+1)}, {v(k)}, {v(k)}\nv_mul_f32 {v(k)}, {f2u(K0)}, {v(k)}")
                st(f"v_mul_f32 {v(k+1)}, {v(k+1)}, {v(k)}\nv_mul_f32 {v(k+1)}, {f2u(0.044715)}, {v(k+1)}")
        def corr_pre(st, which):
            c = CA[which]
            st(f"v_mov_b32 {v(c+3)}, 0")
            if which == kP: st(f"v_lshl_or_b32 {v(c+2)}, {v(vB1)}, 16, {v(vB1)}")
            else: st(f"v_mov_b32 {v(c+2)}, 0")
        def corr_a(st, which):
            c = CA[which]
            st(f"v_cvt_pk_bf16_f32 {v(c)}, {v(CS)}, {v(CS)}\nv_lshlrev_b32 {v(vT1)}, 16, {v(c)}\nv_sub_f32 {v(vT0)}, {v(CS)}, {v(vT1)}")
            st(f"v_cvt_pk_bf16_f32 {v(c+1)}, {v(vT0)}, {v(vT0)}")
        def spin(st, test, reload_, name):
            en, lp, ok = self.lab("retry"), self.lab("poll"), self.lab("ok")
            st(test + f"\ns_cbranch_vccnz {en}\n{ok}:", glue=True); st[-1].op = "OKLABEL"
            st.mark(name); self.stamp(st, name)
            x = Stream()
            x(f"{en}:\ns_mov_b32 {sC}, 0\n{lp}:"); x(reload_)
            x(f"s_add_u32 {sC}, {sC}, 1\ns_cmp_gt_u32 {sC}, 2000000\ns_cbranch_scc1 {ok}\ns_waitcnt vmcnt(0)")
            x(test + f"\ns_nop 4\ns_cbranch_vccnz {lp}\ns_branch {ok}")
            self.side[role] += finalize(x)
        corr_pre(PH, 0); corr_pre(PH, 1)
        tl.straight(s)
        ia = [x for x in tl.log if x.startswith("mark auxi")][0]
        assert int(ia.split("bg=")[1]) > tl.lastbg("b2"), "small loads must be issued before their address registers change"
        s = Stream()
        if o["phl"]: s.need("b0"); s.extend(PH)
        n0 = len(tl.bg)
        dma_x(2, "b5", o["spx"])
        x2pre = Stream(); x2pre(f"s_lshl1_add_u32 {sM}, {sWV}, {sROT}\ns_lshl_b32 {sM}, {sM}, 7\ns_and_b32 {sXK[0]}, {sM}, 0x380\ns_add_u32 {sM}, {sM}, 128\ns_and_b32 {sXK[1]}, {sM}, 0x380")
        tl.bg[n0].ins = Stream(x2pre + tl.bg[n0].ins)
        for i in range(2, 4): B(stats_ld(i, sM), "stats", None, sp=32)
        if not o["xord"]: dma_x(3, "b7", o["spx3"])
        lag = o["lag"]
        Mp = []
        def mfa(kp): return f"{MF} {v(ACC[0],16)}, {ag(4*kp,4)}, {ag(128+4*kp,4)}, {v(ACC[0],16) if kp else 0}"
        def mfb(kp): return f"{MF} {v(ACC[1],16)}, {ag(4*kp,4)}, {v(XF+4*(kp%NX),4)}, {v(ACC[1],16) if kp else 0}"
        def mf16(kp): return f"{MF16} {v(CS,4)}, {v(CSEL,4)}, {ag(4*kp,4)}, {v(CS,4) if kp else 0}"
        def pread(g, ks):
            ci, kk = ks >> 2, ks & 3; hi = PSL[ci] >= R[4]
            for e in range(2):
                g(f"ds_read_b64_tr_b16 {ag(4*ks+2*e,2)}, {v(vPR+hi)} offset:{PSL[ci]-R[4 if hi else 2]+kk*4096+e*1024}", tok=("pf", ks))
        def grp(f):
            g = Stream(); f(g); Mp.append(g)
        bsteps = [ks for ks in range(32) if ks >= o["blag"] and (ks >= o["bhalf"] or ks & 1)]
        for ks in range(32):
            ci, kk = ks >> 2, ks & 3; kp = ks - lag
            g = Stream()
            if kk == 0:
                if ci == 0: g.waittok(("xp", 0), ("p", 0), ahead=o["ah0b"], lat=o["plat0"]); self.stamp(g, "x0")
                else: g.waittok(("p", ci), ahead=o["ahead"], lat=o["plat"])
                g("s_barrier"); g.mark("b%d" % ci); self.stamp(g, "b%d" % ci)
            if kp >= 0: g.waittok(("xf", 0, bsteps.index(kp)) if kp in bsteps else ("ka", kp), lat=0); g(mfa(kp))
            pread(g, ks)
            if kp in bsteps: Mp.append(g); g = Stream(); g(mfb(bsteps.index(kp)))
            g(f"ds_read_b128 {ag(128+4*ks,4)}, {v(KR+(ks&3))} offset:{(ks>>2)*4096}", tok=("ka", ks))
            if ks in bsteps: xread(g, 0, 0, bsteps.index(ks))
            if ks == 31: g.mark("prd")
            Mp.append(g)
            if kp >= 0: grp(lambda g: g(mf16(kp)))
        x = s
        x.waittok("stat0")
        def tagtest(b):
            return (f"v_xor_b32 {v(vT0)}, {v(vTAG)}, {v(b+1)}\nv_xor_b32 {v(vT1)}, {v(vTAG)}, {v(b+3)}\nv_xor_b32 {v(vFL)}, {v(vTAG)}, {v(b+5)}\nv_xor_b32 {v(vFL+1)}, {v(vTAG)}, {v(b+7)}\n"
                    f"v_or3_b32 {v(vT0)}, {v(vT0)}, {v(vFL)}, {v(vFL+1)}\nv_cmp_ne_u64 vcc, 0, {v(vT0,2)}")
        def swapab(st, k):
            st(f"s_cmp_lg_u32 s98, 0\ns_cselect_b32 {sB}, {sAB[k+1]}, {sAB[k]}\ns_cselect_b32 {sAB[k+1]}, {sAB[k]}, {sAB[k+1]}\ns_mov_b32 {sAB[k]}, {sB}", glue=True)
        spin(x, tagtest(ST), stats_ld(0, sA) + "\n" + stats_ld(1, sA), "st0")
        stat_consts(x, 0); stat_consts(x, 1); swapab(x, 0)
        if kP and o["kz"] == 1: x("s_mov_b32 s32, 0xffff\ns_mov_b32 s33, 0xffff")
        x.need("prd")
        x(f"v_mov_b32 {v(vWD)}, {v(vWD+3)}")
        for q in range(1, 4): x(f"v_add_u32 {v(vWD+q)}, {7168*q}, {v(vWD)}")
        for q in (1, 3): x(f"v_xor_b32 {v(vWD+q)}, 32, {v(vWD+q)}")
        x(f"s_lshl_b32 {sPCOL}, {sTT}, 16\ns_add_u32 {sPCOL}, {sPCOL}, {sW16K}\ns_add_u32 {sPCOL}, {sPCOL}, {sCB}")
        x(f"s_and_b32 {sE1}, s98, 0x8000\ns_add_u32 {sE0}, {sE1}, 0x8000")
        x.need("cs0"); corr_a(x, 0); x.mark("ca0")
        nr = len(bsteps); b0 = nr - lag
        for n, kp in enumerate(range(32 - lag, 32)):
            grp(lambda g: (g.waittok(("xf", 0, nr - 1), lat=0) if n == 0 else None, g(mf16(kp)), g.mark("cs0") if kp == 31 else None))
        rd = [nr]
        def bread(g, n, upto):
            while n and rd[0] < 32 and rd[0] < upto + NX: xread(g, 0, 0, rd[0]); rd[0] += 1; n -= 1
        for kp in range(32 - lag, 32): grp(lambda g: (g(mfa(kp)), bread(g, 2, b0)))
        grp(lambda g: (g(mfb(b0)), bread(g, 2, b0)))
        grp(lambda g: (g.need("ca0"), g(f"{MF} {v(ACC[0],16)}, {v(CA[0],4)}, {v(ST,4)}, {v(ACC[0],16)}"), self.stamp(g, "p1")))
        Mb = []
        for kp in range(b0 + 1, 32):
            g = Stream()
            if kp >= nr and (kp - nr) % 2 == 0: g.waittok(("xf", 0, min(31, kp + 1)))
            g(mfb(kp)); bread(g, 1, kp); Mb.append(g)
        g = Stream(); g(f"{MF} {v(ACC[1],16)}, {v(CA[0],4)}, {v(ST+4,4)}, {v(ACC[1],16)}"); g.mark("m1"); Mb.append(g)
        tl.sched(Mp, [x])
        if o.get("stop"):
            out = Stream()
            for i in tl.out:
                if "m" in o["stop"] and i.kind == "mfma": continue
                if "s" in o["stop"] and (i.kind == "vst" or i.cond or i.op.startswith("s_cbranch_vcc")): continue
                if "b" in o["stop"] and i.kind == "barrier": continue
                if "d" in o["stop"] and (i.kind == "dsr" or (i.kind == "waittok" and (i.tok[0] == "phr" or i.tok[0][0] == "xf"))): continue
                out.append(i)
            s = out
            s("s_waitcnt vmcnt(0)\ns_memrealtime s[64:65]\ns_waitcnt lgkmcnt(0)")
            s(f"s_lshl2_add_u32 {sA}, s2, {sWV}\ns_lshl_b32 {sA}, {sA}, 6\ns_add_u32 {sA}, {sA}, {WS_STAMP}")
            for i, r in enumerate(["s100"] + ["s%d" % k for k in STAMPR] + ["s64"]):
                s(f"v_mov_b32 {v(vT1)}, {r}\nbuffer_store_dword {v(vT1)}, {v(vZ)}, {sWS}, {sA} offen offset:{4*i}")
            return s

        def gelu(e, acc, k, sbase, sblk, tok, pk=False):
            e(f"s_lshl_b32 {sB}, {sblk}, 11\ns_add_u32 {sB}, {sB}, {sbase}")
            for q in range(4):
                A = [v(acc + 4 * q + i) for i in range(4)]; T = [v(G4 + i) for i in range(4)]
                if pk:
                    assert k % 2 == 0
                    A2 = [v(acc + 4 * q + i, 2) for i in (0, 2)]; T2 = [v(G4 + i, 2) for i in (0, 2)]
                    for i in range(2): e(f"v_pk_mul_f32 {T2[i]}, {A2[i]}, {A2[i]}")
                    for i in range(2): e(f"v_pk_fma_f32 {T2[i]}, {T2[i]}, {v(k,2)}, {v(k,2)} op_sel:[0,1,0] op_sel_hi:[1,1,0]")
                    for i in range(2): e(f"v_pk_mul_f32 {T2[i]}, {A2[i]}, {T2[i]}")
                    for i in range(4): e(f"v_exp_f32 {T[i]}, {T[i]}")
                    for i in range(2): e(f"v_pk_fma_f32 {T2[i]}, {T2[i]}, {v(k+2,2)}, {v(k+2,2)} op_sel_hi:[1,0,0]")
                    for i in range(4): e(f"v_rcp_f32 {T[i]}, {T[i]}")
                    for i in range(2): e(f"v_pk_mul_f32 {T2[i]}, {A2[i]}, {T2[i]}")
                    for i in range(2): e(f"v_cvt_pk_bf16_f32 {v(HO+2*q+i)}, {T[2*i]}, {T[2*i+1]}")
                    if q & 1: e(f"buffer_store_dwordx4 {v(HO+4*(q>>1),4)}, {v(vL16)}, {sWS}, {sB} offen offset:{1024*(q>>1)} sc1", tok=tok)
                    continue
                for i in range(4): e(f"v_mul_f32 {T[i]}, {A[i]}, {A[i]}")
                for i in range(4): e(f"v_fma_f32 {T[i]}, {T[i]}, {v(k+1)}, {v(k)}")
                for i in range(4): e(f"v_mul_f32 {T[i]}, {A[i]}, {T[i]}")
                for i in range(4): e(f"v_exp_f32 {T[i]}, {T[i]}")
                for i in range(4): e(f"v_fma_f32 {T[i]}, {T[i]}, {v(k+2)}, {v(k+2)}")
                for i in range(4): e(f"v_rcp_f32 {T[i]}, {T[i]}")
                for i in range(4): e(f"v_mul_f32 {T[i]}, {A[i]}, {T[i]}")
                for i in range(2): e(f"v_cvt_pk_bf16_f32 {v(HO+2*q+i)}, {T[2*i]}, {T[2*i+1]}")
                if q & 1: e(f"buffer_store_dwordx4 {v(HO+4*(q>>1),4)}, {v(vL16)}, {sWS}, {sB} offen offset:{1024*(q>>1)} sc1", tok=tok)
        def sm_head(e, src, phi, T_, f4):
            for i in range(4): e(f"v_cvt_pk_bf16_f32 {v(f4+i)}, {v(src+2*i)}, {v(src+2*i+1)}")
            e(f"{MF} {v(T_,16)}, {v(phi,4)}, {v(f4,4)}, 0")
        def sm_body(e, T_, k, dst, scale=False, pk=False):
            t2, t3 = v(vT2), v(vT3); T = lambda i: v(T_ + i)
            e(f"v_max3_f32 {t2}, {T(0)}, {T(1)}, {T(2)}\nv_max3_f32 {t3}, {T(3)}, {T(4)}, {T(5)}")
            for i in range(2): e(f"v_max3_f32 {t2}, {t2}, {T(6+4*i)}, {T(7+4*i)}\nv_max3_f32 {t3}, {t3}, {T(8+4*i)}, {T(9+4*i)}")
            e(f"v_max3_f32 {t2}, {t2}, {T(14)}, {T(15)}\nv_max_f32 {t2}, {t2}, {t3}\nv_mul_f32 {t2}, {t2}, {v(k+1)}")
            P = lambda i: v(T_ + i, 2); tt = v(vT2, 2)
            if pk:
                assert k % 2 == 0 and vT2 % 2 == 0
                for i in range(0, 16, 2): e(f"v_pk_fma_f32 {P(i)}, {P(i)}, {v(k,2)}, {tt} op_sel:[0,1,0] op_sel_hi:[1,1,0] neg_lo:[0,0,1] neg_hi:[0,0,1]")
            else:
                for i in range(16): e(f"v_fma_f32 {T(i)}, {T(i)}, {v(k+1)}, -{t2}")
            for i in range(16): e(f"v_exp_f32 {T(i)}, {T(i)}")
            if pk:
                e(f"v_pk_add_f32 {tt}, {P(0)}, {P(2)}")
                for i in range(4, 16, 2): e(f"v_pk_add_f32 {tt}, {tt}, {P(i)}")
            else:
                e(f"v_add_f32 {t2}, {T(0)}, {T(1)}\nv_add_f32 {t3}, {T(2)}, {T(3)}")
                for i in range(4, 16, 2): e(f"v_add_f32 {t2}, {t2}, {T(i)}\nv_add_f32 {t3}, {t3}, {T(i+1)}")
            e(f"v_add_f32 {t2}, {t2}, {t3}\nv_rcp_f32 {t2}, {t2}")
            if scale: e(f"v_mul_f32 {t2}, {t2}, {v(k)}")
            if pk:
                for i in range(0, 16, 2): e(f"v_pk_mul_f32 {P(i)}, {P(i)}, {tt} op_sel_hi:[1,0]")
            else:
                for i in range(16): e(f"v_mul_f32 {T(i)}, {T(i)}, {t2}")
            for i in range(8): e(f"v_cvt_pk_bf16_f32 {v(dst+i)}, {T(2*i)}, {T(2*i+1)}")
        def kepi(e, un):
            acc, k = ACC[un & 1], KC[un]
            kz = o["kz"]; FV = ONES if kz == 1 else F8b
            if kz == 0: e(f"{MF} {v(TB,16)}, {v(ONES,4)}, {v(SEL[1],4)}, 0")
            if kz == 2:
                if un: e.need("c%d" % un)
                e(f"{MF} {v(TB,16)}, {v(ST+4*un,4)}, {v(ONES,4)}, 0")
            e.need("m%d" % un)
            sm_head(e, acc, PHI[0], TA, F4)
            if kz != 2:
                for i in range(8): e(f"v_mul_f32 {v(acc+8+i)}, {v(acc+8+i)}, {v(k)}")
            for i in range(4): e(f"v_cvt_pk_bf16_f32 {v(FV+i)}, {v(acc+8+2*i)}, {v(acc+9+2*i)}")
            e.mark("e%d" % un)
            b = Stream(); sm_body(b, TA, k, F8a, kz == 2)
            vt = f"{MF} {v(TB,16)}, {v(FV,4)}, {v(SEL[0],4)}, {0 if kz == 1 else v(TB,16)}"
            if kz == 2: e(vt); e.extend(b)
            else: e.extend(b[:2]); e(vt); e.extend(b[2:])
            def cv(r):
                x = "\n".join(f"v_cvt_pk_bf16_f32 {v(F8b+i)}, {v(TB+2*i)}, {v(TB+2*i+1)}" for i in r)
                if kz == 1: e(f"s_mov_b64 exec, s[32:33]\n{x}\ns_mov_b64 exec, -1", glue=True)
                else: e(x)
            cv(range(4 if kz == 1 else 2))
            e(f"{MF} {v(TA,16)}, {v(F8a,4)}, {v(SEL[0],4)}, 0")
            cv(range(4 if kz == 1 else 2, 8))
            e(f"{MF} {v(TA,16)}, {v(F8a+4,4)}, {v(SEL[1],4)}, {v(TA,16)}")
            for i in range(8): e(f"v_cvt_pk_bf16_f32 {v(F8a+i)}, {v(TA+2*i)}, {v(TA+2*i+1)}")
            e(f"{MF} {v(KV,16)}, {v(F8a,4)}, {v(F8b,4)}, {v(KV,16) if un else 0}\n{MF} {v(KV,16)}, {v(F8a+4,4)}, {v(F8b+4,4)}, {v(KV,16)}")
        def kvpub(e):
            e(f"s_mul_i32 {sB}, {sT}, 960\ns_sub_u32 {sB}, 15360, {sB}\nv_lshrrev_b32 {v(vT3)}, 8, {v(vN16)}")
            e(f"v_mad_u32_u24 {v(vT2)}, {v(vT3)}, {sB}, {v(vKA)}\nv_mad_u32_u24 {v(vT3)}, {v(vT3)}, {sB}, {v(vKA+1)}")
            e(f"s_mul_i32 {sB}, {sHK}, 17\ns_add_u32 {sB}, {sB}, {sT}\ns_lshl_b32 {sB}, {sB}, 10\ns_add_u32 {sB}, {sB}, {WS_KVP}")
            for c in range(2):
                for i in range(4): e(f"v_cvt_pk_bf16_f32 {v(F8a+4*c+i)}, {v(KV+8*c+2*i)}, {v(KV+8*c+2*i+1)}")
                e(f"buffer_store_dwordx4 {v(F8a+4*c,4)}, {v(vT2+c)}, {sWS}, {sB} offen sc1", tok="kvp")
        def qepi(e, acc, k, dst):
            for i in range(4): e(f"v_cvt_pk_bf16_f32 {v(F4+i)}, {v(acc+2*i)}, {v(acc+2*i+1)}")
            for i in range(4): e(f"v_cvt_pk_bf16_f32 {v(F8b+i)}, {v(acc+8+2*i)}, {v(acc+9+2*i)}")
            e(f"{MF} {v(acc,16)}, {v(PHI[1],4)}, {v(F8b,4)}, 0\n{MF} {v(TA,16)}, {v(PHI[0],4)}, {v(F4,4)}, 0")
            sm_body(e, acc, k, dst + 8, pk=o["pk"] and dst != PF); e.mark(("sib", dst))
            if not ("e" in abl and dst != PF): sm_body(e, TA, k, dst)
        def flag(st, addr, tok, lat=None):
            st(addr)
            st.waittok(tok, lat=lat or o["stlat"])
            st(f"s_mov_b64 exec, 1\nbuffer_store_dwordx2 {v(vTAG,2)}, {v(vZ)}, {sWS}, {sD} offen sc1\ns_mov_b64 exec, -1", glue=True)
        a_fl1 = f"s_lshl4_add_u32 {sD}, {sHK}, {sT}\ns_lshl_b32 {sD}, {sD}, 3\ns_add_u32 {sD}, {sD}, {WS_FL1}"
        def a_fl2(kind): return (f"s_mov_b32 {sD}, {sHD}\n" if kind == 2 else f"s_lshl2_add_u32 {sD}, {sJ}, {sWV}\n") + f"s_lshl_b32 {sC}, {sT}, 10\ns_lshl3_add_u32 {sD}, {sD}, {sC}\ns_add_u32 {sD}, {sD}, {WS_FL2+256*kind}"
        def fl_txt(sreg, off): return f"buffer_load_dwordx2 {v(vFL,2)}, {v(vFA)}, {sWS}, {sreg} offen offset:{off} sc1"
        skipf = lambda tok: qS and tok[1] in str(o.get("skipf", ""))
        def fl_bg(sreg, off, tok, after):
            if not skipf(tok): B(fl_txt(sreg, off), tok, after, sp=16)
        def fl_check(st, sreg, off, tok):
            if skipf(tok): st.mark(tok); return
            st.waittok(tok)
            spin(st, f"v_cmp_ne_u64 vcc, {v(vFL,2)}, {v(vTAG,2)}", fl_txt(sreg, off), tok)

        SLOT = {"a0": (sW8K, R[0]), "a1": (sW8K, R[0] + 4096), "b0": (sW8K, R[1]), "b1": (sW8K, R[1] + 4096),
                "c0": (sW8K, R[4]), "c1": (sW8K, R[4] + 4096), "d0": (sW16K, R[2])}
        LORD = list(range(8)) + [11, 12, 13, 14, 8, 9, 10]
        WSLOT = dict(zip(LORD, ["b0", "b1", "c0", "c1", "a0", "a1"] * 2 + ["b0", "b1", "d0"]))
        nE = 8
        def blk(b):
            if b < 4: return sBA, b
            if b < 8: return sBB, b - 4
            if b < 11: return sBS[b - 8], 0
            return None, b - 11
        sRW = sXK[0]
        def dma_w(b, after):
            sb, off = SLOT[WSLOT[b]]; r, i = blk(b)
            pre = f"s_add_u32 m0, {sb}, {off}\n"
            if o["wrot"] and b < 8:
                pre += f"s_lshl_b32 {sRW}, {sTT}, 11\n" if b == 0 else f"s_add_u32 {sRW}, {sRW}, 0x800\n"
                pre += f"s_and_b32 {sRW}, {sRW}, 0x1800\ns_add_u32 {sN}, {r}, {sRW}\ns_lshl4_add_u32 {sN}, {sN}, {sCB}"
            elif i: pre += f"s_add_u32 {sN}, {sN}, 0x8000"
            elif r: pre += f"s_lshl4_add_u32 {sN}, {r}, {sCB}"
            else: pre += f"s_lshl3_add_u32 {sN}, {sW16K}, {sCB}"
            run4(pre, vWD, sW2 if r else sWo, ("w", b), after, o["spw0"] if b < 4 else o["spw1"] if b < 6 else None, sN)
            if "f" in abl and LORD.index(b) >= 10: del tl.bg[-3:]
        def wfrags(st, dst, base, off, tok):
            for cb in range(4):
                for e in range(2): st(f"ds_read_b64_tr_b16 {dst(4*cb+2*e)}, {v(base+cb)} offset:{off+e*512}", tok=tok)
        def wbump(st, base, d):
            for i in range(4): st(f"v_add_u32 {v(base+i)}, {d}, {v(base+i)}")
        def wread(st, b):
            sl = WSLOT[b]; off = SLOT[sl][1] - {"c": R[4], "d": R[2]}.get(sl[0], 0)
            if b == 2: wbump(st, vWQ, R[4])
            if b == 4: wbump(st, vWQ, -R[4])
            if b == 10: st(f"s_add_u32 {sE1}, {sW8K}, {R[2]}"); wbump(st, vWQ, sE1)
            st.waittok(("w", b), lat=o["wlat"])
            wfrags(st, lambda k: ag(128 + 16 * (b % 8) + k, 2), vWQ, off, ("wr", b))

        D = NX - 1
        M = list(Mb)
        RG = {1: R[1], 2: 0, 3: R[1], 4: 0, 5: 0}
        def bump(st, d):
            for i in range(4): st(f"v_add_u32 {v(vXR+i)}, {d}, {v(vXR+i)}")
        def opening(g, un):
            if un == 3:
                if o["ssplit"] >= 2: g.waittok(("x", 3))
                elif o["ssplit"]: g.waittok(("x", 3), ("s", 0))
                else: g.waittok(("x", 3), ("s", 0), ("s", 1))
                g("s_barrier"); g.mark("sl")
            elif un < 3: g.waittok(("x", un), lat=o["x1l"]); g("s_barrier"); g.mark("xl%d" % un)
            if un == 2: bump(g, sE0)
            if un == 5: g.need("e1s"); bump(g, sE1)
        NP = o["NP"]
        AU = [ACC[0], ACC[1]] * 3 if kP else [ACC[0], ACC[1], PF + 16, ACC[0], ACC[1], ACC[0]]
        NEED = {2: "e0", 3: "e1", 4: "e2", 5: "e3"} if kP else {3: "f0", 4: "f1", 5: "f3"}
        a2, a3 = (o["a2" if kP else "b2"] / 10, o["a3" if kP else "b3"] / 10)
        SPAN = {2: (o["a1"] / 10, a2), 3: (a2, a3), 4: (a3, 4), 5: (4, 5)}
        for un in range(2, 6):
            acc = AU[un]
            cm = f"{MF} {v(acc,16)}, {v(CA[un>3],4)}, {v(ST+4*un if un <= 3 else ST if un == 4 else CBS,4)}, "
            g = Stream()
            if un == 2:
                opening(g, 2)
                for ks in range(D): xread(g, 2, RG[2], ks)
                M.append(g); g = Stream()
            if un in NEED: g.need(NEED[un])
            self.stamp(g, "u%d" % un)
            clast = un == 4 or (un == 2 and o["c1l"])
            if not clast:
                g.need("c%d" % un); g(cm + "0"); M.append(g); g = Stream()
            last = o["kvpace" if kP else "fpace"] if un == 4 else 31
            for ks in range(32):
                for k in range(NP):
                    if ks == o["pace"] + (k + 1) * (last - o["pace"]) // NP:
                        n = int(round((SPAN[un][0] + (SPAN[un][1] - SPAN[un][0]) * (k + 1) / NP) * NP)) - 1
                        if n >= 0: g.need(("ep", n // NP, n % NP))
                if ks % 4 == 0:
                    if un == 4: g.need("sr%d" % (ks + 3)); g.waittok(("sr", ks + 3))
                    else: g.waittok(("xf", un, ks + 3))
                if ks == 28 and un == 5: g("s_barrier"); g.mark("r5")
                if ks + D == 32 and un < 5: opening(g, un + 1)
                g(f"{MF} {v(acc,16)}, {ag(4*ks,4)}, {ag(128+4*ks,4) if un == 4 else v(XF+4*(ks%NX),4)}, {v(acc,16) if (ks or not clast) else 0}")
                if ks + D < 32:
                    if un != 4: xread(g, un, RG[un], ks + D)
                elif un in (2, 4): xread(g, un + 1, RG[un + 1], ks + D - 32)
                if un >= 3: g.mark(("pd", un, ks))
                if un == 5 and ks == o["kvl"]: g.mark("kvl")
                if ks == 31 and not clast: g.mark("m%d" % un)
                M.append(g); g = Stream()
            if clast:
                g.need("c%d" % un); g(cm + v(acc, 16)); g.mark("cb%d" % un); g.mark("m%d" % un); M.append(g)
        tl.marks.add("m0")
        E = Stream()
        def paced(e, un):
            tot = sum(i.cost for i in e); c = 0; k = 0
            for i in e:
                E.append(i); c += i.cost
                while k < NP and c >= tot * (k + 1) / NP - 1e-9 and not i.glue: E.mark(("ep", un, k)); k += 1
            assert k == NP
        def selectk(st, i):
            k = KCS; j = i + 1 if i else 0
            st(f"v_cndmask_b32 {v(k)}, {v(KC[i])}, {v(KC[j])}, {sPAR}")
            if qS: st(f"v_mul_f32 {v(k+1)}, {f2u(LOG2E/K0)}, {v(k)}")
            else:
                st(f"v_cndmask_b32 {v(k+2)}, {v(KC[i]+2)}, {v(KC[j]+2)}, {sPAR}\nv_mul_f32 {v(k+1)}, {v(k)}, {v(k)}\nv_mul_f32 {v(k)}, {f2u(K0)}, {v(k)}")
                st(f"v_mul_f32 {v(k+1)}, {v(k+1)}, {v(k)}\nv_mul_f32 {v(k+1)}, {f2u(0.044715)}, {v(k+1)}")
        for un in range(4):
            e = Stream()
            if kP: kepi(e, un)
            else: e.need("m%d" % un); gelu(e, AU[un], KC[un], sAB[un], sBLKP, "actP")
            if kP and un == 3: kvpub(e)
            paced(e, un); E.mark("f%d" % un)
        E.mark("kvp")
        swapab(E, 2)
        selectk(E, 0); E.need("m4")
        e = Stream()
        if qS: qepi(e, AU[4], KCS, PF)
        else: gelu(e, ACC[0], KCS, sAB[0], sBLKS, "actS")
        paced(e, 4)
        selectk(E, 2); E.mark("e4"); E.need("m5"); self.stamp(E, "u6")
        if qS: qepi(E, AU[5], KCS, PF + 16)
        elif "h" not in abl: gelu(E, ACC[1], KCS, sAB[2], sBLKS, "actS", o["gpk"])
        self.stamp(E, "q"); E.mark("q5")
        X = Stream()
        X.waittok("stats")
        spin(X, tagtest(ST + 8), stats_ld(2, sA) + "\n" + stats_ld(3, sA), "stok")
        for i in range(2, 4): stat_consts(X, i); X.mark("c%d" % i)
        def select(st, i):
            for r in range(3): st(f"v_cndmask_b32 {v(CBS+r)}, {v(ST+4*i+r)}, {v(ST+4*i+4+r)}, {sPAR}")
        if o["xlate"]: X.need("kvp" if kP else "m3")
        select(X, 2); X(f"v_mov_b32 {v(CBS+3)}, 0")
        X.mark("e1s")
        X(f"s_and_b32 {sA}, s98, 0x100\ns_add_u32 {sA}, {sA}, {WS_ACT}\nv_and_b32 {v(vWR+1)}, 0xf0, {v(vL16)}\nv_and_b32 {v(vT0)}, 0x30, v0\nv_lshl_add_u32 {v(vT0)}, {v(vT0)}, 5, {sA}\nv_add_u32 {v(vWR+1)}, {v(vWR+1)}, {v(vT0)}")
        X.need("sl")
        X(f"s_lshr_b32 {sA}, {sWV}, 1\ns_lshl1_add_u32 {sA}, {sTT}, {sA}\ns_xor_b32 {sE0}, {sA}, 1\ns_mul_i32 {sA}, {sA}, {TBSTR}\ns_mul_i32 {sE0}, {sE0}, {TBSTR}")
        X(f"v_add_u32 {v(vAA)}, {sA}, {v(vWR+1)}\nv_add_u32 {v(vAA+2)}, {sE0}, {v(vWR+1)}\nv_xor_b32 {v(vAA+1)}, 0x100, {v(vAA)}\nv_xor_b32 {v(vAA+3)}, 0x100, {v(vAA+2)}")
        X2 = Stream()
        X2.need("kvp"); flag(X2, a_fl1 if kP else a_fl2(0), "kvp" if kP else "actP")
        X.need("cs"); corr_a(X, 1); X.mark("c4")
        X.mark("c5")
        S = Stream()
        C = Stream()
        S.need("xl2"); S.mark("k")
        S.need("sl")
        if o["ssplit"] == 2: S.waittok(("s", 0)); S("s_barrier")
        if o["ssplit"] == 3: S.waittok(("s", 1)); S("s_barrier")
        if kP and o["sg0"]: S.need(o["sg0"])
        for half in range(2):
            for ks in range(16 * half, 16 * half + 16):
                S.need(("pd", 3, ks))
                for e in range(1 if "i" in abl else 2): S(f"ds_read_b64_tr_b16 {ag(4*ks+2*e,2)}, {v(vSR)} offset:{(ks&15)*2048+e*512}", tok=("sr", ks))
                if ks % 4 == 3:
                    S.mark("sr%d" % ks); C.need("sr%d" % ks); C.waittok(("sr", ks))
                    if ks == 3: C.need("kvp" if o["prio" if kP else "priof"] else "m3")
                    for k2 in range(ks - 3, ks + 1 if ("a" not in abl or ks == 3) else 0): C(f"{MF16} {v(CS,4)}, {v(CSEL,4)}, {ag(4*k2,4)}, {v(CS,4) if k2 else 0}")
                if ks == 19 and kP and o["sg1"]: S.waittok(("sr", 15)); S("s_barrier"); S.mark("sa"); S.need(o["sg1"])
                if ks == 15: S(f"v_subrev_u32 {v(vSR)}, {R[4]}, {v(vSR)}")
                if ks == 15 and o["ssplit"] in (1, 2): S.waittok(("s", 1)); S.waittok(("sr", 15)); S("s_barrier"); S.mark("sa")
                if ks == 19 and o["ssplit"] in (0, 3) and not (kP and o["sg1"]): S.waittok(("sr", 15)); S("s_barrier"); S.mark("sa")
        S(f"v_add_u32 {v(vWQ)}, {sW8K}, {v(vWR)}")
        for i in range(1, 4): S(f"v_xor_b32 {v(vWQ+i)}, {32*i}, {v(vWQ)}")
        S.waittok(("sr", 31)); S("s_barrier"); S.mark("sb")
        C.mark("cs")
        if o["prio" if kP else "priof"] == 1: S.need("kvp")
        for b in range(nE):
            S.need(("pd", 4, 4 * b + 3)); wread(S, b)
            if b: S.waittok(("wr", b - 1)); S.mark("wr%d" % (b - 1))
        S.waittok(("wr", nE - 1)); S.mark("wr%d" % (nE - 1))
        def res():
            B(f"buffer_load_dwordx4 {v(XR,4)}, {v(vOUT)}, {sX}, {sPCOL} offen", sp=o["spx3"])
            B(f"s_add_u32 {sM}, {sPCOL}, 0x2000\nbuffer_load_dwordx4 {v(XR+4,4)}, {v(vOUT)}, {sX}, {sM} offen", "res", sp=o["spx3"])
        if not o["rord"]: res()
        def tlbw(pos):
            if o["tlbp"] != pos: return
            if o["tlb"] & 1: B(f"buffer_load_dword {v(vFL+1)}, {v(vZ)}, {sOut}, {sPCOL} offen sc1", None, "stok", sp=16); tl.bg[-1].ins[-1].wr = []
            if o["tlb"] & 2: B(f"s_mul_i32 {sM}, {sTT}, {2*TBSTR}\ns_add_u32 {sM}, {sM}, {WS_ACT+TBSTR}\nbuffer_load_dword {v(vFL+1)}, {v(vZ)}, {sWS}, {sM} offen sc1", None, "stok", sp=16); tl.bg[-1].ins[-1].wr = []
            if o["tlb"] & 4 and kP: B(f"buffer_load_dword {v(vFL+1)}, {v(vZ)}, {sWS}, {sAB[0]} offen sc1", None, "stok", sp=16); tl.bg[-1].ins[-1].wr = []
        warm3(2); tlbw(0); dma_s(0, "k"); warm3(3); tlbw(1)
        if o["xord"]: dma_x(3, None, o["spx3"])
        dma_s(1, "k"); warm3(4); tlbw(2)
        if o["rord"]: res()
        def wafter(b):
            n = LORD.index(b)
            return "k" if n < 2 else "sa" if n < 4 else "sb" if n < 6 else "wr%d" % (n - 6) if n < 14 else "r5"
        nB = o.get("nB", 13) if qS else o.get("nBf", 11)
        for n in range(nB):
            if qS and n == o.get("nK", 10): fl_bg(sFK, 0, "fK", "kvl")
            dma_w(LORD[n], wafter(LORD[n]))
        if qS and nB <= o.get("nK", 10): fl_bg(sFK, 0, "fK", "kvl")
        late = LORD[nB:]

        AC2 = 0; AF = 64; NB = 4
        fO = o["fO"] if qS else o["fOf"]; fS = o["fSa"] if qS else o["fS"]
        def af(idx): return ag(AF + 4 * (idx % 16), 4)
        def acts():
            for bb in range(11):
                if bb == fS: fl_bg(sFL, 256, "fS", "fP")
                if bb == fO: fl_bg(sFL, 512, "fO", "fa8")
                r, i = blk(bb)
                pre = ""
                if bb == 10: pre = f"s_cmp_eq_u32 {r}, {43*2048}\ns_cselect_b32 {r}, {'0x20000000' if o['z5'] else sBS[0]}, {r}"
                elif o["wrot"] and bb < 8:
                    pre = f"s_add_u32 {sRW}, {sRW}, 0x800\ns_and_b32 {sRW}, {sRW}, 0x1800\ns_add_u32 {sM}, {r}, {sRW}"; r, i = sM, 0
                elif i == 2: pre = f"s_add_u32 {r}, {r}, 4096"
                for k in range(4):
                    idx = 4 * bb + k
                    aft = {0: "fP", 32: "fS", (4 * o.get("gate", 99) if qS else 99): "pub"}.get(idx, ("mt", idx - 16) if idx >= 16 else None)
                    B(f"{pre}\nbuffer_load_dwordx4 {af(idx)}, {v(vAA+k)}, {sWS}, {r} offen offset:{2048*(i&1)} sc1", ("act", idx), aft, sp=o["spa"]); pre = ""
            if fO == 11: fl_bg(sFL, 512, "fO", "fa8")
            for n in range(16):
                idx = 44 + n; p = 4 * ((n >> 1) & 3) + 2 * (n >> 3)
                pre = "" if n & 1 else f"s_mov_b32 {sM}, {(43+p)*2048}"
                B(f"{pre}\nbuffer_load_dwordx4 {af(idx)}, {v(vAA)}, {sWS}, {sM} offen offset:{2048*(n&1)} sc1", ("act", idx), "fO" if n == 0 else ("mt", idx - 16), sp=o["spo"])
        assert fS >= 5 and fO >= 8
        s = Stream()
        if not qS:
            fl_bg(sFL, 0, "fP", "r5")
            for b in late: dma_w(b, wafter(b))
            acts()
            X2.need("m5"); fl_check(X2, sFL, 0, "fP")
            E.mark("odone"); FS = [X, X2, S, C, E]
        else:
            Z = ST + 8; ZT = F8a; KA = XF
            X2.need("sb")
            X2(f"s_mul_i32 {sD}, {sHD}, {KVREC}\ns_add_u32 {sD}, {sD}, {WS_KVP}\nv_add_u32 {v(vJ)}, {sD}, {v(vL16)}")
            X2(f"v_and_b32 {v(vXD0)}, 0x30, {v(vL16)}\nv_lshrrev_b32 {v(vSR)}, 4, v0\nv_lshl_add_u32 {v(vXD0)}, {v(vSR)}, 2, {v(vXD0)}")
            X2.need("c5")
            fl_check(X2, sFK, 0, "fK")
            X2(f"v_and_b32 {v(vFA)}, 0x38, {v(vFA)}"); X2.mark("gat")
            gsp = o.get("gsp", 48)
            B(f"s_movk_i32 {sM}, 0x4000\nbuffer_load_dwordx4 {v(Z,4)}, {v(vJ)}, {sWS}, {sM} offen sc1", "z", "gat", sp=gsp)
            NG = 2 if "c" in abl else 16
            for p in range(NG):
                if p == o["nP"]: fl_bg(sFL, 0, "fP", None)
                gq = o["gq"]
                pre = "" if p % gq else f"s_lshl_b32 {sM}, {sROT}, 11\ns_and_b32 {sM}, {sM}, {0x4000-1024*gq}" if p == 0 else f"s_add_u32 {sM}, {sM}, {1024*gq}\ns_and_b32 {sM}, {sM}, 0x3fff"
                B(f"{pre}\nbuffer_load_dwordx4 {ag(4*p,4)}, {v(vJ)}, {sWS}, {sM} offen offset:{(p%gq)*1024} sc1", ("g", p), ("pd", 5, p), sp=gsp)
            nL = o.get("nL", 0)
            for b in late[:nL]: dma_w(b, wafter(b))
            if o["nP"] >= 16: fl_bg(sFL, 0, "fP", None)
            for b in late[nL:]: dma_w(b, wafter(b))
            acts()
            xo, xs, zw, zr = (CA[0] + i for i in range(4))
            X2(f"s_add_u32 {sD}, {sW16K}, {R[2]+4096}\nv_add_u32 {v(xo)}, {sD}, {v(vL16)}\nv_xor_b32 {v(xs)}, 0x4000, {v(xo)}")
            X2(f"v_add_u32 {v(zw)}, {sD}, {v(vXD0)}\nv_lshl_add_u32 {v(zr)}, {v(vSR)}, 4, {sD}"); X2.mark("xa")
            X2.waittok("z")
            for i in range(4): X2(f"v_lshlrev_b32 {v(ZT+i)}, 16, {v(Z+i)}\nv_and_b32 {v(ZT+4+i)}, 0xffff0000, {v(Z+i)}")
            for i in range(0, 8, 2): X2(f"v_permlane16_swap_b32 {v(ZT+i)}, {v(ZT+i+1)}")
            for i in range(0, 8, 2): X2(f"v_add_f32 {v(ZT+i)}, {v(ZT+i)}, {v(ZT+i+1)}")
            for i in (0, 4): X2(f"v_permlane32_swap_b32 {v(ZT+i)}, {v(ZT+i+2)}")
            for i in (0, 4): X2(f"v_add_f32 {v(ZT+i)}, {v(ZT+i)}, {v(ZT+i+2)}")
            for m in ("row_ror:4", "row_ror:8"):
                for i in (0, 4): X2(f"v_add_f32_dpp {v(ZT+i)}, {v(ZT+i)}, {v(ZT+i)} {m} {DPPM}")
            X2(f"v_cvt_pk_bf16_f32 {v(Z)}, {v(ZT)}, {v(ZT+4)}")
            X2.need("r5"); X2(f"ds_write_b32 {v(zw)}, {v(Z)} offset:4096\nds_read_b128 {v(Z,4)}, {v(zr)} offset:4096", tok="zr"); X2.mark("zr")
            X2.need("m5"); fl_check(X2, sFL, 0, "fP")
            XC = Stream(); XC.need("xa"); XC.need("r5"); XC.need(("sib", PF))
            for k in range(4):
                if k == 2: XC.need(("sib", PF + 16))
                XC(f"ds_write_b128 {v(xo)}, {v(PF+8+16*(k>>1)+4*(k&1),4)} offset:{1024*k+8192*o['mb']}", tok="xw")
            if o["mb"]: XC.waittok(("w", 14), lat=o["wlat"])
            XC.waittok("xw"); XC("s_barrier"); XC.mark("xwb")
            for k in range(4): XC(f"ds_read_b128 {v(PF+8+16*(k>>1)+4*(k&1),4)}, {v(xs)} offset:{1024*k+8192*o['mb']}", tok="xr")
            XC.waittok("xr")
            if o["xb2"]: XC("s_barrier")
            XC.mark("xr")
            G = Stream(); G.need("m5")
            if o["pk"]: G.need(("sib", PF + 16))
            for p in range(NG):
                if p % 2 == 0: G.waittok(("g", p + 1))
                G(f"{MF} {v(KA,16)}, {v(SEL[0],4)}, {ag(4*p,4)}, {v(KA,16) if p else 0}")
            G.mark("gdone")
            KP = KA + 16
            G(f"s_add_u32 {sSO[0]}, {sHD}, 86\ns_lshl_b32 {sSO[0]}, {sSO[0]}, 10")
            for i in range(4): G(f"v_cvt_pk_bf16_f32 {v(KP+i)}, {v(KA+2*i)}, {v(KA+2*i+1)}")
            G.need("zr"); G.waittok("zr")
            for i in range(4): G(f"v_permlane16_swap_b32 {v(KP+i)}, {v(Z+i)}")
            self.stamp(G, "kvx")
            O = Stream()
            for n, A in ((0, AU[4]), (1, KA), (3, AU[5]), (2, TA)):
                if n == 0: G.need("e4")
                if n == 1: G.need("xr")
                if n == 2: G.need("q5")
                G(f"{MF} {v(A,16)}, {v(KP,4)}, {v(PF+8*n,4)}, 0\n{MF} {v(A,16)}, {v(Z,4)}, {v(PF+8*n+4,4)}, {v(A,16)}"); G.mark(("om", n))
                O.need(("om", n))
                O(f"v_add_f32 {v(A+8)}, {f2u(1e-6)}, {v(A+8)}\nv_rcp_f32 {v(A+8)}, {v(A+8)}")
                O(f"s_add_u32 {sSO[1]}, {sAB[n]}, {sSO[0]}")
                if o["opk"] and n:
                    for i in range(0, 8, 2): O(f"v_pk_mul_f32 {v(A+i,2)}, {v(A+i,2)}, {v(A+8,2)} op_sel_hi:[1,0]")
                else:
                    for i in range(8): O(f"v_mul_f32 {v(A+i)}, {v(A+i)}, {v(A+8)}")
                for i in range(4): O(f"v_cvt_pk_bf16_f32 {v(A+12+i)}, {v(A+2*i)}, {v(A+2*i+1)}")
                O(f"buffer_store_dwordx4 {v(A+12,4)}, {v(vL16)}, {sWS}, {sSO[1]} offen sc1", tok="actO")
                if o.get("nost") and n != 2: O.pop()
            self.stamp(O, "o"); O.mark("odone")
            FS = [X, X2, S, C, XC, G, O, E] if o["ofirst"] else [X, X2, S, C, XC, G, E, O]
        def grp2(pre, text, post=None):
            g = Stream(); g.small = o["nds2"]
            if pre: pre(g)
            g(text)
            if post: post(g)
            M.append(g)
        def wo(n): return (lambda k, c=2: v(96 + 16 * n + k, c)) if n < 10 else (lambda k, c=2: ag(128 + 16 * ((n - 7) % 8) + k, c))
        for bb in range(11):
            for kk, k in enumerate((1, 2, 3, 0) if bb == 10 else range(4)):
                idx = 4 * bb + k
                for cc in range(4):
                    cb = 3 - cc if kk & 1 else cc
                    def pre(g):
                        if kk == 0:
                            if bb == 0:
                                g.need("wr7")
                                if qS: g.need("odone" if o["p2hold"] else "gdone")
                            if bb == fS:
                                g.need("pub"); fl_check(g, sFL, 256, "fS")
                                g(f"v_lshrrev_b32 {v(vFA)}, 1, {v(vN16)}\ns_and_b32 {sFL}, {sFL}, 0xffffff3f"); g.mark("fa8")
                            if bb == fO: g.need("pub"); fl_check(g, sFL, 512, "fO")
                            if bb >= nE: g.need("wq%d" % bb); g.waittok(("wr", bb), lat=0)
                        if kk % 2 == 0:
                            g.waittok(("act", 4 * bb + (kk + 1 if bb < 10 else 2 + kk // 2)), ahead=o["ah2"] if bb >= o["p2e"] else 0, lat=0 if bb >= o["p2e"] else None)
                    def post(g):
                        g.mark(("mt", idx))
                        if kk == 3: g.mark(("mm", bb)); self.stamp(g, "mm%d" % bb)
                    A = ag(AC2 + 16 * k + 4 * cb, 4)
                    grp2(pre if cc == 0 else None, f"{MF16} {A}, {ag(128+16*(bb%8)+4*cb,4)}, {af(idx)}, {A if bb else 0}", post if cc == 3 else None)
        if fO == 11:
            g = Stream(); g.need("pub")
            if o.get("qfirst"): g.need(("qa", 2))
            fl_check(g, sFL, 512, "fO"); M.append(g)
        for n in range(16):
            for cb in range(4):
                def pre(g):
                    g.need(("wo", n)); g.waittok(("wo", n), lat=0)
                    if n % 2 == 0 or n > 12: g.waittok(("act", 44 + (n if n >= 12 else n + 1)), ahead=o["aho"], lat=0)
                def post(g):
                    if n == 15: g.mark("oend"); self.stamp(g, "mm14")
                A = ag(AC2 + 4 * cb, 4)
                grp2(pre if cb == 0 else None, f"{MF16} {A}, {wo(n)(4*cb,4)}, {af(44+n)}, {A}", post if cb == 3 else None)
        W = Stream(); W.need("m5")
        for b in range(nE, 11):
            W.need(("mm", b - 8)); wread(W, b); W.mark("wq%d" % b)
        W2s = Stream(); W2s.need("m5")
        W2s(f"v_add_u32 {v(vXR)}, {R[4]}, {v(vWR)}")
        for i in range(1, 4): W2s(f"v_xor_b32 {v(vXR+i)}, {32*i}, {v(vXR)}")
        if qS and o["mb"]: W2s.need("xwb"); W2s.need("odone")
        else: W2s.waittok(("w", 14), lat=o["wlat"]); W2s.need("odone"); W2s("s_barrier")
        W2s.mark("wob")
        for n in range(16):
            if n == 8: wbump(W2s, vXR, -R[4])
            if n >= 10: W2s.need(("mm", n - 7))
            wfrags(W2s, wo(n), vXR, (n & 7) * 4096, ("wo", n)); W2s.mark(("wo", n))
        X = Stream(); X.need("odone"); X.need("fP")
        flag(X, a_fl2(2 if qS else 1), "actO" if qS else "actS", o["stlat2"])
        X.mark("pub"); Xf = X; X = Stream(); X.need("pub"); X.need("wq10")
        RW = vKA; RR = [vWD, vWD + 2, vT2, vJ]; Y = ACC[0]; Pp = ACC[1]
        assert Y == 48 and Pp == 64
        vJ2 = (vSR, vXD0)
        rr = lambda k, e: v(RR[k] + e) if k < 3 else v(vJ2[e])
        X(f"v_lshrrev_b32 {v(vT0)}, 4, v0\nv_and_b32 {v(vT1)}, 7, v0\nv_xor_b32 {v(vT0)}, {v(vT0)}, {v(vT1)}\nv_and_b32 {v(RW)}, 0xf0, {v(vL16)}")
        X(f"v_add_lshl_u32 {v(vT0)}, {v(RW)}, {v(vT0)}, 4\ns_add_u32 {sA}, {sW16K}, {R[2]}\nv_add_u32 {v(RW)}, {sA}, {v(vT0)}\nv_xor_b32 {v(RW+1)}, 64, {v(RW)}")
        X(f"v_lshrrev_b32 {v(vT0)}, 3, v0\nv_lshlrev_b32 {v(vT1)}, 1, {v(vT1)}\nv_xor_b32 {v(vT1)}, {v(vT1)}, {v(vT0)}\nv_lshlrev_b32 {v(vT1)}, 4, {v(vT1)}\nv_lshl_add_u32 {v(vT0)}, {v(vT0)}, 8, {v(vT1)}")
        X(f"v_add_u32 {v(vT0)}, {sA}, {v(vT0)}")
        for k in range(4):
            m = 16384 * ((k + 1) & 3) + 4096 * k
            X(f"v_xor_b32 {rr(k,0)}, {m}, {v(vT0)}\nv_xor_b32 {rr(k,1)}, {m+16}, {v(vT0)}")
        for it in range(2):
            for i in range(4):
                X(f"v_lshlrev_b32 {v(Y+8*it+2*i)}, 16, {v(XR+4*it+i)}\nv_and_b32 {v(Y+8*it+2*i+1)}, 0xffff0000, {v(XR+4*it+i)}")
        for i in range(4):
            X(f"v_lshlrev_b32 {v(vT0)}, 16, {v(B2+i)}\nv_and_b32 {v(vT1)}, 0xffff0000, {v(B2+i)}")
            for it in range(2):
                X(f"v_add_f32 {v(Y+8*it+2*i)}, {v(Y+8*it+2*i)}, {v(vT0)}\nv_add_f32 {v(Y+8*it+2*i+1)}, {v(Y+8*it+2*i+1)}, {v(vT1)}")
        X(f"s_add_u32 {sB}, {sPCOL}, 0x2000"); X.mark("fin")
        Q = Stream(); Z2 = Stream(); Q.need("fin"); Q.need("wob")
        def qw(k, slot, tok):
            for cb in range(4): Q(f"ds_write_b128 {v(RW+(cb&1))}, {ag(AC2+16*k+4*cb,4)} offset:{slot*4096+(cb>>1)*128}", tok=tok)
        def qr(k):
            for it in range(2):
                for e in range(2): Q(f"ds_read_b128 {v(Pp+16*(k&1)+8*it+4*e,4)}, {rr(k,e)} offset:{it*2048}", tok=("qr", k, it))
            Q.mark(("qr", k))
        for k in range(1, 4): Q.need(("mt", 40 + k)); qw(k, k - 1, "qw")
        Q.waittok("qw", lat=80); Q("s_barrier"); self.stamp(Q, "red0")
        for k in range(3):
            if k == 2: Q.need(("qa", 0))
            qr(k)
            Z2.need(("qr", k)); Z2.waittok(("qr", k, 1))
            for i in range(16): Z2(f"v_add_f32 {v(Y+i)}, {v(Y+i)}, {v(Pp+16*(k&1)+i)}")
            Z2.mark(("qa", k))
        Q.need("oend"); Q.need(("qa", 1)); qw(0, 3, "qw2"); self.stamp(Q, "red"); qr(3)
        Z2.need(("qr", 3))
        for it in range(2):
            Z2.waittok(("qr", 3, it), lat=100)
            for i in range(0, 8, 2): Z2(f"v_pk_add_f32 {v(Y+8*it+i,2)}, {v(Y+8*it+i,2)}, {v(Pp+16+8*it+i,2)}")
            for i in range(4): Z2(f"v_cvt_pk_bf16_f32 {v(XR+4*it+i)}, {v(Y+8*it+2*i)}, {v(Y+8*it+2*i+1)}")
            Z2(f"buffer_store_dwordx4 {v(XR+4*it,4)}, {v(vOUT)}, {sOut}, {sB if it else sPCOL} offen{' sc1' if o['outsc1'] else ''}"); self.stamp(Z2, "out%d" % it)
        tl.sched(M, FS + [Xf, W, Q, Z2, W2s, X], nds=o.get("nds", 3))
        s = Stream()
        if kP:
            noe = self.lab("noe")
            s(f"s_or_b32 {sA}, s2, {sWV}\ns_cmp_lg_u32 {sA}, 0\ns_cbranch_scc1 {noe}")
            s(f"s_mov_b64 exec, 1\nbuffer_store_dword {v(vTAG)}, {v(vZ)}, {sWS}, 0 offen sc1\ns_mov_b64 exec, -1", cond=True)
            s(noe + ":")
        if o.get("probe"):
            lp, l2, l3 = self.lab("pad"), self.lab("ref"), self.lab("skip"); K = o.get("K", 4)
            s("s_waitcnt vmcnt(0)"); self.stamp(s, "end"); s("s_waitcnt lgkmcnt(0)")
            if o.get("st") == "start": s("s_mov_b32 s60, s100")
            s(f"s_or_b32 {sA}, s2, {sWV}\ns_cmp_lg_u32 {sA}, 0\ns_cbranch_scc1 {l2}")
            s(f"v_mov_b32 {v(vT0)}, s100\nv_mov_b32 {v(vT1)}, {v(vTAG)}\nbuffer_store_dwordx2 {v(vT0,2)}, {v(vZ)}, {sWS}, 0 offen offset:2048 sc1", cond=True)
            s(f"{l2}:\ns_sleep 64\nbuffer_load_dwordx2 {v(vT0,2)}, {v(vZ)}, {sWS}, 0 offen offset:2048 sc1\ns_waitcnt vmcnt(0)\nv_cmp_ne_u32 vcc, {v(vT1)}, {v(vTAG)}\ns_nop 4\ns_cbranch_vccnz {l2}")
            s(f"v_readfirstlane_b32 s66, {v(vT0)}\ns_nop 4\ns_sub_u32 s60, s60, s66")
            if o["probe"] == "min": s("s_sub_u32 s60, 1200, s60")
            else: s("s_add_u32 s60, s60, 300")
            if o.get("only", role) != role: s("s_mov_b32 s60, 0")
            s(f"s_mul_i32 s60, s60, {K}\ns_add_u32 s60, s60, 4000")
            s(f"{lp}:\ns_memrealtime s[64:65]\ns_waitcnt lgkmcnt(0)\ns_sub_u32 s64, s64, s66\ns_cmp_lt_u32 s64, s60\ns_cbranch_scc1 {lp}")
        elif o["stamps"]:
            s("s_waitcnt vmcnt(0)\ns_memrealtime s[64:65]\ns_waitcnt lgkmcnt(0)")
            s(f"s_lshl2_add_u32 {sA}, s2, {sWV}\ns_lshl_b32 {sA}, {sA}, 6\ns_add_u32 {sA}, {sA}, {WS_STAMP}")
            for i, r in enumerate(["s100"] + ["s%d" % k for k in STAMPR] + ["s64"]):
                s(f"v_mov_b32 {v(vT1)}, {r}\nbuffer_store_dword {v(vT1)}, {v(vZ)}, {sWS}, {sA} offen offset:{4*i}")
        tl.straight(s)
        assert tl.bi == len(tl.bg)
        tl.log.append("end t=%d forced=%d" % (tl.t, tl.forced))
        if o["log"]: sys.stderr.write("\n".join(role + " " + x for x in tl.log) + "\n")
        return tl.out

    def build(self):
        outs = {}
        for role in ("att", "ffn"):
            st = {}
            outs[role] = finalize(self.role(role), st)
            sys.stderr.write("%s: %s\n" % (role, st))
        ia, jf = outs["att"].index("L_split:"), outs["ffn"].index("L_split:")
        assert outs["att"][:ia] == outs["ffn"][:jf], "common start differs"
        parts = [outs["att"][:ia] + ["s_branch L_att"], outs["att"][ia + 1:] + ["s_endpgm"] + self.side["att"], outs["ffn"][jf + 1:] + ["s_endpgm"] + self.side["ffn"]]
        if self.o["sp0g"]:
            parts = [parts[0] + self.side["att"] + self.side["ffn"], outs["att"][ia + 1:] + ["s_endpgm"], outs["ffn"][jf + 1:]]
        tmp = [f"L_pad_{r}_{k}:" for r in ("att", "ffn") for k in range(4)] + ["L_att:", "L_ffn:", "L_end:", NAME + "_kernel:"]
        sz = instr_sizes(parts[0] + parts[1] + parts[2] + tmp); lam = self.o["lam"] / 100
        text, _ = layout(parts[0], sz[:len(parts[0])], lam); p0 = len(parts[0])
        for r, part in (("att", parts[1]), ("ffn", parts[2])):
            so = 64 * self.o["ro"]
            x, n = layout(part, sz[p0:p0 + len(part)], lam, (lambda k: [f"L_pad_{r}_{k}:", f"s_cbranch_execz PADNEXT{k}"]) if self.o["pad"] else None, so)
            p0 += len(part)
            assert not self.o["pad"] or 4 <= n <= 8
            x = [re.sub(r"PADNEXT(\d)", lambda m: f"L_pad_{r}_{int(m.group(1))+4}" if int(m.group(1)) + 4 < n else f"L_ret_{r}", l) for l in x]
            text += [".p2align 12"] + ([".fill %d, 4, 0xbf800000" % (so // 4)] if so else []) + [f"L_{r}:"] + x
            sys.stderr.write("%s: %d landing pads\n" % (r, n))
        text += ["L_end:", "s_endpgm"]
        body = "\n".join(t if t.endswith(":") else "    " + t for t in text) + "\n"
        hdr = ["@launch grid=(256,1,1) block=(256,1,1) lds=163840",
               "out = x + Hedgehog-linear-attention(LN(x)) + FFN_gelu(LN(x)); one persistent launch, 256 co-resident workgroups (one per CU).",
               "Straight-line code written by my own generator (instruction lists + list scheduler + wait/hazard pass).",
               "Phase 1 (128 tokens x 192 features per workgroup, weights held in AGPRs, x staged in LDS by DMA):",
               "  role A: K,V of 4 heads -> dual softmax (true max subtracted) -> partial phi_k^T [v|1]; then 1-2 hidden blocks -> GELU(tanh form)",
               "  role B: 4 hidden blocks -> GELU; then Q of 4 heads -> dual softmax; sums the 16 partial kv/z records; o = num / (den + 1e-6)",
               "  LayerNorm is applied after the product: rank-1 MFMA with column sums (mean, bias) and a per-token 1/std scale.",
               "Phase 2 (64 tokens x 64 columns per workgroup): [h | o] @ [w2 ; wo] + b2 + x.",
               "Hand-offs through d_ws: write-through (sc1) stores, vmcnt wait, then a tagged flag per producing wave; consumers poll with sc1 loads.",
               "The tag is d_ws[0] + constant (read at entry, advanced by workgroup 0 at its end); it only tells this launch's hand-offs from older ones.",
               "Poll loops (L_retry_*) are bounded so that a broken launch cannot hang the device.",
               "Instruction prefetch stops at 4-KB pages: early on each wave jumps once to the first line of a later page (L_pad_*, branches only) and back."]
        m = module(hdr, [(NAME + "_kernel", body, 512, 256)])
        if self.o["pa"]:
            pad = ".p2align 12\n" + (".fill %d, 4, 0xbf800000\n" % (64 * self.o["po"]) if self.o["po"] else "")
            m = m.replace(".text\n", ".text\n" + pad, 1)
        return m

if __name__ == "__main__":
    opt = {}
    for x in sys.argv[2:]:
        k, _, val = x.partition("=")
        opt[k] = (int(val) if val.lstrip("-").isdigit() else val) if val else True
    open(sys.argv[1], "w").write(Gen(**opt).build())
```
